```python
import torch

def _softmax(x, axis=-1):
    return torch.softmax(x, dim=axis)
def _gelu(x):
    return torch.nn.functional.gelu(x, approximate="tanh")
def _silu(x):
    return torch.nn.functional.silu(x)
def _sigmoid(x):
    return torch.sigmoid(x)
def _layernorm(x, axis=-1, eps=1e-5):
    m = x.mean(dim=axis, keepdim=True)
    v = x.var(dim=axis, keepdim=True, unbiased=False)
    return (x - m) / torch.sqrt(v + eps)
def _scatter_add(tgt, idx, src, axis=0):
    return tgt.clone().index_add_(axis, idx, src)
def _segment_sum(src, seg, n):
    out = torch.zeros((n,) + src.shape[1:], dtype=src.dtype)
    return out.index_add_(0, seg, src)
def _pad(x, pw):
    flat = tuple(v for pair in reversed(pw) for v in pair)
    return torch.nn.functional.pad(x, flat)

kernel_name = 'standalone__mha_block_cached__near_ridge'

def setup_inputs():

    _w = (lambda a: (lambda t: t.to(torch.bfloat16) if t.is_floating_point() else t)(torch.as_tensor(a)))
    B, Sq, D = 8, 160, 1024
    H, Sk, Dh = 32, 512, 128
    return {
        "x": _w((lambda *s: torch.randn(*s, dtype=torch.bfloat16) * 0.8)(B, Sq, D)),
        "k_cache": _w((lambda *s: torch.randn(*s, dtype=torch.bfloat16) * 0.8)(B, H, Sk, Dh)),
        "v_cache": _w((lambda *s: torch.randn(*s, dtype=torch.bfloat16) * 0.05)(B, H, Sk, Dh)),
        "wq": _w((lambda *s: torch.randn(*s, dtype=torch.bfloat16) * 0.8)(D, H * Dh) * (D ** -0.5)),
        "wo": _w((lambda *s: torch.randn(*s, dtype=torch.bfloat16) * 0.05)(H * Dh, D) * ((H * Dh) ** -0.5)),
    }

def reference(x, k_cache, v_cache, wq, wo):
    B, Sq, D = x.shape
    H, Dh = 32, 128
    q = (lambda x, *d: x.permute(*d))((x @ wq).reshape(B, Sq, H, Dh), 0, 2, 1, 3)
    scores = torch.einsum("bhqd,bhkd->bhqk", q, k_cache) * (Dh ** -0.5)
    p = _softmax(scores, axis=-1)
    o = torch.einsum("bhqk,bhkd->bhqd", p, v_cache)
    return (lambda x, *d: x.permute(*d))(o, 0, 2, 1, 3).reshape(B, Sq, H * Dh) @ wo
```

```python
import re

REG_RE = re.compile(r'^(-|\|)?(abs\()?([vas])(\d+)\)?\|?$')
RNG_RE = re.compile(r'^(-|\|)?(abs\()?([vas])\[(\d+):(\d+)\]\)?\|?$')

def regs_of(op):
    op = op.strip()
    m = REG_RE.match(op)
    if m: return [(m.group(3), int(m.group(4)))]
    m = RNG_RE.match(op)
    if m: return [(m.group(3), i) for i in range(int(m.group(4)), int(m.group(5)) + 1)]
    if op == 'vcc': return [('s', 'vcc')]
    if op == 'exec': return [('s', 'exec')]
    if op == 'm0': return [('s', 'm0')]
    return []

def split_ops(rest):
    out = []; depth = 0; cur = ''
    for ch in rest:
        if ch == '[': depth += 1
        if ch == ']': depth -= 1
        if ch == ',' and depth == 0:
            out.append(cur.strip()); cur = ''
        else: cur += ch
    if cur.strip(): out.append(cur.strip())
    if out:
        parts = out[-1].split()
        out[-1] = parts[0]
        mods = parts[1:]
    else: mods = []
    return out, mods

TRANS = ('v_exp_f32', 'v_log_f32', 'v_rcp_f32', 'v_rsq_f32', 'v_sqrt_f32', 'v_sin_f32', 'v_cos_f32')

class Ins:
    __slots__ = ('text', 'mn', 'ops', 'mods', 'rd', 'wr', 'kind', 'passes', 'srcC', 'srcAB', 'data')
    def __init__(self, text):
        self.text = text
        t = text.split(';')[0].strip()
        sp = t.split(None, 1)
        self.mn = mn = sp[0]
        self.ops, self.mods = split_ops(sp[1]) if len(sp) > 1 else ([], [])
        ops = self.ops
        R = lambda i: regs_of(ops[i]) if i < len(ops) else []
        allr = lambda a: [r for i in range(a, len(ops)) for r in regs_of(ops[i])]
        self.passes = 0; self.srcC = []; self.srcAB = []; self.data = []
        if mn.startswith('v_mfma'):
            self.kind = 'mfma'; self.wr = R(0); self.srcAB = R(1) + R(2); self.srcC = R(3); self.rd = self.srcAB + self.srcC
            self.passes = 8 if '32x32' in mn else 4
        elif mn.startswith('v_'):
            self.kind = 'valu'
            if mn.startswith('v_permlane') and 'swap' in mn:
                self.wr = R(0) + R(1); self.rd = R(0) + R(1)
            elif mn.startswith('v_cmp'):
                self.wr = R(0); self.rd = allr(1)
            elif mn.startswith(('v_add_co', 'v_sub_co', 'v_addc_co', 'v_subb_co')):
                self.wr = R(0) + R(1); self.rd = allr(2)
            elif mn.startswith(('v_fmac', 'v_dot2c')):
                self.wr = R(0); self.rd = allr(0)
            elif mn == 'v_nop':
                self.wr = []; self.rd = []
            else:
                self.wr = R(0); self.rd = allr(1)
        elif mn.startswith('ds_read') or mn.startswith('ds_bpermute') or mn.startswith('ds_swizzle'):
            self.kind = 'ds'; self.wr = R(0); self.rd = allr(1)
        elif mn.startswith('ds_write'):
            self.kind = 'ds'; self.wr = []; self.rd = allr(0)
        elif mn.startswith(('buffer_load', 'global_load')):
            self.kind = 'vmem'
            if 'lds' in self.mods or '_lds_' in mn:
                self.wr = []; self.rd = allr(0) + [('s', 'm0')]
            else:
                self.wr = R(0); self.rd = allr(1)
        elif mn.startswith(('buffer_store', 'global_store', 'buffer_atomic', 'global_atomic')):
            self.kind = 'vmem'; self.wr = []; self.rd = allr(0)
            if mn.endswith(('x3', 'x4')):
                self.data = R(0) if mn.startswith('buffer') else R(1)
        elif mn.startswith(('buffer_wbl2', 'buffer_inv')):
            self.kind = 'vmem'; self.wr = []; self.rd = []
        elif mn.startswith(('s_load', 's_buffer_load', 's_memtime', 's_memrealtime')):
            self.kind = 'smem'; self.wr = R(0); self.rd = allr(1)
        elif mn.startswith('s_cmp') or mn in ('s_barrier', 's_waitcnt', 's_nop', 's_endpgm', 's_setprio', 's_sleep') or mn.startswith(('s_cbranch', 's_branch')):
            self.kind = 'salu'; self.wr = []; self.rd = allr(0) if mn.startswith('s_cmp') else []
        elif mn.startswith('s_'):
            self.kind = 'salu'; self.wr = R(0); self.rd = allr(1)
            if 'saveexec' in mn: self.wr = self.wr + [('s', 'exec')]
        else:
            raise ValueError('unknown instr ' + text)
    def states(self):
        if self.mn == 's_nop': return int(self.ops[0], 0) + 1
        return 1

def need_states(p, c):
    n = 0
    pw = set(p.wr); cr = set(c.rd); cw = set(c.wr)
    isv = lambda s: {r for r in s if r[0] in 'va'}
    iss = lambda s: {r for r in s if r[0] == 's'}
    if p.kind == 'valu':
        if c.kind == 'mfma' and isv(pw) & cr: n = max(n, 2)
        if c.kind == 'valu':
            if p.mn.startswith(TRANS) and not c.mn.startswith(TRANS) and isv(pw) & cr: n = max(n, 1)
            if c.mn.startswith('v_permlane') and isv(pw) & cr: n = max(n, 2)
            if c.mn.startswith(('v_readfirstlane', 'v_readlane')) and isv(pw) & cr: n = max(n, 1)
            if any('dpp' in m or m.startswith(('row_', 'quad_perm')) for m in c.mods) and isv(pw) & cr: n = max(n, 2)
            if iss(pw) & cr: n = max(n, 2)
            if c.mn.startswith(('v_readlane', 'v_writelane')) and iss(pw) & cr: n = max(n, 4)
        if c.kind == 'vmem' and iss(pw) & cr: n = max(n, 5)
        if c.kind == 'salu' and iss(pw) & cr: n = max(n, 1)
    if p.kind == 'mfma':
        big = p.passes == 8
        if c.kind == 'mfma':
            if pw & set(c.srcAB): n = max(n, 12 if big else 8)
            if pw & set(c.srcC):
                if not (p.wr == c.srcC and p.passes == c.passes): n = max(n, 10 if big else 6)
            elif pw & cw and not (p.wr == c.wr): n = max(n, 10 if big else 6)
        elif c.kind in ('valu', 'vmem', 'ds'):
            if pw & (cr | cw): n = max(n, 12 if big else 8)
        if c.kind == 'valu' and set(p.srcC) & cw: n = max(n, 7 if big else 3)
    if p.kind == 'salu' and ('s', 'm0') in pw and c.kind == 'vmem' and ('s', 'm0') in cr: n = max(n, 1)
    if p.kind == 'vmem' and p.data and set(p.data) & cw: n = max(n, 2 if c.kind == 'valu' else 1)
    return n

def hazard_pass(lines, verbose=False):
    total = 0
    while True:
        items = []
        for ln in lines:
            s = ln.split(';')[0].strip()
            if not s or s.startswith('.') and not s.endswith(':'): items.append(None)
            elif s.endswith(':'): items.append(('label', s[:-1]))
            else: items.append(Ins(ln))
        labels = {it[1]: i for i, it in enumerate(items) if isinstance(it, tuple)}
        jumps = {}
        for i, it in enumerate(items):
            if isinstance(it, Ins) and it.mn.startswith(('s_cbranch', 's_branch')):
                jumps.setdefault(labels[it.ops[0]], []).append(i)
        fix = None
        for i, c in enumerate(items):
            if not isinstance(c, Ins): continue
            worst = 0
            stack = [(i - 1, 0)]; seen = {}
            while stack:
                j, d = stack.pop()
                while j >= 0 and d < 20:
                    if seen.get(j, 99) <= d: break
                    seen[j] = d
                    it = items[j]
                    if isinstance(it, tuple):
                        for src in jumps.get(j, []): stack.append((src, d))
                        j -= 1
                        k = j
                        while k >= 0 and not isinstance(items[k], Ins):
                            if isinstance(items[k], tuple): break
                            k -= 1
                        if k >= 0 and isinstance(items[k], Ins) and items[k].mn in ('s_branch', 's_endpgm'): break
                        continue
                    if it is None: j -= 1; continue
                    n = need_states(it, c)
                    if n - d > worst: worst = n - d; why = it.text
                    d += it.states(); j -= 1
            if worst > 0:
                fix = (i, worst, why); break
        if fix is None: break
        i, w, why = fix
        if verbose: print(f'  nop {w} before [{lines[i].strip()}] due to [{why.strip()}]')
        lines = lines[:i] + [f's_nop {w-1},'.rstrip(',')] + lines[i:]
        total += 1
    return lines, total

class B:
    def __init__(self):
        self.L = []
        self.lg = []
        self.vm = []
        self.track = True
    def raw(self, s): self.L.append(s)
    def label(self, s): self.L.append(s + ':')
    def c(self, s): self.L.append('; ' + s)
    def state(self): return ([(t, frozenset(d)) for t, d in self.lg], [(t, frozenset(d)) for t, d in self.vm])
    def set_state(self, st):
        self.lg = [(t, set(d)) for t, d in st[0]]; self.vm = [(t, set(d)) for t, d in st[1]]
    def _wait(self, nl=None, nv=None):
        parts = []
        if nv is not None:
            nv = min(nv, 63); parts.append(f'vmcnt({nv})'); self.vm = self.vm[len(self.vm) - nv:] if nv < len(self.vm) else self.vm
            if nv == 0: self.vm = []
        if nl is not None:
            nl = min(nl, 15); parts.append(f'lgkmcnt({nl})'); self.lg = self.lg[len(self.lg) - nl:] if nl < len(self.lg) else self.lg
            if nl == 0: self.lg = []
        self.L.append('s_waitcnt ' + ' '.join(parts))
    def wait(self, lg=None, vm=None): self._wait(lg, vm)
    def wait_tag(self, lgtag=None, vmtag=None):
        nl = nv = None
        if lgtag is not None:
            idx = [i for i, (t, d) in enumerate(self.lg) if t == lgtag]
            if idx: nl = len(self.lg) - 1 - idx[-1]
        if vmtag is not None:
            idx = [i for i, (t, d) in enumerate(self.vm) if t == vmtag]
            if idx: nv = len(self.vm) - 1 - idx[-1]
        if nl is not None or nv is not None: self._wait(nl, nv)
    def I(self, text, tag=None):
        ins = Ins(text)
        if self.track:
            use = set(ins.rd) | set(ins.wr)
            nl = nv = None
            for i, (t, d) in enumerate(self.lg):
                if d & use: nl = len(self.lg) - 1 - i
            for i, (t, d) in enumerate(self.vm):
                if d & use: nv = len(self.vm) - 1 - i
            if nl is not None or nv is not None: self._wait(nl, nv)
            if ins.kind == 'ds': self.lg.append((tag, set(ins.wr)))
            if ins.kind == 'vmem': self.vm.append((tag, set(ins.wr)))
        self.L.append(text)
    def __call__(self, text, tag=None):
        for t in text.split('\n'):
            t = t.strip()
            if t: self.I(t, tag)
```

```python
import sys, math
from asmlib import B, hazard_pass

P = dict(kv.split("=") for kv in sys.argv[2:])
def opt(k, d): return type(d)(P.get(k, d))
STAMPS = opt("stamps", 0)
KVFL = opt("kvfl", "").replace("+", " ")
OSTFL = opt("ostfl", "").replace("+", " ")
TOUCH = opt("touch", 1)
KEYMASK1 = opt("key1", 0)
KEYMASK2 = opt("key2", 7)
D2 = opt("d2", 5)
DEPTH2 = opt("depth2", 8)
K2MAP = opt("k2map", 0)
FORCE_SLOW = opt("slow", 0)
STAMP_OFF = 200 << 20
NST = 8

def vr(a, n=1, k='v'): return f"{k}{a}" if n == 1 else f"{k}[{a}:{a+n-1}]"
def ar(a, n=1): return vr(a, n, 'a')
def f32bits(x):
    import struct
    return "0x%08x" % struct.unpack("<I", struct.pack("<f", x))[0]

def stamp(b, i):
    if STAMPS:
        b.wait(lg=0)
        b.raw(f"s_memrealtime s[{70+2*i}:{71+2*i}]")
        b.raw("s_waitcnt lgkmcnt(0)")

def stamps_out(b, srd, swave, base):
    if not STAMPS: return
    b(f"s_cmp_lg_u32 {swave}, 0")
    b("s_cbranch_scc1 L_nost%d" % base)
    b("v_mov_b32 v3, 0")
    b(f"s_mul_i32 s60, s2, {2*NST*8}")
    b(f"s_add_u32 s60, s60, {STAMP_OFF + base*NST*8}")
    for i in range(NST):
        b(f"v_mov_b32 v4, s{70+2*i}\nv_mov_b32 v5, s{71+2*i}")
        b(f"buffer_store_dwordx2 v[4:5], v3, {srd}, s60 offen offset:{8*i}")
        b.wait(vm=0)
    b.label("L_nost%d" % base)

def gen_k1():
    b = B()
    SX, SW, SK, SV, SO, SF = "s[4:7]", "s[8:11]", "s[12:15]", "s[16:19]", "s[20:23]", "s[24:27]"
    sW, sB, sH, sCnt = "s28", "s29", "s30", "s31"
    sRB, sDB, sDelta, sKey = "s32", "s33", "s34", "s35"
    sXO, sWO, sFO, sMX, sMW, sMF, sT = "s36", "s37", "s38", "s39", "s40", "s41", "s42"
    sXB, sWB, sFB, sFS, sFL, sR6, sR5 = "s43", "s44", "s45", "s46", "s47", "s48", "s49"
    sKB, sVB, sDK, sDV, sW8, sDst, sKS, sVS, sPass, sT2, sT3 = "s50", "s51", "s52", "s53", "s54", "s55", "s56", "s57", "s58", "s59", "s61"
    sOB = ["s62", "s63", "s64", "s65"]; sOS = "s66"; sC = "s67"; sNW8 = "s68"
    XA = [2, 3, 4, 5]; WA = 6; XE, XO, WQ, FL, KD, VD, L16 = 7, 8, 9, 10, 11, 12, 13
    AF = [16, 20]; BF = [24, 44]; ACC = 64
    KA = list(range(144, 152)); VA = list(range(152, 156)); LOWN, LSH = 156, 157; OST, OSTS = 158, 159
    OOWN = 160; NMO, NMS = 224, 240
    T = [16, 17, 18, 19]; PB = [24, 32, 40]; SB = [64, 80, 96]
    OSH, QOWN, QSH, KF, VF = 0, 64, 96, 128, 144
    ST0 = 53248; STSZ = 36864; LDS = 163840; QEX = 122880

    b.raw(".p2align 8")
    b.raw(".type mha_attn_kernel,@function")
    b.label("mha_attn_kernel")
    b("s_cmp_ge_u32 s2, 256")
    b("s_cbranch_scc1 L1_end")
    b.track = False
    b("s_load_dwordx4 s[4:7], s[0:1], 0")
    b("s_load_dwordx4 s[8:11], s[0:1], 16")
    b("s_load_dwordx2 s[20:21], s[0:1], 56")
    if STAMPS: b.raw("s_memrealtime s[70:71]")
    b.track = True
    b("v_and_b32 v1, 63, v0\nv_lshrrev_b32 v14, 6, v0")
    b(f"v_readfirstlane_b32 {sW}, v14")
    b(f"s_and_b32 {sB}, s2, 1\ns_lshl_b32 {sB}, {sB}, 2\ns_lshr_b32 {sT}, s2, 3\ns_and_b32 {sT2}, {sT}, 3\ns_add_u32 {sB}, {sB}, {sT2}")
    b(f"s_lshr_b32 {sH}, s2, 1\ns_and_b32 {sH}, {sH}, 3\ns_lshl_b32 {sH}, {sH}, 3\ns_lshr_b32 {sT3}, {sT}, 2\ns_add_u32 {sH}, {sH}, {sT3}")
    b(f"s_lshl_b32 {sKey}, {sT2}, 2\ns_lshl_b32 {sT}, {sT3}, 1\ns_add_u32 {sKey}, {sKey}, {sT}\ns_lshr_b32 {sT}, {sT3}, 1\ns_xor_b32 {sKey}, {sKey}, {sT}\ns_xor_b32 {sKey}, {sKey}, {sT2}\ns_and_b32 {sKey}, {sKey}, {KEYMASK1}")
    b(f"v_lshlrev_b32 v{L16}, 4, v1")
    b("v_lshrrev_b32 v14, 4, v1")
    b("v_and_b32 v15, 7, v1\nv_xor_b32 v15, v15, v14\nv_lshlrev_b32 v15, 4, v15")
    b(f"v_lshrrev_b32 v{XE}, 3, v1\nv_lshlrev_b32 v{XE}, 11, v{XE}\nv_add_u32 v{XE}, v{XE}, v15\nv_xor_b32 v{XO}, 64, v{XE}")
    b("v_lshlrev_b32 v15, 2, v14\nv_and_b32 v16, 15, v1\nv_xor_b32 v15, v15, v16\nv_lshlrev_b32 v15, 4, v15")
    b(f"v_lshlrev_b32 v{WQ}, 13, v14\nv_add_u32 v{WQ}, v{WQ}, v15")
    b(f"v_lshlrev_b32 v17, 8, v14")
    b(f"v_add_u32 v{VD}, v17, v15")
    b("v_xor_b32 v18, v16, v14\nv_lshlrev_b32 v18, 4, v18\nv_add_u32 v18, v18, v17")
    b.raw("s_waitcnt lgkmcnt(0)")
    b(f"s_lshl_b32 {sT}, {sB}, 5\ns_add_u32 {sT}, {sT}, {sH}\ns_lshl_b32 {sT}, {sT}, 17")
    b(f"s_add_u32 s12, s6, {sT}\ns_addc_u32 s13, s7, 0\ns_mov_b32 s14, 131072\ns_mov_b32 s15, 0x20000")
    b(f"s_add_u32 s16, s8, {sT}\ns_addc_u32 s17, s9, 0\ns_mov_b32 s18, 131072\ns_mov_b32 s19, 0x20000")
    b(f"s_lshl_b32 {sT}, {sH}, 8\ns_add_u32 s8, s10, {sT}\ns_addc_u32 s9, s11, 0\ns_sub_u32 s10, 8388608, {sT}\ns_mov_b32 s11, 0x20000")
    b(f"s_mul_i32 {sT}, {sB}, 327680\ns_add_u32 s4, s4, {sT}\ns_addc_u32 s5, s5, 0\ns_mov_b32 s6, 327680\ns_mov_b32 s7, 0x20000")
    b(f"s_mov_b32 s22, {268435456 if STAMPS else 10485760}\ns_mov_b32 s23, 0x20000")
    b(f"s_lshl_b32 {sW8}, {sW}, 13\ns_sub_u32 {sNW8}, 0, {sW8}")
    b(f"s_mov_b32 {sRB}, {ST0 + 2*STSZ}\ns_mov_b32 {sCnt}, 0\ns_mov_b32 {sPass}, 0")
    b(f"s_cmp_eq_u32 {sW}, 3")
    b("s_cbranch_scc1 L1_w3pro")
    b(f"s_mul_i32 {sXB}, {sW}, {6*16384}\ns_mul_i32 {sWB}, {sW}, {5*32768}\ns_mul_i32 {sR6}, {sW}, 6144\ns_mul_i32 {sR5}, {sW}, 5120\ns_add_u32 {sR5}, {sR5}, 20480")
    b(f"s_add_u32 {sT}, {sW}, 18\ns_lshl_b32 {sFL}, {sT}, 10\ns_lshl_b32 {sFB}, {sT}, 14")
    b(f"s_cmp_eq_u32 {sW}, 2")
    b(f"s_cselect_b32 s24, s8, s4\ns_cselect_b32 s25, s9, s5\ns_cselect_b32 s26, s10, s6\ns_mov_b32 s27, 0x20000")
    b(f"s_cselect_b32 {sFL}, {20480+15*1024}, {sFL}\ns_cselect_b32 {sFB}, {15*32768}, {sFB}\ns_cselect_b32 {sFS}, 19, 7")
    b("s_cselect_b64 vcc, -1, 0")
    b(f"s_lshl_b32 {sT}, {sW}, 6\nv_xor_b32 v{FL}, {sT}, v{XE}\nv_cndmask_b32 v{FL}, v{FL}, v{WQ}, vcc")

    def stage_params(kc_expr_reg):
        return [f"s_xor_b32 {sT}, {kc_expr_reg}, {sKey}",
                f"s_lshl_b32 {sXO}, {sT}, 7", f"s_add_u32 {sXO}, {sXO}, {sXB}",
                f"s_lshl_b32 {sWO}, {sT}, 19", f"s_add_u32 {sWO}, {sWO}, {sWB}",
                f"s_lshl_b32 {sFO}, {sT}, {sFS}", f"s_add_u32 {sFO}, {sFO}, {sFB}",
                f"s_add_u32 {sMX}, {sDB}, {sR6}", f"s_add_u32 {sMW}, {sDB}, {sR5}", f"s_add_u32 {sMF}, {sDB}, {sFL}"]
    def stage_ops():
        ops = []
        xs = [[f"s_add_u32 m0, {sMX}, {q*1024}", f"s_add_u32 {sT}, {sXO}, {q*16384}",
               f"buffer_load_dwordx4 v{XO if q & 1 else XE}, {SX}, {sT} offen lds"] for q in range(6)]
        ws = [[f"s_add_u32 m0, {sMW}, {q*1024}", f"s_add_u32 {sT}, {sWO}, {q*32768}",
               f"buffer_load_dwordx4 v{WQ}, {SW}, {sT} offen lds"] for q in range(5)]
        fl = [f"s_mov_b32 m0, {sMF}", "s_nop 0", f"buffer_load_dwordx4 v{FL}, {SF}, {sFO} offen lds"]
        for q in range(6):
            ops.append(xs[q])
            ops.append(ws[q] if q < 5 else fl)
        return ops
    for st in range(2):
        b(f"s_mov_b32 {sDB}, {ST0 + ((st+2)%3)*STSZ}\ns_mov_b32 {sT2}, {st}")
        for s in stage_params(sT2): b(s)
        for op in stage_ops():
            for s in op: b(s)
    b("s_branch L1_common")
    b.label("L1_w3pro")
    b.vm = []
    if TOUCH:
        b(f"v_lshrrev_b32 v20, 1, v1\nv_lshlrev_b32 v20, 2, v20\nv_add_u32 v20, {sT2}, v20\nv_lshlrev_b32 v20, 13, v20")
        b("v_and_b32 v21, 1, v1\nv_lshlrev_b32 v21, 7, v21\nv_add_u32 v20, v20, v21")
        b(f"s_mul_i32 {sT3}, {sT3}, {20*2048}")
        for i in range(8):
            b(f"s_mov_b32 {sT}, {i*128*8192}")
            b(f"buffer_load_dword a{160+i}, v20, {SW}, {sT} offen")
            if i < 5:
                b(f"v_add_u32 v22, {i*64}, v1\nv_mul_u32_u24 v23, 3277, v22\nv_lshrrev_b32 v23, 16, v23")
                b("v_mul_u32_u24 v24, 20, v23\nv_sub_u32 v22, v22, v24\nv_lshlrev_b32 v22, 11, v22\nv_lshlrev_b32 v23, 7, v23\nv_add_u32 v22, v22, v23")
                b(f"buffer_load_dword a{168+i}, v22, {SX}, {sT3} offen")
    for r in range(1, 4): b(f"v_xor_b32 v{18+8+r}, {r*64}, v18")
    for g in range(8):
        b(f"s_mov_b32 m0, {g*4096}\ns_mov_b32 {sT}, {g*4096}")
        for r in range(4):
            b(f"buffer_load_dwordx4 v{18 if r == 0 else 26+r}, {SK}, {sT} offen offset:{r*1024} {KVFL} lds")
    for g in range(4):
        b(f"s_mov_b32 m0, {32768+g*4096}\ns_mov_b32 {sT}, {g*4096}")
        for r in range(4):
            b(f"buffer_load_dwordx4 v{VD}, {SV}, {sT} offen offset:{r*1024} {KVFL} lds")
    b.vm = []
    b.label("L1_common")
    b.vm = []
    b(f"s_lshl_b32 {sT}, {sW}, 6\nv_xor_b32 v{KD}, {sT}, v18\ns_lshl_b32 {sT}, {sW}, 10\nv_add_u32 v{KD}, {sT}, v{KD}\nv_add_u32 v{VD}, {sT}, v{VD}")
    b("v_and_b32 v50, 31, v1\nv_lshrrev_b32 v51, 5, v1")
    b("v_lshrrev_b32 v52, 1, v50\nv_and_b32 v52, 7, v52\nv_xor_b32 v52, v52, v51\nv_lshlrev_b32 v52, 4, v52")
    b(f"v_lshlrev_b32 v53, 7, v50\nv_add_u32 v52, v52, v53")
    for u in range(4):
        b(f"v_xor_b32 v{XA[u]}, {u*32}, v52\nv_add_u32 v{XA[u]}, {sRB}, v{XA[u]}")
    b("v_lshrrev_b32 v54, 2, v1\nv_and_b32 v54, 3, v54")
    b("v_and_b32 v55, 3, v1")
    b("v_lshrrev_b32 v56, 4, v1\nv_and_b32 v56, 1, v56\nv_lshlrev_b32 v56, 5, v56")
    b(f"v_xor_b32 v57, {sW}, v54\nv_lshlrev_b32 v57, 6, v57\nv_add_u32 v57, v57, v56")
    b("v_lshlrev_b32 v58, 1, v55\nv_lshrrev_b32 v59, 1, v55\nv_or_b32 v58, v58, v59\nv_and_b32 v58, 3, v58\nv_lshlrev_b32 v58, 3, v58")
    b("v_lshlrev_b32 v59, 3, v51\nv_add_u32 v59, v59, v54\nv_lshlrev_b32 v59, 8, v59")
    b(f"v_add3_u32 v{WA}, v57, v58, v59\ns_add_u32 {sT}, {sRB}, 20480\nv_add_u32 v{WA}, {sT}, v{WA}")
    b(f"v_lshrrev_b32 v60, 5, v56\ns_lshl_b32 {sT}, {sW}, 1\nv_add_u32 v61, {sT}, v60")
    b(f"v_lshlrev_b32 v61, 10, v61\nv_mov_b32 v62, {655360-5120}\nv_cmp_le_u32 vcc, 5120, v61\nv_cndmask_b32 v62, 0, v62, vcc\nv_add_u32 v61, v61, v62")
    b("v_and_b32 v62, 15, v1\nv_lshlrev_b32 v62, 4, v62\nv_lshlrev_b32 v63, 8, v51\nv_add_u32 v62, v62, v63")
    b(f"v_add_u32 v{OST}, v61, v62")
    b(f"v_lshlrev_b32 v60, 10, v60\nv_add_u32 v60, {655360+3*1024}, v60\nv_add_u32 v{OSTS}, v60, v62")
    b(f"s_mul_i32 {sT}, {sB}, 1310720\ns_mul_i32 {sT2}, {sH}, 20480\ns_add_u32 {sT}, {sT}, {sT2}")
    for j in range(4):
        b(f"s_xor_b32 {sT2}, {sW}, {j}\ns_mul_i32 {sT2}, {sT2}, 5120\ns_add_u32 {sOB[j]}, {sT}, {sT2}")
    b(f"s_mov_b32 {sC}, {f32bits(math.log2(math.e) / math.sqrt(128.0))}")

    def p2_addr_init():
        b("v_and_b32 v50, 31, v1\nv_lshrrev_b32 v51, 5, v1")
        b("v_and_b32 v52, 15, v50\nv_xor_b32 v52, v52, v51\nv_lshlrev_b32 v52, 4, v52\nv_lshlrev_b32 v53, 8, v50\nv_add_u32 v52, v52, v53")
        for t in range(8):
            b(f"v_xor_b32 v{KA[t]}, {t*32}, v52\nv_add_u32 v{KA[t]}, {sW8}, v{KA[t]}")
        b("v_lshrrev_b32 v54, 2, v1\nv_and_b32 v54, 3, v54\nv_and_b32 v55, 3, v1")
        b("v_lshrrev_b32 v56, 4, v1\nv_and_b32 v56, 1, v56\nv_lshlrev_b32 v56, 5, v56")
        b(f"v_xor_b32 v57, {sW}, v54\nv_lshlrev_b32 v57, 6, v57\nv_add_u32 v57, v57, v56")
        b("v_lshlrev_b32 v58, 2, v51\nv_add_u32 v58, v58, v54\nv_lshlrev_b32 v58, 8, v58\nv_lshlrev_b32 v59, 3, v55\nv_add3_u32 v57, v57, v58, v59")
        b(f"s_add_u32 {sT}, {sW8}, 32768")
        for j in range(4):
            b(f"v_xor_b32 v{VA[j]}, {j*64}, v57\nv_add_u32 v{VA[j]}, {sT}, v{VA[j]}")
        b(f"s_mov_b32 {sKB}, 0\ns_mov_b32 {sVB}, 32768\ns_mov_b32 {sDst}, 131072\ns_mov_b32 {sKS}, 65536\ns_mov_b32 {sVS}, 65536")
        for i in range(64): b(f"v_mov_b32 v{OOWN+i}, 0")
        for i in range(64): b(f"v_accvgpr_write_b32 a{OSH+i}, 0")
        b(f"v_mov_b32 v{LOWN}, 0\nv_mov_b32 v{LSH}, 0")
    p2_addr_init()
    for i in range(32): b(f"v_mov_b32 v{NMO+i}, 0")
    for i in range(80): b(f"v_mov_b32 v{ACC+i}, 0")
    b(f"s_mov_b32 {sDB}, {ST0 + 1*STSZ}")
    b(f"s_cmp_eq_u32 {sW}, 3")
    b("s_cbranch_scc1 L1_w3z")
    for i in range(4): b(f"v_mov_b32 v{AF[1]+i}, 0")
    for i in range(20): b(f"v_mov_b32 v{BF[1]+i}, 0")
    b.raw("s_waitcnt vmcnt(12)")

    def p1_step(dmas, pre=(), upd=True):
        b("s_barrier")
        nd = len(dmas); di = 0
        pre = list(pre)
        for g in range(4):
            rb = g & 1; mb = rb ^ 1
            rd = [f"ds_read_b64_tr_b16 {vr(AF[rb],2)}, v{WA} offset:{g*4096}",
                  f"ds_read_b64_tr_b16 {vr(AF[rb]+2,2)}, v{WA} offset:{g*4096+1024}"] + \
                 [f"ds_read_b128 {vr(BF[rb]+4*q,4)}, v{XA[g]} offset:{q*4096}" for q in range(5)]
            sched = [rd[0:2], rd[2:4], rd[4:6], rd[6:7], []]
            for q in range(5):
                b(f"v_mfma_f32_32x32x16_bf16 {vr(ACC+16*q,16)}, {vr(AF[mb],4)}, {vr(BF[mb]+4*q,4)}, {vr(ACC+16*q,16)}")
                for s in sched[q]: b(s)
                if g == 0 and q < 2:
                    h = (len(pre) + 1) // 2
                    for s in (pre[:h] if q == 0 else pre[h:]): b(s)
                if q >= 2:
                    tgt = min(nd, ((g * 3 + (q - 1)) * nd + 11) // 12)
                    while di < tgt:
                        for s in dmas[di]: b(s)
                        di += 1
                if upd and q == 4:
                    b(f"v_add_u32 v{XA[g]}, {sDelta}, v{XA[g]}")
                    if g == 3: b(f"v_add_u32 v{WA}, {sDelta}, v{WA}")
        assert di == nd
    ring = [f"s_add_u32 {sT2}, {sRB}, {STSZ}", f"s_cmp_ge_u32 {sT2}, {LDS}", f"s_cselect_b32 {sT2}, {ST0}, {sT2}",
            f"s_sub_u32 {sDelta}, {sT2}, {sRB}"]
    ring_end = [f"s_mov_b32 {sDB}, {sRB}", f"s_add_u32 {sRB}, {sRB}, {sDelta}"]
    b.raw(".p2align 3")
    b.label("L1_p1a")
    p1_step(stage_ops(), pre=ring + [f"s_add_u32 {sT2}, {sCnt}, 2"] + stage_params(sT2))
    for s in ring_end: b(s)
    b(f"s_add_u32 {sCnt}, {sCnt}, 1\ns_cmp_lt_u32 {sCnt}, 14")
    b.wait(lg=0, vm=12)
    b("s_cbranch_scc1 L1_p1a")
    b("s_branch L1_p1tail")
    b.label("L1_w3z")
    b.vm = []
    b.raw("s_waitcnt vmcnt(59)")
    b(f"s_mov_b32 m0, {32768+4*4096}\ns_mov_b32 {sT}, {4*4096-3072}")
    for r in range(4):
        b(f"buffer_load_dwordx4 v{VD}, {SV}, {sT} offen offset:{r*1024} {KVFL} lds")
    b.vm = []
    for i in range(4): b(f"v_mov_b32 v{AF[1]+i}, 0")
    for i in range(20): b(f"v_mov_b32 v{BF[1]+i}, 0")
    b.raw(".p2align 3")
    b.label("L1_p1b")
    p1_step([], pre=ring)
    for s in ring_end: b(s)
    b(f"s_add_u32 {sCnt}, {sCnt}, 1\ns_cmp_lt_u32 {sCnt}, 14")
    b.wait(lg=0)
    b("s_cbranch_scc1 L1_p1b")
    b.label("L1_p1tail")
    b.vm = []
    stamp(b, 1)
    def kv_op(kind, lds, off):
        srd, v = (SK, KD) if kind == 'k' else (SV, VD)
        return [f"s_lshl_b32 {sT}, {sW}, 10", f"s_add_u32 m0, {sT}, {lds}", f"s_mov_b32 {sT}, {off}",
                f"buffer_load_dwordx4 v{v}, {srd}, {sT} offen {KVFL} lds"]
    d14 = [kv_op('v', 32768 + q*4096, q*4096) for q in range(5, 8)] + [kv_op('k', 65536 + q*4096, 32768 + q*4096) for q in range(6)]
    d15 = [kv_op('k', 65536 + q*4096, 32768 + q*4096) for q in range(6, 8)] + [kv_op('v', 98304 + q*4096, 32768 + q*4096) for q in range(6)]
    p1_step(d14, pre=ring)
    for s in ring_end: b(s)
    b.wait(lg=0, vm=9)
    p1_step(d15, upd=False)
    b.wait(lg=0)
    b("s_barrier")
    for q in range(5):
        b(f"v_mfma_f32_32x32x16_bf16 {vr(ACC+16*q,16)}, {vr(AF[1],4)}, {vr(BF[1]+4*q,4)}, {vr(ACC+16*q,16)}")
    b(f"s_lshl_b32 {sT}, {sW}, 11\ns_add_u32 {sT}, {sT}, {QEX}\nv_add_u32 v14, {sT}, v{L16}")
    b(f"s_add_u32 {sT}, {sW8}, {QEX}\nv_add_u32 v15, {sT}, v{L16}\nv_add_u32 v{WA}, {QEX+32768}, v{L16}")
    for q in range(5):
        for i in range(16): b(f"v_mul_f32 v{ACC+16*q+i}, {sC}, v{ACC+16*q+i}")
        for i in range(8): b(f"v_cvt_pk_bf16_f32 v{24+8*q+i}, v{ACC+16*q+2*i}, v{ACC+16*q+2*i+1}")
        for a in range(2): b(f"ds_write_b128 v14, {vr(24+8*q+4*a,4)} offset:{q*8192+a*1024}")
    b.wait(lg=0, vm=17)
    b("s_barrier")
    stamp(b, 2)
    for f in range(8): b(f"ds_read_b128 {ar(QSH+4*f,4)}, v{WA} offset:{f*1024}")
    for f in range(8): b(f"ds_read_b128 {ar(QOWN+4*f,4)}, v15 offset:{f*1024}")
    b.wait(lg=0)

    def typ(n): return n % 5 == 0
    def col(n): return (0, 1, 0, 1, 2)[n % 5]
    def k_read(n, t):
        off = 0 if typ(n) else (n % 5 - 1) * 8192
        out = [(f"ds_read_b128 {ar(KF+4*(t%4),4)}, v{KA[t]} offset:{off}", 'K')]
        if typ(n): out.append((f"v_add_u32 v{KA[t]}, {sNW8}, v{KA[t]}", None))
        if n % 5 == 4: out.append((f"v_add_u32 v{KA[t]}, {sDK}, v{KA[t]}", None))
        return out
    def v_read(n, i):
        ks, j = i // 4, i % 4
        off = (0 if typ(n) else (n % 5 - 1) * 8192) + ks * 4096
        out = [(f"ds_read_b64_tr_b16 {ar(VF+4*j,2)}, v{VA[j]} offset:{off}", 'V'),
               (f"ds_read_b64_tr_b16 {ar(VF+4*j+2,2)}, v{VA[j]} offset:{off+2048}", 'V')]
        if ks == 1 and typ(n): out.append((f"v_add_u32 v{VA[j]}, {sNW8}, v{VA[j]}", None))
        if ks == 1 and n % 5 == 4: out.append((f"v_add_u32 v{VA[j]}, {sDV}, v{VA[j]}", None))
        return out
    def s_mfma(n, t):
        q = QSH if typ(n) else QOWN
        c = (NMS if typ(n) else NMO) if t == 0 else SB[col(n)]
        return f"v_mfma_f32_32x32x16_bf16 {vr(SB[col(n)],16)}, {ar(KF+4*(t%4),4)}, {ar(q+4*t,4)}, {vr(c,16)}"
    def p_mfma(n, i):
        ks, j = i // 4, i % 4
        o = ar(OSH + 16*j, 16) if typ(n) else vr(OOWN + 16*j, 16)
        return f"v_mfma_f32_32x32x16_bf16 {o}, {ar(VF+4*j,4)}, {vr(PB[col(n)]+4*ks,4)}, {o}"
    def v_exp(n, e): return f"v_exp_f32 v{T[e%4]}, v{SB[col(n)]+e}"
    def v_sum(n, e):
        l = LSH if typ(n) else LOWN
        return f"v_add_f32 v{l}, v{l}, v{T[e%4]}"
    def v_cvt(n, c): return f"v_cvt_pk_bf16_f32 v{PB[col(n)]+c}, v{T[(2*c)%4]}, v{T[(2*c+1)%4]}"
    def nxt(base, delta):
        return [f"s_add_u32 {sT2}, {base}, 65536", f"s_sub_u32 {sT3}, {sT2}, {LDS}", f"s_cmp_ge_u32 {sT2}, {LDS}",
                f"s_cselect_b32 {sT2}, {sT3}, {sT2}", f"s_sub_u32 {delta}, {sT2}, {base}", f"s_add_u32 {delta}, {delta}, {sW8}",
                f"s_mov_b32 {base}, {sT2}"]
    def grp_dma(kind, q):
        srd, v, so = (SK, KD, sKS) if kind == 'k' else (SV, VD, sVS)
        out = [f"s_add_u32 m0, {sOS}, {q*4096}", f"s_add_u32 {sT}, {so}, {q*4096}",
               f"buffer_load_dwordx4 v{v}, {srd}, {sT} offen {KVFL} lds"]
        if q == 0: out = [f"s_lshl_b32 {sOS}, {sW}, 10", f"s_add_u32 {sOS}, {sOS}, {sDst}"] + out
        if q == 7:
            out += [f"s_add_u32 {so}, {so}, 32768", f"s_add_u32 {sDst}, {sDst}, 32768", f"s_cmp_ge_u32 {sDst}, {LDS}",
                    f"s_cselect_b32 {sDst}, 0, {sDst}"]
        return out

    def mf_at(G):
        n, i = divmod(G, 16)
        return ('S', n + 1, i // 2) if i % 2 == 0 else ('P', n - 1, i // 2)
    def valid(kind, n): return 0 <= n <= 19
    def emit_gap(G, tail=False, extra=()):
        kind, n, i = mf_at(G)
        if valid(kind, n): b(s_mfma(n, i) if kind == 'S' else p_mfma(n, i))
        sn, pos = divmod(G, 16)
        pn, ppos = divmod(G - 1, 16)
        if valid('V', pn):
            b(v_sum(pn, ppos))
            if ppos % 2 == 1: b(v_cvt(pn, ppos // 2))
        rk, rn, ri = mf_at(G + D2)
        if valid(rk, rn):
            if ri == 0 and rn % 5 == 0 and not tail:
                b.wait_tag(lgtag='K' if rk == 'S' else 'V')
                b.wait(vm=16)
                b("s_barrier")
            for s, tg in (k_read(rn, ri) if rk == 'S' else v_read(rn, ri)): b(s, tg)
        if valid('V', sn): b(v_exp(sn, pos))
        for s in extra: b(s)

    b.label("L1_p2entry")
    for t in range(4):
        for s, tg in k_read(0, t): b(s, tg)
    for n in (0, 1):
        for t in range(8):
            b(s_mfma(n, t))
            t2 = t + 4
            n2 = n + t2 // 8
            if n2 <= 1:
                for s, tg in k_read(n2, t2 % 8): b(s, tg)
    b.wait(lg=0, vm=14)
    b("s_barrier")
    for q in (6, 7):
        for s in kv_op('v', 98304 + q*4096, 32768 + q*4096): b(s)
    b(f"s_cmp_lg_u32 {sPass}, 0")
    b("s_cbranch_scc1 L1_nomax")
    for n, NM in ((0, NMS), (1, NMO)):
        S = SB[col(n)]
        b(f"v_max3_f32 v14, v{S}, v{S+1}, v{S+2}")
        for i in range(3, 15, 2): b(f"v_max3_f32 v14, v14, v{S+i}, v{S+i+1}")
        b(f"v_max_f32 v14, v14, v{S+15}\nv_mov_b32 v15, v14")
        b("v_permlane32_swap_b32 v14, v15")
        b("v_max_f32 v14, v14, v15")
        for i in range(16): b(f"v_sub_f32 v{NM+i}, 0, v14")
        for i in range(16): b(f"v_sub_f32 v{S+i}, v{S+i}, v14")
    b.label("L1_nomax")
    for e in range(16):
        if e >= 1:
            b(v_sum(0, e - 1))
            if (e - 1) % 2 == 1: b(v_cvt(0, (e - 1) // 2))
        if e + D2 >= 16:
            rk, rn, ri = mf_at(e + D2)
            for s, tg in (k_read(rn, ri) if rk == 'S' else v_read(rn, ri)): b(s, tg)
        b(v_exp(0, e))
    b(f"s_mov_b32 {sCnt}, 0")
    stamp(b, 3)
    if STAMPS: pass
    EXITG = 16 * 4 - D2
    def extras(G):
        ex = []
        r = G - 16
        if r == 0: ex += nxt(sKB, sDK) + nxt(sVB, sDV)
        if 1 <= r < 33 and (r - 1) % 4 == 0: ex += grp_dma('k', (r - 1) // 4)
        x0 = EXITG - 16 + 1
        if x0 <= r < x0 + 24 and (r - x0) % 3 == 0: ex += grp_dma('v', (r - x0) // 3)
        return ex
    def body():
        for G in range(16, 96):
            if G == EXITG:
                b(f"s_cmp_eq_u32 {sCnt}, 3")
                b("s_cbranch_scc1 L1_tail")
                body.exit_state = b.state()
            emit_gap(G, extra=extras(G))
        b(f"s_add_u32 {sCnt}, {sCnt}, 1")
        b("s_branch L1_p2")
    st0 = b.state()
    if STAMPS:
        pass
    save = b.L; b.L = []
    body(); st1 = b.state(); t1 = b.L
    b.L = []; body(); st2 = b.state(); t2 = b.L
    assert st1[0] == st2[0]
    if not STAMPS: assert t1 == t2, "loop not steady"
    b.L = save
    b.raw(".p2align 3")
    b.label("L1_p2")
    b.L += t2
    b.label("L1_tail")
    b.set_state(body.exit_state)
    b.wait_tag(lgtag='K')
    b.wait(vm=0)
    b("s_barrier")
    stamp(b, 4)
    EXO = 0; EXM = 98304
    ex = []
    for j in (1, 2, 3):
        ex.append([f"s_xor_b32 {sT}, {sW}, {j}", f"s_lshl_b32 {sT}, {sT}, 2", f"s_add_u32 {sT}, {sT}, {sW}", f"s_lshl_b32 {sT}, {sT}, 12",
                   f"v_add_u32 v{KA[j]}, {sT}, v{L16}"])
        for qd in range(4): ex.append([f"ds_write_b128 v{KA[j]}, {ar(OSH+16*j+4*qd,4)} offset:{EXO+qd*1024}"])
    ex.append([f"v_mov_b32 v21, v{LSH}", "s_nop 1", f"v_permlane32_swap_b32 v21, v{LSH}", f"v_add_f32 v21, v21, v{LSH}", f"v_mov_b32 v20, v{NMS}",
               f"v_lshrrev_b32 v{KA[0]}, 1, v{L16}", f"s_lshl_b32 {sT}, {sW}, 9", f"s_add_u32 {sT}, {sT}, {EXM}", f"v_add_u32 v{KA[4]}, {sT}, v{KA[0]}",
               f"ds_write_b64 v{KA[4]}, v[20:21]"])
    G0 = EXITG + 240
    gaps = list(range(G0, 16 * 21))
    for G in gaps:
        e = []
        if G >= 16 * 19 + 8 and ex: e = ex.pop(0)
        emit_gap(G, tail=True, extra=e)
    assert not ex
    b(f"v_mov_b32 v22, v{LOWN}")
    b(f"v_permlane32_swap_b32 v22, v{LOWN}")
    b(f"v_add_f32 v22, v22, v{LOWN}")
    b(f"v_max_f32 v23, v22, v21\nv_add_f32 v14, v22, v21")
    thr = f32bits(2.0 ** 24) if not FORCE_SLOW else f32bits(0.0)
    b(f"v_cmp_nge_f32 vcc, {thr}, v14")
    b(f"s_cmp_lg_u64 vcc, 0\ns_cselect_b32 {sT}, 1, 0\nv_mov_b32 v14, {sT}")
    b(f"s_lshl_b32 {sT}, {sW}, 2\ns_add_u32 {sT}, {sT}, {EXM+4096}\nv_mov_b32 v15, {sT}")
    b("ds_write_b32 v15, v14")
    b("v_rcp_f32 v22, v22")
    b.wait(lg=0)
    b("s_barrier")
    b(f"v_mov_b32 v15, {EXM+4096}")
    b("ds_read_b128 v[64:67], v15")
    b(f"v_add_u32 v{KA[4]}, {EXM}, v{KA[0]}")
    for s_ in range(4): b(f"ds_read_b64 {vr(68+2*s_,2)}, v{KA[4]} offset:{s_*512}")
    for j in (1, 2, 3):
        b(f"s_xor_b32 {sT}, {sW}, {j}\ns_lshl_b32 {sT2}, {sW}, 2\ns_add_u32 {sT}, {sT}, {sT2}\ns_lshl_b32 {sT}, {sT}, 12\nv_add_u32 v{KA[j]}, {sT}, v{L16}")
        for qd in range(4): b(f"ds_read_b128 {vr(80+16*(j-1)+4*qd,4)}, v{KA[j]} offset:{EXO+qd*1024}")
    for j in range(4):
        for i in range(16): b(f"v_mul_f32 v{OOWN+16*j+i}, v22, v{OOWN+16*j+i}")
        for i in range(8): b(f"v_cvt_pk_bf16_f32 v{24+8*j+i}, v{OOWN+16*j+2*i}, v{OOWN+16*j+2*i+1}")
        for a in range(2): b(f"buffer_store_dwordx4 {vr(24+8*j+4*a,4)}, v{OST}, {SO}, {sOB[j]} offen offset:{a*512} {OSTFL}")
    b("v_or_b32 v64, v64, v65\nv_or3_b32 v64, v64, v66, v67")
    b(f"v_readfirstlane_b32 {sT}, v64")
    b(f"s_andn2_b32 {sT}, {sT}, {sPass}\ns_cmp_lg_u32 {sT}, 0")
    b("s_cbranch_scc1 L1_slow")
    b("v_min_f32 v14, v68, v70\nv_min3_f32 v14, v14, v72, v74")
    for s_ in range(4): b(f"v_sub_f32 v{68+2*s_}, v14, v{68+2*s_}")
    for s_ in range(4): b(f"v_exp_f32 v{68+2*s_}, v{68+2*s_}")
    b("v_mul_f32 v15, v68, v69\nv_fmac_f32 v15, v70, v71\nv_fmac_f32 v15, v72, v73\nv_fmac_f32 v15, v74, v75")
    b("v_rcp_f32 v15, v15")
    for j in range(4):
        b(f"s_xor_b32 {sT}, {sW}, {j}")
        b(f"s_cmp_eq_u32 {sT}, 1\ns_cselect_b64 vcc, -1, 0\nv_cndmask_b32 v{76+j}, v68, v70, vcc")
        b(f"s_cmp_eq_u32 {sT}, 2\ns_cselect_b64 vcc, -1, 0\nv_cndmask_b32 v{76+j}, v{76+j}, v72, vcc")
        b(f"s_cmp_eq_u32 {sT}, 3\ns_cselect_b64 vcc, -1, 0\nv_cndmask_b32 v{76+j}, v{76+j}, v74, vcc")
        b(f"v_mul_f32 v{76+j}, v{76+j}, v15")
    for i in range(16): b(f"v_accvgpr_read_b32 v{128+i}, a{OSH+i}")
    for i in range(16): b(f"v_mul_f32 v{128+i}, v76, v{128+i}")
    for j in (1, 2, 3):
        for i in range(16): b(f"v_fmac_f32 v{128+i}, v{76+j}, v{80+16*(j-1)+i}")
    for i in range(8): b(f"v_cvt_pk_bf16_f32 v{56+i}, v{128+2*i}, v{128+2*i+1}")
    for a in range(2): b(f"buffer_store_dwordx4 {vr(56+4*a,4)}, v{OSTS}, {SO}, {sOB[0]} offen offset:{a*512} {OSTFL}")
    if STAMPS:
        stamp(b, 5)
        b.wait(vm=0)
        stamp(b, 6)
        stamps_out(b, SO, sW, 0)
    b.label("L1_end")
    b("s_endpgm")

    b.label("L1_slow")
    b.wait(lg=0, vm=0)
    b("s_barrier")
    b(f"s_mov_b32 {sPass}, 1")
    for q in range(8):
        for s in kv_op('k', q*4096, q*4096): b(s)
    for q in range(8):
        for s in kv_op('v', 32768 + q*4096, q*4096): b(s)
    for q in range(8):
        for s in kv_op('k', 65536 + q*4096, 32768 + q*4096): b(s)
    for q in range(6):
        for s in kv_op('v', 98304 + q*4096, 32768 + q*4096): b(s)
    b("v_and_b32 v14, 31, v1\nv_lshlrev_b32 v14, 8, v14\nv_lshrrev_b32 v15, 5, v1\nv_lshlrev_b32 v15, 4, v15\nv_add_u32 v14, v14, v15")
    b(f"v_mov_b32 v20, 0xff800000\nv_mov_b32 v21, 0xff800000\ns_mov_b32 {sCnt}, 0")
    b.label("L1_slowloop")
    for t in range(8): b(f"buffer_load_dwordx4 {vr(24+4*t,4)}, v14, {SK}, {sCnt} offen offset:{t*32}")
    b.wait(vm=0)
    for S, Q in ((64, QOWN), (80, QSH)):
        for t in range(8):
            b(f"v_mfma_f32_32x32x16_bf16 {vr(S,16)}, {vr(24+4*t,4)}, {ar(Q+4*t,4)}, {'0' if t == 0 else vr(S,16)}")
    for S, M in ((64, 20), (80, 21)):
        for i in range(0, 16, 2): b(f"v_max3_f32 v{M}, v{M}, v{S+i}, v{S+i+1}")
    b(f"s_add_u32 {sCnt}, {sCnt}, 8192\ns_cmp_lt_u32 {sCnt}, 131072")
    b("s_cbranch_scc1 L1_slowloop")
    for M, NM in ((20, NMO), (21, NMS)):
        b(f"v_mov_b32 v15, v{M}")
        b(f"v_permlane32_swap_b32 v{M}, v15")
        b(f"v_max_f32 v{M}, v{M}, v15")
        for i in range(16): b(f"v_sub_f32 v{NM+i}, 0, v{M}")
    p2_addr_init()
    b.wait(vm=0)
    b("s_barrier")
    b("s_branch L1_p2entry")
    return b.L

def gen_k2():
    b = B()
    SO, SW, SOUT, SWS = "s[4:7]", "s[8:11]", "s[12:15]", "s[16:19]"
    sW, sMT, sNT, sCnt, sKey, sT, sT2, sLB, sOO, sWO, sK = "s28", "s29", "s30", "s31", "s32", "s33", "s34", "s35", "s36", "s37", "s38"
    D = DEPTH2
    PD = min(D - 1, opt('pd', 6))
    L16, L16B, WD = 2, 3, 4
    WA = [8, 9, 10, 11]
    AF = [16, 32]; ACC = 64
    BFR = 0
    b.raw(".p2align 8")
    b.raw(".type mha_oproj_kernel,@function")
    b.label("mha_oproj_kernel")
    b("s_cmp_ge_u32 s2, 256")
    b("s_cbranch_scc1 L2_end")
    b.track = False
    b("s_load_dwordx4 s[8:11], s[0:1], 32")
    b("s_load_dwordx2 s[4:5], s[0:1], 56")
    if STAMPS: b.raw("s_memrealtime s[70:71]")
    b.track = True
    b("v_and_b32 v1, 63, v0\nv_lshrrev_b32 v14, 6, v0")
    b(f"v_readfirstlane_b32 {sW}, v14")
    if K2MAP == 0:
        b(f"s_and_b32 {sMT}, s2, 1\ns_lshl_b32 {sMT}, {sMT}, 3\ns_lshr_b32 {sT}, s2, 3\ns_and_b32 {sT2}, {sT}, 7\ns_add_u32 {sMT}, {sMT}, {sT2}")
        b(f"s_lshr_b32 {sNT}, s2, 1\ns_and_b32 {sNT}, {sNT}, 3\ns_lshl_b32 {sNT}, {sNT}, 2\ns_lshr_b32 {sT}, {sT}, 3\ns_add_u32 {sNT}, {sNT}, {sT}")
        b(f"s_lshl_b32 {sT}, {sT}, 1\ns_xor_b32 {sKey}, {sT}, {sT2}\ns_and_b32 {sKey}, {sKey}, {KEYMASK2}")
    else:
        b(f"s_and_b32 {sMT}, s2, 1\ns_lshl_b32 {sMT}, {sMT}, 3\ns_and_b32 {sT}, s2, 2\ns_lshl_b32 {sT}, {sT}, 1\ns_add_u32 {sMT}, {sMT}, {sT}")
        b(f"s_lshr_b32 {sT}, s2, 3\ns_and_b32 {sT2}, {sT}, 3\ns_add_u32 {sMT}, {sMT}, {sT2}")
        b(f"s_and_b32 {sNT}, s2, 4\ns_lshl_b32 {sNT}, {sNT}, 1\ns_lshr_b32 {sT}, {sT}, 2\ns_add_u32 {sNT}, {sNT}, {sT}")
        b(f"s_lshl_b32 {sT2}, {sT2}, 1\ns_xor_b32 {sKey}, {sT}, {sT2}\ns_and_b32 {sKey}, {sKey}, {KEYMASK2}")
    b(f"v_lshlrev_b32 v{L16}, 4, v1\nv_add_u32 v{L16B}, 4096, v{L16}")
    b("v_lshrrev_b32 v14, 4, v1\nv_lshlrev_b32 v14, 1, v14\nv_and_b32 v15, 7, v1\nv_xor_b32 v14, v14, v15\nv_lshlrev_b32 v14, 4, v14")
    b(f"v_lshrrev_b32 v15, 3, v1\nv_lshlrev_b32 v15, 11, v15\nv_add_u32 v{WD}, v14, v15")
    b(f"s_mul_i32 {sLB}, {sW}, {D*4096}")
    b.raw("s_waitcnt lgkmcnt(0)")
    if STAMPS: b("s_mov_b32 s16, s4\ns_mov_b32 s17, s5\ns_mov_b32 s18, 268435456\ns_mov_b32 s19, 0x20000")
    b(f"s_mul_i32 {sT}, {sMT}, 655360\ns_add_u32 s4, s4, {sT}\ns_addc_u32 s5, s5, 0\ns_mov_b32 s6, 655360\ns_mov_b32 s7, 0x20000")
    b(f"s_mul_i32 {sT}, {sMT}, 163840\ns_lshl_b32 {sT2}, {sNT}, 7\ns_add_u32 {sT}, {sT}, {sT2}")
    b(f"s_add_u32 s12, s10, {sT}\ns_addc_u32 s13, s11, 0\ns_sub_u32 s14, 2621440, {sT}\ns_mov_b32 s15, 0x20000")
    b(f"s_add_u32 s8, s8, {sT2}\ns_addc_u32 s9, s9, 0\ns_sub_u32 s10, 8388608, {sT2}\ns_mov_b32 s11, 0x20000")
    b(f"s_lshl_b32 {sK}, {sW}, 5")
    def loads(slot, stepreg_or_imm):
        pre = [f"s_xor_b32 {sT}, {sT2}, {sKey}", f"s_add_u32 {sT}, {sT}, {sK}", f"s_cmp_ge_u32 {sT2}, 32",
               f"s_cselect_b32 {sT}, 0x1000, {sT}", f"s_mul_i32 {sOO}, {sT}, 5120", f"s_lshl_b32 {sWO}, {sT}, 16"]
        ops = []
        for q in range(4):
            ops.append([f"s_add_u32 m0, {sLB}, {slot*4096+q*1024}", f"s_add_u32 {sT}, {sWO}, {q*16384}",
                        (f"buffer_load_dwordx4 v{WD}, {SW}, {sT} offen lds", f"W{slot}")])
        for i in range(5):
            va, off = (L16, i * 1024) if i < 4 else (L16B, 0)
            ops.append([(f"buffer_load_dwordx4 {ar(BFR+slot*20+4*i,4)}, v{va}, {SO}, {sOO} offen offset:{off}", None)])
        return pre, ops
    def put(x):
        if isinstance(x, tuple): b(x[0], x[1])
        else: b(x)
    for st in range(PD):
        b(f"s_mov_b32 {sT2}, {st}")
        pre, ops = loads(st, None)
        for s in pre: b(s)
        for op in ops:
            for s in op: put(s)
    b("v_lshrrev_b32 v14, 5, v1\nv_lshlrev_b32 v14, 4, v14")
    b("v_lshrrev_b32 v15, 2, v1\nv_and_b32 v15, 7, v15")
    b("v_add_u32 v14, v14, v15\nv_lshlrev_b32 v14, 7, v14")
    b("v_lshrrev_b32 v15, 1, v15\nv_lshlrev_b32 v15, 5, v15")
    b("v_and_b32 v12, 3, v1\nv_lshlrev_b32 v12, 3, v12\nv_add3_u32 v14, v14, v15, v12")
    for n in range(4): b(f"v_xor_b32 v{WA[n]}, {n*32}, v14\nv_add_u32 v{WA[n]}, {sLB}, v{WA[n]}")
    for i in range(80): b(f"v_mov_b32 v{ACC+i}, 0")
    def a_reads(slot, buf):
        out = []
        for n in range(4):
            for v in range(2):
                out.append(f"ds_read_b64_tr_b16 {vr(AF[buf]+4*n+2*v,2)}, v{WA[n]} offset:{slot*4096+v*1024}")
        return out
    b.wait_tag(vmtag="W0")
    stamp(b, 1)
    for s in a_reads(0, 0): b(s)
    b(f"s_mov_b32 {sCnt}, 0")
    def body():
        for u in range(D):
            buf = u & 1
            nslot = (u + 1) % D
            lslot = (u + PD) % D
            pre, ops = loads(lslot, None)
            rd = a_reads(nslot, buf ^ 1)
            m = 0
            for i in range(5):
                for n in range(4):
                    c = vr(ACC + (i*4+n)*4, 4)
                    b(f"v_mfma_f32_16x16x32_bf16 {c}, {vr(AF[buf]+4*n,4)}, {ar(BFR+u*20+4*i,4)}, {c}")
                    if m == 0:
                        b(f"s_add_u32 {sT2}, {sCnt}, {u + PD}")
                        for s in pre: b(s)
                    if 1 <= m <= 9:
                        for s in ops[m - 1]: put(s)
                    if m == 11: b.wait_tag(vmtag=f"W{nslot}")
                    if 11 <= m < 19: b(rd[m - 11])
                    m += 1
        b(f"s_add_u32 {sCnt}, {sCnt}, {D}\ns_cmp_lt_u32 {sCnt}, 32")
        b("s_cbranch_scc1 L2_loop")
    save = b.L; b.L = []
    body(); t1 = b.L
    b.L = []; body(); t2 = b.L
    assert t1 == t2, "k2 loop not steady"
    b.L = save
    b.raw(".p2align 3")
    b.label("L2_loop")
    b.L += t2
    b.wait(lg=0, vm=0)
    stamp(b, 2)
    PITCH = 272
    assert 80 * PITCH <= D * 4096 or True
    REG = max(D * 4096, 80 * PITCH)
    if REG != D * 4096: b("s_barrier")
    b(f"v_and_b32 v14, 15, v1\nv_mul_u32_u24 v14, {PITCH}, v14\nv_lshrrev_b32 v15, 4, v1\nv_lshlrev_b32 v15, 4, v15\nv_add_u32 v14, v14, v15")
    b(f"s_mul_i32 {sT}, {sW}, {REG}\nv_add_u32 v14, {sT}, v14")
    for i in range(5):
        for n in range(4):
            b(f"ds_write_b128 v14, {vr(ACC+(i*4+n)*4,4)} offset:{i*16*PITCH+n*64}")
    b.wait(lg=0)
    b("s_barrier")
    b(f"v_lshrrev_b32 v14, 3, v1\ns_mul_i32 {sT}, {sW}, 20\nv_add_u32 v14, {sT}, v14")
    b(f"v_and_b32 v15, 7, v1\nv_lshlrev_b32 v12, 11, v14\nv_lshlrev_b32 v13, 4, v15\nv_add_u32 v12, v12, v13")
    b(f"v_mul_u32_u24 v14, {PITCH}, v14\nv_lshlrev_b32 v15, 5, v15\nv_add_u32 v14, v14, v15")
    for s_ in range(1, 4): b(f"v_add_u32 v{8+s_}, {s_*REG}, v14")
    AD = [14, 9, 10, 11]
    for p in range(3):
        for s_ in range(4):
            for hf in range(2):
                b(f"ds_read_b128 {vr(64+p*32+s_*8+hf*4,4)}, v{AD[s_]} offset:{p*8*PITCH+hf*16}")
    for p in range(3):
        base = 64 + p * 32
        for i in range(8): b(f"v_add_f32 v{base+i}, v{base+i}, v{base+8+i}")
        for i in range(8): b(f"v_add_f32 v{base+16+i}, v{base+16+i}, v{base+24+i}")
        for i in range(8): b(f"v_add_f32 v{base+i}, v{base+i}, v{base+16+i}")
        for i in range(4): b(f"v_cvt_pk_bf16_f32 v{16+p*4+i}, v{base+2*i}, v{base+2*i+1}")
        if p == 2: b("s_mov_b32 exec_hi, 0")
        b(f"s_mov_b32 {sT}, {p*16384}")
        b(f"buffer_store_dwordx4 {vr(16+p*4,4)}, v12, {SOUT}, {sT} offen")
    if STAMPS:
        b("s_mov_b64 exec, -1")
        stamp(b, 3)
        b.wait(vm=0)
        stamp(b, 4)
        stamps_out(b, SWS, sW, 1)
    b.label("L2_end")
    b("s_endpgm")
    return b.L, 4 * REG + 4096

def desc(name, vg, acc):
    return [f".amdhsa_kernel {name}", f"  .amdhsa_next_free_vgpr {vg}", "  .amdhsa_next_free_sgpr 96", f"  .amdhsa_accum_offset {acc}",
            "  .amdhsa_group_segment_fixed_size 0", "  .amdhsa_kernarg_size 64", "  .amdhsa_user_sgpr_count 2",
            "  .amdhsa_user_sgpr_kernarg_segment_ptr 1", "  .amdhsa_system_sgpr_workgroup_id_x 1", ".end_amdhsa_kernel"]

def main():
    k1 = gen_k1()
    k2, lds2 = gen_k2()
    k1, n1 = hazard_pass(k1, verbose=bool(opt("v", 0)))
    k2, n2 = hazard_pass(k2, verbose=bool(opt("v", 0)))
    head = ["; Fused MHA block: launch 1 = Q projection + attention per (batch, head); launch 2 = output projection.",
            "; Generated by a hand-written generator script (dev/gen.py).",
            "; @launch kernel=mha_attn_kernel grid=(256,1,1) block=(256,1,1) lds=163840",
            f"; @launch kernel=mha_oproj_kernel grid=(256,1,1) block=(256,1,1) lds={max(lds2, 90000)}",
            '.amdgcn_target "amdgcn-amd-amdhsa--gfx950"', ".text", ".globl mha_attn_kernel", ".globl mha_oproj_kernel"]
    tail = ['.section .rodata,"a"', ".p2align 6"] + desc("mha_attn_kernel", 432, 256) + [".p2align 6"] + desc("mha_oproj_kernel", 160 + DEPTH2 * 20, 160)
    fmt = lambda l: l if l.endswith(":") or l.startswith((".", ";")) else "    " + l
    open(sys.argv[1], "w").write("\n".join(head + [fmt(l) for l in k1] + [fmt(l) for l in k2] + tail) + "\n")
    print(f"nops inserted: {n1} {n2}; lines {len(k1)} {len(k2)}")
main()
```

```python
import sys, math
from asmlib import B, hazard_pass

P = dict(kv.split("=") for kv in sys.argv[2:])
def opt(k, d): return type(d)(P.get(k, d))
STAMPS = opt("stamps", 0)
KVFL = opt("kvfl", "").replace("+", " ")
OSTFL = opt("ostfl", "").replace("+", " ")
TOUCH = opt("touch", 1)
KEYMASK1 = opt("key1", 0)
KEYMASK2 = opt("key2", 7)
D2 = opt("d2", 5)
DEPTH2 = opt("depth2", 8)
K2MAP = opt("k2map", 0)
FORCE_SLOW = opt("slow", 0)
STAMP_OFF = 200 << 20
NST = 8
TIMER = "s_memtime" if STAMPS == 2 else "s_memrealtime"

def vr(a, n=1, k='v'): return f"{k}{a}" if n == 1 else f"{k}[{a}:{a+n-1}]"
def ar(a, n=1): return vr(a, n, 'a')
def f32bits(x):
    import struct
    return "0x%08x" % struct.unpack("<I", struct.pack("<f", x))[0]

def stamp(b, i):
    if STAMPS:
        b.wait(lg=0)
        b.raw(f"{TIMER} s[{70+2*i}:{71+2*i}]")
        b.raw("s_waitcnt lgkmcnt(0)")

TRACE = opt("trace", 0)
def trace(b):
    if TRACE:
        b.wait(lg=0)
        b.raw("s_memtime s[90:91]")
        b.raw("s_waitcnt lgkmcnt(0)")
        b.raw("s_sub_u32 s90, s90, s92")
        b.raw("s_mov_b32 m0, s94")
        b.raw("v_writelane_b32 v0, s90, m0")
        b.raw("s_add_u32 s94, s94, 1")
def trace_init(b):
    if TRACE:
        b.raw("s_memtime s[92:93]")
        b.raw("s_mov_b32 s94, 0")
def trace_out(b, srd, swave, base):
    if TRACE:
        b(f"s_lshl_b32 s60, s2, 2\ns_add_u32 s60, s60, {swave}\ns_lshl_b32 s60, s60, 9\ns_add_u32 s60, s60, {STAMP_OFF + (1 << 20) + base * 256}")
        b("v_lshlrev_b32 v3, 2, v1")
        b(f"buffer_store_dword v0, v3, {srd}, s60 offen")
        b.wait(vm=0)

def stamps_out(b, srd, swave, base):
    if not STAMPS: return
    b(f"s_cmp_lg_u32 {swave}, 0")
    b("s_cbranch_scc1 L_nost%d" % base)
    b("v_mov_b32 v3, 0")
    b(f"s_mul_i32 s60, s2, {2*NST*8}")
    b(f"s_add_u32 s60, s60, {STAMP_OFF + base*NST*8}")
    for i in range(NST):
        b(f"v_mov_b32 v4, s{70+2*i}\nv_mov_b32 v5, s{71+2*i}")
        b(f"buffer_store_dwordx2 v[4:5], v3, {srd}, s60 offen offset:{8*i}")
        b.wait(vm=0)
    b.label("L_nost%d" % base)

def gen_k1():
    b = B()
    SX, SW, SK, SV, SO, SF = "s[4:7]", "s[8:11]", "s[12:15]", "s[16:19]", "s[20:23]", "s[24:27]"
    sW, sB, sH, sCnt = "s28", "s29", "s30", "s31"
    sRB, sDB, sDelta, sKey = "s32", "s33", "s34", "s35"
    sXO, sWO, sFO, sMX, sMW, sMF, sT = "s36", "s37", "s38", "s39", "s40", "s41", "s42"
    sXB, sWB, sFB, sFS, sFL, sR6, sR5 = "s43", "s44", "s45", "s46", "s47", "s48", "s49"
    sKB, sVB, sDK, sDV, sW8, sDst, sKS, sVS, sPass, sT2, sT3 = "s50", "s51", "s52", "s53", "s54", "s55", "s56", "s57", "s58", "s59", "s61"
    sOB = ["s62", "s63", "s64", "s65"]; sOS = "s66"; sC = "s67"; sNW8 = "s68"
    XA = [2, 3, 4, 5]; WA = 6; XE, XO, WQ, FL, KD, VD, L16 = 7, 8, 9, 10, 11, 12, 13
    AF = [16, 20]; BF = [24, 44]; ACC = 64
    KA = list(range(144, 152)); VA = list(range(152, 156)); LOWN, LSH = 156, 157; OST, OSTS = 158, 159
    OOWN = 160; NMO, NMS = 224, 240
    T = [16, 17, 18, 19]; PB = [24, 32, 40]; SB = [64, 80, 96]
    OSH, QOWN, QSH, KF, VF = 0, 64, 96, 128, 144
    ST0 = 53248; STSZ = 36864; LDS = 163840; QEX = 122880

    b.raw(".p2align 8")
    b.raw(".type mha_attn_kernel,@function")
    b.label("mha_attn_kernel")
    b("s_cmp_ge_u32 s2, 256")
    b("s_cbranch_scc1 L1_end")
    b.track = False
    b("s_load_dwordx4 s[4:7], s[0:1], 0")
    b("s_load_dwordx4 s[8:11], s[0:1], 16")
    b("s_load_dwordx2 s[20:21], s[0:1], 56")
    if STAMPS: b.raw(f"{TIMER} s[70:71]")
    trace_init(b)
    b.track = True
    b("v_and_b32 v1, 63, v0\nv_lshrrev_b32 v14, 6, v0")
    b(f"v_readfirstlane_b32 {sW}, v14")
    b(f"s_and_b32 {sB}, s2, 1\ns_lshl_b32 {sB}, {sB}, 2\ns_lshr_b32 {sT}, s2, 3\ns_and_b32 {sT2}, {sT}, 3\ns_add_u32 {sB}, {sB}, {sT2}")
    b(f"s_lshr_b32 {sH}, s2, 1\ns_and_b32 {sH}, {sH}, 3\ns_lshl_b32 {sH}, {sH}, 3\ns_lshr_b32 {sT3}, {sT}, 2\ns_add_u32 {sH}, {sH}, {sT3}")
    b(f"s_lshl_b32 {sKey}, {sT2}, 2\ns_lshl_b32 {sT}, {sT3}, 1\ns_add_u32 {sKey}, {sKey}, {sT}\ns_lshr_b32 {sT}, {sT3}, 1\ns_xor_b32 {sKey}, {sKey}, {sT}\ns_xor_b32 {sKey}, {sKey}, {sT2}\ns_and_b32 {sKey}, {sKey}, {KEYMASK1}")
    b(f"v_lshlrev_b32 v{L16}, 4, v1")
    b("v_lshrrev_b32 v14, 4, v1")
    b("v_and_b32 v15, 7, v1\nv_xor_b32 v15, v15, v14\nv_lshlrev_b32 v15, 4, v15")
    b(f"v_lshrrev_b32 v{XE}, 3, v1\nv_lshlrev_b32 v{XE}, 11, v{XE}\nv_add_u32 v{XE}, v{XE}, v15\nv_xor_b32 v{XO}, 64, v{XE}")
    b("v_lshlrev_b32 v15, 2, v14\nv_and_b32 v16, 15, v1\nv_xor_b32 v15, v15, v16\nv_lshlrev_b32 v15, 4, v15")
    b(f"v_lshlrev_b32 v{WQ}, 13, v14\nv_add_u32 v{WQ}, v{WQ}, v15")
    b(f"v_lshlrev_b32 v17, 8, v14")
    b(f"v_add_u32 v{VD}, v17, v15")
    b("v_xor_b32 v18, v16, v14\nv_lshlrev_b32 v18, 4, v18\nv_add_u32 v18, v18, v17")
    b.raw("s_waitcnt lgkmcnt(0)")
    b(f"s_lshl_b32 {sT}, {sB}, 5\ns_add_u32 {sT}, {sT}, {sH}\ns_lshl_b32 {sT}, {sT}, 17")
    b(f"s_add_u32 s12, s6, {sT}\ns_addc_u32 s13, s7, 0\ns_mov_b32 s14, 131072\ns_mov_b32 s15, 0x20000")
    b(f"s_add_u32 s16, s8, {sT}\ns_addc_u32 s17, s9, 0\ns_mov_b32 s18, 131072\ns_mov_b32 s19, 0x20000")
    b(f"s_lshl_b32 {sT}, {sH}, 8\ns_add_u32 s8, s10, {sT}\ns_addc_u32 s9, s11, 0\ns_sub_u32 s10, 8388608, {sT}\ns_mov_b32 s11, 0x20000")
    b(f"s_mul_i32 {sT}, {sB}, 327680\ns_add_u32 s4, s4, {sT}\ns_addc_u32 s5, s5, 0\ns_mov_b32 s6, 327680\ns_mov_b32 s7, 0x20000")
    b(f"s_mov_b32 s22, {268435456 if STAMPS else 10485760}\ns_mov_b32 s23, 0x20000")
    b(f"s_lshl_b32 {sW8}, {sW}, 13\ns_sub_u32 {sNW8}, 0, {sW8}")
    b(f"s_mov_b32 {sRB}, {ST0 + 2*STSZ}\ns_mov_b32 {sCnt}, 0\ns_mov_b32 {sPass}, 0")
    b(f"s_mul_i32 {sXB}, {sW}, {6*16384}\ns_mul_i32 {sWB}, {sW}, {5*32768}\ns_mul_i32 {sR6}, {sW}, 6144\ns_mul_i32 {sR5}, {sW}, 5120\ns_add_u32 {sR5}, {sR5}, 20480")
    b(f"s_add_u32 {sT}, {sW}, 18\ns_lshl_b32 {sFL}, {sT}, 10\ns_lshl_b32 {sFB}, {sT}, 14")
    b(f"s_cmp_eq_u32 {sW}, 2")
    b(f"s_cselect_b32 s24, s8, s4\ns_cselect_b32 s25, s9, s5\ns_cselect_b32 s26, s10, s6\ns_mov_b32 s27, 0x20000")
    b(f"s_cselect_b32 {sFL}, {20480+15*1024}, {sFL}\ns_cselect_b32 {sFB}, {15*32768}, {sFB}\ns_cselect_b32 {sFS}, 19, 7")
    b("s_cselect_b64 vcc, -1, 0")
    b(f"s_lshl_b32 {sT}, {sW}, 6\nv_xor_b32 v{FL}, {sT}, v{XE}\nv_cndmask_b32 v{FL}, v{FL}, v{WQ}, vcc")
    b(f"s_cmp_eq_u32 {sW}, 3")
    b("s_cbranch_scc1 L1_w3pro")

    def stage_params(kc_expr_reg):
        return [f"s_xor_b32 {sT}, {kc_expr_reg}, {sKey}",
                f"s_lshl_b32 {sXO}, {sT}, 7", f"s_add_u32 {sXO}, {sXO}, {sXB}",
                f"s_lshl_b32 {sWO}, {sT}, 19", f"s_add_u32 {sWO}, {sWO}, {sWB}",
                f"s_lshl_b32 {sFO}, {sT}, {sFS}", f"s_add_u32 {sFO}, {sFO}, {sFB}",
                f"s_add_u32 {sMX}, {sDB}, {sR6}", f"s_add_u32 {sMW}, {sDB}, {sR5}", f"s_add_u32 {sMF}, {sDB}, {sFL}"]
    def stage_ops():
        ops = []
        xs = [[f"s_add_u32 m0, {sMX}, {q*1024}", f"s_add_u32 {sT}, {sXO}, {q*16384}",
               f"buffer_load_dwordx4 v{XO if q & 1 else XE}, {SX}, {sT} offen lds"] for q in range(6)]
        ws = [[f"s_add_u32 m0, {sMW}, {q*1024}", f"s_add_u32 {sT}, {sWO}, {q*32768}",
               f"buffer_load_dwordx4 v{WQ}, {SW}, {sT} offen lds"] for q in range(5)]
        fl = [f"s_mov_b32 m0, {sMF}", "s_nop 0", f"buffer_load_dwordx4 v{FL}, {SF}, {sFO} offen lds"]
        for q in range(6):
            ops.append(xs[q])
            ops.append(ws[q] if q < 5 else fl)
        return ops
    for st in range(2):
        b(f"s_mov_b32 {sDB}, {ST0 + ((st+2)%3)*STSZ}\ns_mov_b32 {sT2}, {st}")
        for s in stage_params(sT2): b(s)
        for op in stage_ops():
            for s in op: b(s)
    b("s_branch L1_common")
    b.label("L1_w3pro")
    b.vm = []
    if TOUCH:
        b(f"v_lshrrev_b32 v20, 1, v1\nv_lshlrev_b32 v20, 2, v20\nv_add_u32 v20, {sT2}, v20\nv_lshlrev_b32 v20, 13, v20")
        b("v_and_b32 v21, 1, v1\nv_lshlrev_b32 v21, 7, v21\nv_add_u32 v20, v20, v21")
        b(f"s_mul_i32 {sT3}, {sT3}, {20*2048}")
        for i in range(8):
            b(f"s_mov_b32 {sT}, {i*128*8192}")
            b(f"buffer_load_dword a{160+i}, v20, {SW}, {sT} offen")
            if i < 5:
                b(f"v_add_u32 v22, {i*64}, v1\nv_mul_u32_u24 v23, 3277, v22\nv_lshrrev_b32 v23, 16, v23")
                b("v_mul_u32_u24 v24, 20, v23\nv_sub_u32 v22, v22, v24\nv_lshlrev_b32 v22, 11, v22\nv_lshlrev_b32 v23, 7, v23\nv_add_u32 v22, v22, v23")
                b(f"buffer_load_dword a{168+i}, v22, {SX}, {sT3} offen")
    for r in range(1, 4): b(f"v_xor_b32 v{18+8+r}, {r*64}, v18")
    for g in range(8):
        b(f"s_mov_b32 m0, {g*4096}\ns_mov_b32 {sT}, {g*4096}")
        for r in range(4):
            b(f"buffer_load_dwordx4 v{18 if r == 0 else 26+r}, {SK}, {sT} offen offset:{r*1024} {KVFL} lds")
    for g in range(4):
        b(f"s_mov_b32 m0, {32768+g*4096}\ns_mov_b32 {sT}, {g*4096}")
        for r in range(4):
            b(f"buffer_load_dwordx4 v{VD}, {SV}, {sT} offen offset:{r*1024} {KVFL} lds")
    b.vm = []
    b.label("L1_common")
    b.vm = []
    b(f"s_lshl_b32 {sT}, {sW}, 6\nv_xor_b32 v{KD}, {sT}, v18\ns_lshl_b32 {sT}, {sW}, 10\nv_add_u32 v{KD}, {sT}, v{KD}\nv_add_u32 v{VD}, {sT}, v{VD}")
    b("v_and_b32 v50, 31, v1\nv_lshrrev_b32 v51, 5, v1")
    b("v_lshrrev_b32 v52, 1, v50\nv_and_b32 v52, 7, v52\nv_xor_b32 v52, v52, v51\nv_lshlrev_b32 v52, 4, v52")
    b(f"v_lshlrev_b32 v53, 7, v50\nv_add_u32 v52, v52, v53")
    for u in range(4):
        b(f"v_xor_b32 v{XA[u]}, {u*32}, v52\nv_add_u32 v{XA[u]}, {sRB}, v{XA[u]}")
    b("v_lshrrev_b32 v54, 2, v1\nv_and_b32 v54, 3, v54")
    b("v_and_b32 v55, 3, v1")
    b("v_lshrrev_b32 v56, 4, v1\nv_and_b32 v56, 1, v56\nv_lshlrev_b32 v56, 5, v56")
    b(f"v_xor_b32 v57, {sW}, v54\nv_lshlrev_b32 v57, 6, v57\nv_add_u32 v57, v57, v56")
    b("v_lshlrev_b32 v58, 1, v55\nv_lshrrev_b32 v59, 1, v55\nv_or_b32 v58, v58, v59\nv_and_b32 v58, 3, v58\nv_lshlrev_b32 v58, 3, v58")
    b("v_lshlrev_b32 v59, 3, v51\nv_add_u32 v59, v59, v54\nv_lshlrev_b32 v59, 8, v59")
    b(f"v_add3_u32 v{WA}, v57, v58, v59\ns_add_u32 {sT}, {sRB}, 20480\nv_add_u32 v{WA}, {sT}, v{WA}")
    b(f"v_lshrrev_b32 v60, 5, v56\ns_lshl_b32 {sT}, {sW}, 1\nv_add_u32 v61, {sT}, v60")
    b(f"v_lshlrev_b32 v61, 10, v61\nv_mov_b32 v62, {655360-5120}\nv_cmp_le_u32 vcc, 5120, v61\nv_cndmask_b32 v62, 0, v62, vcc\nv_add_u32 v61, v61, v62")
    b("v_and_b32 v62, 15, v1\nv_lshlrev_b32 v62, 4, v62\nv_lshlrev_b32 v63, 8, v51\nv_add_u32 v62, v62, v63")
    b(f"v_add_u32 v{OST}, v61, v62")
    b(f"v_lshlrev_b32 v60, 10, v60\nv_add_u32 v60, {655360+3*1024}, v60\nv_add_u32 v{OSTS}, v60, v62")
    b(f"s_mul_i32 {sT}, {sB}, 1310720\ns_mul_i32 {sT2}, {sH}, 20480\ns_add_u32 {sT}, {sT}, {sT2}")
    for j in range(4):
        b(f"s_xor_b32 {sT2}, {sW}, {j}\ns_mul_i32 {sT2}, {sT2}, 5120\ns_add_u32 {sOB[j]}, {sT}, {sT2}")
    b(f"s_mov_b32 {sC}, {f32bits(math.log2(math.e) / math.sqrt(128.0))}")

    def p2_addr_init():
        b("v_and_b32 v50, 31, v1\nv_lshrrev_b32 v51, 5, v1")
        b("v_and_b32 v52, 15, v50\nv_xor_b32 v52, v52, v51\nv_lshlrev_b32 v52, 4, v52\nv_lshlrev_b32 v53, 8, v50\nv_add_u32 v52, v52, v53")
        for t in range(8):
            b(f"v_xor_b32 v{KA[t]}, {t*32}, v52\nv_add_u32 v{KA[t]}, {sW8}, v{KA[t]}")
        b("v_lshrrev_b32 v54, 2, v1\nv_and_b32 v54, 3, v54\nv_and_b32 v55, 3, v1")
        b("v_lshrrev_b32 v56, 4, v1\nv_and_b32 v56, 1, v56\nv_lshlrev_b32 v56, 5, v56")
        b(f"v_xor_b32 v57, {sW}, v54\nv_lshlrev_b32 v57, 6, v57\nv_add_u32 v57, v57, v56")
        b("v_lshlrev_b32 v58, 2, v51\nv_add_u32 v58, v58, v54\nv_lshlrev_b32 v58, 8, v58\nv_lshlrev_b32 v59, 3, v55\nv_add3_u32 v57, v57, v58, v59")
        b(f"s_add_u32 {sT}, {sW8}, 32768")
        for j in range(4):
            b(f"v_xor_b32 v{VA[j]}, {j*64}, v57\nv_add_u32 v{VA[j]}, {sT}, v{VA[j]}")
        b(f"s_mov_b32 {sKB}, 0\ns_mov_b32 {sVB}, 32768\ns_mov_b32 {sDst}, 131072\ns_mov_b32 {sKS}, 65536\ns_mov_b32 {sVS}, 65536")
        for i in range(64): b(f"v_mov_b32 v{OOWN+i}, 0")
        for i in range(64): b(f"v_accvgpr_write_b32 a{OSH+i}, 0")
        b(f"v_mov_b32 v{LOWN}, 0\nv_mov_b32 v{LSH}, 0")
    p2_addr_init()
    for i in range(32): b(f"v_mov_b32 v{NMO+i}, 0")
    for i in range(80): b(f"v_mov_b32 v{ACC+i}, 0")
    b(f"s_mov_b32 {sDB}, {ST0 + 1*STSZ}")
    b(f"s_cmp_eq_u32 {sW}, 3")
    b("s_cbranch_scc1 L1_w3z")
    for i in range(4): b(f"v_mov_b32 v{AF[1]+i}, 0")
    for i in range(20): b(f"v_mov_b32 v{BF[1]+i}, 0")
    b.raw("s_waitcnt vmcnt(12)")

    def p1_step(dmas, pre=(), upd=True):
        trace(b)
        b("s_barrier")
        trace(b)
        nd = len(dmas); di = 0
        pre = list(pre)
        for g in range(4):
            rb = g & 1; mb = rb ^ 1
            rd = [f"ds_read_b64_tr_b16 {vr(AF[rb],2)}, v{WA} offset:{g*4096}",
                  f"ds_read_b64_tr_b16 {vr(AF[rb]+2,2)}, v{WA} offset:{g*4096+1024}"] + \
                 [f"ds_read_b128 {vr(BF[rb]+4*q,4)}, v{XA[g]} offset:{q*4096}" for q in range(5)]
            sched = [rd[0:2], rd[2:4], rd[4:6], rd[6:7], []]
            for q in range(5):
                b(f"v_mfma_f32_32x32x16_bf16 {vr(ACC+16*q,16)}, {vr(AF[mb],4)}, {vr(BF[mb]+4*q,4)}, {vr(ACC+16*q,16)}")
                for s in sched[q]: b(s)
                if g == 0 and q < 2:
                    h = (len(pre) + 1) // 2
                    for s in (pre[:h] if q == 0 else pre[h:]): b(s)
                if q >= 2:
                    tgt = min(nd, ((g * 3 + (q - 1)) * nd + 11) // 12)
                    while di < tgt:
                        for s in dmas[di]: b(s)
                        di += 1
                if upd and q == 4:
                    b(f"v_add_u32 v{XA[g]}, {sDelta}, v{XA[g]}")
                    if g == 3: b(f"v_add_u32 v{WA}, {sDelta}, v{WA}")
        assert di == nd
    ring = [f"s_add_u32 {sT2}, {sRB}, {STSZ}", f"s_cmp_ge_u32 {sT2}, {LDS}", f"s_cselect_b32 {sT2}, {ST0}, {sT2}",
            f"s_sub_u32 {sDelta}, {sT2}, {sRB}"]
    ring_end = [f"s_mov_b32 {sDB}, {sRB}", f"s_add_u32 {sRB}, {sRB}, {sDelta}"]
    b.raw(".p2align 3")
    b.label("L1_p1a")
    p1_step(stage_ops(), pre=ring + [f"s_add_u32 {sT2}, {sCnt}, 2"] + stage_params(sT2))
    for s in ring_end: b(s)
    b(f"s_add_u32 {sCnt}, {sCnt}, 1\ns_cmp_lt_u32 {sCnt}, 14")
    b.wait(lg=0, vm=12)
    b("s_cbranch_scc1 L1_p1a")
    b("s_branch L1_p1tail")
    b.label("L1_w3z")
    b.vm = []
    b.raw("s_waitcnt vmcnt(59)")
    b(f"s_mov_b32 m0, {32768+4*4096}\ns_mov_b32 {sT}, {4*4096-3072}")
    for r in range(4):
        b(f"buffer_load_dwordx4 v{VD}, {SV}, {sT} offen offset:{r*1024} {KVFL} lds")
    b.vm = []
    for i in range(4): b(f"v_mov_b32 v{AF[1]+i}, 0")
    for i in range(20): b(f"v_mov_b32 v{BF[1]+i}, 0")
    b.raw(".p2align 3")
    b.label("L1_p1b")
    p1_step([], pre=ring)
    for s in ring_end: b(s)
    b(f"s_add_u32 {sCnt}, {sCnt}, 1\ns_cmp_lt_u32 {sCnt}, 14")
    b.wait(lg=0)
    b("s_cbranch_scc1 L1_p1b")
    b.label("L1_p1tail")
    b.vm = []
    stamp(b, 1)
    def kv_op(kind, lds, off):
        srd, v = (SK, KD) if kind == 'k' else (SV, VD)
        return [f"s_lshl_b32 {sT}, {sW}, 10", f"s_add_u32 m0, {sT}, {lds}", f"s_mov_b32 {sT}, {off}",
                f"buffer_load_dwordx4 v{v}, {srd}, {sT} offen {KVFL} lds"]
    d14 = [kv_op('v', 32768 + q*4096, q*4096) for q in range(5, 8)] + [kv_op('k', 65536 + q*4096, 32768 + q*4096) for q in range(6)]
    d15 = [kv_op('k', 65536 + q*4096, 32768 + q*4096) for q in range(6, 8)] + [kv_op('v', 98304 + q*4096, 32768 + q*4096) for q in range(6)]
    p1_step(d14, pre=ring)
    for s in ring_end: b(s)
    b.wait(lg=0, vm=9)
    p1_step(d15, upd=False)
    b.wait(lg=0)
    b("s_barrier")
    for q in range(5):
        b(f"v_mfma_f32_32x32x16_bf16 {vr(ACC+16*q,16)}, {vr(AF[1],4)}, {vr(BF[1]+4*q,4)}, {vr(ACC+16*q,16)}")
    b(f"s_lshl_b32 {sT}, {sW}, 11\ns_add_u32 {sT}, {sT}, {QEX}\nv_add_u32 v14, {sT}, v{L16}")
    b(f"s_add_u32 {sT}, {sW8}, {QEX}\nv_add_u32 v15, {sT}, v{L16}\nv_add_u32 v{WA}, {QEX+32768}, v{L16}")
    for q in range(5):
        for i in range(16): b(f"v_mul_f32 v{ACC+16*q+i}, {sC}, v{ACC+16*q+i}")
        for i in range(8): b(f"v_cvt_pk_bf16_f32 v{24+8*q+i}, v{ACC+16*q+2*i}, v{ACC+16*q+2*i+1}")
        for a in range(2): b(f"ds_write_b128 v14, {vr(24+8*q+4*a,4)} offset:{q*8192+a*1024}")
    b.wait(lg=0, vm=17)
    b("s_barrier")
    stamp(b, 2)
    for f in range(8): b(f"ds_read_b128 {ar(QSH+4*f,4)}, v{WA} offset:{f*1024}")
    for f in range(8): b(f"ds_read_b128 {ar(QOWN+4*f,4)}, v15 offset:{f*1024}")
    b.wait(lg=0)

    def typ(n): return n % 5 == 0
    def col(n): return (0, 1, 0, 1, 2)[n % 5]
    def k_read(n, t):
        off = 0 if typ(n) else (n % 5 - 1) * 8192
        out = [(f"ds_read_b128 {ar(KF+4*(t%4),4)}, v{KA[t]} offset:{off}", 'K')]
        if typ(n): out.append((f"v_add_u32 v{KA[t]}, {sNW8}, v{KA[t]}", None))
        if n % 5 == 4: out.append((f"v_add_u32 v{KA[t]}, {sDK}, v{KA[t]}", None))
        return out
    def v_read(n, i):
        ks, j = i // 4, i % 4
        off = (0 if typ(n) else (n % 5 - 1) * 8192) + ks * 4096
        out = [(f"ds_read_b64_tr_b16 {ar(VF+4*j,2)}, v{VA[j]} offset:{off}", 'V'),
               (f"ds_read_b64_tr_b16 {ar(VF+4*j+2,2)}, v{VA[j]} offset:{off+2048}", 'V')]
        if ks == 1 and typ(n): out.append((f"v_add_u32 v{VA[j]}, {sNW8}, v{VA[j]}", None))
        if ks == 1 and n % 5 == 4: out.append((f"v_add_u32 v{VA[j]}, {sDV}, v{VA[j]}", None))
        return out
    def s_mfma(n, t):
        q = QSH if typ(n) else QOWN
        c = (NMS if typ(n) else NMO) if t == 0 else SB[col(n)]
        return f"v_mfma_f32_32x32x16_bf16 {vr(SB[col(n)],16)}, {ar(KF+4*(t%4),4)}, {ar(q+4*t,4)}, {vr(c,16)}"
    def p_mfma(n, i):
        ks, j = i // 4, i % 4
        o = ar(OSH + 16*j, 16) if typ(n) else vr(OOWN + 16*j, 16)
        return f"v_mfma_f32_32x32x16_bf16 {o}, {ar(VF+4*j,4)}, {vr(PB[col(n)]+4*ks,4)}, {o}"
    def v_exp(n, e): return f"v_exp_f32 v{T[e%4]}, v{SB[col(n)]+e}"
    def v_sum(n, e):
        l = LSH if typ(n) else LOWN
        return f"v_add_f32 v{l}, v{l}, v{T[e%4]}"
    def v_cvt(n, c): return f"v_cvt_pk_bf16_f32 v{PB[col(n)]+c}, v{T[(2*c)%4]}, v{T[(2*c+1)%4]}"
    def nxt(base, delta):
        return [f"s_add_u32 {sT2}, {base}, 65536", f"s_sub_u32 {sT3}, {sT2}, {LDS}", f"s_cmp_ge_u32 {sT2}, {LDS}",
                f"s_cselect_b32 {sT2}, {sT3}, {sT2}", f"s_sub_u32 {delta}, {sT2}, {base}", f"s_add_u32 {delta}, {delta}, {sW8}",
                f"s_mov_b32 {base}, {sT2}"]
    def grp_dma(kind, q):
        srd, v, so = (SK, KD, sKS) if kind == 'k' else (SV, VD, sVS)
        out = [f"s_add_u32 m0, {sOS}, {q*4096}", f"s_add_u32 {sT}, {so}, {q*4096}",
               f"buffer_load_dwordx4 v{v}, {srd}, {sT} offen {KVFL} lds"]
        if q == 0: out = [f"s_lshl_b32 {sOS}, {sW}, 10", f"s_add_u32 {sOS}, {sOS}, {sDst}"] + out
        if q == 7:
            out += [f"s_add_u32 {so}, {so}, 32768", f"s_add_u32 {sDst}, {sDst}, 32768", f"s_cmp_ge_u32 {sDst}, {LDS}",
                    f"s_cselect_b32 {sDst}, 0, {sDst}"]
        return out

    def mf_at(G):
        n, i = divmod(G, 16)
        return ('S', n + 1, i // 2) if i % 2 == 0 else ('P', n - 1, i // 2)
    def valid(kind, n): return 0 <= n <= 19
    def emit_gap(G, tail=False, extra=()):
        kind, n, i = mf_at(G)
        if valid(kind, n): b(s_mfma(n, i) if kind == 'S' else p_mfma(n, i))
        sn, pos = divmod(G, 16)
        pn, ppos = divmod(G - 1, 16)
        if valid('V', pn):
            b(v_sum(pn, ppos))
            if ppos % 2 == 1: b(v_cvt(pn, ppos // 2))
        rk, rn, ri = mf_at(G + D2)
        if valid(rk, rn):
            if ri == 0 and rn % 5 == 0 and not tail:
                b.wait_tag(lgtag='K' if rk == 'S' else 'V')
                trace(b)
                b.wait(vm=16)
                b("s_barrier")
                trace(b)
            for s, tg in (k_read(rn, ri) if rk == 'S' else v_read(rn, ri)): b(s, tg)
        if valid('V', sn): b(v_exp(sn, pos))
        for s in extra: b(s)

    b.label("L1_p2entry")
    for t in range(4):
        for s, tg in k_read(0, t): b(s, tg)
    for n in (0, 1):
        for t in range(8):
            b(s_mfma(n, t))
            t2 = t + 4
            n2 = n + t2 // 8
            if n2 <= 1:
                for s, tg in k_read(n2, t2 % 8): b(s, tg)
    b.wait(lg=0, vm=14)
    b("s_barrier")
    for q in (6, 7):
        for s in kv_op('v', 98304 + q*4096, 32768 + q*4096): b(s)
    b(f"s_cmp_lg_u32 {sPass}, 0")
    b("s_cbranch_scc1 L1_nomax")
    for n, NM in ((0, NMS), (1, NMO)):
        S = SB[col(n)]
        b(f"v_max3_f32 v14, v{S}, v{S+1}, v{S+2}")
        for i in range(3, 15, 2): b(f"v_max3_f32 v14, v14, v{S+i}, v{S+i+1}")
        b(f"v_max_f32 v14, v14, v{S+15}\nv_mov_b32 v15, v14")
        b("v_permlane32_swap_b32 v14, v15")
        b("v_max_f32 v14, v14, v15")
        for i in range(16): b(f"v_sub_f32 v{NM+i}, 0, v14")
        for i in range(16): b(f"v_sub_f32 v{S+i}, v{S+i}, v14")
    b.label("L1_nomax")
    for e in range(16):
        if e >= 1:
            b(v_sum(0, e - 1))
            if (e - 1) % 2 == 1: b(v_cvt(0, (e - 1) // 2))
        if e + D2 >= 16:
            rk, rn, ri = mf_at(e + D2)
            for s, tg in (k_read(rn, ri) if rk == 'S' else v_read(rn, ri)): b(s, tg)
        b(v_exp(0, e))
    b(f"s_mov_b32 {sCnt}, 0")
    stamp(b, 3)
    if STAMPS: pass
    EXITG = 16 * 4 - D2
    def extras(G):
        ex = []
        r = G - 16
        if r == 0: ex += nxt(sKB, sDK) + nxt(sVB, sDV)
        if 1 <= r < 33 and (r - 1) % 4 == 0: ex += grp_dma('k', (r - 1) // 4)
        x0 = EXITG - 16 + 1
        if x0 <= r < x0 + 24 and (r - x0) % 3 == 0: ex += grp_dma('v', (r - x0) // 3)
        return ex
    def body():
        for G in range(16, 96):
            if G == EXITG:
                b(f"s_cmp_eq_u32 {sCnt}, 3")
                b("s_cbranch_scc1 L1_tail")
                body.exit_state = b.state()
            emit_gap(G, extra=extras(G))
        b(f"s_add_u32 {sCnt}, {sCnt}, 1")
        b("s_branch L1_p2")
    st0 = b.state()
    if STAMPS:
        pass
    save = b.L; b.L = []
    body(); st1 = b.state(); t1 = b.L
    b.L = []; body(); st2 = b.state(); t2 = b.L
    assert st1[0] == st2[0]
    if not STAMPS: assert t1 == t2, "loop not steady"
    b.L = save
    b.raw(".p2align 3")
    b.label("L1_p2")
    b.L += t2
    b.label("L1_tail")
    b.set_state(body.exit_state)
    b.wait_tag(lgtag='K')
    b.wait(vm=0)
    b("s_barrier")
    stamp(b, 4)
    EXO = 0; EXM = 98304
    ex = []
    for j in (1, 2, 3):
        ex.append([f"s_xor_b32 {sT}, {sW}, {j}", f"s_lshl_b32 {sT}, {sT}, 2", f"s_add_u32 {sT}, {sT}, {sW}", f"s_lshl_b32 {sT}, {sT}, 12",
                   f"v_add_u32 v{KA[j]}, {sT}, v{L16}"])
        for qd in range(4): ex.append([f"ds_write_b128 v{KA[j]}, {ar(OSH+16*j+4*qd,4)} offset:{EXO+qd*1024}"])
    ex.append([f"v_mov_b32 v21, v{LSH}", "s_nop 1", f"v_permlane32_swap_b32 v21, v{LSH}", f"v_add_f32 v21, v21, v{LSH}", f"v_mov_b32 v20, v{NMS}",
               f"v_lshrrev_b32 v{KA[0]}, 1, v{L16}", f"s_lshl_b32 {sT}, {sW}, 9", f"s_add_u32 {sT}, {sT}, {EXM}", f"v_add_u32 v{KA[4]}, {sT}, v{KA[0]}",
               f"ds_write_b64 v{KA[4]}, v[20:21]"])
    G0 = EXITG + 240
    gaps = list(range(G0, 16 * 21))
    for G in gaps:
        e = []
        if G >= 16 * 19 + 8 and ex: e = ex.pop(0)
        emit_gap(G, tail=True, extra=e)
    assert not ex
    b(f"v_mov_b32 v22, v{LOWN}")
    b(f"v_permlane32_swap_b32 v22, v{LOWN}")
    b(f"v_add_f32 v22, v22, v{LOWN}")
    b(f"v_max_f32 v23, v22, v21\nv_add_f32 v14, v22, v21")
    thr = f32bits(2.0 ** 24) if not FORCE_SLOW else f32bits(0.0)
    b(f"v_cmp_nge_f32 vcc, {thr}, v14")
    b(f"s_cmp_lg_u64 vcc, 0\ns_cselect_b32 {sT}, 1, 0\nv_mov_b32 v14, {sT}")
    b(f"s_lshl_b32 {sT}, {sW}, 2\ns_add_u32 {sT}, {sT}, {EXM+4096}\nv_mov_b32 v15, {sT}")
    b("ds_write_b32 v15, v14")
    b("v_rcp_f32 v22, v22")
    b.wait(lg=0)
    b("s_barrier")
    b(f"v_mov_b32 v15, {EXM+4096}")
    b("ds_read_b128 v[64:67], v15")
    b(f"v_add_u32 v{KA[4]}, {EXM}, v{KA[0]}")
    for s_ in range(4): b(f"ds_read_b64 {vr(68+2*s_,2)}, v{KA[4]} offset:{s_*512}")
    for j in (1, 2, 3):
        b(f"s_xor_b32 {sT}, {sW}, {j}\ns_lshl_b32 {sT2}, {sW}, 2\ns_add_u32 {sT}, {sT}, {sT2}\ns_lshl_b32 {sT}, {sT}, 12\nv_add_u32 v{KA[j]}, {sT}, v{L16}")
        for qd in range(4): b(f"ds_read_b128 {vr(80+16*(j-1)+4*qd,4)}, v{KA[j]} offset:{EXO+qd*1024}")
    for j in range(4):
        for i in range(16): b(f"v_mul_f32 v{OOWN+16*j+i}, v22, v{OOWN+16*j+i}")
        for i in range(8): b(f"v_cvt_pk_bf16_f32 v{24+8*j+i}, v{OOWN+16*j+2*i}, v{OOWN+16*j+2*i+1}")
        for a in range(2): b(f"buffer_store_dwordx4 {vr(24+8*j+4*a,4)}, v{OST}, {SO}, {sOB[j]} offen offset:{a*512} {OSTFL}")
    b("v_or_b32 v64, v64, v65\nv_or3_b32 v64, v64, v66, v67")
    b(f"v_readfirstlane_b32 {sT}, v64")
    b(f"s_andn2_b32 {sT}, {sT}, {sPass}\ns_cmp_lg_u32 {sT}, 0")
    b("s_cbranch_scc1 L1_slow")
    b("v_min_f32 v14, v68, v70\nv_min3_f32 v14, v14, v72, v74")
    for s_ in range(4): b(f"v_sub_f32 v{68+2*s_}, v14, v{68+2*s_}")
    for s_ in range(4): b(f"v_exp_f32 v{68+2*s_}, v{68+2*s_}")
    b("v_mul_f32 v15, v68, v69\nv_fmac_f32 v15, v70, v71\nv_fmac_f32 v15, v72, v73\nv_fmac_f32 v15, v74, v75")
    b("v_rcp_f32 v15, v15")
    for j in range(4):
        b(f"s_xor_b32 {sT}, {sW}, {j}")
        b(f"s_cmp_eq_u32 {sT}, 1\ns_cselect_b64 vcc, -1, 0\nv_cndmask_b32 v{76+j}, v68, v70, vcc")
        b(f"s_cmp_eq_u32 {sT}, 2\ns_cselect_b64 vcc, -1, 0\nv_cndmask_b32 v{76+j}, v{76+j}, v72, vcc")
        b(f"s_cmp_eq_u32 {sT}, 3\ns_cselect_b64 vcc, -1, 0\nv_cndmask_b32 v{76+j}, v{76+j}, v74, vcc")
        b(f"v_mul_f32 v{76+j}, v{76+j}, v15")
    for i in range(16): b(f"v_accvgpr_read_b32 v{128+i}, a{OSH+i}")
    for i in range(16): b(f"v_mul_f32 v{128+i}, v76, v{128+i}")
    for j in (1, 2, 3):
        for i in range(16): b(f"v_fmac_f32 v{128+i}, v{76+j}, v{80+16*(j-1)+i}")
    for i in range(8): b(f"v_cvt_pk_bf16_f32 v{56+i}, v{128+2*i}, v{128+2*i+1}")
    for a in range(2): b(f"buffer_store_dwordx4 {vr(56+4*a,4)}, v{OSTS}, {SO}, {sOB[0]} offen offset:{a*512} {OSTFL}")
    if STAMPS:
        stamp(b, 5)
        b.wait(vm=0)
        stamp(b, 6)
        stamps_out(b, SO, sW, 0)
        trace_out(b, SO, sW, 0)
    b.label("L1_end")
    b("s_endpgm")

    b.label("L1_slow")
    b.wait(lg=0, vm=0)
    b("s_barrier")
    b(f"s_mov_b32 {sPass}, 1")
    for q in range(8):
        for s in kv_op('k', q*4096, q*4096): b(s)
    for q in range(8):
        for s in kv_op('v', 32768 + q*4096, q*4096): b(s)
    for q in range(8):
        for s in kv_op('k', 65536 + q*4096, 32768 + q*4096): b(s)
    for q in range(6):
        for s in kv_op('v', 98304 + q*4096, 32768 + q*4096): b(s)
    b("v_and_b32 v14, 31, v1\nv_lshlrev_b32 v14, 8, v14\nv_lshrrev_b32 v15, 5, v1\nv_lshlrev_b32 v15, 4, v15\nv_add_u32 v14, v14, v15")
    b(f"v_mov_b32 v20, 0xff800000\nv_mov_b32 v21, 0xff800000\ns_mov_b32 {sCnt}, 0")
    b.label("L1_slowloop")
    for t in range(8): b(f"buffer_load_dwordx4 {vr(24+4*t,4)}, v14, {SK}, {sCnt} offen offset:{t*32}")
    b.wait(vm=0)
    for S, Q in ((64, QOWN), (80, QSH)):
        for t in range(8):
            b(f"v_mfma_f32_32x32x16_bf16 {vr(S,16)}, {vr(24+4*t,4)}, {ar(Q+4*t,4)}, {'0' if t == 0 else vr(S,16)}")
    for S, M in ((64, 20), (80, 21)):
        for i in range(0, 16, 2): b(f"v_max3_f32 v{M}, v{M}, v{S+i}, v{S+i+1}")
    b(f"s_add_u32 {sCnt}, {sCnt}, 8192\ns_cmp_lt_u32 {sCnt}, 131072")
    b("s_cbranch_scc1 L1_slowloop")
    for M, NM in ((20, NMO), (21, NMS)):
        b(f"v_mov_b32 v15, v{M}")
        b(f"v_permlane32_swap_b32 v{M}, v15")
        b(f"v_max_f32 v{M}, v{M}, v15")
        for i in range(16): b(f"v_sub_f32 v{NM+i}, 0, v{M}")
    p2_addr_init()
    b.wait(vm=0)
    b("s_barrier")
    b("s_branch L1_p2entry")
    return b.L

def gen_k2():
    b = B()
    SO, SW, SOUT, SWS = "s[4:7]", "s[8:11]", "s[12:15]", "s[16:19]"
    sW, sMT, sNT, sCnt, sKey, sT, sT2, sLB, sOO, sWO, sK = "s28", "s29", "s30", "s31", "s32", "s33", "s34", "s35", "s36", "s37", "s38"
    D = DEPTH2
    PD = min(D - 1, opt('pd', 6))
    L16, L16B, WD = 2, 3, 4
    WA = [8, 9, 10, 11]
    AF = [16, 32]; ACC = 64
    BFR = 0
    b.raw(".p2align 8")
    b.raw(".type mha_oproj_kernel,@function")
    b.label("mha_oproj_kernel")
    b("s_cmp_ge_u32 s2, 256")
    b("s_cbranch_scc1 L2_end")
    b.track = False
    b("s_load_dwordx4 s[8:11], s[0:1], 32")
    b("s_load_dwordx2 s[4:5], s[0:1], 56")
    if STAMPS: b.raw(f"{TIMER} s[70:71]")
    trace_init(b)
    b.track = True
    b("v_and_b32 v1, 63, v0\nv_lshrrev_b32 v14, 6, v0")
    b(f"v_readfirstlane_b32 {sW}, v14")
    if K2MAP == 0:
        b(f"s_and_b32 {sMT}, s2, 1\ns_lshl_b32 {sMT}, {sMT}, 3\ns_lshr_b32 {sT}, s2, 3\ns_and_b32 {sT2}, {sT}, 7\ns_add_u32 {sMT}, {sMT}, {sT2}")
        b(f"s_lshr_b32 {sNT}, s2, 1\ns_and_b32 {sNT}, {sNT}, 3\ns_lshl_b32 {sNT}, {sNT}, 2\ns_lshr_b32 {sT}, {sT}, 3\ns_add_u32 {sNT}, {sNT}, {sT}")
        b(f"s_lshl_b32 {sT}, {sT}, 1\ns_xor_b32 {sKey}, {sT}, {sT2}\ns_and_b32 {sKey}, {sKey}, {KEYMASK2}")
    else:
        b(f"s_and_b32 {sMT}, s2, 1\ns_lshl_b32 {sMT}, {sMT}, 3\ns_and_b32 {sT}, s2, 2\ns_lshl_b32 {sT}, {sT}, 1\ns_add_u32 {sMT}, {sMT}, {sT}")
        b(f"s_lshr_b32 {sT}, s2, 3\ns_and_b32 {sT2}, {sT}, 3\ns_add_u32 {sMT}, {sMT}, {sT2}")
        b(f"s_and_b32 {sNT}, s2, 4\ns_lshl_b32 {sNT}, {sNT}, 1\ns_lshr_b32 {sT}, {sT}, 2\ns_add_u32 {sNT}, {sNT}, {sT}")
        b(f"s_lshl_b32 {sT2}, {sT2}, 1\ns_xor_b32 {sKey}, {sT}, {sT2}\ns_and_b32 {sKey}, {sKey}, {KEYMASK2}")
    b(f"v_lshlrev_b32 v{L16}, 4, v1\nv_add_u32 v{L16B}, 4096, v{L16}")
    b("v_lshrrev_b32 v14, 4, v1\nv_lshlrev_b32 v14, 1, v14\nv_and_b32 v15, 7, v1\nv_xor_b32 v14, v14, v15\nv_lshlrev_b32 v14, 4, v14")
    b(f"v_lshrrev_b32 v15, 3, v1\nv_lshlrev_b32 v15, 11, v15\nv_add_u32 v{WD}, v14, v15")
    b(f"s_mul_i32 {sLB}, {sW}, {D*4096}")
    b.raw("s_waitcnt lgkmcnt(0)")
    if STAMPS: b("s_mov_b32 s16, s4\ns_mov_b32 s17, s5\ns_mov_b32 s18, 268435456\ns_mov_b32 s19, 0x20000")
    b(f"s_mul_i32 {sT}, {sMT}, 655360\ns_add_u32 s4, s4, {sT}\ns_addc_u32 s5, s5, 0\ns_mov_b32 s6, 655360\ns_mov_b32 s7, 0x20000")
    b(f"s_mul_i32 {sT}, {sMT}, 163840\ns_lshl_b32 {sT2}, {sNT}, 7\ns_add_u32 {sT}, {sT}, {sT2}")
    b(f"s_add_u32 s12, s10, {sT}\ns_addc_u32 s13, s11, 0\ns_sub_u32 s14, 2621440, {sT}\ns_mov_b32 s15, 0x20000")
    b(f"s_add_u32 s8, s8, {sT2}\ns_addc_u32 s9, s9, 0\ns_sub_u32 s10, 8388608, {sT2}\ns_mov_b32 s11, 0x20000")
    b(f"s_lshl_b32 {sK}, {sW}, 5")
    def loads(slot, stepreg_or_imm):
        pre = [f"s_xor_b32 {sT}, {sT2}, {sKey}", f"s_add_u32 {sT}, {sT}, {sK}", f"s_cmp_ge_u32 {sT2}, 32",
               f"s_cselect_b32 {sT}, 0x1000, {sT}", f"s_mul_i32 {sOO}, {sT}, 5120", f"s_lshl_b32 {sWO}, {sT}, 16"]
        ops = []
        for q in range(4):
            ops.append([f"s_add_u32 m0, {sLB}, {slot*4096+q*1024}", f"s_add_u32 {sT}, {sWO}, {q*16384}",
                        (f"buffer_load_dwordx4 v{WD}, {SW}, {sT} offen lds", f"W{slot}")])
        for i in range(5):
            va, off = (L16, i * 1024) if i < 4 else (L16B, 0)
            ops.append([(f"buffer_load_dwordx4 {ar(BFR+slot*20+4*i,4)}, v{va}, {SO}, {sOO} offen offset:{off}", None)])
        return pre, ops
    def put(x):
        if isinstance(x, tuple): b(x[0], x[1])
        else: b(x)
    for st in range(PD):
        b(f"s_mov_b32 {sT2}, {st}")
        pre, ops = loads(st, None)
        for s in pre: b(s)
        for op in ops:
            for s in op: put(s)
    b("v_lshrrev_b32 v14, 5, v1\nv_lshlrev_b32 v14, 4, v14")
    b("v_lshrrev_b32 v15, 2, v1\nv_and_b32 v15, 7, v15")
    b("v_add_u32 v14, v14, v15\nv_lshlrev_b32 v14, 7, v14")
    b("v_lshrrev_b32 v15, 1, v15\nv_lshlrev_b32 v15, 5, v15")
    b("v_and_b32 v12, 3, v1\nv_lshlrev_b32 v12, 3, v12\nv_add3_u32 v14, v14, v15, v12")
    for n in range(4): b(f"v_xor_b32 v{WA[n]}, {n*32}, v14\nv_add_u32 v{WA[n]}, {sLB}, v{WA[n]}")
    for i in range(80): b(f"v_mov_b32 v{ACC+i}, 0")
    def a_reads(slot, buf):
        out = []
        for n in range(4):
            for v in range(2):
                out.append(f"ds_read_b64_tr_b16 {vr(AF[buf]+4*n+2*v,2)}, v{WA[n]} offset:{slot*4096+v*1024}")
        return out
    b.wait_tag(vmtag="W0")
    stamp(b, 1)
    for s in a_reads(0, 0): b(s)
    b(f"s_mov_b32 {sCnt}, 0")
    def body():
        for u in range(D):
            buf = u & 1
            nslot = (u + 1) % D
            lslot = (u + PD) % D
            pre, ops = loads(lslot, None)
            rd = a_reads(nslot, buf ^ 1)
            m = 0
            for i in range(5):
                for n in range(4):
                    c = vr(ACC + (i*4+n)*4, 4)
                    b(f"v_mfma_f32_16x16x32_bf16 {c}, {vr(AF[buf]+4*n,4)}, {ar(BFR+u*20+4*i,4)}, {c}")
                    if m == 0:
                        b(f"s_add_u32 {sT2}, {sCnt}, {u + PD}")
                        for s in pre: b(s)
                    if 1 <= m <= 9:
                        for s in ops[m - 1]: put(s)
                    if m == 11:
                        if u % 2 == 0: trace(b)
                        b.wait_tag(vmtag=f"W{nslot}")
                        if u % 2 == 0: trace(b)
                    if 11 <= m < 19: b(rd[m - 11])
                    m += 1
        b(f"s_add_u32 {sCnt}, {sCnt}, {D}\ns_cmp_lt_u32 {sCnt}, 32")
        b("s_cbranch_scc1 L2_loop")
    save = b.L; b.L = []
    body(); t1 = b.L
    b.L = []; body(); t2 = b.L
    assert t1 == t2, "k2 loop not steady"
    b.L = save
    b.raw(".p2align 3")
    b.label("L2_loop")
    b.L += t2
    b.wait(lg=0, vm=0)
    stamp(b, 2)
    PITCH = 272
    assert 80 * PITCH <= D * 4096 or True
    REG = max(D * 4096, 80 * PITCH)
    if REG != D * 4096: b("s_barrier")
    b(f"v_and_b32 v14, 15, v1\nv_mul_u32_u24 v14, {PITCH}, v14\nv_lshrrev_b32 v15, 4, v1\nv_lshlrev_b32 v15, 4, v15\nv_add_u32 v14, v14, v15")
    b(f"s_mul_i32 {sT}, {sW}, {REG}\nv_add_u32 v14, {sT}, v14")
    for i in range(5):
        for n in range(4):
            b(f"ds_write_b128 v14, {vr(ACC+(i*4+n)*4,4)} offset:{i*16*PITCH+n*64}")
    b.wait(lg=0)
    b("s_barrier")
    b(f"v_lshrrev_b32 v14, 3, v1\ns_mul_i32 {sT}, {sW}, 20\nv_add_u32 v14, {sT}, v14")
    b(f"v_and_b32 v15, 7, v1\nv_lshlrev_b32 v12, 11, v14\nv_lshlrev_b32 v13, 4, v15\nv_add_u32 v12, v12, v13")
    b(f"v_mul_u32_u24 v14, {PITCH}, v14\nv_lshlrev_b32 v15, 5, v15\nv_add_u32 v14, v14, v15")
    for s_ in range(1, 4): b(f"v_add_u32 v{8+s_}, {s_*REG}, v14")
    AD = [14, 9, 10, 11]
    for p in range(3):
        for s_ in range(4):
            for hf in range(2):
                b(f"ds_read_b128 {vr(64+p*32+s_*8+hf*4,4)}, v{AD[s_]} offset:{p*8*PITCH+hf*16}")
    for p in range(3):
        base = 64 + p * 32
        for i in range(8): b(f"v_add_f32 v{base+i}, v{base+i}, v{base+8+i}")
        for i in range(8): b(f"v_add_f32 v{base+16+i}, v{base+16+i}, v{base+24+i}")
        for i in range(8): b(f"v_add_f32 v{base+i}, v{base+i}, v{base+16+i}")
        for i in range(4): b(f"v_cvt_pk_bf16_f32 v{16+p*4+i}, v{base+2*i}, v{base+2*i+1}")
        if p == 2: b("s_mov_b32 exec_hi, 0")
        b(f"s_mov_b32 {sT}, {p*16384}")
        b(f"buffer_store_dwordx4 {vr(16+p*4,4)}, v12, {SOUT}, {sT} offen")
    if STAMPS:
        b("s_mov_b64 exec, -1")
        stamp(b, 3)
        b.wait(vm=0)
        stamp(b, 4)
        stamps_out(b, SWS, sW, 1)
        trace_out(b, SWS, sW, 1)
    b.label("L2_end")
    b("s_endpgm")
    return b.L, 4 * REG + 4096

def desc(name, vg, acc):
    return [f".amdhsa_kernel {name}", f"  .amdhsa_next_free_vgpr {vg}", "  .amdhsa_next_free_sgpr 100", f"  .amdhsa_accum_offset {acc}",
            "  .amdhsa_group_segment_fixed_size 0", "  .amdhsa_kernarg_size 64", "  .amdhsa_user_sgpr_count 2",
            "  .amdhsa_user_sgpr_kernarg_segment_ptr 1", "  .amdhsa_system_sgpr_workgroup_id_x 1", ".end_amdhsa_kernel"]

def main():
    k1 = gen_k1()
    k2, lds2 = gen_k2()
    k1, n1 = hazard_pass(k1, verbose=bool(opt("v", 0)))
    k2, n2 = hazard_pass(k2, verbose=bool(opt("v", 0)))
    head = ["; Fused MHA block: launch 1 = Q projection + attention per (batch, head); launch 2 = output projection.",
            "; Generated by a hand-written generator script (dev/gen.py).",
            "; @launch kernel=mha_attn_kernel grid=(256,1,1) block=(256,1,1) lds=163840",
            f"; @launch kernel=mha_oproj_kernel grid=(256,1,1) block=(256,1,1) lds={max(lds2, 90000)}",
            '.amdgcn_target "amdgcn-amd-amdhsa--gfx950"', ".text", ".globl mha_attn_kernel", ".globl mha_oproj_kernel"]
    tail = ['.section .rodata,"a"', ".p2align 6"] + desc("mha_attn_kernel", 432, 256) + [".p2align 6"] + desc("mha_oproj_kernel", 160 + DEPTH2 * 20, 160)
    fmt = lambda l: l if l.endswith(":") or l.startswith((".", ";")) else "    " + l
    open(sys.argv[1], "w").write("\n".join(head + [fmt(l) for l in k1] + [fmt(l) for l in k2] + tail) + "\n")
    print(f"nops inserted: {n1} {n2}; lines {len(k1)} {len(k2)}")
main()
```

```python
import sys, math
from asmlib import B, hazard_pass

P = dict(kv.split("=") for kv in sys.argv[2:])
def opt(k, d): return type(d)(P.get(k, d))
STAMPS = opt("stamps", 0)
KVFL = opt("kvfl", "").replace("+", " ")
OSTFL = opt("ostfl", "").replace("+", " ")
TOUCH = opt("touch", 1)
KEYMASK1 = opt("key1", 0)
KEYMASK2 = opt("key2", 7)
D2 = opt("d2", 5)
DEPTH2 = opt("depth2", 8)
K2MAP = opt("k2map", 0)
FORCE_SLOW = opt("slow", 0)
STAMP_OFF = 200 << 20
NST = 8
TIMER = "s_memtime" if STAMPS == 2 else "s_memrealtime"

def vr(a, n=1, k='v'): return f"{k}{a}" if n == 1 else f"{k}[{a}:{a+n-1}]"
def ar(a, n=1): return vr(a, n, 'a')
def f32bits(x):
    import struct
    return "0x%08x" % struct.unpack("<I", struct.pack("<f", x))[0]

def stamp(b, i):
    if STAMPS:
        b.wait(lg=0)
        b.raw(f"{TIMER} s[{70+2*i}:{71+2*i}]")
        b.raw("s_waitcnt lgkmcnt(0)")

TRACE = opt("trace", 0)
def trace(b):
    if TRACE:
        b.wait(lg=0)
        b.raw("s_memtime s[90:91]")
        b.raw("s_waitcnt lgkmcnt(0)")
        b.raw("s_sub_u32 s90, s90, s92")
        b.raw("s_mov_b32 m0, s94")
        b.raw("v_writelane_b32 v0, s90, m0")
        b.raw("s_add_u32 s94, s94, 1")
def trace_init(b):
    if TRACE:
        b.raw("s_memtime s[92:93]")
        b.raw("s_mov_b32 s94, 0")
def trace_out(b, srd, swave, base):
    if TRACE:
        b(f"s_lshl_b32 s60, s2, 2\ns_add_u32 s60, s60, {swave}\ns_lshl_b32 s60, s60, 9\ns_add_u32 s60, s60, {STAMP_OFF + (1 << 20) + base * 256}")
        b("v_lshlrev_b32 v3, 2, v1")
        b(f"buffer_store_dword v0, v3, {srd}, s60 offen")
        b.wait(vm=0)

def stamps_out(b, srd, swave, base):
    if not STAMPS: return
    b(f"s_cmp_lg_u32 {swave}, 0")
    b("s_cbranch_scc1 L_nost%d" % base)
    b("v_mov_b32 v3, 0")
    b(f"s_mul_i32 s60, s2, {2*NST*8}")
    b(f"s_add_u32 s60, s60, {STAMP_OFF + base*NST*8}")
    for i in range(NST):
        b(f"v_mov_b32 v4, s{70+2*i}\nv_mov_b32 v5, s{71+2*i}")
        b(f"buffer_store_dwordx2 v[4:5], v3, {srd}, s60 offen offset:{8*i}")
        b.wait(vm=0)
    b.label("L_nost%d" % base)

def gen_k1():
    b = B()
    SX, SW, SK, SV, SO, SF = "s[4:7]", "s[8:11]", "s[12:15]", "s[16:19]", "s[20:23]", "s[24:27]"
    sW, sB, sH, sCnt = "s28", "s29", "s30", "s31"
    sRB, sDB, sDelta, sKey = "s32", "s33", "s34", "s35"
    sXO, sWO, sFO, sMX, sMW, sMF, sT = "s36", "s37", "s38", "s39", "s40", "s41", "s42"
    sXB, sWB, sFB, sFS, sFL, sR6, sR5 = "s43", "s44", "s45", "s46", "s47", "s48", "s49"
    sKB, sVB, sDK, sDV, sW8, sDst, sKS, sVS, sPass, sT2, sT3 = "s50", "s51", "s52", "s53", "s54", "s55", "s56", "s57", "s58", "s59", "s61"
    sOB = ["s62", "s63", "s64", "s65"]; sOS = "s66"; sC = "s67"; sNW8 = "s68"
    XA = [2, 3, 4, 5]; WA = 6; XE, XO, WQ, FL, KD, VD, L16 = 7, 8, 9, 10, 11, 12, 13
    AF = [16, 20]; BF = [24, 44]; ACC = 64
    KA = list(range(144, 152)); VA = list(range(152, 156)); LOWN, LSH = 156, 157; OST, OSTS = 158, 159
    OOWN = 160; NMO, NMS = 224, 240
    T = [16, 17, 18, 19]; PB = [24, 32, 40]; SB = [64, 80, 96]
    OSH, QOWN, QSH, KF, VF = 0, 64, 96, 128, 144
    ST0 = 53248; STSZ = 36864; LDS = 163840; QEX = 122880

    b.raw(".p2align 8")
    b.raw(".type mha_attn_kernel,@function")
    b.label("mha_attn_kernel")
    b("s_cmp_ge_u32 s2, 256")
    b("s_cbranch_scc1 L1_end")
    b.track = False
    b("s_load_dwordx4 s[4:7], s[0:1], 0")
    b("s_load_dwordx4 s[8:11], s[0:1], 16")
    b("s_load_dwordx2 s[20:21], s[0:1], 56")
    if STAMPS: b.raw(f"{TIMER} s[70:71]")
    trace_init(b)
    b.track = True
    b("v_and_b32 v1, 63, v0\nv_lshrrev_b32 v14, 6, v0")
    b(f"v_readfirstlane_b32 {sW}, v14")
    b(f"s_and_b32 {sB}, s2, 1\ns_lshl_b32 {sB}, {sB}, 2\ns_lshr_b32 {sT}, s2, 3\ns_and_b32 {sT2}, {sT}, 3\ns_add_u32 {sB}, {sB}, {sT2}")
    b(f"s_lshr_b32 {sH}, s2, 1\ns_and_b32 {sH}, {sH}, 3\ns_lshl_b32 {sH}, {sH}, 3\ns_lshr_b32 {sT3}, {sT}, 2\ns_add_u32 {sH}, {sH}, {sT3}")
    b(f"s_lshl_b32 {sKey}, {sT2}, 2\ns_lshl_b32 {sT}, {sT3}, 1\ns_add_u32 {sKey}, {sKey}, {sT}\ns_lshr_b32 {sT}, {sT3}, 1\ns_xor_b32 {sKey}, {sKey}, {sT}\ns_xor_b32 {sKey}, {sKey}, {sT2}\ns_and_b32 {sKey}, {sKey}, {KEYMASK1}")
    b(f"v_lshlrev_b32 v{L16}, 4, v1")
    b("v_lshrrev_b32 v14, 4, v1")
    b("v_and_b32 v15, 7, v1\nv_xor_b32 v15, v15, v14\nv_lshlrev_b32 v15, 4, v15")
    b(f"v_lshrrev_b32 v{XE}, 3, v1\nv_lshlrev_b32 v{XE}, 11, v{XE}\nv_add_u32 v{XE}, v{XE}, v15\nv_xor_b32 v{XO}, 64, v{XE}")
    b("v_lshlrev_b32 v15, 2, v14\nv_and_b32 v16, 15, v1\nv_xor_b32 v15, v15, v16\nv_lshlrev_b32 v15, 4, v15")
    b(f"v_lshlrev_b32 v{WQ}, 13, v14\nv_add_u32 v{WQ}, v{WQ}, v15")
    b(f"v_lshlrev_b32 v17, 8, v14")
    b(f"v_add_u32 v{VD}, v17, v15")
    b("v_xor_b32 v18, v16, v14\nv_lshlrev_b32 v18, 4, v18\nv_add_u32 v18, v18, v17")
    b.raw("s_waitcnt lgkmcnt(0)")
    b(f"s_lshl_b32 {sT}, {sB}, 5\ns_add_u32 {sT}, {sT}, {sH}\ns_lshl_b32 {sT}, {sT}, 17")
    b(f"s_add_u32 s12, s6, {sT}\ns_addc_u32 s13, s7, 0\ns_mov_b32 s14, 131072\ns_mov_b32 s15, 0x20000")
    b(f"s_add_u32 s16, s8, {sT}\ns_addc_u32 s17, s9, 0\ns_mov_b32 s18, 131072\ns_mov_b32 s19, 0x20000")
    b(f"s_lshl_b32 {sT}, {sH}, 8\ns_add_u32 s8, s10, {sT}\ns_addc_u32 s9, s11, 0\ns_sub_u32 s10, 8388608, {sT}\ns_mov_b32 s11, 0x20000")
    b(f"s_mul_i32 {sT}, {sB}, 327680\ns_add_u32 s4, s4, {sT}\ns_addc_u32 s5, s5, 0\ns_mov_b32 s6, 327680\ns_mov_b32 s7, 0x20000")
    b(f"s_mov_b32 s22, {268435456 if STAMPS else 10485760}\ns_mov_b32 s23, 0x20000")
    b(f"s_lshl_b32 {sW8}, {sW}, 13\ns_sub_u32 {sNW8}, 0, {sW8}")
    b(f"s_mov_b32 {sRB}, {ST0 + 2*STSZ}\ns_mov_b32 {sCnt}, 0\ns_mov_b32 {sPass}, 0")
    b(f"s_mul_i32 {sXB}, {sW}, {6*16384}\ns_mul_i32 {sWB}, {sW}, {5*32768}\ns_mul_i32 {sR6}, {sW}, 6144\ns_mul_i32 {sR5}, {sW}, 5120\ns_add_u32 {sR5}, {sR5}, 20480")
    b(f"s_add_u32 {sT}, {sW}, 18\ns_lshl_b32 {sFL}, {sT}, 10\ns_lshl_b32 {sFB}, {sT}, 14")
    b(f"s_cmp_eq_u32 {sW}, 2")
    b(f"s_cselect_b32 s24, s8, s4\ns_cselect_b32 s25, s9, s5\ns_cselect_b32 s26, s10, s6\ns_mov_b32 s27, 0x20000")
    b(f"s_cselect_b32 {sFL}, {20480+15*1024}, {sFL}\ns_cselect_b32 {sFB}, {15*32768}, {sFB}\ns_cselect_b32 {sFS}, 19, 7")
    b("s_cselect_b64 vcc, -1, 0")
    b(f"s_lshl_b32 {sT}, {sW}, 6\nv_xor_b32 v{FL}, {sT}, v{XE}\nv_cndmask_b32 v{FL}, v{FL}, v{WQ}, vcc")
    b(f"s_cmp_eq_u32 {sW}, 3")
    b("s_cbranch_scc1 L1_w3pro")

    def stage_params(kc_expr_reg):
        return [f"s_xor_b32 {sT}, {kc_expr_reg}, {sKey}",
                f"s_lshl_b32 {sXO}, {sT}, 7", f"s_add_u32 {sXO}, {sXO}, {sXB}",
                f"s_lshl_b32 {sWO}, {sT}, 19", f"s_add_u32 {sWO}, {sWO}, {sWB}",
                f"s_lshl_b32 {sFO}, {sT}, {sFS}", f"s_add_u32 {sFO}, {sFO}, {sFB}",
                f"s_add_u32 {sMX}, {sDB}, {sR6}", f"s_add_u32 {sMW}, {sDB}, {sR5}", f"s_add_u32 {sMF}, {sDB}, {sFL}"]
    def stage_ops():
        ops = []
        xs = [[f"s_add_u32 m0, {sMX}, {q*1024}", f"s_add_u32 {sT}, {sXO}, {q*16384}",
               f"buffer_load_dwordx4 v{XO if q & 1 else XE}, {SX}, {sT} offen lds"] for q in range(6)]
        ws = [[f"s_add_u32 m0, {sMW}, {q*1024}", f"s_add_u32 {sT}, {sWO}, {q*32768}",
               f"buffer_load_dwordx4 v{WQ}, {SW}, {sT} offen lds"] for q in range(5)]
        fl = [f"s_mov_b32 m0, {sMF}", "s_nop 0", f"buffer_load_dwordx4 v{FL}, {SF}, {sFO} offen lds"]
        for q in range(6):
            ops.append(xs[q])
            ops.append(ws[q] if q < 5 else fl)
        return ops
    for st in range(2):
        b(f"s_mov_b32 {sDB}, {ST0 + ((st+2)%3)*STSZ}\ns_mov_b32 {sT2}, {st}")
        for s in stage_params(sT2): b(s)
        for op in stage_ops():
            for s in op: b(s)
    b("s_branch L1_common")
    b.label("L1_w3pro")
    b.vm = []
    if TOUCH:
        b(f"v_lshrrev_b32 v20, 1, v1\nv_lshlrev_b32 v20, 2, v20\nv_add_u32 v20, {sT2}, v20\nv_lshlrev_b32 v20, 13, v20")
        b("v_and_b32 v21, 1, v1\nv_lshlrev_b32 v21, 7, v21\nv_add_u32 v20, v20, v21")
        b(f"s_mul_i32 {sT3}, {sT3}, {20*2048}")
        for i in range(8):
            b(f"s_mov_b32 {sT}, {i*128*8192}")
            b(f"buffer_load_dword a{160+i}, v20, {SW}, {sT} offen")
            if i < 5:
                b(f"v_add_u32 v22, {i*64}, v1\nv_mul_u32_u24 v23, 3277, v22\nv_lshrrev_b32 v23, 16, v23")
                b("v_mul_u32_u24 v24, 20, v23\nv_sub_u32 v22, v22, v24\nv_lshlrev_b32 v22, 11, v22\nv_lshlrev_b32 v23, 7, v23\nv_add_u32 v22, v22, v23")
                b(f"buffer_load_dword a{168+i}, v22, {SX}, {sT3} offen")
    for r in range(1, 4): b(f"v_xor_b32 v{18+8+r}, {r*64}, v18")
    for g in range(8):
        b(f"s_mov_b32 m0, {g*4096}\ns_mov_b32 {sT}, {g*4096}")
        for r in range(4):
            b(f"buffer_load_dwordx4 v{18 if r == 0 else 26+r}, {SK}, {sT} offen offset:{r*1024} {KVFL} lds")
    for g in range(4):
        b(f"s_mov_b32 m0, {32768+g*4096}\ns_mov_b32 {sT}, {g*4096}")
        for r in range(4):
            b(f"buffer_load_dwordx4 v{VD}, {SV}, {sT} offen offset:{r*1024} {KVFL} lds")
    b.vm = []
    b.label("L1_common")
    b.vm = []
    b(f"s_lshl_b32 {sT}, {sW}, 6\nv_xor_b32 v{KD}, {sT}, v18\ns_lshl_b32 {sT}, {sW}, 10\nv_add_u32 v{KD}, {sT}, v{KD}\nv_add_u32 v{VD}, {sT}, v{VD}")
    b("v_and_b32 v50, 31, v1\nv_lshrrev_b32 v51, 5, v1")
    b("v_lshrrev_b32 v52, 1, v50\nv_and_b32 v52, 7, v52\nv_xor_b32 v52, v52, v51\nv_lshlrev_b32 v52, 4, v52")
    b(f"v_lshlrev_b32 v53, 7, v50\nv_add_u32 v52, v52, v53")
    for u in range(4):
        b(f"v_xor_b32 v{XA[u]}, {u*32}, v52\nv_add_u32 v{XA[u]}, {sRB}, v{XA[u]}")
    b("v_lshrrev_b32 v54, 2, v1\nv_and_b32 v54, 3, v54")
    b("v_and_b32 v55, 3, v1")
    b("v_lshrrev_b32 v56, 4, v1\nv_and_b32 v56, 1, v56\nv_lshlrev_b32 v56, 5, v56")
    b(f"v_xor_b32 v57, {sW}, v54\nv_lshlrev_b32 v57, 6, v57\nv_add_u32 v57, v57, v56")
    b("v_lshlrev_b32 v58, 1, v55\nv_lshrrev_b32 v59, 1, v55\nv_or_b32 v58, v58, v59\nv_and_b32 v58, 3, v58\nv_lshlrev_b32 v58, 3, v58")
    b("v_lshlrev_b32 v59, 3, v51\nv_add_u32 v59, v59, v54\nv_lshlrev_b32 v59, 8, v59")
    b(f"v_add3_u32 v{WA}, v57, v58, v59\ns_add_u32 {sT}, {sRB}, 20480\nv_add_u32 v{WA}, {sT}, v{WA}")
    b(f"v_lshrrev_b32 v60, 5, v56\ns_lshl_b32 {sT}, {sW}, 1\nv_add_u32 v61, {sT}, v60")
    b(f"v_lshlrev_b32 v61, 10, v61\nv_mov_b32 v62, {655360-5120}\nv_cmp_le_u32 vcc, 5120, v61\nv_cndmask_b32 v62, 0, v62, vcc\nv_add_u32 v61, v61, v62")
    b("v_and_b32 v62, 15, v1\nv_lshlrev_b32 v62, 4, v62\nv_lshlrev_b32 v63, 8, v51\nv_add_u32 v62, v62, v63")
    b(f"v_add_u32 v{OST}, v61, v62")
    b(f"v_lshlrev_b32 v60, 10, v60\nv_add_u32 v60, {655360+3*1024}, v60\nv_add_u32 v{OSTS}, v60, v62")
    b(f"s_mul_i32 {sT}, {sB}, 1310720\ns_mul_i32 {sT2}, {sH}, 20480\ns_add_u32 {sT}, {sT}, {sT2}")
    for j in range(4):
        b(f"s_xor_b32 {sT2}, {sW}, {j}\ns_mul_i32 {sT2}, {sT2}, 5120\ns_add_u32 {sOB[j]}, {sT}, {sT2}")
    b(f"s_mov_b32 {sC}, {f32bits(math.log2(math.e) / math.sqrt(128.0))}")

    def p2_addr_init():
        b("v_and_b32 v50, 31, v1\nv_lshrrev_b32 v51, 5, v1")
        b("v_and_b32 v52, 15, v50\nv_xor_b32 v52, v52, v51\nv_lshlrev_b32 v52, 4, v52\nv_lshlrev_b32 v53, 8, v50\nv_add_u32 v52, v52, v53")
        for t in range(8):
            b(f"v_xor_b32 v{KA[t]}, {t*32}, v52\nv_add_u32 v{KA[t]}, {sW8}, v{KA[t]}")
        b("v_lshrrev_b32 v54, 2, v1\nv_and_b32 v54, 3, v54\nv_and_b32 v55, 3, v1")
        b("v_lshrrev_b32 v56, 4, v1\nv_and_b32 v56, 1, v56\nv_lshlrev_b32 v56, 5, v56")
        b(f"v_xor_b32 v57, {sW}, v54\nv_lshlrev_b32 v57, 6, v57\nv_add_u32 v57, v57, v56")
        b("v_lshlrev_b32 v58, 2, v51\nv_add_u32 v58, v58, v54\nv_lshlrev_b32 v58, 8, v58\nv_lshlrev_b32 v59, 3, v55\nv_add3_u32 v57, v57, v58, v59")
        b(f"s_add_u32 {sT}, {sW8}, 32768")
        for j in range(4):
            b(f"v_xor_b32 v{VA[j]}, {j*64}, v57\nv_add_u32 v{VA[j]}, {sT}, v{VA[j]}")
        b(f"s_mov_b32 {sKB}, 0\ns_mov_b32 {sVB}, 32768\ns_mov_b32 {sDst}, 131072\ns_mov_b32 {sKS}, 65536\ns_mov_b32 {sVS}, 65536")
        for i in range(64): b(f"v_mov_b32 v{OOWN+i}, 0")
        for i in range(64): b(f"v_accvgpr_write_b32 a{OSH+i}, 0")
        b(f"v_mov_b32 v{LOWN}, 0\nv_mov_b32 v{LSH}, 0")
    p2_addr_init()
    for i in range(32): b(f"v_mov_b32 v{NMO+i}, 0")
    for i in range(80): b(f"v_mov_b32 v{ACC+i}, 0")
    b(f"s_mov_b32 {sDB}, {ST0 + 1*STSZ}")
    b(f"s_cmp_eq_u32 {sW}, 3")
    b("s_cbranch_scc1 L1_w3z")
    for i in range(4): b(f"v_mov_b32 v{AF[1]+i}, 0")
    for i in range(20): b(f"v_mov_b32 v{BF[1]+i}, 0")
    b.raw("s_waitcnt vmcnt(12)")
    stamp(b, 7)

    def p1_step(dmas, pre=(), upd=True):
        trace(b)
        b("s_barrier")
        trace(b)
        nd = len(dmas); di = 0
        pre = list(pre)
        for g in range(4):
            rb = g & 1; mb = rb ^ 1
            rd = [f"ds_read_b64_tr_b16 {vr(AF[rb],2)}, v{WA} offset:{g*4096}",
                  f"ds_read_b64_tr_b16 {vr(AF[rb]+2,2)}, v{WA} offset:{g*4096+1024}"] + \
                 [f"ds_read_b128 {vr(BF[rb]+4*q,4)}, v{XA[g]} offset:{q*4096}" for q in range(5)]
            sched = [rd[0:2], rd[2:4], rd[4:6], rd[6:7], []]
            for q in range(5):
                b(f"v_mfma_f32_32x32x16_bf16 {vr(ACC+16*q,16)}, {vr(AF[mb],4)}, {vr(BF[mb]+4*q,4)}, {vr(ACC+16*q,16)}")
                for s in sched[q]: b(s)
                if g == 0 and q < 2:
                    h = (len(pre) + 1) // 2
                    for s in (pre[:h] if q == 0 else pre[h:]): b(s)
                if q >= 2:
                    tgt = min(nd, ((g * 3 + (q - 1)) * nd + 11) // 12)
                    while di < tgt:
                        for s in dmas[di]: b(s)
                        di += 1
                if upd and q == 4:
                    b(f"v_add_u32 v{XA[g]}, {sDelta}, v{XA[g]}")
                    if g == 3: b(f"v_add_u32 v{WA}, {sDelta}, v{WA}")
        assert di == nd
    ring = [f"s_add_u32 {sT2}, {sRB}, {STSZ}", f"s_cmp_ge_u32 {sT2}, {LDS}", f"s_cselect_b32 {sT2}, {ST0}, {sT2}",
            f"s_sub_u32 {sDelta}, {sT2}, {sRB}"]
    ring_end = [f"s_mov_b32 {sDB}, {sRB}", f"s_add_u32 {sRB}, {sRB}, {sDelta}"]
    b.raw(".p2align 3")
    b.label("L1_p1a")
    p1_step(stage_ops(), pre=ring + [f"s_add_u32 {sT2}, {sCnt}, 2"] + stage_params(sT2))
    for s in ring_end: b(s)
    b(f"s_add_u32 {sCnt}, {sCnt}, 1\ns_cmp_lt_u32 {sCnt}, 14")
    b.wait(lg=0, vm=12)
    b("s_cbranch_scc1 L1_p1a")
    b("s_branch L1_p1tail")
    b.label("L1_w3z")
    b.vm = []
    b.raw("s_waitcnt vmcnt(59)")
    b(f"s_mov_b32 m0, {32768+4*4096}\ns_mov_b32 {sT}, {4*4096-3072}")
    for r in range(4):
        b(f"buffer_load_dwordx4 v{VD}, {SV}, {sT} offen offset:{r*1024} {KVFL} lds")
    b.vm = []
    for i in range(4): b(f"v_mov_b32 v{AF[1]+i}, 0")
    for i in range(20): b(f"v_mov_b32 v{BF[1]+i}, 0")
    b.raw(".p2align 3")
    b.label("L1_p1b")
    p1_step([], pre=ring)
    for s in ring_end: b(s)
    b(f"s_add_u32 {sCnt}, {sCnt}, 1\ns_cmp_lt_u32 {sCnt}, 14")
    b.wait(lg=0)
    b("s_cbranch_scc1 L1_p1b")
    b.label("L1_p1tail")
    b.vm = []
    stamp(b, 1)
    def kv_op(kind, lds, off):
        srd, v = (SK, KD) if kind == 'k' else (SV, VD)
        return [f"s_lshl_b32 {sT}, {sW}, 10", f"s_add_u32 m0, {sT}, {lds}", f"s_mov_b32 {sT}, {off}",
                f"buffer_load_dwordx4 v{v}, {srd}, {sT} offen {KVFL} lds"]
    d14 = [kv_op('v', 32768 + q*4096, q*4096) for q in range(5, 8)] + [kv_op('k', 65536 + q*4096, 32768 + q*4096) for q in range(6)]
    d15 = [kv_op('k', 65536 + q*4096, 32768 + q*4096) for q in range(6, 8)] + [kv_op('v', 98304 + q*4096, 32768 + q*4096) for q in range(6)]
    p1_step(d14, pre=ring)
    for s in ring_end: b(s)
    b.wait(lg=0, vm=9)
    p1_step(d15, upd=False)
    b.wait(lg=0)
    b("s_barrier")
    for q in range(5):
        b(f"v_mfma_f32_32x32x16_bf16 {vr(ACC+16*q,16)}, {vr(AF[1],4)}, {vr(BF[1]+4*q,4)}, {vr(ACC+16*q,16)}")
    b(f"s_lshl_b32 {sT}, {sW}, 11\ns_add_u32 {sT}, {sT}, {QEX}\nv_add_u32 v14, {sT}, v{L16}")
    b(f"s_add_u32 {sT}, {sW8}, {QEX}\nv_add_u32 v15, {sT}, v{L16}\nv_add_u32 v{WA}, {QEX+32768}, v{L16}")
    for q in range(5):
        for i in range(16): b(f"v_mul_f32 v{ACC+16*q+i}, {sC}, v{ACC+16*q+i}")
        for i in range(8): b(f"v_cvt_pk_bf16_f32 v{24+8*q+i}, v{ACC+16*q+2*i}, v{ACC+16*q+2*i+1}")
        for a in range(2): b(f"ds_write_b128 v14, {vr(24+8*q+4*a,4)} offset:{q*8192+a*1024}")
    b.wait(lg=0, vm=17)
    b("s_barrier")
    stamp(b, 2)
    for f in range(8): b(f"ds_read_b128 {ar(QSH+4*f,4)}, v{WA} offset:{f*1024}")
    for f in range(8): b(f"ds_read_b128 {ar(QOWN+4*f,4)}, v15 offset:{f*1024}")
    b.wait(lg=0)

    def typ(n): return n % 5 == 0
    def col(n): return (0, 1, 0, 1, 2)[n % 5]
    def k_read(n, t):
        off = 0 if typ(n) else (n % 5 - 1) * 8192
        out = [(f"ds_read_b128 {ar(KF+4*(t%4),4)}, v{KA[t]} offset:{off}", 'K')]
        if typ(n): out.append((f"v_add_u32 v{KA[t]}, {sNW8}, v{KA[t]}", None))
        if n % 5 == 4: out.append((f"v_add_u32 v{KA[t]}, {sDK}, v{KA[t]}", None))
        return out
    def v_read(n, i):
        ks, j = i // 4, i % 4
        off = (0 if typ(n) else (n % 5 - 1) * 8192) + ks * 4096
        out = [(f"ds_read_b64_tr_b16 {ar(VF+4*j,2)}, v{VA[j]} offset:{off}", 'V'),
               (f"ds_read_b64_tr_b16 {ar(VF+4*j+2,2)}, v{VA[j]} offset:{off+2048}", 'V')]
        if ks == 1 and typ(n): out.append((f"v_add_u32 v{VA[j]}, {sNW8}, v{VA[j]}", None))
        if ks == 1 and n % 5 == 4: out.append((f"v_add_u32 v{VA[j]}, {sDV}, v{VA[j]}", None))
        return out
    def s_mfma(n, t):
        q = QSH if typ(n) else QOWN
        c = (NMS if typ(n) else NMO) if t == 0 else SB[col(n)]
        return f"v_mfma_f32_32x32x16_bf16 {vr(SB[col(n)],16)}, {ar(KF+4*(t%4),4)}, {ar(q+4*t,4)}, {vr(c,16)}"
    def p_mfma(n, i):
        ks, j = i // 4, i % 4
        o = ar(OSH + 16*j, 16) if typ(n) else vr(OOWN + 16*j, 16)
        return f"v_mfma_f32_32x32x16_bf16 {o}, {ar(VF+4*j,4)}, {vr(PB[col(n)]+4*ks,4)}, {o}"
    def v_exp(n, e): return f"v_exp_f32 v{T[e%4]}, v{SB[col(n)]+e}"
    def v_sum(n, e):
        l = LSH if typ(n) else LOWN
        return f"v_add_f32 v{l}, v{l}, v{T[e%4]}"
    def v_cvt(n, c): return f"v_cvt_pk_bf16_f32 v{PB[col(n)]+c}, v{T[(2*c)%4]}, v{T[(2*c+1)%4]}"
    def nxt(base, delta):
        return [f"s_add_u32 {sT2}, {base}, 65536", f"s_sub_u32 {sT3}, {sT2}, {LDS}", f"s_cmp_ge_u32 {sT2}, {LDS}",
                f"s_cselect_b32 {sT2}, {sT3}, {sT2}", f"s_sub_u32 {delta}, {sT2}, {base}", f"s_add_u32 {delta}, {delta}, {sW8}",
                f"s_mov_b32 {base}, {sT2}"]
    def grp_dma(kind, q):
        srd, v, so = (SK, KD, sKS) if kind == 'k' else (SV, VD, sVS)
        out = [f"s_add_u32 m0, {sOS}, {q*4096}", f"s_add_u32 {sT}, {so}, {q*4096}",
               f"buffer_load_dwordx4 v{v}, {srd}, {sT} offen {KVFL} lds"]
        if q == 0: out = [f"s_lshl_b32 {sOS}, {sW}, 10", f"s_add_u32 {sOS}, {sOS}, {sDst}"] + out
        if q == 7:
            out += [f"s_add_u32 {so}, {so}, 32768", f"s_add_u32 {sDst}, {sDst}, 32768", f"s_cmp_ge_u32 {sDst}, {LDS}",
                    f"s_cselect_b32 {sDst}, 0, {sDst}"]
        return out

    def mf_at(G):
        n, i = divmod(G, 16)
        return ('S', n + 1, i // 2) if i % 2 == 0 else ('P', n - 1, i // 2)
    def valid(kind, n): return 0 <= n <= 19
    def emit_gap(G, tail=False, extra=()):
        kind, n, i = mf_at(G)
        if valid(kind, n): b(s_mfma(n, i) if kind == 'S' else p_mfma(n, i))
        sn, pos = divmod(G, 16)
        pn, ppos = divmod(G - 1, 16)
        if valid('V', pn):
            b(v_sum(pn, ppos))
            if ppos % 2 == 1: b(v_cvt(pn, ppos // 2))
        rk, rn, ri = mf_at(G + D2)
        if valid(rk, rn):
            if ri == 0 and rn % 5 == 0 and not tail:
                b.wait_tag(lgtag='K' if rk == 'S' else 'V')
                trace(b)
                b.wait(vm=16)
                b("s_barrier")
                trace(b)
            for s, tg in (k_read(rn, ri) if rk == 'S' else v_read(rn, ri)): b(s, tg)
        if valid('V', sn): b(v_exp(sn, pos))
        for s in extra: b(s)

    b.label("L1_p2entry")
    for t in range(4):
        for s, tg in k_read(0, t): b(s, tg)
    for n in (0, 1):
        for t in range(8):
            b(s_mfma(n, t))
            t2 = t + 4
            n2 = n + t2 // 8
            if n2 <= 1:
                for s, tg in k_read(n2, t2 % 8): b(s, tg)
    b.wait(lg=0, vm=14)
    b("s_barrier")
    for q in (6, 7):
        for s in kv_op('v', 98304 + q*4096, 32768 + q*4096): b(s)
    b(f"s_cmp_lg_u32 {sPass}, 0")
    b("s_cbranch_scc1 L1_nomax")
    for n, NM in ((0, NMS), (1, NMO)):
        S = SB[col(n)]
        b(f"v_max3_f32 v14, v{S}, v{S+1}, v{S+2}")
        for i in range(3, 15, 2): b(f"v_max3_f32 v14, v14, v{S+i}, v{S+i+1}")
        b(f"v_max_f32 v14, v14, v{S+15}\nv_mov_b32 v15, v14")
        b("v_permlane32_swap_b32 v14, v15")
        b("v_max_f32 v14, v14, v15")
        for i in range(16): b(f"v_sub_f32 v{NM+i}, 0, v14")
        for i in range(16): b(f"v_sub_f32 v{S+i}, v{S+i}, v14")
    b.label("L1_nomax")
    for e in range(16):
        if e >= 1:
            b(v_sum(0, e - 1))
            if (e - 1) % 2 == 1: b(v_cvt(0, (e - 1) // 2))
        if e + D2 >= 16:
            rk, rn, ri = mf_at(e + D2)
            for s, tg in (k_read(rn, ri) if rk == 'S' else v_read(rn, ri)): b(s, tg)
        b(v_exp(0, e))
    b(f"s_mov_b32 {sCnt}, 0")
    stamp(b, 3)
    if STAMPS: pass
    EXITG = 16 * 4 - D2
    def extras(G):
        ex = []
        r = G - 16
        if r == 0: ex += nxt(sKB, sDK) + nxt(sVB, sDV)
        if 1 <= r < 33 and (r - 1) % 4 == 0: ex += grp_dma('k', (r - 1) // 4)
        x0 = EXITG - 16 + 1
        if x0 <= r < x0 + 24 and (r - x0) % 3 == 0: ex += grp_dma('v', (r - x0) // 3)
        return ex
    def body():
        for G in range(16, 96):
            if G == EXITG:
                b(f"s_cmp_eq_u32 {sCnt}, 3")
                b("s_cbranch_scc1 L1_tail")
                body.exit_state = b.state()
            emit_gap(G, extra=extras(G))
        b(f"s_add_u32 {sCnt}, {sCnt}, 1")
        b("s_branch L1_p2")
    st0 = b.state()
    if STAMPS:
        pass
    save = b.L; b.L = []
    body(); st1 = b.state(); t1 = b.L
    b.L = []; body(); st2 = b.state(); t2 = b.L
    assert st1[0] == st2[0]
    if not STAMPS: assert t1 == t2, "loop not steady"
    b.L = save
    b.raw(".p2align 3")
    b.label("L1_p2")
    b.L += t2
    b.label("L1_tail")
    b.set_state(body.exit_state)
    b.wait_tag(lgtag='K')
    b.wait(vm=0)
    b("s_barrier")
    stamp(b, 4)
    EXO = 0; EXM = 98304
    ex = []
    for j in (1, 2, 3):
        ex.append([f"s_xor_b32 {sT}, {sW}, {j}", f"s_lshl_b32 {sT}, {sT}, 2", f"s_add_u32 {sT}, {sT}, {sW}", f"s_lshl_b32 {sT}, {sT}, 12",
                   f"v_add_u32 v{KA[j]}, {sT}, v{L16}"])
        for qd in range(4): ex.append([f"ds_write_b128 v{KA[j]}, {ar(OSH+16*j+4*qd,4)} offset:{EXO+qd*1024}"])
    ex.append([f"v_mov_b32 v21, v{LSH}", "s_nop 1", f"v_permlane32_swap_b32 v21, v{LSH}", f"v_add_f32 v21, v21, v{LSH}", f"v_mov_b32 v20, v{NMS}",
               f"v_lshrrev_b32 v{KA[0]}, 1, v{L16}", f"s_lshl_b32 {sT}, {sW}, 9", f"s_add_u32 {sT}, {sT}, {EXM}", f"v_add_u32 v{KA[4]}, {sT}, v{KA[0]}",
               f"ds_write_b64 v{KA[4]}, v[20:21]"])
    G0 = EXITG + 240
    gaps = list(range(G0, 16 * 21))
    for G in gaps:
        e = []
        if G >= 16 * 19 + 8 and ex: e = ex.pop(0)
        emit_gap(G, tail=True, extra=e)
    assert not ex
    b(f"v_mov_b32 v22, v{LOWN}")
    b(f"v_permlane32_swap_b32 v22, v{LOWN}")
    b(f"v_add_f32 v22, v22, v{LOWN}")
    b(f"v_max_f32 v23, v22, v21\nv_add_f32 v14, v22, v21")
    thr = f32bits(2.0 ** 24) if not FORCE_SLOW else f32bits(0.0)
    b(f"v_cmp_nge_f32 vcc, {thr}, v14")
    b(f"s_cmp_lg_u64 vcc, 0\ns_cselect_b32 {sT}, 1, 0\nv_mov_b32 v14, {sT}")
    b(f"s_lshl_b32 {sT}, {sW}, 2\ns_add_u32 {sT}, {sT}, {EXM+4096}\nv_mov_b32 v15, {sT}")
    b("ds_write_b32 v15, v14")
    b("v_rcp_f32 v22, v22")
    b.wait(lg=0)
    b("s_barrier")
    b(f"v_mov_b32 v15, {EXM+4096}")
    b("ds_read_b128 v[64:67], v15")
    b(f"v_add_u32 v{KA[4]}, {EXM}, v{KA[0]}")
    for s_ in range(4): b(f"ds_read_b64 {vr(68+2*s_,2)}, v{KA[4]} offset:{s_*512}")
    for j in (1, 2, 3):
        b(f"s_xor_b32 {sT}, {sW}, {j}\ns_lshl_b32 {sT2}, {sW}, 2\ns_add_u32 {sT}, {sT}, {sT2}\ns_lshl_b32 {sT}, {sT}, 12\nv_add_u32 v{KA[j]}, {sT}, v{L16}")
        for qd in range(4): b(f"ds_read_b128 {vr(80+16*(j-1)+4*qd,4)}, v{KA[j]} offset:{EXO+qd*1024}")
    for j in range(4):
        for i in range(16): b(f"v_mul_f32 v{OOWN+16*j+i}, v22, v{OOWN+16*j+i}")
        for i in range(8): b(f"v_cvt_pk_bf16_f32 v{24+8*j+i}, v{OOWN+16*j+2*i}, v{OOWN+16*j+2*i+1}")
        for a in range(2): b(f"buffer_store_dwordx4 {vr(24+8*j+4*a,4)}, v{OST}, {SO}, {sOB[j]} offen offset:{a*512} {OSTFL}")
    b("v_or_b32 v64, v64, v65\nv_or3_b32 v64, v64, v66, v67")
    b(f"v_readfirstlane_b32 {sT}, v64")
    b(f"s_andn2_b32 {sT}, {sT}, {sPass}\ns_cmp_lg_u32 {sT}, 0")
    b("s_cbranch_scc1 L1_slow")
    b("v_min_f32 v14, v68, v70\nv_min3_f32 v14, v14, v72, v74")
    for s_ in range(4): b(f"v_sub_f32 v{68+2*s_}, v14, v{68+2*s_}")
    for s_ in range(4): b(f"v_exp_f32 v{68+2*s_}, v{68+2*s_}")
    b("v_mul_f32 v15, v68, v69\nv_fmac_f32 v15, v70, v71\nv_fmac_f32 v15, v72, v73\nv_fmac_f32 v15, v74, v75")
    b("v_rcp_f32 v15, v15")
    for j in range(4):
        b(f"s_xor_b32 {sT}, {sW}, {j}")
        b(f"s_cmp_eq_u32 {sT}, 1\ns_cselect_b64 vcc, -1, 0\nv_cndmask_b32 v{76+j}, v68, v70, vcc")
        b(f"s_cmp_eq_u32 {sT}, 2\ns_cselect_b64 vcc, -1, 0\nv_cndmask_b32 v{76+j}, v{76+j}, v72, vcc")
        b(f"s_cmp_eq_u32 {sT}, 3\ns_cselect_b64 vcc, -1, 0\nv_cndmask_b32 v{76+j}, v{76+j}, v74, vcc")
        b(f"v_mul_f32 v{76+j}, v{76+j}, v15")
    for i in range(16): b(f"v_accvgpr_read_b32 v{128+i}, a{OSH+i}")
    for i in range(16): b(f"v_mul_f32 v{128+i}, v76, v{128+i}")
    for j in (1, 2, 3):
        for i in range(16): b(f"v_fmac_f32 v{128+i}, v{76+j}, v{80+16*(j-1)+i}")
    for i in range(8): b(f"v_cvt_pk_bf16_f32 v{56+i}, v{128+2*i}, v{128+2*i+1}")
    for a in range(2): b(f"buffer_store_dwordx4 {vr(56+4*a,4)}, v{OSTS}, {SO}, {sOB[0]} offen offset:{a*512} {OSTFL}")
    if STAMPS:
        stamp(b, 5)
        b.wait(vm=0)
        stamp(b, 6)
        stamps_out(b, SO, sW, 0)
        trace_out(b, SO, sW, 0)
    b.label("L1_end")
    b("s_endpgm")

    b.label("L1_slow")
    b.wait(lg=0, vm=0)
    b("s_barrier")
    b(f"s_mov_b32 {sPass}, 1")
    for q in range(8):
        for s in kv_op('k', q*4096, q*4096): b(s)
    for q in range(8):
        for s in kv_op('v', 32768 + q*4096, q*4096): b(s)
    for q in range(8):
        for s in kv_op('k', 65536 + q*4096, 32768 + q*4096): b(s)
    for q in range(6):
        for s in kv_op('v', 98304 + q*4096, 32768 + q*4096): b(s)
    b("v_and_b32 v14, 31, v1\nv_lshlrev_b32 v14, 8, v14\nv_lshrrev_b32 v15, 5, v1\nv_lshlrev_b32 v15, 4, v15\nv_add_u32 v14, v14, v15")
    b(f"v_mov_b32 v20, 0xff800000\nv_mov_b32 v21, 0xff800000\ns_mov_b32 {sCnt}, 0")
    b.label("L1_slowloop")
    for t in range(8): b(f"buffer_load_dwordx4 {vr(24+4*t,4)}, v14, {SK}, {sCnt} offen offset:{t*32}")
    b.wait(vm=0)
    for S, Q in ((64, QOWN), (80, QSH)):
        for t in range(8):
            b(f"v_mfma_f32_32x32x16_bf16 {vr(S,16)}, {vr(24+4*t,4)}, {ar(Q+4*t,4)}, {'0' if t == 0 else vr(S,16)}")
    for S, M in ((64, 20), (80, 21)):
        for i in range(0, 16, 2): b(f"v_max3_f32 v{M}, v{M}, v{S+i}, v{S+i+1}")
    b(f"s_add_u32 {sCnt}, {sCnt}, 8192\ns_cmp_lt_u32 {sCnt}, 131072")
    b("s_cbranch_scc1 L1_slowloop")
    for M, NM in ((20, NMO), (21, NMS)):
        b(f"v_mov_b32 v15, v{M}")
        b(f"v_permlane32_swap_b32 v{M}, v15")
        b(f"v_max_f32 v{M}, v{M}, v15")
        for i in range(16): b(f"v_sub_f32 v{NM+i}, 0, v{M}")
    p2_addr_init()
    b.wait(vm=0)
    b("s_barrier")
    b("s_branch L1_p2entry")
    return b.L

def gen_k2():
    b = B()
    SO, SW, SOUT, SWS = "s[4:7]", "s[8:11]", "s[12:15]", "s[16:19]"
    sW, sMT, sNT, sCnt, sKey, sT, sT2, sLB, sOO, sWO, sK = "s28", "s29", "s30", "s31", "s32", "s33", "s34", "s35", "s36", "s37", "s38"
    D = DEPTH2
    PD = min(D - 1, opt('pd', 6))
    L16, L16B, WD = 2, 3, 4
    WA = [8, 9, 10, 11]
    AF = [16, 32]; ACC = 64
    BFR = 0
    b.raw(".p2align 8")
    b.raw(".type mha_oproj_kernel,@function")
    b.label("mha_oproj_kernel")
    b("s_cmp_ge_u32 s2, 256")
    b("s_cbranch_scc1 L2_end")
    b.track = False
    b("s_load_dwordx4 s[8:11], s[0:1], 32")
    b("s_load_dwordx2 s[4:5], s[0:1], 56")
    if STAMPS: b.raw(f"{TIMER} s[70:71]")
    trace_init(b)
    b.track = True
    b("v_and_b32 v1, 63, v0\nv_lshrrev_b32 v14, 6, v0")
    b(f"v_readfirstlane_b32 {sW}, v14")
    if K2MAP == 0:
        b(f"s_and_b32 {sMT}, s2, 1\ns_lshl_b32 {sMT}, {sMT}, 3\ns_lshr_b32 {sT}, s2, 3\ns_and_b32 {sT2}, {sT}, 7\ns_add_u32 {sMT}, {sMT}, {sT2}")
        b(f"s_lshr_b32 {sNT}, s2, 1\ns_and_b32 {sNT}, {sNT}, 3\ns_lshl_b32 {sNT}, {sNT}, 2\ns_lshr_b32 {sT}, {sT}, 3\ns_add_u32 {sNT}, {sNT}, {sT}")
        b(f"s_lshl_b32 {sT}, {sT}, 1\ns_xor_b32 {sKey}, {sT}, {sT2}\ns_and_b32 {sKey}, {sKey}, {KEYMASK2}")
    else:
        b(f"s_and_b32 {sMT}, s2, 1\ns_lshl_b32 {sMT}, {sMT}, 3\ns_and_b32 {sT}, s2, 2\ns_lshl_b32 {sT}, {sT}, 1\ns_add_u32 {sMT}, {sMT}, {sT}")
        b(f"s_lshr_b32 {sT}, s2, 3\ns_and_b32 {sT2}, {sT}, 3\ns_add_u32 {sMT}, {sMT}, {sT2}")
        b(f"s_and_b32 {sNT}, s2, 4\ns_lshl_b32 {sNT}, {sNT}, 1\ns_lshr_b32 {sT}, {sT}, 2\ns_add_u32 {sNT}, {sNT}, {sT}")
        b(f"s_lshl_b32 {sT2}, {sT2}, 1\ns_xor_b32 {sKey}, {sT}, {sT2}\ns_and_b32 {sKey}, {sKey}, {KEYMASK2}")
    b(f"v_lshlrev_b32 v{L16}, 4, v1\nv_add_u32 v{L16B}, 4096, v{L16}")
    b("v_lshrrev_b32 v14, 4, v1\nv_lshlrev_b32 v14, 1, v14\nv_and_b32 v15, 7, v1\nv_xor_b32 v14, v14, v15\nv_lshlrev_b32 v14, 4, v14")
    b(f"v_lshrrev_b32 v15, 3, v1\nv_lshlrev_b32 v15, 11, v15\nv_add_u32 v{WD}, v14, v15")
    b(f"s_mul_i32 {sLB}, {sW}, {D*4096}")
    b.raw("s_waitcnt lgkmcnt(0)")
    if STAMPS: b("s_mov_b32 s16, s4\ns_mov_b32 s17, s5\ns_mov_b32 s18, 268435456\ns_mov_b32 s19, 0x20000")
    b(f"s_mul_i32 {sT}, {sMT}, 655360\ns_add_u32 s4, s4, {sT}\ns_addc_u32 s5, s5, 0\ns_mov_b32 s6, 655360\ns_mov_b32 s7, 0x20000")
    b(f"s_mul_i32 {sT}, {sMT}, 163840\ns_lshl_b32 {sT2}, {sNT}, 7\ns_add_u32 {sT}, {sT}, {sT2}")
    b(f"s_add_u32 s12, s10, {sT}\ns_addc_u32 s13, s11, 0\ns_sub_u32 s14, 2621440, {sT}\ns_mov_b32 s15, 0x20000")
    b(f"s_add_u32 s8, s8, {sT2}\ns_addc_u32 s9, s9, 0\ns_sub_u32 s10, 8388608, {sT2}\ns_mov_b32 s11, 0x20000")
    b(f"s_lshl_b32 {sK}, {sW}, 5")
    def loads(slot, stepreg_or_imm):
        pre = [f"s_xor_b32 {sT}, {sT2}, {sKey}", f"s_add_u32 {sT}, {sT}, {sK}", f"s_cmp_ge_u32 {sT2}, 32",
               f"s_cselect_b32 {sT}, 0x1000, {sT}", f"s_mul_i32 {sOO}, {sT}, 5120", f"s_lshl_b32 {sWO}, {sT}, 16"]
        ops = []
        for q in range(4):
            ops.append([f"s_add_u32 m0, {sLB}, {slot*4096+q*1024}", f"s_add_u32 {sT}, {sWO}, {q*16384}",
                        (f"buffer_load_dwordx4 v{WD}, {SW}, {sT} offen lds", f"W{slot}")])
        for i in range(5):
            va, off = (L16, i * 1024) if i < 4 else (L16B, 0)
            ops.append([(f"buffer_load_dwordx4 {ar(BFR+slot*20+4*i,4)}, v{va}, {SO}, {sOO} offen offset:{off}", None)])
        return pre, ops
    def put(x):
        if isinstance(x, tuple): b(x[0], x[1])
        else: b(x)
    for st in range(PD):
        b(f"s_mov_b32 {sT2}, {st}")
        pre, ops = loads(st, None)
        for s in pre: b(s)
        for op in ops:
            for s in op: put(s)
    b("v_lshrrev_b32 v14, 5, v1\nv_lshlrev_b32 v14, 4, v14")
    b("v_lshrrev_b32 v15, 2, v1\nv_and_b32 v15, 7, v15")
    b("v_add_u32 v14, v14, v15\nv_lshlrev_b32 v14, 7, v14")
    b("v_lshrrev_b32 v15, 1, v15\nv_lshlrev_b32 v15, 5, v15")
    b("v_and_b32 v12, 3, v1\nv_lshlrev_b32 v12, 3, v12\nv_add3_u32 v14, v14, v15, v12")
    for n in range(4): b(f"v_xor_b32 v{WA[n]}, {n*32}, v14\nv_add_u32 v{WA[n]}, {sLB}, v{WA[n]}")
    for i in range(80): b(f"v_mov_b32 v{ACC+i}, 0")
    def a_reads(slot, buf):
        out = []
        for n in range(4):
            for v in range(2):
                out.append(f"ds_read_b64_tr_b16 {vr(AF[buf]+4*n+2*v,2)}, v{WA[n]} offset:{slot*4096+v*1024}")
        return out
    b.wait_tag(vmtag="W0")
    stamp(b, 1)
    for s in a_reads(0, 0): b(s)
    b(f"s_mov_b32 {sCnt}, 0")
    def body():
        for u in range(D):
            buf = u & 1
            nslot = (u + 1) % D
            lslot = (u + PD) % D
            pre, ops = loads(lslot, None)
            rd = a_reads(nslot, buf ^ 1)
            m = 0
            for i in range(5):
                for n in range(4):
                    c = vr(ACC + (i*4+n)*4, 4)
                    b(f"v_mfma_f32_16x16x32_bf16 {c}, {vr(AF[buf]+4*n,4)}, {ar(BFR+u*20+4*i,4)}, {c}")
                    if m == 0:
                        b(f"s_add_u32 {sT2}, {sCnt}, {u + PD}")
                        for s in pre: b(s)
                    if 1 <= m <= 9:
                        for s in ops[m - 1]: put(s)
                    if m == 11:
                        if u % 2 == 0: trace(b)
                        b.wait_tag(vmtag=f"W{nslot}")
                        if u % 2 == 0: trace(b)
                    if 11 <= m < 19: b(rd[m - 11])
                    m += 1
        b(f"s_add_u32 {sCnt}, {sCnt}, {D}\ns_cmp_lt_u32 {sCnt}, 32")
        b("s_cbranch_scc1 L2_loop")
    save = b.L; b.L = []
    body(); t1 = b.L
    b.L = []; body(); t2 = b.L
    assert t1 == t2, "k2 loop not steady"
    b.L = save
    b.raw(".p2align 3")
    b.label("L2_loop")
    b.L += t2
    b.wait(lg=0, vm=0)
    stamp(b, 2)
    PITCH = 272
    assert 80 * PITCH <= D * 4096 or True
    REG = max(D * 4096, 80 * PITCH)
    if REG != D * 4096: b("s_barrier")
    b(f"v_and_b32 v14, 15, v1\nv_mul_u32_u24 v14, {PITCH}, v14\nv_lshrrev_b32 v15, 4, v1\nv_lshlrev_b32 v15, 4, v15\nv_add_u32 v14, v14, v15")
    b(f"s_mul_i32 {sT}, {sW}, {REG}\nv_add_u32 v14, {sT}, v14")
    for i in range(5):
        for n in range(4):
            b(f"ds_write_b128 v14, {vr(ACC+(i*4+n)*4,4)} offset:{i*16*PITCH+n*64}")
    b.wait(lg=0)
    b("s_barrier")
    b(f"v_lshrrev_b32 v14, 3, v1\ns_mul_i32 {sT}, {sW}, 20\nv_add_u32 v14, {sT}, v14")
    b(f"v_and_b32 v15, 7, v1\nv_lshlrev_b32 v12, 11, v14\nv_lshlrev_b32 v13, 4, v15\nv_add_u32 v12, v12, v13")
    b(f"v_mul_u32_u24 v14, {PITCH}, v14\nv_lshlrev_b32 v15, 5, v15\nv_add_u32 v14, v14, v15")
    for s_ in range(1, 4): b(f"v_add_u32 v{8+s_}, {s_*REG}, v14")
    AD = [14, 9, 10, 11]
    for p in range(3):
        for s_ in range(4):
            for hf in range(2):
                b(f"ds_read_b128 {vr(64+p*32+s_*8+hf*4,4)}, v{AD[s_]} offset:{p*8*PITCH+hf*16}")
    for p in range(3):
        base = 64 + p * 32
        for i in range(8): b(f"v_add_f32 v{base+i}, v{base+i}, v{base+8+i}")
        for i in range(8): b(f"v_add_f32 v{base+16+i}, v{base+16+i}, v{base+24+i}")
        for i in range(8): b(f"v_add_f32 v{base+i}, v{base+i}, v{base+16+i}")
        for i in range(4): b(f"v_cvt_pk_bf16_f32 v{16+p*4+i}, v{base+2*i}, v{base+2*i+1}")
        if p == 2: b("s_mov_b32 exec_hi, 0")
        b(f"s_mov_b32 {sT}, {p*16384}")
        b(f"buffer_store_dwordx4 {vr(16+p*4,4)}, v12, {SOUT}, {sT} offen")
    if STAMPS:
        b("s_mov_b64 exec, -1")
        stamp(b, 3)
        b.wait(vm=0)
        stamp(b, 4)
        stamps_out(b, SWS, sW, 1)
        trace_out(b, SWS, sW, 1)
    b.label("L2_end")
    b("s_endpgm")
    return b.L, 4 * REG + 4096

def gen_probe(spec):
    i, ri, j, rj = spec.split(",")
    b = B()
    b.raw(".p2align 8"); b.raw(".type mha_probe_kernel,@function"); b.label("mha_probe_kernel")
    b("s_cmp_ge_u32 s2, 1"); b("s_cbranch_scc1 L3_end")
    b.raw("s_load_dwordx2 s[4:5], s[0:1], 56"); b.raw("s_waitcnt lgkmcnt(0)")
    b("s_mov_b32 s6, 268435456\ns_mov_b32 s7, 0x20000")
    b(f"v_mul_u32_u24 v1, {4*2*NST*8}, v0\ns_mov_b32 s8, {STAMP_OFF}")
    b(f"buffer_load_dword v2, v1, s[4:7], s8 offen offset:{8*int(i)}")
    b(f"buffer_load_dword v3, v1, s[4:7], s8 offen offset:{8*int(j)}")
    b.wait(vm=0)
    b("v_readlane_b32 s9, v2, 0")
    b("s_sub_u32 s9, s9, 100000")
    b("v_subrev_u32 v2, s9, v2\nv_subrev_u32 v3, s9, v3")
    for v, r, acc in ((2, ri, "s10"), (3, rj, "s11")):
        b(f"s_mov_b32 {acc}, {'-1' if r == 'min' else '0'}")
        for l in range(64):
            b(f"v_readlane_b32 s12, v{v}, {l}")
            b(f"{dict(min='s_min_u32', max='s_max_u32', avg='s_add_u32')[r]} {acc}, {acc}, s12")
        if r == 'avg': b(f"s_lshr_b32 {acc}, {acc}, 3")
        else: b(f"s_lshl_b32 {acc}, {acc}, 3")
    b("s_sub_u32 s10, s11, s10\ns_min_u32 s10, s10, 100000")
    b.raw("s_memrealtime s[12:13]"); b.raw("s_waitcnt lgkmcnt(0)")
    b.label("L3_spin")
    b.raw("s_memrealtime s[14:15]"); b.raw("s_waitcnt lgkmcnt(0)")
    b("s_sub_u32 s14, s14, s12\ns_cmp_lt_u32 s14, s10")
    b("s_cbranch_scc1 L3_spin")
    b.label("L3_end")
    b("s_endpgm")
    return b.L

def desc(name, vg, acc):
    return [f".amdhsa_kernel {name}", f"  .amdhsa_next_free_vgpr {vg}", "  .amdhsa_next_free_sgpr 100", f"  .amdhsa_accum_offset {acc}",
            "  .amdhsa_group_segment_fixed_size 0", "  .amdhsa_kernarg_size 64", "  .amdhsa_user_sgpr_count 2",
            "  .amdhsa_user_sgpr_kernarg_segment_ptr 1", "  .amdhsa_system_sgpr_workgroup_id_x 1", ".end_amdhsa_kernel"]

def main():
    k1 = gen_k1()
    k2, lds2 = gen_k2()
    k1, n1 = hazard_pass(k1, verbose=bool(opt("v", 0)))
    k2, n2 = hazard_pass(k2, verbose=bool(opt("v", 0)))
    head = ["; Fused MHA block: launch 1 = Q projection + attention per (batch, head); launch 2 = output projection.",
            "; Generated by a hand-written generator script (dev/gen.py).",
            "; @launch kernel=mha_attn_kernel grid=(256,1,1) block=(256,1,1) lds=163840",
            f"; @launch kernel=mha_oproj_kernel grid=(256,1,1) block=(256,1,1) lds={max(lds2, 90000)}",
            '.amdgcn_target "amdgcn-amd-amdhsa--gfx950"', ".text", ".globl mha_attn_kernel", ".globl mha_oproj_kernel"]
    tail = ['.section .rodata,"a"', ".p2align 6"] + desc("mha_attn_kernel", 432, 256) + [".p2align 6"] + desc("mha_oproj_kernel", 160 + DEPTH2 * 20, 160)
    if "probe" in P:
        k3, _ = hazard_pass(gen_probe(P["probe"]))
        k2 = k2 + k3
        head.insert(4, "; @launch kernel=mha_probe_kernel grid=(1,1,1) block=(64,1,1) lds=0")
        head.append(".globl mha_probe_kernel")
        tail += [".p2align 6"] + desc("mha_probe_kernel", 8, 8)
    fmt = lambda l: l if l.endswith(":") or l.startswith((".", ";")) else "    " + l
    open(sys.argv[1], "w").write("\n".join(head + [fmt(l) for l in k1] + [fmt(l) for l in k2] + tail) + "\n")
    print(f"nops inserted: {n1} {n2}; lines {len(k1)} {len(k2)}")
main()
```

```python
import re

REG_RE = re.compile(r'^(-|\|)?(abs\()?([vas])(\d+)\)?\|?$')
RNG_RE = re.compile(r'^(-|\|)?(abs\()?([vas])\[(\d+):(\d+)\]\)?\|?$')

def regs_of(op):
    op = op.strip()
    m = REG_RE.match(op)
    if m: return [(m.group(3), int(m.group(4)))]
    m = RNG_RE.match(op)
    if m: return [(m.group(3), i) for i in range(int(m.group(4)), int(m.group(5)) + 1)]
    if op == 'vcc': return [('s', 'vcc')]
    if op == 'exec': return [('s', 'exec')]
    if op == 'm0': return [('s', 'm0')]
    return []

def split_ops(rest):
    out = []; depth = 0; cur = ''
    for ch in rest:
        if ch == '[': depth += 1
        if ch == ']': depth -= 1
        if ch == ',' and depth == 0:
            out.append(cur.strip()); cur = ''
        else: cur += ch
    if cur.strip(): out.append(cur.strip())
    if out:
        parts = out[-1].split()
        out[-1] = parts[0]
        mods = parts[1:]
    else: mods = []
    return out, mods

TRANS = ('v_exp_f32', 'v_log_f32', 'v_rcp_f32', 'v_rsq_f32', 'v_sqrt_f32', 'v_sin_f32', 'v_cos_f32')

class Ins:
    __slots__ = ('text', 'mn', 'ops', 'mods', 'rd', 'wr', 'kind', 'passes', 'srcC', 'srcAB', 'data')
    def __init__(self, text):
        self.text = text
        t = text.split(';')[0].strip()
        sp = t.split(None, 1)
        self.mn = mn = sp[0]
        self.ops, self.mods = split_ops(sp[1]) if len(sp) > 1 else ([], [])
        ops = self.ops
        R = lambda i: regs_of(ops[i]) if i < len(ops) else []
        allr = lambda a: [r for i in range(a, len(ops)) for r in regs_of(ops[i])]
        self.passes = 0; self.srcC = []; self.srcAB = []; self.data = []
        if mn.startswith('v_mfma'):
            self.kind = 'mfma'; self.wr = R(0); self.srcAB = R(1) + R(2); self.srcC = R(3); self.rd = self.srcAB + self.srcC
            self.passes = 8 if '32x32' in mn else 4
        elif mn.startswith('v_'):
            self.kind = 'valu'
            if mn.startswith('v_permlane') and 'swap' in mn:
                self.wr = R(0) + R(1); self.rd = R(0) + R(1)
            elif mn.startswith('v_cmp'):
                self.wr = R(0); self.rd = allr(1)
            elif mn.startswith(('v_add_co', 'v_sub_co', 'v_addc_co', 'v_subb_co')):
                self.wr = R(0) + R(1); self.rd = allr(2)
            elif mn.startswith(('v_fmac', 'v_dot2c')):
                self.wr = R(0); self.rd = allr(0)
            elif mn == 'v_nop':
                self.wr = []; self.rd = []
            else:
                self.wr = R(0); self.rd = allr(1)
        elif mn.startswith('ds_read') or mn.startswith('ds_bpermute') or mn.startswith('ds_swizzle'):
            self.kind = 'ds'; self.wr = R(0); self.rd = allr(1)
        elif mn.startswith('ds_write'):
            self.kind = 'ds'; self.wr = []; self.rd = allr(0)
        elif mn.startswith(('buffer_load', 'global_load')):
            self.kind = 'vmem'
            if 'lds' in self.mods or '_lds_' in mn:
                self.wr = []; self.rd = allr(0) + [('s', 'm0')]
            else:
                self.wr = R(0); self.rd = allr(1)
        elif mn.startswith(('buffer_store', 'global_store', 'buffer_atomic', 'global_atomic')):
            self.kind = 'vmem'; self.wr = []; self.rd = allr(0)
            if mn.endswith(('x3', 'x4')):
                self.data = R(0) if mn.startswith('buffer') else R(1)
        elif mn.startswith(('buffer_wbl2', 'buffer_inv')):
            self.kind = 'vmem'; self.wr = []; self.rd = []
        elif mn.startswith(('s_load', 's_buffer_load', 's_memtime', 's_memrealtime')):
            self.kind = 'smem'; self.wr = R(0); self.rd = allr(1)
        elif mn.startswith(('s_cmp', 's_bitcmp')) or mn in ('s_barrier', 's_waitcnt', 's_nop', 's_endpgm', 's_setprio', 's_sleep') or mn.startswith(('s_cbranch', 's_branch')):
            self.kind = 'salu'; self.wr = []; self.rd = allr(0) if mn.startswith(('s_cmp', 's_bitcmp')) else []
        elif mn.startswith('s_'):
            self.kind = 'salu'; self.wr = R(0); self.rd = allr(1)
            if 'saveexec' in mn: self.wr = self.wr + [('s', 'exec')]
        else:
            raise ValueError('unknown instr ' + text)
    def states(self):
        if self.mn == 's_nop': return int(self.ops[0], 0) + 1
        return 1

def need_states(p, c):
    n = 0
    pw = set(p.wr); cr = set(c.rd); cw = set(c.wr)
    isv = lambda s: {r for r in s if r[0] in 'va'}
    iss = lambda s: {r for r in s if r[0] == 's'}
    if p.kind == 'valu':
        if c.kind == 'mfma' and isv(pw) & cr: n = max(n, 2)
        if c.kind == 'valu':
            if p.mn.startswith(TRANS) and not c.mn.startswith(TRANS) and isv(pw) & cr: n = max(n, 1)
            if c.mn.startswith('v_permlane') and isv(pw) & cr: n = max(n, 2)
            if c.mn.startswith(('v_readfirstlane', 'v_readlane')) and isv(pw) & cr: n = max(n, 1)
            if any('dpp' in m or m.startswith(('row_', 'quad_perm')) for m in c.mods) and isv(pw) & cr: n = max(n, 2)
            if iss(pw) & cr: n = max(n, 2)
            if c.mn.startswith(('v_readlane', 'v_writelane')) and iss(pw) & cr: n = max(n, 4)
        if c.kind == 'vmem' and iss(pw) & cr: n = max(n, 5)
        if c.kind == 'salu' and iss(pw) & cr: n = max(n, 1)
    if p.kind == 'mfma':
        big = p.passes == 8
        if c.kind == 'mfma':
            if pw & set(c.srcAB): n = max(n, 12 if big else 8)
            if pw & set(c.srcC):
                if not (p.wr == c.srcC and p.passes == c.passes): n = max(n, 10 if big else 6)
            elif pw & cw and not (p.wr == c.wr): n = max(n, 10 if big else 6)
        elif c.kind in ('valu', 'vmem', 'ds'):
            if pw & (cr | cw): n = max(n, 12 if big else 8)
        if c.kind == 'valu' and set(p.srcC) & cw: n = max(n, 7 if big else 3)
    if p.kind == 'salu' and ('s', 'm0') in pw and c.kind == 'vmem' and ('s', 'm0') in cr: n = max(n, 1)
    if p.kind == 'vmem' and p.data and set(p.data) & cw: n = max(n, 2 if c.kind == 'valu' else 1)
    return n

def hazard_pass(lines, verbose=False):
    total = 0
    while True:
        items = []
        for ln in lines:
            s = ln.split(';')[0].strip()
            if not s or s.startswith('.') and not s.endswith(':'): items.append(None)
            elif s.endswith(':'): items.append(('label', s[:-1]))
            else: items.append(Ins(ln))
        labels = {it[1]: i for i, it in enumerate(items) if isinstance(it, tuple)}
        jumps = {}
        for i, it in enumerate(items):
            if isinstance(it, Ins) and it.mn.startswith(('s_cbranch', 's_branch')):
                jumps.setdefault(labels[it.ops[0]], []).append(i)
        fix = None
        for i, c in enumerate(items):
            if not isinstance(c, Ins): continue
            worst = 0
            stack = [(i - 1, 0)]; seen = {}
            while stack:
                j, d = stack.pop()
                while j >= 0 and d < 20:
                    if seen.get(j, 99) <= d: break
                    seen[j] = d
                    it = items[j]
                    if isinstance(it, tuple):
                        for src in jumps.get(j, []): stack.append((src, d))
                        j -= 1
                        k = j
                        while k >= 0 and not isinstance(items[k], Ins):
                            if isinstance(items[k], tuple): break
                            k -= 1
                        if k >= 0 and isinstance(items[k], Ins) and items[k].mn in ('s_branch', 's_endpgm'): break
                        continue
                    if it is None: j -= 1; continue
                    n = need_states(it, c)
                    if n - d > worst: worst = n - d; why = it.text
                    d += it.states(); j -= 1
            if worst > 0:
                fix = (i, worst, why); break
        if fix is None: break
        i, w, why = fix
        if verbose: print(f'  nop {w} before [{lines[i].strip()}] due to [{why.strip()}]')
        lines = lines[:i] + [f's_nop {w-1},'.rstrip(',')] + lines[i:]
        total += 1
    return lines, total

class B:
    def __init__(self):
        self.L = []
        self.lg = []
        self.vm = []
        self.track = True
    def raw(self, s): self.L.append(s)
    def label(self, s): self.L.append(s + ':')
    def c(self, s): self.L.append('; ' + s)
    def state(self): return ([(t, frozenset(d)) for t, d in self.lg], [(t, frozenset(d)) for t, d in self.vm])
    def set_state(self, st):
        self.lg = [(t, set(d)) for t, d in st[0]]; self.vm = [(t, set(d)) for t, d in st[1]]
    def _wait(self, nl=None, nv=None):
        parts = []
        if nv is not None:
            nv = min(nv, 63); parts.append(f'vmcnt({nv})'); self.vm = self.vm[len(self.vm) - nv:] if nv < len(self.vm) else self.vm
            if nv == 0: self.vm = []
        if nl is not None:
            nl = min(nl, 15); parts.append(f'lgkmcnt({nl})'); self.lg = self.lg[len(self.lg) - nl:] if nl < len(self.lg) else self.lg
            if nl == 0: self.lg = []
        self.L.append('s_waitcnt ' + ' '.join(parts))
    def wait(self, lg=None, vm=None): self._wait(lg, vm)
    def wait_tag(self, lgtag=None, vmtag=None):
        nl = nv = None
        if lgtag is not None:
            idx = [i for i, (t, d) in enumerate(self.lg) if t == lgtag]
            if idx: nl = len(self.lg) - 1 - idx[-1]
        if vmtag is not None:
            idx = [i for i, (t, d) in enumerate(self.vm) if t == vmtag]
            if idx: nv = len(self.vm) - 1 - idx[-1]
        if nl is not None or nv is not None: self._wait(nl, nv)
    def I(self, text, tag=None):
        ins = Ins(text)
        if self.track:
            use = set(ins.rd) | set(ins.wr)
            nl = nv = None
            for i, (t, d) in enumerate(self.lg):
                if d & use: nl = len(self.lg) - 1 - i
            for i, (t, d) in enumerate(self.vm):
                if d & use: nv = len(self.vm) - 1 - i
            if nl is not None or nv is not None: self._wait(nl, nv)
            if ins.kind == 'ds': self.lg.append((tag, set(ins.wr)))
            if ins.kind == 'vmem': self.vm.append((tag, set(ins.wr)))
        self.L.append(text)
    def __call__(self, text, tag=None):
        for t in text.split('\n'):
            t = t.strip()
            if t: self.I(t, tag)

def need(b, ops):
    use = set()
    for o in ops: use |= set(regs_of(o))
    nl = nv = None
    for i, (t, d) in enumerate(b.lg):
        if d & use: nl = len(b.lg) - 1 - i
    for i, (t, d) in enumerate(b.vm):
        if d & use: nv = len(b.vm) - 1 - i
    if nl is not None or nv is not None: b._wait(nl, nv)

def estimate(lines, verbose=False):
    t = 0; mf_free = 0; valu_ok = 0; prev = None; last_mf = None
    for ln in lines:
        s = ln.split(';')[0].strip()
        if not s or s.endswith(':') or s.startswith('.'): continue
        ins = Ins(ln)
        if ins.kind == 'mfma':
            st = max(t, mf_free)
            if verbose and last_mf is not None and st - last_mf > ins.passes * 4: print(f"   gap {st-last_mf} before {s[:70]}")
            last_mf = st
            mf_free = st + ins.passes * 4; valu_ok = st + 8; t = st + 4
        elif ins.kind == 'valu':
            t = max(t, valu_ok) + (8 if ins.mn.startswith(TRANS) else 4)
        elif ins.kind == 'ds':
            t += (4 if prev == 'valu' else 0) + 8
        elif ins.kind == 'vmem':
            t += (4 if prev == 'valu' else 0) + 12
        elif ins.mn == 's_nop': t += 4 * ins.states()
        else: t += 4
        prev = ins.kind
    return max(t, mf_free)
```

```python
import sys, math, struct
from asmlib import B, hazard_pass, need, estimate

P = dict(kv.split("=") for kv in sys.argv[2:])
def opt(k, d): return type(d)(P.get(k, d))
STAMPS = opt("stamps", 0); TRACE = opt("trace", 0); VERB = bool(opt("v", 0))
KVFL = opt("kvfl", "nt").replace("+", " ")
HST = opt("hst", "sc0+sc1").replace("+", " ")
HLD = opt("hld", "sc0+sc1").replace("+", " ")
FORCE_SLOW = opt("slow", 0)
SIG = opt("sig", "rot"); SIG3 = opt("sig3", "rot"); AUXT = opt("auxt", "lead")
NPI = opt("npi", 3); SA = opt("sa", 5)
TOUCH = opt("touch", 1)
SLEEP = opt("sleep", 4); ONEPOLL = opt("onepoll", 1); PBF = opt("pbf", 1)
NAME = "standalone__mha_block_cached__near_ridge_kernel"
STAMP_OFF = 200 << 20; NST = 16
TIMER = "s_memtime" if STAMPS == 2 else "s_memrealtime"
PART = 16 << 20; FLG1 = 40 << 20; FLG2 = FLG1 + 65536; WSREC = FLG2 + 65536

def vr(a, n=1, k='v'): return f"{k}{a}" if n == 1 else f"{k}[{a}:{a+n-1}]"
def ar(a, n=1): return vr(a, n, 'a')
def f32bits(x): return "0x%08x" % struct.unpack("<I", struct.pack("<f", x))[0]

def stamp(b, i):
    if STAMPS:
        b.wait(lg=0)
        b.raw(f"{TIMER} s[96:97]"); b.raw("s_waitcnt lgkmcnt(0)")
        b.raw(f"v_writelane_b32 v254, s96, {2*i}"); b.raw(f"v_writelane_b32 v254, s97, {2*i+1}")
def trace(b):
    if TRACE:
        b.wait(lg=0)
        for s in ("s_memtime s[96:97]", "s_waitcnt lgkmcnt(0)", "s_sub_u32 s96, s96, s98", "s_mov_b32 s97, m0", "s_mov_b32 m0, s100",
                  "v_writelane_b32 v0, s96, m0", "s_add_u32 s100, s100, 1", "s_mov_b32 m0, s97"): b.raw(s)

def order(kind, j):
    if kind == "seq": return list(range(16)), [2, 6, 10]
    if kind == "xor": return [t ^ j for t in range(16)], [4, 8, 12]
    o = []; lead = []
    if kind == "rot":
        for t in range(16):
            if t == 0: o.append(j)
            elif t % 4 == j and t + 3 < 16: o.append(t + 3); lead.append(t)
            else: o.append([c for c in range(16) if c not in o and (c < 4 or (c - 3) < t) and not (c >= 4 and (c - 3) % 4 == j)][0])
    elif kind == "rot2":
        for t in range(16):
            if t == 0: o.append(0)
            elif t == 1: o.append(1 + j)
            elif (t - 1) % 4 == j and t + 3 < 16: o.append(t + 3); lead.append(t)
            else: o.append([c for c in range(16) if c not in o and (c < 5 or (c - 3) < t) and not (c >= 5 and (c - 4) % 4 == j)][0])
    assert sorted(o) == list(range(16)), o
    lead = [t for t in lead if t >= 2][:3]
    while len(lead) < 3: lead.append(lead[-1] + 2)
    return o, lead
def tables(kind):
    T = []
    for j in range(4):
        o, lead = order(kind, j)
        if AUXT != "lead": lead = [int(v) + 2 for v in AUXT.split(".")]
        val = sum(c << (4 * t) for t, c in enumerate(o))
        T.append((val & 0xffffffff, val >> 32, sum(1 << (t - 1) for t in lead)))
    return T

def gen():
    b = B()
    SX, SW, SK, SV, SO, SD = "s[4:7]", "s[8:11]", "s[12:15]", "s[16:19]", "s[20:23]", "s[24:27]"
    sW, sB, sH, sCnt = "s28", "s29", "s30", "s31"
    sRB, sDB, sDelta, sMask = "s32", "s33", "s34", "s35"
    sXO, sWO, sMX, sMW, sM5, sT, sT2, sT3 = "s36", "s37", "s38", "s39", "s40", "s41", "s42", "s43"
    sW4, sW1, sPB, sKVm, sKVs, sPass, sO0, sO1, sCls = "s44", "s45", "s46", "s47", "s48", "s49", "s50", "s51", "s52"
    sCc, sQH, sKH = "s53", "s56", "s57"
    sBl, sHl, sKq = "s60", "s61", "s62"
    sNon = "s[64:65]"
    XA = [2, 3]; WA = [4, 5, 6, 7]; VB = [8, 9, 10, 11, 12]; VW = [13, 14, 15, 16]; KVW, NONV, L16 = 17, 18, 20
    ACC = 24; OK = 104; KA = [184, 185, 186, 187]; VA = list(range(188, 196)); NM = 196; LA = 216; L16B = 236; TCH = 237
    ZR = 240
    SB = [24, 32, 40]; PB = [48, 52, 56]
    OS, QF, KF, VF, ONES, JUNK = 0, 80, 160, 192, 224, 228
    AF = [80, 96]; BF = [112, 132]
    ST0 = 53248; STSZ = 36864; LDS = 163840; QEX = 122880
    MF = "v_mfma_f32_16x16x32_bf16"

    b.raw(".p2align 8")
    b.raw(f".type {NAME},@function")
    b.label(NAME)
    b("s_cmp_ge_u32 s2, 256")
    b("s_cbranch_scc1 L_end")
    b.track = False
    b("s_load_dwordx4 s[4:7], s[0:1], 0")
    b("s_load_dwordx4 s[8:11], s[0:1], 16")
    b("s_load_dwordx4 s[68:71], s[0:1], 40")
    b("s_load_dwordx2 s[66:67], s[0:1], 32")
    b("s_load_dwordx2 s[20:21], s[0:1], 56")
    b("s_memrealtime s[64:65]")
    if STAMPS: b.raw(f"{TIMER} s[94:95]")
    if TRACE: b.raw("s_memtime s[98:99]"); b.raw("s_mov_b32 s100, 0")
    b.track = True
    b("v_and_b32 v1, 63, v0\nv_lshrrev_b32 v21, 6, v0")
    b(f"s_and_b32 {sB}, s2, 1\ns_lshl_b32 {sB}, {sB}, 2\ns_lshr_b32 {sT}, s2, 3\ns_and_b32 {sBl}, {sT}, 3\ns_add_u32 {sB}, {sB}, {sBl}")
    b(f"v_readfirstlane_b32 {sW}, v21")
    b(f"s_lshr_b32 {sKq}, s2, 1\ns_and_b32 {sKq}, {sKq}, 3\ns_lshl_b32 {sH}, {sKq}, 3\ns_lshr_b32 {sHl}, {sT}, 2\ns_add_u32 {sH}, {sH}, {sHl}")
    b(f"s_add_u32 {sCls}, {sBl}, {sHl}\ns_and_b32 {sCls}, {sCls}, 3")
    def load_order(kind, mask=True):
        T = tables(kind)
        b(f"s_mov_b32 s58, {T[0][0]}\ns_mov_b32 s59, {T[0][1]}")
        if mask: b(f"s_mov_b32 {sMask}, {T[0][2]}")
        for j in (1, 2, 3):
            b(f"s_cmp_eq_u32 {sCls}, {j}\ns_cselect_b32 s58, {T[j][0]}, s58\ns_cselect_b32 s59, {T[j][1]}, s59")
            if mask: b(f"s_cselect_b32 {sMask}, {T[j][2]}, {sMask}")
    load_order(SIG)
    b(f"s_lshl_b32 {sW4}, {sW}, 12\ns_lshl_b32 {sW1}, {sW}, 10\ns_and_b32 {sQH}, {sW}, 1\ns_lshr_b32 {sKH}, {sW}, 1")
    b("v_lshrrev_b32 v21, 4, v1")
    b("v_and_b32 v22, 7, v1\nv_xor_b32 v22, v22, v21\nv_lshlrev_b32 v22, 4, v22")
    b("v_lshrrev_b32 v23, 3, v1\nv_lshlrev_b32 v23, 11, v23\nv_add_u32 v22, v22, v23\nv_xor_b32 v23, 64, v22")
    b(f"s_lshl_b32 {sT}, {sW}, 16")
    for q in range(4):
        b(f"s_add_u32 {sT2}, {sT}, {q*(16384-1024)}\nv_add_u32 v{VB[q]}, {sT2}, v{23 if q & 1 else 22}")
    b(f"s_lshl_b32 {sT}, {sQH}, 6\nv_xor_b32 v{VB[4]}, {sT}, v22\ns_lshl_b32 {sT}, {sW}, 14\ns_add_u32 {sT}, {sT}, {16*16384}\nv_add_u32 v{VB[4]}, {sT}, v{VB[4]}")
    b("v_lshlrev_b32 v22, 1, v21\nv_and_b32 v23, 15, v1\nv_xor_b32 v22, v22, v23\nv_lshlrev_b32 v22, 4, v22")
    b(f"v_lshlrev_b32 v23, 13, v21\nv_add_u32 v23, v23, v22\nv_xor_b32 v{L16}, 128, v23")
    b(f"s_lshl_b32 {sT}, {sW}, 17")
    for q in range(4):
        b(f"s_add_u32 {sT2}, {sT}, {q*(32768-1024)}\nv_add_u32 v{VW[q]}, {sT2}, v{L16 if q & 2 else 23}")
    b(f"s_add_u32 {sM5}, {sW1}, 16384")
    b(f"s_lshl_b32 {sT}, {sB}, 5\ns_add_u32 {sT}, {sT}, {sH}\ns_lshl_b32 {sT}, {sT}, 17\ns_lshl_b32 {sT2}, {sH}, 8\ns_mul_i32 {sT3}, {sB}, 327680")
    b.raw("s_waitcnt lgkmcnt(0)")
    b(f"s_add_u32 s12, s6, {sT}\ns_addc_u32 s13, s7, 0")
    b(f"s_add_u32 s16, s8, {sT}\ns_addc_u32 s17, s9, 0")
    b(f"s_add_u32 s8, s10, {sT2}\ns_addc_u32 s9, s11, 0\ns_sub_u32 s10, 8388608, {sT2}\ns_mov_b32 s11, 0x20000")
    b(f"s_add_u32 s4, s4, {sT3}\ns_addc_u32 s5, s5, 0\ns_mov_b32 s6, 327680\ns_mov_b32 s7, 0x20000")
    def dma_lists(fl=""):
        DW = [f"buffer_load_dwordx4 v{VW[q]}, {SW}, {sWO} offen offset:{q*1024} lds" for q in range(4)]
        DX = [f"buffer_load_dwordx4 v{VB[q]}, {SX}, {sXO} offen offset:{q*1024} {fl} lds" for q in range(4)] + \
             [f"buffer_load_dwordx4 v{VB[4]}, {SX}, {sXO} offen {fl} lds"]
        return DW, DX
    DW, DX = dma_lists()
    for st in range(2):
        base = ST0 + ((st+2)%3)*STSZ
        b(f"s_and_b32 {sT}, s58, 15\ns_add_u32 m0, {sW4}, {base+20480}\ns_lshl_b32 {sWO}, {sT}, 19")
        for x in DW: b(x)
        b(f"s_add_u32 m0, {sW4}, {base}\ns_lshl_b32 {sXO}, {sT}, 7")
        for x in DX[:4]: b(x)
        b(f"s_add_u32 m0, {sM5}, {base}\ns_lshr_b64 s[58:59], s[58:59], 4")
        b(DX[4])
    b.vm = []
    if STAMPS: b.raw("v_writelane_b32 v254, s94, 0"); b.raw("v_writelane_b32 v254, s95, 1")
    b("s_mov_b32 s14, 131072\ns_mov_b32 s15, 0x20000\ns_mov_b32 s18, 131072\ns_mov_b32 s19, 0x20000")
    b("s_mov_b32 s24, s70\ns_mov_b32 s25, s71\ns_mov_b32 s26, 256\ns_mov_b32 s27, 0x20000")
    b(f"s_mov_b32 s22, {268435456 if STAMPS else WSREC}\ns_mov_b32 s23, 0x20000")
    b(f"s_mov_b32 {sRB}, {ST0 + 2*STSZ}\ns_mov_b32 {sCnt}, 0\ns_mov_b32 {sPass}, 0\ns_mov_b32 {sDB}, {ST0 + STSZ}")
    for i in range(4): b(f"v_mov_b32 v{ZR+i}, 0")
    b(f"s_or_b32 {sT}, s2, {sW}\ns_cmp_lg_u32 {sT}, 0")
    b("s_cbranch_scc1 L_nonon")
    b(f"s_or_b32 s64, s64, 1\nv_mov_b32 v24, s64\nv_mov_b32 v25, s65")
    b(f"buffer_store_dwordx2 v[24:25], v{ZR}, {SD}, 0 offen sc0 sc1")
    b.label("L_nonon")
    b.vm = []
    b("v_lshlrev_b32 v23, 8, v21\nv_add_u32 v22, v22, v23")
    b(f"s_lshl_b32 {sT}, {sQH}, 7\nv_xor_b32 v{KVW}, {sT}, v22\nv_add_u32 v{KVW}, {sW1}, v{KVW}")
    b(f"v_lshlrev_b32 v{L16}, 4, v1\nv_add_u32 v{L16B}, 4096, v{L16}")
    b("v_and_b32 v26, 15, v1\nv_lshrrev_b32 v27, 1, v26\nv_xor_b32 v27, v27, v21\nv_lshlrev_b32 v27, 4, v27\nv_lshlrev_b32 v26, 7, v26\nv_add_u32 v27, v27, v26")
    b(f"s_mul_i32 {sT}, {sQH}, 10240\ns_add_u32 {sT}, {sT}, {sRB}")
    for u in range(2): b(f"v_xor_b32 v{XA[u]}, {u*64}, v27\nv_add_u32 v{XA[u]}, {sT}, v{XA[u]}")
    b("v_lshrrev_b32 v26, 2, v1\nv_and_b32 v27, 7, v26\nv_and_b32 v26, 3, v26")
    b(f"s_lshl_b32 {sT}, {sKH}, 2\nv_xor_b32 v27, {sT}, v27\nv_lshlrev_b32 v27, 5, v27")
    b("v_lshlrev_b32 v28, 3, v21\nv_add_u32 v28, v28, v26\nv_lshlrev_b32 v28, 8, v28")
    b("v_and_b32 v29, 3, v1\nv_lshlrev_b32 v29, 3, v29\nv_add3_u32 v28, v28, v27, v29")
    b(f"s_add_u32 {sT}, {sRB}, 20480")
    for d in range(4): b(f"v_xor_b32 v{WA[d]}, {d*32}, v28\nv_add_u32 v{WA[d]}, {sT}, v{WA[d]}")
    def zero(r):
        big = int(r.split(":")[1][:-1]) - int(r.split("[")[1].split(":")[0]) == 15
        b(f"{'v_mfma_f32_32x32x16_bf16' if big else MF} {r}, {vr(ZR,4)}, {vr(ZR,4)}, 0")
    def gemm_zero():
        for i in range(5): zero(vr(ACC+16*i, 16))
        zero(ar(AF[1], 16)); zero(ar(BF[1], 16)); zero(ar(BF[1]+16, 4))
    gemm_zero()
    b(f"s_mul_i32 {sT}, {sB}, 1310720\ns_lshl_b32 {sT2}, {sH}, 1\ns_add_u32 {sT2}, {sT2}, {sKH}\ns_mul_i32 {sT2}, {sT2}, 20480\ns_add_u32 {sT}, {sT}, {sT2}")
    b(f"s_mul_i32 {sT2}, {sQH}, 5120\ns_add_u32 {sO0}, {sT}, {sT2}\ns_add_u32 {sO1}, {sO0}, 10240")
    b(f"s_mov_b32 {sCc}, {f32bits(math.log2(math.e) / math.sqrt(128.0))}")
    def p2_init():
        b("v_lshrrev_b32 v21, 4, v1\nv_and_b32 v22, 7, v1\nv_lshlrev_b32 v22, 1, v22\nv_xor_b32 v22, v22, v21\nv_lshlrev_b32 v22, 4, v22")
        b("v_and_b32 v23, 15, v1\nv_lshlrev_b32 v23, 8, v23\nv_add_u32 v22, v22, v23")
        b(f"s_lshl_b32 {sT}, {sKH}, 14")
        for d in range(4): b(f"v_xor_b32 v{KA[d]}, {d*64}, v22\nv_add_u32 v{KA[d]}, {sT}, v{KA[d]}")
        b(f"v_lshrrev_b32 v21, 2, v1\nv_and_b32 v22, 7, v21\ns_lshl_b32 {sT2}, {sKH}, 2\nv_xor_b32 v22, {sT2}, v22\nv_lshlrev_b32 v22, 5, v22")
        b("v_lshlrev_b32 v21, 8, v21\nv_and_b32 v23, 3, v1\nv_lshlrev_b32 v23, 3, v23\nv_add3_u32 v22, v22, v21, v23")
        b(f"s_add_u32 {sT}, {sT}, 4096")
        for j in range(8): b(f"v_xor_b32 v{VA[j]}, {j*32}, v22\nv_add_u32 v{VA[j]}, {sT}, v{VA[j]}")
        b(f"s_mov_b32 {sPB}, 0\ns_mov_b32 {sKVm}, {sW1}\ns_mov_b32 {sKVs}, 0")
        for i in range(5): zero(vr(OK+16*i, 16))
        for i in range(5): zero(ar(OS+16*i, 16))
        zero(vr(LA, 16)); zero(vr(LA+16, 4))
    p2_init()
    b("v_mov_b32 v21, 0x3f803f80")
    for i in range(4): b(f"v_accvgpr_write_b32 a{ONES+i}, v21")
    b.raw("s_waitcnt vmcnt(9)")
    stamp(b, 1)

    def g_mfmas(buf, dord=(0, 1, 2, 3)):
        return [f"{MF} {vr(ACC+(d*5+q)*4,4)}, {ar(AF[buf]+4*d,4)}, {ar(BF[buf]+4*q,4)}, {vr(ACC+(d*5+q)*4,4)}" for d in dord for q in range(5)]
    def g_step(ph, dm, fill):
        trace(b)
        b("s_barrier")
        trace(b)
        vs, qs = ((1024, 2048), (4096, 1024))[ph == 3]
        for u in range(2):
            A = lambda d: [f"ds_read_b64_tr_b16 {ar(AF[u]+4*d+2*v,2)}, v{WA[d]} offset:{u*8192+v*vs}" for v in range(2)]
            rd = A(0) + [f"ds_read_b128 {ar(BF[u]+4*q,4)}, v{XA[u]} offset:{q*qs}" for q in range(5)] + A(1) + A(2) + A(3)
            mf = g_mfmas(u ^ 1)
            for i in range(20):
                b(mf[i])
                if (u, i) in dm: b(dm[(u, i)])
                elif rd: b(rd.pop(0))
                for s in fill.get((u, i), []): b(s)
                if u == 0 and i == 18: need(b, [ar(AF[0], 8), ar(BF[0], 20)])
                if u == 1 and i == 4: need(b, [ar(AF[0], 16)])
            assert not rd
    va = lambda r: f"v_add_u32 v{r}, {sDelta}, v{r}"
    ringf = {(0, 7): [f"s_add_u32 {sT2}, {sRB}, {STSZ}"], (0, 9): [f"s_cmp_ge_u32 {sT2}, {LDS}"], (0, 10): [f"s_cselect_b32 {sT2}, {ST0}, {sT2}"],
             (0, 11): [f"s_sub_u32 {sDelta}, {sT2}, {sRB}"], (0, 14): [va(XA[0])],
             (1, 2): [va(WA[0])], (1, 7): [va(XA[1])], (1, 10): [va(WA[1])], (1, 12): [va(WA[2])], (1, 15): [va(WA[3])]}
    DG = [(0, 4), (0, 8), (0, 12), (0, 16), (0, 19), (1, 9), (1, 13), (1, 16), (1, 18)]
    def loopf(ph):
        f = dict(ringf)
        f.update({(0, 0): [f"s_and_b32 {sT}, s58, 15"], (0, 1): [f"s_lshl_b32 {sWO}, {sT}, {19 if ph == 1 else 17}"],
                  (0, 2): [f"s_add_u32 {sMX}, {sDB}, {sW4}"], (0, 3): [f"s_add_u32 m0, {sMX}, 20480"],
                  (0, 5): [f"s_lshl_b32 {sXO}, {sT}, 7" if ph == 1 else f"s_mul_i32 {sXO}, {sT}, 20480"],
                  (0, 6): ["s_lshr_b64 s[58:59], s[58:59], 4"], (0, 17): [f"s_mov_b32 m0, {sMX}"],
                  (1, 0): [f"s_add_u32 {sMW}, {sDB}, {sM5}"], (1, 1): [f"s_mov_b32 {sDB}, {sRB}"], (1, 3): [f"s_mov_b32 {sRB}, {sT2}"],
                  (1, 5): [f"s_add_u32 {sCnt}, {sCnt}, 1"], (1, 6): [f"s_cmp_lt_u32 {sCnt}, 14"], (1, 8): ["s_cselect_b64 vcc, -1, 0"],
                  (1, 17): [f"s_mov_b32 m0, {sMW}"] + ([f"s_bitcmp1_b32 {sMask}, {sCnt}"] if ph == 1 else [])})
        return f
    b.raw(".p2align 3")
    b.label("L_p1")
    i0 = len(b.L)
    g_step(1, dict(zip(DG, DW + DX)), loopf(1))
    b("s_cbranch_scc1 L_aux")
    b.wait(lg=0, vm=9)
    b.label("L_auxback")
    b("s_cbranch_vccnz L_p1")
    print("gemm step estimate", estimate(b.L[i0:], verbose=VERB))
    b.vm = []
    stamp(b, 2)
    KLD = f"buffer_load_dwordx4 v{KVW}, {SK}, {sKVs} offen {KVFL} lds"
    VLD = f"buffer_load_dwordx4 v{KVW}, {SV}, {sKVs} offen {KVFL} lds"
    M0K = f"s_mov_b32 m0, {sKVm}"; M0V = f"s_add_u32 m0, {sKVm}, 4096"
    ADV = [f"s_add_u32 {sKVm}, {sKVm}, 8192", f"s_add_u32 {sKVs}, {sKVs}, 4096"]
    WRAP = [f"s_cmp_ge_u32 {sKVm}, {LDS}", f"s_cselect_b32 {sKVm}, {sW1}, {sKVm}"]
    def pair():
        b(M0K); b(KLD); b(M0V); b(VLD)
        for s in ADV: b(s)
    NENT = 32 - NPI * SA - 6
    n14 = min(opt("n14", 3), NENT); n15 = min(opt("n15", 3), NENT - n14); nq = min(opt("nq", 3), NENT - n14 - n15, 9 - n14 - n15)
    npro = NENT - n14 - n15 - nq
    assert n14 <= 4 and n15 <= 4 and 0 <= npro <= 4, (n14, n15, nq, npro)
    def kv_step(n, extra):
        slots = [((0, 3), (0, 4), (0, 6), (0, 8), (0, 13)), ((0, 15), (0, 16), (0, 17), (0, 19), (1, 0)),
                 ((1, 8), (1, 9), (1, 11), (1, 13), (1, 14)), ((1, 15), (1, 16), (1, 17), (1, 18), (1, 19))]
        dm = {}; f = {k: list(v) for k, v in extra.items()}
        for a, k, c, v, e in slots[:n]:
            f.setdefault(a, []).append(M0K); dm[k] = KLD; f.setdefault(c, []).append(M0V); dm[v] = VLD; f.setdefault(e, []).extend(ADV)
        g_step(1, dm, f)
    kv_step(n14, ringf)
    b.wait(lg=0, vm=2*n14)
    kv_step(n15, {(0, 0): ["v_lshrrev_b32 v21, 5, v1"], (0, 1): ["v_lshlrev_b32 v21, 8, v21"], (0, 2): ["v_and_b32 v22, 15, v1"],
                  (0, 5): ["v_lshlrev_b32 v22, 4, v22"], (0, 7): ["v_lshrrev_b32 v23, 1, v1"], (0, 9): ["v_and_b32 v23, 8, v23"],
                  (0, 10): ["v_add3_u32 v21, v21, v22, v23"], (0, 11): [f"s_mul_i32 {sT2}, {sQH}, 20480"], (0, 12): [f"s_add_u32 {sT2}, {sT2}, {QEX}"],
                  (0, 14): [f"v_add_u32 v22, {sT2}, v{L16}"], (1, 1): [f"s_lshl_b32 {sT3}, {sKH}, 11"], (1, 2): [f"s_add_u32 {sT2}, {sT2}, {sT3}"],
                  (1, 3): [f"v_add_u32 v21, {sT2}, v21"], (1, 5): [f"s_lshl_b32 {sT3}, {sKH}, 14"],
                  (1, 6): [f"v_subrev_u32 v{XA[0]}, {sT3}, v{KA[0]}"], (1, 7): [f"v_subrev_u32 v{XA[1]}, {sT3}, v{KA[1]}"],
                  (1, 10): [f"v_subrev_u32 v{WA[0]}, {sT3}, v{KA[2]}"], (1, 12): [f"v_subrev_u32 v{WA[1]}, {sT3}, v{KA[3]}"]})
    b.wait(lg=0)
    b("s_barrier")
    i0 = len(b.L)
    def pack(t):
        a = ACC + t * 4
        for i in range(4): b(f"v_mul_f32 v{a+i}, {sCc}, v{a+i}")
        b(f"v_cvt_pk_bf16_f32 v{a}, v{a}, v{a+1}\nv_cvt_pk_bf16_f32 v{a+1}, v{a+2}, v{a+3}")
    def qwr(t):
        d, q = divmod(t, 5); a = ACC + t * 4
        b(f"ds_write_b64 v21, {vr(a,2)} offset:{q*4096+(d>>1)*1024+(d&1)*512}")
    mf = g_mfmas(1)
    for i in range(25):
        if i < 20: b(mf[i])
        if i == 0: b(f"buffer_load_dwordx2 {vr(NONV,2)}, v{ZR}, {SD}, 0 offen sc0 sc1")
        if i in (1, 9, 17)[:nq]: pair()
        if 0 <= i - 5 < 20: qwr(i - 5)
        if 0 <= i - 4 < 20: pack(i - 4)
    b.wait(lg=0)
    b("s_barrier")
    print("q pack estimate", estimate(b.L[i0:]))
    stamp(b, 3)
    def k_read(i): return f"ds_read_b128 {ar(KF+4*i,4)}, v{KA[i%4]} offset:{(i//4)*8192}"
    def v_read(j): return [f"ds_read_b64_tr_b16 {ar(VF+4*j+2*v,2)}, v{VA[j]} offset:{v*8192}" for v in range(2)]
    i0 = len(b.L)
    qr = [f"ds_read_b128 {ar(QF+(q*4+d)*4,4)}, v22 offset:{q*4096+d*1024}" for q in range(5) for d in range(4)]
    for d in range(4):
        b(f"ds_read_b128 {vr(64+4*d,4)}, v{(XA+WA)[d]}")
        b(qr.pop(0))
    for i in range(6): b(qr.pop(0))
    rest = qr + [k_read(i) for i in range(8)]
    for q in range(5):
        for d in range(4):
            b(f"{MF} {vr(80+4*q,4)}, {vr(64+4*d,4)}, {ar(QF+(q*4+d)*4,4)}, {'0' if d == 0 else vr(80+4*q,4)}")
            if rest: b(rest.pop(0))
    b("s_barrier")
    for i in range((npro + 1) // 2): pair()
    def maxfin(regs):
        for q in range(5): b(f"v_mov_b32 v{64+q}, v{regs[q]}")
        for q in range(5): b(f"v_permlane16_swap_b32 v{regs[q]}, v{64+q}")
        for q in range(5): b(f"v_max_f32 v{regs[q]}, v{regs[q]}, v{64+q}")
        for q in range(5): b(f"v_mov_b32 v{64+q}, v{regs[q]}")
        for q in range(5): b(f"v_permlane32_swap_b32 v{regs[q]}, v{64+q}")
        for q in range(5): b(f"v_max_f32 v{regs[q]}, v{regs[q]}, v{64+q}")
        for q in range(5):
            for i in range(4): b(f"v_sub_f32 v{NM+4*q+i}, 0, v{regs[q]}")
    for q in range(5): b(f"v_max3_f32 v{80+4*q}, v{80+4*q}, v{81+4*q}, v{82+4*q}")
    for q in range(5): b(f"v_max_f32 v{80+4*q}, v{80+4*q}, v{83+4*q}")
    maxfin([80 + 4*q for q in range(5)])
    for i in range(npro // 2): pair()
    b(f"s_mul_i32 {sT}, {sB}, 1310720\ns_mul_i32 {sT2}, {sKq}, 327680\ns_add_u32 {sT}, {sT}, {sT2}\ns_add_u32 s4, s20, {sT}\ns_addc_u32 s5, s21, 0")
    b(f"s_lshl_b32 {sT}, {sKq}, 21\ns_lshl_b32 {sT2}, {sHl}, 8\ns_add_u32 {sT}, {sT}, {sT2}\ns_add_u32 s8, s66, {sT}\ns_addc_u32 s9, s67, 0\ns_sub_u32 s10, 8388608, {sT}")
    b(f"v_lshrrev_b32 v21, 1, v1\nv_lshlrev_b32 v21, 13, v21\nv_and_b32 v22, 1, v1\nv_lshlrev_b32 v22, 7, v22")
    b(f"s_lshl_b32 {sT}, {sW}, 18\ns_lshl_b32 {sT2}, {sBl}, 11\ns_add_u32 {sT}, {sT}, {sT2}\nv_add3_u32 v{TCH}, v21, v22, {sT}")
    b.wait(lg=0)

    def col(n): return (0, 1, 0, 1, 2)[n % 5]
    def s_mfma(n, i):
        kt, d = i // 4, i % 4; q = n % 5
        dst = vr(SB[col(n)] + 4*kt, 4)
        return f"{MF} {dst}, {ar(KF+4*i,4)}, {ar(QF+(q*4+d)*4,4)}, {vr(NM+4*q,4) if d == 0 else dst}"
    def oreg(q, j): return vr(OK + (q*4+j)*4, 4) if j < 4 else ar(OS + (q*4+j-4)*4, 4)
    def p_mfma(n, j):
        q = n % 5
        if j == 8: return f"{MF} {vr(LA+4*q,4)}, {ar(ONES,4)}, {vr(PB[col(n)],4)}, {vr(LA+4*q,4)}"
        return f"{MF} {oreg(q,j)}, {ar(VF+4*j,4)}, {vr(PB[col(n)],4)}, {oreg(q,j)}"
    def v_exp(n, e): return f"v_exp_f32 v{SB[col(n)]+e}, v{SB[col(n)]+e}"
    def v_cvt(n, c): return f"v_cvt_pk_bf16_f32 v{PB[col(n)]+c}, v{SB[col(n)]+2*c}, v{SB[col(n)]+2*c+1}"
    NU = 40
    def slot(n, mem=None, sal=None, val=None):
        mem = mem or {}; sal = sal or {}; val = val or {}
        for p in range(17):
            if p < 16 and p % 2 == 0:
                if 0 <= n + 1 < NU: b(s_mfma(n + 1, p // 2))
            elif 0 <= n - 1 < NU: b(p_mfma(n - 1, p // 2))
            for s in mem.get(p, []): b(s)
            for s in sal.get(p, []):
                if callable(s): s()
                else: b(s)
            if 0 <= n < NU:
                if p % 2 == 0 and p < 16: b(v_exp(n, p // 2))
                if p % 4 == 3: b(v_cvt(n, p // 4))
            for s in val.get(p, []): b(s)
    b.label("L_p2entry")
    VR = [x for j in range(8) for x in v_read(j)]
    for i in range(8):
        b(s_mfma(0, i))
        b(VR[i])
    slot(0, {0: [VR[8]], 2: [VR[9]], 4: [VR[10]], 6: [VR[11]]})
    b(f"s_mov_b32 {sCnt}, 0")
    print("p2 prologue estimate", estimate(b.L[i0:]))
    stamp(b, 4)
    nd = lambda *ops: (lambda: need(b, ops))
    def merge(*ds):
        out = {}
        for d in ds:
            for k, v in d.items(): out.setdefault(k, []).extend(v)
        return out
    def pair_at(k, v):
        return ({k: [KLD], v: [VLD]}, {k - 1: [M0K], v - 1: [M0V], v + 1: [ADV[0]], v + 2: [ADV[1], WRAP[0]] if False else [ADV[1]]})
    def body(dma):
        m2 = {}; s2 = {}; m4 = {}; s4 = {}; s3x = {}; s5x = {}
        if dma:
            def put(m, s, k, v, nxt_s):
                m[k] = [KLD]; m[v] = [VLD]
                s.setdefault(k - 1, []).append(M0K); s.setdefault(k + 1, []).append(M0V); s.setdefault(v - 1, []).append(ADV[0])
                s.setdefault(v + 1, []).append(ADV[1])
                for pos, ins in nxt_s: pos[0].setdefault(pos[1], []).append(ins)
            if NPI == 3:
                put(m2, s2, 3 + 2, 13, [((s2, 15), WRAP[0]), ((s2, 16), WRAP[1])])
            else:
                put(m2, s2, 1, 5, [((s2, 7), WRAP[0]), ((s2, 7), WRAP[1])])
                put(m2, s2, 9, 13, [((s2, 15), WRAP[0]), ((s2, 16), WRAP[1])])
            put(m4, s4, 1, 5, [((s4, 7), WRAP[0]), ((s4, 7), WRAP[1])])
            put(m4, s4, 9, 13, [((s4, 15), WRAP[0]), ((s4, 16), WRAP[1])])
        elif TOUCH:
            m4[1] = [f"buffer_load_dword a{JUNK}, v{TCH}, {SW}, 0 offen"]
        slot(1, {1: [VR[12]], 3: [VR[13]], 5: [VR[14]], 7: [VR[15]]},
             {0: [nd(ar(VF, 12))], 6: [nd(ar(VF, 24))], 12: [nd(ar(VF, 28))], 14: [nd(ar(VF, 32))],
              2: [f"s_add_u32 {sT2}, {sPB}, 32768"], 4: [f"s_cmp_ge_u32 {sT2}, {LDS}"], 8: [f"s_cselect_b32 {sT2}, 0, {sT2}"],
              9: [f"s_sub_u32 {sDelta}, {sT2}, {sPB}"], 10: [f"s_mov_b32 {sPB}, {sT2}"]},
             {9: [va(KA[0]), va(KA[1])], 11: [va(KA[2])], 13: [va(KA[3]), va(VA[0])], 15: [va(VA[1])], 16: [va(VA[2]), va(VA[3])]})
        slot(2, m2, merge(s2, {} if dma else {14: [f"s_cmp_eq_u32 {sCnt}, 7"]}), {3: [va(VA[4])], 11: [va(VA[5])]})
        if not dma:
            b("s_cbranch_scc1 L_tail")
            body.exit_state = b.state()
        trace(b)
        pre = 2 if NPI == 3 else 4
        na = (64 - 2*NPI*SA) + 2*NPI*(SA-1) + pre - 8*(SA+1)
        assert na >= 4, na
        b.raw(f"s_waitcnt vmcnt({min(na, 12) if dma else (1 if TOUCH else 0)})")
        b("s_barrier")
        trace(b)
        slot(3, {2*i+1: [k_read(i)] for i in range(8)},
             {6: [f"s_add_u32 {sCnt}, {sCnt}, 1"], 16: [nd(ar(KF, 16))]}, {1: [va(VA[6])], 5: [va(VA[7])]})
        slot(4, m4, merge(s4, {3: [nd(ar(KF, 32))]}), {} if dma or not TOUCH else {5: [f"v_add_u32 v{TCH}, 0x100000, v{TCH}"]})
        slot(5, {1: VR[0:2], 3: [VR[2]], 5: [VR[3]], 7: [VR[4]], 9: VR[5:7], 11: [VR[7]], 13: VR[8:10], 15: [VR[10]], 16: [VR[11]]},
             {14: [f"s_cmp_lt_u32 {sCnt}, {SA}"]} if dma else {})
        b("s_cbranch_scc1 L_p2a" if dma else "s_branch L_p2b")
        b.vm = []
    b.vm = []
    for dma, lab in ((True, "L_p2a"), (False, "L_p2b")):
        save = b.L; b.L = []
        body(dma); st1 = b.state(); t1 = b.L
        b.L = []; body(dma); st2 = b.state(); t2 = b.L
        assert st1[0] == st2[0]
        if not STAMPS: assert t1 == t2, "loop not steady"
        print("p2 body estimate", estimate(t2, verbose=VERB))
        b.L = save
        if dma: b.raw(".p2align 3")
        b.label(lab)
        b.L += t2
    b.label("L_tail")
    b.set_state(body.exit_state)
    b.vm = []
    b("s_barrier")
    stamp(b, 5)
    i0 = len(b.L)
    EXL = 81920; EXF = 90112
    b(f"s_mul_i32 {sT}, {sW}, 20480\nv_add_u32 v21, {sT}, v{L16}")
    b(f"s_xor_b32 {sT2}, {sW}, 2\ns_mul_i32 {sT}, {sT2}, 20480\nv_add_u32 v22, {sT}, v{L16}")
    wr = lambda q: [f"ds_write_b128 v21, {ar(OS+(q*4+j)*4,4)} offset:{(q*4+j)*1024}" for j in range(4)]
    w01 = wr(0) + wr(1)
    slot(38, {1 + 2*i: [w01[i]] for i in range(8)})
    w2 = wr(2)
    slot(39, {9 + 2*i: [w2[i]] for i in range(4)})
    w3 = wr(3)
    slot(40, {9 + 2*i: [w3[i]] for i in range(4)})
    b(f"v_lshlrev_b32 v23, 2, v1\ns_mul_i32 {sT}, {sW}, 1280\ns_add_u32 {sT}, {sT}, {EXL}\nv_add_u32 v60, {sT}, v23")
    b(f"s_mul_i32 {sT}, {sT2}, 1280\ns_add_u32 {sT}, {sT}, {EXL}\nv_add_u32 v61, {sT}, v23")
    for s in wr(4): b(s)
    for q in range(5): b(f"ds_write_b32 v60, v{LA+4*q} offset:{q*256}")
    b(f"v_add_f32 v62, v{LA}, v{LA+4}\nv_add_f32 v63, v{LA+8}, v{LA+12}\nv_add_f32 v62, v62, v{LA+16}\nv_add_f32 v62, v62, v63")
    thr = f32bits(2.0 ** 24) if not FORCE_SLOW else f32bits(0.0)
    b(f"v_cmp_nge_f32 vcc, {thr}, v62")
    b(f"s_cmp_lg_u64 vcc, 0\ns_cselect_b32 {sT}, 1, 0\nv_mov_b32 v62, {sT}")
    b(f"s_lshl_b32 {sT}, {sW}, 2\ns_add_u32 {sT}, {sT}, {EXF}\nv_mov_b32 v63, {sT}")
    b("ds_write_b32 v63, v62")
    b(f"v_mov_b32 v63, {EXF}")
    b.wait(lg=0)
    b("s_barrier")
    b(f"ds_read_b128 {vr(NM,4)}, v63")
    for q in range(5): b(f"ds_read_b32 v{NM+4+q}, v61 offset:{q*256}")
    for i in range(20): b(f"ds_read_b128 {vr(24+4*i,4)}, v22 offset:{i*1024}")
    b(f"v_or_b32 v{NM}, v{NM}, v{NM+1}\nv_or3_b32 v{NM}, v{NM}, v{NM+2}, v{NM+3}")
    b(f"v_readfirstlane_b32 {sT}, v{NM}")
    b(f"s_andn2_b32 {sT}, {sT}, {sPass}\ns_cmp_lg_u32 {sT}, 0")
    b("s_cbranch_scc1 L_slow")
    for q in range(5): b(f"v_add_f32 v{LA+4*q}, v{LA+4*q}, v{NM+4+q}")
    for q in range(5): b(f"v_rcp_f32 v{LA+4*q}, v{LA+4*q}")
    for q in range(5):
        for pr in range(2):
            o = OK + (q*4+2*pr)*4; r = 24 + (q*4+2*pr)*4
            for i in range(0, 8, 2): b(f"v_pk_add_f32 {vr(o+i,2)}, {vr(o+i,2)}, {vr(r+i,2)}")
            for i in range(0, 8, 2): b(f"v_pk_mul_f32 {vr(o+i,2)}, {vr(o+i,2)}, {vr(LA+4*q,2)} op_sel_hi:[1,0]")
            for i in range(4): b(f"v_cvt_pk_bf16_f32 v{o+i}, v{o+2*i}, v{o+2*i+1}")
            vv, off = (L16, q * 1024) if q < 4 else (L16B, 0)
            b(f"buffer_store_dwordx4 {vr(o,4)}, v{vv}, {SO}, {sO1 if pr else sO0} offen offset:{off} {HST}")
    print("tail estimate", estimate(b.L[i0:]))
    stamp(b, 6)
    load_order(SIG3, mask=False)
    b(f"v_add_u32 v{VB[0]}, {sW4}, v{L16}\nv_add_u32 v{VB[4]}, {sM5}, v{L16}")
    for q in range(1, 4): b(f"v_mov_b32 v{VB[q]}, v{VB[0]}")
    b("v_lshrrev_b32 v21, 4, v1\nv_lshlrev_b32 v22, 1, v21\nv_and_b32 v23, 15, v1\nv_xor_b32 v22, v22, v23\nv_lshlrev_b32 v22, 4, v22")
    b(f"v_lshlrev_b32 v23, 11, v21\nv_add_u32 v23, v23, v22\nv_xor_b32 v22, 128, v23\ns_lshl_b32 {sT}, {sW}, 15")
    for q in range(4):
        b(f"s_add_u32 {sT2}, {sT}, {q*(8192-1024)}\nv_add_u32 v{VW[q]}, {sT2}, v{22 if q & 1 else 23}")
    gemm_zero()
    b(f"s_mov_b32 {sRB}, {ST0 + 2*STSZ}\ns_mov_b32 {sCnt}, 0\ns_mov_b32 {sDB}, {ST0 + STSZ}")
    b(f"s_mul_i32 {sT}, {sQH}, 5120\ns_add_u32 {sT}, {sT}, {sRB}\nv_add_u32 v{XA[0]}, {sT}, v{L16}\nv_add_u32 v{XA[1]}, 10240, v{XA[0]}")
    b(f"v_lshrrev_b32 v21, 2, v1\nv_and_b32 v22, 7, v21\ns_lshl_b32 {sT}, {sKq}, 1\ns_add_u32 {sT}, {sT}, {sKH}\nv_xor_b32 v22, {sT}, v22\nv_lshlrev_b32 v22, 5, v22")
    b("v_lshlrev_b32 v21, 8, v21\nv_and_b32 v23, 3, v1\nv_lshlrev_b32 v23, 3, v23\nv_add3_u32 v22, v22, v21, v23")
    b(f"s_add_u32 {sT}, {sRB}, 20480")
    for d in range(4): b(f"v_xor_b32 v{WA[d]}, {d*64}, v22\nv_add_u32 v{WA[d]}, {sT}, v{WA[d]}")
    SPIN = 200000
    b(f"s_mov_b32 {sT3}, 0")
    b.label("L_non")
    b.wait(vm=0)
    b(f"v_readfirstlane_b32 s64, v{NONV}\nv_readfirstlane_b32 s65, v{NONV+1}")
    b("s_cmp_lg_u32 s64, 0")
    b("s_cbranch_scc1 L_nonok")
    b(f"buffer_load_dwordx2 {vr(NONV,2)}, v{ZR}, {SD}, 0 offen sc0 sc1")
    b(f"s_add_u32 {sT3}, {sT3}, 1\ns_cmp_lt_u32 {sT3}, {SPIN}")
    b("s_cbranch_scc1 L_non")
    b.label("L_nonok")
    b.vm = []
    stamp(b, 7)
    b(f"s_lshl_b32 {sT}, {sB}, 2\ns_add_u32 {sT}, {sT}, {sKq}\ns_lshl_b32 {sT}, {sT}, 8\ns_add_u32 {sO0}, {sT}, {FLG1}")
    b(f"s_lshl_b32 {sT}, {sHl}, 2\ns_add_u32 {sT}, {sT}, {sW}\ns_lshl_b32 {sT}, {sT}, 3\ns_add_u32 {sT}, {sT}, {sO0}")
    b("s_mov_b64 exec, 1")
    b(f"buffer_store_dwordx2 {vr(NONV,2)}, v{ZR}, {SO}, {sT} offen {HST}")
    b("s_mov_b64 exec, -1")
    b("s_barrier")
    DW3, DX3 = dma_lists(HLD)
    for st in range(2):
        base = ST0 + ((st+2)%3)*STSZ
        b(f"s_bfe_u32 {sT}, s58, {(4 << 16) | (4*st)}\ns_add_u32 m0, {sW4}, {base+20480}\ns_lshl_b32 {sWO}, {sT}, 17")
        for x in DW3: b(x)
    def poll(lab, vaddr, soff):
        b(f"s_mov_b32 {sT3}, 0")
        b.label(lab)
        b(f"buffer_load_dwordx2 v[22:23], v{vaddr}, {SO}, {soff} offen {HLD}")
        b.wait(vm=0)
        b(f"v_cmp_ne_u64 vcc, {sNon}, v[22:23]")
        b("s_cbranch_vccz " + lab + "ok")
        if SLEEP: b(f"s_sleep {SLEEP}")
        b(f"s_add_u32 {sT3}, {sT3}, 1\ns_cmp_lt_u32 {sT3}, {SPIN}")
        b("s_cbranch_scc1 " + lab)
        b.label(lab + "ok")
    b("v_and_b32 v21, 31, v1\nv_lshlrev_b32 v21, 3, v21")
    if ONEPOLL:
        b(f"s_cmp_lg_u32 {sW}, 0")
        b("s_cbranch_scc1 L_poll1ok")
    poll("L_poll1", 21, sO0)
    if ONEPOLL: b("s_barrier")
    stamp(b, 8)
    for st in range(2):
        base = ST0 + ((st+2)%3)*STSZ
        b(f"s_and_b32 {sT}, s58, 15\ns_add_u32 m0, {sW4}, {base}\ns_mul_i32 {sXO}, {sT}, 20480")
        for x in DX3[:4]: b(x)
        b(f"s_add_u32 m0, {sM5}, {base}\ns_lshr_b64 s[58:59], s[58:59], 4")
        b(DX3[4])
    b.raw("s_waitcnt vmcnt(5)")
    stamp(b, 9)
    b.vm = []
    b.raw(".p2align 3")
    b.label("L_p3")
    g_step(3, dict(zip(DG, DW3 + DX3)), loopf(3))
    b.wait(lg=0, vm=9)
    b("s_cbranch_vccnz L_p3")
    b.vm = []
    g_step(3, {}, ringf)
    b.wait(lg=0, vm=0)
    sPs = ["s72", "s73", "s74", "s75"]; sPl = ["s76", "s77", "s78", "s79"]
    pf = [f"s_lshl_b32 {sT}, {sB}, 3", f"s_add_u32 {sT}, {sT}, {sHl}", f"s_lshl_b32 {sO1}, {sT}, 7", f"s_mul_i32 {sT}, {sT}, {16*20480}",
          f"s_mul_i32 {sT2}, {sW}, 5120", f"s_add_u32 {sT}, {sT}, {sT2}", f"s_add_u32 {sT}, {sT}, {PART}"]
    for d in (1, 2, 3):
        pf += [f"s_xor_b32 {sT2}, {sKq}, {d}", f"s_lshl_b32 {sT3}, {sT2}, 2", f"s_add_u32 {sT3}, {sT3}, {sKq}", f"s_mul_i32 {sT3}, {sT3}, 20480",
               f"s_add_u32 {sPs[d]}, {sT}, {sT3}",
               f"s_lshl_b32 {sT3}, {sKq}, 2", f"s_add_u32 {sT3}, {sT3}, {sT2}", f"s_mul_i32 {sT3}, {sT3}, 20480", f"s_add_u32 {sPl[d]}, {sT}, {sT3}"]
    pos = [(u, i) for u in range(2) for i in range(20) if (u, i) not in ((0, 18), (1, 4))]
    g_step(3, {}, {p: [x] for p, x in zip(pos, pf)})
    assert len(pf) <= len(pos)
    b.wait(lg=0)
    stamp(b, 10)
    mf = g_mfmas(1, (1, 2, 3, 0))
    def pst(t):
        d, q = 1 + t // 5, t % 5
        vv, off = (L16, q * 1024) if q < 4 else (L16B, 0)
        return f"buffer_store_dwordx4 {vr(ACC+(d*5+q)*4,4)}, v{vv}, {SO}, {sPs[d]} offen offset:{off} {HST}"
    PK = 104
    if PBF: b(f"v_lshrrev_b32 v{L16B}, 1, v{L16}")
    for i in range(21):
        if i < 20: b(mf[i])
        if not PBF:
            if 5 <= i < 20: b(pst(i - 5))
            continue
        t = i - 6
        if 0 <= t < 15:
            d, q = 1 + t // 5, t % 5; pk = PK + (d-1)*12
            if q in (1, 3): b(f"buffer_store_dwordx4 {vr(pk+2*(q-1),4)}, v{L16}, {SO}, {sPs[d]} offen offset:{(q//2)*1024} {HST}")
            if q == 4: b(f"buffer_store_dwordx2 {vr(pk+8,2)}, v{L16B}, {SO}, {sPs[d]} offen offset:2048 {HST}")
        t = i - 5
        if 0 <= t < 15:
            d, q = 1 + t // 5, t % 5; pk = PK + (d-1)*12 + 2*q; a = ACC + (d*5+q)*4
            b(f"v_cvt_pk_bf16_f32 v{pk}, v{a}, v{a+1}\nv_cvt_pk_bf16_f32 v{pk+1}, v{a+2}, v{a+3}")
    b(f"s_lshl_b32 {sT}, {sW}, 5\ns_add_u32 {sO1}, {sO1}, {sT}\ns_add_u32 {sO1}, {sO1}, {FLG2}\ns_lshl_b32 {sT}, {sKq}, 3\ns_add_u32 {sT}, {sT}, {sO1}")
    b(f"s_mul_i32 {sT2}, {sB}, 327680\ns_add_u32 s4, s68, {sT2}\ns_addc_u32 s5, s69, 0")
    b("v_and_b32 v21, 3, v1\nv_lshlrev_b32 v21, 3, v21")
    b(f"v_and_b32 v2, 15, v1\nv_lshlrev_b32 v2, 11, v2\nv_lshrrev_b32 v3, 4, v1\nv_lshlrev_b32 v3, 3, v3\nv_add_u32 v2, v2, v3")
    b(f"s_mul_i32 {sT2}, {sQH}, 163840\ns_lshl_b32 {sT3}, {sHl}, 8\ns_add_u32 {sT2}, {sT2}, {sT3}\ns_lshl_b32 {sT3}, {sKq}, 6\ns_add_u32 {sT2}, {sT2}, {sT3}")
    b(f"s_lshl_b32 {sT3}, {sKH}, 5\ns_add_u32 {sXO}, {sT2}, {sT3}")
    b.wait(vm=0)
    stamp(b, 11)
    b("s_mov_b64 exec, 1")
    b(f"buffer_store_dwordx2 {vr(NONV,2)}, v{ZR}, {SO}, {sT} offen {HST}")
    b("s_mov_b64 exec, -1")
    poll("L_poll2", 21, sO1)
    stamp(b, 12)
    if PBF:
        for h in range(3):
            for d in (1, 2, 3):
                pk = PK + (d-1)*12
                if h < 2: b(f"buffer_load_dwordx4 {vr(pk+4*h,4)}, v{L16}, {SO}, {sPl[d]} offen offset:{h*1024} {HLD}")
                else: b(f"buffer_load_dwordx2 {vr(pk+8,2)}, v{L16B}, {SO}, {sPl[d]} offen offset:2048 {HLD}")
    else:
        for q in range(5):
            for d in (1, 2, 3):
                vv, off = (L16, q * 1024) if q < 4 else (L16B, 0)
                b(f"buffer_load_dwordx4 {vr(ACC+(d*5+q)*4,4)}, v{vv}, {SO}, {sPl[d]} offen offset:{off} {HLD}")
    for q in range(5):
        a = ACC + q * 4
        if PBF:
            for d in (1, 2, 3):
                pk = PK + (d-1)*12 + 2*q
                for i in range(2):
                    b(f"v_lshlrev_b32 v{a+20*d+2*i}, 16, v{pk+i}\nv_and_b32 v{a+20*d+2*i+1}, 0xffff0000, v{pk+i}")
        for i in (0, 2): b(f"v_pk_add_f32 {vr(a+i,2)}, {vr(a+i,2)}, {vr(a+20+i,2)}")
        for i in (0, 2): b(f"v_pk_add_f32 {vr(a+40+i,2)}, {vr(a+40+i,2)}, {vr(a+60+i,2)}")
        for i in (0, 2): b(f"v_pk_add_f32 {vr(a+i,2)}, {vr(a+i,2)}, {vr(a+40+i,2)}")
        b(f"v_cvt_pk_bf16_f32 v{a}, v{a}, v{a+1}\nv_cvt_pk_bf16_f32 v{a+1}, v{a+2}, v{a+3}")
        b(f"buffer_store_dwordx2 {vr(a,2)}, v2, {SX}, {sXO} offen")
        if q < 4: b(f"s_add_u32 {sXO}, {sXO}, 32768")
    if STAMPS:
        stamp(b, 13)
        b.wait(vm=0)
        stamp(b, 14)
        b(f"s_cmp_lg_u32 {sW}, 0")
        b("s_cbranch_scc1 L_nost")
        b(f"v_lshlrev_b32 v3, 2, v1\ns_lshl_b32 {sT}, s2, 7\ns_add_u32 {sT}, {sT}, {STAMP_OFF}\ns_mov_b32 exec_hi, 0")
        b(f"buffer_store_dword v254, v3, {SO}, {sT} offen")
        b("s_mov_b64 exec, -1")
        b.label("L_nost")
        if TRACE:
            b(f"s_lshl_b32 {sT}, s2, 2\ns_add_u32 {sT}, {sT}, {sW}\ns_lshl_b32 {sT}, {sT}, 9\ns_add_u32 {sT}, {sT}, {STAMP_OFF + (1 << 20)}")
            b("v_lshlrev_b32 v3, 2, v1")
            b(f"buffer_store_dword v0, v3, {SO}, {sT} offen")
    b.label("L_end")
    b("s_endpgm")

    b.label("L_aux")
    b.lg = []; b.vm = []
    pair(); pair()
    b.wait(lg=0, vm=13)
    b("s_branch L_auxback")

    b.label("L_slow")
    b.wait(lg=0, vm=0)
    b("s_barrier")
    b(f"s_mov_b32 {sPass}, 1")
    b("v_and_b32 v21, 15, v1\nv_lshlrev_b32 v21, 8, v21\nv_lshrrev_b32 v22, 4, v1\nv_lshlrev_b32 v22, 4, v22\nv_add_u32 v21, v21, v22")
    for q in range(5): b(f"v_mov_b32 v{72+q}, 0xff800000")
    b(f"s_mov_b32 {sCnt}, 0")
    b.label("L_slowloop")
    for d in range(4): b(f"buffer_load_dwordx4 {vr(24+4*d,4)}, v21, {SK}, {sCnt} offen offset:{d*64}")
    b.wait(vm=0)
    for q in range(5):
        for d in range(4):
            b(f"{MF} {vr(80+4*q,4)}, {vr(24+4*d,4)}, {ar(QF+(q*4+d)*4,4)}, {'0' if d == 0 else vr(80+4*q,4)}")
    for q in range(5):
        b(f"v_max3_f32 v{72+q}, v{72+q}, v{80+4*q}, v{81+4*q}\nv_max3_f32 v{72+q}, v{72+q}, v{82+4*q}, v{83+4*q}")
    b(f"s_add_u32 {sCnt}, {sCnt}, 4096\ns_cmp_lt_u32 {sCnt}, 131072")
    b("s_cbranch_scc1 L_slowloop")
    maxfin([72 + q for q in range(5)])
    p2_init()
    b.label("L_slowkv")
    pair()
    b(f"s_cmp_lt_u32 {sKVs}, {(32 - NPI*SA) * 4096}")
    b("s_cbranch_scc1 L_slowkv")
    b.wait(vm=0)
    b("s_barrier")
    for i in range(8): b(k_read(i))
    b.wait(lg=0)
    b("s_branch L_p2entry")
    return b.L

def main():
    k, n = hazard_pass(gen(), verbose=VERB)
    head = ["; Fused MHA block, one workgroup per (batch, head): Q projection, attention, then a quarter (in k) of the output",
            "; projection; workgroups hand O and partial sums to each other through d_ws. Written by dev/gen4.py.",
            "; @launch grid=(256,1,1) block=(256,1,1) lds=163840",
            '.amdgcn_target "amdgcn-amd-amdhsa--gfx950"', ".text", f".globl {NAME}"]
    tail = ['.section .rodata,"a"', ".p2align 6", f".amdhsa_kernel {NAME}", "  .amdhsa_next_free_vgpr 488", "  .amdhsa_next_free_sgpr 102",
            "  .amdhsa_accum_offset 256", "  .amdhsa_group_segment_fixed_size 0", "  .amdhsa_kernarg_size 64", "  .amdhsa_user_sgpr_count 2",
            "  .amdhsa_user_sgpr_kernarg_segment_ptr 1", "  .amdhsa_system_sgpr_workgroup_id_x 1", ".end_amdhsa_kernel"]
    fmt = lambda l: l if l.endswith(":") or l.startswith((".", ";")) else "    " + l
    open(sys.argv[1], "w").write("\n".join(head + [fmt(l) for l in k] + tail) + "\n")
    print(f"nops inserted: {n}; lines {len(k)}")
main()
```

```python
import sys, math, struct
from asmlib import B, hazard_pass, need, estimate

P = dict(kv.split("=") for kv in sys.argv[2:])
def opt(k, d): return type(d)(P.get(k, d))
STAMPS = opt("stamps", 0); TRACE = opt("trace", 0); VERB = bool(opt("v", 0))
KVFL = opt("kvfl", "nt").replace("+", " ")
HST = opt("hst", "sc0+sc1").replace("+", " ")
HLD = opt("hld", "sc0+sc1").replace("+", " ")
FORCE_SLOW = opt("slow", 0)
SIG = opt("sig", "rot"); SIG3 = opt("sig3", "rot"); AUXT = opt("auxt", "lead")
NPI = opt("npi", 3); SA = opt("sa", 5)
TOUCH = opt("touch", 1)
SLEEP = opt("sleep", 4); ONEPOLL = opt("onepoll", 1); PBF = opt("pbf", 1)
NAME = "standalone__mha_block_cached__near_ridge_kernel"
STAMP_OFF = 200 << 20; NST = 16
TIMER = "s_memtime" if STAMPS == 2 else "s_memrealtime"
PART = 16 << 20; FLG1 = 40 << 20; FLG2 = FLG1 + 65536; WSREC = FLG2 + 65536

def vr(a, n=1, k='v'): return f"{k}{a}" if n == 1 else f"{k}[{a}:{a+n-1}]"
def ar(a, n=1): return vr(a, n, 'a')
def f32bits(x): return "0x%08x" % struct.unpack("<I", struct.pack("<f", x))[0]

def stamp(b, i):
    if STAMPS:
        b.wait(lg=0)
        b.raw(f"{TIMER} s[96:97]"); b.raw("s_waitcnt lgkmcnt(0)")
        b.raw(f"v_writelane_b32 v254, s96, {2*i}"); b.raw(f"v_writelane_b32 v254, s97, {2*i+1}")
def trace(b):
    if TRACE:
        b.wait(lg=0)
        for s in ("s_memtime s[96:97]", "s_waitcnt lgkmcnt(0)", "s_sub_u32 s96, s96, s98", "s_mov_b32 s97, m0", "s_mov_b32 m0, s100",
                  "v_writelane_b32 v0, s96, m0", "s_add_u32 s100, s100, 1", "s_mov_b32 m0, s97"): b.raw(s)

def order(kind, j):
    if kind == "seq": return list(range(16)), [2, 6, 10]
    if kind == "xor": return [t ^ j for t in range(16)], [4, 8, 12]
    o = []; lead = []
    if kind == "rot":
        for t in range(16):
            if t == 0: o.append(j)
            elif t % 4 == j and t + 3 < 16: o.append(t + 3); lead.append(t)
            else: o.append([c for c in range(16) if c not in o and (c < 4 or (c - 3) < t) and not (c >= 4 and (c - 3) % 4 == j)][0])
    elif kind == "rot2":
        for t in range(16):
            if t == 0: o.append(0)
            elif t == 1: o.append(1 + j)
            elif (t - 1) % 4 == j and t + 3 < 16: o.append(t + 3); lead.append(t)
            else: o.append([c for c in range(16) if c not in o and (c < 5 or (c - 3) < t) and not (c >= 5 and (c - 4) % 4 == j)][0])
    assert sorted(o) == list(range(16)), o
    lead = [t for t in lead if t >= 2][:3]
    while len(lead) < 3: lead.append(lead[-1] + 2)
    return o, lead
def tables(kind):
    T = []
    for j in range(4):
        o, lead = order(kind, j)
        if AUXT != "lead": lead = [int(v) + 2 for v in AUXT.split(".")]
        val = sum(c << (4 * t) for t, c in enumerate(o))
        T.append((val & 0xffffffff, val >> 32, sum(1 << (t - 1) for t in lead)))
    return T

def gen():
    b = B()
    SX, SW, SK, SV, SO, SD = "s[4:7]", "s[8:11]", "s[12:15]", "s[16:19]", "s[20:23]", "s[24:27]"
    sW, sB, sH, sCnt = "s28", "s29", "s30", "s31"
    sRB, sDB, sDelta, sMask = "s32", "s33", "s34", "s35"
    sXO, sWO, sMX, sMW, sM5, sT, sT2, sT3 = "s36", "s37", "s38", "s39", "s40", "s41", "s42", "s43"
    sW4, sW1, sPB, sKVm, sKVs, sPass, sO0, sO1, sCls = "s44", "s45", "s46", "s47", "s48", "s49", "s50", "s51", "s52"
    sCc, sQH, sKH = "s53", "s56", "s57"
    sBl, sHl, sKq = "s60", "s61", "s62"
    sNon = "s[64:65]"
    XA = [2, 3]; WA = [4, 5, 6, 7]; VB = [8, 9, 10, 11, 12]; VW = [13, 14, 15, 16]; KVW, NONV, L16 = 17, 18, 20
    ACC = 24; OK = 104; KA = [184, 185, 186, 187]; VA = list(range(188, 196)); NM = 196; LA = 216; L16B = 236; TCH = 237
    ZR = 240
    SB = [24, 32, 40]; PB = [48, 52, 56]
    OS, QF, KF, VF, ONES, JUNK = 0, 80, 160, 192, 224, 228
    AF = [80, 96]; BF = [112, 132]
    ST0 = 53248; STSZ = 36864; LDS = 163840; QEX = 122880
    MF = "v_mfma_f32_16x16x32_bf16"

    b.raw(".p2align 8")
    b.raw(f".type {NAME},@function")
    b.label(NAME)
    b("s_cmp_ge_u32 s2, 256")
    b("s_cbranch_scc1 L_end")
    b.track = False
    b("s_load_dwordx4 s[4:7], s[0:1], 0")
    b("s_load_dwordx4 s[8:11], s[0:1], 16")
    b("s_load_dwordx4 s[68:71], s[0:1], 40")
    b("s_load_dwordx2 s[66:67], s[0:1], 32")
    b("s_load_dwordx2 s[20:21], s[0:1], 56")
    b("s_memrealtime s[64:65]")
    if STAMPS: b.raw(f"{TIMER} s[94:95]")
    if TRACE: b.raw("s_memtime s[98:99]"); b.raw("s_mov_b32 s100, 0")
    b.track = True
    b("v_and_b32 v1, 63, v0\nv_lshrrev_b32 v21, 6, v0")
    b(f"s_and_b32 {sB}, s2, 1\ns_lshl_b32 {sB}, {sB}, 2\ns_lshr_b32 {sT}, s2, 3\ns_and_b32 {sBl}, {sT}, 3\ns_add_u32 {sB}, {sB}, {sBl}")
    b(f"v_readfirstlane_b32 {sW}, v21")
    b(f"s_lshr_b32 {sKq}, s2, 1\ns_and_b32 {sKq}, {sKq}, 3\ns_lshl_b32 {sH}, {sKq}, 3\ns_lshr_b32 {sHl}, {sT}, 2\ns_add_u32 {sH}, {sH}, {sHl}")
    b(f"s_add_u32 {sCls}, {sBl}, {sHl}\ns_and_b32 {sCls}, {sCls}, 3")
    def load_order(kind, mask=True):
        T = tables(kind)
        b(f"s_mov_b32 s58, {T[0][0]}\ns_mov_b32 s59, {T[0][1]}")
        if mask: b(f"s_mov_b32 {sMask}, {T[0][2]}")
        for j in (1, 2, 3):
            b(f"s_cmp_eq_u32 {sCls}, {j}\ns_cselect_b32 s58, {T[j][0]}, s58\ns_cselect_b32 s59, {T[j][1]}, s59")
            if mask: b(f"s_cselect_b32 {sMask}, {T[j][2]}, {sMask}")
    load_order(SIG)
    b(f"s_lshl_b32 {sW4}, {sW}, 12\ns_lshl_b32 {sW1}, {sW}, 10\ns_and_b32 {sQH}, {sW}, 1\ns_lshr_b32 {sKH}, {sW}, 1")
    b("v_lshrrev_b32 v21, 4, v1")
    b("v_and_b32 v22, 7, v1\nv_xor_b32 v22, v22, v21\nv_lshlrev_b32 v22, 4, v22")
    b("v_lshrrev_b32 v23, 3, v1\nv_lshlrev_b32 v23, 11, v23\nv_add_u32 v22, v22, v23\nv_xor_b32 v23, 64, v22")
    b(f"s_lshl_b32 {sT}, {sW}, 16")
    for q in range(4):
        b(f"s_add_u32 {sT2}, {sT}, {q*(16384-1024)}\nv_add_u32 v{VB[q]}, {sT2}, v{23 if q & 1 else 22}")
    b(f"s_lshl_b32 {sT}, {sQH}, 6\nv_xor_b32 v{VB[4]}, {sT}, v22\ns_lshl_b32 {sT}, {sW}, 14\ns_add_u32 {sT}, {sT}, {16*16384}\nv_add_u32 v{VB[4]}, {sT}, v{VB[4]}")
    b("v_lshlrev_b32 v22, 1, v21\nv_and_b32 v23, 15, v1\nv_xor_b32 v22, v22, v23\nv_lshlrev_b32 v22, 4, v22")
    b(f"v_lshlrev_b32 v23, 13, v21\nv_add_u32 v23, v23, v22\nv_xor_b32 v{L16}, 128, v23")
    b(f"s_lshl_b32 {sT}, {sW}, 17")
    for q in range(4):
        b(f"s_add_u32 {sT2}, {sT}, {q*(32768-1024)}\nv_add_u32 v{VW[q]}, {sT2}, v{L16 if q & 2 else 23}")
    b(f"s_add_u32 {sM5}, {sW1}, 16384")
    b(f"s_lshl_b32 {sT}, {sB}, 5\ns_add_u32 {sT}, {sT}, {sH}\ns_lshl_b32 {sT}, {sT}, 17\ns_lshl_b32 {sT2}, {sH}, 8\ns_mul_i32 {sT3}, {sB}, 327680")
    b.raw("s_waitcnt lgkmcnt(0)")
    b(f"s_add_u32 s12, s6, {sT}\ns_addc_u32 s13, s7, 0")
    b(f"s_add_u32 s16, s8, {sT}\ns_addc_u32 s17, s9, 0")
    b(f"s_add_u32 s8, s10, {sT2}\ns_addc_u32 s9, s11, 0\ns_sub_u32 s10, 8388608, {sT2}\ns_mov_b32 s11, 0x20000")
    b(f"s_add_u32 s4, s4, {sT3}\ns_addc_u32 s5, s5, 0\ns_mov_b32 s6, 327680\ns_mov_b32 s7, 0x20000")
    def dma_lists(fl=""):
        DW = [f"buffer_load_dwordx4 v{VW[q]}, {SW}, {sWO} offen offset:{q*1024} lds" for q in range(4)]
        DX = [f"buffer_load_dwordx4 v{VB[q]}, {SX}, {sXO} offen offset:{q*1024} {fl} lds" for q in range(4)] + \
             [f"buffer_load_dwordx4 v{VB[4]}, {SX}, {sXO} offen {fl} lds"]
        return DW, DX
    DW, DX = dma_lists()
    for st in range(2):
        base = ST0 + ((st+2)%3)*STSZ
        b(f"s_and_b32 {sT}, s58, 15\ns_add_u32 m0, {sW4}, {base+20480}\ns_lshl_b32 {sWO}, {sT}, 19")
        for x in DW: b(x)
        b(f"s_add_u32 m0, {sW4}, {base}\ns_lshl_b32 {sXO}, {sT}, 7")
        for x in DX[:4]: b(x)
        b(f"s_add_u32 m0, {sM5}, {base}\ns_lshr_b64 s[58:59], s[58:59], 4")
        b(DX[4])
    b.vm = []
    if STAMPS: b.raw("v_writelane_b32 v254, s94, 0"); b.raw("v_writelane_b32 v254, s95, 1")
    b("s_mov_b32 s14, 131072\ns_mov_b32 s15, 0x20000\ns_mov_b32 s18, 131072\ns_mov_b32 s19, 0x20000")
    b("s_mov_b32 s24, s70\ns_mov_b32 s25, s71\ns_mov_b32 s26, 256\ns_mov_b32 s27, 0x20000")
    b(f"s_mov_b32 s22, {268435456 if STAMPS else WSREC}\ns_mov_b32 s23, 0x20000")
    b(f"s_mov_b32 {sRB}, {ST0 + 2*STSZ}\ns_mov_b32 {sCnt}, 0\ns_mov_b32 {sPass}, 0\ns_mov_b32 {sDB}, {ST0 + STSZ}")
    for i in range(4): b(f"v_mov_b32 v{ZR+i}, 0")
    b(f"s_or_b32 {sT}, s2, {sW}\ns_cmp_lg_u32 {sT}, 0")
    b("s_cbranch_scc1 L_nonon")
    b(f"s_or_b32 s64, s64, 1\nv_mov_b32 v24, s64\nv_mov_b32 v25, s65")
    b(f"buffer_store_dwordx2 v[24:25], v{ZR}, {SD}, 0 offen sc0 sc1")
    b.label("L_nonon")
    b.vm = []
    b("v_lshlrev_b32 v23, 8, v21\nv_add_u32 v22, v22, v23")
    b(f"s_lshl_b32 {sT}, {sQH}, 7\nv_xor_b32 v{KVW}, {sT}, v22\nv_add_u32 v{KVW}, {sW1}, v{KVW}")
    b(f"v_lshlrev_b32 v{L16}, 4, v1\nv_add_u32 v{L16B}, 4096, v{L16}")
    b("v_and_b32 v26, 15, v1\nv_lshrrev_b32 v27, 1, v26\nv_xor_b32 v27, v27, v21\nv_lshlrev_b32 v27, 4, v27\nv_lshlrev_b32 v26, 7, v26\nv_add_u32 v27, v27, v26")
    b(f"s_mul_i32 {sT}, {sQH}, 10240\ns_add_u32 {sT}, {sT}, {sRB}")
    for u in range(2): b(f"v_xor_b32 v{XA[u]}, {u*64}, v27\nv_add_u32 v{XA[u]}, {sT}, v{XA[u]}")
    b("v_lshrrev_b32 v26, 2, v1\nv_and_b32 v27, 7, v26\nv_and_b32 v26, 3, v26")
    b(f"s_lshl_b32 {sT}, {sKH}, 2\nv_xor_b32 v27, {sT}, v27\nv_lshlrev_b32 v27, 5, v27")
    b("v_lshlrev_b32 v28, 3, v21\nv_add_u32 v28, v28, v26\nv_lshlrev_b32 v28, 8, v28")
    b("v_and_b32 v29, 3, v1\nv_lshlrev_b32 v29, 3, v29\nv_add3_u32 v28, v28, v27, v29")
    b(f"s_add_u32 {sT}, {sRB}, 20480")
    for d in range(4): b(f"v_xor_b32 v{WA[d]}, {d*32}, v28\nv_add_u32 v{WA[d]}, {sT}, v{WA[d]}")
    def zero(r):
        big = int(r.split(":")[1][:-1]) - int(r.split("[")[1].split(":")[0]) == 15
        b(f"{'v_mfma_f32_32x32x16_bf16' if big else MF} {r}, {vr(ZR,4)}, {vr(ZR,4)}, 0")
    def gemm_zero():
        for i in range(5): zero(vr(ACC+16*i, 16))
        zero(ar(AF[1], 16)); zero(ar(BF[1], 16)); zero(ar(BF[1]+16, 4))
    gemm_zero()
    b(f"s_mul_i32 {sT}, {sB}, 1310720\ns_lshl_b32 {sT2}, {sH}, 1\ns_add_u32 {sT2}, {sT2}, {sKH}\ns_mul_i32 {sT2}, {sT2}, 20480\ns_add_u32 {sT}, {sT}, {sT2}")
    b(f"s_mul_i32 {sT2}, {sQH}, 5120\ns_add_u32 {sO0}, {sT}, {sT2}\ns_add_u32 {sO1}, {sO0}, 10240")
    b(f"s_mov_b32 {sCc}, {f32bits(math.log2(math.e) / math.sqrt(128.0))}")
    def p2_init():
        b("v_lshrrev_b32 v21, 4, v1\nv_and_b32 v22, 7, v1\nv_lshlrev_b32 v22, 1, v22\nv_xor_b32 v22, v22, v21\nv_lshlrev_b32 v22, 4, v22")
        b("v_and_b32 v23, 15, v1\nv_lshlrev_b32 v23, 8, v23\nv_add_u32 v22, v22, v23")
        b(f"s_lshl_b32 {sT}, {sKH}, 14")
        for d in range(4): b(f"v_xor_b32 v{KA[d]}, {d*64}, v22\nv_add_u32 v{KA[d]}, {sT}, v{KA[d]}")
        b(f"v_lshrrev_b32 v21, 2, v1\nv_and_b32 v22, 7, v21\ns_lshl_b32 {sT2}, {sKH}, 2\nv_xor_b32 v22, {sT2}, v22\nv_lshlrev_b32 v22, 5, v22")
        b("v_lshlrev_b32 v21, 8, v21\nv_and_b32 v23, 3, v1\nv_lshlrev_b32 v23, 3, v23\nv_add3_u32 v22, v22, v21, v23")
        b(f"s_add_u32 {sT}, {sT}, 4096")
        for j in range(8): b(f"v_xor_b32 v{VA[j]}, {j*32}, v22\nv_add_u32 v{VA[j]}, {sT}, v{VA[j]}")
        b(f"s_mov_b32 {sPB}, 0\ns_mov_b32 {sKVm}, {sW1}\ns_mov_b32 {sKVs}, 0")
        for i in range(5): zero(vr(OK+16*i, 16))
        for i in range(5): zero(ar(OS+16*i, 16))
        zero(vr(LA, 16)); zero(vr(LA+16, 4))
    p2_init()
    b("v_mov_b32 v21, 0x3f803f80")
    for i in range(4): b(f"v_accvgpr_write_b32 a{ONES+i}, v21")
    b.raw("s_waitcnt vmcnt(9)")
    stamp(b, 1)

    def g_mfmas(buf, dord=(0, 1, 2, 3)):
        return [f"{MF} {vr(ACC+(d*5+q)*4,4)}, {ar(AF[buf]+4*d,4)}, {ar(BF[buf]+4*q,4)}, {vr(ACC+(d*5+q)*4,4)}" for d in dord for q in range(5)]
    def g_step(ph, dm, fill):
        trace(b)
        b("s_barrier")
        trace(b)
        vs, qs = ((1024, 2048), (4096, 1024))[ph == 3]
        for u in range(2):
            A = lambda d: [f"ds_read_b64_tr_b16 {ar(AF[u]+4*d+2*v,2)}, v{WA[d]} offset:{u*8192+v*vs}" for v in range(2)]
            rd = A(0) + [f"ds_read_b128 {ar(BF[u]+4*q,4)}, v{XA[u]} offset:{q*qs}" for q in range(5)] + A(1) + A(2) + A(3)
            mf = g_mfmas(u ^ 1)
            for i in range(20):
                b(mf[i])
                if (u, i) in dm: b(dm[(u, i)])
                elif rd: b(rd.pop(0))
                for s in fill.get((u, i), []): b(s)
                if u == 0 and i == 18: need(b, [ar(AF[0], 8), ar(BF[0], 20)])
                if u == 1 and i == 4: need(b, [ar(AF[0], 16)])
            assert not rd
    va = lambda r: f"v_add_u32 v{r}, {sDelta}, v{r}"
    ringf = {(0, 7): [f"s_add_u32 {sT2}, {sRB}, {STSZ}"], (0, 9): [f"s_cmp_ge_u32 {sT2}, {LDS}"], (0, 10): [f"s_cselect_b32 {sT2}, {ST0}, {sT2}"],
             (0, 11): [f"s_sub_u32 {sDelta}, {sT2}, {sRB}"], (0, 14): [va(XA[0])],
             (1, 2): [va(WA[0])], (1, 7): [va(XA[1])], (1, 10): [va(WA[1])], (1, 12): [va(WA[2])], (1, 15): [va(WA[3])]}
    DG = [(0, 4), (0, 8), (0, 12), (0, 16), (0, 19), (1, 9), (1, 13), (1, 16), (1, 18)]
    def loopf(ph):
        f = dict(ringf)
        f.update({(0, 0): [f"s_and_b32 {sT}, s58, 15"], (0, 1): [f"s_lshl_b32 {sWO}, {sT}, {19 if ph == 1 else 17}"],
                  (0, 2): [f"s_add_u32 {sMX}, {sDB}, {sW4}"], (0, 3): [f"s_add_u32 m0, {sMX}, 20480"],
                  (0, 5): [f"s_lshl_b32 {sXO}, {sT}, 7" if ph == 1 else f"s_mul_i32 {sXO}, {sT}, 20480"],
                  (0, 6): ["s_lshr_b64 s[58:59], s[58:59], 4"], (0, 17): [f"s_mov_b32 m0, {sMX}"],
                  (1, 0): [f"s_add_u32 {sMW}, {sDB}, {sM5}"], (1, 1): [f"s_mov_b32 {sDB}, {sRB}"], (1, 3): [f"s_mov_b32 {sRB}, {sT2}"],
                  (1, 5): [f"s_add_u32 {sCnt}, {sCnt}, 1"], (1, 6): [f"s_cmp_lt_u32 {sCnt}, 14"], (1, 8): ["s_cselect_b64 vcc, -1, 0"],
                  (1, 17): [f"s_mov_b32 m0, {sMW}"] + ([f"s_bitcmp1_b32 {sMask}, {sCnt}"] if ph == 1 else [])})
        return f
    b.raw(".p2align 3")
    b.label("L_p1")
    i0 = len(b.L)
    g_step(1, dict(zip(DG, DW + DX)), loopf(1))
    b("s_cbranch_scc1 L_aux")
    b.wait(lg=0, vm=9)
    b.label("L_auxback")
    b("s_cbranch_vccnz L_p1")
    print("gemm step estimate", estimate(b.L[i0:], verbose=VERB))
    b.vm = []
    stamp(b, 2)
    KLD = f"buffer_load_dwordx4 v{KVW}, {SK}, {sKVs} offen {KVFL} lds"
    VLD = f"buffer_load_dwordx4 v{KVW}, {SV}, {sKVs} offen {KVFL} lds"
    M0K = f"s_mov_b32 m0, {sKVm}"; M0V = f"s_add_u32 m0, {sKVm}, 4096"
    ADV = [f"s_add_u32 {sKVm}, {sKVm}, 8192", f"s_add_u32 {sKVs}, {sKVs}, 4096"]
    WRAP = [f"s_cmp_ge_u32 {sKVm}, {LDS}", f"s_cselect_b32 {sKVm}, {sW1}, {sKVm}"]
    def pair():
        b(M0K); b(KLD); b(M0V); b(VLD)
        for s in ADV: b(s)
    NENT = 32 - NPI * SA - 6
    n14 = min(opt("n14", 3), NENT); n15 = min(opt("n15", 3), NENT - n14); nq = min(opt("nq", 3), NENT - n14 - n15, 9 - n14 - n15)
    npro = NENT - n14 - n15 - nq
    assert n14 <= 4 and n15 <= 4 and 0 <= npro <= 4, (n14, n15, nq, npro)
    def kv_step(n, extra):
        slots = [((0, 3), (0, 4), (0, 6), (0, 8), (0, 13)), ((0, 15), (0, 16), (0, 17), (0, 19), (1, 0)),
                 ((1, 8), (1, 9), (1, 11), (1, 13), (1, 14)), ((1, 15), (1, 16), (1, 17), (1, 18), (1, 19))]
        dm = {}; f = {k: list(v) for k, v in extra.items()}
        for a, k, c, v, e in slots[:n]:
            f.setdefault(a, []).append(M0K); dm[k] = KLD; f.setdefault(c, []).append(M0V); dm[v] = VLD; f.setdefault(e, []).extend(ADV)
        g_step(1, dm, f)
    kv_step(n14, ringf)
    b.wait(lg=0, vm=2*n14)
    kv_step(n15, {(0, 0): ["v_lshrrev_b32 v21, 5, v1"], (0, 1): ["v_lshlrev_b32 v21, 8, v21"], (0, 2): ["v_and_b32 v22, 15, v1"],
                  (0, 5): ["v_lshlrev_b32 v22, 4, v22"], (0, 7): ["v_lshrrev_b32 v23, 1, v1"], (0, 9): ["v_and_b32 v23, 8, v23"],
                  (0, 10): ["v_add3_u32 v21, v21, v22, v23"], (0, 11): [f"s_mul_i32 {sT2}, {sQH}, 20480"], (0, 12): [f"s_add_u32 {sT2}, {sT2}, {QEX}"],
                  (0, 14): [f"v_add_u32 v22, {sT2}, v{L16}"], (1, 1): [f"s_lshl_b32 {sT3}, {sKH}, 11"], (1, 2): [f"s_add_u32 {sT2}, {sT2}, {sT3}"],
                  (1, 3): [f"v_add_u32 v21, {sT2}, v21"], (1, 5): [f"s_lshl_b32 {sT3}, {sKH}, 14"],
                  (1, 6): [f"v_subrev_u32 v{XA[0]}, {sT3}, v{KA[0]}"], (1, 7): [f"v_subrev_u32 v{XA[1]}, {sT3}, v{KA[1]}"],
                  (1, 10): [f"v_subrev_u32 v{WA[0]}, {sT3}, v{KA[2]}"], (1, 12): [f"v_subrev_u32 v{WA[1]}, {sT3}, v{KA[3]}"]})
    b.wait(lg=0)
    b("s_barrier")
    i0 = len(b.L)
    def pack(t):
        a = ACC + t * 4
        for i in range(4): b(f"v_mul_f32 v{a+i}, {sCc}, v{a+i}")
        b(f"v_cvt_pk_bf16_f32 v{a}, v{a}, v{a+1}\nv_cvt_pk_bf16_f32 v{a+1}, v{a+2}, v{a+3}")
    def qwr(t):
        d, q = divmod(t, 5); a = ACC + t * 4
        b(f"ds_write_b64 v21, {vr(a,2)} offset:{q*4096+(d>>1)*1024+(d&1)*512}")
    mf = g_mfmas(1)
    for i in range(25):
        if i < 20: b(mf[i])
        if i == 0: b(f"buffer_load_dwordx2 {vr(NONV,2)}, v{ZR}, {SD}, 0 offen sc0 sc1")
        if i in (1, 9, 17)[:nq]: pair()
        if 0 <= i - 5 < 20: qwr(i - 5)
        if 0 <= i - 4 < 20: pack(i - 4)
    b.wait(lg=0)
    b("s_barrier")
    print("q pack estimate", estimate(b.L[i0:]))
    stamp(b, 3)
    def k_read(i): return f"ds_read_b128 {ar(KF+4*i,4)}, v{KA[i%4]} offset:{(i//4)*8192}"
    def v_read(j): return [f"ds_read_b64_tr_b16 {ar(VF+4*j+2*v,2)}, v{VA[j]} offset:{v*8192}" for v in range(2)]
    i0 = len(b.L)
    qr = [f"ds_read_b128 {ar(QF+(q*4+d)*4,4)}, v22 offset:{q*4096+d*1024}" for q in range(5) for d in range(4)]
    for d in range(4):
        b(f"ds_read_b128 {vr(64+4*d,4)}, v{(XA+WA)[d]}")
        b(qr.pop(0))
    for i in range(6): b(qr.pop(0))
    rest = qr + [k_read(i) for i in range(8)]
    for q in range(5):
        for d in range(4):
            b(f"{MF} {vr(80+4*q,4)}, {vr(64+4*d,4)}, {ar(QF+(q*4+d)*4,4)}, {'0' if d == 0 else vr(80+4*q,4)}")
            if rest: b(rest.pop(0))
    b("s_barrier")
    for i in range((npro + 1) // 2): pair()
    def maxfin(regs):
        for q in range(5): b(f"v_mov_b32 v{64+q}, v{regs[q]}")
        for q in range(5): b(f"v_permlane16_swap_b32 v{regs[q]}, v{64+q}")
        for q in range(5): b(f"v_max_f32 v{regs[q]}, v{regs[q]}, v{64+q}")
        for q in range(5): b(f"v_mov_b32 v{64+q}, v{regs[q]}")
        for q in range(5): b(f"v_permlane32_swap_b32 v{regs[q]}, v{64+q}")
        for q in range(5): b(f"v_max_f32 v{regs[q]}, v{regs[q]}, v{64+q}")
        for q in range(5):
            for i in range(4): b(f"v_sub_f32 v{NM+4*q+i}, 0, v{regs[q]}")
    for q in range(5): b(f"v_max3_f32 v{80+4*q}, v{80+4*q}, v{81+4*q}, v{82+4*q}")
    for q in range(5): b(f"v_max_f32 v{80+4*q}, v{80+4*q}, v{83+4*q}")
    maxfin([80 + 4*q for q in range(5)])
    for i in range(npro // 2): pair()
    b(f"s_mul_i32 {sT}, {sB}, 1310720\ns_mul_i32 {sT2}, {sKq}, 327680\ns_add_u32 {sT}, {sT}, {sT2}\ns_add_u32 s4, s20, {sT}\ns_addc_u32 s5, s21, 0")
    b(f"s_lshl_b32 {sT}, {sKq}, 21\ns_lshl_b32 {sT2}, {sHl}, 8\ns_add_u32 {sT}, {sT}, {sT2}\ns_add_u32 s8, s66, {sT}\ns_addc_u32 s9, s67, 0\ns_sub_u32 s10, 8388608, {sT}")
    b(f"v_lshrrev_b32 v21, 1, v1\nv_lshlrev_b32 v21, 13, v21\nv_and_b32 v22, 1, v1\nv_lshlrev_b32 v22, 7, v22")
    b(f"s_lshl_b32 {sT}, {sW}, 18\ns_lshl_b32 {sT2}, {sBl}, 11\ns_add_u32 {sT}, {sT}, {sT2}\nv_add3_u32 v{TCH}, v21, v22, {sT}")
    b.wait(lg=0)

    def col(n): return (0, 1, 0, 1, 2)[n % 5]
    def s_mfma(n, i):
        kt, d = i // 4, i % 4; q = n % 5
        dst = vr(SB[col(n)] + 4*kt, 4)
        return f"{MF} {dst}, {ar(KF+4*i,4)}, {ar(QF+(q*4+d)*4,4)}, {vr(NM+4*q,4) if d == 0 else dst}"
    def oreg(q, j): return vr(OK + (q*4+j)*4, 4) if j < 4 else ar(OS + (q*4+j-4)*4, 4)
    def p_mfma(n, j):
        q = n % 5
        if j == 8: return f"{MF} {vr(LA+4*q,4)}, {ar(ONES,4)}, {vr(PB[col(n)],4)}, {vr(LA+4*q,4)}"
        return f"{MF} {oreg(q,j)}, {ar(VF+4*j,4)}, {vr(PB[col(n)],4)}, {oreg(q,j)}"
    def v_exp(n, e): return f"v_exp_f32 v{SB[col(n)]+e}, v{SB[col(n)]+e}"
    def v_cvt(n, c): return f"v_cvt_pk_bf16_f32 v{PB[col(n)]+c}, v{SB[col(n)]+2*c}, v{SB[col(n)]+2*c+1}"
    NU = 40
    def slot(n, mem=None, sal=None, val=None):
        mem = mem or {}; sal = sal or {}; val = val or {}
        for p in range(17):
            if p < 16 and p % 2 == 0:
                if 0 <= n + 1 < NU: b(s_mfma(n + 1, p // 2))
            elif 0 <= n - 1 < NU: b(p_mfma(n - 1, p // 2))
            for s in mem.get(p, []): b(s)
            for s in sal.get(p, []):
                if callable(s): s()
                else: b(s)
            if 0 <= n < NU:
                if p % 2 == 0 and p < 16: b(v_exp(n, p // 2))
                if p % 4 == 3: b(v_cvt(n, p // 4))
            for s in val.get(p, []): b(s)
    b.label("L_p2entry")
    VR = [x for j in range(8) for x in v_read(j)]
    for i in range(8):
        b(s_mfma(0, i))
        b(VR[i])
    slot(0, {0: [VR[8]], 2: [VR[9]], 4: [VR[10]], 6: [VR[11]]})
    b(f"s_mov_b32 {sCnt}, 0")
    print("p2 prologue estimate", estimate(b.L[i0:]))
    stamp(b, 4)
    nd = lambda *ops: (lambda: need(b, ops))
    def merge(*ds):
        out = {}
        for d in ds:
            for k, v in d.items(): out.setdefault(k, []).extend(v)
        return out
    def pair_at(k, v):
        return ({k: [KLD], v: [VLD]}, {k - 1: [M0K], v - 1: [M0V], v + 1: [ADV[0]], v + 2: [ADV[1], WRAP[0]] if False else [ADV[1]]})
    def body(dma):
        m2 = {}; s2 = {}; m4 = {}; s4 = {}; s3x = {}; s5x = {}
        if dma:
            def put(m, s, k, v, nxt_s):
                m[k] = [KLD]; m[v] = [VLD]
                s.setdefault(k - 1, []).append(M0K); s.setdefault(k + 1, []).append(M0V); s.setdefault(v - 1, []).append(ADV[0])
                s.setdefault(v + 1, []).append(ADV[1])
                for pos, ins in nxt_s: pos[0].setdefault(pos[1], []).append(ins)
            if NPI == 3:
                put(m2, s2, 3 + 2, 13, [((s2, 15), WRAP[0]), ((s2, 16), WRAP[1])])
            else:
                put(m2, s2, 1, 5, [((s2, 7), WRAP[0]), ((s2, 7), WRAP[1])])
                put(m2, s2, 9, 13, [((s2, 15), WRAP[0]), ((s2, 16), WRAP[1])])
            put(m4, s4, 1, 5, [((s4, 7), WRAP[0]), ((s4, 7), WRAP[1])])
            put(m4, s4, 9, 13, [((s4, 15), WRAP[0]), ((s4, 16), WRAP[1])])
        elif TOUCH:
            m4[1] = [f"buffer_load_dword a{JUNK}, v{TCH}, {SW}, 0 offen"]
        slot(1, {1: [VR[12]], 3: [VR[13]], 5: [VR[14]], 7: [VR[15]]},
             {0: [nd(ar(VF, 12))], 6: [nd(ar(VF, 24))], 12: [nd(ar(VF, 28))], 14: [nd(ar(VF, 32))],
              2: [f"s_add_u32 {sT2}, {sPB}, 32768"], 4: [f"s_cmp_ge_u32 {sT2}, {LDS}"], 8: [f"s_cselect_b32 {sT2}, 0, {sT2}"],
              9: [f"s_sub_u32 {sDelta}, {sT2}, {sPB}"], 10: [f"s_mov_b32 {sPB}, {sT2}"]},
             {9: [va(KA[0]), va(KA[1])], 11: [va(KA[2])], 13: [va(KA[3]), va(VA[0])], 15: [va(VA[1])], 16: [va(VA[2]), va(VA[3])]})
        slot(2, m2, merge(s2, {} if dma else {14: [f"s_cmp_eq_u32 {sCnt}, 7"]}), {3: [va(VA[4])], 11: [va(VA[5])]})
        if not dma:
            b("s_cbranch_scc1 L_tail")
            body.exit_state = b.state()
        trace(b)
        pre = 2 if NPI == 3 else 4
        na = (64 - 2*NPI*SA) + 2*NPI*(SA-1) + pre - 8*(SA+1)
        assert na >= 4, na
        b.raw(f"s_waitcnt vmcnt({min(na, 12) if dma else (1 if TOUCH else 0)})")
        b("s_barrier")
        trace(b)
        slot(3, {2*i+1: [k_read(i)] for i in range(8)},
             {6: [f"s_add_u32 {sCnt}, {sCnt}, 1"], 16: [nd(ar(KF, 16))]}, {1: [va(VA[6])], 5: [va(VA[7])]})
        slot(4, m4, merge(s4, {3: [nd(ar(KF, 32))]}), {} if dma or not TOUCH else {5: [f"v_add_u32 v{TCH}, 0x100000, v{TCH}"]})
        slot(5, {1: VR[0:2], 3: [VR[2]], 5: [VR[3]], 7: [VR[4]], 9: VR[5:7], 11: [VR[7]], 13: VR[8:10], 15: [VR[10]], 16: [VR[11]]},
             {14: [f"s_cmp_lt_u32 {sCnt}, {SA}"]} if dma else {})
        b("s_cbranch_scc1 L_p2a" if dma else "s_branch L_p2b")
        b.vm = []
    b.vm = []
    for dma, lab in ((True, "L_p2a"), (False, "L_p2b")):
        save = b.L; b.L = []
        body(dma); st1 = b.state(); t1 = b.L
        b.L = []; body(dma); st2 = b.state(); t2 = b.L
        assert st1[0] == st2[0]
        if not STAMPS: assert t1 == t2, "loop not steady"
        print("p2 body estimate", estimate(t2, verbose=VERB))
        b.L = save
        if dma: b.raw(".p2align 3")
        b.label(lab)
        b.L += t2
    b.label("L_tail")
    b.set_state(body.exit_state)
    b.vm = []
    b("s_barrier")
    stamp(b, 5)
    i0 = len(b.L)
    EXL = 81920; EXF = 90112
    b(f"s_mul_i32 {sT}, {sW}, 20480\nv_add_u32 v21, {sT}, v{L16}")
    b(f"s_xor_b32 {sT2}, {sW}, 2\ns_mul_i32 {sT}, {sT2}, 20480\nv_add_u32 v22, {sT}, v{L16}")
    wr = lambda q: [f"ds_write_b128 v21, {ar(OS+(q*4+j)*4,4)} offset:{(q*4+j)*1024}" for j in range(4)]
    w01 = wr(0) + wr(1)
    slot(38, {1 + 2*i: [w01[i]] for i in range(8)})
    w2 = wr(2)
    slot(39, {9 + 2*i: [w2[i]] for i in range(4)})
    w3 = wr(3)
    slot(40, {9 + 2*i: [w3[i]] for i in range(4)})
    b(f"v_lshlrev_b32 v23, 2, v1\ns_mul_i32 {sT}, {sW}, 1280\ns_add_u32 {sT}, {sT}, {EXL}\nv_add_u32 v60, {sT}, v23")
    b(f"s_mul_i32 {sT}, {sT2}, 1280\ns_add_u32 {sT}, {sT}, {EXL}\nv_add_u32 v61, {sT}, v23")
    for s in wr(4): b(s)
    for q in range(5): b(f"ds_write_b32 v60, v{LA+4*q} offset:{q*256}")
    b(f"v_add_f32 v62, v{LA}, v{LA+4}\nv_add_f32 v63, v{LA+8}, v{LA+12}\nv_add_f32 v62, v62, v{LA+16}\nv_add_f32 v62, v62, v63")
    thr = f32bits(2.0 ** 24) if not FORCE_SLOW else f32bits(0.0)
    b(f"v_cmp_nge_f32 vcc, {thr}, v62")
    b(f"s_cmp_lg_u64 vcc, 0\ns_cselect_b32 {sT}, 1, 0\nv_mov_b32 v62, {sT}")
    b(f"s_lshl_b32 {sT}, {sW}, 2\ns_add_u32 {sT}, {sT}, {EXF}\nv_mov_b32 v63, {sT}")
    b("ds_write_b32 v63, v62")
    b(f"v_mov_b32 v63, {EXF}")
    b.wait(lg=0)
    b("s_barrier")
    b(f"ds_read_b128 {vr(NM,4)}, v63")
    for q in range(5): b(f"ds_read_b32 v{NM+4+q}, v61 offset:{q*256}")
    for i in range(20): b(f"ds_read_b128 {vr(24+4*i,4)}, v22 offset:{i*1024}")
    b(f"v_or_b32 v{NM}, v{NM}, v{NM+1}\nv_or3_b32 v{NM}, v{NM}, v{NM+2}, v{NM+3}")
    b(f"v_readfirstlane_b32 {sT}, v{NM}")
    b(f"s_andn2_b32 {sT}, {sT}, {sPass}\ns_cmp_lg_u32 {sT}, 0")
    b("s_cbranch_scc1 L_slow")
    for q in range(5): b(f"v_add_f32 v{LA+4*q}, v{LA+4*q}, v{NM+4+q}")
    for q in range(5): b(f"v_rcp_f32 v{LA+4*q}, v{LA+4*q}")
    for q in range(5):
        for pr in range(2):
            o = OK + (q*4+2*pr)*4; r = 24 + (q*4+2*pr)*4
            for i in range(0, 8, 2): b(f"v_pk_add_f32 {vr(o+i,2)}, {vr(o+i,2)}, {vr(r+i,2)}")
            for i in range(0, 8, 2): b(f"v_pk_mul_f32 {vr(o+i,2)}, {vr(o+i,2)}, {vr(LA+4*q,2)} op_sel_hi:[1,0]")
            for i in range(4): b(f"v_cvt_pk_bf16_f32 v{o+i}, v{o+2*i}, v{o+2*i+1}")
            vv, off = (L16, q * 1024) if q < 4 else (L16B, 0)
            b(f"buffer_store_dwordx4 {vr(o,4)}, v{vv}, {SO}, {sO1 if pr else sO0} offen offset:{off} {HST}")
    print("tail estimate", estimate(b.L[i0:]))
    stamp(b, 6)
    load_order(SIG3, mask=False)
    b(f"v_add_u32 v{VB[0]}, {sW4}, v{L16}\nv_add_u32 v{VB[4]}, {sM5}, v{L16}")
    for q in range(1, 4): b(f"v_mov_b32 v{VB[q]}, v{VB[0]}")
    b("v_lshrrev_b32 v21, 4, v1\nv_lshlrev_b32 v22, 1, v21\nv_and_b32 v23, 15, v1\nv_xor_b32 v22, v22, v23\nv_lshlrev_b32 v22, 4, v22")
    b(f"v_lshlrev_b32 v23, 11, v21\nv_add_u32 v23, v23, v22\nv_xor_b32 v22, 128, v23\ns_lshl_b32 {sT}, {sW}, 15")
    for q in range(4):
        b(f"s_add_u32 {sT2}, {sT}, {q*(8192-1024)}\nv_add_u32 v{VW[q]}, {sT2}, v{22 if q & 1 else 23}")
    gemm_zero()
    b(f"s_mov_b32 {sRB}, {ST0 + 2*STSZ}\ns_mov_b32 {sCnt}, 0\ns_mov_b32 {sDB}, {ST0 + STSZ}")
    b(f"s_mul_i32 {sT}, {sQH}, 5120\ns_add_u32 {sT}, {sT}, {sRB}\nv_add_u32 v{XA[0]}, {sT}, v{L16}\nv_add_u32 v{XA[1]}, 10240, v{XA[0]}")
    b(f"v_lshrrev_b32 v21, 2, v1\nv_and_b32 v22, 7, v21\ns_lshl_b32 {sT}, {sKq}, 1\ns_add_u32 {sT}, {sT}, {sKH}\nv_xor_b32 v22, {sT}, v22\nv_lshlrev_b32 v22, 5, v22")
    b("v_lshlrev_b32 v21, 8, v21\nv_and_b32 v23, 3, v1\nv_lshlrev_b32 v23, 3, v23\nv_add3_u32 v22, v22, v21, v23")
    b(f"s_add_u32 {sT}, {sRB}, 20480")
    for d in range(4): b(f"v_xor_b32 v{WA[d]}, {d*64}, v22\nv_add_u32 v{WA[d]}, {sT}, v{WA[d]}")
    SPIN = 200000
    b(f"s_mov_b32 {sT3}, 0")
    b.label("L_non")
    b.wait(vm=0)
    b(f"v_readfirstlane_b32 s64, v{NONV}\nv_readfirstlane_b32 s65, v{NONV+1}")
    b("s_cmp_lg_u32 s64, 0")
    b("s_cbranch_scc1 L_nonok")
    b(f"buffer_load_dwordx2 {vr(NONV,2)}, v{ZR}, {SD}, 0 offen sc0 sc1")
    b(f"s_add_u32 {sT3}, {sT3}, 1\ns_cmp_lt_u32 {sT3}, {SPIN}")
    b("s_cbranch_scc1 L_non")
    b.label("L_nonok")
    b.vm = []
    stamp(b, 7)
    b(f"s_lshl_b32 {sT}, {sB}, 2\ns_add_u32 {sT}, {sT}, {sKq}\ns_lshl_b32 {sT}, {sT}, 8\ns_add_u32 {sO0}, {sT}, {FLG1}")
    b(f"s_lshl_b32 {sT}, {sHl}, 2\ns_add_u32 {sT}, {sT}, {sW}\ns_lshl_b32 {sT}, {sT}, 3\ns_add_u32 {sT}, {sT}, {sO0}")
    b("s_mov_b64 exec, 1")
    b(f"buffer_store_dwordx2 {vr(NONV,2)}, v{ZR}, {SO}, {sT} offen {HST}")
    b("s_mov_b64 exec, -1")
    b("s_barrier")
    DW3, DX3 = dma_lists(HLD)
    for st in range(2):
        base = ST0 + ((st+2)%3)*STSZ
        b(f"s_bfe_u32 {sT}, s58, {(4 << 16) | (4*st)}\ns_add_u32 m0, {sW4}, {base+20480}\ns_lshl_b32 {sWO}, {sT}, 17")
        for x in DW3: b(x)
    def poll(lab, vaddr, soff):
        b(f"s_mov_b32 {sT3}, 0")
        b.label(lab)
        b(f"buffer_load_dwordx2 v[22:23], v{vaddr}, {SO}, {soff} offen {HLD}")
        b.wait(vm=0)
        b(f"v_cmp_ne_u64 vcc, {sNon}, v[22:23]")
        b("s_cbranch_vccz " + lab + "ok")
        if SLEEP: b(f"s_sleep {SLEEP}")
        b(f"s_add_u32 {sT3}, {sT3}, 1\ns_cmp_lt_u32 {sT3}, {SPIN}")
        b("s_cbranch_scc1 " + lab)
        b.label(lab + "ok")
    b("v_and_b32 v21, 31, v1\nv_lshlrev_b32 v21, 3, v21")
    if ONEPOLL:
        b(f"s_cmp_lg_u32 {sW}, 0")
        b("s_cbranch_scc1 L_poll1ok")
    poll("L_poll1", 21, sO0)
    if ONEPOLL: b("s_barrier")
    stamp(b, 8)
    for st in range(2):
        base = ST0 + ((st+2)%3)*STSZ
        b(f"s_and_b32 {sT}, s58, 15\ns_add_u32 m0, {sW4}, {base}\ns_mul_i32 {sXO}, {sT}, 20480")
        for x in DX3[:4]: b(x)
        b(f"s_add_u32 m0, {sM5}, {base}\ns_lshr_b64 s[58:59], s[58:59], 4")
        b(DX3[4])
    b.raw("s_waitcnt vmcnt(5)")
    stamp(b, 9)
    b.vm = []
    b.raw(".p2align 3")
    b.label("L_p3")
    g_step(3, dict(zip(DG, DW3 + DX3)), loopf(3))
    b.wait(lg=0, vm=9)
    b("s_cbranch_vccnz L_p3")
    b.vm = []
    g_step(3, {}, ringf)
    b.wait(lg=0, vm=0)
    sPs = ["s72", "s73", "s74", "s75"]; sPl = ["s76", "s77", "s78", "s79"]
    pf = [f"s_lshl_b32 {sT}, {sB}, 3", f"s_add_u32 {sT}, {sT}, {sHl}", f"s_lshl_b32 {sO1}, {sT}, 7", f"s_mul_i32 {sT}, {sT}, {16*20480}",
          f"s_mul_i32 {sT2}, {sW}, 5120", f"s_add_u32 {sT}, {sT}, {sT2}", f"s_add_u32 {sT}, {sT}, {PART}"]
    for d in (1, 2, 3):
        pf += [f"s_xor_b32 {sT2}, {sKq}, {d}", f"s_lshl_b32 {sT3}, {sT2}, 2", f"s_add_u32 {sT3}, {sT3}, {sKq}", f"s_mul_i32 {sT3}, {sT3}, 20480",
               f"s_add_u32 {sPs[d]}, {sT}, {sT3}",
               f"s_lshl_b32 {sT3}, {sKq}, 2", f"s_add_u32 {sT3}, {sT3}, {sT2}", f"s_mul_i32 {sT3}, {sT3}, 20480", f"s_add_u32 {sPl[d]}, {sT}, {sT3}"]
    pos = [(u, i) for u in range(2) for i in range(20) if (u, i) not in ((0, 18), (1, 4))]
    g_step(3, {}, {p: [x] for p, x in zip(pos, pf)})
    assert len(pf) <= len(pos)
    b.wait(lg=0)
    stamp(b, 10)
    mf = g_mfmas(1, (1, 2, 3, 0))
    def pst(t):
        d, q = 1 + t // 5, t % 5
        vv, off = (L16, q * 1024) if q < 4 else (L16B, 0)
        return f"buffer_store_dwordx4 {vr(ACC+(d*5+q)*4,4)}, v{vv}, {SO}, {sPs[d]} offen offset:{off} {HST}"
    PK = 104
    if PBF: b(f"v_lshrrev_b32 v{L16B}, 1, v{L16}")
    for i in range(21):
        if i < 20: b(mf[i])
        if not PBF:
            if 5 <= i < 20: b(pst(i - 5))
            continue
        t = i - 6
        if 0 <= t < 15:
            d, q = 1 + t // 5, t % 5; pk = PK + (d-1)*12
            if q in (1, 3): b(f"buffer_store_dwordx4 {vr(pk+2*(q-1),4)}, v{L16}, {SO}, {sPs[d]} offen offset:{(q//2)*1024} {HST}")
            if q == 4: b(f"buffer_store_dwordx2 {vr(pk+8,2)}, v{L16B}, {SO}, {sPs[d]} offen offset:2048 {HST}")
        t = i - 5
        if 0 <= t < 15:
            d, q = 1 + t // 5, t % 5; pk = PK + (d-1)*12 + 2*q; a = ACC + (d*5+q)*4
            b(f"v_cvt_pk_bf16_f32 v{pk}, v{a}, v{a+1}\nv_cvt_pk_bf16_f32 v{pk+1}, v{a+2}, v{a+3}")
    b(f"s_lshl_b32 {sT}, {sW}, 5\ns_add_u32 {sO1}, {sO1}, {sT}\ns_add_u32 {sO1}, {sO1}, {FLG2}\ns_lshl_b32 {sT}, {sKq}, 3\ns_add_u32 {sT}, {sT}, {sO1}")
    b(f"s_mul_i32 {sT2}, {sB}, 327680\ns_add_u32 s4, s68, {sT2}\ns_addc_u32 s5, s69, 0")
    b("v_and_b32 v21, 3, v1\nv_lshlrev_b32 v21, 3, v21")
    b(f"v_and_b32 v2, 15, v1\nv_lshlrev_b32 v2, 11, v2\nv_lshrrev_b32 v3, 4, v1\nv_lshlrev_b32 v3, 3, v3\nv_add_u32 v2, v2, v3")
    b(f"s_mul_i32 {sT2}, {sQH}, 163840\ns_lshl_b32 {sT3}, {sHl}, 8\ns_add_u32 {sT2}, {sT2}, {sT3}\ns_lshl_b32 {sT3}, {sKq}, 6\ns_add_u32 {sT2}, {sT2}, {sT3}")
    b(f"s_lshl_b32 {sT3}, {sKH}, 5\ns_add_u32 {sXO}, {sT2}, {sT3}")
    b.wait(vm=0)
    stamp(b, 11)
    b("s_mov_b64 exec, 1")
    b(f"buffer_store_dwordx2 {vr(NONV,2)}, v{ZR}, {SO}, {sT} offen {HST}")
    b("s_mov_b64 exec, -1")
    poll("L_poll2", 21, sO1)
    stamp(b, 12)
    if PBF:
        for h in range(3):
            for d in (1, 2, 3):
                pk = PK + (d-1)*12
                if h < 2: b(f"buffer_load_dwordx4 {vr(pk+4*h,4)}, v{L16}, {SO}, {sPl[d]} offen offset:{h*1024} {HLD}")
                else: b(f"buffer_load_dwordx2 {vr(pk+8,2)}, v{L16B}, {SO}, {sPl[d]} offen offset:2048 {HLD}")
    else:
        for q in range(5):
            for d in (1, 2, 3):
                vv, off = (L16, q * 1024) if q < 4 else (L16B, 0)
                b(f"buffer_load_dwordx4 {vr(ACC+(d*5+q)*4,4)}, v{vv}, {SO}, {sPl[d]} offen offset:{off} {HLD}")
    for q in range(5):
        a = ACC + q * 4
        if PBF:
            for d in (1, 2, 3):
                pk = PK + (d-1)*12 + 2*q
                for i in range(2):
                    b(f"v_lshlrev_b32 v{a+20*d+2*i}, 16, v{pk+i}\nv_and_b32 v{a+20*d+2*i+1}, 0xffff0000, v{pk+i}")
        for i in (0, 2): b(f"v_pk_add_f32 {vr(a+i,2)}, {vr(a+i,2)}, {vr(a+20+i,2)}")
        for i in (0, 2): b(f"v_pk_add_f32 {vr(a+40+i,2)}, {vr(a+40+i,2)}, {vr(a+60+i,2)}")
        for i in (0, 2): b(f"v_pk_add_f32 {vr(a+i,2)}, {vr(a+i,2)}, {vr(a+40+i,2)}")
        b(f"v_cvt_pk_bf16_f32 v{a}, v{a}, v{a+1}\nv_cvt_pk_bf16_f32 v{a+1}, v{a+2}, v{a+3}")
        b(f"buffer_store_dwordx2 {vr(a,2)}, v2, {SX}, {sXO} offen")
        if q < 4: b(f"s_add_u32 {sXO}, {sXO}, 32768")
    if STAMPS:
        stamp(b, 13)
        b.wait(vm=0)
        stamp(b, 14)
        b(f"s_cmp_lg_u32 {sW}, 0")
        b("s_cbranch_scc1 L_nost")
        b(f"v_lshlrev_b32 v3, 2, v1\ns_lshl_b32 {sT}, s2, 7\ns_add_u32 {sT}, {sT}, {STAMP_OFF}\ns_mov_b32 exec_hi, 0")
        b(f"buffer_store_dword v254, v3, {SO}, {sT} offen")
        b("s_mov_b64 exec, -1")
        b.label("L_nost")
        if TRACE:
            b(f"s_lshl_b32 {sT}, s2, 2\ns_add_u32 {sT}, {sT}, {sW}\ns_lshl_b32 {sT}, {sT}, 9\ns_add_u32 {sT}, {sT}, {STAMP_OFF + (1 << 20)}")
            b("v_lshlrev_b32 v3, 2, v1")
            b(f"buffer_store_dword v0, v3, {SO}, {sT} offen")
    b.label("L_end")
    b("s_endpgm")

    b.label("L_aux")
    b.lg = []; b.vm = []
    pair(); pair()
    b.wait(lg=0, vm=13)
    b("s_branch L_auxback")

    b.label("L_slow")
    b.wait(lg=0, vm=0)
    b("s_barrier")
    b(f"s_mov_b32 {sPass}, 1")
    b("v_and_b32 v21, 15, v1\nv_lshlrev_b32 v21, 8, v21\nv_lshrrev_b32 v22, 4, v1\nv_lshlrev_b32 v22, 4, v22\nv_add_u32 v21, v21, v22")
    for q in range(5): b(f"v_mov_b32 v{72+q}, 0xff800000")
    b(f"s_mov_b32 {sCnt}, 0")
    b.label("L_slowloop")
    for d in range(4): b(f"buffer_load_dwordx4 {vr(24+4*d,4)}, v21, {SK}, {sCnt} offen offset:{d*64}")
    b.wait(vm=0)
    for q in range(5):
        for d in range(4):
            b(f"{MF} {vr(80+4*q,4)}, {vr(24+4*d,4)}, {ar(QF+(q*4+d)*4,4)}, {'0' if d == 0 else vr(80+4*q,4)}")
    for q in range(5):
        b(f"v_max3_f32 v{72+q}, v{72+q}, v{80+4*q}, v{81+4*q}\nv_max3_f32 v{72+q}, v{72+q}, v{82+4*q}, v{83+4*q}")
    b(f"s_add_u32 {sCnt}, {sCnt}, 4096\ns_cmp_lt_u32 {sCnt}, 131072")
    b("s_cbranch_scc1 L_slowloop")
    maxfin([72 + q for q in range(5)])
    p2_init()
    b.label("L_slowkv")
    pair()
    b(f"s_cmp_lt_u32 {sKVs}, {(32 - NPI*SA) * 4096}")
    b("s_cbranch_scc1 L_slowkv")
    b.wait(vm=0)
    b("s_barrier")
    for i in range(8): b(k_read(i))
    b.wait(lg=0)
    b("s_branch L_p2entry")
    return b.L

def gen_probe(spec):
    i, ri, j, rj = spec.split(",")
    b = B()
    b.raw(".p2align 8"); b.raw(".type mha_probe_kernel,@function"); b.label("mha_probe_kernel")
    b("s_cmp_ge_u32 s2, 1"); b("s_cbranch_scc1 L3_end")
    b.raw("s_load_dwordx2 s[4:5], s[0:1], 56"); b.raw("s_waitcnt lgkmcnt(0)")
    b("s_mov_b32 s6, 268435456\ns_mov_b32 s7, 0x20000")
    b(f"v_mul_u32_u24 v1, 512, v0\nv_lshrrev_b32 v4, 1, v0\nv_and_b32 v4, 3, v4\nv_lshlrev_b32 v4, 7, v4\nv_add_u32 v1, v1, v4\ns_mov_b32 s8, {STAMP_OFF}")
    b(f"buffer_load_dword v2, v1, s[4:7], s8 offen offset:{8*int(i)}")
    b(f"buffer_load_dword v3, v1, s[4:7], s8 offen offset:{8*int(j)}")
    b.wait(vm=0)
    b("v_readlane_b32 s9, v2, 0")
    b("s_sub_u32 s9, s9, 100000")
    b("v_subrev_u32 v2, s9, v2\nv_subrev_u32 v3, s9, v3")
    for v, r, acc in ((2, ri, "s10"), (3, rj, "s11")):
        b(f"s_mov_b32 {acc}, {'-1' if r == 'min' else '0'}")
        for l in range(64):
            b(f"v_readlane_b32 s12, v{v}, {l}")
            b(f"{dict(min='s_min_u32', max='s_max_u32', avg='s_add_u32')[r]} {acc}, {acc}, s12")
        if r == 'avg': b(f"s_lshr_b32 {acc}, {acc}, 3")
        else: b(f"s_lshl_b32 {acc}, {acc}, 3")
    b("s_sub_u32 s10, s11, s10\ns_min_u32 s10, s10, 100000")
    b.raw("s_memrealtime s[12:13]"); b.raw("s_waitcnt lgkmcnt(0)")
    b.label("L3_spin")
    b.raw("s_memrealtime s[14:15]"); b.raw("s_waitcnt lgkmcnt(0)")
    b("s_sub_u32 s14, s14, s12\ns_cmp_lt_u32 s14, s10")
    b("s_cbranch_scc1 L3_spin")
    b.label("L3_end")
    b("s_endpgm")
    return b.L

def main():
    k, n = hazard_pass(gen(), verbose=VERB)
    head = ["; Fused MHA block, one workgroup per (batch, head): Q projection, attention, then a quarter (in k) of the output",
            "; projection; workgroups hand O and partial sums to each other through d_ws. Written by dev/gen4.py.",
            "; @launch grid=(256,1,1) block=(256,1,1) lds=163840",
            '.amdgcn_target "amdgcn-amd-amdhsa--gfx950"', ".text", f".globl {NAME}"]
    tail = ['.section .rodata,"a"', ".p2align 6", f".amdhsa_kernel {NAME}", "  .amdhsa_next_free_vgpr 488", "  .amdhsa_next_free_sgpr 102",
            "  .amdhsa_accum_offset 256", "  .amdhsa_group_segment_fixed_size 0", "  .amdhsa_kernarg_size 64", "  .amdhsa_user_sgpr_count 2",
            "  .amdhsa_user_sgpr_kernarg_segment_ptr 1", "  .amdhsa_system_sgpr_workgroup_id_x 1", ".end_amdhsa_kernel"]
    if "probe" in P:
        k3, _ = hazard_pass(gen_probe(P["probe"]))
        k = k + k3
        head[2] = f"; @launch kernel={NAME} grid=(256,1,1) block=(256,1,1) lds=163840\n; @launch kernel=mha_probe_kernel grid=(1,1,1) block=(64,1,1) lds=0"
        head.append(".globl mha_probe_kernel")
        tail += [".p2align 6", ".amdhsa_kernel mha_probe_kernel", "  .amdhsa_next_free_vgpr 8", "  .amdhsa_next_free_sgpr 32",
            "  .amdhsa_accum_offset 8", "  .amdhsa_group_segment_fixed_size 0", "  .amdhsa_kernarg_size 64", "  .amdhsa_user_sgpr_count 2",
            "  .amdhsa_user_sgpr_kernarg_segment_ptr 1", "  .amdhsa_system_sgpr_workgroup_id_x 1", ".end_amdhsa_kernel"]
    fmt = lambda l: l if l.endswith(":") or l.startswith((".", ";")) else "    " + l
    open(sys.argv[1], "w").write("\n".join(head + [fmt(l) for l in k] + tail) + "\n")
    print(f"nops inserted: {n}; lines {len(k)}")
main()
```

```python
import sys, math, struct
from asmlib import B, hazard_pass, need, estimate

P = dict(kv.split("=") for kv in sys.argv[2:])
def opt(k, d): return type(d)(P.get(k, d))
STAMPS = opt("stamps", 0); TRACE = opt("trace", 0); VERB = bool(opt("v", 0))
KVFL = opt("kvfl", "nt").replace("+", " ")
HST = opt("hst", "sc0+sc1").replace("+", " ")
HLD = opt("hld", "sc0+sc1").replace("+", " ")
FORCE_SLOW = opt("slow", 0)
SIG = opt("sig", "rot"); SIG3 = opt("sig3", "rot"); AUXT = opt("auxt", "lead")
TL = opt("tl", 11); TIT = opt("tit", 6); THALF = opt("thalf", 1)

TOUCH = opt("touch", 7)
SLEEP = opt("sleep", 4); ONEPOLL = opt("onepoll", 1); PBF = opt("pbf", 1)
NAME = "standalone__mha_block_cached__near_ridge_kernel"
STAMP_OFF = 200 << 20; NST = 16
TIMER = "s_memtime" if STAMPS == 2 else "s_memrealtime"
PART = 12 << 20; PSL = 10240 if opt('pbf', 1) else 20480; FLG1 = PART + 64 * 16 * PSL + (2 << 20); FS1 = opt('fs1', 8448); FS2 = opt('fs2', 4352); FLG2 = FLG1 + (1 << 20); WSREC = FLG2 + (2 << 20)

def vr(a, n=1, k='v'): return f"{k}{a}" if n == 1 else f"{k}[{a}:{a+n-1}]"
def ar(a, n=1): return vr(a, n, 'a')
def f32bits(x): return "0x%08x" % struct.unpack("<I", struct.pack("<f", x))[0]

def stamp(b, i):
    if STAMPS:
        b.wait(lg=0)
        b.raw(f"{TIMER} s[96:97]"); b.raw("s_waitcnt lgkmcnt(0)")
        b.raw(f"v_writelane_b32 v254, s96, {2*i}"); b.raw(f"v_writelane_b32 v254, s97, {2*i+1}")
def trace(b):
    if TRACE:
        b.wait(lg=0)
        for s in ("s_memtime s[96:97]", "s_waitcnt lgkmcnt(0)", "s_sub_u32 s96, s96, s98", "s_mov_b32 s97, m0", "s_mov_b32 m0, s100",
                  "v_writelane_b32 v0, s96, m0", "s_add_u32 s100, s100, 1", "s_mov_b32 m0, s97"): b.raw(s)

def order(kind, j):
    if kind == "seq": return list(range(16)), [2, 6, 10]
    if kind == "xor": return [t ^ j for t in range(16)], [4, 8, 12]
    o = []; lead = []
    if kind == "rot":
        for t in range(16):
            if t == 0: o.append(j)
            elif t % 4 == j and t + 3 < 16: o.append(t + 3); lead.append(t)
            else: o.append([c for c in range(16) if c not in o and (c < 4 or (c - 3) < t) and not (c >= 4 and (c - 3) % 4 == j)][0])
    elif kind == "rot2":
        for t in range(16):
            if t == 0: o.append(0)
            elif t == 1: o.append(1 + j)
            elif (t - 1) % 4 == j and t + 3 < 16: o.append(t + 3); lead.append(t)
            else: o.append([c for c in range(16) if c not in o and (c < 5 or (c - 3) < t) and not (c >= 5 and (c - 4) % 4 == j)][0])
    assert sorted(o) == list(range(16)), o
    lead = [t for t in lead if t >= 2][:3]
    while len(lead) < 3: lead.append(lead[-1] + 2)
    return o, lead
def tables(kind):
    T = []
    for j in range(4):
        o, lead = order(kind, j)
        if AUXT != "lead": lead = [int(v) + 2 for v in AUXT.split(".")]
        val = sum(c << (4 * t) for t, c in enumerate(o))
        T.append((val & 0xffffffff, val >> 32, sum(1 << (t - 1) for t in lead)))
    return T

def order3(j, p):
    if SIG3 == "seq": o = list(range(14))
    else:
        o = []
        for t in range(14):
            if t == 0: o.append(j)
            elif t % 4 == j and t + 3 < 14: o.append(t + 3)
            else: o.append([c for c in range(14) if c not in o and (c < 4 or (c - 3) < t) and not (c >= 4 and (c - 3) % 4 == j)][0])
        assert sorted(o) == list(range(14))
        if p and SIG3 == "rotp": o = [(c + 7) % 14 for c in o]
    val = sum((c + 2) << (4 * t) for t, c in enumerate(o))
    return val & 0xffffffff, val >> 32
def gen():
    b = B()
    SX, SW, SK, SV, SO, SD = "s[4:7]", "s[8:11]", "s[12:15]", "s[16:19]", "s[20:23]", "s[24:27]"
    SOUT, SX3, SW3 = "s[68:71]", "s[72:75]", "s[76:79]"
    sW, sB, sH, sCnt = "s28", "s29", "s30", "s31"
    sRB, sDB, sDelta, sMask = "s32", "s33", "s34", "s35"
    sXO, sWO, sMX, sMW, sM5, sT, sT2, sT3 = "s36", "s37", "s38", "s39", "s40", "s41", "s42", "s43"
    sW4, sW1, sPB, sKVm, sKVs, sPass, sO0, sO1, sCls = "s44", "s45", "s46", "s47", "s48", "s49", "s50", "s51", "s52"
    sCc, sSpin, sQH, sKH = "s53", "s54", "s56", "s57"
    sBl, sHl, sKq, sEv = "s60", "s61", "s62", "s63"
    sNon = "s[64:65]"
    sPs = [None, "s82", "s83", "s84"]; sPl = [None, "s85", "s86", "s87"]
    sF1, sOut, sRdy, sF2 = "s88", "s89", "s90", "s91"
    XA = [2, 3]; WA = [4, 5, 6, 7]; VB = [8, 9, 10, 11, 12]; VW = [13, 14, 15, 16]; KVW, NONV, L16 = 17, 18, 20
    ACC = 24; OK = 104; KA = [184, 185, 186, 187]; VA = list(range(188, 196)); NM = 196; LA = 216; L16B = 236; TCH = 237
    XA3 = [238, 239]; ZR = 240; WA3 = [244, 245, 246, 247]; VW3 = [248, 249, 250, 251]; VB3 = [252] * 4 + [253]; OUTV = 255
    SB = [24, 32, 40]; PB = [48, 52, 56]
    OS, QF, KF, VF, ONES, JUNK, K0F = 0, 80, 160, 192, 224, 228, 240
    STG = [VF + 4*i for i in range(8)] + [232, 236]
    AF = [80, 96]; BF = [112, 132]
    ST0 = 53248; STSZ = 36864; LDS = 163840; QEX = 122880
    S3 = [ST0 + STSZ, ST0 + 2*STSZ]
    FL = 256; SPIN = 200000
    MF = "v_mfma_f32_16x16x32_bf16"

    b.raw(".p2align 8")
    b.raw(f".type {NAME},@function")
    b.label(NAME)
    b("s_cmp_ge_u32 s2, 256")
    b("s_cbranch_scc1 L_end")
    b.track = False
    b("s_load_dwordx4 s[4:7], s[0:1], 0")
    b("s_load_dwordx4 s[8:11], s[0:1], 16")
    b("s_load_dwordx4 s[68:71], s[0:1], 40")
    b("s_load_dwordx2 s[76:77], s[0:1], 32")
    b("s_load_dwordx2 s[20:21], s[0:1], 56")
    b("s_memrealtime s[64:65]")
    if STAMPS: b.raw(f"{TIMER} s[94:95]")
    if TRACE: b.raw("s_memtime s[98:99]"); b.raw("s_mov_b32 s100, 0")
    b.track = True
    b("v_and_b32 v1, 63, v0\nv_lshrrev_b32 v21, 6, v0")
    b(f"s_and_b32 {sB}, s2, 1\ns_lshl_b32 {sB}, {sB}, 2\ns_lshr_b32 {sT}, s2, 3\ns_and_b32 {sBl}, {sT}, 3\ns_add_u32 {sB}, {sB}, {sBl}")
    b(f"v_readfirstlane_b32 {sW}, v21")
    b(f"s_lshr_b32 {sKq}, s2, 1\ns_and_b32 {sKq}, {sKq}, 3\ns_lshl_b32 {sH}, {sKq}, 3\ns_lshr_b32 {sHl}, {sT}, 2\ns_add_u32 {sH}, {sH}, {sHl}")
    b(f"s_add_u32 {sCls}, {sBl}, {sHl}\ns_and_b32 {sCls}, {sCls}, 3")
    T = tables(SIG)
    b(f"s_mov_b32 s58, {T[0][0]}\ns_mov_b32 s59, {T[0][1]}\ns_mov_b32 {sMask}, {T[0][2]}")
    for j in (1, 2, 3):
        b(f"s_cmp_eq_u32 {sCls}, {j}\ns_cselect_b32 s58, {T[j][0]}, s58\ns_cselect_b32 s59, {T[j][1]}, s59\ns_cselect_b32 {sMask}, {T[j][2]}, {sMask}")
    if opt("xoff", 1):
        b(f"s_xor_b32 {sT2}, s2, {sKq}\ns_bitcmp1_b32 {sT2}, 0\ns_cselect_b32 {sT2}, 0x88888888, 0\ns_xor_b32 s58, s58, {sT2}\ns_xor_b32 s59, s59, {sT2}")
    b(f"s_lshl_b32 {sW4}, {sW}, 12\ns_lshl_b32 {sW1}, {sW}, 10\ns_and_b32 {sQH}, {sW}, 1\ns_lshr_b32 {sKH}, {sW}, 1")
    b("v_lshrrev_b32 v21, 4, v1")
    b("v_and_b32 v22, 7, v1\nv_xor_b32 v22, v22, v21\nv_lshlrev_b32 v22, 4, v22")
    b("v_lshrrev_b32 v23, 3, v1\nv_lshlrev_b32 v23, 11, v23\nv_add_u32 v22, v22, v23\nv_xor_b32 v23, 64, v22")
    b(f"s_lshl_b32 {sT}, {sW}, 16")
    for q in range(4):
        b(f"s_add_u32 {sT2}, {sT}, {q*(16384-1024)}\nv_add_u32 v{VB[q]}, {sT2}, v{23 if q & 1 else 22}")
    b(f"s_lshl_b32 {sT}, {sQH}, 6\nv_xor_b32 v{VB[4]}, {sT}, v22\ns_lshl_b32 {sT}, {sW}, 14\ns_add_u32 {sT}, {sT}, {16*16384}\nv_add_u32 v{VB[4]}, {sT}, v{VB[4]}")
    b("v_lshlrev_b32 v22, 1, v21\nv_and_b32 v23, 15, v1\nv_xor_b32 v22, v22, v23\nv_lshlrev_b32 v22, 4, v22")
    b(f"v_lshlrev_b32 v23, 13, v21\nv_add_u32 v23, v23, v22\nv_xor_b32 v{L16}, 128, v23")
    b(f"s_lshl_b32 {sT}, {sW}, 17")
    for q in range(4):
        b(f"s_add_u32 {sT2}, {sT}, {q*(32768-1024)}\nv_add_u32 v{VW[q]}, {sT2}, v{L16 if q & 2 else 23}")
    b(f"s_add_u32 {sM5}, {sW1}, 16384")
    b(f"s_lshl_b32 {sT}, {sB}, 5\ns_add_u32 {sT}, {sT}, {sH}\ns_lshl_b32 {sT}, {sT}, 17\ns_lshl_b32 {sT2}, {sH}, 8\ns_mul_i32 {sT3}, {sB}, 327680")
    b.raw("s_waitcnt lgkmcnt(0)")
    b(f"s_add_u32 s12, s6, {sT}\ns_addc_u32 s13, s7, 0")
    b(f"s_add_u32 s16, s8, {sT}\ns_addc_u32 s17, s9, 0")
    b(f"s_add_u32 s8, s10, {sT2}\ns_addc_u32 s9, s11, 0\ns_sub_u32 s10, 8388608, {sT2}\ns_mov_b32 s11, 0x20000")
    b(f"s_add_u32 s4, s4, {sT3}\ns_addc_u32 s5, s5, 0\ns_mov_b32 s6, 327680\ns_mov_b32 s7, 0x20000")
    def dma_lists(vw, sw, vb, sx, fl=""):
        return ([f"buffer_load_dwordx4 v{vw[q]}, {sw}, {sWO} offen offset:{q*1024} lds" for q in range(4)],
                [f"buffer_load_dwordx4 v{vb[q]}, {sx}, {sXO} offen offset:{q*1024} {fl} lds" for q in range(4)] +
                [f"buffer_load_dwordx4 v{vb[4]}, {sx}, {sXO} offen {fl} lds"])
    DW, DX = dma_lists(VW, SW, VB, SX)
    DW3, DX3 = dma_lists(VW3, SW3, VB3, SX3, HLD)
    def first_stage(st):
        base = ST0 + ((st+2)%3)*STSZ
        b(f"s_and_b32 {sT}, s58, 15\ns_add_u32 m0, {sW4}, {base+20480}\ns_lshl_b32 {sWO}, {sT}, 19")
        for x in DW: b(x)
        b(f"s_add_u32 m0, {sW4}, {base}\ns_lshl_b32 {sXO}, {sT}, 7")
        for x in DX[:4]: b(x)
    def first_stage_last(st):
        base = ST0 + ((st+2)%3)*STSZ
        b(f"s_add_u32 m0, {sM5}, {base}\ns_lshr_b64 s[58:59], s[58:59], 4")
        b(DX[4])
    first_stage(0)
    if not opt("late5", 0): first_stage_last(0)
    if STAMPS: b.raw("v_writelane_b32 v254, s94, 0"); b.raw("v_writelane_b32 v254, s95, 1")
    for i in range(4): b(f"v_mov_b32 v{ZR+i}, 0")
    b("s_mov_b32 s14, 131072\ns_mov_b32 s15, 0x20000\ns_mov_b32 s18, 131072\ns_mov_b32 s19, 0x20000")
    b(f"s_mov_b32 s22, {268435456 if STAMPS else WSREC}\ns_mov_b32 s23, 0x20000")
    b("s_mov_b32 s24, s70\ns_mov_b32 s25, s71\ns_mov_b32 s26, 256\ns_mov_b32 s27, 0x20000")
    b(f"s_add_u32 s68, s68, {sT3}\ns_addc_u32 s69, s69, 0\ns_mov_b32 s70, 327680\ns_mov_b32 s71, 0x20000")
    def zero(r):
        big = int(r.split(":")[1][:-1]) - int(r.split("[")[1].split(":")[0]) == 15
        return f"{'v_mfma_f32_32x32x16_bf16' if big else MF} {r}, {vr(ZR,4)}, {vr(ZR,4)}, 0"
    ZEROS = [zero(vr(OK+16*i, 16)) for i in range(5)] + [zero(ar(OS+16*i, 16)) for i in range(5)] + [zero(vr(LA, 16)), zero(vr(LA+16, 4))]
    i0 = len(b.L)
    b(f"s_mov_b32 {sRB}, {ST0 + 2*STSZ}\ns_mov_b32 {sCnt}, 0\ns_mov_b32 {sPass}, 0\ns_mov_b32 {sDB}, {ST0 + STSZ}\ns_mov_b32 {sEv}, 0")
    b(f"v_lshlrev_b32 v23, 11, v21\nv_add_u32 v23, v23, v22\nv_xor_b32 v24, 128, v23\ns_lshl_b32 {sT}, {sW}, 15")
    for q in range(4):
        b(f"s_add_u32 {sT2}, {sT}, {q*(8192-1024)}\nv_add_u32 v{VW3[q]}, {sT2}, v{24 if q & 1 else 23}")
    b("v_lshlrev_b32 v23, 8, v21\nv_add_u32 v22, v22, v23")
    b(f"s_lshl_b32 {sT}, {sQH}, 7\nv_xor_b32 v{KVW}, {sT}, v22\nv_add_u32 v{KVW}, {sW1}, v{KVW}")
    b(f"v_lshlrev_b32 v{L16}, 4, v1\nv_add_u32 v{L16B}, 4096, v{L16}")
    b(f"v_add_u32 v{VB3[0]}, {sW4}, v{L16}\nv_add_u32 v{VB3[4]}, {sM5}, v{L16}")
    b("v_and_b32 v26, 15, v1\nv_lshrrev_b32 v27, 1, v26\nv_xor_b32 v27, v27, v21\nv_lshlrev_b32 v27, 4, v27\nv_lshlrev_b32 v25, 7, v26\nv_add_u32 v27, v27, v25")
    b(f"v_lshlrev_b32 v26, 11, v26\nv_lshlrev_b32 v25, 3, v21\nv_add_u32 v{OUTV}, v26, v25")
    b(f"s_mul_i32 {sT}, {sQH}, 10240\ns_add_u32 {sT}, {sT}, {sRB}")
    for u in range(2): b(f"v_xor_b32 v{XA[u]}, {u*64}, v27\nv_add_u32 v{XA[u]}, {sT}, v{XA[u]}")
    b("v_lshrrev_b32 v30, 2, v1\nv_and_b32 v31, 7, v30\nv_and_b32 v26, 3, v30")
    b(f"s_lshl_b32 {sT}, {sKH}, 2\nv_xor_b32 v27, {sT}, v31\nv_lshlrev_b32 v27, 5, v27")
    b("v_add_u32 v28, v25, v26\nv_lshlrev_b32 v28, 8, v28")
    b("v_and_b32 v29, 3, v1\nv_lshlrev_b32 v29, 3, v29\nv_add3_u32 v28, v28, v27, v29")
    b(f"s_add_u32 {sT}, {sRB}, 20480")
    for d in range(4): b(f"v_xor_b32 v{WA[d]}, {d*32}, v28\nv_add_u32 v{WA[d]}, {sT}, v{WA[d]}")
    b(f"s_mul_i32 {sT}, {sQH}, 5120\ns_add_u32 {sT}, {sT}, {S3[0]}\nv_add_u32 v{XA3[0]}, {sT}, v{L16}\nv_add_u32 v{XA3[1]}, 10240, v{XA3[0]}")
    b(f"s_lshl_b32 {sT}, {sKq}, 1\ns_add_u32 {sT}, {sT}, {sKH}\nv_xor_b32 v27, {sT}, v31\nv_lshlrev_b32 v27, 5, v27")
    b("v_lshlrev_b32 v30, 8, v30\nv_add3_u32 v27, v27, v30, v29")
    for d in range(4): b(f"v_xor_b32 v{WA3[d]}, {d*64}, v27\nv_add_u32 v{WA3[d]}, {S3[0]+20480}, v{WA3[d]}")
    b(f"s_lshl_b32 {sOut}, {sT}, 5\ns_mul_i32 {sT2}, {sQH}, 163840\ns_add_u32 {sOut}, {sOut}, {sT2}\ns_lshl_b32 {sT3}, {sHl}, 8\ns_add_u32 {sOut}, {sOut}, {sT3}")
    b(f"s_mul_i32 {sT}, {sB}, 1310720\ns_lshl_b32 {sT2}, {sH}, 1\ns_add_u32 {sT2}, {sT2}, {sKH}\ns_mul_i32 {sT2}, {sT2}, 20480\ns_add_u32 {sO0}, {sT}, {sT2}")
    b(f"s_mul_i32 {sT2}, {sQH}, 5120\ns_add_u32 {sO0}, {sO0}, {sT2}\ns_add_u32 {sO1}, {sO0}, 10240")
    b(f"s_mul_i32 {sT2}, {sKq}, 327680\ns_add_u32 {sT}, {sT}, {sT2}\ns_add_u32 s72, s20, {sT}\ns_addc_u32 s73, s21, 0\ns_mov_b32 s74, 327680\ns_mov_b32 s75, 0x20000")
    b(f"s_lshl_b32 {sT}, {sKq}, 21\ns_add_u32 {sT}, {sT}, {sT3}\ns_add_u32 s76, s76, {sT}\ns_addc_u32 s77, s77, 0\ns_sub_u32 s78, 8388608, {sT}\ns_mov_b32 s79, 0x20000")
    if TOUCH == 1:
        if THALF: b(f"s_lshr_b32 {sT}, s2, 3\ns_lshl_b32 {sT}, {sT}, 1\ns_and_b32 {sT2}, s2, 1\ns_add_u32 {sT}, {sT}, {sT2}\ns_lshl_b32 {sT}, {sT}, 15")
        else: b(f"s_lshr_b32 {sT}, s2, 3\ns_lshl_b32 {sT}, {sT}, 16")
        b(f"s_sub_u32 {sT}, {sT}, {sT3}\ns_lshl_b32 {sT2}, {sW}, {13 if THALF else 14}\ns_add_u32 {sT}, {sT}, {sT2}")
        b(f"v_cmp_gt_u32 vcc, {TL}, v1\nv_lshlrev_b32 v25, 7, v1\nv_add_u32 v25, {sT}, v25\nv_mov_b32 v26, 0x40000000\nv_cndmask_b32 v{TCH}, v26, v25, vcc")
    b(f"s_mov_b32 s80, {order3(0,0)[0]}\ns_mov_b32 s81, {order3(0,0)[1]}")
    for bb in range(1, 8):
        if order3(bb & 3, bb >> 2) != order3(0, 0):
            b(f"s_cmp_eq_u32 {sB}, {bb}\ns_cselect_b32 s80, {order3(bb & 3, bb >> 2)[0]}, s80\ns_cselect_b32 s81, {order3(bb & 3, bb >> 2)[1]}, s81")
    b(f"s_mul_i32 {sT}, {sHl}, 0x22222222\ns_xor_b32 s80, s80, {sT}\ns_xor_b32 s81, s81, {sT}")
    if TOUCH == 7:
        b(f"s_and_b32 {sT}, s80, 15\ns_lshl_b32 {sT}, {sT}, 17\ns_lshl_b32 {sT2}, {sW}, 15\ns_add_u32 {sT}, {sT}, {sT2}")
        b(f"v_cmp_gt_u32 vcc, 32, v1\nv_lshrrev_b32 v25, 1, v1\nv_lshlrev_b32 v25, 11, v25\nv_and_b32 v26, 1, v1\nv_lshlrev_b32 v26, 7, v26\nv_add3_u32 v25, v25, v26, {sT}")
        b(f"v_mov_b32 v26, 0x40000000\nv_cndmask_b32 v{TCH}, v26, v25, vcc")
    b(f"s_mul_i32 {sF2}, {sB}, {4*FS1}\ns_add_u32 {sF2}, {sF2}, {FLG1}\ns_mul_i32 {sT}, {sKq}, {FS1}\ns_add_u32 {sF1}, {sF2}, {sT}\ns_add_u32 {sF2}, {sF2}, {sT3}")
    if not opt("sent", 0):
        b(f"s_lshl_b32 {sF2}, {sB}, 3\ns_add_u32 {sF2}, {sF2}, {sHl}\ns_lshl_b32 {sF2}, {sF2}, 2")
        if opt("f2w", 0): b(f"s_add_u32 {sF2}, {sF2}, {sW}")
        b(f"s_mul_i32 {sF2}, {sF2}, {FS2}\ns_add_u32 {sF2}, {sF2}, {FLG2}")
    b(f"s_lshl_b32 {sT}, {sB}, 3\ns_add_u32 {sT}, {sT}, {sHl}\ns_mul_i32 {sT}, {sT}, {16*PSL}\ns_mul_i32 {sT2}, {sW}, {PSL//4}\ns_add_u32 {sT}, {sT}, {sT2}\ns_add_u32 {sT}, {sT}, {PART}")
    for d in (1, 2, 3):
        b(f"s_xor_b32 {sT2}, {sKq}, {d}\ns_lshl_b32 {sT3}, {sT2}, 2\ns_add_u32 {sT3}, {sT3}, {sKq}\ns_mul_i32 {sT3}, {sT3}, {PSL}\ns_add_u32 {sPs[d]}, {sT}, {sT3}")
        b(f"s_lshl_b32 {sT3}, {sKq}, 2\ns_add_u32 {sT3}, {sT3}, {sT2}\ns_mul_i32 {sT3}, {sT3}, {PSL}\ns_add_u32 {sPl[d]}, {sT}, {sT3}")
    b(f"s_mov_b32 {sCc}, {f32bits(math.log2(math.e) / math.sqrt(128.0))}")
    def p2_addr():
        b("v_lshrrev_b32 v21, 4, v1\nv_and_b32 v22, 7, v1\nv_lshlrev_b32 v22, 1, v22\nv_xor_b32 v22, v22, v21\nv_lshlrev_b32 v22, 4, v22")
        b("v_and_b32 v23, 15, v1\nv_lshlrev_b32 v23, 8, v23\nv_add_u32 v22, v22, v23")
        b(f"s_lshl_b32 {sT}, {sKH}, 14")
        for d in range(4): b(f"v_xor_b32 v{KA[d]}, {d*64}, v22\nv_add_u32 v{KA[d]}, {sT}, v{KA[d]}")
        b(f"v_lshrrev_b32 v21, 2, v1\nv_and_b32 v22, 7, v21\ns_lshl_b32 {sT2}, {sKH}, 2\nv_xor_b32 v22, {sT2}, v22\nv_lshlrev_b32 v22, 5, v22")
        b("v_lshlrev_b32 v21, 8, v21\nv_and_b32 v23, 3, v1\nv_lshlrev_b32 v23, 3, v23\nv_add3_u32 v22, v22, v21, v23")
        b(f"s_add_u32 {sT}, {sT}, 4096")
        for j in range(8): b(f"v_xor_b32 v{VA[j]}, {j*32}, v22\nv_add_u32 v{VA[j]}, {sT}, v{VA[j]}")
        b(f"s_mov_b32 {sPB}, 0\ns_mov_b32 {sKVm}, {sW1}\ns_mov_b32 {sKVs}, 0")
    p2_addr()
    b("v_mov_b32 v21, 0x3f803f80")
    for i in range(4): b(f"v_accvgpr_write_b32 a{ONES+i}, v21")
    b("v_lshrrev_b32 v21, 5, v1\nv_lshlrev_b32 v21, 8, v21\nv_and_b32 v22, 15, v1\nv_lshlrev_b32 v22, 4, v22\nv_lshrrev_b32 v23, 1, v1\nv_and_b32 v23, 8, v23\nv_add3_u32 v21, v21, v22, v23")
    b(f"s_mul_i32 {sT2}, {sQH}, 20480\ns_add_u32 {sT2}, {sT2}, {QEX}\nv_add_u32 v22, {sT2}, v{L16}\ns_lshl_b32 {sT3}, {sKH}, 11\ns_add_u32 {sT2}, {sT2}, {sT3}\nv_add_u32 v21, {sT2}, v21")
    b("v_and_b32 v23, 48, v1")
    for i in range(4): b(f"v_mov_b32 v{24+i}, -1")
    b(f"v_lshrrev_b32 v28, 1, v{L16}")
    code = b.L[i0:]; b.L = b.L[:i0]
    step = len(code) // (len(ZEROS) + 1)
    for i, ln in enumerate(code):
        if i % step == 0 and i // step < len(ZEROS): b.L.append(ZEROS[i // step])
        b.L.append(ln)
    print("setup estimate", estimate(b.L))
    if opt("late5", 0): first_stage_last(0)
    first_stage(1); first_stage_last(1)
    SENT = opt("sent", 0); F2W = opt("f2w", 0)
    CLR = opt("clr", 0) if SENT else 2
    def clears(r):
        out = []
        for d in (1, 2, 3):
            for h in range(2): out.append(f"buffer_store_dwordx4 {vr(r,4)}, v{L16}, {SO}, {sPl[d]} offen offset:{h*1024} {HST}")
            out.append(f"buffer_store_dwordx2 {vr(r,2)}, v{r+4}, {SO}, {sPl[d]} offen offset:2048 {HST}")
        return out
    if CLR == 0:
        for x in clears(24): b(x)
    b(f"s_or_b32 {sT}, s2, {sW}\ns_cmp_lg_u32 {sT}, 0")
    b("s_cbranch_scc1 L_nonon")
    b(f"s_or_b32 s64, s64, 1\nv_mov_b32 v30, s64\nv_mov_b32 v31, s65")
    b(f"buffer_store_dwordx2 v[30:31], v{ZR}, {SD}, 0 offen sc0 sc1")
    b.label("L_nonon")
    b.vm = []
    b.raw(f"s_waitcnt vmcnt({18 if CLR == 0 else 9})")
    stamp(b, 1)

    def g_mfmas(buf, dord=(0, 1, 2, 3), c0=False):
        return [f"{MF} {vr(ACC+(d*5+q)*4,4)}, {ar(AF[buf]+4*d,4)}, {ar(BF[buf]+4*q,4)}, {'0' if c0 else vr(ACC+(d*5+q)*4,4)}" for d in dord for q in range(5)]
    def emit(x):
        if callable(x): x()
        else: b(x)
    def g_step(ph, dm, fill, first=False, more=()):
        trace(b)
        b("s_barrier")
        trace(b)
        vs, qs = ((1024, 2048), (4096, 1024))[ph == 3]
        xa, wa = (XA, WA) if ph == 1 else (XA3, WA3)
        more = list(more)
        for u in range(2):
            A = lambda d: [f"ds_read_b64_tr_b16 {ar(AF[u]+4*d+2*v,2)}, v{wa[d]} offset:{u*8192+v*vs}" for v in range(2)]
            rd = A(0) + [f"ds_read_b128 {ar(BF[u]+4*q,4)}, v{xa[u]} offset:{q*qs}" for q in range(5)] + A(1) + A(2) + A(3)
            mf = g_mfmas(u ^ 1, c0=first)
            if first and u == 0:
                for s in rd: b(s)
                rd = []
            for i in range(20):
                if not (first and u == 0): b(mf[i])
                if (u, i) in dm: b(dm[(u, i)])
                elif rd: b(rd.pop(0))
                elif more: b(more.pop(0))
                for s in fill.get((u, i), []): emit(s)
                if u == 0 and i == 18: need(b, [ar(AF[0], 8), ar(BF[0], 20)])
                if u == 1 and i == 4: need(b, [ar(AF[0], 16)])
            assert not rd
        return more
    va = lambda r: f"v_add_u32 v{r}, {sDelta}, v{r}"
    def ringf(ph):
        xa, wa = (XA, WA) if ph == 1 else (XA3, WA3)
        return {(0, 7): [f"s_add_u32 {sT2}, {sRB}, {STSZ}"], (0, 9): [f"s_cmp_ge_u32 {sT2}, {LDS}"], (0, 10): [f"s_cselect_b32 {sT2}, {ST0}, {sT2}"],
                (0, 11): [f"s_sub_u32 {sDelta}, {sT2}, {sRB}"], (0, 14): [va(xa[0])],
                (1, 2): [va(wa[0])], (1, 7): [va(xa[1])], (1, 10): [va(wa[1])], (1, 12): [va(wa[2])], (1, 15): [va(wa[3])]}
    DG = [(0, 4), (0, 8), (0, 12), (0, 16), (0, 19), (1, 9), (1, 13), (1, 16), (1, 18)]
    def loopf(ph):
        f = ringf(ph)
        sg = "s58" if ph == 1 else "s80"; sgp = "s[58:59]" if ph == 1 else "s[80:81]"
        f.update({(0, 0): [f"s_and_b32 {sT}, {sg}, 15"], (0, 1): [f"s_lshl_b32 {sWO}, {sT}, {19 if ph == 1 else 17}"],
                  (0, 2): [f"s_add_u32 {sMX}, {sDB}, {sW4}"], (0, 3): [f"s_add_u32 m0, {sMX}, 20480"],
                  (0, 5): [f"s_lshl_b32 {sXO}, {sT}, 7" if ph == 1 else f"s_mul_i32 {sXO}, {sT}, 20480"],
                  (0, 6): [f"s_lshr_b64 {sgp}, {sgp}, 4"], (0, 17): [f"s_mov_b32 m0, {sMX}"],
                  (1, 0): [f"s_add_u32 {sMW}, {sDB}, {sM5}"], (1, 1): [f"s_mov_b32 {sDB}, {sRB}"], (1, 3): [f"s_mov_b32 {sRB}, {sT2}"],
                  (1, 5): [f"s_add_u32 {sCnt}, {sCnt}, 1"], (1, 6): [f"s_cmp_lt_u32 {sCnt}, 14"], (1, 8): ["s_cselect_b64 vcc, -1, 0"],
                  (1, 17): [f"s_mov_b32 m0, {sMW}"] + ([f"s_bitcmp1_b32 {sMask}, {sCnt}"] if ph == 1 else [])})
        return f
    def first_fill(ph):
        f = loopf(ph); g = {}
        g[(0, 0)] = sum([f[(0, i)] for i in (0, 1, 2, 3, 5, 6, 7, 9, 10, 11, 14)], []) + f[(1, 0)] + f[(1, 1)] + f[(1, 3)] + f[(1, 5)] + f[(1, 6)] + f[(1, 8)]
        return f, g
    f, g = first_fill(1)
    DG0 = [(1, 13), (1, 14), (1, 15), (1, 16)]
    g.update({(1, 2): f[(1, 2)], (1, 7): f[(1, 7)], (1, 9): f[(1, 10)], (1, 11): f[(1, 12)], (1, 17): f[(1, 15)] + f[(0, 17)]})
    g_step(1, dict(zip(DG0 + [(1, 18), (1, 19)], DW + DX[:2])), g, first=True)
    b(DX[2]); b(DX[3]); b(f"s_mov_b32 m0, {sMW}\ns_bitcmp1_b32 {sMask}, {sCnt}"); b(DX[4])
    b("s_branch L_p1end")
    b.raw(".p2align 3")
    b.label("L_p1")
    b.lg = []
    i0 = len(b.L)
    g_step(1, dict(zip(DG, DW + DX)), loopf(1))
    b.label("L_p1end")
    b("s_cbranch_scc1 L_aux")
    b.wait(lg=0, vm=9)
    b.label("L_auxback")
    b("s_cbranch_vccnz L_p1")
    print("gemm step estimate", estimate(b.L[i0:], verbose=VERB))
    b.vm = []
    stamp(b, 2)
    KLD = f"buffer_load_dwordx4 v{KVW}, {SK}, {sKVs} offen {KVFL} lds"
    VLD = f"buffer_load_dwordx4 v{KVW}, {SV}, {sKVs} offen {KVFL} lds"
    M0K = f"s_mov_b32 m0, {sKVm}"; M0V = f"s_add_u32 m0, m0, 4096"
    ADV = [f"s_add_u32 {sKVm}, {sKVm}, 8192", f"s_add_u32 {sKVs}, {sKVs}, 4096"]
    def pair():
        b(M0K); b(ADV[0]); b(KLD); b(M0V); b(VLD); b(ADV[1])
    n14 = opt("n14", 2); n15 = opt("n15", 2); nq = opt("nq", 2); npro = 9 - n14 - n15 - nq
    assert n14 <= 4 and n15 <= 4 and 0 <= nq <= 3 and 0 <= npro <= 3
    def k_read(i): return f"ds_read_b128 {ar(KF+4*i,4)}, v{KA[i%4]} offset:{(i//4)*8192}"
    def v_read(j): return [f"ds_read_b64_tr_b16 {ar(VF+4*j+2*v,2)}, v{VA[j]} offset:{v*8192}" for v in range(2)]
    def kv_step(n, extra, more=()):
        slots = [((0, 3), (0, 4), (0, 6), (0, 8), (0, 12), (0, 13)), ((0, 15), (0, 16), (0, 17), (0, 19), (1, 0), (1, 1)),
                 ((1, 8), (1, 9), (1, 11), (1, 13), (1, 14), (1, 14)), ((1, 15), (1, 16), (1, 17), (1, 18), (1, 19), (1, 19))]
        dm = {}; f = {k: list(v) for k, v in extra.items()}
        for a, k, c, v, e, e2 in ([slots[0], slots[2]] if n == 2 else slots[:n]):
            f.setdefault(a, []).append(M0K); dm[k] = KLD; f.setdefault(c, []).append(M0V); dm[v] = VLD
            f.setdefault(e, []).append(ADV[0]); f.setdefault(e2, []).append(ADV[1])
        return g_step(1, dm, f, more=more)
    kv_step(n14, ringf(1))
    b.wait(lg=0, vm=2*n14)
    more = kv_step(n15, {}, [f"ds_read_b128 {ar(K0F+4*d,4)}, v23 offset:{d*64}" for d in range(4)] + [k_read(i) for i in range(8)])
    need(b, [ar(AF[1], 16), ar(BF[1], 20)])
    b("s_barrier")
    i0 = len(b.L)
    def pack(t):
        a = ACC + t * 4
        for i in range(4): b(f"v_mul_f32 v{a+i}, {sCc}, v{a+i}")
        b(f"v_cvt_pk_bf16_f32 v{a}, v{a}, v{a+1}\nv_cvt_pk_bf16_f32 v{a+1}, v{a+2}, v{a+3}")
    def qwr(t):
        d, q = divmod(t, 5); a = ACC + t * 4
        b(f"ds_write_b64 v21, {vr(a,2)} offset:{q*4096+(d>>1)*1024+(d&1)*512}")
    mf = g_mfmas(1)
    for i in range(25):
        if i < 20: b(mf[i])
        if i == 0: b(f"buffer_load_dwordx2 {vr(NONV,2)}, v{ZR}, {SD}, 0 offen sc0 sc1")
        elif i < 4:
            for k in range(2):
                if more: b(more.pop(0))
        if i in ((4, 14) if nq == 2 else (4, 11, 18)[:nq]): pair()
        if 0 <= i - 5 < 20: qwr(i - 5)
        if 0 <= i - 4 < 20: pack(i - 4)
    assert not more
    b(f"s_add_u32 {sT}, {sW1}, {QEX}\nv_add_u32 v21, {sT}, v{L16}")
    b.wait(lg=0)
    b("s_barrier")
    print("q pack estimate", estimate(b.L[i0:]))
    stamp(b, 3)
    i0 = len(b.L)
    qr = [f"ds_read_b128 {ar(QF+(q*4+d)*4,4)}, v22 offset:{q*4096+d*1024}" for q in range(5) for d in range(4)]
    for i in range(10): b(qr.pop(0))
    if npro >= 1: pair()
    sw = [f"ds_write_b128 v21, {ar(STG[i],4)} offset:{i*4096}" for i in range(10)]
    neg = [f"v_sub_f32 v{NM+i}, 0, v{NM+i}" for i in range(20)]
    for t in range(20):
        q, d = divmod(t, 4)
        b(f"{MF} {vr(NM+4*q,4)}, {ar(K0F+4*d,4)}, {ar(QF+t*4,4)}, {'0' if d == 0 else vr(NM+4*q,4)}")
        if qr: b(qr.pop(0))
        if t == 13:
            need(b, [ar(QF, 80)])
            b("s_barrier")
        if t >= 14: b(sw.pop(0))
        if t >= 8: b(neg.pop(0))
    if npro >= 2: pair()

    def col(n): return (0, 1, 0, 1, 2)[n % 5]
    def s_mfma(n, i):
        kt, d = i // 4, i % 4; q = n % 5
        dst = vr(SB[col(n)] + 4*kt, 4)
        return f"{MF} {dst}, {ar(KF+4*i,4)}, {ar(QF+(q*4+d)*4,4)}, {vr(NM+4*q,4) if d == 0 else dst}"
    def oreg(q, j): return vr(OK + (q*4+j)*4, 4) if j < 4 else ar(OS + (q*4+j-4)*4, 4)
    def p_mfma(n, j):
        q = n % 5
        if j == 8: return f"{MF} {vr(LA+4*q,4)}, {ar(ONES,4)}, {vr(PB[col(n)],4)}, {vr(LA+4*q,4)}"
        return f"{MF} {oreg(q,j)}, {ar(VF+4*j,4)}, {vr(PB[col(n)],4)}, {oreg(q,j)}"
    def v_exp(n, e): return f"v_exp_f32 v{SB[col(n)]+e}, v{SB[col(n)]+e}"
    def v_cvt(n, c): return f"v_cvt_pk_bf16_f32 v{PB[col(n)]+c}, v{SB[col(n)]+2*c}, v{SB[col(n)]+2*c+1}"
    NU = 40
    def slot(n, mem=None, sal=None, val=None):
        mem = mem or {}; sal = sal or {}; val = val or {}
        for p in range(17):
            if p < 16 and p % 2 == 0:
                if 0 <= n + 1 < NU: b(s_mfma(n + 1, p // 2))
            elif 0 <= n - 1 < NU: b(p_mfma(n - 1, p // 2))
            for s in mem.get(p, []): b(s)
            for s in sal.get(p, []): emit(s)
            if 0 <= n < NU:
                if p % 2 == 0 and p < 16: b(v_exp(n, p // 2))
                if p % 4 == 3: b(v_cvt(n, p // 4))
            for s in val.get(p, []): b(s)
    VR = [x for j in range(8) for x in v_read(j)]
    for i in range(8):
        b(s_mfma(0, i))
        b(sw.pop(0) if sw else VR[i - 4])
        b(neg.pop(0))
    assert not sw and not neg
    if npro >= 3: pair()
    if CLR == 1:
        for i in range(4): b(f"v_mov_b32 v{60+i}, -1")
        b(f"v_lshrrev_b32 v64, 1, v{L16}")
        for x in clears(60): b(x)
    b.label("L_p2entry")
    for i in range(8):
        b(s_mfma(1, i))
        b(VR[4 + i])
        if i >= 2 and i % 2 == 0: b(v_cvt(0, i // 2 - 1))
        b(v_exp(0, i))
    b(f"s_sub_u32 m0, {sW1}, 4096\ns_mov_b32 {sKVs}, {20*4096}\ns_mov_b32 {sKVm}, 0\ns_mov_b32 {sCnt}, 0")
    b(v_cvt(0, 3))
    print("p2 prologue estimate", estimate(b.L[i0:]))
    stamp(b, 4)
    nd = lambda *ops: (lambda: need(b, ops))
    def merge(*ds):
        out = {}
        for d in ds:
            for k, v in d.items(): out.setdefault(k, []).extend(v)
        return out
    def body():
        INC = "s_add_u32 m0, m0, 4096"
        G = [int(x) for x in opt("g4", "1.5.9.13").split(".")]
        m4 = {G[0]: [KLD], G[1]: [VLD], G[2]: [KLD], G[3]: [VLD]}
        s4 = merge({G[0]-1: [INC]}, {G[1]-1: [INC]}, {G[1]+1: [ADV[1]]}, {G[2]-1: [INC]}, {G[3]-1: [INC]}, {G[3]+1: [ADV[1]]})
        m2 = {}; s2 = {}
        if TOUCH == 1:
            m2[5] = [f"buffer_load_dword a{JUNK}, v{TCH}, {SW3}, {sT} offen"]
            s2 = {0: [f"s_cmp_lt_u32 {sCnt}, {TIT}"], 2: [f"s_cselect_b32 {sT}, {sKVm}, 0x40000000"], 6: [f"s_add_u32 {sKVm}, {sKVm}, {TL*128}"]}
        slot(1, {1: [VR[12]], 3: [VR[13]], 5: [VR[14]], 7: [VR[15]]},
             {0: [nd(ar(VF, 12))], 6: [nd(ar(VF, 24))], 12: [nd(ar(VF, 28))], 14: [nd(ar(VF, 32))],
              2: [f"s_add_u32 {sT2}, {sPB}, 32768"], 4: [f"s_cmp_ge_u32 {sT2}, {LDS}"], 8: [f"s_cselect_b32 {sT2}, 0, {sT2}"],
              9: [f"s_sub_u32 {sDelta}, {sT2}, {sPB}"], 10: [f"s_mov_b32 {sPB}, {sT2}"]},
             {9: [va(KA[0]), va(KA[1])], 11: [va(KA[2])], 13: [va(KA[3]), va(VA[0])], 15: [va(VA[1])], 16: [va(VA[2]), va(VA[3])]})
        slot(2, m2, merge(s2, {14: [f"s_cmp_ge_u32 {sCnt}, 6"]}), {3: [va(VA[4])], 11: [va(VA[5])]})
        b("s_cbranch_scc1 L_p2late")
        body.exit_state = b.state()
        trace(b)
        b.raw(f"s_waitcnt vmcnt({5 if TOUCH == 1 else 4})")
        b.label("L_p2bar")
        b("s_barrier")
        trace(b)
        slot(3, {2*i+1: [k_read(i)] for i in range(8)},
             {6: [f"s_add_u32 {sCnt}, {sCnt}, 1"], 16: [nd(ar(KF, 16))]}, {1: [va(VA[6])], 5: [va(VA[7])]})
        slot(4, m4, merge(s4, {3: [nd(ar(KF, 32))]}))
        slot(5, {1: VR[0:2], 3: [VR[2]], 5: [VR[3]], 7: [VR[4]], 9: VR[5:7], 11: [VR[7]], 13: VR[8:10], 15: [VR[10]], 16: [VR[11]]})
        b("s_branch L_p2")
        b.vm = []
    b.vm = []
    save = b.L; b.L = []
    body(); st1 = b.state(); t1 = b.L
    b.L = []; body(); st2 = b.state(); t2 = b.L
    assert st1[0] == st2[0]
    if not STAMPS: assert t1 == t2, "loop not steady"
    print("p2 body estimate", estimate(t2, verbose=VERB))
    b.L = save
    b.raw(".p2align 3")
    b.label("L_p2")
    b.L += t2
    b.label("L_p2late")
    b.raw(f"s_waitcnt vmcnt({1 if TOUCH == 1 else 0})")
    b(f"s_cmp_eq_u32 {sCnt}, 6")
    if TOUCH == 7:
        b("s_cbranch_scc0 L_p2out")
        b(f"buffer_load_dword a{JUNK}, v{TCH}, {SW3}, 0 offen")
        b("s_branch L_p2bar")
        b.label("L_p2out")
    else: b("s_cbranch_scc1 L_p2bar")
    b.set_state(body.exit_state)
    b.vm = []
    b(f"s_mul_i32 {sT}, {sW}, 20480\nv_add_u32 v21, {sT}, v{L16}")
    b("s_barrier")
    stamp(b, 5)
    i0 = len(b.L)
    EXL = 81920; EXF = 87040
    wr = lambda q: [f"ds_write_b128 v21, {ar(OS+(q*4+j)*4,4)} offset:{(q*4+j)*1024}" for j in range(4)]
    w01 = wr(0) + wr(1)
    slot(38, {1 + 2*i: [w01[i]] for i in range(8)},
         {0: [f"s_xor_b32 {sT2}, {sW}, 2"], 2: [f"s_mul_i32 {sT}, {sT2}, 20480"], 4: [f"s_lshl_b32 {sWO}, {sHl}, 18"],
          6: [f"s_mul_i32 {sT3}, {sW}, 1280"], 8: [f"s_add_u32 m0, {sW4}, {S3[0]+20480}"], 10: [f"s_mul_i32 {sT2}, {sT2}, 1280"],
          12: [f"s_mul_i32 {sMX}, {sKH}, {STSZ}"], 14: [f"s_lshl_b32 {sMW}, {sW}, 2"]},
         {1: ["v_lshlrev_b32 v23, 2, v1"], 5: [f"v_add_u32 v22, {sT}, v{L16}"], 9: [f"v_add_u32 v60, {sT3}, v23"], 13: [f"v_add_u32 v61, {sT2}, v23"],
          16: [f"v_add_u32 v2, {sMX}, v{XA3[0]}", f"v_mov_b32 v63, {sMW}"]})
    w2 = wr(2)
    slot(39, merge({9 + 2*i: [w2[i]] for i in range(4)}, {1 + 2*i: [DW3[i]] for i in range(4)}),
         {10: [f"s_add_u32 m0, {sW4}, {S3[1]+20480}"], 12: [f"s_add_u32 {sWO}, {sWO}, 0x20000"]})
    w3 = wr(3)
    slot(40, merge({9 + 2*i: [w3[i]] for i in range(4)}, {1 + 2*i: [DW3[i]] for i in range(4)}))
    EB = 65536
    b(f"v_add_u32 v60, {EB}, v60\nv_add_u32 v61, {EB}, v61\nv_add_u32 v63, {EB}, v63\nv_mov_b32 v3, {EB}")
    for q in range(4): b(f"ds_write_b32 v60, v{LA+4*q} offset:{EXL-EB+q*256}")
    for s in wr(4): b(s)
    b(f"ds_write_b32 v60, v{LA+16} offset:{EXL-EB+4*256}")
    b(f"v_add_f32 v62, v{LA}, v{LA+4}\nv_add_f32 v23, v{LA+8}, v{LA+12}\nv_add_f32 v62, v62, v{LA+16}\nv_add_f32 v62, v62, v23")
    thr = f32bits(2.0 ** 40) if not FORCE_SLOW else f32bits(0.0)
    b(f"v_cmp_nge_f32 vcc, {thr}, v62")
    b(f"s_cmp_lg_u64 vcc, 0\ns_cselect_b32 {sT}, 1, 0\nv_mov_b32 v62, {sT}")
    b(f"ds_write_b32 v63, v62 offset:{EXF-EB}")
    b.wait(lg=0)
    b("s_barrier")
    b(f"ds_read_b128 {vr(NM,4)}, v3 offset:{EXF-EB}")
    for q in range(5): b(f"ds_read_b32 v{NM+4+q}, v61 offset:{EXL-EB+q*256}")
    for i in range(20): b(f"ds_read_b128 {vr(24+4*i,4)}, v22 offset:{i*1024}")
    b(f"v_or_b32 v{NM}, v{NM}, v{NM+1}\nv_or3_b32 v{NM}, v{NM}, v{NM+2}, v{NM+3}")
    for q in range(5): b(f"v_add_f32 v{LA+4*q}, v{LA+4*q}, v{NM+4+q}")
    b(f"v_readfirstlane_b32 {sT}, v{NM}")
    for q in range(5): b(f"v_rcp_f32 v{LA+4*q}, v{LA+4*q}")
    b(f"s_andn2_b32 {sT}, {sT}, {sPass}\ns_cmp_lg_u32 {sT}, 0")
    b("s_cbranch_scc1 L_slow")
    stamp(b, 15)
    for q in range(5):
        for pr in range(2):
            o = OK + (q*4+2*pr)*4; r = 24 + (q*4+2*pr)*4
            for i in range(0, 8, 2): b(f"v_pk_add_f32 {vr(o+i,2)}, {vr(o+i,2)}, {vr(r+i,2)}")
            for i in range(0, 8, 2): b(f"v_pk_mul_f32 {vr(o+i,2)}, {vr(o+i,2)}, {vr(LA+4*q,2)} op_sel_hi:[1,0]")
            for i in range(4): b(f"v_cvt_pk_bf16_f32 v{o+i}, v{o+2*i}, v{o+2*i+1}")
            vv, off = (L16, q * 1024) if q < 4 else (L16B, 0)
            b(f"buffer_store_dwordx4 {vr(o,4)}, v{vv}, {SO}, {sO1 if pr else sO0} offen offset:{off} {HST}")
            b(f"ds_write_b128 v2, {vr(o,4)} offset:{pr*10240+q*1024}")
    b(f"s_mov_b32 {sRB}, {S3[0]}\ns_mov_b32 {sCnt}, 0\ns_mov_b32 {sDB}, {ST0}")
    b(f"v_and_b32 v21, 7, v1\nv_lshlrev_b32 v21, 8, v21\nv_and_b32 v4, 3, v1\nv_mul_u32_u24 v4, {FS1 if SENT else 256}, v4\nv_lshrrev_b32 v5, 1, v{L16}")
    b.wait(lg=0, vm=10)
    print("tail estimate", estimate(b.L[i0:]))
    stamp(b, 6)
    b.vm = []
    f, g = first_fill(3)
    g[(0, 0)] = g[(0, 0)] + [f"s_lshr_b32 {sT3}, {sT}, 1"]
    g.update({(1, 2): f[(1, 2)], (1, 7): f[(1, 7)], (1, 9): f[(1, 10)], (1, 11): f[(1, 12)], (1, 13): f[(1, 15)]})
    g_step(3, dict(zip([(0, 1), (0, 2), (0, 3), (0, 4)], DW3)) if opt("wpos", 3) == 3 else {}, g, first=True)
    b(f"s_mov_b32 {sSpin}, 0")
    if opt("wpos", 3) == 3:
        b.raw("s_waitcnt vmcnt(4)")
        b("s_branch L_non1")
    b.label("L_non")
    b.wait(vm=0)
    b.label("L_non1")
    b(f"v_readfirstlane_b32 s64, v{NONV}\nv_readfirstlane_b32 s65, v{NONV+1}")
    b("s_cmp_lg_u32 s64, 0")
    b("s_cbranch_scc1 L_nonok")
    b(f"buffer_load_dwordx2 {vr(NONV,2)}, v{ZR}, {SD}, 0 offen sc0 sc1")
    b(f"s_add_u32 {sSpin}, {sSpin}, 1\ns_cmp_lt_u32 {sSpin}, {SPIN}")
    b("s_cbranch_scc1 L_non")
    b.label("L_nonok")
    b.vm = []
    stamp(b, 7)
    b("s_barrier")
    b(f"s_cmp_lg_u32 {sW}, 0")
    b("s_cbranch_scc1 L_pubd")
    b(f"s_lshl_b32 {sT}, {sHl}, 8\ns_add_u32 {sT}, {sT}, {sF1}")
    b("s_mov_b64 exec, 1")
    b(f"buffer_store_dwordx2 {vr(NONV,2)}, v{ZR}, {SO}, {sT} offen {HST}")
    b("s_mov_b64 exec, -1")
    b.label("L_pubd")
    WPOS = opt("wpos", 3)
    if WPOS == 0:
        for x in DW3: b(x)
    def poll1(lab, back):
        b(f"s_mov_b32 {sSpin}, 0")
        b.label(lab)
        b(f"buffer_load_dwordx2 v[22:23], v21, {SO}, {sF1} offen {HLD}")
        b.wait(vm=0)
        b(f"v_cmp_eq_u64 s[92:93], {sNon}, v[22:23]")
        b(f"s_mov_b32 {sRdy}, s92\ns_bitcmp1_b32 s92, {sT3}")
        b(f"s_cbranch_scc1 {back}")
        if SLEEP: b(f"s_sleep {SLEEP}")
        b(f"s_add_u32 {sSpin}, {sSpin}, 1\ns_cmp_lt_u32 {sSpin}, {SPIN}")
        b(f"s_cbranch_scc1 {lab}")
    poll1("L_poll0", "L_poll0ok")
    b.label("L_poll0ok")
    stamp(b, 8)
    if WPOS == 1:
        for x in DW3: b(x)
    b(f"s_mov_b32 m0, {sMX}")
    for x in DX3[:4]: b(x)
    b(f"s_mov_b32 m0, {sMW}")
    b(DX3[4])
    if WPOS == 2:
        b(f"s_add_u32 m0, {sMX}, 20480")
        for x in DW3: b(x)
    b.wait(lg=0)
    b.vm = []
    f3 = loopf(3)
    f3[(0, 13)] = [f"s_lshr_b32 {sT3}, {sT}, 1"]
    def chk():
        b("s_cbranch_scc1 L_wait1")
        b.label("L_wait1back")
    f3[(0, 17)] = [f"s_mov_b32 m0, {sMX}", f"s_bitcmp0_b32 {sRdy}, {sT3}", chk]
    b.raw(".p2align 3")
    b.label("L_p3")
    g_step(3, dict(zip(DG, DW3 + DX3)), f3)
    b.wait(lg=0, vm=9)
    b("s_cbranch_vccnz L_p3")
    b.vm = []
    stamp(b, 9)
    PFL = f"buffer_load_dwordx2 v[6:7], v4, {SO}, {sF2} offen {HLD}"
    g_step(3, {(0, 15): PFL} if SENT else {}, ringf(3))
    b.wait(lg=0, vm=0)
    g_step(3, {}, {(0, 14): [f"v_cmp_ne_u64 vcc, {sNon}, v[6:7]"]} if SENT else {(0, 14): [f"s_lshl_b32 {sT}, {sKq}, 8"], (0, 15): [f"s_add_u32 {sT}, {sT}, {sF2}"]})
    if SENT:
        b("s_cbranch_vccnz L_wait2")
        b.label("L_wait2back")
    stamp(b, 10)
    mf = g_mfmas(1, (1, 2, 3, 0))
    PK = 104; RK = 144
    for i in range(21):
        if i < 20: b(mf[i])
        t = i - 6
        if 0 <= t < 15:
            d, q = 1 + t // 5, t % 5; pk = PK + (d-1)*12
            if q in (1, 3): b(f"buffer_store_dwordx4 {vr(pk+2*(q-1),4)}, v{L16}, {SO}, {sPs[d]} offen offset:{(q//2)*1024} {HST}")
            if q == 4: b(f"buffer_store_dwordx2 {vr(pk+8,2)}, v5, {SO}, {sPs[d]} offen offset:2048 {HST}")
        t = i - 5
        if 0 <= t < 15:
            d, q = 1 + t // 5, t % 5; pk = PK + (d-1)*12 + 2*q; a = ACC + (d*5+q)*4
            b(f"v_cvt_pk_bf16_f32 v{pk}, v{a}, v{a+1}\nv_cvt_pk_bf16_f32 v{pk+1}, v{a+2}, v{a+3}")
    if not SENT:
        b.wait(vm=0)
        stamp(b, 11)
        if not F2W:
            b("s_barrier")
            b(f"s_cmp_lg_u32 {sW}, 0")
            b("s_cbranch_scc1 L_wait2")
        b("s_mov_b64 exec, 1")
        b(f"buffer_store_dwordx2 {vr(NONV,2)}, v{ZR}, {SO}, {sT} offen {HST}")
        b("s_mov_b64 exec, -1")
        b.label("L_wait2")
        b(f"s_mov_b32 {sSpin}, 0")
        b.label("L_poll3")
        b(PFL)
        b.wait(vm=0)
        b(f"v_cmp_ne_u64 vcc, {sNon}, v[6:7]")
        b("s_cbranch_vccz L_wait2back")
        b(f"s_sleep {opt('sleep2', 4)}\ns_add_u32 {sSpin}, {sSpin}, 1\ns_cmp_lt_u32 {sSpin}, {SPIN}")
        b("s_cbranch_scc1 L_poll3")
        b.label("L_wait2back")
        stamp(b, 12)
    else: stamp(b, 11)
    b(f"s_mov_b32 {sSpin}, 0")
    if opt("pre2", 0): b(f"s_sleep {opt('pre2', 0)}")
    b.label("L_poll2")
    b.vm = []
    for h in range(3):
        for d in (1, 2, 3):
            pk = RK + (d-1)*12
            if h < 2: b(f"buffer_load_dwordx4 {vr(pk+4*h,4)}, v{L16}, {SO}, {sPl[d]} offen offset:{h*1024} {HLD}")
            else: b(f"buffer_load_dwordx2 {vr(pk+8,2)}, v5, {SO}, {sPl[d]} offen offset:2048 {HLD}")
    if SENT:
        rr = [RK + (d-1)*12 + 4*h + i for h in range(3) for d in (1, 2, 3) for i in range(4 if h < 2 else 2)]
        b(f"v_max_u32 v8, v{rr[0]}, v{rr[1]}")
        for i in range(2, 30, 2): b(f"v_max3_u32 v8, v8, v{rr[i]}, v{rr[i+1]}")
        b("v_cmp_eq_u32 vcc, -1, v8")
        b("s_cbranch_vccz L_poll2ok")
        if SLEEP: b(f"s_sleep {opt('sleep2', 4)}")
        b(f"s_add_u32 {sSpin}, {sSpin}, 1\ns_cmp_lt_u32 {sSpin}, {SPIN}")
        b("s_cbranch_scc1 L_poll2")
        b.label("L_poll2ok")
        stamp(b, 12)
    OFL = opt("ofl", "").replace("+", " ")
    for q in range(5):
        a = ACC + q * 4
        for d in (1, 2, 3):
            pk = RK + (d-1)*12 + 2*q
            for i in range(2):
                b(f"v_lshlrev_b32 v{a+20*d+2*i}, 16, v{pk+i}\nv_and_b32 v{a+20*d+2*i+1}, 0xffff0000, v{pk+i}")
        for i in (0, 2): b(f"v_pk_add_f32 {vr(a+i,2)}, {vr(a+i,2)}, {vr(a+20+i,2)}")
        for i in (0, 2): b(f"v_pk_add_f32 {vr(a+40+i,2)}, {vr(a+40+i,2)}, {vr(a+60+i,2)}")
        for i in (0, 2): b(f"v_pk_add_f32 {vr(a+i,2)}, {vr(a+i,2)}, {vr(a+40+i,2)}")
        b(f"v_cvt_pk_bf16_f32 v{a}, v{a}, v{a+1}\nv_cvt_pk_bf16_f32 v{a+1}, v{a+2}, v{a+3}")
        b(f"buffer_store_dwordx2 {vr(a,2)}, v{OUTV}, {SOUT}, {sOut} offen {OFL}")
        if q < 4: b(f"s_add_u32 {sOut}, {sOut}, 32768")
    if STAMPS:
        stamp(b, 13)
        b.wait(vm=0)
        stamp(b, 14)
        b(f"s_cmp_lg_u32 {sW}, 0")
        b("s_cbranch_scc1 L_nost")
        b(f"v_lshlrev_b32 v3, 2, v1\ns_lshl_b32 {sT}, s2, 7\ns_add_u32 {sT}, {sT}, {STAMP_OFF}\ns_mov_b32 exec_hi, 0")
        b(f"buffer_store_dword v254, v3, {SO}, {sT} offen")
        b("s_mov_b64 exec, -1")
        b.label("L_nost")
        b(f"v_lshlrev_b32 v3, 2, v1\ns_lshl_b32 {sT}, s2, 2\ns_add_u32 {sT}, {sT}, {sW}\ns_lshl_b32 {sT}, {sT}, 7\ns_add_u32 {sT}, {sT}, {STAMP_OFF + (2 << 20)}\ns_mov_b32 exec_hi, 0")
        b(f"buffer_store_dword v254, v3, {SO}, {sT} offen")
        b("s_mov_b64 exec, -1")
        if TRACE:
            b(f"s_lshl_b32 {sT}, s2, 2\ns_add_u32 {sT}, {sT}, {sW}\ns_lshl_b32 {sT}, {sT}, 9\ns_add_u32 {sT}, {sT}, {STAMP_OFF + (1 << 20)}")
            b(f"buffer_store_dword v0, v3, {SO}, {sT} offen")
    b.label("L_end")
    b("s_endpgm")

    b.label("L_wait1")
    b.lg = []; b.vm = []
    poll1("L_poll1", "L_wait1back")
    b("s_branch L_wait1back")
    if SENT:
        b.label("L_wait2")
        b(f"s_mov_b32 {sSpin}, 0")
        b.label("L_poll3")
        b(PFL)
        b.wait(vm=0)
        b(f"v_cmp_ne_u64 vcc, {sNon}, v[6:7]")
        b("s_cbranch_vccz L_wait2back")
        b(f"s_sleep 4\ns_add_u32 {sSpin}, {sSpin}, 1\ns_cmp_lt_u32 {sSpin}, {SPIN}")
        b("s_cbranch_scc1 L_poll3")
        b("s_branch L_wait2back")

    EV = [[int(x) for x in e.split(".")] for e in opt("ev", "4.0,2.2,0.3").split(",")]
    assert sum(e[0] for e in EV) == 6 and sum(e[1] for e in EV) == 5
    b.label("L_aux")
    rp = 0
    for k, (nd_, nr_) in enumerate(EV):
        b.lg = []; b.vm = []
        if k + 1 < len(EV):
            b(f"s_cmp_lg_u32 {sEv}, {k}")
            b(f"s_cbranch_scc1 L_aux{k+1}")
        for i in range(nd_): pair()
        for i in range(nr_):
            b(f"s_mov_b32 {sT}, {(15+rp)*4096}")
            b(f"buffer_load_dwordx4 {ar(STG[2*rp],4)}, v{KVW}, {SK}, {sT} offen {KVFL}")
            b(f"buffer_load_dwordx4 {ar(STG[2*rp+1],4)}, v{KVW}, {SV}, {sT} offen {KVFL}")
            rp += 1
        b(f"s_add_u32 {sEv}, {sEv}, 1")
        b.wait(lg=0, vm=9 + 2*(nd_ + nr_))
        b("s_branch L_auxback")
        if k + 1 < len(EV): b.label(f"L_aux{k+1}")

    b.label("L_slow")
    b.wait(lg=0, vm=0)
    b("s_barrier")
    b(f"s_mov_b32 {sPass}, 1")
    b("v_and_b32 v21, 15, v1\nv_lshlrev_b32 v21, 8, v21\nv_lshrrev_b32 v22, 4, v1\nv_lshlrev_b32 v22, 4, v22\nv_add_u32 v21, v21, v22")
    for q in range(5): b(f"v_mov_b32 v{72+q}, 0xff800000")
    b(f"s_mov_b32 {sCnt}, 0")
    b.label("L_slowloop")
    for d in range(4): b(f"buffer_load_dwordx4 {vr(24+4*d,4)}, v21, {SK}, {sCnt} offen offset:{d*64}")
    b.wait(vm=0)
    for q in range(5):
        for d in range(4):
            b(f"{MF} {vr(80+4*q,4)}, {vr(24+4*d,4)}, {ar(QF+(q*4+d)*4,4)}, {'0' if d == 0 else vr(80+4*q,4)}")
    for q in range(5):
        b(f"v_max3_f32 v{72+q}, v{72+q}, v{80+4*q}, v{81+4*q}\nv_max3_f32 v{72+q}, v{72+q}, v{82+4*q}, v{83+4*q}")
    b(f"s_add_u32 {sCnt}, {sCnt}, 4096\ns_cmp_lt_u32 {sCnt}, 131072")
    b("s_cbranch_scc1 L_slowloop")
    for sw_ in ("v_permlane16_swap_b32", "v_permlane32_swap_b32"):
        for q in range(5): b(f"v_mov_b32 v{64+q}, v{72+q}")
        for q in range(5): b(f"{sw_} v{72+q}, v{64+q}")
        for q in range(5): b(f"v_max_f32 v{72+q}, v{72+q}, v{64+q}")
    for q in range(5):
        for i in range(4): b(f"v_sub_f32 v{NM+4*q+i}, 0, v{72+q}")
    p2_addr()
    for z in ZEROS: b(z)
    b.label("L_slowkv")
    pair()
    b(f"s_cmp_lt_u32 {sKVs}, {20 * 4096}")
    b("s_cbranch_scc1 L_slowkv")
    b.wait(vm=0)
    b("s_barrier")
    for i in range(8): b(k_read(i))
    for i in range(4): b(VR[i])
    for i in range(8): b(s_mfma(0, i))
    b("s_nop 7")
    b("s_branch L_p2entry")
    return b.L

def gen_probe(spec):
    i, ri, j, rj = spec.split(",")
    b = B()
    b.raw(".p2align 8"); b.raw(".type mha_probe_kernel,@function"); b.label("mha_probe_kernel")
    b("s_cmp_ge_u32 s2, 1"); b("s_cbranch_scc1 L3_end")
    b.raw("s_load_dwordx2 s[4:5], s[0:1], 56"); b.raw("s_waitcnt lgkmcnt(0)")
    b("s_mov_b32 s6, 268435456\ns_mov_b32 s7, 0x20000")
    b(f"v_mul_u32_u24 v1, 512, v0\nv_lshrrev_b32 v4, 1, v0\nv_and_b32 v4, 3, v4\nv_lshlrev_b32 v4, 7, v4\nv_add_u32 v1, v1, v4\ns_mov_b32 s8, {STAMP_OFF}")
    b(f"buffer_load_dword v2, v1, s[4:7], s8 offen offset:{8*int(i)}")
    b(f"buffer_load_dword v3, v1, s[4:7], s8 offen offset:{8*int(j)}")
    b.wait(vm=0)
    b("v_readlane_b32 s9, v2, 0")
    b("s_sub_u32 s9, s9, 100000")
    b("v_subrev_u32 v2, s9, v2\nv_subrev_u32 v3, s9, v3")
    for v, r, acc in ((2, ri, "s10"), (3, rj, "s11")):
        b(f"s_mov_b32 {acc}, {'-1' if r == 'min' else '0'}")
        for l in range(64):
            b(f"v_readlane_b32 s12, v{v}, {l}")
            b(f"{dict(min='s_min_u32', max='s_max_u32', avg='s_add_u32')[r]} {acc}, {acc}, s12")
        if r == 'avg': b(f"s_lshr_b32 {acc}, {acc}, 3")
        else: b(f"s_lshl_b32 {acc}, {acc}, 3")
    b("s_sub_u32 s10, s11, s10\ns_min_u32 s10, s10, 100000")
    b.raw("s_memrealtime s[12:13]"); b.raw("s_waitcnt lgkmcnt(0)")
    b.label("L3_spin")
    b.raw("s_memrealtime s[14:15]"); b.raw("s_waitcnt lgkmcnt(0)")
    b("s_sub_u32 s14, s14, s12\ns_cmp_lt_u32 s14, s10")
    b("s_cbranch_scc1 L3_spin")
    b.label("L3_end")
    b("s_endpgm")
    return b.L

def main():
    k, n = hazard_pass(gen(), verbose=VERB)
    head = ["; Fused MHA block, one workgroup per (batch, head): Q projection, attention, then a quarter (in k) of the output",
            "; projection; workgroups hand O and partial sums to each other through d_ws. Written by dev/gen8.py.",
            "; @launch grid=(256,1,1) block=(256,1,1) lds=163840",
            '.amdgcn_target "amdgcn-amd-amdhsa--gfx950"', ".text", f".globl {NAME}"]
    tail = ['.section .rodata,"a"', ".p2align 6", f".amdhsa_kernel {NAME}", "  .amdhsa_next_free_vgpr 512", "  .amdhsa_next_free_sgpr 102",
            "  .amdhsa_accum_offset 256", "  .amdhsa_group_segment_fixed_size 0", "  .amdhsa_kernarg_size 64", "  .amdhsa_user_sgpr_count 2",
            "  .amdhsa_user_sgpr_kernarg_segment_ptr 1", "  .amdhsa_system_sgpr_workgroup_id_x 1", ".end_amdhsa_kernel"]
    if "probe" in P:
        k3, _ = hazard_pass(gen_probe(P["probe"]))
        k = k + k3
        head[2] = f"; @launch kernel={NAME} grid=(256,1,1) block=(256,1,1) lds=163840\n; @launch kernel=mha_probe_kernel grid=(1,1,1) block=(64,1,1) lds=0"
        head.append(".globl mha_probe_kernel")
        tail += [".p2align 6", ".amdhsa_kernel mha_probe_kernel", "  .amdhsa_next_free_vgpr 8", "  .amdhsa_next_free_sgpr 32",
            "  .amdhsa_accum_offset 8", "  .amdhsa_group_segment_fixed_size 0", "  .amdhsa_kernarg_size 64", "  .amdhsa_user_sgpr_count 2",
            "  .amdhsa_user_sgpr_kernarg_segment_ptr 1", "  .amdhsa_system_sgpr_workgroup_id_x 1", ".end_amdhsa_kernel"]
    fmt = lambda l: l if l.endswith(":") or l.startswith((".", ";")) else "    " + l
    open(sys.argv[1], "w").write("\n".join(head + [fmt(l) for l in k] + tail) + "\n")
    print(f"nops inserted: {n}; lines {len(k)}")
main()
```

```python
import sys, math, struct
from asmlib import B, hazard_pass, need, estimate

P = dict(kv.split("=") for kv in sys.argv[2:])
def opt(k, d): return type(d)(P.get(k, d))
STAMPS = opt("stamps", 0); TRACE = opt("trace", 0); VERB = bool(opt("v", 0))
KVFL = opt("kvfl", "nt").replace("+", " ")
HST = opt("hst", "sc0+sc1").replace("+", " ")
HLD = opt("hld", "sc0+sc1").replace("+", " ")
FORCE_SLOW = opt("slow", 0)
SIG = opt("sig", "rot"); SIG3 = opt("sig3", "rot"); AUXT = opt("auxt", "lead")
TL = opt("tl", 11); TIT = opt("tit", 6); THALF = opt("thalf", 1)

TOUCH = opt("touch", 7)
SLEEP = opt("sleep", 4); ONEPOLL = opt("onepoll", 1); PBF = opt("pbf", 1)
NAME = "standalone__mha_block_cached__near_ridge_kernel"
STAMP_OFF = 200 << 20; NST = 16
TIMER = "s_memtime" if STAMPS == 2 else "s_memrealtime"
PART = 12 << 20; PSL = 10240 if opt('pbf', 1) else 20480; FLG1 = PART + 64 * 16 * PSL + (2 << 20); FS1 = opt('fs1', 8448); FS2 = opt('fs2', 4352); FLG2 = FLG1 + (1 << 20); WSREC = FLG2 + (2 << 20)

def vr(a, n=1, k='v'): return f"{k}{a}" if n == 1 else f"{k}[{a}:{a+n-1}]"
def ar(a, n=1): return vr(a, n, 'a')
def f32bits(x): return "0x%08x" % struct.unpack("<I", struct.pack("<f", x))[0]

def stamp(b, i):
    if STAMPS:
        b.wait(lg=0)
        b.raw(f"{TIMER} s[96:97]"); b.raw("s_waitcnt lgkmcnt(0)")
        b.raw(f"v_writelane_b32 v254, s96, {2*i}"); b.raw(f"v_writelane_b32 v254, s97, {2*i+1}")
def trace(b):
    if TRACE:
        b.wait(lg=0)
        for s in ("s_memtime s[96:97]", "s_waitcnt lgkmcnt(0)", "s_sub_u32 s96, s96, s98", "s_mov_b32 s97, m0", "s_mov_b32 m0, s100",
                  "v_writelane_b32 v0, s96, m0", "s_add_u32 s100, s100, 1", "s_mov_b32 m0, s97"): b.raw(s)

def order(kind, j):
    if kind == "seq": return list(range(16)), [2, 6, 10]
    if kind == "xor": return [t ^ j for t in range(16)], [4, 8, 12]
    o = []; lead = []
    if kind == "rot":
        for t in range(16):
            if t == 0: o.append(j)
            elif t % 4 == j and t + 3 < 16: o.append(t + 3); lead.append(t)
            else: o.append([c for c in range(16) if c not in o and (c < 4 or (c - 3) < t) and not (c >= 4 and (c - 3) % 4 == j)][0])
    elif kind == "rot2":
        for t in range(16):
            if t == 0: o.append(0)
            elif t == 1: o.append(1 + j)
            elif (t - 1) % 4 == j and t + 3 < 16: o.append(t + 3); lead.append(t)
            else: o.append([c for c in range(16) if c not in o and (c < 5 or (c - 3) < t) and not (c >= 5 and (c - 4) % 4 == j)][0])
    assert sorted(o) == list(range(16)), o
    lead = [t for t in lead if t >= 2][:3]
    while len(lead) < 3: lead.append(lead[-1] + 2)
    return o, lead
def tables(kind):
    T = []
    for j in range(4):
        o, lead = order(kind, j)
        if AUXT != "lead": lead = [int(v) + 2 for v in AUXT.split(".")]
        val = sum(c << (4 * t) for t, c in enumerate(o))
        T.append((val & 0xffffffff, val >> 32, sum(1 << (t - 1) for t in lead)))
    return T

def order3(j, p):
    if SIG3 == "seq": o = list(range(14))
    else:
        o = []
        for t in range(14):
            if t == 0: o.append(j)
            elif t % 4 == j and t + 3 < 14: o.append(t + 3)
            else: o.append([c for c in range(14) if c not in o and (c < 4 or (c - 3) < t) and not (c >= 4 and (c - 3) % 4 == j)][0])
        assert sorted(o) == list(range(14))
        if p and SIG3 == "rotp": o = [(c + 7) % 14 for c in o]
    val = sum((c + 2) << (4 * t) for t, c in enumerate(o))
    return val & 0xffffffff, val >> 32
def gen():
    b = B()
    SX, SW, SK, SV, SO, SD = "s[4:7]", "s[8:11]", "s[12:15]", "s[16:19]", "s[20:23]", "s[24:27]"
    SOUT, SX3, SW3 = "s[68:71]", "s[72:75]", "s[76:79]"
    sW, sB, sH, sCnt = "s28", "s29", "s30", "s31"
    sRB, sDB, sDelta, sMask = "s32", "s33", "s34", "s35"
    sXO, sWO, sMX, sMW, sM5, sT, sT2, sT3 = "s36", "s37", "s38", "s39", "s40", "s41", "s42", "s43"
    sW4, sW1, sPB, sKVm, sKVs, sPass, sO0, sO1, sCls = "s44", "s45", "s46", "s47", "s48", "s49", "s50", "s51", "s52"
    sCc, sSpin, sQH, sKH = "s53", "s54", "s56", "s57"
    sBl, sHl, sKq, sEv = "s60", "s61", "s62", "s63"
    sNon = "s[64:65]"
    sPs = [None, "s82", "s83", "s84"]; sPl = [None, "s85", "s86", "s87"]
    sF1, sOut, sRdy, sF2 = "s88", "s89", "s90", "s91"
    XA = [2, 3]; WA = [4, 5, 6, 7]; VB = [8, 9, 10, 11, 12]; VW = [13, 14, 15, 16]; KVW, NONV, L16 = 17, 18, 20
    ACC = 24; OK = 104; KA = [184, 185, 186, 187]; VA = list(range(188, 196)); NM = 196; LA = 216; L16B = 236; TCH = 237
    XA3 = [238, 239]; ZR = 240; WA3 = [244, 245, 246, 247]; VW3 = [248, 249, 250, 251]; VB3 = [252] * 4 + [253]; OUTV = 255
    SB = [24, 32, 40]; PB = [48, 52, 56]
    OS, QF, KF, VF, ONES, JUNK, K0F = 0, 80, 160, 192, 224, 228, 240
    STG = [VF + 4*i for i in range(8)] + [232, 236]
    AF = [80, 96]; BF = [112, 132]
    ST0 = 53248; STSZ = 36864; LDS = 163840; QEX = 122880
    S3 = [ST0 + STSZ, ST0 + 2*STSZ]
    FL = 256; SPIN = 200000
    MF = "v_mfma_f32_16x16x32_bf16"

    b.raw(".p2align 8")
    b.raw(f".type {NAME},@function")
    b.label(NAME)
    b("s_cmp_ge_u32 s2, 256")
    b("s_cbranch_scc1 L_end")
    b.track = False
    b("s_load_dwordx4 s[4:7], s[0:1], 0")
    b("s_load_dwordx4 s[8:11], s[0:1], 16")
    b("s_load_dwordx4 s[68:71], s[0:1], 40")
    b("s_load_dwordx2 s[76:77], s[0:1], 32")
    b("s_load_dwordx2 s[20:21], s[0:1], 56")
    b("s_memrealtime s[64:65]")
    if STAMPS: b.raw(f"{TIMER} s[94:95]")
    if TRACE: b.raw("s_memtime s[98:99]"); b.raw("s_mov_b32 s100, 0")
    b.track = True
    b("v_and_b32 v1, 63, v0\nv_lshrrev_b32 v21, 6, v0")
    b(f"s_and_b32 {sB}, s2, 1\ns_lshl_b32 {sB}, {sB}, 2\ns_lshr_b32 {sT}, s2, 3\ns_and_b32 {sBl}, {sT}, 3\ns_add_u32 {sB}, {sB}, {sBl}")
    b(f"v_readfirstlane_b32 {sW}, v21")
    b(f"s_lshr_b32 {sKq}, s2, 1\ns_and_b32 {sKq}, {sKq}, 3\ns_lshl_b32 {sH}, {sKq}, 3\ns_lshr_b32 {sHl}, {sT}, 2\ns_add_u32 {sH}, {sH}, {sHl}")
    b(f"s_add_u32 {sCls}, {sBl}, {sHl}\ns_and_b32 {sCls}, {sCls}, 3")
    T = tables(SIG)
    b(f"s_mov_b32 s58, {T[0][0]}\ns_mov_b32 s59, {T[0][1]}\ns_mov_b32 {sMask}, {T[0][2]}")
    for j in (1, 2, 3):
        b(f"s_cmp_eq_u32 {sCls}, {j}\ns_cselect_b32 s58, {T[j][0]}, s58\ns_cselect_b32 s59, {T[j][1]}, s59\ns_cselect_b32 {sMask}, {T[j][2]}, {sMask}")
    if opt("xoff", 1):
        b(f"s_xor_b32 {sT2}, s2, {sKq}\ns_bitcmp1_b32 {sT2}, 0\ns_cselect_b32 {sT2}, 0x88888888, 0\ns_xor_b32 s58, s58, {sT2}\ns_xor_b32 s59, s59, {sT2}")
    b(f"s_lshl_b32 {sW4}, {sW}, 12\ns_lshl_b32 {sW1}, {sW}, 10\ns_and_b32 {sQH}, {sW}, 1\ns_lshr_b32 {sKH}, {sW}, 1")
    b("v_lshrrev_b32 v21, 4, v1")
    b("v_and_b32 v22, 7, v1\nv_xor_b32 v22, v22, v21\nv_lshlrev_b32 v22, 4, v22")
    b("v_lshrrev_b32 v23, 3, v1\nv_lshlrev_b32 v23, 11, v23\nv_add_u32 v22, v22, v23\nv_xor_b32 v23, 64, v22")
    b(f"s_lshl_b32 {sT}, {sW}, 16")
    for q in range(4):
        b(f"s_add_u32 {sT2}, {sT}, {q*(16384-1024)}\nv_add_u32 v{VB[q]}, {sT2}, v{23 if q & 1 else 22}")
    b(f"s_lshl_b32 {sT}, {sQH}, 6\nv_xor_b32 v{VB[4]}, {sT}, v22\ns_lshl_b32 {sT}, {sW}, 14\ns_add_u32 {sT}, {sT}, {16*16384}\nv_add_u32 v{VB[4]}, {sT}, v{VB[4]}")
    b("v_lshlrev_b32 v22, 1, v21\nv_and_b32 v23, 15, v1\nv_xor_b32 v22, v22, v23\nv_lshlrev_b32 v22, 4, v22")
    b(f"v_lshlrev_b32 v23, 13, v21\nv_add_u32 v23, v23, v22\nv_xor_b32 v{L16}, 128, v23")
    b(f"s_lshl_b32 {sT}, {sW}, 17")
    for q in range(4):
        b(f"s_add_u32 {sT2}, {sT}, {q*(32768-1024)}\nv_add_u32 v{VW[q]}, {sT2}, v{L16 if q & 2 else 23}")
    b(f"s_add_u32 {sM5}, {sW1}, 16384")
    b(f"s_lshl_b32 {sT}, {sB}, 5\ns_add_u32 {sT}, {sT}, {sH}\ns_lshl_b32 {sT}, {sT}, 17\ns_lshl_b32 {sT2}, {sH}, 8\ns_mul_i32 {sT3}, {sB}, 327680")
    b.raw("s_waitcnt lgkmcnt(0)")
    b(f"s_add_u32 s12, s6, {sT}\ns_addc_u32 s13, s7, 0")
    b(f"s_add_u32 s16, s8, {sT}\ns_addc_u32 s17, s9, 0")
    b(f"s_add_u32 s8, s10, {sT2}\ns_addc_u32 s9, s11, 0\ns_sub_u32 s10, 8388608, {sT2}\ns_mov_b32 s11, 0x20000")
    b(f"s_add_u32 s4, s4, {sT3}\ns_addc_u32 s5, s5, 0\ns_mov_b32 s6, 327680\ns_mov_b32 s7, 0x20000")
    def dma_lists(vw, sw, vb, sx, fl=""):
        return ([f"buffer_load_dwordx4 v{vw[q]}, {sw}, {sWO} offen offset:{q*1024} lds" for q in range(4)],
                [f"buffer_load_dwordx4 v{vb[q]}, {sx}, {sXO} offen offset:{q*1024} {fl} lds" for q in range(4)] +
                [f"buffer_load_dwordx4 v{vb[4]}, {sx}, {sXO} offen {fl} lds"])
    DW, DX = dma_lists(VW, SW, VB, SX)
    DW3, DX3 = dma_lists(VW3, SW3, VB3, SX3, HLD)
    def first_stage(st):
        base = ST0 + ((st+2)%3)*STSZ
        b(f"s_and_b32 {sT}, s58, 15\ns_add_u32 m0, {sW4}, {base+20480}\ns_lshl_b32 {sWO}, {sT}, 19")
        for x in DW: b(x)
        b(f"s_add_u32 m0, {sW4}, {base}\ns_lshl_b32 {sXO}, {sT}, 7")
        for x in DX[:4]: b(x)
    def first_stage_last(st):
        base = ST0 + ((st+2)%3)*STSZ
        b(f"s_add_u32 m0, {sM5}, {base}\ns_lshr_b64 s[58:59], s[58:59], 4")
        b(DX[4])
    first_stage(0)
    if not opt("late5", 0): first_stage_last(0)
    if STAMPS: b.raw("v_writelane_b32 v254, s94, 0"); b.raw("v_writelane_b32 v254, s95, 1")
    for i in range(4): b(f"v_mov_b32 v{ZR+i}, 0")
    b("s_mov_b32 s14, 131072\ns_mov_b32 s15, 0x20000\ns_mov_b32 s18, 131072\ns_mov_b32 s19, 0x20000")
    b(f"s_mov_b32 s22, {268435456 if STAMPS else WSREC}\ns_mov_b32 s23, 0x20000")
    b("s_mov_b32 s24, s70\ns_mov_b32 s25, s71\ns_mov_b32 s26, 256\ns_mov_b32 s27, 0x20000")
    b(f"s_add_u32 s68, s68, {sT3}\ns_addc_u32 s69, s69, 0\ns_mov_b32 s70, 327680\ns_mov_b32 s71, 0x20000")
    def zero(r):
        big = int(r.split(":")[1][:-1]) - int(r.split("[")[1].split(":")[0]) == 15
        return f"{'v_mfma_f32_32x32x16_bf16' if big else MF} {r}, {vr(ZR,4)}, {vr(ZR,4)}, 0"
    ZEROS = [zero(vr(OK+16*i, 16)) for i in range(5)] + [zero(ar(OS+16*i, 16)) for i in range(5)] + [zero(vr(LA, 16)), zero(vr(LA+16, 4))]
    i0 = len(b.L)
    b(f"s_mov_b32 {sRB}, {ST0 + 2*STSZ}\ns_mov_b32 {sCnt}, 0\ns_mov_b32 {sPass}, 0\ns_mov_b32 {sDB}, {ST0 + STSZ}\ns_mov_b32 {sEv}, 0")
    b(f"v_lshlrev_b32 v23, 11, v21\nv_add_u32 v23, v23, v22\nv_xor_b32 v24, 128, v23\ns_lshl_b32 {sT}, {sW}, 15")
    for q in range(4):
        b(f"s_add_u32 {sT2}, {sT}, {q*(8192-1024)}\nv_add_u32 v{VW3[q]}, {sT2}, v{24 if q & 1 else 23}")
    b("v_lshlrev_b32 v23, 8, v21\nv_add_u32 v22, v22, v23")
    b(f"s_lshl_b32 {sT}, {sQH}, 7\nv_xor_b32 v{KVW}, {sT}, v22\nv_add_u32 v{KVW}, {sW1}, v{KVW}")
    b(f"v_lshlrev_b32 v{L16}, 4, v1\nv_add_u32 v{L16B}, 4096, v{L16}")
    b(f"v_add_u32 v{VB3[0]}, {sW4}, v{L16}\nv_add_u32 v{VB3[4]}, {sM5}, v{L16}")
    b("v_and_b32 v26, 15, v1\nv_lshrrev_b32 v27, 1, v26\nv_xor_b32 v27, v27, v21\nv_lshlrev_b32 v27, 4, v27\nv_lshlrev_b32 v25, 7, v26\nv_add_u32 v27, v27, v25")
    b(f"v_lshlrev_b32 v26, 11, v26\nv_lshlrev_b32 v25, 3, v21\nv_add_u32 v{OUTV}, v26, v25")
    b(f"s_mul_i32 {sT}, {sQH}, 10240\ns_add_u32 {sT}, {sT}, {sRB}")
    for u in range(2): b(f"v_xor_b32 v{XA[u]}, {u*64}, v27\nv_add_u32 v{XA[u]}, {sT}, v{XA[u]}")
    b("v_lshrrev_b32 v30, 2, v1\nv_and_b32 v31, 7, v30\nv_and_b32 v26, 3, v30")
    b(f"s_lshl_b32 {sT}, {sKH}, 2\nv_xor_b32 v27, {sT}, v31\nv_lshlrev_b32 v27, 5, v27")
    b("v_add_u32 v28, v25, v26\nv_lshlrev_b32 v28, 8, v28")
    b("v_and_b32 v29, 3, v1\nv_lshlrev_b32 v29, 3, v29\nv_add3_u32 v28, v28, v27, v29")
    b(f"s_add_u32 {sT}, {sRB}, 20480")
    for d in range(4): b(f"v_xor_b32 v{WA[d]}, {d*32}, v28\nv_add_u32 v{WA[d]}, {sT}, v{WA[d]}")
    b(f"s_mul_i32 {sT}, {sQH}, 5120\ns_add_u32 {sT}, {sT}, {S3[0]}\nv_add_u32 v{XA3[0]}, {sT}, v{L16}\nv_add_u32 v{XA3[1]}, 10240, v{XA3[0]}")
    b(f"s_lshl_b32 {sT}, {sKq}, 1\ns_add_u32 {sT}, {sT}, {sKH}\nv_xor_b32 v27, {sT}, v31\nv_lshlrev_b32 v27, 5, v27")
    b("v_lshlrev_b32 v30, 8, v30\nv_add3_u32 v27, v27, v30, v29")
    for d in range(4): b(f"v_xor_b32 v{WA3[d]}, {d*64}, v27\nv_add_u32 v{WA3[d]}, {S3[0]+20480}, v{WA3[d]}")
    b(f"s_lshl_b32 {sOut}, {sT}, 5\ns_mul_i32 {sT2}, {sQH}, 163840\ns_add_u32 {sOut}, {sOut}, {sT2}\ns_lshl_b32 {sT3}, {sHl}, 8\ns_add_u32 {sOut}, {sOut}, {sT3}")
    b(f"s_mul_i32 {sT}, {sB}, 1310720\ns_lshl_b32 {sT2}, {sH}, 1\ns_add_u32 {sT2}, {sT2}, {sKH}\ns_mul_i32 {sT2}, {sT2}, 20480\ns_add_u32 {sO0}, {sT}, {sT2}")
    b(f"s_mul_i32 {sT2}, {sQH}, 5120\ns_add_u32 {sO0}, {sO0}, {sT2}\ns_add_u32 {sO1}, {sO0}, 10240")
    b(f"s_mul_i32 {sT2}, {sKq}, 327680\ns_add_u32 {sT}, {sT}, {sT2}\ns_add_u32 s72, s20, {sT}\ns_addc_u32 s73, s21, 0\ns_mov_b32 s74, 327680\ns_mov_b32 s75, 0x20000")
    b(f"s_lshl_b32 {sT}, {sKq}, 21\ns_add_u32 {sT}, {sT}, {sT3}\ns_add_u32 s76, s76, {sT}\ns_addc_u32 s77, s77, 0\ns_sub_u32 s78, 8388608, {sT}\ns_mov_b32 s79, 0x20000")
    if TOUCH == 1:
        if THALF: b(f"s_lshr_b32 {sT}, s2, 3\ns_lshl_b32 {sT}, {sT}, 1\ns_and_b32 {sT2}, s2, 1\ns_add_u32 {sT}, {sT}, {sT2}\ns_lshl_b32 {sT}, {sT}, 15")
        else: b(f"s_lshr_b32 {sT}, s2, 3\ns_lshl_b32 {sT}, {sT}, 16")
        b(f"s_sub_u32 {sT}, {sT}, {sT3}\ns_lshl_b32 {sT2}, {sW}, {13 if THALF else 14}\ns_add_u32 {sT}, {sT}, {sT2}")
        b(f"v_cmp_gt_u32 vcc, {TL}, v1\nv_lshlrev_b32 v25, 7, v1\nv_add_u32 v25, {sT}, v25\nv_mov_b32 v26, 0x40000000\nv_cndmask_b32 v{TCH}, v26, v25, vcc")
    b(f"s_mov_b32 s80, {order3(0,0)[0]}\ns_mov_b32 s81, {order3(0,0)[1]}")
    for bb in range(1, 8):
        if order3(bb & 3, bb >> 2) != order3(0, 0):
            b(f"s_cmp_eq_u32 {sB}, {bb}\ns_cselect_b32 s80, {order3(bb & 3, bb >> 2)[0]}, s80\ns_cselect_b32 s81, {order3(bb & 3, bb >> 2)[1]}, s81")
    b(f"s_mul_i32 {sT}, {sHl}, 0x22222222\ns_xor_b32 s80, s80, {sT}\ns_xor_b32 s81, s81, {sT}")
    if TOUCH == 7:
        b(f"s_and_b32 {sT}, s80, 15\ns_lshl_b32 {sT}, {sT}, 17\ns_lshl_b32 {sT2}, {sW}, 15\ns_add_u32 {sT}, {sT}, {sT2}")
        b(f"v_cmp_gt_u32 vcc, 32, v1\nv_lshrrev_b32 v25, 1, v1\nv_lshlrev_b32 v25, 11, v25\nv_and_b32 v26, 1, v1\nv_lshlrev_b32 v26, 7, v26\nv_add3_u32 v25, v25, v26, {sT}")
        b(f"v_mov_b32 v26, 0x40000000\nv_cndmask_b32 v{TCH}, v26, v25, vcc")
    b(f"s_mul_i32 {sF2}, {sB}, {4*FS1}\ns_add_u32 {sF2}, {sF2}, {FLG1}\ns_mul_i32 {sT}, {sKq}, {FS1}\ns_add_u32 {sF1}, {sF2}, {sT}\ns_add_u32 {sF2}, {sF2}, {sT3}")
    if not opt("sent", 0):
        b(f"s_lshl_b32 {sF2}, {sB}, 3\ns_add_u32 {sF2}, {sF2}, {sHl}\ns_lshl_b32 {sF2}, {sF2}, 2")
        if opt("f2w", 0): b(f"s_add_u32 {sF2}, {sF2}, {sW}")
        b(f"s_mul_i32 {sF2}, {sF2}, {FS2}\ns_add_u32 {sF2}, {sF2}, {FLG2}")
    b(f"s_lshl_b32 {sT}, {sB}, 3\ns_add_u32 {sT}, {sT}, {sHl}\ns_mul_i32 {sT}, {sT}, {16*PSL}\ns_mul_i32 {sT2}, {sW}, {PSL//4}\ns_add_u32 {sT}, {sT}, {sT2}\ns_add_u32 {sT}, {sT}, {PART}")
    for d in (1, 2, 3):
        b(f"s_xor_b32 {sT2}, {sKq}, {d}\ns_lshl_b32 {sT3}, {sT2}, 2\ns_add_u32 {sT3}, {sT3}, {sKq}\ns_mul_i32 {sT3}, {sT3}, {PSL}\ns_add_u32 {sPs[d]}, {sT}, {sT3}")
        b(f"s_lshl_b32 {sT3}, {sKq}, 2\ns_add_u32 {sT3}, {sT3}, {sT2}\ns_mul_i32 {sT3}, {sT3}, {PSL}\ns_add_u32 {sPl[d]}, {sT}, {sT3}")
    b(f"s_mov_b32 {sCc}, {f32bits(math.log2(math.e) / math.sqrt(128.0))}")
    def p2_addr():
        b("v_lshrrev_b32 v21, 4, v1\nv_and_b32 v22, 7, v1\nv_lshlrev_b32 v22, 1, v22\nv_xor_b32 v22, v22, v21\nv_lshlrev_b32 v22, 4, v22")
        b("v_and_b32 v23, 15, v1\nv_lshlrev_b32 v23, 8, v23\nv_add_u32 v22, v22, v23")
        b(f"s_lshl_b32 {sT}, {sKH}, 14")
        for d in range(4): b(f"v_xor_b32 v{KA[d]}, {d*64}, v22\nv_add_u32 v{KA[d]}, {sT}, v{KA[d]}")
        b(f"v_lshrrev_b32 v21, 2, v1\nv_and_b32 v22, 7, v21\ns_lshl_b32 {sT2}, {sKH}, 2\nv_xor_b32 v22, {sT2}, v22\nv_lshlrev_b32 v22, 5, v22")
        b("v_lshlrev_b32 v21, 8, v21\nv_and_b32 v23, 3, v1\nv_lshlrev_b32 v23, 3, v23\nv_add3_u32 v22, v22, v21, v23")
        b(f"s_add_u32 {sT}, {sT}, 4096")
        for j in range(8): b(f"v_xor_b32 v{VA[j]}, {j*32}, v22\nv_add_u32 v{VA[j]}, {sT}, v{VA[j]}")
        b(f"s_mov_b32 {sPB}, 0\ns_mov_b32 {sKVm}, {sW1}\ns_mov_b32 {sKVs}, 0")
    p2_addr()
    b("v_mov_b32 v21, 0x3f803f80")
    for i in range(4): b(f"v_accvgpr_write_b32 a{ONES+i}, v21")
    b("v_lshrrev_b32 v21, 5, v1\nv_lshlrev_b32 v21, 8, v21\nv_and_b32 v22, 15, v1\nv_lshlrev_b32 v22, 4, v22\nv_lshrrev_b32 v23, 1, v1\nv_and_b32 v23, 8, v23\nv_add3_u32 v21, v21, v22, v23")
    b(f"s_mul_i32 {sT2}, {sQH}, 20480\ns_add_u32 {sT2}, {sT2}, {QEX}\nv_add_u32 v22, {sT2}, v{L16}\ns_lshl_b32 {sT3}, {sKH}, 11\ns_add_u32 {sT2}, {sT2}, {sT3}\nv_add_u32 v21, {sT2}, v21")
    b("v_and_b32 v23, 48, v1")
    for i in range(4): b(f"v_mov_b32 v{24+i}, -1")
    b(f"v_lshrrev_b32 v28, 1, v{L16}")
    code = b.L[i0:]; b.L = b.L[:i0]
    step = len(code) // (len(ZEROS) + 1)
    for i, ln in enumerate(code):
        if i % step == 0 and i // step < len(ZEROS): b.L.append(ZEROS[i // step])
        b.L.append(ln)
    print("setup estimate", estimate(b.L))
    if opt("late5", 0): first_stage_last(0)
    first_stage(1); first_stage_last(1)
    SENT = opt("sent", 0); F2W = opt("f2w", 0)
    CLR = opt("clr", 0) if SENT else 2
    def clears(r):
        out = []
        for d in (1, 2, 3):
            for h in range(2): out.append(f"buffer_store_dwordx4 {vr(r,4)}, v{L16}, {SO}, {sPl[d]} offen offset:{h*1024} {HST}")
            out.append(f"buffer_store_dwordx2 {vr(r,2)}, v{r+4}, {SO}, {sPl[d]} offen offset:2048 {HST}")
        return out
    if CLR == 0:
        for x in clears(24): b(x)
    b(f"s_or_b32 {sT}, s2, {sW}\ns_cmp_lg_u32 {sT}, 0")
    b("s_cbranch_scc1 L_nonon")
    b(f"s_or_b32 s64, s64, 1\nv_mov_b32 v30, s64\nv_mov_b32 v31, s65")
    b(f"buffer_store_dwordx2 v[30:31], v{ZR}, {SD}, 0 offen sc0 sc1")
    b.label("L_nonon")
    b.vm = []
    b.raw(f"s_waitcnt vmcnt({18 if CLR == 0 else 9})")
    stamp(b, 1)

    def g_mfmas(buf, dord=(0, 1, 2, 3), c0=False):
        return [f"{MF} {vr(ACC+(d*5+q)*4,4)}, {ar(AF[buf]+4*d,4)}, {ar(BF[buf]+4*q,4)}, {'0' if c0 else vr(ACC+(d*5+q)*4,4)}" for d in dord for q in range(5)]
    def emit(x):
        if callable(x): x()
        else: b(x)
    def g_step(ph, dm, fill, first=False, more=()):
        trace(b)
        b("s_barrier")
        trace(b)
        vs, qs = ((1024, 2048), (4096, 1024))[ph == 3]
        xa, wa = (XA, WA) if ph == 1 else (XA3, WA3)
        more = list(more)
        for u in range(2):
            A = lambda d: [f"ds_read_b64_tr_b16 {ar(AF[u]+4*d+2*v,2)}, v{wa[d]} offset:{u*8192+v*vs}" for v in range(2)]
            rd = A(0) + [f"ds_read_b128 {ar(BF[u]+4*q,4)}, v{xa[u]} offset:{q*qs}" for q in range(5)] + A(1) + A(2) + A(3)
            mf = g_mfmas(u ^ 1, c0=first)
            if first and u == 0:
                for s in rd: b(s)
                rd = []
            for i in range(20):
                if not (first and u == 0): b(mf[i])
                if (u, i) in dm: b(dm[(u, i)])
                elif rd: b(rd.pop(0))
                elif more: b(more.pop(0))
                for s in fill.get((u, i), []): emit(s)
                if u == 0 and i == 18: need(b, [ar(AF[0], 8), ar(BF[0], 20)])
                if u == 1 and i == 4: need(b, [ar(AF[0], 16)])
            assert not rd
        return more
    va = lambda r: f"v_add_u32 v{r}, {sDelta}, v{r}"
    def ringf(ph):
        xa, wa = (XA, WA) if ph == 1 else (XA3, WA3)
        return {(0, 7): [f"s_add_u32 {sT2}, {sRB}, {STSZ}"], (0, 9): [f"s_cmp_ge_u32 {sT2}, {LDS}"], (0, 10): [f"s_cselect_b32 {sT2}, {ST0}, {sT2}"],
                (0, 11): [f"s_sub_u32 {sDelta}, {sT2}, {sRB}"], (0, 14): [va(xa[0])],
                (1, 2): [va(wa[0])], (1, 7): [va(xa[1])], (1, 10): [va(wa[1])], (1, 12): [va(wa[2])], (1, 15): [va(wa[3])]}
    DG = [(0, 4), (0, 8), (0, 12), (0, 16), (0, 19), (1, 9), (1, 13), (1, 16), (1, 18)]
    def loopf(ph):
        f = ringf(ph)
        sg = "s58" if ph == 1 else "s80"; sgp = "s[58:59]" if ph == 1 else "s[80:81]"
        f.update({(0, 0): [f"s_and_b32 {sT}, {sg}, 15"], (0, 1): [f"s_lshl_b32 {sWO}, {sT}, {19 if ph == 1 else 17}"],
                  (0, 2): [f"s_add_u32 {sMX}, {sDB}, {sW4}"], (0, 3): [f"s_add_u32 m0, {sMX}, 20480"],
                  (0, 5): [f"s_lshl_b32 {sXO}, {sT}, 7" if ph == 1 else f"s_mul_i32 {sXO}, {sT}, 20480"],
                  (0, 6): [f"s_lshr_b64 {sgp}, {sgp}, 4"], (0, 17): [f"s_mov_b32 m0, {sMX}"],
                  (1, 0): [f"s_add_u32 {sMW}, {sDB}, {sM5}"], (1, 1): [f"s_mov_b32 {sDB}, {sRB}"], (1, 3): [f"s_mov_b32 {sRB}, {sT2}"],
                  (1, 5): [f"s_add_u32 {sCnt}, {sCnt}, 1"], (1, 6): [f"s_cmp_lt_u32 {sCnt}, 14"], (1, 8): ["s_cselect_b64 vcc, -1, 0"],
                  (1, 17): [f"s_mov_b32 m0, {sMW}"] + ([f"s_bitcmp1_b32 {sMask}, {sCnt}"] if ph == 1 else [])})
        return f
    def first_fill(ph):
        f = loopf(ph); g = {}
        g[(0, 0)] = sum([f[(0, i)] for i in (0, 1, 2, 3, 5, 6, 7, 9, 10, 11, 14)], []) + f[(1, 0)] + f[(1, 1)] + f[(1, 3)] + f[(1, 5)] + f[(1, 6)] + f[(1, 8)]
        return f, g
    f, g = first_fill(1)
    DG0 = [(1, 13), (1, 14), (1, 15), (1, 16)]
    g.update({(1, 2): f[(1, 2)], (1, 7): f[(1, 7)], (1, 9): f[(1, 10)], (1, 11): f[(1, 12)], (1, 17): f[(1, 15)] + f[(0, 17)]})
    g_step(1, dict(zip(DG0 + [(1, 18), (1, 19)], DW + DX[:2])), g, first=True)
    b(DX[2]); b(DX[3]); b(f"s_mov_b32 m0, {sMW}\ns_bitcmp1_b32 {sMask}, {sCnt}"); b(DX[4])
    b("s_branch L_p1end")
    b.raw(".p2align 3")
    b.label("L_p1")
    b.lg = []
    i0 = len(b.L)
    g_step(1, dict(zip(DG, DW + DX)), loopf(1))
    b.label("L_p1end")
    b("s_cbranch_scc1 L_aux")
    b.wait(lg=0, vm=9)
    b.label("L_auxback")
    b("s_cbranch_vccnz L_p1")
    print("gemm step estimate", estimate(b.L[i0:], verbose=VERB))
    b.vm = []
    stamp(b, 2)
    KLD = f"buffer_load_dwordx4 v{KVW}, {SK}, {sKVs} offen {KVFL} lds"
    VLD = f"buffer_load_dwordx4 v{KVW}, {SV}, {sKVs} offen {KVFL} lds"
    M0K = f"s_mov_b32 m0, {sKVm}"; M0V = f"s_add_u32 m0, m0, 4096"
    ADV = [f"s_add_u32 {sKVm}, {sKVm}, 8192", f"s_add_u32 {sKVs}, {sKVs}, 4096"]
    def pair():
        b(M0K); b(ADV[0]); b(KLD); b(M0V); b(VLD); b(ADV[1])
    n14 = opt("n14", 2); n15 = opt("n15", 2); nq = opt("nq", 2); npro = 9 - n14 - n15 - nq
    assert n14 <= 4 and n15 <= 4 and 0 <= nq <= 3 and 0 <= npro <= 3
    def k_read(i): return f"ds_read_b128 {ar(KF+4*i,4)}, v{KA[i%4]} offset:{(i//4)*8192}"
    def v_read(j): return [f"ds_read_b64_tr_b16 {ar(VF+4*j+2*v,2)}, v{VA[j]} offset:{v*8192}" for v in range(2)]
    def kv_step(n, extra, more=()):
        slots = [((0, 3), (0, 4), (0, 6), (0, 8), (0, 12), (0, 13)), ((0, 15), (0, 16), (0, 17), (0, 19), (1, 0), (1, 1)),
                 ((1, 8), (1, 9), (1, 11), (1, 13), (1, 14), (1, 14)), ((1, 15), (1, 16), (1, 17), (1, 18), (1, 19), (1, 19))]
        dm = {}; f = {k: list(v) for k, v in extra.items()}
        for a, k, c, v, e, e2 in ([slots[0], slots[2]] if n == 2 else slots[:n]):
            f.setdefault(a, []).append(M0K); dm[k] = KLD; f.setdefault(c, []).append(M0V); dm[v] = VLD
            f.setdefault(e, []).append(ADV[0]); f.setdefault(e2, []).append(ADV[1])
        return g_step(1, dm, f, more=more)
    kv_step(n14, ringf(1))
    b.wait(lg=0, vm=2*n14)
    more = kv_step(n15, {}, [f"ds_read_b128 {ar(K0F+4*d,4)}, v23 offset:{d*64}" for d in range(4)] + [k_read(i) for i in range(8)])
    need(b, [ar(AF[1], 16), ar(BF[1], 20)])
    b("s_barrier")
    i0 = len(b.L)
    def pack(t):
        a = ACC + t * 4
        for i in range(4): b(f"v_mul_f32 v{a+i}, {sCc}, v{a+i}")
        b(f"v_cvt_pk_bf16_f32 v{a}, v{a}, v{a+1}\nv_cvt_pk_bf16_f32 v{a+1}, v{a+2}, v{a+3}")
    def qwr(t):
        d, q = divmod(t, 5); a = ACC + t * 4
        b(f"ds_write_b64 v21, {vr(a,2)} offset:{q*4096+(d>>1)*1024+(d&1)*512}")
    mf = g_mfmas(1)
    for i in range(25):
        if i < 20: b(mf[i])
        if i == 0: b(f"buffer_load_dwordx2 {vr(NONV,2)}, v{ZR}, {SD}, 0 offen sc0 sc1")
        elif i < 4:
            for k in range(2):
                if more: b(more.pop(0))
        if i in ((4, 14) if nq == 2 else (4, 11, 18)[:nq]): pair()
        if 0 <= i - 5 < 20: qwr(i - 5)
        if 0 <= i - 4 < 20: pack(i - 4)
    assert not more
    b(f"s_add_u32 {sT}, {sW1}, {QEX}\nv_add_u32 v21, {sT}, v{L16}")
    b.wait(lg=0)
    b("s_barrier")
    print("q pack estimate", estimate(b.L[i0:]))
    stamp(b, 3)
    i0 = len(b.L)
    qr = [f"ds_read_b128 {ar(QF+(q*4+d)*4,4)}, v22 offset:{q*4096+d*1024}" for q in range(5) for d in range(4)]
    for i in range(10): b(qr.pop(0))
    if npro >= 1: pair()
    sw = [f"ds_write_b128 v21, {ar(STG[i],4)} offset:{i*4096}" for i in range(10)]
    neg = [f"v_sub_f32 v{NM+i}, 0, v{NM+i}" for i in range(20)]
    for t in range(20):
        q, d = divmod(t, 4)
        b(f"{MF} {vr(NM+4*q,4)}, {ar(K0F+4*d,4)}, {ar(QF+t*4,4)}, {'0' if d == 0 else vr(NM+4*q,4)}")
        if qr: b(qr.pop(0))
        if t == 13:
            need(b, [ar(QF, 80)])
            b("s_barrier")
        if t >= 14: b(sw.pop(0))
        if t >= 8: b(neg.pop(0))
    if npro >= 2: pair()

    def col(n): return (0, 1, 0, 1, 2)[n % 5]
    def s_mfma(n, i):
        kt, d = i // 4, i % 4; q = n % 5
        dst = vr(SB[col(n)] + 4*kt, 4)
        return f"{MF} {dst}, {ar(KF+4*i,4)}, {ar(QF+(q*4+d)*4,4)}, {vr(NM+4*q,4) if d == 0 else dst}"
    def oreg(q, j): return vr(OK + (q*4+j)*4, 4) if j < 4 else ar(OS + (q*4+j-4)*4, 4)
    def p_mfma(n, j):
        q = n % 5
        if j == 8: return f"{MF} {vr(LA+4*q,4)}, {ar(ONES,4)}, {vr(PB[col(n)],4)}, {vr(LA+4*q,4)}"
        return f"{MF} {oreg(q,j)}, {ar(VF+4*j,4)}, {vr(PB[col(n)],4)}, {oreg(q,j)}"
    def v_exp(n, e): return f"v_exp_f32 v{SB[col(n)]+e}, v{SB[col(n)]+e}"
    def v_cvt(n, c): return f"v_cvt_pk_bf16_f32 v{PB[col(n)]+c}, v{SB[col(n)]+2*c}, v{SB[col(n)]+2*c+1}"
    NU = 40
    def slot(n, mem=None, sal=None, val=None):
        mem = mem or {}; sal = sal or {}; val = val or {}
        for p in range(17):
            if p < 16 and p % 2 == 0:
                if 0 <= n + 1 < NU: b(s_mfma(n + 1, p // 2))
            elif 0 <= n - 1 < NU: b(p_mfma(n - 1, p // 2))
            for s in mem.get(p, []): b(s)
            for s in sal.get(p, []): emit(s)
            if 0 <= n < NU:
                if p % 2 == 0 and p < 16: b(v_exp(n, p // 2))
                if p % 4 == 3: b(v_cvt(n, p // 4))
            for s in val.get(p, []): b(s)
    VR = [x for j in range(8) for x in v_read(j)]
    for i in range(8):
        b(s_mfma(0, i))
        b(sw.pop(0) if sw else VR[i - 4])
        b(neg.pop(0))
    assert not sw and not neg
    if npro >= 3: pair()
    if CLR == 1:
        for i in range(4): b(f"v_mov_b32 v{60+i}, -1")
        b(f"v_lshrrev_b32 v64, 1, v{L16}")
        for x in clears(60): b(x)
    b.label("L_p2entry")
    for i in range(8):
        b(s_mfma(1, i))
        b(VR[4 + i])
        if i >= 2 and i % 2 == 0: b(v_cvt(0, i // 2 - 1))
        b(v_exp(0, i))
    b(f"s_sub_u32 m0, {sW1}, 4096\ns_mov_b32 {sKVs}, {20*4096}\ns_mov_b32 {sKVm}, 0\ns_mov_b32 {sCnt}, 0")
    b(v_cvt(0, 3))
    print("p2 prologue estimate", estimate(b.L[i0:]))
    stamp(b, 4)
    nd = lambda *ops: (lambda: need(b, ops))
    def merge(*ds):
        out = {}
        for d in ds:
            for k, v in d.items(): out.setdefault(k, []).extend(v)
        return out
    def body():
        INC = "s_add_u32 m0, m0, 4096"
        G = [int(x) for x in opt("g4", "1.5.9.13").split(".")]
        m4 = {G[0]: [KLD], G[1]: [VLD], G[2]: [KLD], G[3]: [VLD]}
        s4 = merge({G[0]-1: [INC]}, {G[1]-1: [INC]}, {G[1]+1: [ADV[1]]}, {G[2]-1: [INC]}, {G[3]-1: [INC]}, {G[3]+1: [ADV[1]]})
        m2 = {}; s2 = {}
        if TOUCH == 1:
            m2[5] = [f"buffer_load_dword a{JUNK}, v{TCH}, {SW3}, {sT} offen"]
            s2 = {0: [f"s_cmp_lt_u32 {sCnt}, {TIT}"], 2: [f"s_cselect_b32 {sT}, {sKVm}, 0x40000000"], 6: [f"s_add_u32 {sKVm}, {sKVm}, {TL*128}"]}
        slot(1, {1: [VR[12]], 3: [VR[13]], 5: [VR[14]], 7: [VR[15]]},
             {0: [nd(ar(VF, 12))], 6: [nd(ar(VF, 24))], 12: [nd(ar(VF, 28))], 14: [nd(ar(VF, 32))],
              2: [f"s_add_u32 {sT2}, {sPB}, 32768"], 4: [f"s_cmp_ge_u32 {sT2}, {LDS}"], 8: [f"s_cselect_b32 {sT2}, 0, {sT2}"],
              9: [f"s_sub_u32 {sDelta}, {sT2}, {sPB}"], 10: [f"s_mov_b32 {sPB}, {sT2}"]},
             {9: [va(KA[0]), va(KA[1])], 11: [va(KA[2])], 13: [va(KA[3]), va(VA[0])], 15: [va(VA[1])], 16: [va(VA[2]), va(VA[3])]})
        slot(2, m2, merge(s2, {14: [f"s_cmp_ge_u32 {sCnt}, 6"]}), {3: [va(VA[4])], 11: [va(VA[5])]})
        b("s_cbranch_scc1 L_p2late")
        body.exit_state = b.state()
        trace(b)
        b.raw(f"s_waitcnt vmcnt({5 if TOUCH == 1 else 4})")
        b.label("L_p2bar")
        b("s_barrier")
        trace(b)
        slot(3, {2*i+1: [k_read(i)] for i in range(8)},
             {6: [f"s_add_u32 {sCnt}, {sCnt}, 1"], 16: [nd(ar(KF, 16))]}, {1: [va(VA[6])], 5: [va(VA[7])]})
        slot(4, m4, merge(s4, {3: [nd(ar(KF, 32))]}))
        slot(5, {1: VR[0:2], 3: [VR[2]], 5: [VR[3]], 7: [VR[4]], 9: VR[5:7], 11: [VR[7]], 13: VR[8:10], 15: [VR[10]], 16: [VR[11]]})
        b("s_branch L_p2")
        b.vm = []
    b.vm = []
    save = b.L; b.L = []
    body(); st1 = b.state(); t1 = b.L
    b.L = []; body(); st2 = b.state(); t2 = b.L
    assert st1[0] == st2[0]
    if not STAMPS: assert t1 == t2, "loop not steady"
    print("p2 body estimate", estimate(t2, verbose=VERB))
    b.L = save
    b.raw(".p2align 3")
    b.label("L_p2")
    b.L += t2
    b.label("L_p2late")
    b.raw(f"s_waitcnt vmcnt({1 if TOUCH == 1 else 0})")
    b(f"s_cmp_eq_u32 {sCnt}, 6")
    if TOUCH == 7:
        b("s_cbranch_scc0 L_p2out")
        b(f"buffer_load_dword a{JUNK}, v{TCH}, {SW3}, 0 offen")
        b("s_branch L_p2bar")
        b.label("L_p2out")
    else: b("s_cbranch_scc1 L_p2bar")
    b.set_state(body.exit_state)
    b.vm = []
    b(f"s_mul_i32 {sT}, {sW}, 20480\nv_add_u32 v21, {sT}, v{L16}")
    b("s_barrier")
    stamp(b, 5)
    i0 = len(b.L)
    EXL = 81920; EXF = 87040
    wr = lambda q: [f"ds_write_b128 v21, {ar(OS+(q*4+j)*4,4)} offset:{(q*4+j)*1024}" for j in range(4)]
    w01 = wr(0) + wr(1)
    slot(38, {1 + 2*i: [w01[i]] for i in range(8)},
         {0: [f"s_xor_b32 {sT2}, {sW}, 2"], 2: [f"s_mul_i32 {sT}, {sT2}, 20480"], 4: [f"s_lshl_b32 {sWO}, {sHl}, 18"],
          6: [f"s_mul_i32 {sT3}, {sW}, 1280"], 8: [f"s_add_u32 m0, {sW4}, {S3[0]+20480}"], 10: [f"s_mul_i32 {sT2}, {sT2}, 1280"],
          12: [f"s_mul_i32 {sMX}, {sKH}, {STSZ}"], 14: [f"s_lshl_b32 {sMW}, {sW}, 2"]},
         {1: ["v_lshlrev_b32 v23, 2, v1"], 5: [f"v_add_u32 v22, {sT}, v{L16}"], 9: [f"v_add_u32 v60, {sT3}, v23"], 13: [f"v_add_u32 v61, {sT2}, v23"],
          16: [f"v_add_u32 v2, {sMX}, v{XA3[0]}", f"v_mov_b32 v63, {sMW}"]})
    w2 = wr(2)
    slot(39, merge({9 + 2*i: [w2[i]] for i in range(4)}, {1 + 2*i: [DW3[i]] for i in range(4)}),
         {10: [f"s_add_u32 m0, {sW4}, {S3[1]+20480}"], 12: [f"s_add_u32 {sWO}, {sWO}, 0x20000"]})
    w3 = wr(3)
    slot(40, merge({9 + 2*i: [w3[i]] for i in range(4)}, {1 + 2*i: [DW3[i]] for i in range(4)}))
    EB = 65536
    b(f"v_add_u32 v60, {EB}, v60\nv_add_u32 v61, {EB}, v61\nv_add_u32 v63, {EB}, v63\nv_mov_b32 v3, {EB}")
    for q in range(4): b(f"ds_write_b32 v60, v{LA+4*q} offset:{EXL-EB+q*256}")
    for s in wr(4): b(s)
    b(f"ds_write_b32 v60, v{LA+16} offset:{EXL-EB+4*256}")
    b(f"v_add_f32 v62, v{LA}, v{LA+4}\nv_add_f32 v23, v{LA+8}, v{LA+12}\nv_add_f32 v62, v62, v{LA+16}\nv_add_f32 v62, v62, v23")
    thr = f32bits(2.0 ** 40) if not FORCE_SLOW else f32bits(0.0)
    b(f"v_cmp_nge_f32 vcc, {thr}, v62")
    b(f"s_cmp_lg_u64 vcc, 0\ns_cselect_b32 {sT}, 1, 0\nv_mov_b32 v62, {sT}")
    b(f"ds_write_b32 v63, v62 offset:{EXF-EB}")
    b.wait(lg=0)
    b("s_barrier")
    b(f"ds_read_b128 {vr(NM,4)}, v3 offset:{EXF-EB}")
    for q in range(5): b(f"ds_read_b32 v{NM+4+q}, v61 offset:{EXL-EB+q*256}")
    for i in range(20): b(f"ds_read_b128 {vr(24+4*i,4)}, v22 offset:{i*1024}")
    b(f"v_or_b32 v{NM}, v{NM}, v{NM+1}\nv_or3_b32 v{NM}, v{NM}, v{NM+2}, v{NM+3}")
    for q in range(5): b(f"v_add_f32 v{LA+4*q}, v{LA+4*q}, v{NM+4+q}")
    b(f"v_readfirstlane_b32 {sT}, v{NM}")
    for q in range(5): b(f"v_rcp_f32 v{LA+4*q}, v{LA+4*q}")
    b(f"s_andn2_b32 {sT}, {sT}, {sPass}\ns_cmp_lg_u32 {sT}, 0")
    b("s_cbranch_scc1 L_slow")
    stamp(b, 15)
    for q in range(5):
        for pr in range(2):
            o = OK + (q*4+2*pr)*4; r = 24 + (q*4+2*pr)*4
            for i in range(0, 8, 2): b(f"v_pk_add_f32 {vr(o+i,2)}, {vr(o+i,2)}, {vr(r+i,2)}")
            for i in range(0, 8, 2): b(f"v_pk_mul_f32 {vr(o+i,2)}, {vr(o+i,2)}, {vr(LA+4*q,2)} op_sel_hi:[1,0]")
            for i in range(4): b(f"v_cvt_pk_bf16_f32 v{o+i}, v{o+2*i}, v{o+2*i+1}")
            vv, off = (L16, q * 1024) if q < 4 else (L16B, 0)
            b(f"buffer_store_dwordx4 {vr(o,4)}, v{vv}, {SO}, {sO1 if pr else sO0} offen offset:{off} {HST}")
            b(f"ds_write_b128 v2, {vr(o,4)} offset:{pr*10240+q*1024}")
    b(f"s_mov_b32 {sRB}, {S3[0]}\ns_mov_b32 {sCnt}, 0\ns_mov_b32 {sDB}, {ST0}")
    b(f"v_and_b32 v21, 7, v1\nv_lshlrev_b32 v21, 8, v21\nv_and_b32 v4, 3, v1\nv_mul_u32_u24 v4, {FS1 if SENT else 256}, v4\nv_lshrrev_b32 v5, 1, v{L16}")
    b.wait(lg=0, vm=10)
    print("tail estimate", estimate(b.L[i0:]))
    stamp(b, 6)
    b.vm = []
    f, g = first_fill(3)
    g[(0, 0)] = g[(0, 0)] + [f"s_lshr_b32 {sT3}, {sT}, 1"]
    g.update({(1, 2): f[(1, 2)], (1, 7): f[(1, 7)], (1, 9): f[(1, 10)], (1, 11): f[(1, 12)], (1, 13): f[(1, 15)]})
    g_step(3, dict(zip([(0, 1), (0, 2), (0, 3), (0, 4)], DW3)) if opt("wpos", 3) == 3 else {}, g, first=True)
    b(f"s_mov_b32 {sSpin}, 0")
    if opt("wpos", 3) == 3:
        b.raw("s_waitcnt vmcnt(4)")
        b("s_branch L_non1")
    b.label("L_non")
    b.wait(vm=0)
    b.label("L_non1")
    b(f"v_readfirstlane_b32 s64, v{NONV}\nv_readfirstlane_b32 s65, v{NONV+1}")
    b("s_cmp_lg_u32 s64, 0")
    b("s_cbranch_scc1 L_nonok")
    b(f"buffer_load_dwordx2 {vr(NONV,2)}, v{ZR}, {SD}, 0 offen sc0 sc1")
    b(f"s_add_u32 {sSpin}, {sSpin}, 1\ns_cmp_lt_u32 {sSpin}, {SPIN}")
    b("s_cbranch_scc1 L_non")
    b.label("L_nonok")
    b.vm = []
    stamp(b, 7)
    b("s_barrier")
    b(f"s_cmp_lg_u32 {sW}, 0")
    b("s_cbranch_scc1 L_pubd")
    b(f"s_lshl_b32 {sT}, {sHl}, 8\ns_add_u32 {sT}, {sT}, {sF1}")
    b("s_mov_b64 exec, 1")
    b(f"buffer_store_dwordx2 {vr(NONV,2)}, v{ZR}, {SO}, {sT} offen {HST}")
    b("s_mov_b64 exec, -1")
    b.label("L_pubd")
    WPOS = opt("wpos", 3)
    if WPOS == 0:
        for x in DW3: b(x)
    def poll1(lab, back):
        b(f"s_mov_b32 {sSpin}, 0")
        b.label(lab)
        b(f"buffer_load_dwordx2 v[22:23], v21, {SO}, {sF1} offen {HLD}")
        b.wait(vm=0)
        b(f"v_cmp_eq_u64 s[92:93], {sNon}, v[22:23]")
        b(f"s_mov_b32 {sRdy}, s92\ns_bitcmp1_b32 s92, {sT3}")
        b(f"s_cbranch_scc1 {back}")
        if SLEEP: b(f"s_sleep {SLEEP}")
        b(f"s_add_u32 {sSpin}, {sSpin}, 1\ns_cmp_lt_u32 {sSpin}, {SPIN}")
        b(f"s_cbranch_scc1 {lab}")
    poll1("L_poll0", "L_poll0ok")
    b.label("L_poll0ok")
    stamp(b, 8)
    if WPOS == 1:
        for x in DW3: b(x)
    b(f"s_mov_b32 m0, {sMX}")
    for x in DX3[:4]: b(x)
    b(f"s_mov_b32 m0, {sMW}")
    b(DX3[4])
    if WPOS == 2:
        b(f"s_add_u32 m0, {sMX}, 20480")
        for x in DW3: b(x)
    b.wait(lg=0)
    b.vm = []
    f3 = loopf(3)
    f3[(0, 13)] = [f"s_lshr_b32 {sT3}, {sT}, 1"]
    def chk():
        b("s_cbranch_scc1 L_wait1")
        b.label("L_wait1back")
    f3[(0, 17)] = [f"s_mov_b32 m0, {sMX}", f"s_bitcmp0_b32 {sRdy}, {sT3}", chk]
    b.raw(".p2align 3")
    b.label("L_p3")
    g_step(3, dict(zip(DG, DW3 + DX3)), f3)
    b.wait(lg=0, vm=9)
    b("s_cbranch_vccnz L_p3")
    b.vm = []
    stamp(b, 9)
    PFL = f"buffer_load_dwordx2 v[6:7], v4, {SO}, {sF2} offen {HLD}"
    g_step(3, {(0, 15): PFL} if SENT else {}, ringf(3))
    b.wait(lg=0, vm=0)
    g_step(3, {}, {(0, 14): [f"v_cmp_ne_u64 vcc, {sNon}, v[6:7]"]} if SENT else {(0, 14): [f"s_lshl_b32 {sT}, {sKq}, 8"], (0, 15): [f"s_add_u32 {sT}, {sT}, {sF2}"]})
    if SENT:
        b("s_cbranch_vccnz L_wait2")
        b.label("L_wait2back")
    stamp(b, 10)
    mf = g_mfmas(1, (1, 2, 3, 0))
    PK = 104; RK = 144
    for i in range(21):
        if i < 20: b(mf[i])
        t = i - 6
        if 0 <= t < 15:
            d, q = 1 + t // 5, t % 5; pk = PK + (d-1)*12
            if q in (1, 3): b(f"buffer_store_dwordx4 {vr(pk+2*(q-1),4)}, v{L16}, {SO}, {sPs[d]} offen offset:{(q//2)*1024} {HST}")
            if q == 4: b(f"buffer_store_dwordx2 {vr(pk+8,2)}, v5, {SO}, {sPs[d]} offen offset:2048 {HST}")
        t = i - 5
        if 0 <= t < 15:
            d, q = 1 + t // 5, t % 5; pk = PK + (d-1)*12 + 2*q; a = ACC + (d*5+q)*4
            b(f"v_cvt_pk_bf16_f32 v{pk}, v{a}, v{a+1}\nv_cvt_pk_bf16_f32 v{pk+1}, v{a+2}, v{a+3}")
    if not SENT:
        b.wait(vm=0)
        stamp(b, 11)
        if not F2W:
            b("s_barrier")
            b(f"s_cmp_lg_u32 {sW}, 0")
            b("s_cbranch_scc1 L_wait2")
        b("s_mov_b64 exec, 1")
        b(f"buffer_store_dwordx2 {vr(NONV,2)}, v{ZR}, {SO}, {sT} offen {HST}")
        b("s_mov_b64 exec, -1")
        b.label("L_wait2")
        b(f"s_mov_b32 {sSpin}, 0")
        b.label("L_poll3")
        b(PFL)
        b.wait(vm=0)
        b(f"v_cmp_ne_u64 vcc, {sNon}, v[6:7]")
        b("s_cbranch_vccz L_wait2back")
        b(f"s_sleep {opt('sleep2', 4)}\ns_add_u32 {sSpin}, {sSpin}, 1\ns_cmp_lt_u32 {sSpin}, {SPIN}")
        b("s_cbranch_scc1 L_poll3")
        b.label("L_wait2back")
        stamp(b, 12)
    else: stamp(b, 11)
    b(f"s_mov_b32 {sSpin}, 0")
    if opt("pre2", 0): b(f"s_sleep {opt('pre2', 0)}")
    b.label("L_poll2")
    b.vm = []
    for h in range(3):
        for d in (1, 2, 3):
            pk = RK + (d-1)*12
            if h < 2: b(f"buffer_load_dwordx4 {vr(pk+4*h,4)}, v{L16}, {SO}, {sPl[d]} offen offset:{h*1024} {HLD}")
            else: b(f"buffer_load_dwordx2 {vr(pk+8,2)}, v5, {SO}, {sPl[d]} offen offset:2048 {HLD}")
    if SENT:
        rr = [RK + (d-1)*12 + 4*h + i for h in range(3) for d in (1, 2, 3) for i in range(4 if h < 2 else 2)]
        b(f"v_max_u32 v8, v{rr[0]}, v{rr[1]}")
        for i in range(2, 30, 2): b(f"v_max3_u32 v8, v8, v{rr[i]}, v{rr[i+1]}")
        b("v_cmp_eq_u32 vcc, -1, v8")
        b("s_cbranch_vccz L_poll2ok")
        if SLEEP: b(f"s_sleep {opt('sleep2', 4)}")
        b(f"s_add_u32 {sSpin}, {sSpin}, 1\ns_cmp_lt_u32 {sSpin}, {SPIN}")
        b("s_cbranch_scc1 L_poll2")
        b.label("L_poll2ok")
        stamp(b, 12)
    OFL = opt("ofl", "").replace("+", " ")
    for q in range(5):
        a = ACC + q * 4
        for d in (1, 2, 3):
            pk = RK + (d-1)*12 + 2*q
            for i in range(2):
                b(f"v_lshlrev_b32 v{a+20*d+2*i}, 16, v{pk+i}\nv_and_b32 v{a+20*d+2*i+1}, 0xffff0000, v{pk+i}")
        for i in (0, 2): b(f"v_pk_add_f32 {vr(a+i,2)}, {vr(a+i,2)}, {vr(a+20+i,2)}")
        for i in (0, 2): b(f"v_pk_add_f32 {vr(a+40+i,2)}, {vr(a+40+i,2)}, {vr(a+60+i,2)}")
        for i in (0, 2): b(f"v_pk_add_f32 {vr(a+i,2)}, {vr(a+i,2)}, {vr(a+40+i,2)}")
        b(f"v_cvt_pk_bf16_f32 v{a}, v{a}, v{a+1}\nv_cvt_pk_bf16_f32 v{a+1}, v{a+2}, v{a+3}")
        b(f"buffer_store_dwordx2 {vr(a,2)}, v{OUTV}, {SOUT}, {sOut} offen {OFL}")
        if q < 4: b(f"s_add_u32 {sOut}, {sOut}, 32768")
    if STAMPS:
        stamp(b, 13)
        b.wait(vm=0)
        stamp(b, 14)
        b(f"s_cmp_lg_u32 {sW}, 0")
        b("s_cbranch_scc1 L_nost")
        b(f"v_lshlrev_b32 v3, 2, v1\ns_lshl_b32 {sT}, s2, 7\ns_add_u32 {sT}, {sT}, {STAMP_OFF}\ns_mov_b32 exec_hi, 0")
        b(f"buffer_store_dword v254, v3, {SO}, {sT} offen")
        b("s_mov_b64 exec, -1")
        b.label("L_nost")
        b(f"v_lshlrev_b32 v3, 2, v1\ns_lshl_b32 {sT}, s2, 2\ns_add_u32 {sT}, {sT}, {sW}\ns_lshl_b32 {sT}, {sT}, 7\ns_add_u32 {sT}, {sT}, {STAMP_OFF + (2 << 20)}\ns_mov_b32 exec_hi, 0")
        b(f"buffer_store_dword v254, v3, {SO}, {sT} offen")
        b("s_mov_b64 exec, -1")
        if TRACE:
            b(f"s_lshl_b32 {sT}, s2, 2\ns_add_u32 {sT}, {sT}, {sW}\ns_lshl_b32 {sT}, {sT}, 9\ns_add_u32 {sT}, {sT}, {STAMP_OFF + (1 << 20)}")
            b(f"buffer_store_dword v0, v3, {SO}, {sT} offen")
    b.label("L_end")
    b("s_endpgm")

    b.label("L_wait1")
    b.lg = []; b.vm = []
    poll1("L_poll1", "L_wait1back")
    b("s_branch L_wait1back")
    if SENT:
        b.label("L_wait2")
        b(f"s_mov_b32 {sSpin}, 0")
        b.label("L_poll3")
        b(PFL)
        b.wait(vm=0)
        b(f"v_cmp_ne_u64 vcc, {sNon}, v[6:7]")
        b("s_cbranch_vccz L_wait2back")
        b(f"s_sleep 4\ns_add_u32 {sSpin}, {sSpin}, 1\ns_cmp_lt_u32 {sSpin}, {SPIN}")
        b("s_cbranch_scc1 L_poll3")
        b("s_branch L_wait2back")

    EV = [[int(x) for x in e.split(".")] for e in opt("ev", "4.0,2.2,0.3").split(",")]
    assert sum(e[0] for e in EV) == 6 and sum(e[1] for e in EV) == 5
    b.label("L_aux")
    rp = 0
    for k, (nd_, nr_) in enumerate(EV):
        b.lg = []; b.vm = []
        if k + 1 < len(EV):
            b(f"s_cmp_lg_u32 {sEv}, {k}")
            b(f"s_cbranch_scc1 L_aux{k+1}")
        for i in range(nd_): pair()
        for i in range(nr_):
            b(f"s_mov_b32 {sT}, {(15+rp)*4096}")
            b(f"buffer_load_dwordx4 {ar(STG[2*rp],4)}, v{KVW}, {SK}, {sT} offen {KVFL}")
            b(f"buffer_load_dwordx4 {ar(STG[2*rp+1],4)}, v{KVW}, {SV}, {sT} offen {KVFL}")
            rp += 1
        b(f"s_add_u32 {sEv}, {sEv}, 1")
        b.wait(lg=0, vm=9 + 2*(nd_ + nr_))
        b("s_branch L_auxback")
        if k + 1 < len(EV): b.label(f"L_aux{k+1}")

    b.label("L_slow")
    b.wait(lg=0, vm=0)
    b("s_barrier")
    b(f"s_mov_b32 {sPass}, 1")
    b("v_and_b32 v21, 15, v1\nv_lshlrev_b32 v21, 8, v21\nv_lshrrev_b32 v22, 4, v1\nv_lshlrev_b32 v22, 4, v22\nv_add_u32 v21, v21, v22")
    for q in range(5): b(f"v_mov_b32 v{72+q}, 0xff800000")
    b(f"s_mov_b32 {sCnt}, 0")
    b.label("L_slowloop")
    for d in range(4): b(f"buffer_load_dwordx4 {vr(24+4*d,4)}, v21, {SK}, {sCnt} offen offset:{d*64}")
    b.wait(vm=0)
    for q in range(5):
        for d in range(4):
            b(f"{MF} {vr(80+4*q,4)}, {vr(24+4*d,4)}, {ar(QF+(q*4+d)*4,4)}, {'0' if d == 0 else vr(80+4*q,4)}")
    for q in range(5):
        b(f"v_max3_f32 v{72+q}, v{72+q}, v{80+4*q}, v{81+4*q}\nv_max3_f32 v{72+q}, v{72+q}, v{82+4*q}, v{83+4*q}")
    b(f"s_add_u32 {sCnt}, {sCnt}, 4096\ns_cmp_lt_u32 {sCnt}, 131072")
    b("s_cbranch_scc1 L_slowloop")
    for sw_ in ("v_permlane16_swap_b32", "v_permlane32_swap_b32"):
        for q in range(5): b(f"v_mov_b32 v{64+q}, v{72+q}")
        for q in range(5): b(f"{sw_} v{72+q}, v{64+q}")
        for q in range(5): b(f"v_max_f32 v{72+q}, v{72+q}, v{64+q}")
    for q in range(5):
        for i in range(4): b(f"v_sub_f32 v{NM+4*q+i}, 0, v{72+q}")
    p2_addr()
    for z in ZEROS: b(z)
    b.label("L_slowkv")
    pair()
    b(f"s_cmp_lt_u32 {sKVs}, {20 * 4096}")
    b("s_cbranch_scc1 L_slowkv")
    b.wait(vm=0)
    b("s_barrier")
    for i in range(8): b(k_read(i))
    for i in range(4): b(VR[i])
    for i in range(8): b(s_mfma(0, i))
    b("s_nop 7")
    b("s_branch L_p2entry")
    return b.L

def gen_probe(spec):
    i, ri, j, rj = spec.split(",")
    b = B()
    b.raw(".p2align 8"); b.raw(".type mha_probe_kernel,@function"); b.label("mha_probe_kernel")
    b("s_cmp_ge_u32 s2, 1"); b("s_cbranch_scc1 L3_end")
    b.raw("s_load_dwordx2 s[4:5], s[0:1], 56"); b.raw("s_waitcnt lgkmcnt(0)")
    b("s_mov_b32 s6, 268435456\ns_mov_b32 s7, 0x20000")
    b(f"v_mul_u32_u24 v1, 512, v0\nv_lshrrev_b32 v4, 1, v0\nv_and_b32 v4, 3, v4\nv_lshlrev_b32 v4, 7, v4\nv_add_u32 v1, v1, v4\ns_mov_b32 s8, {STAMP_OFF}")
    b(f"buffer_load_dword v2, v1, s[4:7], s8 offen offset:{8*int(i)}")
    b(f"buffer_load_dword v3, v1, s[4:7], s8 offen offset:{8*int(j)}")
    b.wait(vm=0)
    b("v_readlane_b32 s9, v2, 0")
    b("s_sub_u32 s9, s9, 100000")
    b("v_subrev_u32 v2, s9, v2\nv_subrev_u32 v3, s9, v3")
    for v, r, acc in ((2, ri, "s10"), (3, rj, "s11")):
        b(f"s_mov_b32 {acc}, {'-1' if r == 'min' else '0'}")
        for l in range(64):
            b(f"v_readlane_b32 s12, v{v}, {l}")
            b(f"{dict(min='s_min_u32', max='s_max_u32', avg='s_add_u32')[r]} {acc}, {acc}, s12")
        if r == 'avg': b(f"s_lshr_b32 {acc}, {acc}, 3")
        else: b(f"s_lshl_b32 {acc}, {acc}, 3")
    if opt("abs", 0):
        b("s_lshr_b32 s10, s10, 3\ns_add_u32 s12, s10, s9\ns_mov_b32 s10, 10000")
        if opt("abs", 0) == 2:
            b(f"s_mov_b32 s8, {STAMP_OFF + (3 << 20)}\nv_mov_b32 v1, 0\nbuffer_load_dword v2, v1, s[4:7], s8 offen")
            b.wait(vm=0)
            b("v_readfirstlane_b32 s12, v2")
    else:
        b("s_sub_u32 s10, s11, s10\ns_min_u32 s10, s10, 100000")
        b.raw("s_memrealtime s[12:13]"); b.raw("s_waitcnt lgkmcnt(0)")
    b.label("L3_spin")
    b.raw("s_memrealtime s[14:15]"); b.raw("s_waitcnt lgkmcnt(0)")
    b("s_sub_u32 s14, s14, s12\ns_cmp_lt_u32 s14, s10")
    b("s_cbranch_scc1 L3_spin")
    b.label("L3_end")
    b("s_endpgm")
    if opt("abs", 0) == 2:
        b.raw(".p2align 8"); b.raw(".type mha_tiny_kernel,@function"); b.label("mha_tiny_kernel")
        b.raw("s_memrealtime s[8:9]")
        b.raw("s_load_dwordx2 s[4:5], s[0:1], 56"); b.raw("s_waitcnt lgkmcnt(0)")
        b("s_cmp_ge_u32 s2, 1"); b("s_cbranch_scc1 L4_end")
        b(f"s_mov_b32 s6, 268435456\ns_mov_b32 s7, 0x20000\ns_mov_b32 s10, {STAMP_OFF + (3 << 20)}\nv_mov_b32 v1, 0\nv_mov_b32 v2, s8")
        b("buffer_store_dword v2, v1, s[4:7], s10 offen")
        b.label("L4_end")
        b("s_endpgm")
    return b.L

def main():
    k, n = hazard_pass(gen(), verbose=VERB)
    head = ["; Fused MHA block, one workgroup per (batch, head): Q projection, attention, then a quarter (in k) of the output",
            "; projection; workgroups hand O and partial sums to each other through d_ws. Written by dev/gen8.py.",
            "; @launch grid=(256,1,1) block=(256,1,1) lds=163840",
            '.amdgcn_target "amdgcn-amd-amdhsa--gfx950"', ".text", f".globl {NAME}"]
    tail = ['.section .rodata,"a"', ".p2align 6", f".amdhsa_kernel {NAME}", "  .amdhsa_next_free_vgpr 512", "  .amdhsa_next_free_sgpr 102",
            "  .amdhsa_accum_offset 256", "  .amdhsa_group_segment_fixed_size 0", "  .amdhsa_kernarg_size 64", "  .amdhsa_user_sgpr_count 2",
            "  .amdhsa_user_sgpr_kernarg_segment_ptr 1", "  .amdhsa_system_sgpr_workgroup_id_x 1", ".end_amdhsa_kernel"]
    if "probe" in P:
        k3, _ = hazard_pass(gen_probe(P["probe"]))
        k = k + k3
        head[2] = f"; @launch kernel={NAME} grid=(256,1,1) block=(256,1,1) lds=163840\n; @launch kernel=mha_probe_kernel grid=(1,1,1) block=(64,1,1) lds=0"
        head.append(".globl mha_probe_kernel")
        if opt("abs", 0) == 2:
            head[2] = "; @launch kernel=mha_tiny_kernel grid=(1,1,1) block=(64,1,1) lds=0\n" + head[2]
            head.append(".globl mha_tiny_kernel")
            tail += [".p2align 6", ".amdhsa_kernel mha_tiny_kernel", "  .amdhsa_next_free_vgpr 8", "  .amdhsa_next_free_sgpr 32",
                "  .amdhsa_accum_offset 8", "  .amdhsa_group_segment_fixed_size 0", "  .amdhsa_kernarg_size 64", "  .amdhsa_user_sgpr_count 2",
                "  .amdhsa_user_sgpr_kernarg_segment_ptr 1", "  .amdhsa_system_sgpr_workgroup_id_x 1", ".end_amdhsa_kernel"]
        tail += [".p2align 6", ".amdhsa_kernel mha_probe_kernel", "  .amdhsa_next_free_vgpr 8", "  .amdhsa_next_free_sgpr 32",
            "  .amdhsa_accum_offset 8", "  .amdhsa_group_segment_fixed_size 0", "  .amdhsa_kernarg_size 64", "  .amdhsa_user_sgpr_count 2",
            "  .amdhsa_user_sgpr_kernarg_segment_ptr 1", "  .amdhsa_system_sgpr_workgroup_id_x 1", ".end_amdhsa_kernel"]
    fmt = lambda l: l if l.endswith(":") or l.startswith((".", ";")) else "    " + l
    open(sys.argv[1], "w").write("\n".join(head + [fmt(l) for l in k] + tail) + "\n")
    print(f"nops inserted: {n}; lines {len(k)}")
main()
```

```python
import sys, math, struct
from asmlib import B, hazard_pass, need, estimate

P = dict(kv.split("=") for kv in sys.argv[2:])
def opt(k, d): return type(d)(P.get(k, d))
STAMPS = opt("stamps", 0); TRACE = opt("trace", 0); VERB = bool(opt("v", 0))
KVFL = opt("kvfl", "nt").replace("+", " ")
HST = opt("hst", "sc0+sc1").replace("+", " ")
HLD = opt("hld", "sc0+sc1").replace("+", " ")
H1S = opt("h1s", "sc0+sc1").replace("+", " "); H1F = opt("h1f", "sc0+sc1").replace("+", " "); H1L = opt("h1l", "sc0+sc1").replace("+", " ")
FORCE_SLOW = opt("slow", 0)
SIG = opt("sig", "rot"); SIG3 = opt("sig3", "rot"); AUXT = opt("auxt", "lead")
TL = opt("tl", 11); TIT = opt("tit", 6); THALF = opt("thalf", 1)

TOUCH = opt("touch", 7)
SLEEP = opt("sleep", 4); ONEPOLL = opt("onepoll", 1); PBF = opt("pbf", 1)
NAME = "standalone__mha_block_cached__near_ridge_kernel"
STAMP_OFF = 200 << 20; NST = 16
TIMER = "s_memtime" if STAMPS == 2 else "s_memrealtime"
PART = 12 << 20; PSL = 10240 if opt('pbf', 1) else 20480; FLG1 = PART + 64 * 16 * PSL + (2 << 20); FS1 = opt('fs1', 8448); FS2 = opt('fs2', 4352); FLG2 = FLG1 + (1 << 20); WSREC = FLG2 + (2 << 20)

def vr(a, n=1, k='v'): return f"{k}{a}" if n == 1 else f"{k}[{a}:{a+n-1}]"
def ar(a, n=1): return vr(a, n, 'a')
def f32bits(x): return "0x%08x" % struct.unpack("<I", struct.pack("<f", x))[0]

def stamp(b, i):
    if STAMPS:
        b.wait(lg=0)
        b.raw(f"{TIMER} s[96:97]"); b.raw("s_waitcnt lgkmcnt(0)")
        b.raw(f"v_writelane_b32 v254, s96, {2*i}"); b.raw(f"v_writelane_b32 v254, s97, {2*i+1}")
def trace(b):
    if TRACE:
        b.wait(lg=0)
        for s in ("s_memtime s[96:97]", "s_waitcnt lgkmcnt(0)", "s_sub_u32 s96, s96, s98", "s_mov_b32 s97, m0", "s_mov_b32 m0, s100",
                  "v_writelane_b32 v0, s96, m0", "s_add_u32 s100, s100, 1", "s_min_u32 s100, s100, 63", "s_mov_b32 m0, s97"): b.raw(s)

def order(kind, j):
    if kind == "seq": return list(range(16)), [2, 6, 10]
    if kind == "xor": return [t ^ j for t in range(16)], [4, 8, 12]
    o = []; lead = []
    if kind == "rot":
        for t in range(16):
            if t == 0: o.append(j)
            elif t % 4 == j and t + 3 < 16: o.append(t + 3); lead.append(t)
            else: o.append([c for c in range(16) if c not in o and (c < 4 or (c - 3) < t) and not (c >= 4 and (c - 3) % 4 == j)][0])
    elif kind == "rot2":
        for t in range(16):
            if t == 0: o.append(0)
            elif t == 1: o.append(1 + j)
            elif (t - 1) % 4 == j and t + 3 < 16: o.append(t + 3); lead.append(t)
            else: o.append([c for c in range(16) if c not in o and (c < 5 or (c - 3) < t) and not (c >= 5 and (c - 4) % 4 == j)][0])
    assert sorted(o) == list(range(16)), o
    lead = [t for t in lead if t >= 2][:3]
    while len(lead) < 3: lead.append(lead[-1] + 2)
    return o, lead
def tables(kind):
    T = []
    for j in range(4):
        o, lead = order(kind, j)
        if AUXT.startswith("c"):
            off, base = int(AUXT[1]), int(AUXT[2])
            lead = [((j + off) % 4) + base + 4 * k + 2 for k in range(3)]
        elif AUXT != "lead": lead = [int(v) + 2 for v in AUXT.split(".")]
        val = sum(c << (4 * t) for t, c in enumerate(o))
        T.append((val & 0xffffffff, val >> 32, sum(1 << (t - 1) for t in lead)))
    return T

def order3(j, p):
    if SIG3 == "seq": o = list(range(14))
    else:
        o = []
        for t in range(14):
            if t == 0: o.append(j)
            elif t % 4 == j and t + 3 < 14: o.append(t + 3)
            else: o.append([c for c in range(14) if c not in o and (c < 4 or (c - 3) < t) and not (c >= 4 and (c - 3) % 4 == j)][0])
        assert sorted(o) == list(range(14))
        if p and SIG3 == "rotp": o = [(c + 7) % 14 for c in o]
    val = sum((c + 2) << (4 * t) for t, c in enumerate(o))
    return val & 0xffffffff, val >> 32
ROW1 = opt('row1', 1)
def gen():
    b = B()
    SX, SW, SK, SV, SO, SD = "s[4:7]", "s[8:11]", "s[12:15]", "s[16:19]", "s[20:23]", "s[24:27]"
    SOUT, SX3, SW3 = "s[68:71]", "s[72:75]", "s[76:79]"
    sW, sB, sH, sCnt = "s28", "s29", "s30", "s31"
    sRB, sDB, sDelta, sMask = "s32", "s33", "s34", "s35"
    sXO, sWO, sMX, sMW, sM5, sT, sT2, sT3 = "s36", "s37", "s38", "s39", "s40", "s41", "s42", "s43"
    sW4, sW1, sPB, sKVm, sKVs, sPass, sO0, sO1, sCls = "s44", "s45", "s46", "s47", "s48", "s49", "s50", "s51", "s52"
    sCc, sSpin, sQH, sKH = "s53", "s54", "s56", "s57"
    sBl, sHl, sKq, sEv = "s60", "s61", "s62", "s63"
    sNon = "s[64:65]"
    sPs = [None, "s82", "s83", "s84"]; sPl = [None, "s85", "s86", "s87"]
    sF1, sOut, sRdy, sF2 = "s88", "s89", "s90", "s91"
    XA = [2, 3]; WA = [4, 5, 6, 7]; VB = [8, 9, 10, 11, 12]; VW = [13, 14, 15, 16]; KVW, NONV, L16 = 17, 18, 20
    ACC = 24; OK = 104; KA = [184, 185, 186, 187]; VA = list(range(188, 196)); NM = 196; LA = 216; L16B = 236; TCH = 237
    XA3 = [238, 239]; ZR = 240; WA3 = [244, 245, 246, 247]; VW3 = [248, 249, 250, 251]; VB3 = [252] * 4 + [253]; OUTV = 255
    SB = [24, 32, 40]; PB = [48, 52, 56]
    OS, QF, KF, VF, ONES, JUNK, K0F = 0, 80, 160, 192, 224, 228, 240
    STG = [VF + 4*i for i in range(8)] + [232, 236]
    AF = [80, 96]; BF = [112, 132]
    ST0 = 53248; STSZ = 36864; LDS = 163840; QEX = 122880
    S3 = [ST0 + STSZ, ST0 + 2*STSZ]
    FL = 256; SPIN = 200000
    MF = "v_mfma_f32_16x16x32_bf16"

    b.raw(".p2align 8")
    b.raw(f".type {NAME},@function")
    b.label(NAME)
    b("s_cmp_ge_u32 s2, 256")
    b("s_cbranch_scc1 L_end")
    b.track = False
    b("s_load_dwordx4 s[4:7], s[0:1], 0")
    b("s_load_dwordx4 s[8:11], s[0:1], 16")
    b("s_load_dwordx4 s[68:71], s[0:1], 40")
    b("s_load_dwordx2 s[76:77], s[0:1], 32")
    b("s_load_dwordx2 s[20:21], s[0:1], 56")
    b("s_memrealtime s[64:65]")
    if STAMPS: b.raw(f"{TIMER} s[94:95]")
    if TRACE: b.raw("s_memtime s[98:99]"); b.raw("s_mov_b32 s100, 0")
    b.track = True
    b("v_and_b32 v1, 63, v0\nv_lshrrev_b32 v21, 6, v0")
    b(f"s_and_b32 {sB}, s2, 1\ns_lshl_b32 {sB}, {sB}, 2\ns_lshr_b32 {sT}, s2, 3\ns_and_b32 {sBl}, {sT}, 3\ns_add_u32 {sB}, {sB}, {sBl}")
    b(f"v_readfirstlane_b32 {sW}, v21")
    b(f"s_lshr_b32 {sKq}, s2, 1\ns_and_b32 {sKq}, {sKq}, 3\ns_lshl_b32 {sH}, {sKq}, 3\ns_lshr_b32 {sHl}, {sT}, 2\ns_add_u32 {sH}, {sH}, {sHl}")
    b(f"s_add_u32 {sCls}, {sBl}, {sHl}\ns_and_b32 {sCls}, {sCls}, 3")
    T = tables(SIG)
    b(f"s_mov_b32 s58, {T[0][0]}\ns_mov_b32 s59, {T[0][1]}\ns_mov_b32 {sMask}, {T[0][2]}")
    for j in (1, 2, 3):
        b(f"s_cmp_eq_u32 {sCls}, {j}\ns_cselect_b32 s58, {T[j][0]}, s58\ns_cselect_b32 s59, {T[j][1]}, s59\ns_cselect_b32 {sMask}, {T[j][2]}, {sMask}")
    if opt("xoff", 1):
        if opt("xoff", 1) == 1: b(f"s_xor_b32 {sT2}, s2, {sKq}")
        if opt("xoff", 1) == 2: b(f"s_lshr_b32 {sT2}, s2, 7\ns_xor_b32 {sT2}, {sT2}, s2")
        if opt("xoff", 1) == 3: b(f"s_lshr_b32 {sT2}, s2, 7\ns_xor_b32 {sT2}, {sT2}, s2\ns_xor_b32 {sT2}, {sT2}, {sKq}")
        if opt("xoff", 1) == 4: b(f"s_lshr_b32 {sT2}, s2, 7")
        b(f"s_bitcmp1_b32 {sT2}, 0\ns_cselect_b32 {sT2}, 0x88888888, 0\ns_xor_b32 s58, s58, {sT2}\ns_xor_b32 s59, s59, {sT2}")
    b(f"s_lshl_b32 {sW4}, {sW}, 12\ns_lshl_b32 {sW1}, {sW}, 10\ns_and_b32 {sQH}, {sW}, 1\ns_lshr_b32 {sKH}, {sW}, 1")
    b("v_lshrrev_b32 v21, 4, v1")
    b("v_and_b32 v22, 7, v1\nv_xor_b32 v22, v22, v21\nv_lshlrev_b32 v22, 4, v22")
    b("v_lshrrev_b32 v23, 3, v1\nv_lshlrev_b32 v23, 11, v23\nv_add_u32 v22, v22, v23\nv_xor_b32 v23, 64, v22")
    b(f"s_lshl_b32 {sT}, {sW}, 16")
    for q in range(4):
        b(f"s_add_u32 {sT2}, {sT}, {q*(16384-1024)}\nv_add_u32 v{VB[q]}, {sT2}, v{23 if q & 1 else 22}")
    b(f"s_lshl_b32 {sT}, {sQH}, 6\nv_xor_b32 v{VB[4]}, {sT}, v22\ns_lshl_b32 {sT}, {sW}, 14\ns_add_u32 {sT}, {sT}, {16*16384}\nv_add_u32 v{VB[4]}, {sT}, v{VB[4]}")
    b("v_lshlrev_b32 v22, 1, v21\nv_and_b32 v23, 15, v1\nv_xor_b32 v22, v22, v23\nv_lshlrev_b32 v22, 4, v22")
    b(f"v_lshlrev_b32 v23, 13, v21\nv_add_u32 v23, v23, v22\nv_xor_b32 v{L16}, 128, v23")
    b(f"s_lshl_b32 {sT}, {sW}, 17")
    for q in range(4):
        b(f"s_add_u32 {sT2}, {sT}, {q*(32768-1024)}\nv_add_u32 v{VW[q]}, {sT2}, v{L16 if q & 2 else 23}")
    b(f"s_add_u32 {sM5}, {sW1}, 16384")
    b(f"s_lshl_b32 {sT}, {sB}, 5\ns_add_u32 {sT}, {sT}, {sH}\ns_lshl_b32 {sT}, {sT}, 17\ns_lshl_b32 {sT2}, {sH}, 8\ns_mul_i32 {sT3}, {sB}, 327680")
    b.raw("s_waitcnt lgkmcnt(0)")
    b(f"s_add_u32 s12, s6, {sT}\ns_addc_u32 s13, s7, 0")
    b(f"s_add_u32 s16, s8, {sT}\ns_addc_u32 s17, s9, 0")
    b(f"s_add_u32 s8, s10, {sT2}\ns_addc_u32 s9, s11, 0\ns_sub_u32 s10, 8388608, {sT2}\ns_mov_b32 s11, 0x20000")
    b(f"s_add_u32 s4, s4, {sT3}\ns_addc_u32 s5, s5, 0\ns_mov_b32 s6, 327680\ns_mov_b32 s7, 0x20000")
    def dma_lists(vw, sw, vb, sx, fl=""):
        return ([f"buffer_load_dwordx4 v{vw[q]}, {sw}, {sWO} offen offset:{q*1024} lds" for q in range(4)],
                [f"buffer_load_dwordx4 v{vb[q]}, {sx}, {sXO} offen offset:{q*1024} {fl} lds" for q in range(4)] +
                [f"buffer_load_dwordx4 v{vb[4]}, {sx}, {sXO} offen {fl} lds"])
    DW, DX = dma_lists(VW, SW, VB, SX)
    DW3, DX3 = dma_lists(VW3, SW3, VB3, SX3, H1L)
    def first_stage(st):
        base = ST0 + ((st+2)%3)*STSZ
        b(f"s_and_b32 {sT}, s58, 15\ns_add_u32 m0, {sW4}, {base+20480}\ns_lshl_b32 {sWO}, {sT}, 19")
        for x in DW: b(x)
        b(f"s_add_u32 m0, {sW4}, {base}\ns_lshl_b32 {sXO}, {sT}, 7")
        for x in DX[:4]: b(x)
    def first_stage_last(st):
        base = ST0 + ((st+2)%3)*STSZ
        b(f"s_add_u32 m0, {sM5}, {base}\ns_lshr_b64 s[58:59], s[58:59], 4")
        b(DX[4])
    if opt("sta", 0) == 1: stamp(b, 15)
    first_stage(0)
    if not opt("late5", 0): first_stage_last(0)
    if opt("sta", 0) == 2: stamp(b, 15)
    if STAMPS: b.raw("v_writelane_b32 v254, s94, 0"); b.raw("v_writelane_b32 v254, s95, 1")
    if opt("ctouch", 0):
        b.raw("s_getpc_b64 s[92:93]")
        b(f"s_lshr_b32 {sT}, s2, 3\ns_lshl_b32 {sT}, {sT}, 2\ns_add_u32 {sT}, {sT}, {sW}\ns_lshl_b32 {sT}, {sT}, 7\nv_mov_b32 v24, {sT}")
        b.raw(f"global_load_dword a{JUNK}, v24, s[92:93]")
    b(f"s_mov_b32 {sRB}, {ST0 + 2*STSZ}\ns_mov_b32 {sCnt}, 0\ns_mov_b32 {sDB}, {ST0 + STSZ}\ns_mov_b32 {sEv}, 0")
    b("v_and_b32 v26, 15, v1\nv_lshrrev_b32 v27, 1, v26\nv_xor_b32 v27, v27, v21\nv_lshlrev_b32 v27, 4, v27\nv_lshlrev_b32 v25, 7, v26\nv_add_u32 v27, v27, v25")
    b(f"s_mul_i32 {sT}, {sQH}, 10240\ns_add_u32 {sT}, {sT}, {sRB}")
    for u in range(2): b(f"v_xor_b32 v{XA[u]}, {u*64}, v27\nv_add_u32 v{XA[u]}, {sT}, v{XA[u]}")
    b("v_lshrrev_b32 v30, 2, v1\nv_and_b32 v31, 7, v30\nv_and_b32 v26, 3, v30")
    b(f"s_lshl_b32 {sT}, {sKH}, 2\nv_xor_b32 v27, {sT}, v31\nv_lshlrev_b32 v27, 5, v27")
    b("v_lshlrev_b32 v25, 3, v21\nv_add_u32 v28, v25, v26\nv_lshlrev_b32 v28, 8, v28")
    b("v_and_b32 v29, 3, v1\nv_lshlrev_b32 v29, 3, v29\nv_add3_u32 v28, v28, v27, v29")
    b(f"s_add_u32 {sT}, {sRB}, 20480")
    for d in range(4): b(f"v_xor_b32 v{WA[d]}, {d*32}, v28\nv_add_u32 v{WA[d]}, {sT}, v{WA[d]}")
    b("v_lshlrev_b32 v23, 8, v21\nv_add_u32 v22, v22, v23")
    b(f"s_lshl_b32 {sT}, {sQH}, 7\nv_xor_b32 v{KVW}, {sT}, v22\nv_add_u32 v{KVW}, {sW1}, v{KVW}")
    b(f"s_mov_b32 {sKVm}, {sW1}\ns_mov_b32 {sKVs}, 0")
    b("s_mov_b32 s14, 131072\ns_mov_b32 s15, 0x20000\ns_mov_b32 s18, 131072\ns_mov_b32 s19, 0x20000")
    b(f"s_mov_b32 s22, {268435456 if STAMPS else WSREC}\ns_mov_b32 s23, 0x20000")
    b("s_mov_b32 s24, s70\ns_mov_b32 s25, s71\ns_mov_b32 s26, 256\ns_mov_b32 s27, 0x20000")
    b(f"s_add_u32 s68, s68, {sT3}\ns_addc_u32 s69, s69, 0\ns_mov_b32 s70, 327680\ns_mov_b32 s71, 0x20000")
    b(f"s_lshl_b32 {sT}, {sB}, 2\ns_add_u32 {sT}, {sT}, {sKq}\ns_mul_i32 {sT}, {sT}, 327680\ns_add_u32 s72, s20, {sT}\ns_addc_u32 s73, s21, 0\ns_mov_b32 s74, 327680\ns_mov_b32 s75, 0x20000")
    b(f"s_lshl_b32 {sT}, {sKq}, 13\ns_add_u32 {sT}, {sT}, {sHl}\ns_lshl_b32 {sT}, {sT}, 8\ns_add_u32 s76, s76, {sT}\ns_addc_u32 s77, s77, 0\ns_sub_u32 s78, 8388608, {sT}\ns_mov_b32 s79, 0x20000")
    if opt("sta", 0) == 3: stamp(b, 15)
    SENT = 0; F2W = opt("f2w", 0); CLR = 2

    def zero(r):
        big = int(r.split(":")[1][:-1]) - int(r.split("[")[1].split(":")[0]) == 15
        return f"{'v_mfma_f32_32x32x16_bf16' if big else MF} {r}, {vr(ZR,4)}, {vr(ZR,4)}, 0"
    ZEROS = [zero(vr(OK+16*i, 16)) for i in range(5)] + [zero(ar(OS+16*i, 16)) for i in range(5)] + [zero(vr(LA, 16)), zero(vr(LA+16, 4))]
    def p2_addr():
        b("v_lshrrev_b32 v21, 4, v1\nv_and_b32 v22, 7, v1\nv_lshlrev_b32 v22, 1, v22\nv_xor_b32 v22, v22, v21\nv_lshlrev_b32 v22, 4, v22")
        b("v_and_b32 v23, 15, v1\nv_lshlrev_b32 v23, 8, v23\nv_add_u32 v22, v22, v23")
        b(f"s_lshl_b32 {sT}, {sKH}, 14")
        for d in range(4): b(f"v_xor_b32 v{KA[d]}, {d*64}, v22\nv_add_u32 v{KA[d]}, {sT}, v{KA[d]}")
        b(f"v_lshrrev_b32 v21, 2, v1\nv_and_b32 v22, 7, v21\ns_lshl_b32 {sT2}, {sKH}, 2\nv_xor_b32 v22, {sT2}, v22\nv_lshlrev_b32 v22, 5, v22")
        b("v_lshlrev_b32 v21, 8, v21\nv_and_b32 v23, 3, v1\nv_lshlrev_b32 v23, 3, v23\nv_add3_u32 v22, v22, v21, v23")
        b(f"s_add_u32 {sT}, {sT}, 4096")
        for j in range(8): b(f"v_xor_b32 v{VA[j]}, {j*32}, v22\nv_add_u32 v{VA[j]}, {sT}, v{VA[j]}")
        b(f"s_mov_b32 {sPB}, 0")
    def spread(i0, extra):
        code = b.L[i0:]; b.L = b.L[:i0]
        step = max(1, len(code) // (len(extra) + 1))
        for i, ln in enumerate(code):
            if i % step == 0 and 1 <= i // step <= len(extra): b.L.append(extra[i // step - 1])
            b.L.append(ln)
    def setup_a():
        for i in range(4): b(f"v_mov_b32 v{ZR+i}, 0")
        b(f"v_lshlrev_b32 v{L16}, 4, v1\nv_add_u32 v{L16B}, 4096, v{L16}")
        b(f"s_or_b32 {sT}, s2, {sW}\ns_cmp_lg_u32 {sT}, 0")
        b("s_cbranch_scc1 L_nonon")
        b(f"s_or_b32 s64, s64, 1\nv_mov_b32 v22, s64\nv_mov_b32 v23, s65")
        b(f"buffer_store_dwordx2 v[22:23], v{ZR}, {SD}, 0 offen sc0 sc1")
        b.label("L_nonon")
        i0 = len(b.L)
        p2_addr()
        b("v_mov_b32 v21, 0x3f803f80")
        if ROW1: b("v_and_b32 v22, 15, v1\nv_cmp_eq_u32 s[92:93], 0, v22\nv_cndmask_b32 v21, 0, v21, s[92:93]")
        for i in range(4): b(f"v_accvgpr_write_b32 a{ONES+i}, v21")
        b(f"s_mov_b32 {sPass}, 0\ns_mov_b32 {sCc}, {f32bits(math.log2(math.e) / math.sqrt(128.0))}")
        spread(i0, ZEROS[:6])
    def setup_b():
        i0 = len(b.L)
        b("v_lshrrev_b32 v21, 4, v1\nv_lshlrev_b32 v22, 1, v21\nv_and_b32 v23, 15, v1\nv_xor_b32 v22, v22, v23\nv_lshlrev_b32 v22, 4, v22")
        b(f"v_lshlrev_b32 v23, 11, v23\nv_lshlrev_b32 v{OUTV}, 3, v21\nv_add_u32 v{OUTV}, v{OUTV}, v23")
        b(f"v_lshlrev_b32 v23, 11, v21\nv_add_u32 v23, v23, v22\nv_xor_b32 v22, 128, v23\ns_lshl_b32 {sT}, {sW}, 15")
        for q in range(4):
            b(f"s_add_u32 {sT2}, {sT}, {q*(8192-1024)}\nv_add_u32 v{VW3[q]}, {sT2}, v{22 if q & 1 else 23}")
        b(f"v_add_u32 v{VB3[0]}, {sW4}, v{L16}\nv_add_u32 v{VB3[4]}, {sM5}, v{L16}")
        b(f"s_mul_i32 {sT}, {sQH}, 5120\ns_add_u32 {sT}, {sT}, {S3[0]}\nv_add_u32 v{XA3[0]}, {sT}, v{L16}\nv_add_u32 v{XA3[1]}, 10240, v{XA3[0]}")
        b(f"v_lshrrev_b32 v21, 2, v1\nv_and_b32 v22, 7, v21\ns_lshl_b32 {sT}, {sKq}, 1\ns_add_u32 {sT}, {sT}, {sKH}\nv_xor_b32 v22, {sT}, v22\nv_lshlrev_b32 v22, 5, v22")
        b("v_lshlrev_b32 v21, 8, v21\nv_and_b32 v23, 3, v1\nv_lshlrev_b32 v23, 3, v23\nv_add3_u32 v22, v22, v21, v23")
        for d in range(4): b(f"v_xor_b32 v{WA3[d]}, {d*64}, v22\nv_add_u32 v{WA3[d]}, {S3[0]+20480}, v{WA3[d]}")
        b(f"s_lshl_b32 {sOut}, {sT}, 5\ns_mul_i32 {sT2}, {sQH}, 163840\ns_add_u32 {sOut}, {sOut}, {sT2}\ns_lshl_b32 {sT3}, {sHl}, 8\ns_add_u32 {sOut}, {sOut}, {sT3}")
        b(f"s_mov_b32 s80, {order3(0,0)[0]}\ns_mov_b32 s81, {order3(0,0)[1]}")
        for bb in range(1, 8 if SIG3 == "rotp" else 4):
            b(f"s_cmp_eq_u32 {sB if SIG3 == 'rotp' else sBl}, {bb}\ns_cselect_b32 s80, {order3(bb & 3, bb >> 2)[0]}, s80\ns_cselect_b32 s81, {order3(bb & 3, bb >> 2)[1]}, s81")
        b(f"s_mul_i32 {sT}, {sHl}, 0x22222222\ns_xor_b32 s80, s80, {sT}\ns_xor_b32 s81, s81, {sT}")
        if TOUCH == 1:
            if THALF: b(f"s_lshr_b32 {sT}, s2, 3\ns_lshl_b32 {sT}, {sT}, 1\ns_and_b32 {sT2}, s2, 1\ns_add_u32 {sT}, {sT}, {sT2}\ns_lshl_b32 {sT}, {sT}, 15")
            else: b(f"s_lshr_b32 {sT}, s2, 3\ns_lshl_b32 {sT}, {sT}, 16")
            b(f"s_sub_u32 {sT}, {sT}, {sT3}\ns_lshl_b32 {sT2}, {sW}, {13 if THALF else 14}\ns_add_u32 {sT}, {sT}, {sT2}")
            b(f"v_cmp_gt_u32 s[92:93], {TL}, v1\nv_lshlrev_b32 v21, 7, v1\nv_add_u32 v21, {sT}, v21\nv_mov_b32 v22, 0x40000000\nv_cndmask_b32 v{TCH}, v22, v21, s[92:93]")
        if TOUCH == 7:
            b(f"s_and_b32 {sT}, s80, 15\ns_lshl_b32 {sT}, {sT}, 17\ns_lshl_b32 {sT2}, {sW}, 15\ns_add_u32 {sT}, {sT}, {sT2}")
            b(f"v_lshrrev_b32 v21, 1, v1\nv_lshlrev_b32 v21, 11, v21\nv_and_b32 v22, 1, v1\nv_lshlrev_b32 v22, 7, v22\nv_add3_u32 v21, v21, v22, {sT}")
            b(f"v_lshrrev_b32 v22, 5, v1\nv_lshlrev_b32 v22, 30, v22\nv_add_u32 v{TCH}, v21, v22")
        spread(i0, ZEROS[6:])
    def setup_c():
        b(f"s_mul_i32 {sT}, {sB}, 1310720\ns_lshl_b32 {sT2}, {sH}, 1\ns_add_u32 {sT2}, {sT2}, {sKH}\ns_mul_i32 {sT2}, {sT2}, 20480\ns_add_u32 {sO0}, {sT}, {sT2}")
        b(f"s_mul_i32 {sT2}, {sQH}, 5120\ns_add_u32 {sO0}, {sO0}, {sT2}\ns_add_u32 {sO1}, {sO0}, 10240")
        b(f"s_lshl_b32 {sT}, {sB}, 2\ns_add_u32 {sT}, {sT}, {sKq}\ns_mul_i32 {sT}, {sT}, {FS1}\ns_add_u32 {sF1}, {sT}, {FLG1}")
        b(f"s_lshl_b32 {sT}, {sB}, 3\ns_add_u32 {sT}, {sT}, {sHl}\ns_lshl_b32 {sF2}, {sT}, 2")
        if F2W: b(f"s_add_u32 {sF2}, {sF2}, {sW}")
        b(f"s_mul_i32 {sF2}, {sF2}, {FS2}\ns_add_u32 {sF2}, {sF2}, {FLG2}")
        b(f"s_mul_i32 {sT}, {sT}, {16*PSL}\ns_mul_i32 {sT2}, {sW}, {PSL//4}\ns_add_u32 {sT}, {sT}, {sT2}\ns_add_u32 {sT}, {sT}, {PART}")
        for d in (1, 2, 3):
            b(f"s_xor_b32 {sT2}, {sKq}, {d}\ns_lshl_b32 {sT3}, {sT2}, 2\ns_add_u32 {sT3}, {sT3}, {sKq}\ns_mul_i32 {sT3}, {sT3}, {PSL}\ns_add_u32 {sPs[d]}, {sT}, {sT3}")
            b(f"s_lshl_b32 {sT3}, {sKq}, 2\ns_add_u32 {sT3}, {sT3}, {sT2}\ns_mul_i32 {sT3}, {sT3}, {PSL}\ns_add_u32 {sPl[d]}, {sT}, {sT3}")
        b("v_lshrrev_b32 v21, 5, v1\nv_lshlrev_b32 v21, 8, v21\nv_and_b32 v22, 15, v1\nv_lshlrev_b32 v22, 4, v22\nv_lshrrev_b32 v23, 1, v1\nv_and_b32 v23, 8, v23\nv_add3_u32 v21, v21, v22, v23")
        b(f"s_mul_i32 {sT2}, {sQH}, 20480\ns_add_u32 {sT2}, {sT2}, {QEX}\nv_add_u32 v22, {sT2}, v{L16}\ns_lshl_b32 {sT3}, {sKH}, 11\ns_add_u32 {sT2}, {sT2}, {sT3}\nv_add_u32 v21, {sT2}, v21")
        b("v_and_b32 v23, 48, v1")

    if opt("early", 0):
        setup_a(); setup_b(); setup_c()
    first_stage(1); first_stage_last(1)
    for r in [L16B, TCH, ZR, OUTV] + VW3 + [VB3[0], VB3[4]]: b(f"v_mov_b32 v{r}, 0")
    b.vm = []
    b.raw("s_waitcnt vmcnt(9)")
    stamp(b, 1)

    def g_mfmas(buf, dord=(0, 1, 2, 3), c0=False):
        return [f"{MF} {vr(ACC+(d*5+q)*4,4)}, {ar(AF[buf]+4*d,4)}, {ar(BF[buf]+4*q,4)}, {'0' if c0 else vr(ACC+(d*5+q)*4,4)}" for d in dord for q in range(5)]
    def emit(x):
        if callable(x): x()
        else: b(x)
    def g_step(ph, dm, fill, first=False, more=()):
        trace(b)
        b("s_barrier")
        trace(b)
        vs, qs = ((1024, 2048), (4096, 1024))[ph == 3]
        xa, wa = (XA, WA) if ph == 1 else (XA3, WA3)
        more = list(more)
        for u in range(2):
            A = lambda d: [f"ds_read_b64_tr_b16 {ar(AF[u]+4*d+2*v,2)}, v{wa[d]} offset:{u*8192+v*vs}" for v in range(2)]
            rd = A(0) + [f"ds_read_b128 {ar(BF[u]+4*q,4)}, v{xa[u]} offset:{q*qs}" for q in range(5)] + A(1) + A(2) + A(3)
            mf = g_mfmas(u ^ 1, c0=first)
            if first and u == 0:
                for s in rd: b(s)
                rd = []
            for i in range(20):
                if not (first and u == 0): b(mf[i])
                if (u, i) in dm: b(dm[(u, i)])
                elif rd: b(rd.pop(0))
                elif more: b(more.pop(0))
                for s in fill.get((u, i), []): emit(s)
                if u == 0 and i == 18: need(b, [ar(AF[0], 8), ar(BF[0], 20)])
                if u == 1 and i == 4: need(b, [ar(AF[0], 16)])
            assert not rd
        return more
    va = lambda r: f"v_add_u32 v{r}, {sDelta}, v{r}"
    def ringf(ph):
        xa, wa = (XA, WA) if ph == 1 else (XA3, WA3)
        return {(0, 7): [f"s_add_u32 {sT2}, {sRB}, {STSZ}"], (0, 9): [f"s_cmp_ge_u32 {sT2}, {LDS}"], (0, 10): [f"s_cselect_b32 {sT2}, {ST0}, {sT2}"],
                (0, 11): [f"s_sub_u32 {sDelta}, {sT2}, {sRB}"], (0, 14 if not opt("dg", 0) else 12): [va(xa[0])],
                (1, 2): [va(wa[0])], (1, 7): [va(xa[1])], (1, 10): [va(wa[1])], (1, 12): [va(wa[2])], (1, 15): [va(wa[3])]}
    DG = [(0, 4), (0, 8), (0, 12), (0, 16), (0, 19), (1, 9), (1, 13), (1, 16), (1, 18)]
    if opt("dg", 0) == 1: DG = [(0, 13), (0, 14), (0, 15), (0, 16), (0, 19), (1, 9), (1, 13), (1, 16), (1, 18)]
    def loopf(ph):
        f = ringf(ph)
        sg = "s58" if ph == 1 else "s80"; sgp = "s[58:59]" if ph == 1 else "s[80:81]"
        f.update({(0, 0): [f"s_and_b32 {sT}, {sg}, 15"], (0, 1): [f"s_lshl_b32 {sWO}, {sT}, {19 if ph == 1 else 17}"],
                  (0, 2): [f"s_add_u32 {sMX}, {sDB}, {sW4}"], (0, 3): [f"s_add_u32 m0, {sMX}, 20480"],
                  (0, 5): [f"s_lshl_b32 {sXO}, {sT}, 7" if ph == 1 else f"s_mul_i32 {sXO}, {sT}, 20480"],
                  (0, 6): [f"s_lshr_b64 {sgp}, {sgp}, 4"], (0, 17): [f"s_mov_b32 m0, {sMX}"],
                  (1, 0): [f"s_add_u32 {sMW}, {sDB}, {sM5}"], (1, 1): [f"s_mov_b32 {sDB}, {sRB}"], (1, 3): [f"s_mov_b32 {sRB}, {sT2}"],
                  (1, 5): [f"s_add_u32 {sCnt}, {sCnt}, 1"], (1, 6): [f"s_cmp_lt_u32 {sCnt}, 14"], (1, 8): ["s_cselect_b64 vcc, -1, 0"],
                  (1, 17): [f"s_mov_b32 m0, {sMW}"] + ([f"s_bitcmp1_b32 {sMask}, {sCnt}"] if ph == 1 else [])})
        return f
    def first_fill(ph):
        f = loopf(ph); g = {}
        g[(0, 0)] = sum([f[(0, i)] for i in (0, 1, 2, 3, 5, 6, 7, 9, 10, 11, 14 if not opt('dg', 0) else 12)], []) + f[(1, 0)] + f[(1, 1)] + f[(1, 3)] + f[(1, 5)] + f[(1, 6)] + f[(1, 8)]
        return f, g
    f, g = first_fill(1)
    DG0 = [(1, 13), (1, 14), (1, 15), (1, 16)]
    g.update({(1, 2): f[(1, 2)], (1, 7): f[(1, 7)], (1, 9): f[(1, 10)], (1, 11): f[(1, 12)], (1, 17): f[(1, 15)] + f[(0, 17)]})
    g_step(1, dict(zip(DG0 + [(1, 18), (1, 19)], DW + DX[:2])), g, first=True)
    b(DX[2]); b(DX[3]); b(f"s_mov_b32 m0, {sMW}\ns_bitcmp1_b32 {sMask}, {sCnt}"); b(DX[4])
    b("s_branch L_p1end")
    b.raw(".p2align 3")
    b.label("L_p1")
    b.lg = []
    i0 = len(b.L)
    g_step(1, dict(zip(DG, DW + DX)), loopf(1))
    b.label("L_p1end")
    b("s_cbranch_scc1 L_aux")
    b.wait(lg=0, vm=9)
    b.label("L_auxback")
    b("s_cbranch_vccnz L_p1")
    print("gemm step estimate", estimate(b.L[i0:], verbose=VERB))
    b.vm = []
    stamp(b, 2)
    KLD = f"buffer_load_dwordx4 v{KVW}, {SK}, {sKVs} offen {KVFL} lds"
    VLD = f"buffer_load_dwordx4 v{KVW}, {SV}, {sKVs} offen {KVFL} lds"
    M0K = f"s_mov_b32 m0, {sKVm}"; M0V = f"s_add_u32 m0, m0, 4096"
    ADV = [f"s_add_u32 {sKVm}, {sKVm}, 8192", f"s_add_u32 {sKVs}, {sKVs}, 4096"]
    def pair():
        b(M0K); b(ADV[0]); b(KLD); b(M0V); b(VLD); b(ADV[1])
    NS = opt("ns", 5)
    n14 = opt("n14", 2); n15 = opt("n15", 2); nq = opt("nq", 2); NPI = opt("npi", 2); IENT = 32 - 6 * NPI; npro = IENT - 6 - NS - n14 - n15 - nq
    assert n14 <= 4 and n15 <= 4 and 0 <= nq <= 3 and 0 <= npro <= 5 and n14 + n15 + nq <= 9
    pro1 = 1 if npro >= 1 and n14 + n15 + nq < 9 else 0; pro2 = (npro - pro1 + 1) // 2; pro3 = npro - pro1 - pro2
    def k_read(i): return f"ds_read_b128 {ar(KF+4*i,4)}, v{KA[i%4]} offset:{(i//4)*8192}"
    def v_read(j): return [f"ds_read_b64_tr_b16 {ar(VF+4*j+2*v,2)}, v{VA[j]} offset:{v*8192}" for v in range(2)]
    def kv_step(n, extra, more=()):
        slots = [((0, 3), (0, 4), (0, 6), (0, 8), (0, 12), (0, 13)), ((0, 15), (0, 16), (0, 17), (0, 19), (1, 0), (1, 1)),
                 ((1, 8), (1, 9), (1, 11), (1, 13), (1, 14), (1, 14)), ((1, 15), (1, 16), (1, 17), (1, 18), (1, 19), (1, 19))]
        dm = {}; f = {k: list(v) for k, v in extra.items()}
        for a, k, c, v, e, e2 in ([slots[0], slots[2]] if n == 2 else slots[:n]):
            f.setdefault(a, []).append(M0K); dm[k] = KLD; f.setdefault(c, []).append(M0V); dm[v] = VLD
            f.setdefault(e, []).append(ADV[0]); f.setdefault(e2, []).append(ADV[1])
        return g_step(1, dm, f, more=more)
    kv_step(n14, ringf(1))
    b.wait(lg=0, vm=2*n14)
    if opt("sta", 0) == 21: stamp(b, 15)
    more = kv_step(n15, {}, [f"ds_read_b128 {ar(K0F+4*d,4)}, v23 offset:{d*64}" for d in range(4)] + [k_read(i) for i in range(8)])
    need(b, [ar(AF[1], 16), ar(BF[1], 20)])
    b("s_barrier")
    if opt("sta", 0) == 20: stamp(b, 15)
    i0 = len(b.L)
    def pack(t):
        a = ACC + t * 4
        for i in range(4): b(f"v_mul_f32 v{a+i}, {sCc}, v{a+i}")
        b(f"v_cvt_pk_bf16_f32 v{a}, v{a}, v{a+1}\nv_cvt_pk_bf16_f32 v{a+1}, v{a+2}, v{a+3}")
    def qwr(t):
        d, q = divmod(t, 5); a = ACC + t * 4
        b(f"ds_write_b64 v21, {vr(a,2)} offset:{q*4096+(d>>1)*1024+(d&1)*512}")
    mf = g_mfmas(1)
    for i in range(25):
        if i < 20: b(mf[i])
        if i == 0: b(f"buffer_load_dwordx2 {vr(NONV,2)}, v{ZR}, {SD}, 0 offen sc0 sc1")
        elif i < 4:
            for k in range(2):
                if more: b(more.pop(0))
        if i in ((4, 14) if nq == 2 else (4, 11, 18)[:nq]): pair()
        if 0 <= i - 5 < 20: qwr(i - 5)
        if 0 <= i - 4 < 20: pack(i - 4)
    assert not more
    b(f"s_add_u32 {sT}, {sW1}, {(IENT-NS)*8192}\nv_add_u32 v21, {sT}, v{L16}")
    b.wait(lg=0)
    b("s_barrier")
    print("q pack estimate", estimate(b.L[i0:]))
    stamp(b, 3)
    i0 = len(b.L)
    qr = [f"ds_read_b128 {ar(QF+(q*4+d)*4,4)}, v22 offset:{q*4096+d*1024}" for q in range(5) for d in range(4)]
    for i in range(10): b(qr.pop(0))
    if pro1: pair()
    sw = [f"ds_write_b128 v21, {ar(STG[i],4)} offset:{i*4096}" for i in range(2*NS)]
    neg = [f"v_sub_f32 v{NM+i}, 0, v{NM+i}" for i in range(20)]
    for t in range(20):
        q, d = divmod(t, 4)
        b(f"{MF} {vr(NM+4*q,4)}, {ar(K0F+4*d,4)}, {ar(QF+t*4,4)}, {'0' if d == 0 else vr(NM+4*q,4)}")
        if qr: b(qr.pop(0))
        if t == 13:
            need(b, [ar(QF, 80)])
            b("s_barrier")
        if t >= 14 and sw: b(sw.pop(0))
        if t >= 8: b(neg.pop(0))
    for i in range(pro2): pair()

    def col(n): return (0, 1, 0, 1, 2)[n % 5]
    def s_mfma(n, i):
        kt, d = i // 4, i % 4; q = n % 5
        dst = vr(SB[col(n)] + 4*kt, 4)
        return f"{MF} {dst}, {ar(KF+4*i,4)}, {ar(QF+(q*4+d)*4,4)}, {vr(NM+4*q,4) if d == 0 else dst}"
    def oreg(q, j): return vr(OK + (q*4+j)*4, 4) if j < 4 else ar(OS + (q*4+j-4)*4, 4)
    def p_mfma(n, j):
        q = n % 5
        if j == 8: return f"{MF} {vr(LA+4*q,4)}, {ar(ONES,4)}, {vr(PB[col(n)],4)}, {vr(LA+4*q,4)}"
        return f"{MF} {oreg(q,j)}, {ar(VF+4*j,4)}, {vr(PB[col(n)],4)}, {oreg(q,j)}"
    def v_exp(n, e): return f"v_exp_f32 v{SB[col(n)]+e}, v{SB[col(n)]+e}"
    def v_cvt(n, c): return f"v_cvt_pk_bf16_f32 v{PB[col(n)]+c}, v{SB[col(n)]+2*c}, v{SB[col(n)]+2*c+1}"
    NU = 40
    def slot(n, mem=None, sal=None, val=None):
        mem = mem or {}; sal = sal or {}; val = val or {}
        for p in range(17):
            if p < 16 and p % 2 == 0:
                if 0 <= n + 1 < NU: b(s_mfma(n + 1, p // 2))
            elif 0 <= n - 1 < NU: b(p_mfma(n - 1, p // 2))
            for s in mem.get(p, []): b(s)
            for s in sal.get(p, []): emit(s)
            if 0 <= n < NU:
                if p % 2 == 0 and p < 16: b(v_exp(n, p // 2))
                if p % 4 == 3: b(v_cvt(n, p // 4))
            for s in val.get(p, []): b(s)
    VR = [x for j in range(8) for x in v_read(j)]
    for i in range(8):
        b(s_mfma(0, i))
        if i >= 4: b(VR[i - 4])
        elif sw: b(sw.pop(0))
        b(neg.pop(0))
    assert not sw and not neg
    for i in range(pro3): pair()
    if CLR == 1:
        for i in range(4): b(f"v_mov_b32 v{60+i}, -1")
        b(f"v_lshrrev_b32 v64, 1, v{L16}")
        for x in clears(60): b(x)
    b.label("L_p2entry")
    for i in range(8):
        b(s_mfma(1, i))
        b(VR[4 + i])
        if i >= 2 and i % 2 == 0: b(v_cvt(0, i // 2 - 1))
        b(v_exp(0, i))
    b(f"s_add_u32 m0, {sW1}, {(IENT%20)*8192-(4096 if NPI == 2 else 0)}\ns_add_u32 {sEv}, {sW1}, {LDS}\ns_mov_b32 {sKVs}, {IENT*4096}\ns_mov_b32 {sKVm}, 0\ns_mov_b32 {sCnt}, 0")
    b(v_cvt(0, 3))
    print("p2 prologue estimate", estimate(b.L[i0:]))
    stamp(b, 4)
    nd = lambda *ops: (lambda: need(b, ops))
    def merge(*ds):
        out = {}
        for d in ds:
            for k, v in d.items(): out.setdefault(k, []).extend(v)
        return out
    def body():
        INC = "s_add_u32 m0, m0, 4096"
        def ex():
            b("s_cbranch_scc1 L_tail")
            body.exit_state = b.state()
        m1 = {}; s1 = {}; m2 = {}; s2 = {}; m3 = {}; s3 = {}; s5 = {}
        WR = [f"s_cmp_eq_u32 m0, {sEv}", f"s_cselect_b32 m0, {sW1}, m0"]
        if NPI == 2:
            G = [int(x) for x in opt("g4", "1.5.9.13").split(".")]
            m4 = {G[0]: [KLD], G[1]: [VLD], G[2]: [KLD], G[3]: [VLD]}
            s4 = merge({G[0]-1: [INC]}, {G[1]-1: [INC]}, {G[1]+1: [ADV[1]]}, {G[2]-1: [INC]}, {G[3]-1: [INC]}, {G[3]+1: [ADV[1]]})
            v1 = {9: [va(KA[0]), va(KA[1])], 11: [va(KA[2])], 13: [va(KA[3]), va(VA[0])], 15: [va(VA[1])], 16: [va(VA[2]), va(VA[3])]}
            v2 = {3: [va(VA[4])], 11: [va(VA[5])]}
        else:
            m1 = {13: [KLD]}; s5 = {2: [INC], 4: [WR[0]], 6: [WR[1]], 0: [ADV[1]]}
            m2 = {5: [VLD], 13: [KLD]}; s2 = {2: [INC], 6: [ADV[1]], 8: [INC], 10: [WR[0]], 12: [WR[1]]}
            m3 = {16: [VLD]}; s3 = {10: [INC]}
            m4 = {9: [KLD], 16: [VLD]}; s4 = {0: [ADV[1]], 2: [INC], 4: [WR[0]], 6: [WR[1]], 12: [INC]}
            v1 = {9: [va(KA[0]), va(KA[1])], 11: [va(KA[2])], 15: [va(KA[3])], 16: [va(VA[0]), va(VA[1])]}
            v2 = {1: [va(VA[2]), va(VA[3])], 3: [va(VA[4])], 11: [va(VA[5])]}
        if TOUCH == 1:
            assert NPI == 2
            m2[5] = [f"buffer_load_dword a{JUNK}, v{TCH}, {SW3}, {sT} offen"]
            s2 = {0: [f"s_cmp_lt_u32 {sCnt}, {TIT}"], 2: [f"s_cselect_b32 {sT}, {sKVm}, 0x40000000"], 6: [f"s_add_u32 {sKVm}, {sKVm}, {TL*128}"]}
        slot(1, merge({1: [VR[12]], 3: [VR[13]], 5: [VR[14]], 7: [VR[15]]}, m1),
             {0: [nd(ar(VF, 12))], 6: [nd(ar(VF, 24))], 12: [nd(ar(VF, 28))], 14: [nd(ar(VF, 32))],
              2: [f"s_add_u32 {sT2}, {sPB}, 32768"], 4: [f"s_cmp_ge_u32 {sT2}, {LDS}"], 8: [f"s_cselect_b32 {sT2}, 0, {sT2}"],
              9: [f"s_sub_u32 {sDelta}, {sT2}, {sPB}"], 10: [f"s_mov_b32 {sPB}, {sT2}"], 15: [f"s_cmp_eq_u32 {sCnt}, 7"],
              16: [ex]}, v1)
        slot(2, m2, merge(s2, {14: [f"s_cmp_eq_u32 {sCnt}, 6"]}), v2)
        b("s_cbranch_scc1 L_p2late")
        trace(b)
        b.raw(f"s_waitcnt vmcnt({5 if TOUCH == 1 or NPI == 3 else 4})")
        b.label("L_p2bar")
        b("s_barrier")
        trace(b)
        slot(3, merge({2*i+1: [k_read(i)] for i in range(8)}, m3),
             merge({6: [f"s_add_u32 {sCnt}, {sCnt}, 1"], 16 if NPI == 2 else 14: [nd(ar(KF, 16 if NPI == 2 else 12))]}, s3), {1: [va(VA[6])], 5: [va(VA[7])]})
        slot(4, m4, merge(s4, {3: [nd(ar(KF, 32))]}))
        slot(5, {1: VR[0:2], 3: [VR[2]], 5: [VR[3]], 7: [VR[4]], 9: VR[5:7], 11: [VR[7]], 13: VR[8:10], 15: [VR[10]], 16: [VR[11]]}, s5)
        b("s_branch L_p2")
        b.vm = []
    b.vm = []
    save = b.L; b.L = []
    body(); st1 = b.state(); t1 = b.L
    b.L = []; body(); st2 = b.state(); t2 = b.L
    assert st1[0] == st2[0]
    if not STAMPS: assert t1 == t2, "loop not steady"
    print("p2 body estimate", estimate(t2, verbose=VERB))
    b.L = save
    b.raw(".p2align 3")
    b.label("L_p2")
    b.L += t2
    b.label("L_p2late")
    b.raw(f"s_waitcnt vmcnt({3 if NPI == 3 else 1 if TOUCH == 1 else 0})")
    WE = opt("we", 0)
    if WE:
        assert NPI == 2
        b(f"s_add_u32 m0, {sW4}, {S3[0]+20480}\ns_lshl_b32 {sWO}, {sHl}, 18")
        for x in DW3: b(x)
        b(f"s_add_u32 m0, {sW4}, {S3[1]+20480}\ns_add_u32 {sWO}, {sWO}, 0x20000")
        for x in DW3: b(x)
        b(f"s_mov_b32 m0, {sW1}")
    if TOUCH == 7: b(f"buffer_load_dword a{JUNK}, v{TCH}, {SW3}, 0 offen")
    b("s_branch L_p2bar")
    b.label("L_tail")
    b.set_state(body.exit_state)
    b.vm = []
    b(f"s_mul_i32 {sT}, {sW}, 20480\nv_add_u32 v21, {sT}, v{L16}")
    b.raw("s_waitcnt vmcnt(0)")
    b("s_barrier")
    stamp(b, 5)
    i0 = len(b.L)
    EB = 65536; EXL = 81920 - EB; EXF = 87040 - EB
    LW, LO, LP, FW, FR = 3, 4, 5, 6, 7
    wr = lambda q: [f"ds_write_b128 v21, {ar(OS+(q*4+j)*4,4)} offset:{(q*4+j)*1024}" for j in range(4)]
    lw = lambda q: (lambda: b(f"ds_write_b32 v{LW}, v{LA+4*q} offset:{EXL+q*256}", f"L{q}"))
    RB = [64, 80, 64, 80, 24]
    rd = lambda q: [f"ds_read_b128 {vr(RB[q]+4*j,4)}, v22 offset:{(q*4+j)*1024}" for j in range(4)]
    LR = NM
    lr = lambda q: [f"ds_read_b32 v{LR+2*q}, v{LO} offset:{EXL+q*256}", f"ds_read_b32 v{LR+2*q+1}, v{LP} offset:{EXL+q*256}"]
    linv = lambda q: [f"v_add_f32 v{LR+2*q}, v{LR+2*q}, v{LR+2*q+1}", f"v_rcp_f32 v{LR+2*q}, v{LR+2*q}"]
    def nval(q, pr, packed):
        o = OK + (q*4+2*pr)*4; r = RB[q] + 8*pr
        if packed:
            out = [f"v_pk_add_f32 {vr(o+i,2)}, {vr(o+i,2)}, {vr(r+i,2)}" for i in range(0, 8, 2)]
            out += [f"v_pk_mul_f32 {vr(o+i,2)}, {vr(o+i,2)}, {vr(LR+2*q,2)} op_sel_hi:[1,0]" for i in range(0, 8, 2)]
        else:
            out = [f"v_add_f32 v{o+i}, v{o+i}, v{r+i}" for i in range(8)] + [f"v_mul_f32 v{o+i}, v{LR+2*q}, v{o+i}" for i in range(8)]
        return out + [f"v_cvt_pk_bf16_f32 v{o+i}, v{o+2*i}, v{o+2*i+1}" for i in range(4)]
    def nmem(q, pr):
        o = OK + (q*4+2*pr)*4
        vv, off = (L16, q * 1024) if q < 4 else (L16B, 0)
        return [f"buffer_store_dwordx4 {vr(o,4)}, v{vv}, {SO}, {sO1 if pr else sO0} offen offset:{off} {H1S}",
                f"ds_write_b128 v2, {vr(o,4)} offset:{pr*10240+q*1024}"]
    def chunks(lst, pos):
        n = -(-len(lst) // len(pos))
        return {p: lst[i*n:(i+1)*n] for i, p in enumerate(pos)}
    def meet(q):
        b.wait_tag(lgtag=f"L{q}")
        b("s_barrier")
    w = wr(0)
    slot(37, merge({5 + 2*i: [w[i]] for i in range(4)}, {} if WE else {1: DW3[0:2], 3: DW3[2:4], 13: DW3[0:2], 16: DW3[2:4]}),
         {0: [] if WE else [f"s_add_u32 m0, {sW4}, {S3[0]+20480}", f"s_lshl_b32 {sWO}, {sHl}, 18"],
          11: [] if WE else [f"s_add_u32 m0, {sW4}, {S3[1]+20480}", f"s_add_u32 {sWO}, {sWO}, 0x20000"],
          2: [f"s_xor_b32 {sT2}, {sW}, 2"], 3: [f"s_mul_i32 {sT}, {sT2}, 20480"], 4: [f"s_mul_i32 {sT3}, {sW}, 1280"],
          6: [f"s_add_u32 {sT3}, {sT3}, {EB}"], 8: [f"s_mul_i32 {sT2}, {sT2}, 1280"], 10: [f"s_add_u32 {sT2}, {sT2}, {EB}"],
          12: [f"s_mul_i32 {sMX}, {sKH}, {STSZ}"], 14: [f"s_lshl_b32 {sMW}, {sW}, 2"], 15: [lw(0)]},
         {3: ["v_lshlrev_b32 v23, 2, v1"], 5: [f"v_add_u32 v22, {sT}, v{L16}"], 9: [f"v_add_u32 v{LW}, {sT3}, v23"]})
    b(f"v_and_b32 v23, 60, v23\nv_add_u32 v{LO}, {sT3}, v23\nv_add_u32 v{LP}, {sT2}, v23\nv_add_u32 v2, {sMX}, v{XA3[0]}")
    meet(0)
    if opt("sta", 0) == 10: stamp(b, 15)
    r = lr(0) + rd(0); w = wr(1)
    slot(38, merge({1: r[0:2], 3: r[2:4], 5: r[4:6], 7: [w[0]], 9: [w[1]], 11: [w[2]], 13: [w[3]], 16: nmem(0, 0)}),
         {15: [lw(1)], 0: [f"s_add_u32 {sMW}, {sMW}, {EB}"]},
         merge({7: linv(0)}, chunks(nval(0, 0, False), [9, 11, 13, 15]), {16: nval(0, 1, False)}, {1: [f"v_mov_b32 v{FW}, {sMW}"], 5: [f"v_mov_b32 v{FR}, {EB}"]}))
    meet(1)
    if opt("sta", 0) == 11: stamp(b, 15)
    r = lr(1) + rd(1); w = wr(2)
    slot(39, merge({1: r[0:2] + nmem(0, 1)[:1], 3: r[2:4], 5: r[4:6], 7: [w[0]], 9: [w[1]], 11: [w[2]], 13: [w[3]], 16: nmem(1, 0)}, {15: nmem(0, 1)[1:]}),
         {15: [lw(2)]},
         merge({7: linv(1)}, chunks(nval(1, 0, False), [9, 11, 13, 15]), {16: nval(1, 1, True)}))
    meet(2)
    if opt("sta", 0) == 12: stamp(b, 15)
    r = lr(2) + rd(2); w = wr(3)
    slot(40, merge({1: r[0:2] + nmem(1, 1)[:1], 3: r[2:4], 5: r[4:6], 7: [w[0]], 9: [w[1]], 11: [w[2]], 13: [w[3]]},
                   {15: nmem(1, 1)[1:]}),
         {15: [lw(3)]}, {13: linv(2)})
    for x in nval(2, 0, True): b(x)
    for x in wr(4): b(x)
    lw(4)()
    b(nmem(2, 0)[0])
    b(f"v_add_f32 v8, v{LA}, v{LA+4}\nv_add_f32 v9, v{LA+8}, v{LA+12}\nv_add_f32 v8, v8, v{LA+16}\nv_add_f32 v8, v8, v9")
    thr = f32bits(2.0 ** 40) if not FORCE_SLOW else f32bits(-1.0)
    b(f"v_cmp_nge_f32 vcc, {thr}, v8")
    b(f"s_cmp_lg_u64 vcc, 0\ns_cselect_b32 {sT}, 1, 0\nv_mov_b32 v8, {sT}")
    b(f"ds_write_b32 v{FW}, v8 offset:{EXF}", "L5")
    for x in nval(2, 1, True): b(x)
    b(nmem(2, 1)[0])
    meet(5)
    if opt("sta", 0) == 13: stamp(b, 15)
    b(f"ds_read_b128 {vr(NM+12,4)}, v{FR} offset:{EXF}")
    for x in lr(3) + lr(4) + rd(3) + rd(4): b(x)
    b(nmem(2, 0)[1]); b(nmem(2, 1)[1])
    b(f"v_or_b32 v{NM+12}, v{NM+12}, v{NM+13}\nv_or3_b32 v{NM+12}, v{NM+12}, v{NM+14}, v{NM+15}")
    for x in linv(3) + linv(4): b(x)
    b(f"v_readfirstlane_b32 {sT}, v{NM+12}")
    b(f"s_andn2_b32 {sT}, {sT}, {sPass}\ns_cmp_lg_u32 {sT}, 0")
    b("s_cbranch_scc1 L_slow")
    if not opt("sta", 0): stamp(b, 15)
    for q in (3, 4):
        for pr in range(2):
            for x in nval(q, pr, True) + nmem(q, pr): b(x)
    b(f"s_mov_b32 {sRB}, {S3[0]}\ns_mov_b32 {sCnt}, 0\ns_mov_b32 {sDB}, {ST0}")
    b(f"v_and_b32 v21, 7, v1\nv_lshlrev_b32 v21, 8, v21\nv_and_b32 v4, 3, v1\nv_mul_u32_u24 v4, {FS1 if SENT else 256}, v4\nv_lshrrev_b32 v5, 1, v{L16}")
    b.wait(lg=0, vm=10)
    print("tail estimate", estimate(b.L[i0:]))
    stamp(b, 6)
    b.vm = []
    f, g = first_fill(3)
    g[(0, 0)] = g[(0, 0)] + [f"s_lshr_b32 {sT3}, {sT}, 1"]
    g.update({(1, 2): f[(1, 2)], (1, 7): f[(1, 7)], (1, 9): f[(1, 10)], (1, 11): f[(1, 12)], (1, 13): f[(1, 15)]})
    g_step(3, dict(zip([(0, 1), (0, 2), (0, 3), (0, 4)], DW3)) if opt("wpos", 3) == 3 else {}, g, first=True)
    b(f"s_mov_b32 {sSpin}, 0")
    if opt("wpos", 3) == 3:
        b.raw("s_waitcnt vmcnt(4)")
        b("s_branch L_non1")
    b.label("L_non")
    b.wait(vm=0)
    b.label("L_non1")
    b(f"v_readfirstlane_b32 s64, v{NONV}\nv_readfirstlane_b32 s65, v{NONV+1}")
    b("s_cmp_lg_u32 s64, 0")
    b("s_cbranch_scc1 L_nonok")
    b(f"buffer_load_dwordx2 {vr(NONV,2)}, v{ZR}, {SD}, 0 offen sc0 sc1")
    b(f"s_add_u32 {sSpin}, {sSpin}, 1\ns_cmp_lt_u32 {sSpin}, {SPIN}")
    b("s_cbranch_scc1 L_non")
    b.label("L_nonok")
    b.vm = []
    stamp(b, 7)
    b("s_barrier")
    b(f"s_cmp_lg_u32 {sW}, 0")
    b("s_cbranch_scc1 L_pubd")
    b(f"s_lshl_b32 {sT}, {sHl}, 8\ns_add_u32 {sT}, {sT}, {sF1}")
    b("s_mov_b64 exec, 1")
    b(f"buffer_store_dwordx2 {vr(NONV,2)}, v{ZR}, {SO}, {sT} offen {H1F}")
    b("s_mov_b64 exec, -1")
    b.label("L_pubd")
    WPOS = opt("wpos", 3)
    if WPOS == 0:
        for x in DW3: b(x)
    PP = opt("pp", 1)
    def poll1(lab, back):
        b(f"s_mov_b32 {sSpin}, 0")
        regs = ["v[22:23]", "v[8:9]", "v[10:11]"][:PP]
        ld = lambda r: b.raw(f"buffer_load_dwordx2 {r}, v21, {SO}, {sF1} offen {H1L}")
        for r in regs[1:]:
            ld(r); b(f"s_sleep {opt('psl', 3)}")
        b.label(lab)
        for k in range(PP):
            ld(regs[k])
            b.raw(f"s_waitcnt vmcnt({PP-1})")
            r = regs[(k + 1) % PP]
            b.raw(f"v_cmp_eq_u64 s[92:93], {sNon}, {r}")
            b(f"s_mov_b32 {sRdy}, s92\ns_bitcmp1_b32 s92, {sT3}")
            b(f"s_cbranch_scc1 {back}")
            if SLEEP and PP == 1: b(f"s_sleep {SLEEP}")
        b(f"s_add_u32 {sSpin}, {sSpin}, 1\ns_cmp_lt_u32 {sSpin}, {SPIN}")
        b(f"s_cbranch_scc1 {lab}")
    poll1("L_poll0", "L_poll0ok")
    b.label("L_poll0ok")
    stamp(b, 8)
    if WPOS == 1:
        for x in DW3: b(x)
    b(f"s_mov_b32 m0, {sMX}")
    for x in DX3[:4]: b(x)
    b(f"s_mov_b32 m0, {sMW}")
    b(DX3[4])
    if WPOS == 2:
        b(f"s_add_u32 m0, {sMX}, 20480")
        for x in DW3: b(x)
    b.wait(lg=0)
    b.vm = []
    f3 = loopf(3)
    f3[(0, 13 if not opt("dg", 0) else 8)] = [f"s_lshr_b32 {sT3}, {sT}, 1"]
    def chk():
        b("s_cbranch_scc1 L_wait1")
        b.label("L_wait1back")
    f3[(0, 17)] = [f"s_mov_b32 m0, {sMX}", f"s_bitcmp0_b32 {sRdy}, {sT3}", chk]
    b.raw(".p2align 3")
    b.label("L_p3")
    g_step(3, dict(zip(DG, DW3 + DX3)), f3)
    b.wait(lg=0, vm=9)
    b("s_cbranch_vccnz L_p3")
    b.vm = []
    stamp(b, 9)
    PFL = f"buffer_load_dwordx2 v[6:7], v4, {SO}, {sF2} offen {HLD}"
    AFX = lambda g: (AF[1], 160, 0, 16, 32)[g]
    BFX = lambda g: (BF[1], 176, 48, 196, 216)[g]
    def mm(g, d, q): return f"{MF} {vr(ACC+(d*5+q)*4,4)}, {ar(AFX(g)+4*d,4)}, {ar(BFX(g)+4*q,4)}, {vr(ACC+(d*5+q)*4,4)}"
    rf = ringf(3)
    for st in range(2):
        trace(b); b("s_barrier"); trace(b)
        pre = ([rf[(0, 7)], rf[(0, 9)], rf[(0, 10)], rf[(0, 11)]] if st == 0 else [[f"s_lshl_b32 {sT}, {sKq}, 8"], [f"s_add_u32 {sT}, {sT}, {sF2}"]])
        for u in range(2):
            g = 1 + 2*st + u
            A = lambda d: [f"ds_read_b64_tr_b16 {ar(AFX(g)+4*d+2*v,2)}, v{WA3[d]} offset:{u*8192+v*4096}" for v in range(2)]
            rdl = A(1) + [f"ds_read_b128 {ar(BFX(g)+4*q,4)}, v{XA3[u]} offset:{q*1024}" for q in range(5)] + A(2) + A(3) + A(0)
            upd = {} if st == 1 else ({8: XA3[0]} if u == 0 else {2: WA3[1], 7: XA3[1], 9: WA3[2], 11: WA3[3], 13: WA3[0]})
            for i in range(15):
                b(mm(g - 1, 1 + i // 5, i % 5))
                if rdl: b(rdl.pop(0))
                if pre:
                    for x in pre.pop(0): b(x)
                if i in upd: b(va(upd[i]))
                if i == 14 and not (st == 0 and u == 1): need(b, [ar(AFX(g)+4, 4), ar(BFX(g), 20)])
                if i == 3 and g > 1: need(b, [ar(AFX(g - 1), 16)])
        if st == 0: b.wait(lg=0, vm=0)
    stamp(b, 10)
    mf = [mm(4, 1 + i // 5, i % 5) for i in range(15)] + [mm(g, 0, q) for g in range(5) for q in range(5)]
    PK = 104; RK = 144
    for i in range(40):
        b(mf[i])
        t = i - 6
        if 0 <= t < 15:
            d, q = 1 + t // 5, t % 5; pk = PK + (d-1)*12
            if q in (1, 3): b(f"buffer_store_dwordx4 {vr(pk+2*(q-1),4)}, v{L16}, {SO}, {sPs[d]} offen offset:{(q//2)*1024} {HST}")
            if q == 4: b(f"buffer_store_dwordx2 {vr(pk+8,2)}, v5, {SO}, {sPs[d]} offen offset:2048 {HST}")
        t = i - 5
        if 0 <= t < 15:
            d, q = 1 + t // 5, t % 5; pk = PK + (d-1)*12 + 2*q; a = ACC + (d*5+q)*4
            b(f"v_cvt_pk_bf16_f32 v{pk}, v{a}, v{a+1}\nv_cvt_pk_bf16_f32 v{pk+1}, v{a+2}, v{a+3}")
    if not SENT:
        b.wait(vm=0)
        stamp(b, 11)
        if not F2W:
            b("s_barrier")
            b(f"s_cmp_lg_u32 {sW}, 0")
            b("s_cbranch_scc1 L_wait2")
        b("s_mov_b64 exec, 1")
        b(f"buffer_store_dwordx2 {vr(NONV,2)}, v{ZR}, {SO}, {sT} offen {HST}")
        b("s_mov_b64 exec, -1")
        b.label("L_wait2")
        b(f"s_mov_b32 {sSpin}, 0")
        P2 = opt("pp2", 1)
        regs = ["v[6:7]", "v[8:9]", "v[10:11]"][:P2]
        ld = lambda r: b.raw(f"buffer_load_dwordx2 {r}, v4, {SO}, {sF2} offen {HLD}")
        for r in regs[1:]:
            ld(r); b(f"s_sleep {opt('psl', 3)}")
        b.label("L_poll3")
        for k in range(P2):
            ld(regs[k])
            b.raw(f"s_waitcnt vmcnt({P2-1})")
            b.raw(f"v_cmp_ne_u64 vcc, {sNon}, {regs[(k + 1) % P2]}")
            b("s_cbranch_vccz L_wait2back")
            if P2 == 1 and opt('sleep2', 4): b(f"s_sleep {opt('sleep2', 4)}")
        b(f"s_add_u32 {sSpin}, {sSpin}, 1\ns_cmp_lt_u32 {sSpin}, {SPIN}")
        b("s_cbranch_scc1 L_poll3")
        b.label("L_wait2back")
        stamp(b, 12)
    else: stamp(b, 11)
    b(f"s_mov_b32 {sSpin}, 0")
    if opt("pre2", 0): b(f"s_sleep {opt('pre2', 0)}")
    b.label("L_poll2")
    b.vm = []
    for h in range(3):
        for d in (1, 2, 3):
            pk = RK + (d-1)*12
            if h < 2: b(f"buffer_load_dwordx4 {vr(pk+4*h,4)}, v{L16}, {SO}, {sPl[d]} offen offset:{h*1024} {HLD}")
            else: b(f"buffer_load_dwordx2 {vr(pk+8,2)}, v5, {SO}, {sPl[d]} offen offset:2048 {HLD}")
    if SENT:
        rr = [RK + (d-1)*12 + 4*h + i for h in range(3) for d in (1, 2, 3) for i in range(4 if h < 2 else 2)]
        b(f"v_max_u32 v8, v{rr[0]}, v{rr[1]}")
        for i in range(2, 30, 2): b(f"v_max3_u32 v8, v8, v{rr[i]}, v{rr[i+1]}")
        b("v_cmp_eq_u32 vcc, -1, v8")
        b("s_cbranch_vccz L_poll2ok")
        if SLEEP: b(f"s_sleep {opt('sleep2', 4)}")
        b(f"s_add_u32 {sSpin}, {sSpin}, 1\ns_cmp_lt_u32 {sSpin}, {SPIN}")
        b("s_cbranch_scc1 L_poll2")
        b.label("L_poll2ok")
        stamp(b, 12)
    OFL = opt("ofl", "").replace("+", " ")
    for q in range(5):
        a = ACC + q * 4
        for d in (1, 2, 3):
            pk = RK + (d-1)*12 + 2*q
            for i in range(2):
                b(f"v_lshlrev_b32 v{a+20*d+2*i}, 16, v{pk+i}\nv_and_b32 v{a+20*d+2*i+1}, 0xffff0000, v{pk+i}")
        for i in (0, 2): b(f"v_pk_add_f32 {vr(a+i,2)}, {vr(a+i,2)}, {vr(a+20+i,2)}")
        for i in (0, 2): b(f"v_pk_add_f32 {vr(a+40+i,2)}, {vr(a+40+i,2)}, {vr(a+60+i,2)}")
        for i in (0, 2): b(f"v_pk_add_f32 {vr(a+i,2)}, {vr(a+i,2)}, {vr(a+40+i,2)}")
        b(f"v_cvt_pk_bf16_f32 v{a}, v{a}, v{a+1}\nv_cvt_pk_bf16_f32 v{a+1}, v{a+2}, v{a+3}")
        b(f"buffer_store_dwordx2 {vr(a,2)}, v{OUTV}, {SOUT}, {sOut} offen {OFL}")
        if q < 4: b(f"s_add_u32 {sOut}, {sOut}, 32768")
    if STAMPS:
        stamp(b, 13)
        b.wait(vm=0)
        stamp(b, 14)
        b(f"s_cmp_lg_u32 {sW}, 0")
        b("s_cbranch_scc1 L_nost")
        b(f"v_lshlrev_b32 v3, 2, v1\ns_lshl_b32 {sT}, s2, 7\ns_add_u32 {sT}, {sT}, {STAMP_OFF}\ns_mov_b32 exec_hi, 0")
        b(f"buffer_store_dword v254, v3, {SO}, {sT} offen")
        b("s_mov_b64 exec, -1")
        b.label("L_nost")
        b(f"v_lshlrev_b32 v3, 2, v1\ns_lshl_b32 {sT}, s2, 2\ns_add_u32 {sT}, {sT}, {sW}\ns_lshl_b32 {sT}, {sT}, 7\ns_add_u32 {sT}, {sT}, {STAMP_OFF + (2 << 20)}\ns_mov_b32 exec_hi, 0")
        b(f"buffer_store_dword v254, v3, {SO}, {sT} offen")
        b("s_mov_b64 exec, -1")
        if TRACE:
            b(f"s_lshl_b32 {sT}, s2, 2\ns_add_u32 {sT}, {sT}, {sW}\ns_lshl_b32 {sT}, {sT}, 9\ns_add_u32 {sT}, {sT}, {STAMP_OFF + (1 << 20)}")
            b(f"buffer_store_dword v0, v3, {SO}, {sT} offen")
    b.label("L_end")
    b("s_endpgm")

    b.label("L_wait1")
    b.lg = []; b.vm = []
    poll1("L_poll1", "L_wait1back")
    b("s_branch L_wait1back")
    if SENT:
        b.label("L_wait2")
        b(f"s_mov_b32 {sSpin}, 0")
        b.label("L_poll3")
        b(PFL)
        b.wait(vm=0)
        b(f"v_cmp_ne_u64 vcc, {sNon}, v[6:7]")
        b("s_cbranch_vccz L_wait2back")
        b(f"s_sleep 4\ns_add_u32 {sSpin}, {sSpin}, 1\ns_cmp_lt_u32 {sSpin}, {SPIN}")
        b("s_cbranch_scc1 L_poll3")
        b("s_branch L_wait2back")

    EV = [[int(x) for x in e.split(".")] for e in opt("ev", "3.0,3.1,0.4").split(",")]
    assert sum(e[0] for e in EV) == 6 and sum(e[1] for e in EV) == NS
    assert len(EV) == 3
    b.label("L_aux")
    rp = 0
    for k, (nd_, nr_) in enumerate(EV):
        b.lg = []; b.vm = []
        if k + 1 < len(EV):
            b(f"s_cmp_lg_u32 {sEv}, {k}")
            b(f"s_cbranch_scc1 L_aux{k+1}")
        for i in range(nd_): pair()
        for i in range(nr_):
            b(f"s_mov_b32 {sT}, {(IENT-NS+rp)*4096}")
            b(f"buffer_load_dwordx4 {ar(STG[2*rp],4)}, v{KVW}, {SK}, {sT} offen {KVFL}")
            b(f"buffer_load_dwordx4 {ar(STG[2*rp+1],4)}, v{KVW}, {SV}, {sT} offen {KVFL}")
            rp += 1
        b(f"s_add_u32 {sEv}, {sEv}, 1")
        if not opt("early", 0): (setup_a, setup_b, setup_c)[k]()
        b.wait(lg=0, vm=9 + 2*(nd_ + nr_))
        b("s_branch L_auxback")
        if k + 1 < len(EV): b.label(f"L_aux{k+1}")

    b.label("L_slow")
    b.wait(lg=0, vm=0)
    b("s_barrier")
    b(f"s_mov_b32 {sPass}, 1")
    b("v_and_b32 v21, 15, v1\nv_lshlrev_b32 v21, 8, v21\nv_lshrrev_b32 v22, 4, v1\nv_lshlrev_b32 v22, 4, v22\nv_add_u32 v21, v21, v22")
    for q in range(5): b(f"v_mov_b32 v{72+q}, 0xff800000")
    b(f"s_mov_b32 {sCnt}, 0")
    b.label("L_slowloop")
    for d in range(4): b(f"buffer_load_dwordx4 {vr(24+4*d,4)}, v21, {SK}, {sCnt} offen offset:{d*64}")
    b.wait(vm=0)
    for q in range(5):
        for d in range(4):
            b(f"{MF} {vr(80+4*q,4)}, {vr(24+4*d,4)}, {ar(QF+(q*4+d)*4,4)}, {'0' if d == 0 else vr(80+4*q,4)}")
    for q in range(5):
        b(f"v_max3_f32 v{72+q}, v{72+q}, v{80+4*q}, v{81+4*q}\nv_max3_f32 v{72+q}, v{72+q}, v{82+4*q}, v{83+4*q}")
    b(f"s_add_u32 {sCnt}, {sCnt}, 4096\ns_cmp_lt_u32 {sCnt}, 131072")
    b("s_cbranch_scc1 L_slowloop")
    for sw_ in ("v_permlane16_swap_b32", "v_permlane32_swap_b32"):
        for q in range(5): b(f"v_mov_b32 v{64+q}, v{72+q}")
        for q in range(5): b(f"{sw_} v{72+q}, v{64+q}")
        for q in range(5): b(f"v_max_f32 v{72+q}, v{72+q}, v{64+q}")
    for q in range(5):
        for i in range(4): b(f"v_sub_f32 v{NM+4*q+i}, 0, v{72+q}")
    p2_addr()
    b(f"s_mov_b32 {sKVm}, {sW1}\ns_mov_b32 {sKVs}, 0")
    for z in ZEROS: b(z)
    b.label("L_slowkv")
    pair()
    b(f"s_cmp_lt_u32 {sKVs}, {IENT * 4096}")
    b("s_cbranch_scc1 L_slowkv")
    b.wait(vm=0)
    b("s_barrier")
    for i in range(8): b(k_read(i))
    for i in range(4): b(VR[i])
    for i in range(8): b(s_mfma(0, i))
    b("s_nop 7")
    b("s_branch L_p2entry")
    return b.L

def gen_probe(spec):
    i, ri, j, rj = spec.split(",")
    b = B()
    b.raw(".p2align 8"); b.raw(".type mha_probe_kernel,@function"); b.label("mha_probe_kernel")
    b("s_cmp_ge_u32 s2, 1"); b("s_cbranch_scc1 L3_end")
    b.raw("s_load_dwordx2 s[4:5], s[0:1], 56"); b.raw("s_waitcnt lgkmcnt(0)")
    b("s_mov_b32 s6, 268435456\ns_mov_b32 s7, 0x20000")
    b(f"v_mul_u32_u24 v1, 512, v0\nv_lshrrev_b32 v4, 1, v0\nv_and_b32 v4, 3, v4\nv_lshlrev_b32 v4, 7, v4\nv_add_u32 v1, v1, v4\ns_mov_b32 s8, {STAMP_OFF}")
    b(f"buffer_load_dword v2, v1, s[4:7], s8 offen offset:{8*int(i)}")
    b(f"buffer_load_dword v3, v1, s[4:7], s8 offen offset:{8*int(j)}")
    b.wait(vm=0)
    b("v_readlane_b32 s9, v2, 0")
    b("s_sub_u32 s9, s9, 100000")
    b("v_subrev_u32 v2, s9, v2\nv_subrev_u32 v3, s9, v3")
    for v, r, acc in ((2, ri, "s10"), (3, rj, "s11")):
        b(f"s_mov_b32 {acc}, {'-1' if r == 'min' else '0'}")
        for l in range(64):
            b(f"v_readlane_b32 s12, v{v}, {l}")
            b(f"{dict(min='s_min_u32', max='s_max_u32', avg='s_add_u32')[r]} {acc}, {acc}, s12")
        if r == 'avg': b(f"s_lshr_b32 {acc}, {acc}, 3")
        else: b(f"s_lshl_b32 {acc}, {acc}, 3")
    if opt("abs", 0):
        b("s_lshr_b32 s10, s10, 3\ns_add_u32 s12, s10, s9\ns_mov_b32 s10, 10000")
        if opt("abs", 0) == 2:
            b(f"s_mov_b32 s8, {STAMP_OFF + (3 << 20)}\nv_mov_b32 v1, 0\nbuffer_load_dword v2, v1, s[4:7], s8 offen")
            b.wait(vm=0)
            b("v_readfirstlane_b32 s12, v2")
    else:
        b("s_sub_u32 s10, s11, s10\ns_min_u32 s10, s10, 100000")
        b.raw("s_memrealtime s[12:13]"); b.raw("s_waitcnt lgkmcnt(0)")
    b.label("L3_spin")
    b.raw("s_memrealtime s[14:15]"); b.raw("s_waitcnt lgkmcnt(0)")
    b("s_sub_u32 s14, s14, s12\ns_cmp_lt_u32 s14, s10")
    b("s_cbranch_scc1 L3_spin")
    b.label("L3_end")
    b("s_endpgm")
    if opt("abs", 0) == 2:
        b.raw(".p2align 8"); b.raw(".type mha_tiny_kernel,@function"); b.label("mha_tiny_kernel")
        b.raw("s_memrealtime s[8:9]")
        b.raw("s_load_dwordx2 s[4:5], s[0:1], 56"); b.raw("s_waitcnt lgkmcnt(0)")
        b("s_cmp_ge_u32 s2, 1"); b("s_cbranch_scc1 L4_end")
        b(f"s_mov_b32 s6, 268435456\ns_mov_b32 s7, 0x20000\ns_mov_b32 s10, {STAMP_OFF + (3 << 20)}\nv_mov_b32 v1, 0\nv_mov_b32 v2, s8")
        b("buffer_store_dword v2, v1, s[4:7], s10 offen")
        b.label("L4_end")
        b("s_endpgm")
    return b.L

def main():
    k, n = hazard_pass(gen(), verbose=VERB)
    head = ["; Fused MHA block, one workgroup per (batch, head): Q projection, attention, then a quarter (in k) of the output",
            "; projection; workgroups hand O and partial sums to each other through d_ws. Written by dev/gen11.py.",
            "; @launch grid=(256,1,1) block=(256,1,1) lds=163840",
            '.amdgcn_target "amdgcn-amd-amdhsa--gfx950"', ".text", f".globl {NAME}"]
    tail = ['.section .rodata,"a"', ".p2align 6", f".amdhsa_kernel {NAME}", "  .amdhsa_next_free_vgpr 512", "  .amdhsa_next_free_sgpr 102",
            "  .amdhsa_accum_offset 256", "  .amdhsa_group_segment_fixed_size 0", "  .amdhsa_kernarg_size 64", "  .amdhsa_user_sgpr_count 2",
            "  .amdhsa_user_sgpr_kernarg_segment_ptr 1", "  .amdhsa_system_sgpr_workgroup_id_x 1", ".end_amdhsa_kernel"]
    if "probe" in P:
        k3, _ = hazard_pass(gen_probe(P["probe"]))
        k = k + k3
        head[2] = f"; @launch kernel={NAME} grid=(256,1,1) block=(256,1,1) lds=163840\n; @launch kernel=mha_probe_kernel grid=(1,1,1) block=(64,1,1) lds=0"
        head.append(".globl mha_probe_kernel")
        if opt("abs", 0) == 2:
            head[2] = "; @launch kernel=mha_tiny_kernel grid=(1,1,1) block=(64,1,1) lds=0\n" + head[2]
            head.append(".globl mha_tiny_kernel")
            tail += [".p2align 6", ".amdhsa_kernel mha_tiny_kernel", "  .amdhsa_next_free_vgpr 8", "  .amdhsa_next_free_sgpr 32",
                "  .amdhsa_accum_offset 8", "  .amdhsa_group_segment_fixed_size 0", "  .amdhsa_kernarg_size 64", "  .amdhsa_user_sgpr_count 2",
                "  .amdhsa_user_sgpr_kernarg_segment_ptr 1", "  .amdhsa_system_sgpr_workgroup_id_x 1", ".end_amdhsa_kernel"]
        tail += [".p2align 6", ".amdhsa_kernel mha_probe_kernel", "  .amdhsa_next_free_vgpr 8", "  .amdhsa_next_free_sgpr 32",
            "  .amdhsa_accum_offset 8", "  .amdhsa_group_segment_fixed_size 0", "  .amdhsa_kernarg_size 64", "  .amdhsa_user_sgpr_count 2",
            "  .amdhsa_user_sgpr_kernarg_segment_ptr 1", "  .amdhsa_system_sgpr_workgroup_id_x 1", ".end_amdhsa_kernel"]
    fmt = lambda l: l if l.endswith(":") or l.startswith((".", ";")) else "    " + l
    open(sys.argv[1], "w").write("\n".join(head + [fmt(l) for l in k] + tail) + "\n")
    print(f"nops inserted: {n}; lines {len(k)}")
main()
```

```python
import sys, math, struct
from asmlib import B, hazard_pass, need, estimate

P = dict(kv.split("=") for kv in sys.argv[2:])
def opt(k, d): return type(d)(P.get(k, d))
STAMPS = opt("stamps", 0); TRACE = opt("trace", 0); VERB = bool(opt("v", 0))
KVFL = opt("kvfl", "nt").replace("+", " ")
HST = opt("hst", "sc0+sc1").replace("+", " ")
HLD = opt("hld", "sc0+sc1").replace("+", " ")
H1S = opt("h1s", "sc0+sc1").replace("+", " "); H1F = opt("h1f", "sc0+sc1").replace("+", " "); H1L = opt("h1l", "sc0+sc1").replace("+", " ")
FORCE_SLOW = opt("slow", 0)
SIG = opt("sig", "rot"); SIG3 = opt("sig3", "rot"); AUXT = opt("auxt", "lead")
TL = opt("tl", 11); TIT = opt("tit", 6); THALF = opt("thalf", 1)

TOUCH = opt("touch", 7)
SLEEP = opt("sleep", 4); ONEPOLL = opt("onepoll", 1); PBF = opt("pbf", 1)
NAME = "standalone__mha_block_cached__near_ridge_kernel"
STAMP_OFF = 200 << 20; NST = 16
TIMER = "s_memtime" if STAMPS == 2 else "s_memrealtime"
PART = 12 << 20; PSL = 10240 if opt('pbf', 1) else 20480; FLG1 = PART + 64 * 16 * PSL + (2 << 20); FS1 = opt('fs1', 8448); FS2 = opt('fs2', 4352); FLG2 = FLG1 + (1 << 20); WSREC = FLG2 + (2 << 20)

def vr(a, n=1, k='v'): return f"{k}{a}" if n == 1 else f"{k}[{a}:{a+n-1}]"
def ar(a, n=1): return vr(a, n, 'a')
def f32bits(x): return "0x%08x" % struct.unpack("<I", struct.pack("<f", x))[0]

def stamp(b, i):
    if STAMPS:
        b.wait(lg=0)
        b.raw(f"{TIMER} s[96:97]"); b.raw("s_waitcnt lgkmcnt(0)")
        b.raw(f"v_writelane_b32 v254, s96, {2*i}"); b.raw(f"v_writelane_b32 v254, s97, {2*i+1}")
def trace(b):
    if TRACE:
        b.wait(lg=0)
        for s in ("s_memtime s[96:97]", "s_waitcnt lgkmcnt(0)", "s_sub_u32 s96, s96, s98", "s_mov_b32 s97, m0", "s_mov_b32 m0, s100",
                  "v_writelane_b32 v0, s96, m0", "s_add_u32 s100, s100, 1", "s_min_u32 s100, s100, 63", "s_mov_b32 m0, s97"): b.raw(s)

def order(kind, j):
    if kind == "seq": return list(range(16)), [2, 6, 10]
    if kind == "xor": return [t ^ j for t in range(16)], [4, 8, 12]
    o = []; lead = []
    if kind == "rot":
        for t in range(16):
            if t == 0: o.append(j)
            elif t % 4 == j and t + 3 < 16: o.append(t + 3); lead.append(t)
            else: o.append([c for c in range(16) if c not in o and (c < 4 or (c - 3) < t) and not (c >= 4 and (c - 3) % 4 == j)][0])
    elif kind == "rot2":
        for t in range(16):
            if t == 0: o.append(0)
            elif t == 1: o.append(1 + j)
            elif (t - 1) % 4 == j and t + 3 < 16: o.append(t + 3); lead.append(t)
            else: o.append([c for c in range(16) if c not in o and (c < 5 or (c - 3) < t) and not (c >= 5 and (c - 4) % 4 == j)][0])
    assert sorted(o) == list(range(16)), o
    lead = [t for t in lead if t >= 2][:3]
    while len(lead) < 3: lead.append(lead[-1] + 2)
    return o, lead
def tables(kind):
    T = []
    for j in range(4):
        o, lead = order(kind, j)
        if AUXT.startswith("c"):
            off, base = int(AUXT[1]), int(AUXT[2])
            lead = [((j + off) % 4) + base + 4 * k + 2 for k in range(3)]
        elif AUXT != "lead": lead = [int(v) + 2 for v in AUXT.split(".")]
        val = sum(c << (4 * t) for t, c in enumerate(o))
        T.append((val & 0xffffffff, val >> 32, sum(1 << (t - 1) for t in lead)))
    return T

def order3(j, p):
    if SIG3 == "seq": o = list(range(14))
    else:
        o = []
        for t in range(14):
            if t == 0: o.append(j)
            elif t % 4 == j and t + 3 < 14: o.append(t + 3)
            else: o.append([c for c in range(14) if c not in o and (c < 4 or (c - 3) < t) and not (c >= 4 and (c - 3) % 4 == j)][0])
        assert sorted(o) == list(range(14))
        if p and SIG3 == "rotp": o = [(c + 7) % 14 for c in o]
    val = sum((c + 2) << (4 * t) for t, c in enumerate(o))
    return val & 0xffffffff, val >> 32
ROW1 = opt('row1', 1)
def gen():
    b = B()
    SX, SW, SK, SV, SO, SD = "s[4:7]", "s[8:11]", "s[12:15]", "s[16:19]", "s[20:23]", "s[24:27]"
    SOUT, SX3, SW3 = "s[68:71]", "s[72:75]", "s[76:79]"
    sW, sB, sH, sCnt = "s28", "s29", "s30", "s31"
    sRB, sDB, sDelta, sMask = "s32", "s33", "s34", "s35"
    sXO, sWO, sMX, sMW, sM5, sT, sT2, sT3 = "s36", "s37", "s38", "s39", "s40", "s41", "s42", "s43"
    sW4, sW1, sPB, sKVm, sKVs, sPass, sO0, sO1, sCls = "s44", "s45", "s46", "s47", "s48", "s49", "s50", "s51", "s52"
    sCc, sSpin, sQH, sKH = "s53", "s54", "s56", "s57"
    sBl, sHl, sKq, sEv = "s60", "s61", "s62", "s63"
    sKVx, sRot = "s55", "s66"
    sNon = "s[64:65]"
    sPs = [None, "s82", "s83", "s84"]; sPl = [None, "s85", "s86", "s87"]
    sF1, sOut, sRdy, sF2 = "s88", "s89", "s90", "s91"
    XA = [2, 3]; WA = [4, 5, 6, 7]; VB = [8, 9, 10, 11, 12]; VW = [13, 14, 15, 16]; KVW, NONV, L16 = 17, 18, 20
    ACC = 24; OK = 104; KA = [184, 185, 186, 187]; VA = list(range(188, 196)); NM = 196; LA = 216; L16B = 236; TCH = 237
    XA3 = [238, 239]; ZR = 240; WA3 = [244, 245, 246, 247]; VW3 = [248, 249, 250, 251]; VB3 = [252] * 4 + [253]; OUTV = 255
    SB = [24, 32, 40]; PB = [48, 52, 56]
    OS, QF, KF, VF, ONES, JUNK, K0F = 0, 80, 160, 192, 224, 228, 240
    STG = [VF + 4*i for i in range(8)] + [232, 236]
    AF = [80, 96]; BF = [112, 132]
    ST0 = 53248; STSZ = 36864; LDS = 163840; QEX = 122880
    S3 = [ST0 + STSZ, ST0 + 2*STSZ]
    FL = 256; SPIN = 200000
    MF = "v_mfma_f32_16x16x32_bf16"

    b.raw(".p2align 8")
    b.raw(f".type {NAME},@function")
    b.label(NAME)
    b("s_cmp_ge_u32 s2, 256")
    b("s_cbranch_scc1 L_end")
    b.track = False
    b("s_load_dwordx4 s[4:7], s[0:1], 0")
    b("s_load_dwordx4 s[8:11], s[0:1], 16")
    b("s_load_dwordx4 s[68:71], s[0:1], 40")
    b("s_load_dwordx2 s[76:77], s[0:1], 32")
    b("s_load_dwordx2 s[20:21], s[0:1], 56")
    b("s_memrealtime s[64:65]")
    if STAMPS: b.raw(f"{TIMER} s[94:95]")
    if TRACE: b.raw("s_memtime s[98:99]"); b.raw("s_mov_b32 s100, 0")
    b.track = True
    b("v_and_b32 v1, 63, v0\nv_lshrrev_b32 v21, 6, v0")
    b(f"s_and_b32 {sB}, s2, 1\ns_lshl_b32 {sB}, {sB}, 2\ns_lshr_b32 {sT}, s2, 3\ns_and_b32 {sBl}, {sT}, 3\ns_add_u32 {sB}, {sB}, {sBl}")
    b(f"v_readfirstlane_b32 {sW}, v21")
    b(f"s_lshr_b32 {sKq}, s2, 1\ns_and_b32 {sKq}, {sKq}, 3\ns_lshl_b32 {sH}, {sKq}, 3\ns_lshr_b32 {sHl}, {sT}, 2\ns_add_u32 {sH}, {sH}, {sHl}")
    b(f"s_add_u32 {sCls}, {sBl}, {sHl}\ns_and_b32 {sCls}, {sCls}, 3")
    T = tables(SIG)
    b(f"s_mov_b32 s58, {T[0][0]}\ns_mov_b32 s59, {T[0][1]}\ns_mov_b32 {sMask}, {T[0][2]}")
    for j in (1, 2, 3):
        b(f"s_cmp_eq_u32 {sCls}, {j}\ns_cselect_b32 s58, {T[j][0]}, s58\ns_cselect_b32 s59, {T[j][1]}, s59\ns_cselect_b32 {sMask}, {T[j][2]}, {sMask}")
    if opt("xoff", 1):
        if opt("xoff", 1) == 1: b(f"s_xor_b32 {sT2}, s2, {sKq}")
        if opt("xoff", 1) == 2: b(f"s_lshr_b32 {sT2}, s2, 7\ns_xor_b32 {sT2}, {sT2}, s2")
        if opt("xoff", 1) == 3: b(f"s_lshr_b32 {sT2}, s2, 7\ns_xor_b32 {sT2}, {sT2}, s2\ns_xor_b32 {sT2}, {sT2}, {sKq}")
        if opt("xoff", 1) == 4: b(f"s_lshr_b32 {sT2}, s2, 7")
        b(f"s_bitcmp1_b32 {sT2}, 0\ns_cselect_b32 {sT2}, 0x88888888, 0\ns_xor_b32 s58, s58, {sT2}\ns_xor_b32 s59, s59, {sT2}")
    b(f"s_lshl_b32 {sW4}, {sW}, 12\ns_lshl_b32 {sW1}, {sW}, 10\ns_and_b32 {sQH}, {sW}, 1\ns_lshr_b32 {sKH}, {sW}, 1")
    b("v_lshrrev_b32 v21, 4, v1")
    b("v_and_b32 v22, 7, v1\nv_xor_b32 v22, v22, v21\nv_lshlrev_b32 v22, 4, v22")
    b("v_lshrrev_b32 v23, 3, v1\nv_lshlrev_b32 v23, 11, v23\nv_add_u32 v22, v22, v23\nv_xor_b32 v23, 64, v22")
    b(f"s_lshl_b32 {sT}, {sW}, 16")
    for q in range(4):
        b(f"s_add_u32 {sT2}, {sT}, {q*(16384-1024)}\nv_add_u32 v{VB[q]}, {sT2}, v{23 if q & 1 else 22}")
    b(f"s_lshl_b32 {sT}, {sQH}, 6\nv_xor_b32 v{VB[4]}, {sT}, v22\ns_lshl_b32 {sT}, {sW}, 14\ns_add_u32 {sT}, {sT}, {16*16384}\nv_add_u32 v{VB[4]}, {sT}, v{VB[4]}")
    b("v_lshlrev_b32 v22, 1, v21\nv_and_b32 v23, 15, v1\nv_xor_b32 v22, v22, v23\nv_lshlrev_b32 v22, 4, v22")
    b(f"v_lshlrev_b32 v23, 13, v21\nv_add_u32 v23, v23, v22\nv_xor_b32 v{L16}, 128, v23")
    b(f"s_lshl_b32 {sT}, {sW}, 17")
    for q in range(4):
        b(f"s_add_u32 {sT2}, {sT}, {q*(32768-1024)}\nv_add_u32 v{VW[q]}, {sT2}, v{L16 if q & 2 else 23}")
    b(f"s_add_u32 {sM5}, {sW1}, 16384")
    b(f"s_lshl_b32 {sT}, {sB}, 5\ns_add_u32 {sT}, {sT}, {sH}\ns_lshl_b32 {sT}, {sT}, 17\ns_lshl_b32 {sT2}, {sH}, 8\ns_mul_i32 {sT3}, {sB}, 327680")
    b.raw("s_waitcnt lgkmcnt(0)")
    b(f"s_add_u32 s12, s6, {sT}\ns_addc_u32 s13, s7, 0")
    b(f"s_add_u32 s16, s8, {sT}\ns_addc_u32 s17, s9, 0")
    b(f"s_add_u32 s8, s10, {sT2}\ns_addc_u32 s9, s11, 0\ns_sub_u32 s10, 8388608, {sT2}\ns_mov_b32 s11, 0x20000")
    b(f"s_add_u32 s4, s4, {sT3}\ns_addc_u32 s5, s5, 0\ns_mov_b32 s6, 327680\ns_mov_b32 s7, 0x20000")
    def dma_lists(vw, sw, vb, sx, fl=""):
        return ([f"buffer_load_dwordx4 v{vw[q]}, {sw}, {sWO} offen offset:{q*1024} lds" for q in range(4)],
                [f"buffer_load_dwordx4 v{vb[q]}, {sx}, {sXO} offen offset:{q*1024} {fl} lds" for q in range(4)] +
                [f"buffer_load_dwordx4 v{vb[4]}, {sx}, {sXO} offen {fl} lds"])
    DW, DX = dma_lists(VW, SW, VB, SX)
    DW3, DX3 = dma_lists(VW3, SW3, VB3, SX3, H1L)
    def first_stage(st):
        base = ST0 + ((st+2)%3)*STSZ
        b(f"s_and_b32 {sT}, s58, 15\ns_add_u32 m0, {sW4}, {base+20480}\ns_lshl_b32 {sWO}, {sT}, 19")
        for x in DW: b(x)
        b(f"s_add_u32 m0, {sW4}, {base}\ns_lshl_b32 {sXO}, {sT}, 7")
        for x in DX[:4]: b(x)
    def first_stage_last(st):
        base = ST0 + ((st+2)%3)*STSZ
        b(f"s_add_u32 m0, {sM5}, {base}\ns_lshr_b64 s[58:59], s[58:59], 4")
        b(DX[4])
    if opt("sta", 0) == 1: stamp(b, 15)
    first_stage(0)
    if not opt("late5", 0): first_stage_last(0)
    if opt("sta", 0) == 2: stamp(b, 15)
    if STAMPS: b.raw("v_writelane_b32 v254, s94, 0"); b.raw("v_writelane_b32 v254, s95, 1")
    if opt("ctouch", 0):
        b.raw("s_getpc_b64 s[92:93]")
        b(f"s_lshr_b32 {sT}, s2, 3\ns_lshl_b32 {sT}, {sT}, 2\ns_add_u32 {sT}, {sT}, {sW}\ns_lshl_b32 {sT}, {sT}, 7\nv_mov_b32 v24, {sT}")
        b.raw(f"global_load_dword a{JUNK}, v24, s[92:93]")
    b(f"s_mov_b32 {sRB}, {ST0 + 2*STSZ}\ns_mov_b32 {sCnt}, 0\ns_mov_b32 {sDB}, {ST0 + STSZ}\ns_mov_b32 {sEv}, 0")
    b("v_and_b32 v26, 15, v1\nv_lshrrev_b32 v27, 1, v26\nv_xor_b32 v27, v27, v21\nv_lshlrev_b32 v27, 4, v27\nv_lshlrev_b32 v25, 7, v26\nv_add_u32 v27, v27, v25")
    b(f"s_mul_i32 {sT}, {sQH}, 10240\ns_add_u32 {sT}, {sT}, {sRB}")
    for u in range(2): b(f"v_xor_b32 v{XA[u]}, {u*64}, v27\nv_add_u32 v{XA[u]}, {sT}, v{XA[u]}")
    b("v_lshrrev_b32 v30, 2, v1\nv_and_b32 v31, 7, v30\nv_and_b32 v26, 3, v30")
    b(f"s_lshl_b32 {sT}, {sKH}, 2\nv_xor_b32 v27, {sT}, v31\nv_lshlrev_b32 v27, 5, v27")
    b("v_lshlrev_b32 v25, 3, v21\nv_add_u32 v28, v25, v26\nv_lshlrev_b32 v28, 8, v28")
    b("v_and_b32 v29, 3, v1\nv_lshlrev_b32 v29, 3, v29\nv_add3_u32 v28, v28, v27, v29")
    b(f"s_add_u32 {sT}, {sRB}, 20480")
    for d in range(4): b(f"v_xor_b32 v{WA[d]}, {d*32}, v28\nv_add_u32 v{WA[d]}, {sT}, v{WA[d]}")
    b("v_lshlrev_b32 v23, 8, v21\nv_add_u32 v22, v22, v23")
    b(f"s_lshl_b32 {sT}, {sQH}, 7\nv_xor_b32 v{KVW}, {sT}, v22\nv_add_u32 v{KVW}, {sW1}, v{KVW}")
    ROT = opt("rot", 3)
    if ROT == 0: b(f"s_mov_b32 {sRot}, 0")
    if ROT == 1: b(f"s_lshr_b32 {sRot}, s2, 3\ns_lshl_b32 {sT}, s2, 2\ns_add_u32 {sRot}, {sRot}, {sT}\ns_and_b32 {sRot}, {sRot}, 31\ns_lshl_b32 {sRot}, {sRot}, 12")
    if ROT == 2: b(f"s_and_b32 {sRot}, {sH}, 31\ns_lshl_b32 {sRot}, {sRot}, 12")
    if ROT == 3: b(f"s_mul_i32 {sRot}, s2, 0x9E3779B1\ns_lshr_b32 {sRot}, {sRot}, 27\ns_lshl_b32 {sRot}, {sRot}, 12")
    b(f"s_mov_b32 {sKVm}, {sW1}\ns_mov_b32 {sKVs}, 0\ns_mov_b32 {sKVx}, {sRot}")
    b("s_mov_b32 s14, 131072\ns_mov_b32 s15, 0x20000\ns_mov_b32 s18, 131072\ns_mov_b32 s19, 0x20000")
    b(f"s_mov_b32 s22, {268435456 if STAMPS else WSREC}\ns_mov_b32 s23, 0x20000")
    b("s_mov_b32 s24, s70\ns_mov_b32 s25, s71\ns_mov_b32 s26, 256\ns_mov_b32 s27, 0x20000")
    b(f"s_add_u32 s68, s68, {sT3}\ns_addc_u32 s69, s69, 0\ns_mov_b32 s70, 327680\ns_mov_b32 s71, 0x20000")
    b(f"s_lshl_b32 {sT}, {sB}, 2\ns_add_u32 {sT}, {sT}, {sKq}\ns_mul_i32 {sT}, {sT}, 327680\ns_add_u32 s72, s20, {sT}\ns_addc_u32 s73, s21, 0\ns_mov_b32 s74, 327680\ns_mov_b32 s75, 0x20000")
    b(f"s_lshl_b32 {sT}, {sKq}, 13\ns_add_u32 {sT}, {sT}, {sHl}\ns_lshl_b32 {sT}, {sT}, 8\ns_add_u32 s76, s76, {sT}\ns_addc_u32 s77, s77, 0\ns_sub_u32 s78, 8388608, {sT}\ns_mov_b32 s79, 0x20000")
    if opt("sta", 0) == 3: stamp(b, 15)
    SENT = 0; F2W = opt("f2w", 0); CLR = 2

    def zero(r):
        big = int(r.split(":")[1][:-1]) - int(r.split("[")[1].split(":")[0]) == 15
        return f"{'v_mfma_f32_32x32x16_bf16' if big else MF} {r}, {vr(ZR,4)}, {vr(ZR,4)}, 0"
    ZEROS = [zero(vr(OK+16*i, 16)) for i in range(5)] + [zero(ar(OS+16*i, 16)) for i in range(5)] + [zero(vr(LA, 16)), zero(vr(LA+16, 4))]
    def p2_addr():
        b("v_lshrrev_b32 v21, 4, v1\nv_and_b32 v22, 7, v1\nv_lshlrev_b32 v22, 1, v22\nv_xor_b32 v22, v22, v21\nv_lshlrev_b32 v22, 4, v22")
        b("v_and_b32 v23, 15, v1\nv_lshlrev_b32 v23, 8, v23\nv_add_u32 v22, v22, v23")
        b(f"s_lshl_b32 {sT}, {sKH}, 14")
        for d in range(4): b(f"v_xor_b32 v{KA[d]}, {d*64}, v22\nv_add_u32 v{KA[d]}, {sT}, v{KA[d]}")
        b(f"v_lshrrev_b32 v21, 2, v1\nv_and_b32 v22, 7, v21\ns_lshl_b32 {sT2}, {sKH}, 2\nv_xor_b32 v22, {sT2}, v22\nv_lshlrev_b32 v22, 5, v22")
        b("v_lshlrev_b32 v21, 8, v21\nv_and_b32 v23, 3, v1\nv_lshlrev_b32 v23, 3, v23\nv_add3_u32 v22, v22, v21, v23")
        b(f"s_add_u32 {sT}, {sT}, 4096")
        for j in range(8): b(f"v_xor_b32 v{VA[j]}, {j*32}, v22\nv_add_u32 v{VA[j]}, {sT}, v{VA[j]}")
        b(f"s_mov_b32 {sPB}, 0")
    def spread(i0, extra):
        code = b.L[i0:]; b.L = b.L[:i0]
        step = max(1, len(code) // (len(extra) + 1))
        for i, ln in enumerate(code):
            if i % step == 0 and 1 <= i // step <= len(extra): b.L.append(extra[i // step - 1])
            b.L.append(ln)
    def setup_a():
        for i in range(4): b(f"v_mov_b32 v{ZR+i}, 0")
        b(f"v_lshlrev_b32 v{L16}, 4, v1\nv_add_u32 v{L16B}, 4096, v{L16}")
        b(f"s_or_b32 {sT}, s2, {sW}\ns_cmp_lg_u32 {sT}, 0")
        b("s_cbranch_scc1 L_nonon")
        b(f"s_or_b32 s64, s64, 1\nv_mov_b32 v22, s64\nv_mov_b32 v23, s65")
        b(f"buffer_store_dwordx2 v[22:23], v{ZR}, {SD}, 0 offen sc0 sc1")
        b.label("L_nonon")
        i0 = len(b.L)
        p2_addr()
        b("v_mov_b32 v21, 0x3f803f80")
        if ROW1: b("v_and_b32 v22, 15, v1\nv_cmp_eq_u32 s[92:93], 0, v22\nv_cndmask_b32 v21, 0, v21, s[92:93]")
        for i in range(4): b(f"v_accvgpr_write_b32 a{ONES+i}, v21")
        b(f"s_mov_b32 {sPass}, 0\ns_mov_b32 {sCc}, {f32bits(math.log2(math.e) / math.sqrt(128.0))}")
        spread(i0, ZEROS[:6])
    def setup_b():
        i0 = len(b.L)
        b("v_lshrrev_b32 v21, 4, v1\nv_lshlrev_b32 v22, 1, v21\nv_and_b32 v23, 15, v1\nv_xor_b32 v22, v22, v23\nv_lshlrev_b32 v22, 4, v22")
        b(f"v_lshlrev_b32 v23, 11, v23\nv_lshlrev_b32 v{OUTV}, 3, v21\nv_add_u32 v{OUTV}, v{OUTV}, v23")
        b(f"v_lshlrev_b32 v23, 11, v21\nv_add_u32 v23, v23, v22\nv_xor_b32 v22, 128, v23\ns_lshl_b32 {sT}, {sW}, 15")
        for q in range(4):
            b(f"s_add_u32 {sT2}, {sT}, {q*(8192-1024)}\nv_add_u32 v{VW3[q]}, {sT2}, v{22 if q & 1 else 23}")
        b(f"v_add_u32 v{VB3[0]}, {sW4}, v{L16}\nv_add_u32 v{VB3[4]}, {sM5}, v{L16}")
        b(f"s_mul_i32 {sT}, {sQH}, 5120\ns_add_u32 {sT}, {sT}, {S3[0]}\nv_add_u32 v{XA3[0]}, {sT}, v{L16}\nv_add_u32 v{XA3[1]}, 10240, v{XA3[0]}")
        b(f"v_lshrrev_b32 v21, 2, v1\nv_and_b32 v22, 7, v21\ns_lshl_b32 {sT}, {sKq}, 1\ns_add_u32 {sT}, {sT}, {sKH}\nv_xor_b32 v22, {sT}, v22\nv_lshlrev_b32 v22, 5, v22")
        b("v_lshlrev_b32 v21, 8, v21\nv_and_b32 v23, 3, v1\nv_lshlrev_b32 v23, 3, v23\nv_add3_u32 v22, v22, v21, v23")
        for d in range(4): b(f"v_xor_b32 v{WA3[d]}, {d*64}, v22\nv_add_u32 v{WA3[d]}, {S3[0]+20480}, v{WA3[d]}")
        b(f"s_lshl_b32 {sOut}, {sT}, 5\ns_mul_i32 {sT2}, {sQH}, 163840\ns_add_u32 {sOut}, {sOut}, {sT2}\ns_lshl_b32 {sT3}, {sHl}, 8\ns_add_u32 {sOut}, {sOut}, {sT3}")
        b(f"s_mov_b32 s80, {order3(0,0)[0]}\ns_mov_b32 s81, {order3(0,0)[1]}")
        for bb in range(1, 8 if SIG3 == "rotp" else 4):
            b(f"s_cmp_eq_u32 {sB if SIG3 == 'rotp' else sBl}, {bb}\ns_cselect_b32 s80, {order3(bb & 3, bb >> 2)[0]}, s80\ns_cselect_b32 s81, {order3(bb & 3, bb >> 2)[1]}, s81")
        b(f"s_mul_i32 {sT}, {sHl}, 0x22222222\ns_xor_b32 s80, s80, {sT}\ns_xor_b32 s81, s81, {sT}")
        if TOUCH == 1:
            if THALF: b(f"s_lshr_b32 {sT}, s2, 3\ns_lshl_b32 {sT}, {sT}, 1\ns_and_b32 {sT2}, s2, 1\ns_add_u32 {sT}, {sT}, {sT2}\ns_lshl_b32 {sT}, {sT}, 15")
            else: b(f"s_lshr_b32 {sT}, s2, 3\ns_lshl_b32 {sT}, {sT}, 16")
            b(f"s_sub_u32 {sT}, {sT}, {sT3}\ns_lshl_b32 {sT2}, {sW}, {13 if THALF else 14}\ns_add_u32 {sT}, {sT}, {sT2}")
            b(f"v_cmp_gt_u32 s[92:93], {TL}, v1\nv_lshlrev_b32 v21, 7, v1\nv_add_u32 v21, {sT}, v21\nv_mov_b32 v22, 0x40000000\nv_cndmask_b32 v{TCH}, v22, v21, s[92:93]")
        if TOUCH == 7:
            b(f"s_and_b32 {sT}, s80, 15\ns_lshl_b32 {sT}, {sT}, 17\ns_lshl_b32 {sT2}, {sW}, 15\ns_add_u32 {sT}, {sT}, {sT2}")
            b(f"v_lshrrev_b32 v21, 1, v1\nv_lshlrev_b32 v21, 11, v21\nv_and_b32 v22, 1, v1\nv_lshlrev_b32 v22, 7, v22\nv_add3_u32 v21, v21, v22, {sT}")
            b(f"v_lshrrev_b32 v22, 5, v1\nv_lshlrev_b32 v22, 30, v22\nv_add_u32 v{TCH}, v21, v22")
        spread(i0, ZEROS[6:])
    def setup_c():
        b(f"s_mul_i32 {sT}, {sB}, 1310720\ns_lshl_b32 {sT2}, {sH}, 1\ns_add_u32 {sT2}, {sT2}, {sKH}\ns_mul_i32 {sT2}, {sT2}, 20480\ns_add_u32 {sO0}, {sT}, {sT2}")
        b(f"s_mul_i32 {sT2}, {sQH}, 5120\ns_add_u32 {sO0}, {sO0}, {sT2}\ns_add_u32 {sO1}, {sO0}, 10240")
        b(f"s_lshl_b32 {sT}, {sB}, 2\ns_add_u32 {sT}, {sT}, {sKq}\ns_mul_i32 {sT}, {sT}, {FS1}\ns_add_u32 {sF1}, {sT}, {FLG1}")
        b(f"s_lshl_b32 {sT}, {sB}, 3\ns_add_u32 {sT}, {sT}, {sHl}\ns_lshl_b32 {sF2}, {sT}, 2")
        if F2W: b(f"s_add_u32 {sF2}, {sF2}, {sW}")
        b(f"s_mul_i32 {sF2}, {sF2}, {FS2}\ns_add_u32 {sF2}, {sF2}, {FLG2}")
        b(f"s_mul_i32 {sT}, {sT}, {16*PSL}\ns_mul_i32 {sT2}, {sW}, {PSL//4}\ns_add_u32 {sT}, {sT}, {sT2}\ns_add_u32 {sT}, {sT}, {PART}")
        for d in (1, 2, 3):
            b(f"s_xor_b32 {sT2}, {sKq}, {d}\ns_lshl_b32 {sT3}, {sT2}, 2\ns_add_u32 {sT3}, {sT3}, {sKq}\ns_mul_i32 {sT3}, {sT3}, {PSL}\ns_add_u32 {sPs[d]}, {sT}, {sT3}")
            b(f"s_lshl_b32 {sT3}, {sKq}, 2\ns_add_u32 {sT3}, {sT3}, {sT2}\ns_mul_i32 {sT3}, {sT3}, {PSL}\ns_add_u32 {sPl[d]}, {sT}, {sT3}")
        b("v_lshrrev_b32 v21, 5, v1\nv_lshlrev_b32 v21, 8, v21\nv_and_b32 v22, 15, v1\nv_lshlrev_b32 v22, 4, v22\nv_lshrrev_b32 v23, 1, v1\nv_and_b32 v23, 8, v23\nv_add3_u32 v21, v21, v22, v23")
        b(f"s_mul_i32 {sT2}, {sQH}, 20480\ns_add_u32 {sT2}, {sT2}, {QEX}\nv_add_u32 v22, {sT2}, v{L16}\ns_lshl_b32 {sT3}, {sKH}, 11\ns_add_u32 {sT2}, {sT2}, {sT3}\nv_add_u32 v21, {sT2}, v21")
        b("v_and_b32 v23, 48, v1")

    if opt("early", 0):
        setup_a(); setup_b(); setup_c()
    first_stage(1); first_stage_last(1)
    for r in [L16B, TCH, ZR, OUTV] + VW3 + [VB3[0], VB3[4]]: b(f"v_mov_b32 v{r}, 0")
    b.vm = []
    b.raw("s_waitcnt vmcnt(9)")
    stamp(b, 1)

    def g_mfmas(buf, dord=(0, 1, 2, 3), c0=False):
        return [f"{MF} {vr(ACC+(d*5+q)*4,4)}, {ar(AF[buf]+4*d,4)}, {ar(BF[buf]+4*q,4)}, {'0' if c0 else vr(ACC+(d*5+q)*4,4)}" for d in dord for q in range(5)]
    def emit(x):
        if callable(x): x()
        else: b(x)
    def g_step(ph, dm, fill, first=False, more=()):
        trace(b)
        b("s_barrier")
        trace(b)
        vs, qs = ((1024, 2048), (4096, 1024))[ph == 3]
        xa, wa = (XA, WA) if ph == 1 else (XA3, WA3)
        more = list(more)
        for u in range(2):
            A = lambda d: [f"ds_read_b64_tr_b16 {ar(AF[u]+4*d+2*v,2)}, v{wa[d]} offset:{u*8192+v*vs}" for v in range(2)]
            rd = A(0) + [f"ds_read_b128 {ar(BF[u]+4*q,4)}, v{xa[u]} offset:{q*qs}" for q in range(5)] + A(1) + A(2) + A(3)
            mf = g_mfmas(u ^ 1, c0=first)
            if first and u == 0:
                for s in rd: b(s)
                rd = []
            for i in range(20):
                if not (first and u == 0): b(mf[i])
                if (u, i) in dm: b(dm[(u, i)])
                elif rd: b(rd.pop(0))
                elif more: b(more.pop(0))
                for s in fill.get((u, i), []): emit(s)
                if u == 0 and i == 18: need(b, [ar(AF[0], 8), ar(BF[0], 20)])
                if u == 1 and i == 4: need(b, [ar(AF[0], 16)])
            assert not rd
        return more
    va = lambda r: f"v_add_u32 v{r}, {sDelta}, v{r}"
    def ringf(ph):
        xa, wa = (XA, WA) if ph == 1 else (XA3, WA3)
        return {(0, 7): [f"s_add_u32 {sT2}, {sRB}, {STSZ}"], (0, 9): [f"s_cmp_ge_u32 {sT2}, {LDS}"], (0, 10): [f"s_cselect_b32 {sT2}, {ST0}, {sT2}"],
                (0, 11): [f"s_sub_u32 {sDelta}, {sT2}, {sRB}"], (0, 14 if not opt("dg", 0) else 12): [va(xa[0])],
                (1, 2): [va(wa[0])], (1, 7): [va(xa[1])], (1, 10): [va(wa[1])], (1, 12): [va(wa[2])], (1, 15): [va(wa[3])]}
    DG = [(0, 4), (0, 8), (0, 12), (0, 16), (0, 19), (1, 9), (1, 13), (1, 16), (1, 18)]
    if opt("dg", 0) == 1: DG = [(0, 13), (0, 14), (0, 15), (0, 16), (0, 19), (1, 9), (1, 13), (1, 16), (1, 18)]
    def loopf(ph):
        f = ringf(ph)
        sg = "s58" if ph == 1 else "s80"; sgp = "s[58:59]" if ph == 1 else "s[80:81]"
        f.update({(0, 0): [f"s_and_b32 {sT}, {sg}, 15"], (0, 1): [f"s_lshl_b32 {sWO}, {sT}, {19 if ph == 1 else 17}"],
                  (0, 2): [f"s_add_u32 {sMX}, {sDB}, {sW4}"], (0, 3): [f"s_add_u32 m0, {sMX}, 20480"],
                  (0, 5): [f"s_lshl_b32 {sXO}, {sT}, 7" if ph == 1 else f"s_mul_i32 {sXO}, {sT}, 20480"],
                  (0, 6): [f"s_lshr_b64 {sgp}, {sgp}, 4"], (0, 17): [f"s_mov_b32 m0, {sMX}"],
                  (1, 0): [f"s_add_u32 {sMW}, {sDB}, {sM5}"], (1, 1): [f"s_mov_b32 {sDB}, {sRB}"], (1, 3): [f"s_mov_b32 {sRB}, {sT2}"],
                  (1, 5): [f"s_add_u32 {sCnt}, {sCnt}, 1"], (1, 6): [f"s_cmp_lt_u32 {sCnt}, 14"], (1, 8): ["s_cselect_b64 vcc, -1, 0"],
                  (1, 17): [f"s_mov_b32 m0, {sMW}"] + ([f"s_bitcmp1_b32 {sMask}, {sCnt}"] if ph == 1 else [])})
        return f
    def first_fill(ph):
        f = loopf(ph); g = {}
        g[(0, 0)] = sum([f[(0, i)] for i in (0, 1, 2, 3, 5, 6, 7, 9, 10, 11, 14 if not opt('dg', 0) else 12)], []) + f[(1, 0)] + f[(1, 1)] + f[(1, 3)] + f[(1, 5)] + f[(1, 6)] + f[(1, 8)]
        return f, g
    f, g = first_fill(1)
    DG0 = [(1, 13), (1, 14), (1, 15), (1, 16)]
    g.update({(1, 2): f[(1, 2)], (1, 7): f[(1, 7)], (1, 9): f[(1, 10)], (1, 11): f[(1, 12)], (1, 17): f[(1, 15)] + f[(0, 17)]})
    g_step(1, dict(zip(DG0 + [(1, 18), (1, 19)], DW + DX[:2])), g, first=True)
    b(DX[2]); b(DX[3]); b(f"s_mov_b32 m0, {sMW}\ns_bitcmp1_b32 {sMask}, {sCnt}"); b(DX[4])
    b("s_branch L_p1end")
    b.raw(".p2align 3")
    b.label("L_p1")
    b.lg = []
    i0 = len(b.L)
    g_step(1, dict(zip(DG, DW + DX)), loopf(1))
    b.label("L_p1end")
    b("s_cbranch_scc1 L_aux")
    b.wait(lg=0, vm=9)
    b.label("L_auxback")
    b("s_cbranch_vccnz L_p1")
    print("gemm step estimate", estimate(b.L[i0:], verbose=VERB))
    b.vm = []
    stamp(b, 2)
    KLD = f"buffer_load_dwordx4 v{KVW}, {SK}, {sKVx} offen {KVFL} lds"
    VLD = f"buffer_load_dwordx4 v{KVW}, {SV}, {sKVx} offen {KVFL} lds"
    M0K = f"s_mov_b32 m0, {sKVm}"; M0V = f"s_add_u32 m0, m0, 4096"
    ADV = [f"s_add_u32 {sKVm}, {sKVm}, 8192", f"s_add_u32 {sKVs}, {sKVs}, 4096"]
    XR = f"s_xor_b32 {sKVx}, {sKVs}, {sRot}"
    def pair():
        b(M0K); b(ADV[0]); b(KLD); b(M0V); b(ADV[1]); b(VLD); b(XR)
    NS = opt("ns", 5)
    n14 = opt("n14", 2); n15 = opt("n15", 2); nq = opt("nq", 2); NPI = opt("npi", 2); IENT = 32 - 6 * NPI; npro = IENT - 6 - NS - n14 - n15 - nq
    assert n14 <= 4 and n15 <= 4 and 0 <= nq <= 3 and 0 <= npro <= 5 and n14 + n15 + nq <= 9
    pro1 = 1 if npro >= 1 and n14 + n15 + nq < 9 else 0; pro2 = (npro - pro1 + 1) // 2; pro3 = npro - pro1 - pro2
    def k_read(i): return f"ds_read_b128 {ar(KF+4*i,4)}, v{KA[i%4]} offset:{(i//4)*8192}"
    def v_read(j): return [f"ds_read_b64_tr_b16 {ar(VF+4*j+2*v,2)}, v{VA[j]} offset:{v*8192}" for v in range(2)]
    def kv_step(n, extra, more=()):
        slots = [((0, 3), (0, 4), (0, 6), (0, 8), (0, 12), (0, 13)), ((0, 15), (0, 16), (0, 17), (0, 19), (1, 0), (1, 1)),
                 ((1, 8), (1, 9), (1, 11), (1, 13), (1, 14), (1, 14)), ((1, 15), (1, 16), (1, 17), (1, 18), (1, 19), (1, 19))]
        dm = {}; f = {k: list(v) for k, v in extra.items()}
        for a, k, c, v, e, e2 in ([slots[0], slots[2]] if n == 2 else slots[:n]):
            f.setdefault(a, []).append(M0K); dm[k] = KLD; f.setdefault(c, []).append(M0V); dm[v] = VLD
            f.setdefault(e, []).append(ADV[0]); f.setdefault(c, []).append(ADV[1]); f.setdefault(e2, []).append(XR)
        return g_step(1, dm, f, more=more)
    kv_step(n14, ringf(1))
    b.wait(lg=0, vm=2*n14)
    if opt("sta", 0) == 21: stamp(b, 15)
    more = kv_step(n15, {}, [f"ds_read_b128 {ar(K0F+4*d,4)}, v23 offset:{d*64}" for d in range(4)] + [k_read(i) for i in range(8)])
    need(b, [ar(AF[1], 16), ar(BF[1], 20)])
    b("s_barrier")
    if opt("sta", 0) == 20: stamp(b, 15)
    i0 = len(b.L)
    def pack(t):
        a = ACC + t * 4
        for i in range(4): b(f"v_mul_f32 v{a+i}, {sCc}, v{a+i}")
        b(f"v_cvt_pk_bf16_f32 v{a}, v{a}, v{a+1}\nv_cvt_pk_bf16_f32 v{a+1}, v{a+2}, v{a+3}")
    def qwr(t):
        d, q = divmod(t, 5); a = ACC + t * 4
        b(f"ds_write_b64 v21, {vr(a,2)} offset:{q*4096+(d>>1)*1024+(d&1)*512}")
    mf = g_mfmas(1)
    for i in range(25):
        if i < 20: b(mf[i])
        if i == 0: b(f"buffer_load_dwordx2 {vr(NONV,2)}, v{ZR}, {SD}, 0 offen sc0 sc1")
        elif i < 4:
            for k in range(2):
                if more: b(more.pop(0))
        if i in ((4, 14) if nq == 2 else (4, 11, 18)[:nq]): pair()
        if 0 <= i - 5 < 20: qwr(i - 5)
        if 0 <= i - 4 < 20: pack(i - 4)
    assert not more
    b(f"s_add_u32 {sT}, {sW1}, {(IENT-NS)*8192}\nv_add_u32 v21, {sT}, v{L16}")
    b.wait(lg=0)
    b("s_barrier")
    print("q pack estimate", estimate(b.L[i0:]))
    stamp(b, 3)
    i0 = len(b.L)
    qr = [f"ds_read_b128 {ar(QF+(q*4+d)*4,4)}, v22 offset:{q*4096+d*1024}" for q in range(5) for d in range(4)]
    for i in range(10): b(qr.pop(0))
    if pro1: pair()
    sw = [f"ds_write_b128 v21, {ar(STG[i],4)} offset:{i*4096}" for i in range(2*NS)]
    neg = [f"v_sub_f32 v{NM+i}, 0, v{NM+i}" for i in range(20)]
    for t in range(20):
        q, d = divmod(t, 4)
        b(f"{MF} {vr(NM+4*q,4)}, {ar(K0F+4*d,4)}, {ar(QF+t*4,4)}, {'0' if d == 0 else vr(NM+4*q,4)}")
        if qr: b(qr.pop(0))
        if t == 13:
            need(b, [ar(QF, 80)])
            b("s_barrier")
        if t >= 14 and sw: b(sw.pop(0))
        if t >= 8: b(neg.pop(0))
    for i in range(pro2): pair()

    def col(n): return (0, 1, 0, 1, 2)[n % 5]
    def s_mfma(n, i):
        kt, d = i // 4, i % 4; q = n % 5
        dst = vr(SB[col(n)] + 4*kt, 4)
        return f"{MF} {dst}, {ar(KF+4*i,4)}, {ar(QF+(q*4+d)*4,4)}, {vr(NM+4*q,4) if d == 0 else dst}"
    def oreg(q, j): return vr(OK + (q*4+j)*4, 4) if j < 4 else ar(OS + (q*4+j-4)*4, 4)
    def p_mfma(n, j):
        q = n % 5
        if j == 8: return f"{MF} {vr(LA+4*q,4)}, {ar(ONES,4)}, {vr(PB[col(n)],4)}, {vr(LA+4*q,4)}"
        return f"{MF} {oreg(q,j)}, {ar(VF+4*j,4)}, {vr(PB[col(n)],4)}, {oreg(q,j)}"
    def v_exp(n, e): return f"v_exp_f32 v{SB[col(n)]+e}, v{SB[col(n)]+e}"
    def v_cvt(n, c): return f"v_cvt_pk_bf16_f32 v{PB[col(n)]+c}, v{SB[col(n)]+2*c}, v{SB[col(n)]+2*c+1}"
    NU = 40
    def slot(n, mem=None, sal=None, val=None):
        mem = mem or {}; sal = sal or {}; val = val or {}
        for p in range(17):
            if p < 16 and p % 2 == 0:
                if 0 <= n + 1 < NU: b(s_mfma(n + 1, p // 2))
            elif 0 <= n - 1 < NU: b(p_mfma(n - 1, p // 2))
            for s in mem.get(p, []): b(s)
            for s in sal.get(p, []): emit(s)
            if 0 <= n < NU:
                if p % 2 == 0 and p < 16: b(v_exp(n, p // 2))
                if p % 4 == 3: b(v_cvt(n, p // 4))
            for s in val.get(p, []): b(s)
    VR = [x for j in range(8) for x in v_read(j)]
    for i in range(8):
        b(s_mfma(0, i))
        if i >= 4: b(VR[i - 4])
        elif sw: b(sw.pop(0))
        b(neg.pop(0))
    assert not sw and not neg
    for i in range(pro3): pair()
    if CLR == 1:
        for i in range(4): b(f"v_mov_b32 v{60+i}, -1")
        b(f"v_lshrrev_b32 v64, 1, v{L16}")
        for x in clears(60): b(x)
    b.label("L_p2entry")
    for i in range(8):
        b(s_mfma(1, i))
        b(VR[4 + i])
        if i >= 2 and i % 2 == 0: b(v_cvt(0, i // 2 - 1))
        b(v_exp(0, i))
    b(f"s_add_u32 m0, {sW1}, {(IENT%20)*8192-(4096 if NPI == 2 else 0)}\ns_add_u32 {sEv}, {sW1}, {LDS}\ns_mov_b32 {sKVs}, {IENT*4096}\n{XR}\ns_mov_b32 {sKVm}, 0\ns_mov_b32 {sCnt}, 0")
    b(v_cvt(0, 3))
    print("p2 prologue estimate", estimate(b.L[i0:]))
    stamp(b, 4)
    nd = lambda *ops: (lambda: need(b, ops))
    def merge(*ds):
        out = {}
        for d in ds:
            for k, v in d.items(): out.setdefault(k, []).extend(v)
        return out
    def body():
        INC = "s_add_u32 m0, m0, 4096"
        def ex():
            b("s_cbranch_scc1 L_tail")
            body.exit_state = b.state()
        m1 = {}; s1 = {}; m2 = {}; s2 = {}; m3 = {}; s3 = {}; s5 = {}
        WR = [f"s_cmp_eq_u32 m0, {sEv}", f"s_cselect_b32 m0, {sW1}, m0"]
        if NPI == 2:
            G = [int(x) for x in opt("g4", "1.5.9.13").split(".")]
            m4 = {G[0]: [KLD], G[1]: [VLD], G[2]: [KLD], G[3]: [VLD]}
            s4 = merge({G[0]-1: [INC]}, {G[1]-1: [INC]}, {G[1]+1: [XR]}, {G[2]-1: [INC]}, {G[3]-1: [INC]}, {G[3]+1: [XR]}, {G[0]+1: [ADV[1]]}, {G[2]+1: [ADV[1]]})
            v1 = {9: [va(KA[0]), va(KA[1])], 11: [va(KA[2])], 13: [va(KA[3]), va(VA[0])], 15: [va(VA[1])], 16: [va(VA[2]), va(VA[3])]}
            v2 = {3: [va(VA[4])], 11: [va(VA[5])]}
        else:
            m1 = {13: [KLD]}; s5 = {2: [INC], 4: [WR[0]], 6: [WR[1]], 0: [XR]}
            m2 = {5: [VLD], 13: [KLD]}; s2 = {0: [ADV[1]], 2: [INC], 6: [XR], 8: [INC], 10: [WR[0]], 12: [WR[1]]}
            m3 = {16: [VLD]}; s3 = {10: [INC], 8: [ADV[1]]}
            m4 = {9: [KLD], 16: [VLD]}; s4 = {0: [XR], 2: [INC], 4: [WR[0]], 6: [WR[1]], 12: [INC], 10: [ADV[1]]}
            v1 = {9: [va(KA[0]), va(KA[1])], 11: [va(KA[2])], 15: [va(KA[3])], 16: [va(VA[0]), va(VA[1])]}
            v2 = {1: [va(VA[2]), va(VA[3])], 3: [va(VA[4])], 11: [va(VA[5])]}
        if TOUCH == 1:
            assert NPI == 2
            m2[5] = [f"buffer_load_dword a{JUNK}, v{TCH}, {SW3}, {sT} offen"]
            s2 = {0: [f"s_cmp_lt_u32 {sCnt}, {TIT}"], 2: [f"s_cselect_b32 {sT}, {sKVm}, 0x40000000"], 6: [f"s_add_u32 {sKVm}, {sKVm}, {TL*128}"]}
        slot(1, merge({1: [VR[12]], 3: [VR[13]], 5: [VR[14]], 7: [VR[15]]}, m1),
             {0: [nd(ar(VF, 12))], 6: [nd(ar(VF, 24))], 12: [nd(ar(VF, 28))], 14: [nd(ar(VF, 32))],
              2: [f"s_add_u32 {sT2}, {sPB}, 32768"], 4: [f"s_cmp_ge_u32 {sT2}, {LDS}"], 8: [f"s_cselect_b32 {sT2}, 0, {sT2}"],
              9: [f"s_sub_u32 {sDelta}, {sT2}, {sPB}"], 10: [f"s_mov_b32 {sPB}, {sT2}"], 15: [f"s_cmp_eq_u32 {sCnt}, 7"],
              16: [ex]}, v1)
        slot(2, m2, merge(s2, {14: [f"s_cmp_eq_u32 {sCnt}, 6"]}), v2)
        b("s_cbranch_scc1 L_p2late")
        trace(b)
        b.raw(f"s_waitcnt vmcnt({5 if TOUCH == 1 or NPI == 3 else 4})")
        b.label("L_p2bar")
        b("s_barrier")
        trace(b)
        slot(3, merge({2*i+1: [k_read(i)] for i in range(8)}, m3),
             merge({6: [f"s_add_u32 {sCnt}, {sCnt}, 1"], 16 if NPI == 2 else 14: [nd(ar(KF, 16 if NPI == 2 else 12))]}, s3), {1: [va(VA[6])], 5: [va(VA[7])]})
        slot(4, m4, merge(s4, {3: [nd(ar(KF, 32))]}))
        slot(5, {1: VR[0:2], 3: [VR[2]], 5: [VR[3]], 7: [VR[4]], 9: VR[5:7], 11: [VR[7]], 13: VR[8:10], 15: [VR[10]], 16: [VR[11]]}, s5)
        b("s_branch L_p2")
        b.vm = []
    b.vm = []
    save = b.L; b.L = []
    body(); st1 = b.state(); t1 = b.L
    b.L = []; body(); st2 = b.state(); t2 = b.L
    assert st1[0] == st2[0]
    if not STAMPS: assert t1 == t2, "loop not steady"
    print("p2 body estimate", estimate(t2, verbose=VERB))
    b.L = save
    b.raw(".p2align 3")
    b.label("L_p2")
    b.L += t2
    b.label("L_p2late")
    b.raw(f"s_waitcnt vmcnt({3 if NPI == 3 else 1 if TOUCH == 1 else 0})")
    WE = opt("we", 0)
    if WE:
        assert NPI == 2
        b(f"s_add_u32 m0, {sW4}, {S3[0]+20480}\ns_lshl_b32 {sWO}, {sHl}, 18")
        for x in DW3: b(x)
        b(f"s_add_u32 m0, {sW4}, {S3[1]+20480}\ns_add_u32 {sWO}, {sWO}, 0x20000")
        for x in DW3: b(x)
        b(f"s_mov_b32 m0, {sW1}")
    if TOUCH == 7: b(f"buffer_load_dword a{JUNK}, v{TCH}, {SW3}, 0 offen")
    b("s_branch L_p2bar")
    b.label("L_tail")
    b.set_state(body.exit_state)
    b.vm = []
    b(f"s_mul_i32 {sT}, {sW}, 20480\nv_add_u32 v21, {sT}, v{L16}")
    b.raw("s_waitcnt vmcnt(0)")
    b("s_barrier")
    stamp(b, 5)
    i0 = len(b.L)
    EB = 65536; EXL = 81920 - EB; EXF = 87040 - EB
    LW, LO, LP, FW, FR = 3, 4, 5, 6, 7
    wr = lambda q: [f"ds_write_b128 v21, {ar(OS+(q*4+j)*4,4)} offset:{(q*4+j)*1024}" for j in range(4)]
    lw = lambda q: (lambda: b(f"ds_write_b32 v{LW}, v{LA+4*q} offset:{EXL+q*256}", f"L{q}"))
    RB = [64, 80, 64, 80, 24]
    rd = lambda q: [f"ds_read_b128 {vr(RB[q]+4*j,4)}, v22 offset:{(q*4+j)*1024}" for j in range(4)]
    LR = NM
    lr = lambda q: [f"ds_read_b32 v{LR+2*q}, v{LO} offset:{EXL+q*256}", f"ds_read_b32 v{LR+2*q+1}, v{LP} offset:{EXL+q*256}"]
    linv = lambda q: [f"v_add_f32 v{LR+2*q}, v{LR+2*q}, v{LR+2*q+1}", f"v_rcp_f32 v{LR+2*q}, v{LR+2*q}"]
    def nval(q, pr, packed):
        o = OK + (q*4+2*pr)*4; r = RB[q] + 8*pr
        if packed:
            out = [f"v_pk_add_f32 {vr(o+i,2)}, {vr(o+i,2)}, {vr(r+i,2)}" for i in range(0, 8, 2)]
            out += [f"v_pk_mul_f32 {vr(o+i,2)}, {vr(o+i,2)}, {vr(LR+2*q,2)} op_sel_hi:[1,0]" for i in range(0, 8, 2)]
        else:
            out = [f"v_add_f32 v{o+i}, v{o+i}, v{r+i}" for i in range(8)] + [f"v_mul_f32 v{o+i}, v{LR+2*q}, v{o+i}" for i in range(8)]
        return out + [f"v_cvt_pk_bf16_f32 v{o+i}, v{o+2*i}, v{o+2*i+1}" for i in range(4)]
    def nmem(q, pr):
        o = OK + (q*4+2*pr)*4
        vv, off = (L16, q * 1024) if q < 4 else (L16B, 0)
        return [f"buffer_store_dwordx4 {vr(o,4)}, v{vv}, {SO}, {sO1 if pr else sO0} offen offset:{off} {H1S}",
                f"ds_write_b128 v2, {vr(o,4)} offset:{pr*10240+q*1024}"]
    def chunks(lst, pos):
        n = -(-len(lst) // len(pos))
        return {p: lst[i*n:(i+1)*n] for i, p in enumerate(pos)}
    def meet(q):
        b.wait_tag(lgtag=f"L{q}")
        b("s_barrier")
    w = wr(0)
    slot(37, merge({5 + 2*i: [w[i]] for i in range(4)}, {} if WE else {1: DW3[0:2], 3: DW3[2:4], 13: DW3[0:2], 16: DW3[2:4]}),
         {0: [] if WE else [f"s_add_u32 m0, {sW4}, {S3[0]+20480}", f"s_lshl_b32 {sWO}, {sHl}, 18"],
          11: [] if WE else [f"s_add_u32 m0, {sW4}, {S3[1]+20480}", f"s_add_u32 {sWO}, {sWO}, 0x20000"],
          2: [f"s_xor_b32 {sT2}, {sW}, 2"], 3: [f"s_mul_i32 {sT}, {sT2}, 20480"], 4: [f"s_mul_i32 {sT3}, {sW}, 1280"],
          6: [f"s_add_u32 {sT3}, {sT3}, {EB}"], 8: [f"s_mul_i32 {sT2}, {sT2}, 1280"], 10: [f"s_add_u32 {sT2}, {sT2}, {EB}"],
          12: [f"s_mul_i32 {sMX}, {sKH}, {STSZ}"], 14: [f"s_lshl_b32 {sMW}, {sW}, 2"], 15: [lw(0)]},
         {3: ["v_lshlrev_b32 v23, 2, v1"], 5: [f"v_add_u32 v22, {sT}, v{L16}"], 9: [f"v_add_u32 v{LW}, {sT3}, v23"]})
    b(f"v_and_b32 v23, 60, v23\nv_add_u32 v{LO}, {sT3}, v23\nv_add_u32 v{LP}, {sT2}, v23\nv_add_u32 v2, {sMX}, v{XA3[0]}")
    meet(0)
    if opt("sta", 0) == 10: stamp(b, 15)
    r = lr(0) + rd(0); w = wr(1)
    slot(38, merge({1: r[0:2], 3: r[2:4], 5: r[4:6], 7: [w[0]], 9: [w[1]], 11: [w[2]], 13: [w[3]], 16: nmem(0, 0)}),
         {15: [lw(1)], 0: [f"s_add_u32 {sMW}, {sMW}, {EB}"]},
         merge({7: linv(0)}, chunks(nval(0, 0, False), [9, 11, 13, 15]), {16: nval(0, 1, False)}, {1: [f"v_mov_b32 v{FW}, {sMW}"], 5: [f"v_mov_b32 v{FR}, {EB}"]}))
    meet(1)
    if opt("sta", 0) == 11: stamp(b, 15)
    r = lr(1) + rd(1); w = wr(2)
    slot(39, merge({1: r[0:2] + nmem(0, 1)[:1], 3: r[2:4], 5: r[4:6], 7: [w[0]], 9: [w[1]], 11: [w[2]], 13: [w[3]], 16: nmem(1, 0)}, {15: nmem(0, 1)[1:]}),
         {15: [lw(2)]},
         merge({7: linv(1)}, chunks(nval(1, 0, False), [9, 11, 13, 15]), {16: nval(1, 1, True)}))
    meet(2)
    if opt("sta", 0) == 12: stamp(b, 15)
    r = lr(2) + rd(2); w = wr(3)
    slot(40, merge({1: r[0:2] + nmem(1, 1)[:1], 3: r[2:4], 5: r[4:6], 7: [w[0]], 9: [w[1]], 11: [w[2]], 13: [w[3]]},
                   {15: nmem(1, 1)[1:]}),
         {15: [lw(3)]}, {13: linv(2)})
    for x in nval(2, 0, True): b(x)
    for x in wr(4): b(x)
    lw(4)()
    b(nmem(2, 0)[0])
    b(f"v_add_f32 v8, v{LA}, v{LA+4}\nv_add_f32 v9, v{LA+8}, v{LA+12}\nv_add_f32 v8, v8, v{LA+16}\nv_add_f32 v8, v8, v9")
    thr = f32bits(2.0 ** 40) if not FORCE_SLOW else f32bits(-1.0)
    b(f"v_cmp_nge_f32 vcc, {thr}, v8")
    b(f"s_cmp_lg_u64 vcc, 0\ns_cselect_b32 {sT}, 1, 0\nv_mov_b32 v8, {sT}")
    b(f"ds_write_b32 v{FW}, v8 offset:{EXF}", "L5")
    for x in nval(2, 1, True): b(x)
    b(nmem(2, 1)[0])
    meet(5)
    if opt("sta", 0) == 13: stamp(b, 15)
    b(f"ds_read_b128 {vr(NM+12,4)}, v{FR} offset:{EXF}")
    for x in lr(3) + lr(4) + rd(3) + rd(4): b(x)
    b(nmem(2, 0)[1]); b(nmem(2, 1)[1])
    b(f"v_or_b32 v{NM+12}, v{NM+12}, v{NM+13}\nv_or3_b32 v{NM+12}, v{NM+12}, v{NM+14}, v{NM+15}")
    for x in linv(3) + linv(4): b(x)
    b(f"v_readfirstlane_b32 {sT}, v{NM+12}")
    b(f"s_andn2_b32 {sT}, {sT}, {sPass}\ns_cmp_lg_u32 {sT}, 0")
    b("s_cbranch_scc1 L_slow")
    if not opt("sta", 0): stamp(b, 15)
    for q in (3, 4):
        for pr in range(2):
            for x in nval(q, pr, True) + nmem(q, pr): b(x)
    b(f"s_mov_b32 {sRB}, {S3[0]}\ns_mov_b32 {sCnt}, 0\ns_mov_b32 {sDB}, {ST0}")
    b(f"v_and_b32 v21, 7, v1\nv_lshlrev_b32 v21, 8, v21\nv_and_b32 v4, 3, v1\nv_mul_u32_u24 v4, {FS1 if SENT else 256}, v4\nv_lshrrev_b32 v5, 1, v{L16}")
    b.wait(lg=0, vm=10)
    print("tail estimate", estimate(b.L[i0:]))
    stamp(b, 6)
    b.vm = []
    if TRACE == 3: b.raw("s_mov_b32 s100, 0")
    f, g = first_fill(3)
    g[(0, 0)] = g[(0, 0)] + [f"s_lshr_b32 {sT3}, {sT}, 1"]
    g.update({(1, 2): f[(1, 2)], (1, 7): f[(1, 7)], (1, 9): f[(1, 10)], (1, 11): f[(1, 12)], (1, 13): f[(1, 15)]})
    g_step(3, dict(zip([(0, 1), (0, 2), (0, 3), (0, 4)], DW3)) if opt("wpos", 3) == 3 else {}, g, first=True)
    b(f"s_mov_b32 {sSpin}, 0")
    if opt("wpos", 3) == 3:
        b.raw("s_waitcnt vmcnt(4)")
        b("s_branch L_non1")
    b.label("L_non")
    b.wait(vm=0)
    b.label("L_non1")
    b(f"v_readfirstlane_b32 s64, v{NONV}\nv_readfirstlane_b32 s65, v{NONV+1}")
    b("s_cmp_lg_u32 s64, 0")
    b("s_cbranch_scc1 L_nonok")
    b(f"buffer_load_dwordx2 {vr(NONV,2)}, v{ZR}, {SD}, 0 offen sc0 sc1")
    b(f"s_add_u32 {sSpin}, {sSpin}, 1\ns_cmp_lt_u32 {sSpin}, {SPIN}")
    b("s_cbranch_scc1 L_non")
    b.label("L_nonok")
    b.vm = []
    stamp(b, 7)
    b("s_barrier")
    b(f"s_cmp_lg_u32 {sW}, 0")
    b("s_cbranch_scc1 L_pubd")
    b(f"s_lshl_b32 {sT}, {sHl}, 8\ns_add_u32 {sT}, {sT}, {sF1}")
    b("s_mov_b64 exec, 1")
    b(f"buffer_store_dwordx2 {vr(NONV,2)}, v{ZR}, {SO}, {sT} offen {H1F}")
    b("s_mov_b64 exec, -1")
    b.label("L_pubd")
    WPOS = opt("wpos", 3)
    if WPOS == 0:
        for x in DW3: b(x)
    PP = opt("pp", 1)
    def poll1(lab, back):
        b(f"s_mov_b32 {sSpin}, 0")
        regs = ["v[22:23]", "v[8:9]", "v[10:11]"][:PP]
        ld = lambda r: b.raw(f"buffer_load_dwordx2 {r}, v21, {SO}, {sF1} offen {H1L}")
        for r in regs[1:]:
            ld(r); b(f"s_sleep {opt('psl', 3)}")
        b.label(lab)
        for k in range(PP):
            ld(regs[k])
            b.raw(f"s_waitcnt vmcnt({PP-1})")
            r = regs[(k + 1) % PP]
            b.raw(f"v_cmp_eq_u64 s[92:93], {sNon}, {r}")
            b(f"s_mov_b32 {sRdy}, s92\ns_bitcmp1_b32 s92, {sT3}")
            b(f"s_cbranch_scc1 {back}")
            if SLEEP and PP == 1: b(f"s_sleep {SLEEP}")
        b(f"s_add_u32 {sSpin}, {sSpin}, 1\ns_cmp_lt_u32 {sSpin}, {SPIN}")
        b(f"s_cbranch_scc1 {lab}")
    poll1("L_poll0", "L_poll0ok")
    b.label("L_poll0ok")
    stamp(b, 8)
    if WPOS == 1:
        for x in DW3: b(x)
    b(f"s_mov_b32 m0, {sMX}")
    for x in DX3[:4]: b(x)
    b(f"s_mov_b32 m0, {sMW}")
    b(DX3[4])
    if WPOS == 2:
        b(f"s_add_u32 m0, {sMX}, 20480")
        for x in DW3: b(x)
    b.wait(lg=0)
    b.vm = []
    f3 = loopf(3)
    f3[(0, 13 if not opt("dg", 0) else 8)] = [f"s_lshr_b32 {sT3}, {sT}, 1"]
    def chk():
        b("s_cbranch_scc1 L_wait1")
        b.label("L_wait1back")
    f3[(0, 17)] = [f"s_mov_b32 m0, {sMX}", f"s_bitcmp0_b32 {sRdy}, {sT3}", chk]
    b.raw(".p2align 3")
    b.label("L_p3")
    g_step(3, dict(zip(DG, DW3 + DX3)), f3)
    b.wait(lg=0, vm=9)
    b("s_cbranch_vccnz L_p3")
    b.vm = []
    stamp(b, 9)
    PFL = f"buffer_load_dwordx2 v[6:7], v4, {SO}, {sF2} offen {HLD}"
    AFX = lambda g: (AF[1], 160, 0, 16, 32)[g]
    BFX = lambda g: (BF[1], 176, 48, 196, 216)[g]
    def mm(g, d, q): return f"{MF} {vr(ACC+(d*5+q)*4,4)}, {ar(AFX(g)+4*d,4)}, {ar(BFX(g)+4*q,4)}, {vr(ACC+(d*5+q)*4,4)}"
    rf = ringf(3)
    for st in range(2):
        trace(b); b("s_barrier"); trace(b)
        pre = ([rf[(0, 7)], rf[(0, 9)], rf[(0, 10)], rf[(0, 11)]] if st == 0 else [[f"s_lshl_b32 {sT}, {sKq}, 8"], [f"s_add_u32 {sT}, {sT}, {sF2}"]])
        for u in range(2):
            g = 1 + 2*st + u
            A = lambda d: [f"ds_read_b64_tr_b16 {ar(AFX(g)+4*d+2*v,2)}, v{WA3[d]} offset:{u*8192+v*4096}" for v in range(2)]
            rdl = A(1) + [f"ds_read_b128 {ar(BFX(g)+4*q,4)}, v{XA3[u]} offset:{q*1024}" for q in range(5)] + A(2) + A(3) + A(0)
            upd = {} if st == 1 else ({8: XA3[0]} if u == 0 else {2: WA3[1], 7: XA3[1], 9: WA3[2], 11: WA3[3], 13: WA3[0]})
            for i in range(15):
                b(mm(g - 1, 1 + i // 5, i % 5))
                if rdl: b(rdl.pop(0))
                if pre:
                    for x in pre.pop(0): b(x)
                if i in upd: b(va(upd[i]))
                if i == 14 and not (st == 0 and u == 1): need(b, [ar(AFX(g)+4, 4), ar(BFX(g), 20)])
                if i == 3 and g > 1: need(b, [ar(AFX(g - 1), 16)])
        if st == 0: b.wait(lg=0, vm=0)
    stamp(b, 10)
    mf = [mm(4, 1 + i // 5, i % 5) for i in range(15)] + [mm(g, 0, q) for g in range(5) for q in range(5)]
    PK = 104; RK = 144
    for i in range(40):
        b(mf[i])
        t = i - 6
        if 0 <= t < 15:
            d, q = 1 + t // 5, t % 5; pk = PK + (d-1)*12
            if q in (1, 3): b(f"buffer_store_dwordx4 {vr(pk+2*(q-1),4)}, v{L16}, {SO}, {sPs[d]} offen offset:{(q//2)*1024} {HST}")
            if q == 4: b(f"buffer_store_dwordx2 {vr(pk+8,2)}, v5, {SO}, {sPs[d]} offen offset:2048 {HST}")
        t = i - 5
        if 0 <= t < 15:
            d, q = 1 + t // 5, t % 5; pk = PK + (d-1)*12 + 2*q; a = ACC + (d*5+q)*4
            b(f"v_cvt_pk_bf16_f32 v{pk}, v{a}, v{a+1}\nv_cvt_pk_bf16_f32 v{pk+1}, v{a+2}, v{a+3}")
    if not SENT:
        b.wait(vm=0)
        stamp(b, 11)
        if not F2W:
            b("s_barrier")
            b(f"s_cmp_lg_u32 {sW}, 0")
            b("s_cbranch_scc1 L_wait2")
        b("s_mov_b64 exec, 1")
        b(f"buffer_store_dwordx2 {vr(NONV,2)}, v{ZR}, {SO}, {sT} offen {HST}")
        b("s_mov_b64 exec, -1")
        b.label("L_wait2")
        b(f"s_mov_b32 {sSpin}, 0")
        P2 = opt("pp2", 1)
        regs = ["v[6:7]", "v[8:9]", "v[10:11]"][:P2]
        ld = lambda r: b.raw(f"buffer_load_dwordx2 {r}, v4, {SO}, {sF2} offen {HLD}")
        for r in regs[1:]:
            ld(r); b(f"s_sleep {opt('psl', 3)}")
        b.label("L_poll3")
        for k in range(P2):
            ld(regs[k])
            b.raw(f"s_waitcnt vmcnt({P2-1})")
            b.raw(f"v_cmp_ne_u64 vcc, {sNon}, {regs[(k + 1) % P2]}")
            b("s_cbranch_vccz L_wait2back")
            if P2 == 1 and opt('sleep2', 4): b(f"s_sleep {opt('sleep2', 4)}")
        b(f"s_add_u32 {sSpin}, {sSpin}, 1\ns_cmp_lt_u32 {sSpin}, {SPIN}")
        b("s_cbranch_scc1 L_poll3")
        b.label("L_wait2back")
        stamp(b, 12)
    else: stamp(b, 11)
    b(f"s_mov_b32 {sSpin}, 0")
    if opt("pre2", 0): b(f"s_sleep {opt('pre2', 0)}")
    b.label("L_poll2")
    b.vm = []
    for h in range(3):
        for d in (1, 2, 3):
            pk = RK + (d-1)*12
            if h < 2: b(f"buffer_load_dwordx4 {vr(pk+4*h,4)}, v{L16}, {SO}, {sPl[d]} offen offset:{h*1024} {HLD}")
            else: b(f"buffer_load_dwordx2 {vr(pk+8,2)}, v5, {SO}, {sPl[d]} offen offset:2048 {HLD}")
    if SENT:
        rr = [RK + (d-1)*12 + 4*h + i for h in range(3) for d in (1, 2, 3) for i in range(4 if h < 2 else 2)]
        b(f"v_max_u32 v8, v{rr[0]}, v{rr[1]}")
        for i in range(2, 30, 2): b(f"v_max3_u32 v8, v8, v{rr[i]}, v{rr[i+1]}")
        b("v_cmp_eq_u32 vcc, -1, v8")
        b("s_cbranch_vccz L_poll2ok")
        if SLEEP: b(f"s_sleep {opt('sleep2', 4)}")
        b(f"s_add_u32 {sSpin}, {sSpin}, 1\ns_cmp_lt_u32 {sSpin}, {SPIN}")
        b("s_cbranch_scc1 L_poll2")
        b.label("L_poll2ok")
        stamp(b, 12)
    OFL = opt("ofl", "").replace("+", " ")
    for q in range(5):
        a = ACC + q * 4
        for d in (1, 2, 3):
            pk = RK + (d-1)*12 + 2*q
            for i in range(2):
                b(f"v_lshlrev_b32 v{a+20*d+2*i}, 16, v{pk+i}\nv_and_b32 v{a+20*d+2*i+1}, 0xffff0000, v{pk+i}")
        for i in (0, 2): b(f"v_pk_add_f32 {vr(a+i,2)}, {vr(a+i,2)}, {vr(a+20+i,2)}")
        for i in (0, 2): b(f"v_pk_add_f32 {vr(a+40+i,2)}, {vr(a+40+i,2)}, {vr(a+60+i,2)}")
        for i in (0, 2): b(f"v_pk_add_f32 {vr(a+i,2)}, {vr(a+i,2)}, {vr(a+40+i,2)}")
        b(f"v_cvt_pk_bf16_f32 v{a}, v{a}, v{a+1}\nv_cvt_pk_bf16_f32 v{a+1}, v{a+2}, v{a+3}")
        b(f"buffer_store_dwordx2 {vr(a,2)}, v{OUTV}, {SOUT}, {sOut} offen {OFL}")
        if q < 4: b(f"s_add_u32 {sOut}, {sOut}, 32768")
    if STAMPS:
        stamp(b, 13)
        b.wait(vm=0)
        stamp(b, 14)
        b(f"s_cmp_lg_u32 {sW}, 0")
        b("s_cbranch_scc1 L_nost")
        b(f"v_lshlrev_b32 v3, 2, v1\ns_lshl_b32 {sT}, s2, 7\ns_add_u32 {sT}, {sT}, {STAMP_OFF}\ns_mov_b32 exec_hi, 0")
        b(f"buffer_store_dword v254, v3, {SO}, {sT} offen")
        b("s_mov_b64 exec, -1")
        b.label("L_nost")
        b(f"v_lshlrev_b32 v3, 2, v1\ns_lshl_b32 {sT}, s2, 2\ns_add_u32 {sT}, {sT}, {sW}\ns_lshl_b32 {sT}, {sT}, 7\ns_add_u32 {sT}, {sT}, {STAMP_OFF + (2 << 20)}\ns_mov_b32 exec_hi, 0")
        b(f"buffer_store_dword v254, v3, {SO}, {sT} offen")
        b("s_mov_b64 exec, -1")
        if TRACE:
            b(f"s_lshl_b32 {sT}, s2, 2\ns_add_u32 {sT}, {sT}, {sW}\ns_lshl_b32 {sT}, {sT}, 9\ns_add_u32 {sT}, {sT}, {STAMP_OFF + (1 << 20)}")
            b(f"buffer_store_dword v0, v3, {SO}, {sT} offen")
    b.label("L_end")
    b("s_endpgm")

    b.label("L_wait1")
    b.lg = []; b.vm = []
    poll1("L_poll1", "L_wait1back")
    b("s_branch L_wait1back")
    if SENT:
        b.label("L_wait2")
        b(f"s_mov_b32 {sSpin}, 0")
        b.label("L_poll3")
        b(PFL)
        b.wait(vm=0)
        b(f"v_cmp_ne_u64 vcc, {sNon}, v[6:7]")
        b("s_cbranch_vccz L_wait2back")
        b(f"s_sleep 4\ns_add_u32 {sSpin}, {sSpin}, 1\ns_cmp_lt_u32 {sSpin}, {SPIN}")
        b("s_cbranch_scc1 L_poll3")
        b("s_branch L_wait2back")

    EV = [[int(x) for x in e.split(".")] for e in opt("ev", "3.0,3.1,0.4").split(",")]
    assert sum(e[0] for e in EV) == 6 and sum(e[1] for e in EV) == NS
    assert len(EV) == 3
    b.label("L_aux")
    rp = 0
    for k, (nd_, nr_) in enumerate(EV):
        b.lg = []; b.vm = []
        if k + 1 < len(EV):
            b(f"s_cmp_lg_u32 {sEv}, {k}")
            b(f"s_cbranch_scc1 L_aux{k+1}")
        for i in range(nd_): pair()
        for i in range(nr_):
            b(f"s_xor_b32 {sT}, {sRot}, {(IENT-NS+rp)*4096}")
            b(f"buffer_load_dwordx4 {ar(STG[2*rp],4)}, v{KVW}, {SK}, {sT} offen {KVFL}")
            b(f"buffer_load_dwordx4 {ar(STG[2*rp+1],4)}, v{KVW}, {SV}, {sT} offen {KVFL}")
            rp += 1
        b(f"s_add_u32 {sEv}, {sEv}, 1")
        if not opt("early", 0): (setup_a, setup_b, setup_c)[k]()
        b.wait(lg=0, vm=9 + 2*(nd_ + nr_))
        b("s_branch L_auxback")
        if k + 1 < len(EV): b.label(f"L_aux{k+1}")

    b.label("L_slow")
    b.wait(lg=0, vm=0)
    b("s_barrier")
    b(f"s_mov_b32 {sPass}, 1")
    b("v_and_b32 v21, 15, v1\nv_lshlrev_b32 v21, 8, v21\nv_lshrrev_b32 v22, 4, v1\nv_lshlrev_b32 v22, 4, v22\nv_add_u32 v21, v21, v22")
    for q in range(5): b(f"v_mov_b32 v{72+q}, 0xff800000")
    b(f"s_mov_b32 {sCnt}, 0")
    b.label("L_slowloop")
    for d in range(4): b(f"buffer_load_dwordx4 {vr(24+4*d,4)}, v21, {SK}, {sCnt} offen offset:{d*64}")
    b.wait(vm=0)
    for q in range(5):
        for d in range(4):
            b(f"{MF} {vr(80+4*q,4)}, {vr(24+4*d,4)}, {ar(QF+(q*4+d)*4,4)}, {'0' if d == 0 else vr(80+4*q,4)}")
    for q in range(5):
        b(f"v_max3_f32 v{72+q}, v{72+q}, v{80+4*q}, v{81+4*q}\nv_max3_f32 v{72+q}, v{72+q}, v{82+4*q}, v{83+4*q}")
    b(f"s_add_u32 {sCnt}, {sCnt}, 4096\ns_cmp_lt_u32 {sCnt}, 131072")
    b("s_cbranch_scc1 L_slowloop")
    for sw_ in ("v_permlane16_swap_b32", "v_permlane32_swap_b32"):
        for q in range(5): b(f"v_mov_b32 v{64+q}, v{72+q}")
        for q in range(5): b(f"{sw_} v{72+q}, v{64+q}")
        for q in range(5): b(f"v_max_f32 v{72+q}, v{72+q}, v{64+q}")
    for q in range(5):
        for i in range(4): b(f"v_sub_f32 v{NM+4*q+i}, 0, v{72+q}")
    p2_addr()
    b(f"s_mov_b32 {sKVm}, {sW1}\ns_mov_b32 {sKVs}, 0\ns_mov_b32 {sKVx}, {sRot}")
    for z in ZEROS: b(z)
    b.label("L_slowkv")
    pair()
    b(f"s_cmp_lt_u32 {sKVs}, {IENT * 4096}")
    b("s_cbranch_scc1 L_slowkv")
    b.wait(vm=0)
    b("s_barrier")
    for i in range(8): b(k_read(i))
    for i in range(4): b(VR[i])
    for i in range(8): b(s_mfma(0, i))
    b("s_nop 7")
    b("s_branch L_p2entry")
    return b.L

def gen_probe(spec):
    i, ri, j, rj = spec.split(",")
    b = B()
    b.raw(".p2align 8"); b.raw(".type mha_probe_kernel,@function"); b.label("mha_probe_kernel")
    b("s_cmp_ge_u32 s2, 1"); b("s_cbranch_scc1 L3_end")
    b.raw("s_load_dwordx2 s[4:5], s[0:1], 56"); b.raw("s_waitcnt lgkmcnt(0)")
    b("s_mov_b32 s6, 268435456\ns_mov_b32 s7, 0x20000")
    b(f"v_mul_u32_u24 v1, 512, v0\nv_lshrrev_b32 v4, 1, v0\nv_and_b32 v4, 3, v4\nv_lshlrev_b32 v4, 7, v4\nv_add_u32 v1, v1, v4\ns_mov_b32 s8, {STAMP_OFF}")
    b(f"buffer_load_dword v2, v1, s[4:7], s8 offen offset:{8*int(i)}")
    b(f"buffer_load_dword v3, v1, s[4:7], s8 offen offset:{8*int(j)}")
    b.wait(vm=0)
    b("v_readlane_b32 s9, v2, 0")
    b("s_sub_u32 s9, s9, 100000")
    b("v_subrev_u32 v2, s9, v2\nv_subrev_u32 v3, s9, v3")
    for v, r, acc in ((2, ri, "s10"), (3, rj, "s11")):
        b(f"s_mov_b32 {acc}, {'-1' if r == 'min' else '0'}")
        for l in range(64):
            b(f"v_readlane_b32 s12, v{v}, {l}")
            b(f"{dict(min='s_min_u32', max='s_max_u32', avg='s_add_u32')[r]} {acc}, {acc}, s12")
        if r == 'avg': b(f"s_lshr_b32 {acc}, {acc}, 3")
        else: b(f"s_lshl_b32 {acc}, {acc}, 3")
    if opt("abs", 0):
        b("s_lshr_b32 s10, s10, 3\ns_add_u32 s12, s10, s9\ns_mov_b32 s10, 10000")
        if opt("abs", 0) == 2:
            b(f"s_mov_b32 s8, {STAMP_OFF + (3 << 20)}\nv_mov_b32 v1, 0\nbuffer_load_dword v2, v1, s[4:7], s8 offen")
            b.wait(vm=0)
            b("v_readfirstlane_b32 s12, v2")
    else:
        b("s_sub_u32 s10, s11, s10\ns_min_u32 s10, s10, 100000")
        b.raw("s_memrealtime s[12:13]"); b.raw("s_waitcnt lgkmcnt(0)")
    b.label("L3_spin")
    b.raw("s_memrealtime s[14:15]"); b.raw("s_waitcnt lgkmcnt(0)")
    b("s_sub_u32 s14, s14, s12\ns_cmp_lt_u32 s14, s10")
    b("s_cbranch_scc1 L3_spin")
    b.label("L3_end")
    b("s_endpgm")
    if opt("abs", 0) == 2:
        b.raw(".p2align 8"); b.raw(".type mha_tiny_kernel,@function"); b.label("mha_tiny_kernel")
        b.raw("s_memrealtime s[8:9]")
        b.raw("s_load_dwordx2 s[4:5], s[0:1], 56"); b.raw("s_waitcnt lgkmcnt(0)")
        b("s_cmp_ge_u32 s2, 1"); b("s_cbranch_scc1 L4_end")
        b(f"s_mov_b32 s6, 268435456\ns_mov_b32 s7, 0x20000\ns_mov_b32 s10, {STAMP_OFF + (3 << 20)}\nv_mov_b32 v1, 0\nv_mov_b32 v2, s8")
        b("buffer_store_dword v2, v1, s[4:7], s10 offen")
        b.label("L4_end")
        b("s_endpgm")
    return b.L

def main():
    k, n = hazard_pass(gen(), verbose=VERB)
    head = ["; Fused MHA block, one workgroup per (batch, head): Q projection, attention, then a quarter (in k) of the output",
            "; projection; workgroups hand O and partial sums to each other through d_ws. Written by dev/gen13.py.",
            "; @launch grid=(256,1,1) block=(256,1,1) lds=163840",
            '.amdgcn_target "amdgcn-amd-amdhsa--gfx950"', ".text", f".globl {NAME}"]
    tail = ['.section .rodata,"a"', ".p2align 6", f".amdhsa_kernel {NAME}", "  .amdhsa_next_free_vgpr 512", "  .amdhsa_next_free_sgpr 102",
            "  .amdhsa_accum_offset 256", "  .amdhsa_group_segment_fixed_size 0", "  .amdhsa_kernarg_size 64", "  .amdhsa_user_sgpr_count 2",
            "  .amdhsa_user_sgpr_kernarg_segment_ptr 1", "  .amdhsa_system_sgpr_workgroup_id_x 1", ".end_amdhsa_kernel"]
    if "probe" in P:
        k3, _ = hazard_pass(gen_probe(P["probe"]))
        k = k + k3
        head[2] = f"; @launch kernel={NAME} grid=(256,1,1) block=(256,1,1) lds=163840\n; @launch kernel=mha_probe_kernel grid=(1,1,1) block=(64,1,1) lds=0"
        head.append(".globl mha_probe_kernel")
        if opt("abs", 0) == 2:
            head[2] = "; @launch kernel=mha_tiny_kernel grid=(1,1,1) block=(64,1,1) lds=0\n" + head[2]
            head.append(".globl mha_tiny_kernel")
            tail += [".p2align 6", ".amdhsa_kernel mha_tiny_kernel", "  .amdhsa_next_free_vgpr 8", "  .amdhsa_next_free_sgpr 32",
                "  .amdhsa_accum_offset 8", "  .amdhsa_group_segment_fixed_size 0", "  .amdhsa_kernarg_size 64", "  .amdhsa_user_sgpr_count 2",
                "  .amdhsa_user_sgpr_kernarg_segment_ptr 1", "  .amdhsa_system_sgpr_workgroup_id_x 1", ".end_amdhsa_kernel"]
        tail += [".p2align 6", ".amdhsa_kernel mha_probe_kernel", "  .amdhsa_next_free_vgpr 8", "  .amdhsa_next_free_sgpr 32",
            "  .amdhsa_accum_offset 8", "  .amdhsa_group_segment_fixed_size 0", "  .amdhsa_kernarg_size 64", "  .amdhsa_user_sgpr_count 2",
            "  .amdhsa_user_sgpr_kernarg_segment_ptr 1", "  .amdhsa_system_sgpr_workgroup_id_x 1", ".end_amdhsa_kernel"]
    fmt = lambda l: l if l.endswith(":") or l.startswith((".", ";")) else "    " + l
    open(sys.argv[1], "w").write("\n".join(head + [fmt(l) for l in k] + tail) + "\n")
    print(f"nops inserted: {n}; lines {len(k)}")
main()
```

```python
import sys, math, struct
from asmlib import B, hazard_pass, need, estimate

P = dict(kv.split("=") for kv in sys.argv[2:])
def opt(k, d): return type(d)(P.get(k, d))
STAMPS = opt("stamps", 0); TRACE = opt("trace", 0); VERB = bool(opt("v", 0))
KVFL = opt("kvfl", "nt").replace("+", " ")
HST = opt("hst", "sc0+sc1").replace("+", " ")
HLD = opt("hld", "sc0+sc1").replace("+", " ")
H1S = opt("h1s", "sc0+sc1").replace("+", " "); H1F = opt("h1f", "sc0+sc1").replace("+", " "); H1L = opt("h1l", "sc0+sc1").replace("+", " ")
FORCE_SLOW = opt("slow", 0)
SIG = opt("sig", "rot"); SIG3 = opt("sig3", "rot"); AUXT = opt("auxt", "lead")
TL = opt("tl", 11); TIT = opt("tit", 6); THALF = opt("thalf", 1)

TOUCH = opt("touch", 7)
SLEEP = opt("sleep", 4); ONEPOLL = opt("onepoll", 1); PBF = opt("pbf", 1)
NAME = "standalone__mha_block_cached__near_ridge_kernel"
STAMP_OFF = 200 << 20; NST = 16
TIMER = "s_memtime" if STAMPS == 2 else "s_memrealtime"
PART = 12 << 20; PSL = 10240 if opt('pbf', 1) else 20480; FLG1 = PART + 64 * 16 * PSL + (2 << 20); FS1 = opt('fs1', 8448); FS2 = opt('fs2', 4352); FLG2 = FLG1 + (1 << 20); WSREC = FLG2 + (2 << 20)

def vr(a, n=1, k='v'): return f"{k}{a}" if n == 1 else f"{k}[{a}:{a+n-1}]"
def ar(a, n=1): return vr(a, n, 'a')
def f32bits(x): return "0x%08x" % struct.unpack("<I", struct.pack("<f", x))[0]

def stamp(b, i):
    if STAMPS:
        b.wait(lg=0)
        b.raw(f"{TIMER} s[96:97]"); b.raw("s_waitcnt lgkmcnt(0)")
        b.raw(f"v_writelane_b32 v254, s96, {2*i}"); b.raw(f"v_writelane_b32 v254, s97, {2*i+1}")
def trace(b):
    if TRACE:
        b.wait(lg=0)
        for s in ("s_memtime s[96:97]", "s_waitcnt lgkmcnt(0)", "s_sub_u32 s96, s96, s98", "s_mov_b32 s97, m0", "s_mov_b32 m0, s100",
                  "v_writelane_b32 v0, s96, m0", "s_add_u32 s100, s100, 1", "s_min_u32 s100, s100, 63", "s_mov_b32 m0, s97"): b.raw(s)

def order(kind, j):
    if kind == "seq": return list(range(16)), [2, 6, 10]
    if kind == "xor": return [t ^ j for t in range(16)], [4, 8, 12]
    o = []; lead = []
    if kind == "rot":
        for t in range(16):
            if t == 0: o.append(j)
            elif t % 4 == j and t + 3 < 16: o.append(t + 3); lead.append(t)
            else: o.append([c for c in range(16) if c not in o and (c < 4 or (c - 3) < t) and not (c >= 4 and (c - 3) % 4 == j)][0])
    elif kind == "rot2":
        for t in range(16):
            if t == 0: o.append(0)
            elif t == 1: o.append(1 + j)
            elif (t - 1) % 4 == j and t + 3 < 16: o.append(t + 3); lead.append(t)
            else: o.append([c for c in range(16) if c not in o and (c < 5 or (c - 3) < t) and not (c >= 5 and (c - 4) % 4 == j)][0])
    assert sorted(o) == list(range(16)), o
    lead = [t for t in lead if t >= 2][:3]
    while len(lead) < 3: lead.append(lead[-1] + 2)
    return o, lead
def tables(kind):
    T = []
    for j in range(4):
        o, lead = order(kind, j)
        if AUXT.startswith("c"):
            off, base = int(AUXT[1]), int(AUXT[2])
            lead = [((j + off) % 4) + base + 4 * k + 2 for k in range(3)]
        elif AUXT != "lead": lead = [int(v) + 2 for v in AUXT.split(".")]
        val = sum(c << (4 * t) for t, c in enumerate(o))
        T.append((val & 0xffffffff, val >> 32, sum(1 << (t - 1) for t in lead)))
    return T

def order3(j, p):
    if SIG3 == "seq": o = list(range(14))
    elif SIG3.startswith("pair"):
        gap = int(SIG3[4:5] or 1)
        o = [2 * j, 2 * j + 1]
        lt = {8 + i: 2 + gap * i for i in range(6)}
        for t in range(2, 14):
            mine = [c for c in lt if lt[c] == t and (c - 8) % 4 == j]
            if mine: o.append(mine[0]); continue
            ok = [c for c in range(14) if c not in o and (c < 8 or (lt[c] < t - 1 and (c - 8) % 4 != j))]
            if not ok: ok = [c for c in range(14) if c not in o and not ((c - 8) % 4 == j and lt[c] > t)]
            ok.sort(key=lambda c: (c != (o[-1] ^ 1), c >= 8, (c - 2 * j) % 8 if c < 8 else c))
            o.append(ok[0])
        assert sorted(o) == list(range(14)), o
    else:
        o = []
        for t in range(14):
            if t == 0: o.append(j)
            elif t % 4 == j and t + 3 < 14: o.append(t + 3)
            else: o.append([c for c in range(14) if c not in o and (c < 4 or (c - 3) < t) and not (c >= 4 and (c - 3) % 4 == j)][0])
        assert sorted(o) == list(range(14))
        if p and SIG3 == "rotp": o = [(c + 7) % 14 for c in o]
    val = sum((c + 2) << (4 * t) for t, c in enumerate(o))
    return val & 0xffffffff, val >> 32
ROW1 = opt('row1', 1)
def gen():
    b = B()
    SX, SW, SK, SV, SO, SD = "s[4:7]", "s[8:11]", "s[12:15]", "s[16:19]", "s[20:23]", "s[24:27]"
    SOUT, SX3, SW3 = "s[68:71]", "s[72:75]", "s[76:79]"
    sW, sB, sH, sCnt = "s28", "s29", "s30", "s31"
    sRB, sDB, sDelta, sMask = "s32", "s33", "s34", "s35"
    sXO, sWO, sMX, sMW, sM5, sT, sT2, sT3 = "s36", "s37", "s38", "s39", "s40", "s41", "s42", "s43"
    sW4, sW1, sPB, sKVm, sKVs, sPass, sO0, sO1, sCls = "s44", "s45", "s46", "s47", "s48", "s49", "s50", "s51", "s52"
    sCc, sSpin, sQH, sKH = "s53", "s54", "s56", "s57"
    sBl, sHl, sKq, sEv = "s60", "s61", "s62", "s63"
    sKVx, sRot = "s55", "s66"
    sNon = "s[64:65]"
    sPs = [None, "s82", "s83", "s84"]; sPl = [None, "s85", "s86", "s87"]
    sF1, sOut, sRdy, sF2 = "s88", "s89", "s90", "s91"
    XA = [2, 3]; WA = [4, 5, 6, 7]; VB = [8, 9, 10, 11, 12]; VW = [13, 14, 15, 16]; KVW, NONV, L16 = 17, 18, 20
    ACC = 24; OK = 104; KA = [184, 185, 186, 187]; VA = list(range(188, 196)); NM = 196; LA = 216; L16B = 236; TCH = 237
    XA3 = [238, 239]; ZR = 240; WA3 = [244, 245, 246, 247]; VW3 = [248, 249, 250, 251]; VB3 = [252] * 4 + [253]; OUTV = 255
    SB = [24, 32, 40]; PB = [48, 52, 56]
    OS, QF, KF, VF, ONES, JUNK, K0F = 0, 80, 160, 192, 224, 228, 240
    STG = [VF + 4*i for i in range(8)] + [232, 236]
    AF = [80, 96]; BF = [112, 132]
    ST0 = 53248; STSZ = 36864; LDS = 163840; QEX = 122880
    S3 = [ST0 + STSZ, ST0 + 2*STSZ]
    FL = 256; SPIN = 200000
    MF = "v_mfma_f32_16x16x32_bf16"

    b.raw(".p2align 8")
    b.raw(f".type {NAME},@function")
    b.label(NAME)
    b("s_cmp_ge_u32 s2, 256")
    b("s_cbranch_scc1 L_end")
    b.track = False
    b("s_load_dwordx4 s[4:7], s[0:1], 0")
    b("s_load_dwordx4 s[8:11], s[0:1], 16")
    b("s_load_dwordx4 s[68:71], s[0:1], 40")
    b("s_load_dwordx2 s[76:77], s[0:1], 32")
    b("s_load_dwordx2 s[20:21], s[0:1], 56")
    b("s_memrealtime s[64:65]")
    if STAMPS: b.raw(f"{TIMER} s[94:95]")
    if TRACE: b.raw("s_memtime s[98:99]"); b.raw("s_mov_b32 s100, 0")
    b.track = True
    b("v_and_b32 v1, 63, v0\nv_lshrrev_b32 v21, 6, v0")
    b(f"s_and_b32 {sB}, s2, 1\ns_lshl_b32 {sB}, {sB}, 2\ns_lshr_b32 {sT}, s2, 3\ns_and_b32 {sBl}, {sT}, 3\ns_add_u32 {sB}, {sB}, {sBl}")
    b(f"v_readfirstlane_b32 {sW}, v21")
    b(f"s_lshr_b32 {sKq}, s2, 1\ns_and_b32 {sKq}, {sKq}, 3\ns_lshl_b32 {sH}, {sKq}, 3\ns_lshr_b32 {sHl}, {sT}, 2\ns_add_u32 {sH}, {sH}, {sHl}")
    b(f"s_add_u32 {sCls}, {sBl}, {sHl}\ns_and_b32 {sCls}, {sCls}, 3")
    T = tables(SIG)
    b(f"s_mov_b32 s58, {T[0][0]}\ns_mov_b32 s59, {T[0][1]}\ns_mov_b32 {sMask}, {T[0][2]}")
    for j in (1, 2, 3):
        b(f"s_cmp_eq_u32 {sCls}, {j}\ns_cselect_b32 s58, {T[j][0]}, s58\ns_cselect_b32 s59, {T[j][1]}, s59\ns_cselect_b32 {sMask}, {T[j][2]}, {sMask}")
    if opt("xoff", 1):
        if opt("xoff", 1) == 1: b(f"s_xor_b32 {sT2}, s2, {sKq}")
        if opt("xoff", 1) == 2: b(f"s_lshr_b32 {sT2}, s2, 7\ns_xor_b32 {sT2}, {sT2}, s2")
        if opt("xoff", 1) == 3: b(f"s_lshr_b32 {sT2}, s2, 7\ns_xor_b32 {sT2}, {sT2}, s2\ns_xor_b32 {sT2}, {sT2}, {sKq}")
        if opt("xoff", 1) == 4: b(f"s_lshr_b32 {sT2}, s2, 7")
        b(f"s_bitcmp1_b32 {sT2}, 0\ns_cselect_b32 {sT2}, 0x88888888, 0\ns_xor_b32 s58, s58, {sT2}\ns_xor_b32 s59, s59, {sT2}")
    b(f"s_lshl_b32 {sW4}, {sW}, 12\ns_lshl_b32 {sW1}, {sW}, 10\ns_and_b32 {sQH}, {sW}, 1\ns_lshr_b32 {sKH}, {sW}, 1")
    b("v_lshrrev_b32 v21, 4, v1")
    b("v_and_b32 v22, 7, v1\nv_xor_b32 v22, v22, v21\nv_lshlrev_b32 v22, 4, v22")
    b("v_lshrrev_b32 v23, 3, v1\nv_lshlrev_b32 v23, 11, v23\nv_add_u32 v22, v22, v23\nv_xor_b32 v23, 64, v22")
    b(f"s_lshl_b32 {sT}, {sW}, 16")
    for q in range(4):
        b(f"s_add_u32 {sT2}, {sT}, {q*(16384-1024)}\nv_add_u32 v{VB[q]}, {sT2}, v{23 if q & 1 else 22}")
    b(f"s_lshl_b32 {sT}, {sQH}, 6\nv_xor_b32 v{VB[4]}, {sT}, v22\ns_lshl_b32 {sT}, {sW}, 14\ns_add_u32 {sT}, {sT}, {16*16384}\nv_add_u32 v{VB[4]}, {sT}, v{VB[4]}")
    b("v_lshlrev_b32 v22, 1, v21\nv_and_b32 v23, 15, v1\nv_xor_b32 v22, v22, v23\nv_lshlrev_b32 v22, 4, v22")
    b(f"v_lshlrev_b32 v23, 13, v21\nv_add_u32 v23, v23, v22\nv_xor_b32 v{L16}, 128, v23")
    b(f"s_lshl_b32 {sT}, {sW}, 17")
    for q in range(4):
        b(f"s_add_u32 {sT2}, {sT}, {q*(32768-1024)}\nv_add_u32 v{VW[q]}, {sT2}, v{L16 if q & 2 else 23}")
    b(f"s_add_u32 {sM5}, {sW1}, 16384")
    b(f"s_lshl_b32 {sT}, {sB}, 5\ns_add_u32 {sT}, {sT}, {sH}\ns_lshl_b32 {sT}, {sT}, 17\ns_lshl_b32 {sT2}, {sH}, 8\ns_mul_i32 {sT3}, {sB}, 327680")
    b.raw("s_waitcnt lgkmcnt(0)")
    b(f"s_add_u32 s12, s6, {sT}\ns_addc_u32 s13, s7, 0")
    b(f"s_add_u32 s16, s8, {sT}\ns_addc_u32 s17, s9, 0")
    b(f"s_add_u32 s8, s10, {sT2}\ns_addc_u32 s9, s11, 0\ns_sub_u32 s10, 8388608, {sT2}\ns_mov_b32 s11, 0x20000")
    b(f"s_add_u32 s4, s4, {sT3}\ns_addc_u32 s5, s5, 0\ns_mov_b32 s6, 327680\ns_mov_b32 s7, 0x20000")
    def dma_lists(vw, sw, vb, sx, fl=""):
        return ([f"buffer_load_dwordx4 v{vw[q]}, {sw}, {sWO} offen offset:{q*1024} lds" for q in range(4)],
                [f"buffer_load_dwordx4 v{vb[q]}, {sx}, {sXO} offen offset:{q*1024} {fl} lds" for q in range(4)] +
                [f"buffer_load_dwordx4 v{vb[4]}, {sx}, {sXO} offen {fl} lds"])
    DW, DX = dma_lists(VW, SW, VB, SX)
    DW3, DX3 = dma_lists(VW3, SW3, VB3, SX3, H1L)
    def first_stage(st):
        base = ST0 + ((st+2)%3)*STSZ
        b(f"s_and_b32 {sT}, s58, 15\ns_add_u32 m0, {sW4}, {base+20480}\ns_lshl_b32 {sWO}, {sT}, 19")
        for x in DW: b(x)
        b(f"s_add_u32 m0, {sW4}, {base}\ns_lshl_b32 {sXO}, {sT}, 7")
        for x in DX[:4]: b(x)
    def first_stage_last(st):
        base = ST0 + ((st+2)%3)*STSZ
        b(f"s_add_u32 m0, {sM5}, {base}\ns_lshr_b64 s[58:59], s[58:59], 4")
        b(DX[4])
    if opt("sta", 0) == 1: stamp(b, 15)
    first_stage(0)
    if not opt("late5", 0): first_stage_last(0)
    if opt("sta", 0) == 2: stamp(b, 15)
    if STAMPS: b.raw("v_writelane_b32 v254, s94, 0"); b.raw("v_writelane_b32 v254, s95, 1")
    if opt("ctouch", 0):
        b.raw("s_getpc_b64 s[92:93]")
        b(f"s_lshr_b32 {sT}, s2, 3\ns_lshl_b32 {sT}, {sT}, 2\ns_add_u32 {sT}, {sT}, {sW}\ns_lshl_b32 {sT}, {sT}, 7\nv_mov_b32 v24, {sT}")
        b.raw(f"global_load_dword a{JUNK}, v24, s[92:93]")
    b(f"s_mov_b32 {sRB}, {ST0 + 2*STSZ}\ns_mov_b32 {sCnt}, 0\ns_mov_b32 {sDB}, {ST0 + STSZ}\ns_mov_b32 {sEv}, 0")
    b("v_and_b32 v26, 15, v1\nv_lshrrev_b32 v27, 1, v26\nv_xor_b32 v27, v27, v21\nv_lshlrev_b32 v27, 4, v27\nv_lshlrev_b32 v25, 7, v26\nv_add_u32 v27, v27, v25")
    b(f"s_mul_i32 {sT}, {sQH}, 10240\ns_add_u32 {sT}, {sT}, {sRB}")
    for u in range(2): b(f"v_xor_b32 v{XA[u]}, {u*64}, v27\nv_add_u32 v{XA[u]}, {sT}, v{XA[u]}")
    b("v_lshrrev_b32 v30, 2, v1\nv_and_b32 v31, 7, v30\nv_and_b32 v26, 3, v30")
    b(f"s_lshl_b32 {sT}, {sKH}, 2\nv_xor_b32 v27, {sT}, v31\nv_lshlrev_b32 v27, 5, v27")
    b("v_lshlrev_b32 v25, 3, v21\nv_add_u32 v28, v25, v26\nv_lshlrev_b32 v28, 8, v28")
    b("v_and_b32 v29, 3, v1\nv_lshlrev_b32 v29, 3, v29\nv_add3_u32 v28, v28, v27, v29")
    b(f"s_add_u32 {sT}, {sRB}, 20480")
    for d in range(4): b(f"v_xor_b32 v{WA[d]}, {d*32}, v28\nv_add_u32 v{WA[d]}, {sT}, v{WA[d]}")
    b("v_lshlrev_b32 v23, 8, v21\nv_add_u32 v22, v22, v23")
    b(f"s_lshl_b32 {sT}, {sQH}, 7\nv_xor_b32 v{KVW}, {sT}, v22\nv_add_u32 v{KVW}, {sW1}, v{KVW}")
    ROT = opt("rot", 3)
    if ROT == 0: b(f"s_mov_b32 {sRot}, 0")
    if ROT == 1: b(f"s_lshr_b32 {sRot}, s2, 3\ns_lshl_b32 {sT}, s2, 2\ns_add_u32 {sRot}, {sRot}, {sT}\ns_and_b32 {sRot}, {sRot}, 31\ns_lshl_b32 {sRot}, {sRot}, 12")
    if ROT == 2: b(f"s_and_b32 {sRot}, {sH}, 31\ns_lshl_b32 {sRot}, {sRot}, 12")
    if ROT == 3: b(f"s_mul_i32 {sRot}, s2, 0x9E3779B1\ns_lshr_b32 {sRot}, {sRot}, 27\ns_lshl_b32 {sRot}, {sRot}, 12")
    b(f"s_mov_b32 {sKVm}, {sW1}\ns_mov_b32 {sKVs}, 0\ns_mov_b32 {sKVx}, {sRot}")
    b("s_mov_b32 s14, 131072\ns_mov_b32 s15, 0x20000\ns_mov_b32 s18, 131072\ns_mov_b32 s19, 0x20000")
    b(f"s_mov_b32 s22, {268435456 if STAMPS else WSREC}\ns_mov_b32 s23, 0x20000")
    b("s_mov_b32 s24, s70\ns_mov_b32 s25, s71\ns_mov_b32 s26, 256\ns_mov_b32 s27, 0x20000")
    b(f"s_add_u32 s68, s68, {sT3}\ns_addc_u32 s69, s69, 0\ns_mov_b32 s70, 327680\ns_mov_b32 s71, 0x20000")
    b(f"s_lshl_b32 {sT}, {sB}, 2\ns_add_u32 {sT}, {sT}, {sKq}\ns_mul_i32 {sT}, {sT}, 327680\ns_add_u32 s72, s20, {sT}\ns_addc_u32 s73, s21, 0\ns_mov_b32 s74, 327680\ns_mov_b32 s75, 0x20000")
    b(f"s_lshl_b32 {sT}, {sKq}, 13\ns_add_u32 {sT}, {sT}, {sHl}\ns_lshl_b32 {sT}, {sT}, 8\ns_add_u32 s76, s76, {sT}\ns_addc_u32 s77, s77, 0\ns_sub_u32 s78, 8388608, {sT}\ns_mov_b32 s79, 0x20000")
    if opt("sta", 0) == 3: stamp(b, 15)
    SENT = 0; F2W = opt("f2w", 0); CLR = 2

    def zero(r):
        big = int(r.split(":")[1][:-1]) - int(r.split("[")[1].split(":")[0]) == 15
        return f"{'v_mfma_f32_32x32x16_bf16' if big else MF} {r}, {vr(ZR,4)}, {vr(ZR,4)}, 0"
    ZEROS = [zero(vr(OK+16*i, 16)) for i in range(5)] + [zero(ar(OS+16*i, 16)) for i in range(5)] + [zero(vr(LA, 16)), zero(vr(LA+16, 4))]
    def p2_addr():
        b("v_lshrrev_b32 v21, 4, v1\nv_and_b32 v22, 7, v1\nv_lshlrev_b32 v22, 1, v22\nv_xor_b32 v22, v22, v21\nv_lshlrev_b32 v22, 4, v22")
        b("v_and_b32 v23, 15, v1\nv_lshlrev_b32 v23, 8, v23\nv_add_u32 v22, v22, v23")
        b(f"s_lshl_b32 {sT}, {sKH}, 14")
        for d in range(4): b(f"v_xor_b32 v{KA[d]}, {d*64}, v22\nv_add_u32 v{KA[d]}, {sT}, v{KA[d]}")
        b(f"v_lshrrev_b32 v21, 2, v1\nv_and_b32 v22, 7, v21\ns_lshl_b32 {sT2}, {sKH}, 2\nv_xor_b32 v22, {sT2}, v22\nv_lshlrev_b32 v22, 5, v22")
        b("v_lshlrev_b32 v21, 8, v21\nv_and_b32 v23, 3, v1\nv_lshlrev_b32 v23, 3, v23\nv_add3_u32 v22, v22, v21, v23")
        b(f"s_add_u32 {sT}, {sT}, 4096")
        for j in range(8): b(f"v_xor_b32 v{VA[j]}, {j*32}, v22\nv_add_u32 v{VA[j]}, {sT}, v{VA[j]}")
        b(f"s_mov_b32 {sPB}, 0")
    def spread(i0, extra):
        code = b.L[i0:]; b.L = b.L[:i0]
        step = max(1, len(code) // (len(extra) + 1))
        for i, ln in enumerate(code):
            if i % step == 0 and 1 <= i // step <= len(extra): b.L.append(extra[i // step - 1])
            b.L.append(ln)
    def setup_a():
        for i in range(4): b(f"v_mov_b32 v{ZR+i}, 0")
        b(f"v_lshlrev_b32 v{L16}, 4, v1\nv_add_u32 v{L16B}, 4096, v{L16}")
        b(f"s_or_b32 {sT}, s2, {sW}\ns_cmp_lg_u32 {sT}, 0")
        b("s_cbranch_scc1 L_nonon")
        b(f"s_or_b32 s64, s64, 1\nv_mov_b32 v22, s64\nv_mov_b32 v23, s65")
        b(f"buffer_store_dwordx2 v[22:23], v{ZR}, {SD}, 0 offen sc0 sc1")
        b.label("L_nonon")
        i0 = len(b.L)
        p2_addr()
        b("v_mov_b32 v21, 0x3f803f80")
        if ROW1: b("v_and_b32 v22, 15, v1\nv_cmp_eq_u32 s[92:93], 0, v22\nv_cndmask_b32 v21, 0, v21, s[92:93]")
        for i in range(4): b(f"v_accvgpr_write_b32 a{ONES+i}, v21")
        b(f"s_mov_b32 {sPass}, 0\ns_mov_b32 {sCc}, {f32bits(math.log2(math.e) / math.sqrt(128.0))}")
        spread(i0, ZEROS[:6])
    def setup_b():
        i0 = len(b.L)
        b("v_lshrrev_b32 v21, 4, v1\nv_lshlrev_b32 v22, 1, v21\nv_and_b32 v23, 15, v1\nv_xor_b32 v22, v22, v23\nv_lshlrev_b32 v22, 4, v22")
        b(f"v_lshlrev_b32 v23, 11, v23\nv_lshlrev_b32 v{OUTV}, 3, v21\nv_add_u32 v{OUTV}, v{OUTV}, v23")
        b(f"v_lshlrev_b32 v23, 11, v21\nv_add_u32 v23, v23, v22\nv_xor_b32 v22, 128, v23\ns_lshl_b32 {sT}, {sW}, 15")
        for q in range(4):
            b(f"s_add_u32 {sT2}, {sT}, {q*(8192-1024)}\nv_add_u32 v{VW3[q]}, {sT2}, v{22 if q & 1 else 23}")
        b(f"v_add_u32 v{VB3[0]}, {sW4}, v{L16}\nv_add_u32 v{VB3[4]}, {sM5}, v{L16}")
        b(f"s_mul_i32 {sT}, {sQH}, 5120\ns_add_u32 {sT}, {sT}, {S3[0]}\nv_add_u32 v{XA3[0]}, {sT}, v{L16}\nv_add_u32 v{XA3[1]}, 10240, v{XA3[0]}")
        b(f"v_lshrrev_b32 v21, 2, v1\nv_and_b32 v22, 7, v21\ns_lshl_b32 {sT}, {sKq}, 1\ns_add_u32 {sT}, {sT}, {sKH}\nv_xor_b32 v22, {sT}, v22\nv_lshlrev_b32 v22, 5, v22")
        b("v_lshlrev_b32 v21, 8, v21\nv_and_b32 v23, 3, v1\nv_lshlrev_b32 v23, 3, v23\nv_add3_u32 v22, v22, v21, v23")
        for d in range(4): b(f"v_xor_b32 v{WA3[d]}, {d*64}, v22\nv_add_u32 v{WA3[d]}, {S3[0]+20480}, v{WA3[d]}")
        b(f"s_lshl_b32 {sOut}, {sT}, 5\ns_mul_i32 {sT2}, {sQH}, 163840\ns_add_u32 {sOut}, {sOut}, {sT2}\ns_lshl_b32 {sT3}, {sHl}, 8\ns_add_u32 {sOut}, {sOut}, {sT3}")
        b(f"s_mov_b32 s80, {order3(0,0)[0]}\ns_mov_b32 s81, {order3(0,0)[1]}")
        for bb in range(1, 8 if SIG3 == "rotp" else 4):
            b(f"s_cmp_eq_u32 {sB if SIG3 == 'rotp' else sBl}, {bb}\ns_cselect_b32 s80, {order3(bb & 3, bb >> 2)[0]}, s80\ns_cselect_b32 s81, {order3(bb & 3, bb >> 2)[1]}, s81")
        b(f"s_mul_i32 {sT}, {sHl}, 0x22222222\ns_xor_b32 s80, s80, {sT}\ns_xor_b32 s81, s81, {sT}")
        if TOUCH == 1:
            if THALF: b(f"s_lshr_b32 {sT}, s2, 3\ns_lshl_b32 {sT}, {sT}, 1\ns_and_b32 {sT2}, s2, 1\ns_add_u32 {sT}, {sT}, {sT2}\ns_lshl_b32 {sT}, {sT}, 15")
            else: b(f"s_lshr_b32 {sT}, s2, 3\ns_lshl_b32 {sT}, {sT}, 16")
            b(f"s_sub_u32 {sT}, {sT}, {sT3}\ns_lshl_b32 {sT2}, {sW}, {13 if THALF else 14}\ns_add_u32 {sT}, {sT}, {sT2}")
            b(f"v_cmp_gt_u32 s[92:93], {TL}, v1\nv_lshlrev_b32 v21, 7, v1\nv_add_u32 v21, {sT}, v21\nv_mov_b32 v22, 0x40000000\nv_cndmask_b32 v{TCH}, v22, v21, s[92:93]")
        if TOUCH == 8:
            b(f"s_and_b32 {sT}, s80, 14\ns_lshl_b32 {sT}, {sT}, 17\ns_lshl_b32 {sT2}, {sW}, 16\ns_add_u32 {sT}, {sT}, {sT2}")
            b(f"v_lshrrev_b32 v21, 1, v1\nv_lshlrev_b32 v21, 11, v21\nv_and_b32 v22, 1, v1\nv_lshlrev_b32 v22, 7, v22\nv_add3_u32 v{TCH}, v21, v22, {sT}")
        if TOUCH == 7:
            b(f"s_and_b32 {sT}, s80, 15\ns_lshl_b32 {sT}, {sT}, 17\ns_lshl_b32 {sT2}, {sW}, 15\ns_add_u32 {sT}, {sT}, {sT2}")
            b(f"v_lshrrev_b32 v21, 1, v1\nv_lshlrev_b32 v21, 11, v21\nv_and_b32 v22, 1, v1\nv_lshlrev_b32 v22, 7, v22\nv_add3_u32 v21, v21, v22, {sT}")
            b(f"v_lshrrev_b32 v22, 5, v1\nv_lshlrev_b32 v22, 30, v22\nv_add_u32 v{TCH}, v21, v22")
        spread(i0, ZEROS[6:])
    def setup_c():
        b(f"s_mul_i32 {sT}, {sB}, 1310720\ns_lshl_b32 {sT2}, {sH}, 1\ns_add_u32 {sT2}, {sT2}, {sKH}\ns_mul_i32 {sT2}, {sT2}, 20480\ns_add_u32 {sO0}, {sT}, {sT2}")
        b(f"s_mul_i32 {sT2}, {sQH}, 5120\ns_add_u32 {sO0}, {sO0}, {sT2}\ns_add_u32 {sO1}, {sO0}, 10240")
        b(f"s_lshl_b32 {sT}, {sB}, 2\ns_add_u32 {sT}, {sT}, {sKq}\ns_mul_i32 {sT}, {sT}, {FS1}\ns_add_u32 {sF1}, {sT}, {FLG1}")
        b(f"s_lshl_b32 {sT}, {sB}, 3\ns_add_u32 {sT}, {sT}, {sHl}\ns_lshl_b32 {sF2}, {sT}, 2")
        if F2W: b(f"s_add_u32 {sF2}, {sF2}, {sW}")
        b(f"s_mul_i32 {sF2}, {sF2}, {FS2}\ns_add_u32 {sF2}, {sF2}, {FLG2}")
        b(f"s_mul_i32 {sT}, {sT}, {16*PSL}\ns_mul_i32 {sT2}, {sW}, {PSL//4}\ns_add_u32 {sT}, {sT}, {sT2}\ns_add_u32 {sT}, {sT}, {PART}")
        for d in (1, 2, 3):
            b(f"s_xor_b32 {sT2}, {sKq}, {d}\ns_lshl_b32 {sT3}, {sT2}, 2\ns_add_u32 {sT3}, {sT3}, {sKq}\ns_mul_i32 {sT3}, {sT3}, {PSL}\ns_add_u32 {sPs[d]}, {sT}, {sT3}")
            b(f"s_lshl_b32 {sT3}, {sKq}, 2\ns_add_u32 {sT3}, {sT3}, {sT2}\ns_mul_i32 {sT3}, {sT3}, {PSL}\ns_add_u32 {sPl[d]}, {sT}, {sT3}")
        b("v_lshrrev_b32 v21, 5, v1\nv_lshlrev_b32 v21, 8, v21\nv_and_b32 v22, 15, v1\nv_lshlrev_b32 v22, 4, v22\nv_lshrrev_b32 v23, 1, v1\nv_and_b32 v23, 8, v23\nv_add3_u32 v21, v21, v22, v23")
        b(f"s_mul_i32 {sT2}, {sQH}, 20480\ns_add_u32 {sT2}, {sT2}, {QEX}\nv_add_u32 v22, {sT2}, v{L16}\ns_lshl_b32 {sT3}, {sKH}, 11\ns_add_u32 {sT2}, {sT2}, {sT3}\nv_add_u32 v21, {sT2}, v21")
        b("v_and_b32 v23, 48, v1")

    if opt("early", 0):
        setup_a(); setup_b(); setup_c()
    first_stage(1); first_stage_last(1)
    for r in [L16B, TCH, ZR, OUTV] + VW3 + [VB3[0], VB3[4]]: b(f"v_mov_b32 v{r}, 0")
    b.vm = []
    b.raw("s_waitcnt vmcnt(9)")
    stamp(b, 1)

    def g_mfmas(buf, dord=(0, 1, 2, 3), c0=False):
        return [f"{MF} {vr(ACC+(d*5+q)*4,4)}, {ar(AF[buf]+4*d,4)}, {ar(BF[buf]+4*q,4)}, {'0' if c0 else vr(ACC+(d*5+q)*4,4)}" for d in dord for q in range(5)]
    def emit(x):
        if callable(x): x()
        else: b(x)
    def g_step(ph, dm, fill, first=False, more=(), bar=True, last=20):
        if bar:
            trace(b); b("s_barrier"); trace(b)
        vs, qs = ((1024, 2048), (4096, 1024))[ph == 3]
        xa, wa = (XA, WA) if ph == 1 else (XA3, WA3)
        more = list(more)
        for u in range(2):
            A = lambda d: [f"ds_read_b64_tr_b16 {ar(AF[u]+4*d+2*v,2)}, v{wa[d]} offset:{u*8192+v*vs}" for v in range(2)]
            rd = A(0) + [f"ds_read_b128 {ar(BF[u]+4*q,4)}, v{xa[u]} offset:{q*qs}" for q in range(5)] + A(1) + A(2) + A(3)
            mf = g_mfmas(u ^ 1, c0=first)
            if first and u == 0:
                for s in rd: b(s)
                rd = []
            for i in range(20 if u == 0 else last):
                if not (first and u == 0): b(mf[i])
                if (u, i) in dm: b(dm[(u, i)])
                elif rd: b(rd.pop(0))
                elif more: b(more.pop(0))
                for s in fill.get((u, i), []): emit(s)
                if u == 0 and i == 18: need(b, [ar(AF[0], 8), ar(BF[0], 20)])
                if u == 1 and i == 4: need(b, [ar(AF[0], 16)])
            assert not rd
        return more
    va = lambda r: f"v_add_u32 v{r}, {sDelta}, v{r}"
    def ringf(ph):
        xa, wa = (XA, WA) if ph == 1 else (XA3, WA3)
        return {(0, 7): [f"s_add_u32 {sT2}, {sRB}, {STSZ}"], (0, 9): [f"s_cmp_ge_u32 {sT2}, {LDS}"], (0, 10): [f"s_cselect_b32 {sT2}, {ST0}, {sT2}"],
                (0, 11): [f"s_sub_u32 {sDelta}, {sT2}, {sRB}"], (0, 14 if not opt("dg", 0) else 12): [va(xa[0])],
                (1, 2): [va(wa[0])], (1, 7): [va(xa[1])], (1, 10): [va(wa[1])], (1, 12): [va(wa[2])], (1, 15): [va(wa[3])]}
    DG = [(0, 4), (0, 8), (0, 12), (0, 16), (0, 19), (1, 9), (1, 13), (1, 16), (1, 18)]
    if opt("dg", 0) == 1: DG = [(0, 13), (0, 14), (0, 15), (0, 16), (0, 19), (1, 9), (1, 13), (1, 16), (1, 18)]
    def loopf(ph):
        f = ringf(ph)
        sg = "s58" if ph == 1 else "s80"; sgp = "s[58:59]" if ph == 1 else "s[80:81]"
        f.update({(0, 0): [f"s_and_b32 {sT}, {sg}, 15"], (0, 1): [f"s_lshl_b32 {sWO}, {sT}, {19 if ph == 1 else 17}"],
                  (0, 2): [f"s_add_u32 {sMX}, {sDB}, {sW4}"], (0, 3): [f"s_add_u32 m0, {sMX}, 20480"],
                  (0, 5): [f"s_lshl_b32 {sXO}, {sT}, 7" if ph == 1 else f"s_mul_i32 {sXO}, {sT}, 20480"],
                  (0, 6): [f"s_lshr_b64 {sgp}, {sgp}, 4"], (0, 17): [f"s_mov_b32 m0, {sMX}"],
                  (1, 0): [f"s_add_u32 {sMW}, {sDB}, {sM5}"], (1, 1): [f"s_mov_b32 {sDB}, {sRB}"], (1, 3): [f"s_mov_b32 {sRB}, {sT2}"],
                  (1, 5): [f"s_add_u32 {sCnt}, {sCnt}, 1"], (1, 6): [f"s_cmp_lt_u32 {sCnt}, 14"], (1, 8): ["s_cselect_b64 vcc, -1, 0"],
                  (1, 17): [f"s_mov_b32 m0, {sMW}"] + ([f"s_bitcmp1_b32 {sMask}, {sCnt}"] if ph == 1 else [])})
        return f
    EB1 = opt("eb1", 0); EB3 = opt("eb3", 0); BP = opt("bp", 17)
    DGE = [(0, 4), (0, 8), (0, 12), (0, 16), (1, 13), (1, 14), (1, 15), (1, 16), (0, 19)]
    def loope(ph, sync):
        f = loopf(ph)
        f[(0, 15)] = f.pop((1, 0)); f[(0, 17)] = [f"s_mov_b32 m0, {sMW}"]
        f[(1, 9)] = f.pop((1, 10)); f[(1, 11)] = f.pop((1, 12)); f[(1, 10)] = [f"s_mov_b32 m0, {sMX}"]
        w3 = f.pop((1, 15)); f.pop((1, 17))
        if ph == 1: f[(1, 12)] = [f"s_bitcmp1_b32 {sMask}, {sCnt}"]
        f[(1, BP)] = [sync]
        f.setdefault((1, 19 if BP == 18 else 18), []).extend(w3)
        return f
    def auto(ph, gaps, hook=None):
        xa, wa = (XA, WA) if ph == 1 else (XA3, WA3)
        sg = "s58" if ph == 1 else "s80"; sgp = "s[58:59]" if ph == 1 else "s[80:81]"
        rp = [[g for g in range(20*u, 20*u + 20) if g not in gaps][:13] for u in range(2)]
        it = [(f"s_and_b32 {sT}, {sg}, 15", 0, gaps[0]-1), (f"s_lshl_b32 {sWO}, {sT}, {19 if ph == 1 else 17}", 0, gaps[0]-1),
              (f"s_add_u32 m0, {sMX}, 20480", 0, gaps[0]-1),
              (f"s_lshl_b32 {sXO}, {sT}, 7" if ph == 1 else f"s_mul_i32 {sXO}, {sT}, 20480", 0, gaps[4]-1)]
        if ph == 3: it.append((f"s_lshr_b32 {sT3}, {sT}, 1", 0, gaps[4]-2))
        it += [(f"s_lshr_b64 {sgp}, {sgp}, 4", 0, 39), (f"s_add_u32 {sT2}, {sRB}, {STSZ}", 0, 39), (f"s_cmp_ge_u32 {sT2}, {LDS}", 0, 39),
               (f"s_cselect_b32 {sT2}, {ST0}, {sT2}", 0, 39), (f"s_sub_u32 {sDelta}, {sT2}, {sRB}", 0, 39), (va(xa[0]), rp[0][6], 39),
               (f"s_mov_b32 m0, {sMX}", gaps[3]+1, gaps[4]-1)]
        if ph == 3: it += [(f"s_bitcmp0_b32 {sRdy}, {sT3}", 0, gaps[4]-1), (hook, 0, gaps[4]-1)]
        it += [(f"s_add_u32 {sMW}, {sDB}, {sM5}", 0, 39), (f"s_add_u32 {sMX}, {sRB}, {sW4}", 0, 39), (f"s_mov_b32 {sDB}, {sRB}", 0, 39), (va(wa[0]), rp[1][1], 39),
               (f"s_mov_b32 {sRB}, {sT2}", 0, 39), (f"s_add_u32 {sCnt}, {sCnt}, 1", 0, 39), (f"s_cmp_lt_u32 {sCnt}, 14", 0, 39),
               ("s_cselect_b64 vcc, -1, 0", 0, 39), (va(xa[1]), rp[1][6], 39), (va(wa[1]), rp[1][8], 39), (va(wa[2]), rp[1][10], 39)]
        late = [(f"s_mov_b32 m0, {sMW}", gaps[7]+1, gaps[8]-1), (va(wa[3]), rp[1][12], 39)]
        late.sort(key=lambda x: x[1])
        it += late
        if ph == 1: it.append((f"s_bitcmp1_b32 {sMask}, {sCnt}", 0, 39))
        cap = {g: (0 if g in gaps else 1 if g in rp[0] + rp[1] else 3) for g in range(40)}
        cap[18] -= 1; cap[24] -= 1
        fill = {}; g = 0
        for k, (ins, lo, hi) in enumerate(it):
            hi = min([hi] + [x[2] for x in it[k+1:]])
            g = max(g, lo)
            while g < hi and cap[g] <= 0: g += 1
            while g in gaps and g > max(lo, 0) and g >= hi: g -= 1
            assert g <= hi, (ins, g, hi)
            cap[g] -= 1
            fill.setdefault(divmod(g, 20), []).append(ins)
        return [divmod(g, 20) for g in gaps], fill
    AG = [int(x) for x in opt("ag", "0").split(".")]
    def first_fill(ph):
        f = loopf(ph); g = {}
        g[(0, 0)] = sum([f[(0, i)] for i in (0, 1, 2, 3, 5, 6, 7, 9, 10, 11, 14 if not opt('dg', 0) else 12)], []) + f[(1, 0)] + f[(1, 1)] + f[(1, 3)] + f[(1, 5)] + f[(1, 6)] + f[(1, 8)]
        return f, g
    f, g = first_fill(1)
    DG0 = [(1, 13), (1, 14), (1, 15), (1, 16)]
    g.update({(1, 2): f[(1, 2)], (1, 7): f[(1, 7)], (1, 9): f[(1, 10)], (1, 11): f[(1, 12)], (1, 17): f[(1, 15)] + f[(0, 17)]})
    if EB1:
        for i in range((BP + 1) * 4, 80): b(f"v_mov_b32 v{ACC+i}, 0")
        g[(1, 17)] = f[(0, 17)]
        g_step(1, dict(zip(DG0, DW)), g, first=True, last=BP + 1)
        for x in DX[:4]: b(x)
        b(f"s_mov_b32 m0, {sMW}\ns_bitcmp1_b32 {sMask}, {sCnt}"); b(DX[4])
        b("s_branch L_p1end")
        def sync1():
            b.label("L_p1end")
            b("s_cbranch_scc1 L_aux")
            b.wait(lg=0, vm=9)
            b.label("L_auxback")
            trace(b)
            b("s_barrier")
            trace(b)
        b.raw(f".p2align {opt('al', 3)}")
        b.label("L_p1")
        b.lg = []
        i0 = len(b.L)
        g_step(1, dict(zip(DGE, DW + DX)), loope(1, sync1), bar=False)
        b("s_cbranch_vccnz L_p1")
    else:
        g_step(1, dict(zip(DG0 + [(1, 18), (1, 19)], DW + DX[:2])), g, first=True)
        b(DX[2]); b(DX[3]); b(f"s_mov_b32 m0, {sMW}\ns_add_u32 {sMX}, {sDB}, {sW4}\ns_bitcmp1_b32 {sMask}, {sCnt}"); b(DX[4])
        b("s_branch L_p1end")
        b.raw(f".p2align {opt('al', 3)}")
        b.label("L_p1")
        b.lg = []
        i0 = len(b.L)
        if len(AG) == 9:
            dg, ff = auto(1, AG)
            g_step(1, dict(zip(dg, DW + DX)), ff)
        else: g_step(1, dict(zip(DG, DW + DX)), loopf(1))
        b.label("L_p1end")
        b("s_cbranch_scc1 L_aux")
        b.wait(lg=0, vm=9)
        b.label("L_auxback")
        b("s_cbranch_vccnz L_p1")
    print("gemm step estimate", estimate(b.L[i0:], verbose=VERB))
    b.vm = []
    stamp(b, 2)
    KLD = f"buffer_load_dwordx4 v{KVW}, {SK}, {sKVx} offen {KVFL} lds"
    VLD = f"buffer_load_dwordx4 v{KVW}, {SV}, {sKVx} offen {KVFL} lds"
    M0K = f"s_mov_b32 m0, {sKVm}"; M0V = f"s_add_u32 m0, m0, 4096"
    ADV = [f"s_add_u32 {sKVm}, {sKVm}, 8192", f"s_add_u32 {sKVs}, {sKVs}, 4096"]
    XR = f"s_xor_b32 {sKVx}, {sKVs}, {sRot}"
    def pair():
        b(M0K); b(ADV[0]); b(KLD); b(M0V); b(ADV[1]); b(VLD); b(XR)
    NS = opt("ns", 5)
    n14 = opt("n14", 2); n15 = opt("n15", 2); nq = opt("nq", 2); NPI = opt("npi", 2); IENT = 32 - 6 * NPI; npro = IENT - 6 - NS - n14 - n15 - nq
    assert n14 <= 4 and n15 <= 4 and 0 <= nq <= 3 and 0 <= npro <= 5 and n14 + n15 + nq <= 9
    pro1 = 1 if npro >= 1 and n14 + n15 + nq < 9 else 0; pro2 = (npro - pro1 + 1) // 2; pro3 = npro - pro1 - pro2
    def k_read(i): return f"ds_read_b128 {ar(KF+4*i,4)}, v{KA[i%4]} offset:{(i//4)*8192}"
    def v_read(j): return [f"ds_read_b64_tr_b16 {ar(VF+4*j+2*v,2)}, v{VA[j]} offset:{v*8192}" for v in range(2)]
    def kv_step(n, extra, more=(), bar=True):
        slots = [((0, 3), (0, 4), (0, 6), (0, 8), (0, 12), (0, 13)), ((0, 15), (0, 16), (0, 17), (0, 19), (1, 0), (1, 1)),
                 ((1, 8), (1, 9), (1, 11), (1, 13), (1, 14), (1, 14)), ((1, 15), (1, 16), (1, 17), (1, 18), (1, 19), (1, 19))]
        dm = {}; f = {k: list(v) for k, v in extra.items()}
        for a, k, c, v, e, e2 in ([slots[0], slots[2]] if n == 2 else slots[:n]):
            f.setdefault(a, []).append(M0K); dm[k] = KLD; f.setdefault(c, []).append(M0V); dm[v] = VLD
            f.setdefault(e, []).append(ADV[0]); f.setdefault(c, []).append(ADV[1]); f.setdefault(e2, []).append(XR)
        return g_step(1, dm, f, more=more, bar=bar)
    kv_step(n14, ringf(1), bar=not EB1)
    b.wait(lg=0, vm=2*n14)
    if opt("sta", 0) == 21: stamp(b, 15)
    more = kv_step(n15, {}, [f"ds_read_b128 {ar(K0F+4*d,4)}, v23 offset:{d*64}" for d in range(4)] + [k_read(i) for i in range(8)])
    need(b, [ar(AF[1], 16), ar(BF[1], 20)])
    b("s_barrier")
    if opt("sta", 0) == 20: stamp(b, 15)
    i0 = len(b.L)
    def pack(t):
        a = ACC + t * 4
        for i in range(4): b(f"v_mul_f32 v{a+i}, {sCc}, v{a+i}")
        b(f"v_cvt_pk_bf16_f32 v{a}, v{a}, v{a+1}\nv_cvt_pk_bf16_f32 v{a+1}, v{a+2}, v{a+3}")
    def qwr(t):
        d, q = divmod(t, 5); a = ACC + t * 4
        b(f"ds_write_b64 v21, {vr(a,2)} offset:{q*4096+(d>>1)*1024+(d&1)*512}")
    mf = g_mfmas(1)
    for i in range(25):
        if i < 20: b(mf[i])
        if i == 0: b(f"buffer_load_dwordx2 {vr(NONV,2)}, v{ZR}, {SD}, 0 offen sc0 sc1")
        elif i < 4:
            for k in range(2):
                if more: b(more.pop(0))
        if i in ((4, 14) if nq == 2 else (4, 11, 18)[:nq]): pair()
        if 0 <= i - 5 < 20: qwr(i - 5)
        if 0 <= i - 4 < 20: pack(i - 4)
    assert not more
    b(f"s_add_u32 {sT}, {sW1}, {(IENT-NS)*8192}\nv_add_u32 v21, {sT}, v{L16}")
    b.wait(lg=0)
    b("s_barrier")
    print("q pack estimate", estimate(b.L[i0:]))
    stamp(b, 3)
    i0 = len(b.L)
    qr = [f"ds_read_b128 {ar(QF+(q*4+d)*4,4)}, v22 offset:{q*4096+d*1024}" for q in range(5) for d in range(4)]
    for i in range(10): b(qr.pop(0))
    if pro1: pair()
    sw = [f"ds_write_b128 v21, {ar(STG[i],4)} offset:{i*4096}" for i in range(2*NS)]
    neg = [f"v_sub_f32 v{NM+i}, 0, v{NM+i}" for i in range(20)]
    for t in range(20):
        q, d = divmod(t, 4)
        b(f"{MF} {vr(NM+4*q,4)}, {ar(K0F+4*d,4)}, {ar(QF+t*4,4)}, {'0' if d == 0 else vr(NM+4*q,4)}")
        if qr: b(qr.pop(0))
        if t == 13:
            need(b, [ar(QF, 80)])
            b("s_barrier")
        if t >= 14 and sw: b(sw.pop(0))
        if t >= 8: b(neg.pop(0))
    for i in range(pro2): pair()

    def col(n): return (0, 1, 0, 1, 2)[n % 5]
    def s_mfma(n, i):
        kt, d = i // 4, i % 4; q = n % 5
        dst = vr(SB[col(n)] + 4*kt, 4)
        return f"{MF} {dst}, {ar(KF+4*i,4)}, {ar(QF+(q*4+d)*4,4)}, {vr(NM+4*q,4) if d == 0 else dst}"
    def oreg(q, j): return vr(OK + (q*4+j)*4, 4) if j < 4 else ar(OS + (q*4+j-4)*4, 4)
    def p_mfma(n, j):
        q = n % 5
        if j == 8: return f"{MF} {vr(LA+4*q,4)}, {ar(ONES,4)}, {vr(PB[col(n)],4)}, {vr(LA+4*q,4)}"
        return f"{MF} {oreg(q,j)}, {ar(VF+4*j,4)}, {vr(PB[col(n)],4)}, {oreg(q,j)}"
    def v_exp(n, e): return f"v_exp_f32 v{SB[col(n)]+e}, v{SB[col(n)]+e}"
    def v_cvt(n, c): return f"v_cvt_pk_bf16_f32 v{PB[col(n)]+c}, v{SB[col(n)]+2*c}, v{SB[col(n)]+2*c+1}"
    NU = 40
    def slot(n, mem=None, sal=None, val=None):
        mem = mem or {}; sal = sal or {}; val = val or {}
        for p in range(17):
            if p < 16 and p % 2 == 0:
                if 0 <= n + 1 < NU: b(s_mfma(n + 1, p // 2))
            elif 0 <= n - 1 < NU: b(p_mfma(n - 1, p // 2))
            for s in mem.get(p, []): b(s)
            for s in sal.get(p, []): emit(s)
            if 0 <= n < NU:
                if p % 2 == 0 and p < 16: b(v_exp(n, p // 2))
                if p % 4 == 3: b(v_cvt(n, p // 4))
            for s in val.get(p, []): b(s)
    VR = [x for j in range(8) for x in v_read(j)]
    for i in range(8):
        b(s_mfma(0, i))
        if i >= 4: b(VR[i - 4])
        elif sw: b(sw.pop(0))
        b(neg.pop(0))
    assert not sw and not neg
    for i in range(pro3): pair()
    if CLR == 1:
        for i in range(4): b(f"v_mov_b32 v{60+i}, -1")
        b(f"v_lshrrev_b32 v64, 1, v{L16}")
        for x in clears(60): b(x)
    b.label("L_p2entry")
    for i in range(8):
        b(s_mfma(1, i))
        b(VR[4 + i])
        if i >= 2 and i % 2 == 0: b(v_cvt(0, i // 2 - 1))
        b(v_exp(0, i))
    b(f"s_add_u32 m0, {sW1}, {(IENT%20)*8192-(4096 if NPI == 2 else 0)}\ns_add_u32 {sEv}, {sW1}, {LDS}\ns_mov_b32 {sKVs}, {IENT*4096}\n{XR}\ns_mov_b32 {sKVm}, 0\ns_mov_b32 {sCnt}, 0")
    b(v_cvt(0, 3))
    if TRACE == 2: b.raw("s_mov_b32 s100, 0")
    print("p2 prologue estimate", estimate(b.L[i0:]))
    stamp(b, 4)
    nd = lambda *ops: (lambda: need(b, ops))
    def merge(*ds):
        out = {}
        for d in ds:
            for k, v in d.items(): out.setdefault(k, []).extend(v)
        return out
    def body():
        INC = "s_add_u32 m0, m0, 4096"
        def ex():
            b("s_cbranch_scc1 L_tail")
            body.exit_state = b.state()
        m1 = {}; s1 = {}; m2 = {}; s2 = {}; m3 = {}; s3 = {}; s5 = {}
        WR = [f"s_cmp_eq_u32 m0, {sEv}", f"s_cselect_b32 m0, {sW1}, m0"]
        if NPI == 2:
            G = [int(x) for x in opt("g4", "1.5.9.13").split(".")]
            m4 = {G[0]: [KLD], G[1]: [VLD], G[2]: [KLD], G[3]: [VLD]}
            s4 = merge({G[0]-1: [INC]}, {G[1]-1: [INC]}, {G[1]+1: [XR]}, {G[2]-1: [INC]}, {G[3]-1: [INC]}, {G[3]+1: [XR]}, {G[0]+1: [ADV[1]]}, {G[2]+1: [ADV[1]]})
            v1 = {9: [va(KA[0]), va(KA[1])], 11: [va(KA[2])], 13: [va(KA[3]), va(VA[0])], 15: [va(VA[1])], 16: [va(VA[2]), va(VA[3])]}
            v2 = {3: [va(VA[4])], 11: [va(VA[5])]}
        else:
            m1 = {13: [KLD]}; s5 = {2: [INC], 4: [WR[0]], 6: [WR[1]], 0: [XR]}
            m2 = {5: [VLD], 13: [KLD]}; s2 = {0: [ADV[1]], 2: [INC], 6: [XR], 8: [INC], 10: [WR[0]], 12: [WR[1]]}
            m3 = {16: [VLD]}; s3 = {10: [INC], 8: [ADV[1]]}
            m4 = {9: [KLD], 16: [VLD]}; s4 = {0: [XR], 2: [INC], 4: [WR[0]], 6: [WR[1]], 12: [INC], 10: [ADV[1]]}
            v1 = {9: [va(KA[0]), va(KA[1])], 11: [va(KA[2])], 15: [va(KA[3])], 16: [va(VA[0]), va(VA[1])]}
            v2 = {1: [va(VA[2]), va(VA[3])], 3: [va(VA[4])], 11: [va(VA[5])]}
        if TOUCH == 1:
            assert NPI == 2
            m2[5] = [f"buffer_load_dword a{JUNK}, v{TCH}, {SW3}, {sT} offen"]
            s2 = {0: [f"s_cmp_lt_u32 {sCnt}, {TIT}"], 2: [f"s_cselect_b32 {sT}, {sKVm}, 0x40000000"], 6: [f"s_add_u32 {sKVm}, {sKVm}, {TL*128}"]}
        slot(1, merge({1: [VR[12]], 3: [VR[13]], 5: [VR[14]], 7: [VR[15]]}, m1),
             {0: [nd(ar(VF, 12))], 6: [nd(ar(VF, 24))], 12: [nd(ar(VF, 28))], 14: [nd(ar(VF, 32))],
              2: [f"s_add_u32 {sT2}, {sPB}, 32768"], 4: [f"s_cmp_ge_u32 {sT2}, {LDS}"], 8: [f"s_cselect_b32 {sT2}, 0, {sT2}"],
              9: [f"s_sub_u32 {sDelta}, {sT2}, {sPB}"], 10: [f"s_mov_b32 {sPB}, {sT2}"], 15: [f"s_cmp_eq_u32 {sCnt}, 7"],
              16: [ex]}, v1)
        slot(2, m2, merge(s2, {14: [f"s_cmp_eq_u32 {sCnt}, 6"]}), v2)
        b("s_cbranch_scc1 L_p2late")
        trace(b)
        b.raw(f"s_waitcnt vmcnt({5 if TOUCH == 1 or NPI == 3 else 4})")
        b.label("L_p2bar")
        if TRACE == 2: trace(b)
        b("s_barrier")
        trace(b)
        slot(3, merge({2*i+1: [k_read(i)] for i in range(8)}, m3),
             merge({6: [f"s_add_u32 {sCnt}, {sCnt}, 1"], 16 if NPI == 2 else 14: [nd(ar(KF, 16 if NPI == 2 else 12))]}, s3), {1: [va(VA[6])], 5: [va(VA[7])]})
        slot(4, m4, merge(s4, {3: [nd(ar(KF, 32))]}))
        slot(5, {1: VR[0:2], 3: [VR[2]], 5: [VR[3]], 7: [VR[4]], 9: VR[5:7], 11: [VR[7]], 13: VR[8:10], 15: [VR[10]], 16: [VR[11]]}, s5)
        b("s_branch L_p2")
        b.vm = []
    b.vm = []
    save = b.L; b.L = []
    body(); st1 = b.state(); t1 = b.L
    b.L = []; body(); st2 = b.state(); t2 = b.L
    assert st1[0] == st2[0]
    if not STAMPS: assert t1 == t2, "loop not steady"
    print("p2 body estimate", estimate(t2, verbose=VERB))
    b.L = save
    b.raw(f".p2align {opt('al', 3)}")
    b.label("L_p2")
    b.L += t2
    b.label("L_p2late")
    if TRACE == 2: trace(b)
    b.raw(f"s_waitcnt vmcnt({3 if NPI == 3 else 1 if TOUCH == 1 else 0})")
    WE = opt("we", 0)
    if WE:
        assert NPI == 2
        b(f"s_add_u32 m0, {sW4}, {S3[0]+20480}\ns_lshl_b32 {sWO}, {sHl}, 18")
        for x in DW3: b(x)
        b(f"s_add_u32 m0, {sW4}, {S3[1]+20480}\ns_add_u32 {sWO}, {sWO}, 0x20000")
        for x in DW3: b(x)
        b(f"s_mov_b32 m0, {sW1}")
    if TOUCH in (7, 8): b(f"buffer_load_dword a{JUNK}, v{TCH}, {SW3}, 0 offen")
    b("s_branch L_p2bar")
    b.label("L_tail")
    b.set_state(body.exit_state)
    b.vm = []
    b(f"s_mul_i32 {sT}, {sW}, 20480\nv_add_u32 v21, {sT}, v{L16}")
    b.raw("s_waitcnt vmcnt(0)")
    b("s_barrier")
    stamp(b, 5)
    i0 = len(b.L)
    EB = 65536; EXL = 81920 - EB; EXF = 87040 - EB
    LW, LO, LP, FW, FR = 3, 4, 5, 6, 7
    wr = lambda q: [f"ds_write_b128 v21, {ar(OS+(q*4+j)*4,4)} offset:{(q*4+j)*1024}" for j in range(4)]
    lw = lambda q: (lambda: b(f"ds_write_b32 v{LW}, v{LA+4*q} offset:{EXL+q*256}", f"L{q}"))
    RB = [64, 80, 64, 80, 24]
    rd = lambda q: [f"ds_read_b128 {vr(RB[q]+4*j,4)}, v22 offset:{(q*4+j)*1024}" for j in range(4)]
    LR = NM
    lr = lambda q: [f"ds_read_b32 v{LR+2*q}, v{LO} offset:{EXL+q*256}", f"ds_read_b32 v{LR+2*q+1}, v{LP} offset:{EXL+q*256}"]
    linv = lambda q: [f"v_add_f32 v{LR+2*q}, v{LR+2*q}, v{LR+2*q+1}", f"v_rcp_f32 v{LR+2*q}, v{LR+2*q}"]
    def nval(q, pr, packed):
        o = OK + (q*4+2*pr)*4; r = RB[q] + 8*pr
        if packed:
            out = [f"v_pk_add_f32 {vr(o+i,2)}, {vr(o+i,2)}, {vr(r+i,2)}" for i in range(0, 8, 2)]
            out += [f"v_pk_mul_f32 {vr(o+i,2)}, {vr(o+i,2)}, {vr(LR+2*q,2)} op_sel_hi:[1,0]" for i in range(0, 8, 2)]
        else:
            out = [f"v_add_f32 v{o+i}, v{o+i}, v{r+i}" for i in range(8)] + [f"v_mul_f32 v{o+i}, v{LR+2*q}, v{o+i}" for i in range(8)]
        return out + [f"v_cvt_pk_bf16_f32 v{o+i}, v{o+2*i}, v{o+2*i+1}" for i in range(4)]
    def nmem(q, pr):
        o = OK + (q*4+2*pr)*4
        vv, off = (L16, q * 1024) if q < 4 else (L16B, 0)
        return [f"buffer_store_dwordx4 {vr(o,4)}, v{vv}, {SO}, {sO1 if pr else sO0} offen offset:{off} {H1S}",
                f"ds_write_b128 v2, {vr(o,4)} offset:{pr*10240+q*1024}"]
    def chunks(lst, pos):
        n = -(-len(lst) // len(pos))
        return {p: lst[i*n:(i+1)*n] for i, p in enumerate(pos)}
    def meet(q):
        b.wait_tag(lgtag=f"L{q}")
        b("s_barrier")
    w = wr(0)
    slot(37, merge({5 + 2*i: [w[i]] for i in range(4)}, {} if WE else {1: DW3[0:2], 3: DW3[2:4], 13: DW3[0:2], 16: DW3[2:4]}),
         {0: [] if WE else [f"s_add_u32 m0, {sW4}, {S3[0]+20480}", f"s_lshl_b32 {sWO}, {sHl}, 18"],
          11: [] if WE else [f"s_add_u32 m0, {sW4}, {S3[1]+20480}", f"s_add_u32 {sWO}, {sWO}, 0x20000"],
          2: [f"s_xor_b32 {sT2}, {sW}, 2"], 3: [f"s_mul_i32 {sT}, {sT2}, 20480"], 4: [f"s_mul_i32 {sT3}, {sW}, 1280"],
          6: [f"s_add_u32 {sT3}, {sT3}, {EB}"], 8: [f"s_mul_i32 {sT2}, {sT2}, 1280"], 10: [f"s_add_u32 {sT2}, {sT2}, {EB}"],
          12: [f"s_mul_i32 {sMX}, {sKH}, {STSZ}"], 14: [f"s_lshl_b32 {sMW}, {sW}, 2"], 15: [lw(0)]},
         {3: ["v_lshlrev_b32 v23, 2, v1"], 5: [f"v_add_u32 v22, {sT}, v{L16}"], 9: [f"v_add_u32 v{LW}, {sT3}, v23"]})
    b(f"v_and_b32 v23, 60, v23\nv_add_u32 v{LO}, {sT3}, v23\nv_add_u32 v{LP}, {sT2}, v23\nv_add_u32 v2, {sMX}, v{XA3[0]}")
    meet(0)
    if opt("sta", 0) == 10: stamp(b, 15)
    r = lr(0) + rd(0); w = wr(1)
    slot(38, merge({1: r[0:2], 3: r[2:4], 5: r[4:6], 7: [w[0]], 9: [w[1]], 11: [w[2]], 13: [w[3]], 16: nmem(0, 0)}),
         {15: [lw(1)], 0: [f"s_add_u32 {sMW}, {sMW}, {EB}"]},
         merge({7: linv(0)}, chunks(nval(0, 0, False), [9, 11, 13, 15]), {16: nval(0, 1, False)}, {1: [f"v_mov_b32 v{FW}, {sMW}"], 5: [f"v_mov_b32 v{FR}, {EB}"]}))
    meet(1)
    if opt("sta", 0) == 11: stamp(b, 15)
    r = lr(1) + rd(1); w = wr(2)
    slot(39, merge({1: r[0:2] + nmem(0, 1)[:1], 3: r[2:4], 5: r[4:6], 7: [w[0]], 9: [w[1]], 11: [w[2]], 13: [w[3]], 16: nmem(1, 0)}, {15: nmem(0, 1)[1:]}),
         {15: [lw(2)]},
         merge({7: linv(1)}, chunks(nval(1, 0, False), [9, 11, 13, 15]), {16: nval(1, 1, True)}))
    meet(2)
    if opt("sta", 0) == 12: stamp(b, 15)
    r = lr(2) + rd(2); w = wr(3)
    slot(40, merge({1: r[0:2] + nmem(1, 1)[:1], 3: r[2:4], 5: r[4:6], 7: [w[0]], 9: [w[1]], 11: [w[2]], 13: [w[3]]},
                   {15: nmem(1, 1)[1:]}),
         {15: [lw(3)]}, {13: linv(2)})
    for x in nval(2, 0, True): b(x)
    for x in wr(4): b(x)
    lw(4)()
    b(nmem(2, 0)[0])
    b(f"v_add_f32 v8, v{LA}, v{LA+4}\nv_add_f32 v9, v{LA+8}, v{LA+12}\nv_add_f32 v8, v8, v{LA+16}\nv_add_f32 v8, v8, v9")
    thr = f32bits(2.0 ** 40) if not FORCE_SLOW else f32bits(-1.0)
    b(f"v_cmp_nge_f32 vcc, {thr}, v8")
    b(f"s_cmp_lg_u64 vcc, 0\ns_cselect_b32 {sT}, 1, 0\nv_mov_b32 v8, {sT}")
    b(f"ds_write_b32 v{FW}, v8 offset:{EXF}", "L5")
    for x in nval(2, 1, True): b(x)
    b(nmem(2, 1)[0])
    meet(5)
    if opt("sta", 0) == 13: stamp(b, 15)
    b(f"ds_read_b128 {vr(NM+12,4)}, v{FR} offset:{EXF}")
    for x in lr(3) + lr(4) + rd(3) + rd(4): b(x)
    b(nmem(2, 0)[1]); b(nmem(2, 1)[1])
    b(f"v_or_b32 v{NM+12}, v{NM+12}, v{NM+13}\nv_or3_b32 v{NM+12}, v{NM+12}, v{NM+14}, v{NM+15}")
    for x in linv(3) + linv(4): b(x)
    b(f"v_readfirstlane_b32 {sT}, v{NM+12}")
    b(f"s_andn2_b32 {sT}, {sT}, {sPass}\ns_cmp_lg_u32 {sT}, 0")
    b("s_cbranch_scc1 L_slow")
    if not opt("sta", 0): stamp(b, 15)
    for q in (3, 4):
        for pr in range(2):
            for x in nval(q, pr, True) + nmem(q, pr): b(x)
    b(f"s_mov_b32 {sRB}, {S3[0]}\ns_mov_b32 {sCnt}, 0\ns_mov_b32 {sDB}, {ST0}")
    b(f"v_and_b32 v21, 7, v1\nv_lshlrev_b32 v21, 8, v21\nv_and_b32 v4, 3, v1\nv_mul_u32_u24 v4, {FS1 if SENT else 256}, v4\nv_lshrrev_b32 v5, 1, v{L16}")
    b.wait(lg=0, vm=10)
    print("tail estimate", estimate(b.L[i0:]))
    stamp(b, 6)
    b.vm = []
    if TRACE == 3: b.raw("s_mov_b32 s100, 0")
    f, g = first_fill(3)
    g[(0, 0)] = g[(0, 0)] + [f"s_lshr_b32 {sT3}, {sT}, 1"]
    g.update({(1, 2): f[(1, 2)], (1, 7): f[(1, 7)], (1, 9): f[(1, 10)], (1, 11): f[(1, 12)], (1, 13): f[(1, 15)]})
    FLD = f"buffer_load_dwordx2 v[22:23], v21, {SO}, {sF1} offen {H1L}"
    EARLY = opt("ep", 1)
    dm = dict(zip([(0, 1), (0, 2), (0, 3), (0, 4)], DW3))
    if EARLY: dm[(1, opt("epos", 19))] = FLD
    g_step(3, dm, g, first=True)
    b(f"s_mov_b32 {sSpin}, 0")
    b.raw(f"s_waitcnt vmcnt({4 + EARLY}) lgkmcnt(0)")
    b.lg = []
    b("s_branch L_non1")
    b.label("L_non")
    b.wait(vm=0)
    b.label("L_non1")
    b(f"v_readfirstlane_b32 s64, v{NONV}\nv_readfirstlane_b32 s65, v{NONV+1}")
    b("s_cmp_lg_u32 s64, 0")
    b("s_cbranch_scc1 L_nonok")
    b(f"buffer_load_dwordx2 {vr(NONV,2)}, v{ZR}, {SD}, 0 offen sc0 sc1")
    b(f"s_add_u32 {sSpin}, {sSpin}, 1\ns_cmp_lt_u32 {sSpin}, {SPIN}")
    b("s_cbranch_scc1 L_non")
    b.label("L_nonok")
    b.vm = []
    stamp(b, 7)
    b("s_barrier")
    b(f"s_cmp_lg_u32 {sW}, 0")
    b("s_cbranch_scc1 L_pubd")
    b(f"s_lshl_b32 {sT}, {sHl}, 8\ns_add_u32 {sT}, {sT}, {sF1}")
    b("s_mov_b64 exec, 1")
    b(f"buffer_store_dwordx2 {vr(NONV,2)}, v{ZR}, {SO}, {sT} offen {H1F}")
    b("s_mov_b64 exec, -1")
    if EARLY:
        b.raw("s_waitcnt vmcnt(1)")
        b("s_branch L_pubd1")
    b.label("L_pubd")
    ALL = opt("all", 0)
    def test(back):
        b.raw(f"v_cmp_eq_u64 s[92:93], {sNon}, v[22:23]")
        b(f"s_mov_b32 {sRdy}, s92\ns_bitcmp1_b32 s92, {sT3}")
        b(f"s_cbranch_scc1 {back}")
    if EARLY:
        b.raw("s_waitcnt vmcnt(0)")
        b.label("L_pubd1")
        test("L_poll0ok")
    def poll1(lab, back):
        b(f"s_mov_b32 {sSpin}, 0")
        b.label(lab)
        b.raw(FLD)
        b.raw("s_waitcnt vmcnt(0)")
        test(back)
        if SLEEP: b(f"s_sleep {SLEEP}")
        b(f"s_add_u32 {sSpin}, {sSpin}, 1\ns_cmp_lt_u32 {sSpin}, {SPIN}")
        b(f"s_cbranch_scc1 {lab}")
    poll1("L_poll0", "L_poll0ok")
    b.label("L_poll0ok")
    stamp(b, 8)
    b(f"s_mov_b32 m0, {sMX}\ns_and_b32 {sT}, s80, 15")
    for x in DX3[:4]: b(x)
    b(f"s_mov_b32 m0, {sMW}\ns_lshl_b32 {sWO}, {sT}, 17")
    b(DX3[4])
    if opt("peel1", 0):
        assert SIG3.startswith("pair")
        b(f"s_add_u32 m0, {sW4}, {S3[0]}\ns_mul_i32 {sXO}, {sT}, 20480")
        f1 = ringf(3)
        f1.update({(0, 6): ["s_lshr_b64 s[80:81], s[80:81], 4"], (0, 12): [f"s_add_u32 m0, {sM5}, {S3[0]}"], (0, 15): [f"s_add_u32 m0, {sW4}, {S3[0]+20480}"],
                   (1, 1): [f"s_mov_b32 {sDB}, {sRB}"], (1, 3): [f"s_mov_b32 {sRB}, {sT2}"], (1, 5): [f"s_add_u32 {sCnt}, {sCnt}, 1"]})
        f1[(0, 18)] = f1.pop((0, 14))
        dm = dict(zip([(0, 0), (0, 2), (0, 4), (0, 8), (0, 13), (0, 16), (0, 19), (1, 13), (1, 16)], DX3 + DW3))
        dm[(1, 18)] = FLD
        b.vm = []
        g_step(3, dm, f1, bar=False)
        b.raw("s_waitcnt vmcnt(10) lgkmcnt(0)")
        b.lg = []
    else:
        b.wait(lg=0)
    b.vm = []
    def sync3():
        b.wait(lg=0, vm=9)
        trace(b); b("s_barrier"); trace(b)
    f3 = loope(3, sync3) if EB3 else loopf(3)
    f3[(0, 13)] = [f"s_lshr_b32 {sT3}, {sT}, 1"]
    def chk():
        b("s_cbranch_scc1 L_wait1")
        b.label("L_wait1back")
    f3[(0, 17)] = f3[(0, 17)] + [f"s_bitcmp0_b32 {sRdy}, {sT3}", chk]
    if EB3 and opt("peel1", 0): b("s_barrier")
    b(f"s_add_u32 {sMX}, {sDB}, {sW4}")
    b.raw(f".p2align {opt('al', 3)}")
    b.label("L_p3")
    i0 = len(b.L)
    if len(AG) == 9:
        dg, ff = auto(3, AG, chk)
        g_step(3, dict(zip(dg, DW3 + DX3)), ff)
    else: g_step(3, dict(zip(DGE if EB3 else DG, DW3 + DX3)), f3, bar=not EB3)
    if not EB3: b.wait(lg=0, vm=9)
    b("s_cbranch_vccnz L_p3")
    print("p3 step estimate", estimate(b.L[i0:], verbose=VERB))
    b.vm = []
    stamp(b, 9)
    PFL = f"buffer_load_dwordx2 v[6:7], v4, {SO}, {sF2} offen {HLD}"
    AFX = lambda g: (AF[1], 160, 0, 16, 32)[g]
    BFX = lambda g: (BF[1], 176, 48, 196, 216)[g]
    def mm(g, d, q): return f"{MF} {vr(ACC+(d*5+q)*4,4)}, {ar(AFX(g)+4*d,4)}, {ar(BFX(g)+4*q,4)}, {vr(ACC+(d*5+q)*4,4)}"
    rf = ringf(3)
    for st in range(2):
        if st == 1 or not EB3:
            trace(b); b("s_barrier"); trace(b)
        pre = ([rf[(0, 7)], rf[(0, 9)], rf[(0, 10)], rf[(0, 11)]] if st == 0 else [[f"s_lshl_b32 {sT}, {sKq}, 8"], [f"s_add_u32 {sT}, {sT}, {sF2}"]])
        for u in range(2):
            g = 1 + 2*st + u
            A = lambda d: [f"ds_read_b64_tr_b16 {ar(AFX(g)+4*d+2*v,2)}, v{WA3[d]} offset:{u*8192+v*4096}" for v in range(2)]
            rdl = A(1) + [f"ds_read_b128 {ar(BFX(g)+4*q,4)}, v{XA3[u]} offset:{q*1024}" for q in range(5)] + A(2) + A(3) + A(0)
            upd = {} if st == 1 else ({8: XA3[0]} if u == 0 else {2: WA3[1], 7: XA3[1], 9: WA3[2], 11: WA3[3], 13: WA3[0]})
            for i in range(15):
                b(mm(g - 1, 1 + i // 5, i % 5))
                if rdl: b(rdl.pop(0))
                if pre:
                    for x in pre.pop(0): b(x)
                if i in upd: b(va(upd[i]))
                if i == 14 and not (st == 0 and u == 1): need(b, [ar(AFX(g)+4, 4), ar(BFX(g), 20)])
                if i == 3 and g > 1: need(b, [ar(AFX(g - 1), 16)])
        if st == 0: b.wait(lg=0, vm=0)
    stamp(b, 10)
    mf = [mm(4, 1 + i // 5, i % 5) for i in range(15)] + [mm(g, 0, q) for g in range(5) for q in range(5)]
    PK = 104; RK = 144
    for i in range(40):
        b(mf[i])
        t = i - 6
        if 0 <= t < 15:
            d, q = 1 + t // 5, t % 5; pk = PK + (d-1)*12
            if q in (1, 3): b(f"buffer_store_dwordx4 {vr(pk+2*(q-1),4)}, v{L16}, {SO}, {sPs[d]} offen offset:{(q//2)*1024} {HST}")
            if q == 4: b(f"buffer_store_dwordx2 {vr(pk+8,2)}, v5, {SO}, {sPs[d]} offen offset:2048 {HST}")
        t = i - 5
        if 0 <= t < 15:
            d, q = 1 + t // 5, t % 5; pk = PK + (d-1)*12 + 2*q; a = ACC + (d*5+q)*4
            b(f"v_cvt_pk_bf16_f32 v{pk}, v{a}, v{a+1}\nv_cvt_pk_bf16_f32 v{pk+1}, v{a+2}, v{a+3}")
    if not SENT:
        b.wait(vm=0)
        stamp(b, 11)
        if not F2W:
            b("s_barrier")
            b(f"s_cmp_lg_u32 {sW}, 0")
            b("s_cbranch_scc1 L_wait2")
        b("s_mov_b64 exec, 1")
        b(f"buffer_store_dwordx2 {vr(NONV,2)}, v{ZR}, {SO}, {sT} offen {HST}")
        b("s_mov_b64 exec, -1")
        b.label("L_wait2")
        b(f"s_mov_b32 {sSpin}, 0")
        P2 = opt("pp2", 1)
        regs = ["v[6:7]", "v[8:9]", "v[10:11]"][:P2]
        ld = lambda r: b.raw(f"buffer_load_dwordx2 {r}, v4, {SO}, {sF2} offen {HLD}")
        for r in regs[1:]:
            ld(r); b(f"s_sleep {opt('psl', 3)}")
        b.label("L_poll3")
        for k in range(P2):
            ld(regs[k])
            b.raw(f"s_waitcnt vmcnt({P2-1})")
            b.raw(f"v_cmp_ne_u64 vcc, {sNon}, {regs[(k + 1) % P2]}")
            b("s_cbranch_vccz L_wait2back")
            if P2 == 1 and opt('sleep2', 4): b(f"s_sleep {opt('sleep2', 4)}")
        b(f"s_add_u32 {sSpin}, {sSpin}, 1\ns_cmp_lt_u32 {sSpin}, {SPIN}")
        b("s_cbranch_scc1 L_poll3")
        b.label("L_wait2back")
        stamp(b, 12)
    else: stamp(b, 11)
    b(f"s_mov_b32 {sSpin}, 0")
    if opt("pre2", 0): b(f"s_sleep {opt('pre2', 0)}")
    b.label("L_poll2")
    b.vm = []
    for h in range(3):
        for d in (1, 2, 3):
            pk = RK + (d-1)*12
            if h < 2: b(f"buffer_load_dwordx4 {vr(pk+4*h,4)}, v{L16}, {SO}, {sPl[d]} offen offset:{h*1024} {HLD}")
            else: b(f"buffer_load_dwordx2 {vr(pk+8,2)}, v5, {SO}, {sPl[d]} offen offset:2048 {HLD}")
    if SENT:
        rr = [RK + (d-1)*12 + 4*h + i for h in range(3) for d in (1, 2, 3) for i in range(4 if h < 2 else 2)]
        b(f"v_max_u32 v8, v{rr[0]}, v{rr[1]}")
        for i in range(2, 30, 2): b(f"v_max3_u32 v8, v8, v{rr[i]}, v{rr[i+1]}")
        b("v_cmp_eq_u32 vcc, -1, v8")
        b("s_cbranch_vccz L_poll2ok")
        if SLEEP: b(f"s_sleep {opt('sleep2', 4)}")
        b(f"s_add_u32 {sSpin}, {sSpin}, 1\ns_cmp_lt_u32 {sSpin}, {SPIN}")
        b("s_cbranch_scc1 L_poll2")
        b.label("L_poll2ok")
        stamp(b, 12)
    OFL = opt("ofl", "").replace("+", " ")
    for q in range(5):
        a = ACC + q * 4
        for d in (1, 2, 3):
            pk = RK + (d-1)*12 + 2*q
            for i in range(2):
                b(f"v_lshlrev_b32 v{a+20*d+2*i}, 16, v{pk+i}\nv_and_b32 v{a+20*d+2*i+1}, 0xffff0000, v{pk+i}")
        for i in (0, 2): b(f"v_pk_add_f32 {vr(a+i,2)}, {vr(a+i,2)}, {vr(a+20+i,2)}")
        for i in (0, 2): b(f"v_pk_add_f32 {vr(a+40+i,2)}, {vr(a+40+i,2)}, {vr(a+60+i,2)}")
        for i in (0, 2): b(f"v_pk_add_f32 {vr(a+i,2)}, {vr(a+i,2)}, {vr(a+40+i,2)}")
        b(f"v_cvt_pk_bf16_f32 v{a}, v{a}, v{a+1}\nv_cvt_pk_bf16_f32 v{a+1}, v{a+2}, v{a+3}")
        b(f"buffer_store_dwordx2 {vr(a,2)}, v{OUTV}, {SOUT}, {sOut} offen {OFL}")
        if q < 4: b(f"s_add_u32 {sOut}, {sOut}, 32768")
    if STAMPS:
        stamp(b, 13)
        if not opt("gap", 0): b.wait(vm=0)
        stamp(b, 14)
        b(f"s_cmp_lg_u32 {sW}, 0")
        b("s_cbranch_scc1 L_nost")
        b(f"v_lshlrev_b32 v3, 2, v1\ns_lshl_b32 {sT}, s2, 7\ns_add_u32 {sT}, {sT}, {STAMP_OFF}\ns_mov_b32 exec_hi, 0")
        b(f"buffer_store_dword v254, v3, {SO}, {sT} offen")
        b("s_mov_b64 exec, -1")
        b.label("L_nost")
        b(f"v_lshlrev_b32 v3, 2, v1\ns_lshl_b32 {sT}, s2, 2\ns_add_u32 {sT}, {sT}, {sW}\ns_lshl_b32 {sT}, {sT}, 7\ns_add_u32 {sT}, {sT}, {STAMP_OFF + (2 << 20)}\ns_mov_b32 exec_hi, 0")
        b(f"buffer_store_dword v254, v3, {SO}, {sT} offen")
        b("s_mov_b64 exec, -1")
        if TRACE:
            b(f"s_lshl_b32 {sT}, s2, 2\ns_add_u32 {sT}, {sT}, {sW}\ns_lshl_b32 {sT}, {sT}, 9\ns_add_u32 {sT}, {sT}, {STAMP_OFF + (1 << 20)}")
            b(f"buffer_store_dword v0, v3, {SO}, {sT} offen")
    b.label("L_end")
    b("s_endpgm")

    b.label("L_wait1")
    b.lg = []; b.vm = []
    if opt("peel1", 0):
        b.raw("s_waitcnt vmcnt(4)")
        test("L_wait1back")
    poll1("L_poll1", "L_wait1back")
    b("s_branch L_wait1back")
    if SENT:
        b.label("L_wait2")
        b(f"s_mov_b32 {sSpin}, 0")
        b.label("L_poll3")
        b(PFL)
        b.wait(vm=0)
        b(f"v_cmp_ne_u64 vcc, {sNon}, v[6:7]")
        b("s_cbranch_vccz L_wait2back")
        b(f"s_sleep 4\ns_add_u32 {sSpin}, {sSpin}, 1\ns_cmp_lt_u32 {sSpin}, {SPIN}")
        b("s_cbranch_scc1 L_poll3")
        b("s_branch L_wait2back")

    EV = [[int(x) for x in e.split(".")] for e in opt("ev", "3.0,3.1,0.4").split(",")]
    assert sum(e[0] for e in EV) == 6 and sum(e[1] for e in EV) == NS
    assert len(EV) == 3
    b.label("L_aux")
    rp = 0
    for k, (nd_, nr_) in enumerate(EV):
        b.lg = []; b.vm = []
        if k + 1 < len(EV):
            b(f"s_cmp_lg_u32 {sEv}, {k}")
            b(f"s_cbranch_scc1 L_aux{k+1}")
        for i in range(nd_): pair()
        for i in range(nr_):
            b(f"s_xor_b32 {sT}, {sRot}, {(IENT-NS+rp)*4096}")
            b(f"buffer_load_dwordx4 {ar(STG[2*rp],4)}, v{KVW}, {SK}, {sT} offen {KVFL}")
            b(f"buffer_load_dwordx4 {ar(STG[2*rp+1],4)}, v{KVW}, {SV}, {sT} offen {KVFL}")
            rp += 1
        b(f"s_add_u32 {sEv}, {sEv}, 1")
        if not opt("early", 0): (setup_a, setup_b, setup_c)[k]()
        b.wait(lg=0, vm=9 + 2*(nd_ + nr_))
        b("s_branch L_auxback")
        if k + 1 < len(EV): b.label(f"L_aux{k+1}")

    b.label("L_slow")
    b.wait(lg=0, vm=0)
    b("s_barrier")
    b(f"s_mov_b32 {sPass}, 1")
    b("v_and_b32 v21, 15, v1\nv_lshlrev_b32 v21, 8, v21\nv_lshrrev_b32 v22, 4, v1\nv_lshlrev_b32 v22, 4, v22\nv_add_u32 v21, v21, v22")
    for q in range(5): b(f"v_mov_b32 v{72+q}, 0xff800000")
    b(f"s_mov_b32 {sCnt}, 0")
    b.label("L_slowloop")
    for d in range(4): b(f"buffer_load_dwordx4 {vr(24+4*d,4)}, v21, {SK}, {sCnt} offen offset:{d*64}")
    b.wait(vm=0)
    for q in range(5):
        for d in range(4):
            b(f"{MF} {vr(80+4*q,4)}, {vr(24+4*d,4)}, {ar(QF+(q*4+d)*4,4)}, {'0' if d == 0 else vr(80+4*q,4)}")
    for q in range(5):
        b(f"v_max3_f32 v{72+q}, v{72+q}, v{80+4*q}, v{81+4*q}\nv_max3_f32 v{72+q}, v{72+q}, v{82+4*q}, v{83+4*q}")
    b(f"s_add_u32 {sCnt}, {sCnt}, 4096\ns_cmp_lt_u32 {sCnt}, 131072")
    b("s_cbranch_scc1 L_slowloop")
    for sw_ in ("v_permlane16_swap_b32", "v_permlane32_swap_b32"):
        for q in range(5): b(f"v_mov_b32 v{64+q}, v{72+q}")
        for q in range(5): b(f"{sw_} v{72+q}, v{64+q}")
        for q in range(5): b(f"v_max_f32 v{72+q}, v{72+q}, v{64+q}")
    for q in range(5):
        for i in range(4): b(f"v_sub_f32 v{NM+4*q+i}, 0, v{72+q}")
    p2_addr()
    b(f"s_mov_b32 {sKVm}, {sW1}\ns_mov_b32 {sKVs}, 0\ns_mov_b32 {sKVx}, {sRot}")
    for z in ZEROS: b(z)
    b.label("L_slowkv")
    pair()
    b(f"s_cmp_lt_u32 {sKVs}, {IENT * 4096}")
    b("s_cbranch_scc1 L_slowkv")
    b.wait(vm=0)
    b("s_barrier")
    for i in range(8): b(k_read(i))
    for i in range(4): b(VR[i])
    for i in range(8): b(s_mfma(0, i))
    b("s_nop 7")
    b("s_branch L_p2entry")
    return b.L

def gen_probe(spec):
    i, ri, j, rj = spec.split(",")
    b = B()
    b.raw(".p2align 8"); b.raw(".type mha_probe_kernel,@function"); b.label("mha_probe_kernel")
    b("s_cmp_ge_u32 s2, 1"); b("s_cbranch_scc1 L3_end")
    b.raw("s_memrealtime s[16:17]")
    b.raw("s_load_dwordx2 s[4:5], s[0:1], 56"); b.raw("s_waitcnt lgkmcnt(0)")
    b("s_mov_b32 s6, 268435456\ns_mov_b32 s7, 0x20000")
    b(f"v_mul_u32_u24 v1, 512, v0\nv_lshrrev_b32 v4, 1, v0\nv_and_b32 v4, 3, v4\nv_lshlrev_b32 v4, 7, v4\nv_add_u32 v1, v1, v4\ns_mov_b32 s8, {STAMP_OFF}")
    b(f"buffer_load_dword v2, v1, s[4:7], s8 offen offset:{8*int(i)}")
    b(f"buffer_load_dword v3, v1, s[4:7], s8 offen offset:{8*int(j)}")
    b.wait(vm=0)
    b("v_readlane_b32 s9, v2, 0")
    b("s_sub_u32 s9, s9, 100000")
    b("v_subrev_u32 v2, s9, v2\nv_subrev_u32 v3, s9, v3")
    for v, r, acc in ((2, ri, "s10"), (3, rj, "s11")):
        b(f"s_mov_b32 {acc}, {'-1' if r == 'min' else '0'}")
        for l in range(64):
            b(f"v_readlane_b32 s12, v{v}, {l}")
            b(f"{dict(min='s_min_u32', max='s_max_u32', avg='s_add_u32')[r]} {acc}, {acc}, s12")
        if r == 'avg': b(f"s_lshr_b32 {acc}, {acc}, 3")
        else: b(f"s_lshl_b32 {acc}, {acc}, 3")
    if opt("abs", 0):
        b("s_lshr_b32 s10, s10, 3\ns_add_u32 s12, s10, s9\ns_mov_b32 s10, 10000")
        if opt("abs", 0) == 2:
            b(f"s_mov_b32 s8, {STAMP_OFF + (3 << 20)}\nv_mov_b32 v1, 0\nbuffer_load_dword v2, v1, s[4:7], s8 offen")
            b.wait(vm=0)
            b("v_readfirstlane_b32 s12, v2")
    else:
        if opt("gap", 0): b("s_sub_u32 s11, s16, s9\ns_lshl_b32 s11, s11, 3")
        b("s_sub_u32 s10, s11, s10\ns_min_u32 s10, s10, 100000")
        b.raw("s_memrealtime s[12:13]"); b.raw("s_waitcnt lgkmcnt(0)")
    b.label("L3_spin")
    b.raw("s_memrealtime s[14:15]"); b.raw("s_waitcnt lgkmcnt(0)")
    b("s_sub_u32 s14, s14, s12\ns_cmp_lt_u32 s14, s10")
    b("s_cbranch_scc1 L3_spin")
    b.label("L3_end")
    b("s_endpgm")
    if opt("abs", 0) == 2:
        b.raw(".p2align 8"); b.raw(".type mha_tiny_kernel,@function"); b.label("mha_tiny_kernel")
        b.raw("s_memrealtime s[8:9]")
        b.raw("s_load_dwordx2 s[4:5], s[0:1], 56"); b.raw("s_waitcnt lgkmcnt(0)")
        b("s_cmp_ge_u32 s2, 1"); b("s_cbranch_scc1 L4_end")
        b(f"s_mov_b32 s6, 268435456\ns_mov_b32 s7, 0x20000\ns_mov_b32 s10, {STAMP_OFF + (3 << 20)}\nv_mov_b32 v1, 0\nv_mov_b32 v2, s8")
        b("buffer_store_dword v2, v1, s[4:7], s10 offen")
        b.label("L4_end")
        b("s_endpgm")
    return b.L

def main():
    k, n = hazard_pass(gen(), verbose=VERB)
    head = ["; Fused MHA block, one workgroup per (batch, head): Q projection, attention, then a quarter (in k) of the output",
            "; projection; workgroups hand O and partial sums to each other through d_ws. Written by dev/gen15.py.",
            "; @launch grid=(256,1,1) block=(256,1,1) lds=163840",
            '.amdgcn_target "amdgcn-amd-amdhsa--gfx950"', ".text", f".globl {NAME}"]
    tail = ['.section .rodata,"a"', ".p2align 6", f".amdhsa_kernel {NAME}", "  .amdhsa_next_free_vgpr 512", "  .amdhsa_next_free_sgpr 102",
            "  .amdhsa_accum_offset 256", "  .amdhsa_group_segment_fixed_size 0", "  .amdhsa_kernarg_size 64", "  .amdhsa_user_sgpr_count 2",
            "  .amdhsa_user_sgpr_kernarg_segment_ptr 1", "  .amdhsa_system_sgpr_workgroup_id_x 1", ".end_amdhsa_kernel"]
    if "probe" in P:
        k3, _ = hazard_pass(gen_probe(P["probe"]))
        k = k + k3
        head[2] = f"; @launch kernel={NAME} grid=(256,1,1) block=(256,1,1) lds=163840\n; @launch kernel=mha_probe_kernel grid=(1,1,1) block=(64,1,1) lds=0"
        head.append(".globl mha_probe_kernel")
        if opt("abs", 0) == 2:
            head[2] = "; @launch kernel=mha_tiny_kernel grid=(1,1,1) block=(64,1,1) lds=0\n" + head[2]
            head.append(".globl mha_tiny_kernel")
            tail += [".p2align 6", ".amdhsa_kernel mha_tiny_kernel", "  .amdhsa_next_free_vgpr 8", "  .amdhsa_next_free_sgpr 32",
                "  .amdhsa_accum_offset 8", "  .amdhsa_group_segment_fixed_size 0", "  .amdhsa_kernarg_size 64", "  .amdhsa_user_sgpr_count 2",
                "  .amdhsa_user_sgpr_kernarg_segment_ptr 1", "  .amdhsa_system_sgpr_workgroup_id_x 1", ".end_amdhsa_kernel"]
        tail += [".p2align 6", ".amdhsa_kernel mha_probe_kernel", "  .amdhsa_next_free_vgpr 8", "  .amdhsa_next_free_sgpr 32",
            "  .amdhsa_accum_offset 8", "  .amdhsa_group_segment_fixed_size 0", "  .amdhsa_kernarg_size 64", "  .amdhsa_user_sgpr_count 2",
            "  .amdhsa_user_sgpr_kernarg_segment_ptr 1", "  .amdhsa_system_sgpr_workgroup_id_x 1", ".end_amdhsa_kernel"]
    fmt = lambda l: l if l.endswith(":") or l.startswith((".", ";")) else "    " + l
    open(sys.argv[1], "w").write("\n".join(head + [fmt(l) for l in k] + tail) + "\n")
    print(f"nops inserted: {n}; lines {len(k)}")
main()
```

```python
import sys, math, struct
from asmlib import B, hazard_pass, need, estimate

P = dict(kv.split("=") for kv in sys.argv[2:])
def opt(k, d): return type(d)(P.get(k, d))
STAMPS = opt("stamps", 0); TRACE = opt("trace", 0); VERB = bool(opt("v", 0))
KVFL = opt("kvfl", "nt").replace("+", " ")
HST = opt("hst", "sc0+sc1").replace("+", " ")
HLD = opt("hld", "sc0+sc1").replace("+", " ")
H1S = opt("h1s", "sc0+sc1").replace("+", " "); H1F = opt("h1f", "sc0+sc1").replace("+", " "); H1L = opt("h1l", "sc0+sc1").replace("+", " ")
FORCE_SLOW = opt("slow", 0)
SIG = opt("sig", "rot"); SIG3 = opt("sig3", "rot"); AUXT = opt("auxt", "lead")
TL = opt("tl", 11); TIT = opt("tit", 6); THALF = opt("thalf", 1)

TOUCH = opt("touch", 7)
SLEEP = opt("sleep", 4); ONEPOLL = opt("onepoll", 1); PBF = opt("pbf", 1)
NAME = "standalone__mha_block_cached__near_ridge_kernel"
STAMP_OFF = 200 << 20; NST = 16
TIMER = "s_memtime" if STAMPS == 2 else "s_memrealtime"
PART = 12 << 20; PSL = 10240 if opt('pbf', 1) else 20480; FLG1 = PART + 64 * 16 * PSL + (2 << 20); FS1 = opt('fs1', 8448); FS2 = opt('fs2', 4352); FLG2 = FLG1 + (1 << 20); WSREC = FLG2 + (2 << 20)

def vr(a, n=1, k='v'): return f"{k}{a}" if n == 1 else f"{k}[{a}:{a+n-1}]"
def ar(a, n=1): return vr(a, n, 'a')
def f32bits(x): return "0x%08x" % struct.unpack("<I", struct.pack("<f", x))[0]

def stamp(b, i):
    if STAMPS:
        b.wait(lg=0)
        b.raw(f"{TIMER} s[96:97]"); b.raw("s_waitcnt lgkmcnt(0)")
        b.raw(f"v_writelane_b32 v254, s96, {2*i}"); b.raw(f"v_writelane_b32 v254, s97, {2*i+1}")
def trace(b):
    if TRACE:
        b.wait(lg=0)
        for s in ("s_memtime s[96:97]", "s_waitcnt lgkmcnt(0)", "s_sub_u32 s96, s96, s98", "s_mov_b32 s97, m0", "s_mov_b32 m0, s100",
                  "v_writelane_b32 v0, s96, m0", "s_add_u32 s100, s100, 1", "s_min_u32 s100, s100, 63", "s_mov_b32 m0, s97"): b.raw(s)

def order(kind, j):
    if kind == "seq": return list(range(16)), [2, 6, 10]
    if kind == "xor": return [t ^ j for t in range(16)], [4, 8, 12]
    o = []; lead = []
    if kind == "rot":
        for t in range(16):
            if t == 0: o.append(j)
            elif t % 4 == j and t + 3 < 16: o.append(t + 3); lead.append(t)
            else: o.append([c for c in range(16) if c not in o and (c < 4 or (c - 3) < t) and not (c >= 4 and (c - 3) % 4 == j)][0])
    elif kind == "rot2":
        for t in range(16):
            if t == 0: o.append(0)
            elif t == 1: o.append(1 + j)
            elif (t - 1) % 4 == j and t + 3 < 16: o.append(t + 3); lead.append(t)
            else: o.append([c for c in range(16) if c not in o and (c < 5 or (c - 3) < t) and not (c >= 5 and (c - 4) % 4 == j)][0])
    assert sorted(o) == list(range(16)), o
    lead = [t for t in lead if t >= 2][:3]
    while len(lead) < 3: lead.append(lead[-1] + 2)
    return o, lead
def tables(kind):
    T = []
    for j in range(4):
        o, lead = order(kind, j)
        if AUXT.startswith("c"):
            off, base = int(AUXT[1]), int(AUXT[2])
            lead = [((j + off) % 4) + base + 4 * k + 2 for k in range(3)]
        elif AUXT != "lead": lead = [int(v) + 2 for v in AUXT.split(".")]
        if opt("sp", 0):
            ev = opt("ev", "3.0,3.1,0.4").split(",")
            lead = lead[opt("l0", 1):][:len(ev)] if ev != ["0.0"] else []
        val = sum(c << (4 * t) for t, c in enumerate(o))
        T.append((val & 0xffffffff, val >> 32, sum(1 << (t - 1) for t in lead)))
    return T

def order3(j, p):
    if SIG3 == "seq": o = list(range(14))
    elif SIG3.startswith("pair"):
        gap = int(SIG3[4:5] or 1)
        o = [2 * j, 2 * j + 1]
        lt = {8 + i: 2 + gap * i for i in range(6)}
        for t in range(2, 14):
            mine = [c for c in lt if lt[c] == t and (c - 8) % 4 == j]
            if mine: o.append(mine[0]); continue
            ok = [c for c in range(14) if c not in o and (c < 8 or (lt[c] < t - 1 and (c - 8) % 4 != j))]
            if not ok: ok = [c for c in range(14) if c not in o and not ((c - 8) % 4 == j and lt[c] > t)]
            ok.sort(key=lambda c: (c != (o[-1] ^ 1), c >= 8, (c - 2 * j) % 8 if c < 8 else c))
            o.append(ok[0])
        assert sorted(o) == list(range(14)), o
    else:
        o = []
        for t in range(14):
            if t == 0: o.append(j)
            elif t % 4 == j and t + 3 < 14: o.append(t + 3)
            else: o.append([c for c in range(14) if c not in o and (c < 4 or (c - 3) < t) and not (c >= 4 and (c - 3) % 4 == j)][0])
        assert sorted(o) == list(range(14))
        if p and SIG3 == "rotp": o = [(c + 7) % 14 for c in o]
    val = sum((c + 2) << (4 * t) for t, c in enumerate(o))
    return val & 0xffffffff, val >> 32
ROW1 = opt('row1', 1)
def gen():
    b = B()
    SX, SW, SK, SV, SO, SD = "s[4:7]", "s[8:11]", "s[12:15]", "s[16:19]", "s[20:23]", "s[24:27]"
    SOUT, SX3, SW3 = "s[68:71]", "s[72:75]", "s[76:79]"
    sW, sB, sH, sCnt = "s28", "s29", "s30", "s31"
    sRB, sDB, sDelta, sMask = "s32", "s33", "s34", "s35"
    sXO, sWO, sMX, sMW, sM5, sT, sT2, sT3 = "s36", "s37", "s38", "s39", "s40", "s41", "s42", "s43"
    sW4, sW1, sPB, sKVm, sKVs, sPass, sO0, sO1, sCls = "s44", "s45", "s46", "s47", "s48", "s49", "s50", "s51", "s52"
    sCc, sSpin, sQH, sKH = "s53", "s54", "s56", "s57"
    sBl, sHl, sKq, sEv = "s60", "s61", "s62", "s63"
    sKVx, sRot = "s55", "s66"
    sNon = "s[64:65]"
    sPs = [None, "s82", "s83", "s84"]; sPl = [None, "s85", "s86", "s87"]
    sF1, sOut, sRdy, sF2 = "s88", "s89", "s90", "s91"
    XA = [2, 3]; WA = [4, 5, 6, 7]; VB = [8, 9, 10, 11, 12]; VW = [13, 14, 15, 16]; KVW, NONV, L16 = 17, 18, 20
    ACC = 24; OK = 104; KA = [184, 185, 186, 187]; VA = list(range(188, 196)); NM = 196; LA = 216; L16B = 236; TCH = 237
    XA3 = [238, 239]; ZR = 240; WA3 = [244, 245, 246, 247]; VW3 = [248, 249, 250, 251]; VB3 = [252] * 4 + [253]; OUTV = 255
    SB = [24, 32, 40]; PB = [48, 52, 56]
    OS, QF, KF, VF, ONES, JUNK, K0F = 0, 80, 160, 192, 224, 228, 240
    STG = [VF + 4*i for i in range(8)] + [232, 236]
    AF = [80, 96]; BF = [112, 132]
    ST0 = 53248; STSZ = 36864; LDS = 163840; QEX = 122880
    S3 = [ST0 + STSZ, ST0 + 2*STSZ]
    FL = 256; SPIN = 200000
    MF = "v_mfma_f32_16x16x32_bf16"

    b.raw(".p2align 8")
    b.raw(f".type {NAME},@function")
    b.label(NAME)
    b("s_cmp_ge_u32 s2, 256")
    b("s_cbranch_scc1 L_end")
    b.track = False
    b("s_load_dwordx4 s[4:7], s[0:1], 0")
    b("s_load_dwordx4 s[8:11], s[0:1], 16")
    b("s_load_dwordx4 s[68:71], s[0:1], 40")
    b("s_load_dwordx2 s[76:77], s[0:1], 32")
    b("s_load_dwordx2 s[20:21], s[0:1], 56")
    b("s_memrealtime s[64:65]")
    if STAMPS: b.raw(f"{TIMER} s[94:95]")
    if TRACE: b.raw("s_memtime s[98:99]"); b.raw("s_mov_b32 s100, 0")
    b.track = True
    b("v_and_b32 v1, 63, v0\nv_lshrrev_b32 v21, 6, v0")
    b(f"s_and_b32 {sB}, s2, 1\ns_lshl_b32 {sB}, {sB}, 2\ns_lshr_b32 {sT}, s2, 3\ns_and_b32 {sBl}, {sT}, 3\ns_add_u32 {sB}, {sB}, {sBl}")
    b(f"v_readfirstlane_b32 {sW}, v21")
    b(f"s_lshr_b32 {sKq}, s2, 1\ns_and_b32 {sKq}, {sKq}, 3\ns_lshl_b32 {sH}, {sKq}, 3\ns_lshr_b32 {sHl}, {sT}, 2\ns_add_u32 {sH}, {sH}, {sHl}")
    b(f"s_add_u32 {sCls}, {sBl}, {sHl}\ns_and_b32 {sCls}, {sCls}, 3")
    T = tables(SIG)
    b(f"s_mov_b32 s58, {T[0][0]}\ns_mov_b32 s59, {T[0][1]}\ns_mov_b32 {sMask}, {T[0][2]}")
    for j in (1, 2, 3):
        b(f"s_cmp_eq_u32 {sCls}, {j}\ns_cselect_b32 s58, {T[j][0]}, s58\ns_cselect_b32 s59, {T[j][1]}, s59\ns_cselect_b32 {sMask}, {T[j][2]}, {sMask}")
    if opt("xoff", 1):
        if opt("xoff", 1) == 1: b(f"s_xor_b32 {sT2}, s2, {sKq}")
        if opt("xoff", 1) == 2: b(f"s_lshr_b32 {sT2}, s2, 7\ns_xor_b32 {sT2}, {sT2}, s2")
        if opt("xoff", 1) == 3: b(f"s_lshr_b32 {sT2}, s2, 7\ns_xor_b32 {sT2}, {sT2}, s2\ns_xor_b32 {sT2}, {sT2}, {sKq}")
        if opt("xoff", 1) == 4: b(f"s_lshr_b32 {sT2}, s2, 7")
        b(f"s_bitcmp1_b32 {sT2}, 0\ns_cselect_b32 {sT2}, 0x88888888, 0\ns_xor_b32 s58, s58, {sT2}\ns_xor_b32 s59, s59, {sT2}")
    b(f"s_lshl_b32 {sW4}, {sW}, 12\ns_lshl_b32 {sW1}, {sW}, 10\ns_and_b32 {sQH}, {sW}, 1\ns_lshr_b32 {sKH}, {sW}, 1")
    b("v_lshrrev_b32 v21, 4, v1")
    b("v_and_b32 v22, 7, v1\nv_xor_b32 v22, v22, v21\nv_lshlrev_b32 v22, 4, v22")
    b("v_lshrrev_b32 v23, 3, v1\nv_lshlrev_b32 v23, 11, v23\nv_add_u32 v22, v22, v23\nv_xor_b32 v23, 64, v22")
    b(f"s_lshl_b32 {sT}, {sW}, 16")
    for q in range(4):
        b(f"s_add_u32 {sT2}, {sT}, {q*(16384-1024)}\nv_add_u32 v{VB[q]}, {sT2}, v{23 if q & 1 else 22}")
    b(f"s_lshl_b32 {sT}, {sQH}, 6\nv_xor_b32 v{VB[4]}, {sT}, v22\ns_lshl_b32 {sT}, {sW}, 14\ns_add_u32 {sT}, {sT}, {16*16384}\nv_add_u32 v{VB[4]}, {sT}, v{VB[4]}")
    b("v_lshlrev_b32 v22, 1, v21\nv_and_b32 v23, 15, v1\nv_xor_b32 v22, v22, v23\nv_lshlrev_b32 v22, 4, v22")
    b(f"v_lshlrev_b32 v23, 13, v21\nv_add_u32 v23, v23, v22\nv_xor_b32 v{L16}, 128, v23")
    b(f"s_lshl_b32 {sT}, {sW}, 17")
    for q in range(4):
        b(f"s_add_u32 {sT2}, {sT}, {q*(32768-1024)}\nv_add_u32 v{VW[q]}, {sT2}, v{L16 if q & 2 else 23}")
    b(f"s_add_u32 {sM5}, {sW1}, 16384")
    b(f"s_lshl_b32 {sT}, {sB}, 5\ns_add_u32 {sT}, {sT}, {sH}\ns_lshl_b32 {sT}, {sT}, 17\ns_lshl_b32 {sT2}, {sH}, 8\ns_mul_i32 {sT3}, {sB}, 327680")
    b.raw("s_waitcnt lgkmcnt(0)")
    b(f"s_add_u32 s12, s6, {sT}\ns_addc_u32 s13, s7, 0")
    b(f"s_add_u32 s16, s8, {sT}\ns_addc_u32 s17, s9, 0")
    b(f"s_add_u32 s8, s10, {sT2}\ns_addc_u32 s9, s11, 0\ns_sub_u32 s10, 8388608, {sT2}\ns_mov_b32 s11, 0x20000")
    b(f"s_add_u32 s4, s4, {sT3}\ns_addc_u32 s5, s5, 0\ns_mov_b32 s6, 327680\ns_mov_b32 s7, 0x20000")
    def dma_lists(vw, sw, vb, sx, fl=""):
        return ([f"buffer_load_dwordx4 v{vw[q]}, {sw}, {sWO} offen offset:{q*1024} lds" for q in range(4)],
                [f"buffer_load_dwordx4 v{vb[q]}, {sx}, {sXO} offen offset:{q*1024} {fl} lds" for q in range(4)] +
                [f"buffer_load_dwordx4 v{vb[4]}, {sx}, {sXO} offen {fl} lds"])
    DW, DX = dma_lists(VW, SW, VB, SX)
    DW3, DX3 = dma_lists(VW3, SW3, VB3, SX3, H1L)
    def first_stage(st):
        base = ST0 + ((st+2)%3)*STSZ
        b(f"s_and_b32 {sT}, s58, 15\ns_add_u32 m0, {sW4}, {base+20480}\ns_lshl_b32 {sWO}, {sT}, 19")
        for x in DW: b(x)
        b(f"s_add_u32 m0, {sW4}, {base}\ns_lshl_b32 {sXO}, {sT}, 7")
        for x in DX[:4]: b(x)
    def first_stage_last(st):
        base = ST0 + ((st+2)%3)*STSZ
        b(f"s_add_u32 m0, {sM5}, {base}\ns_lshr_b64 s[58:59], s[58:59], 4")
        b(DX[4])
    if opt("sta", 0) == 1: stamp(b, 15)
    first_stage(0)
    if not opt("late5", 0): first_stage_last(0)
    if opt("sta", 0) == 2: stamp(b, 15)
    if STAMPS: b.raw("v_writelane_b32 v254, s94, 0"); b.raw("v_writelane_b32 v254, s95, 1")
    if opt("ctouch", 0):
        b.raw("s_getpc_b64 s[92:93]")
        b(f"s_lshr_b32 {sT}, s2, 3\ns_lshl_b32 {sT}, {sT}, 2\ns_add_u32 {sT}, {sT}, {sW}\ns_lshl_b32 {sT}, {sT}, 7\nv_mov_b32 v24, {sT}")
        b.raw(f"global_load_dword a{JUNK}, v24, s[92:93]")
    b(f"s_mov_b32 {sRB}, {ST0 + 2*STSZ}\ns_mov_b32 {sCnt}, 0\ns_mov_b32 {sDB}, {ST0 + STSZ}\ns_mov_b32 {sEv}, 0")
    b("v_and_b32 v26, 15, v1\nv_lshrrev_b32 v27, 1, v26\nv_xor_b32 v27, v27, v21\nv_lshlrev_b32 v27, 4, v27\nv_lshlrev_b32 v25, 7, v26\nv_add_u32 v27, v27, v25")
    b(f"s_mul_i32 {sT}, {sQH}, 10240\ns_add_u32 {sT}, {sT}, {sRB}")
    for u in range(2): b(f"v_xor_b32 v{XA[u]}, {u*64}, v27\nv_add_u32 v{XA[u]}, {sT}, v{XA[u]}")
    b("v_lshrrev_b32 v30, 2, v1\nv_and_b32 v31, 7, v30\nv_and_b32 v26, 3, v30")
    b(f"s_lshl_b32 {sT}, {sKH}, 2\nv_xor_b32 v27, {sT}, v31\nv_lshlrev_b32 v27, 5, v27")
    b("v_lshlrev_b32 v25, 3, v21\nv_add_u32 v28, v25, v26\nv_lshlrev_b32 v28, 8, v28")
    b("v_and_b32 v29, 3, v1\nv_lshlrev_b32 v29, 3, v29\nv_add3_u32 v28, v28, v27, v29")
    b(f"s_add_u32 {sT}, {sRB}, 20480")
    for d in range(4): b(f"v_xor_b32 v{WA[d]}, {d*32}, v28\nv_add_u32 v{WA[d]}, {sT}, v{WA[d]}")
    b("v_lshlrev_b32 v23, 8, v21\nv_add_u32 v22, v22, v23")
    b(f"s_lshl_b32 {sT}, {sQH}, 7\nv_xor_b32 v{KVW}, {sT}, v22\nv_add_u32 v{KVW}, {sW1}, v{KVW}")
    ROT = opt("rot", 3)
    if ROT == 0: b(f"s_mov_b32 {sRot}, 0")
    if ROT == 1: b(f"s_lshr_b32 {sRot}, s2, 3\ns_lshl_b32 {sT}, s2, 2\ns_add_u32 {sRot}, {sRot}, {sT}\ns_and_b32 {sRot}, {sRot}, 31\ns_lshl_b32 {sRot}, {sRot}, 12")
    if ROT == 2: b(f"s_and_b32 {sRot}, {sH}, 31\ns_lshl_b32 {sRot}, {sRot}, 12")
    if ROT == 3: b(f"s_mul_i32 {sRot}, s2, 0x9E3779B1\ns_lshr_b32 {sRot}, {sRot}, 27\ns_lshl_b32 {sRot}, {sRot}, 12")
    b(f"s_mov_b32 {sKVm}, {sW1}\ns_mov_b32 {sKVs}, 0\ns_mov_b32 {sKVx}, {sRot}")
    b("s_mov_b32 s14, 131072\ns_mov_b32 s15, 0x20000\ns_mov_b32 s18, 131072\ns_mov_b32 s19, 0x20000")
    b(f"s_mov_b32 s22, {268435456 if STAMPS else WSREC}\ns_mov_b32 s23, 0x20000")
    b("s_mov_b32 s24, s70\ns_mov_b32 s25, s71\ns_mov_b32 s26, 256\ns_mov_b32 s27, 0x20000")
    b(f"s_add_u32 s68, s68, {sT3}\ns_addc_u32 s69, s69, 0\ns_mov_b32 s70, 327680\ns_mov_b32 s71, 0x20000")
    b(f"s_lshl_b32 {sT}, {sB}, 2\ns_add_u32 {sT}, {sT}, {sKq}\ns_mul_i32 {sT}, {sT}, 327680\ns_add_u32 s72, s20, {sT}\ns_addc_u32 s73, s21, 0\ns_mov_b32 s74, 327680\ns_mov_b32 s75, 0x20000")
    b(f"s_lshl_b32 {sT}, {sKq}, 13\ns_add_u32 {sT}, {sT}, {sHl}\ns_lshl_b32 {sT}, {sT}, 8\ns_add_u32 s76, s76, {sT}\ns_addc_u32 s77, s77, 0\ns_sub_u32 s78, 8388608, {sT}\ns_mov_b32 s79, 0x20000")
    if opt("sta", 0) == 3: stamp(b, 15)
    SENT = 0; F2W = opt("f2w", 0); CLR = 2

    def zero(r):
        big = int(r.split(":")[1][:-1]) - int(r.split("[")[1].split(":")[0]) == 15
        return f"{'v_mfma_f32_32x32x16_bf16' if big else MF} {r}, {vr(ZR,4)}, {vr(ZR,4)}, 0"
    ZEROS = [zero(vr(OK+16*i, 16)) for i in range(5)] + [zero(ar(OS+16*i, 16)) for i in range(5)] + [zero(vr(LA, 16)), zero(vr(LA+16, 4))]
    def p2_addr():
        b("v_lshrrev_b32 v21, 4, v1\nv_and_b32 v22, 7, v1\nv_lshlrev_b32 v22, 1, v22\nv_xor_b32 v22, v22, v21\nv_lshlrev_b32 v22, 4, v22")
        b("v_and_b32 v23, 15, v1\nv_lshlrev_b32 v23, 8, v23\nv_add_u32 v22, v22, v23")
        b(f"s_lshl_b32 {sT}, {sKH}, 14")
        for d in range(4): b(f"v_xor_b32 v{KA[d]}, {d*64}, v22\nv_add_u32 v{KA[d]}, {sT}, v{KA[d]}")
        b(f"v_lshrrev_b32 v21, 2, v1\nv_and_b32 v22, 7, v21\ns_lshl_b32 {sT2}, {sKH}, 2\nv_xor_b32 v22, {sT2}, v22\nv_lshlrev_b32 v22, 5, v22")
        b("v_lshlrev_b32 v21, 8, v21\nv_and_b32 v23, 3, v1\nv_lshlrev_b32 v23, 3, v23\nv_add3_u32 v22, v22, v21, v23")
        b(f"s_add_u32 {sT}, {sT}, 4096")
        for j in range(8): b(f"v_xor_b32 v{VA[j]}, {j*32}, v22\nv_add_u32 v{VA[j]}, {sT}, v{VA[j]}")
        b(f"s_mov_b32 {sPB}, 0")
    def spread(i0, extra):
        code = b.L[i0:]; b.L = b.L[:i0]
        step = max(1, len(code) // (len(extra) + 1))
        for i, ln in enumerate(code):
            if i % step == 0 and 1 <= i // step <= len(extra): b.L.append(extra[i // step - 1])
            b.L.append(ln)
    def setup_a():
        for i in range(4): b(f"v_mov_b32 v{ZR+i}, 0")
        b(f"v_lshlrev_b32 v{L16}, 4, v1\nv_add_u32 v{L16B}, 4096, v{L16}")
        b(f"s_or_b32 {sT}, s2, {sW}\ns_cmp_lg_u32 {sT}, 0")
        b("s_cbranch_scc1 L_nonon")
        b(f"s_or_b32 s64, s64, 1\nv_mov_b32 v22, s64\nv_mov_b32 v23, s65")
        b(f"buffer_store_dwordx2 v[22:23], v{ZR}, {SD}, 0 offen sc0 sc1")
        b.label("L_nonon")
        i0 = len(b.L)
        p2_addr()
        b("v_mov_b32 v21, 0x3f803f80")
        if ROW1: b("v_and_b32 v22, 15, v1\nv_cmp_eq_u32 s[92:93], 0, v22\nv_cndmask_b32 v21, 0, v21, s[92:93]")
        for i in range(4): b(f"v_accvgpr_write_b32 a{ONES+i}, v21")
        b(f"s_mov_b32 {sPass}, 0\ns_mov_b32 {sCc}, {f32bits(math.log2(math.e) / math.sqrt(128.0))}")
        spread(i0, ZEROS[:6])
    def setup_b():
        i0 = len(b.L)
        b("v_lshrrev_b32 v21, 4, v1\nv_lshlrev_b32 v22, 1, v21\nv_and_b32 v23, 15, v1\nv_xor_b32 v22, v22, v23\nv_lshlrev_b32 v22, 4, v22")
        b(f"v_lshlrev_b32 v23, 11, v23\nv_lshlrev_b32 v{OUTV}, 3, v21\nv_add_u32 v{OUTV}, v{OUTV}, v23")
        b(f"v_lshlrev_b32 v23, 11, v21\nv_add_u32 v23, v23, v22\nv_xor_b32 v22, 128, v23\ns_lshl_b32 {sT}, {sW}, 15")
        for q in range(4):
            b(f"s_add_u32 {sT2}, {sT}, {q*(8192-1024)}\nv_add_u32 v{VW3[q]}, {sT2}, v{22 if q & 1 else 23}")
        b(f"v_add_u32 v{VB3[0]}, {sW4}, v{L16}\nv_add_u32 v{VB3[4]}, {sM5}, v{L16}")
        b(f"s_mul_i32 {sT}, {sQH}, 5120\ns_add_u32 {sT}, {sT}, {S3[0]}\nv_add_u32 v{XA3[0]}, {sT}, v{L16}\nv_add_u32 v{XA3[1]}, 10240, v{XA3[0]}")
        b(f"v_lshrrev_b32 v21, 2, v1\nv_and_b32 v22, 7, v21\ns_lshl_b32 {sT}, {sKq}, 1\ns_add_u32 {sT}, {sT}, {sKH}\nv_xor_b32 v22, {sT}, v22\nv_lshlrev_b32 v22, 5, v22")
        b("v_lshlrev_b32 v21, 8, v21\nv_and_b32 v23, 3, v1\nv_lshlrev_b32 v23, 3, v23\nv_add3_u32 v22, v22, v21, v23")
        for d in range(4): b(f"v_xor_b32 v{WA3[d]}, {d*64}, v22\nv_add_u32 v{WA3[d]}, {S3[0]+20480}, v{WA3[d]}")
        b(f"s_lshl_b32 {sOut}, {sT}, 5\ns_mul_i32 {sT2}, {sQH}, 163840\ns_add_u32 {sOut}, {sOut}, {sT2}\ns_lshl_b32 {sT3}, {sHl}, 8\ns_add_u32 {sOut}, {sOut}, {sT3}")
        b(f"s_mov_b32 s80, {order3(0,0)[0]}\ns_mov_b32 s81, {order3(0,0)[1]}")
        for bb in range(1, 8 if SIG3 == "rotp" else 4):
            b(f"s_cmp_eq_u32 {sB if SIG3 == 'rotp' else sBl}, {bb}\ns_cselect_b32 s80, {order3(bb & 3, bb >> 2)[0]}, s80\ns_cselect_b32 s81, {order3(bb & 3, bb >> 2)[1]}, s81")
        b(f"s_mul_i32 {sT}, {sHl}, 0x22222222\ns_xor_b32 s80, s80, {sT}\ns_xor_b32 s81, s81, {sT}")
        if TOUCH == 1:
            if THALF: b(f"s_lshr_b32 {sT}, s2, 3\ns_lshl_b32 {sT}, {sT}, 1\ns_and_b32 {sT2}, s2, 1\ns_add_u32 {sT}, {sT}, {sT2}\ns_lshl_b32 {sT}, {sT}, 15")
            else: b(f"s_lshr_b32 {sT}, s2, 3\ns_lshl_b32 {sT}, {sT}, 16")
            b(f"s_sub_u32 {sT}, {sT}, {sT3}\ns_lshl_b32 {sT2}, {sW}, {13 if THALF else 14}\ns_add_u32 {sT}, {sT}, {sT2}")
            b(f"v_cmp_gt_u32 s[92:93], {TL}, v1\nv_lshlrev_b32 v21, 7, v1\nv_add_u32 v21, {sT}, v21\nv_mov_b32 v22, 0x40000000\nv_cndmask_b32 v{TCH}, v22, v21, s[92:93]")
        if TOUCH == 8:
            b(f"s_and_b32 {sT}, s80, 14\ns_lshl_b32 {sT}, {sT}, 17\ns_lshl_b32 {sT2}, {sW}, 16\ns_add_u32 {sT}, {sT}, {sT2}")
            b(f"v_lshrrev_b32 v21, 1, v1\nv_lshlrev_b32 v21, 11, v21\nv_and_b32 v22, 1, v1\nv_lshlrev_b32 v22, 7, v22\nv_add3_u32 v{TCH}, v21, v22, {sT}")
        if TOUCH == 7:
            b(f"s_and_b32 {sT}, s80, 15\ns_lshl_b32 {sT}, {sT}, 17\ns_lshl_b32 {sT2}, {sW}, 15\ns_add_u32 {sT}, {sT}, {sT2}")
            b(f"v_lshrrev_b32 v21, 1, v1\nv_lshlrev_b32 v21, 11, v21\nv_and_b32 v22, 1, v1\nv_lshlrev_b32 v22, 7, v22\nv_add3_u32 v21, v21, v22, {sT}")
            b(f"v_lshrrev_b32 v22, 5, v1\nv_lshlrev_b32 v22, 30, v22\nv_add_u32 v{TCH}, v21, v22")
        spread(i0, ZEROS[6:])
    def setup_c():
        b(f"s_mul_i32 {sT}, {sB}, 1310720\ns_lshl_b32 {sT2}, {sH}, 1\ns_add_u32 {sT2}, {sT2}, {sKH}\ns_mul_i32 {sT2}, {sT2}, 20480\ns_add_u32 {sO0}, {sT}, {sT2}")
        b(f"s_mul_i32 {sT2}, {sQH}, 5120\ns_add_u32 {sO0}, {sO0}, {sT2}\ns_add_u32 {sO1}, {sO0}, 10240")
        b(f"s_lshl_b32 {sT}, {sB}, 2\ns_add_u32 {sT}, {sT}, {sKq}\ns_mul_i32 {sT}, {sT}, {FS1}\ns_add_u32 {sF1}, {sT}, {FLG1}")
        b(f"s_lshl_b32 {sT}, {sB}, 3\ns_add_u32 {sT}, {sT}, {sHl}\ns_lshl_b32 {sF2}, {sT}, 2")
        if F2W: b(f"s_add_u32 {sF2}, {sF2}, {sW}")
        b(f"s_mul_i32 {sF2}, {sF2}, {FS2}\ns_add_u32 {sF2}, {sF2}, {FLG2}")
        b(f"s_mul_i32 {sT}, {sT}, {16*PSL}\ns_mul_i32 {sT2}, {sW}, {PSL//4}\ns_add_u32 {sT}, {sT}, {sT2}\ns_add_u32 {sT}, {sT}, {PART}")
        for d in (1, 2, 3):
            b(f"s_xor_b32 {sT2}, {sKq}, {d}\ns_lshl_b32 {sT3}, {sT2}, 2\ns_add_u32 {sT3}, {sT3}, {sKq}\ns_mul_i32 {sT3}, {sT3}, {PSL}\ns_add_u32 {sPs[d]}, {sT}, {sT3}")
            b(f"s_lshl_b32 {sT3}, {sKq}, 2\ns_add_u32 {sT3}, {sT3}, {sT2}\ns_mul_i32 {sT3}, {sT3}, {PSL}\ns_add_u32 {sPl[d]}, {sT}, {sT3}")
        b("v_lshrrev_b32 v21, 5, v1\nv_lshlrev_b32 v21, 8, v21\nv_and_b32 v22, 15, v1\nv_lshlrev_b32 v22, 4, v22\nv_lshrrev_b32 v23, 1, v1\nv_and_b32 v23, 8, v23\nv_add3_u32 v21, v21, v22, v23")
        b(f"s_mul_i32 {sT2}, {sQH}, 20480\ns_add_u32 {sT2}, {sT2}, {QEX}\nv_add_u32 v22, {sT2}, v{L16}\ns_lshl_b32 {sT3}, {sKH}, 11\ns_add_u32 {sT2}, {sT2}, {sT3}\nv_add_u32 v21, {sT2}, v21")
        b("v_and_b32 v23, 48, v1")

    if opt("early", 0):
        setup_a(); setup_b(); setup_c()
    first_stage(1); first_stage_last(1)
    for r in [L16B, TCH, ZR, OUTV] + VW3 + [VB3[0], VB3[4]]: b(f"v_mov_b32 v{r}, 0")
    b.vm = []
    b.raw("s_waitcnt vmcnt(9)")
    stamp(b, 1)

    def g_mfmas(buf, dord=(0, 1, 2, 3), c0=False):
        return [f"{MF} {vr(ACC+(d*5+q)*4,4)}, {ar(AF[buf]+4*d,4)}, {ar(BF[buf]+4*q,4)}, {'0' if c0 else vr(ACC+(d*5+q)*4,4)}" for d in dord for q in range(5)]
    def emit(x):
        if callable(x): x()
        else: b(x)
    def g_step(ph, dm, fill, first=False, more=(), bar=True, last=20):
        if bar:
            trace(b); b("s_barrier"); trace(b)
        vs, qs = ((1024, 2048), (4096, 1024))[ph == 3]
        xa, wa = (XA, WA) if ph == 1 else (XA3, WA3)
        more = list(more)
        for u in range(2):
            A = lambda d: [f"ds_read_b64_tr_b16 {ar(AF[u]+4*d+2*v,2)}, v{wa[d]} offset:{u*8192+v*vs}" for v in range(2)]
            rd = A(0) + [f"ds_read_b128 {ar(BF[u]+4*q,4)}, v{xa[u]} offset:{q*qs}" for q in range(5)] + A(1) + A(2) + A(3)
            mf = g_mfmas(u ^ 1, c0=first)
            if first and u == 0:
                for s in rd: b(s)
                rd = []
            for i in range(20 if u == 0 else last):
                if not (first and u == 0): b(mf[i])
                if (u, i) in dm: b(dm[(u, i)])
                elif rd: b(rd.pop(0))
                elif more: b(more.pop(0))
                for s in fill.get((u, i), []): emit(s)
                if u == 0 and i == 18: need(b, [ar(AF[0], 8), ar(BF[0], 20)])
                if u == 1 and i == 4: need(b, [ar(AF[0], 16)])
            assert not rd
        return more
    va = lambda r: f"v_add_u32 v{r}, {sDelta}, v{r}"
    def ringf(ph):
        xa, wa = (XA, WA) if ph == 1 else (XA3, WA3)
        return {(0, 7): [f"s_add_u32 {sT2}, {sRB}, {STSZ}"], (0, 9): [f"s_cmp_ge_u32 {sT2}, {LDS}"], (0, 10): [f"s_cselect_b32 {sT2}, {ST0}, {sT2}"],
                (0, 11): [f"s_sub_u32 {sDelta}, {sT2}, {sRB}"], (0, 14 if not opt("dg", 0) else 12): [va(xa[0])],
                (1, 2): [va(wa[0])], (1, 7): [va(xa[1])], (1, 10): [va(wa[1])], (1, 12): [va(wa[2])], (1, 15): [va(wa[3])]}
    DG = [(0, 4), (0, 8), (0, 12), (0, 16), (0, 19), (1, 9), (1, 13), (1, 16), (1, 18)]
    if opt("dg", 0) == 1: DG = [(0, 13), (0, 14), (0, 15), (0, 16), (0, 19), (1, 9), (1, 13), (1, 16), (1, 18)]
    def loopf(ph):
        f = ringf(ph)
        sg = "s58" if ph == 1 else "s80"; sgp = "s[58:59]" if ph == 1 else "s[80:81]"
        f.update({(0, 0): [f"s_and_b32 {sT}, {sg}, 15"], (0, 1): [f"s_lshl_b32 {sWO}, {sT}, {19 if ph == 1 else 17}"],
                  (0, 2): [f"s_add_u32 {sMX}, {sDB}, {sW4}"], (0, 3): [f"s_add_u32 m0, {sMX}, 20480"],
                  (0, 5): [f"s_lshl_b32 {sXO}, {sT}, 7" if ph == 1 else f"s_mul_i32 {sXO}, {sT}, 20480"],
                  (0, 6): [f"s_lshr_b64 {sgp}, {sgp}, 4"], (0, 17): [f"s_mov_b32 m0, {sMX}"],
                  (1, 0): [f"s_add_u32 {sMW}, {sDB}, {sM5}"], (1, 1): [f"s_mov_b32 {sDB}, {sRB}"], (1, 3): [f"s_mov_b32 {sRB}, {sT2}"],
                  (1, 5): [f"s_add_u32 {sCnt}, {sCnt}, 1"], (1, 6): [f"s_cmp_lt_u32 {sCnt}, 14"], (1, 8): ["s_cselect_b64 vcc, -1, 0"],
                  (1, 17): [f"s_mov_b32 m0, {sMW}"] + ([f"s_bitcmp1_b32 {sMask}, {sCnt}"] if ph == 1 else [])})
        return f
    EB1 = opt("eb1", 0); EB3 = opt("eb3", 0); BP = opt("bp", 17)
    DGE = [(0, 4), (0, 8), (0, 12), (0, 16), (1, 13), (1, 14), (1, 15), (1, 16), (0, 19)]
    def loope(ph, sync):
        f = loopf(ph)
        f[(0, 15)] = f.pop((1, 0)); f[(0, 17)] = [f"s_mov_b32 m0, {sMW}"]
        f[(1, 9)] = f.pop((1, 10)); f[(1, 11)] = f.pop((1, 12)); f[(1, 10)] = [f"s_mov_b32 m0, {sMX}"]
        w3 = f.pop((1, 15)); f.pop((1, 17))
        if ph == 1: f[(1, 12)] = [f"s_bitcmp1_b32 {sMask}, {sCnt}"]
        f[(1, BP)] = [sync]
        f.setdefault((1, 19 if BP == 18 else 18), []).extend(w3)
        return f
    def auto(ph, gaps, hook=None):
        xa, wa = (XA, WA) if ph == 1 else (XA3, WA3)
        sg = "s58" if ph == 1 else "s80"; sgp = "s[58:59]" if ph == 1 else "s[80:81]"
        rp = [[g for g in range(20*u, 20*u + 20) if g not in gaps][:13] for u in range(2)]
        it = [(f"s_and_b32 {sT}, {sg}, 15", 0, gaps[0]-1), (f"s_lshl_b32 {sWO}, {sT}, {19 if ph == 1 else 17}", 0, gaps[0]-1),
              (f"s_add_u32 m0, {sMX}, 20480", 0, gaps[0]-1),
              (f"s_lshl_b32 {sXO}, {sT}, 7" if ph == 1 else f"s_mul_i32 {sXO}, {sT}, 20480", 0, gaps[4]-1)]
        if ph == 3: it.append((f"s_lshr_b32 {sT3}, {sT}, 1", 0, gaps[4]-2))
        it += [(f"s_lshr_b64 {sgp}, {sgp}, 4", 0, 39), (f"s_add_u32 {sT2}, {sRB}, {STSZ}", 0, 39), (f"s_cmp_ge_u32 {sT2}, {LDS}", 0, 39),
               (f"s_cselect_b32 {sT2}, {ST0}, {sT2}", 0, 39), (f"s_sub_u32 {sDelta}, {sT2}, {sRB}", 0, 39), (va(xa[0]), rp[0][6], 39),
               (f"s_mov_b32 m0, {sMX}", gaps[3]+1, gaps[4]-1)]
        if ph == 3: it += [(f"s_bitcmp0_b32 {sRdy}, {sT3}", 0, gaps[4]-1), (hook, 0, gaps[4]-1)]
        it += [(f"s_add_u32 {sMW}, {sDB}, {sM5}", 0, 39), (f"s_add_u32 {sMX}, {sRB}, {sW4}", 0, 39), (f"s_mov_b32 {sDB}, {sRB}", 0, 39), (va(wa[0]), rp[1][1], 39),
               (f"s_mov_b32 {sRB}, {sT2}", 0, 39), (f"s_add_u32 {sCnt}, {sCnt}, 1", 0, 39), (f"s_cmp_lt_u32 {sCnt}, 14", 0, 39),
               ("s_cselect_b64 vcc, -1, 0", 0, 39), (va(xa[1]), rp[1][6], 39), (va(wa[1]), rp[1][8], 39), (va(wa[2]), rp[1][10], 39)]
        late = [(f"s_mov_b32 m0, {sMW}", gaps[7]+1, gaps[8]-1), (va(wa[3]), rp[1][12], 39)]
        late.sort(key=lambda x: x[1])
        it += late
        if ph == 1: it.append((f"s_bitcmp1_b32 {sMask}, {sCnt}", 0, 39))
        cap = {g: (0 if g in gaps else 1 if g in rp[0] + rp[1] else 3) for g in range(40)}
        cap[18] -= 1; cap[24] -= 1
        fill = {}; g = 0
        for k, (ins, lo, hi) in enumerate(it):
            hi = min([hi] + [x[2] for x in it[k+1:]])
            g = max(g, lo)
            while g < hi and cap[g] <= 0: g += 1
            while g in gaps and g > max(lo, 0) and g >= hi: g -= 1
            assert g <= hi, (ins, g, hi)
            cap[g] -= 1
            fill.setdefault(divmod(g, 20), []).append(ins)
        return [divmod(g, 20) for g in gaps], fill
    AG = [int(x) for x in opt("ag", "0").split(".")]
    def first_fill(ph):
        f = loopf(ph); g = {}
        g[(0, 0)] = sum([f[(0, i)] for i in (0, 1, 2, 3, 5, 6, 7, 9, 10, 11, 14 if not opt('dg', 0) else 12)], []) + f[(1, 0)] + f[(1, 1)] + f[(1, 3)] + f[(1, 5)] + f[(1, 6)] + f[(1, 8)]
        return f, g
    f, g = first_fill(1)
    DG0 = [(1, 13), (1, 14), (1, 15), (1, 16)]
    g.update({(1, 2): f[(1, 2)], (1, 7): f[(1, 7)], (1, 9): f[(1, 10)], (1, 11): f[(1, 12)], (1, 17): f[(1, 15)] + f[(0, 17)]})
    if EB1:
        for i in range((BP + 1) * 4, 80): b(f"v_mov_b32 v{ACC+i}, 0")
        g[(1, 17)] = f[(0, 17)]
        g_step(1, dict(zip(DG0, DW)), g, first=True, last=BP + 1)
        for x in DX[:4]: b(x)
        b(f"s_mov_b32 m0, {sMW}\ns_bitcmp1_b32 {sMask}, {sCnt}"); b(DX[4])
        b("s_branch L_p1end")
        def sync1():
            b.label("L_p1end")
            b("s_cbranch_scc1 L_aux")
            b.wait(lg=0, vm=9)
            b.label("L_auxback")
            trace(b)
            b("s_barrier")
            trace(b)
        b.raw(f".p2align {opt('al', 3)}")
        b.label("L_p1")
        b.lg = []
        i0 = len(b.L)
        g_step(1, dict(zip(DGE, DW + DX)), loope(1, sync1), bar=False)
        b("s_cbranch_vccnz L_p1")
    else:
        g_step(1, dict(zip(DG0 + [(1, 18), (1, 19)], DW + DX[:2])), g, first=True)
        b(DX[2]); b(DX[3]); b(f"s_mov_b32 m0, {sMW}\ns_add_u32 {sMX}, {sDB}, {sW4}\ns_bitcmp1_b32 {sMask}, {sCnt}"); b(DX[4])
        b("s_branch L_p1end")
        b.raw(f".p2align {opt('al', 3)}")
        b.label("L_p1")
        b.lg = []
        i0 = len(b.L)
        if len(AG) == 9:
            dg, ff = auto(1, AG)
            g_step(1, dict(zip(dg, DW + DX)), ff)
        else: g_step(1, dict(zip(DG, DW + DX)), loopf(1))
        b.label("L_p1end")
        b("s_cbranch_scc1 L_aux")
        b.wait(lg=0, vm=9)
        b.label("L_auxback")
        b("s_cbranch_vccnz L_p1")
    print("gemm step estimate", estimate(b.L[i0:], verbose=VERB))
    b.vm = []
    stamp(b, 2)
    KLD = f"buffer_load_dwordx4 v{KVW}, {SK}, {sKVx} offen {KVFL} lds"
    VLD = f"buffer_load_dwordx4 v{KVW}, {SV}, {sKVx} offen {KVFL} lds"
    M0K = f"s_mov_b32 m0, {sKVm}"; M0V = f"s_add_u32 m0, m0, 4096"
    ADV = [f"s_add_u32 {sKVm}, {sKVm}, 8192", f"s_add_u32 {sKVs}, {sKVs}, 4096"]
    XR = f"s_xor_b32 {sKVx}, {sKVs}, {sRot}"
    def pair():
        b(M0K); b(ADV[0]); b(KLD); b(M0V); b(ADV[1]); b(VLD); b(XR)
    NS = opt("ns", 5)
    n14 = opt("n14", 2); n15 = opt("n15", 2); nq = opt("nq", 2); NPI = opt("npi", 2); IENT = opt("ient", 32 - 6 * NPI); NA = opt("na", 6); npro = IENT - NA - NS - n14 - n15 - nq
    assert n14 <= 4 and n15 <= 4 and 0 <= nq <= 3 and 0 <= npro <= 5 and NA + n14 + n15 + nq <= 15 and NA + n14 <= 11
    pro1 = 1 if npro >= 1 and NA + n14 + n15 + nq < 15 else 0; pro2 = (npro - pro1 + 1) // 2; pro3 = npro - pro1 - pro2
    def k_read(i): return f"ds_read_b128 {ar(KF+4*i,4)}, v{KA[i%4]} offset:{(i//4)*8192}"
    def v_read(j): return [f"ds_read_b64_tr_b16 {ar(VF+4*j+2*v,2)}, v{VA[j]} offset:{v*8192}" for v in range(2)]
    def kv_step(n, extra, more=(), bar=True):
        slots = [((0, 3), (0, 4), (0, 6), (0, 8), (0, 12), (0, 13)), ((0, 15), (0, 16), (0, 17), (0, 19), (1, 0), (1, 1)),
                 ((1, 8), (1, 9), (1, 11), (1, 13), (1, 14), (1, 14)), ((1, 15), (1, 16), (1, 17), (1, 18), (1, 19), (1, 19))]
        dm = {}; f = {k: list(v) for k, v in extra.items()}
        for a, k, c, v, e, e2 in ([slots[0], slots[2]] if n == 2 else slots[:n]):
            f.setdefault(a, []).append(M0K); dm[k] = KLD; f.setdefault(c, []).append(M0V); dm[v] = VLD
            f.setdefault(e, []).append(ADV[0]); f.setdefault(c, []).append(ADV[1]); f.setdefault(e2, []).append(XR)
        return g_step(1, dm, f, more=more, bar=bar)
    kv_step(n14, ringf(1), bar=not EB1)
    if opt("sp", 0):
        setup_a()
        if opt("sp", 0) == 1: setup_b()
        setup_c()
    b.wait(lg=0, vm=2*n14)
    if opt("sta", 0) == 21: stamp(b, 15)
    kfirst = [f"ds_read_b128 {ar(K0F+4*d,4)}, v23 offset:{d*64}" for d in range(4)] + [k_read(i) for i in range(8)]
    more = kv_step(n15, {}, kfirst if NA >= 4 else [])
    need(b, [ar(AF[1], 16), ar(BF[1], 20)])
    b("s_barrier")
    if opt("sta", 0) == 20: stamp(b, 15)
    i0 = len(b.L)
    def pack(t):
        a = ACC + t * 4
        for i in range(4): b(f"v_mul_f32 v{a+i}, {sCc}, v{a+i}")
        b(f"v_cvt_pk_bf16_f32 v{a}, v{a}, v{a+1}\nv_cvt_pk_bf16_f32 v{a+1}, v{a+2}, v{a+3}")
    def qwr(t):
        d, q = divmod(t, 5); a = ACC + t * 4
        b(f"ds_write_b64 v21, {vr(a,2)} offset:{q*4096+(d>>1)*1024+(d&1)*512}")
    mf = g_mfmas(1)
    for i in range(25):
        if i < 20: b(mf[i])
        if i == 0: b(f"buffer_load_dwordx2 {vr(NONV,2)}, v{ZR}, {SD}, 0 offen sc0 sc1")
        elif i < 4:
            for k in range(2):
                if more: b(more.pop(0))
        if i in ((4, 14) if nq == 2 else (4, 11, 18)[:nq]): pair()
        if 0 <= i - 5 < 20: qwr(i - 5)
        if 0 <= i - 4 < 20: pack(i - 4)
    assert not more
    b(f"s_add_u32 {sT}, {sW1}, {(IENT-NS)*8192}\nv_add_u32 v21, {sT}, v{L16}")
    if NA >= 4: b.wait(lg=0)
    else: b.wait(lg=0, vm=min(2 * (NA + n14 + n15 + nq - 4), 2 * (n15 + nq)))
    b("s_barrier")
    print("q pack estimate", estimate(b.L[i0:]))
    stamp(b, 3)
    i0 = len(b.L)
    qr = [f"ds_read_b128 {ar(QF+(q*4+d)*4,4)}, v22 offset:{q*4096+d*1024}" for q in range(5) for d in range(4)]
    if NA < 4: qr = kfirst[:4] + qr + kfirst[4:]
    for i in range(10 if NA >= 4 else 13): b(qr.pop(0))
    if pro1: pair()
    sw = [f"ds_write_b128 v21, {ar(STG[i],4)} offset:{i*4096}" for i in range(2*NS)]
    neg = [f"v_sub_f32 v{NM+i}, 0, v{NM+i}" for i in range(20)]
    for t in range(20):
        q, d = divmod(t, 4)
        b(f"{MF} {vr(NM+4*q,4)}, {ar(K0F+4*d,4)}, {ar(QF+t*4,4)}, {'0' if d == 0 else vr(NM+4*q,4)}")
        if qr: b(qr.pop(0))
        if t == 13:
            need(b, [ar(QF, 80)])
            b("s_barrier")
        if t >= 14 and sw: b(sw.pop(0))
        if t >= 8: b(neg.pop(0))
    for i in range(pro2): pair()

    def col(n): return (0, 1, 0, 1, 2)[n % 5]
    def s_mfma(n, i):
        kt, d = i // 4, i % 4; q = n % 5
        dst = vr(SB[col(n)] + 4*kt, 4)
        return f"{MF} {dst}, {ar(KF+4*i,4)}, {ar(QF+(q*4+d)*4,4)}, {vr(NM+4*q,4) if d == 0 else dst}"
    def oreg(q, j): return vr(OK + (q*4+j)*4, 4) if j < 4 else ar(OS + (q*4+j-4)*4, 4)
    def p_mfma(n, j):
        q = n % 5
        if j == 8: return f"{MF} {vr(LA+4*q,4)}, {ar(ONES,4)}, {vr(PB[col(n)],4)}, {vr(LA+4*q,4)}"
        return f"{MF} {oreg(q,j)}, {ar(VF+4*j,4)}, {vr(PB[col(n)],4)}, {oreg(q,j)}"
    def v_exp(n, e): return f"v_exp_f32 v{SB[col(n)]+e}, v{SB[col(n)]+e}"
    def v_cvt(n, c): return f"v_cvt_pk_bf16_f32 v{PB[col(n)]+c}, v{SB[col(n)]+2*c}, v{SB[col(n)]+2*c+1}"
    NU = 40
    def slot(n, mem=None, sal=None, val=None):
        mem = mem or {}; sal = sal or {}; val = val or {}
        for p in range(17):
            if p < 16 and p % 2 == 0:
                if 0 <= n + 1 < NU: b(s_mfma(n + 1, p // 2))
            elif 0 <= n - 1 < NU: b(p_mfma(n - 1, p // 2))
            for s in mem.get(p, []): b(s)
            for s in sal.get(p, []): emit(s)
            if 0 <= n < NU:
                if p % 2 == 0 and p < 16: b(v_exp(n, p // 2))
                if p % 4 == 3: b(v_cvt(n, p // 4))
            for s in val.get(p, []): b(s)
    VR = [x for j in range(8) for x in v_read(j)]
    for i in range(8):
        b(s_mfma(0, i))
        if i >= 4: b(VR[i - 4])
        elif sw: b(sw.pop(0))
        b(neg.pop(0))
    assert not sw and not neg
    for i in range(pro3): pair()
    if opt("sp", 0) == 2: setup_b()
    if CLR == 1:
        for i in range(4): b(f"v_mov_b32 v{60+i}, -1")
        b(f"v_lshrrev_b32 v64, 1, v{L16}")
        for x in clears(60): b(x)
    b.label("L_p2entry")
    for i in range(8):
        b(s_mfma(1, i))
        b(VR[4 + i])
        if i >= 2 and i % 2 == 0: b(v_cvt(0, i // 2 - 1))
        b(v_exp(0, i))
    b(f"s_add_u32 m0, {sW1}, {(IENT%20)*8192-(4096 if NPI == 2 else 0)}\ns_add_u32 {sEv}, {sW1}, {LDS}\ns_mov_b32 {sKVs}, {IENT*4096}\n{XR}\ns_mov_b32 {sKVm}, 0\ns_mov_b32 {sCnt}, 0")
    b(v_cvt(0, 3))
    if TRACE == 2: b.raw("s_mov_b32 s100, 0")
    print("p2 prologue estimate", estimate(b.L[i0:]))
    stamp(b, 4)
    nd = lambda *ops: (lambda: need(b, ops))
    def merge(*ds):
        out = {}
        for d in ds:
            for k, v in d.items(): out.setdefault(k, []).extend(v)
        return out
    def body():
        INC = "s_add_u32 m0, m0, 4096"
        def ex():
            b("s_cbranch_scc1 L_tail")
            body.exit_state = b.state()
        m1 = {}; s1 = {}; m2 = {}; s2 = {}; m3 = {}; s3 = {}; s5 = {}
        WR = [f"s_cmp_eq_u32 m0, {sEv}", f"s_cselect_b32 m0, {sW1}, m0"]
        if NPI == 2:
            G = [int(x) for x in opt("g4", "1.5.9.13").split(".")]
            m4 = {G[0]: [KLD], G[1]: [VLD], G[2]: [KLD], G[3]: [VLD]}
            s4 = merge({G[0]-1: [INC]}, {G[1]-1: [INC]}, {G[1]+1: [XR]}, {G[2]-1: [INC]}, {G[3]-1: [INC]}, {G[3]+1: [XR]}, {G[0]+1: [ADV[1]]}, {G[2]+1: [ADV[1]]})
            v1 = {9: [va(KA[0]), va(KA[1])], 11: [va(KA[2])], 13: [va(KA[3]), va(VA[0])], 15: [va(VA[1])], 16: [va(VA[2]), va(VA[3])]}
            v2 = {3: [va(VA[4])], 11: [va(VA[5])]}
        elif NPI == 4:
            m4 = {1: [KLD], 5: [VLD], 9: [KLD], 13: [VLD]}; m2 = dict(m4)
            def sq(): return {2: [INC], 3: [ADV[1]], 6: [XR], 7: [INC, WR[0]], 8: [WR[1]], 10: [INC], 11: [ADV[1]]}
            s2 = sq(); s4 = sq()
            s3 = {0: [XR], 2: [INC], 8: [WR[0]], 10: [WR[1]]}; s5 = {0: [XR], 2: [INC], 4: [WR[0]], 6: [WR[1]]}
            v1 = {9: [va(KA[0]), va(KA[1])], 11: [va(KA[2])], 13: [va(KA[3]), va(VA[0])], 15: [va(VA[1])], 16: [va(VA[2]), va(VA[3])]}
            v2 = {3: [va(VA[4])], 11: [va(VA[5])]}
        else:
            m1 = {13: [KLD]}; s5 = {2: [INC], 4: [WR[0]], 6: [WR[1]], 0: [XR]}
            m2 = {5: [VLD], 13: [KLD]}; s2 = {0: [ADV[1]], 2: [INC], 6: [XR], 8: [INC], 10: [WR[0]], 12: [WR[1]]}
            m3 = {16: [VLD]}; s3 = {10: [INC], 8: [ADV[1]]}
            m4 = {9: [KLD], 16: [VLD]}; s4 = {0: [XR], 2: [INC], 4: [WR[0]], 6: [WR[1]], 12: [INC], 10: [ADV[1]]}
            v1 = {9: [va(KA[0]), va(KA[1])], 11: [va(KA[2])], 15: [va(KA[3])], 16: [va(VA[0]), va(VA[1])]}
            v2 = {1: [va(VA[2]), va(VA[3])], 3: [va(VA[4])], 11: [va(VA[5])]}
        if TOUCH == 1:
            assert NPI == 2
            m2[5] = [f"buffer_load_dword a{JUNK}, v{TCH}, {SW3}, {sT} offen"]
            s2 = {0: [f"s_cmp_lt_u32 {sCnt}, {TIT}"], 2: [f"s_cselect_b32 {sT}, {sKVm}, 0x40000000"], 6: [f"s_add_u32 {sKVm}, {sKVm}, {TL*128}"]}
        slot(1, merge({1: [VR[12]], 3: [VR[13]], 5: [VR[14]], 7: [VR[15]]}, m1),
             {0: [nd(ar(VF, 12))], 6: [nd(ar(VF, 24))], 12: [nd(ar(VF, 28))], 14: [nd(ar(VF, 32))],
              2: [f"s_add_u32 {sT2}, {sPB}, 32768"], 4: [f"s_cmp_ge_u32 {sT2}, {LDS}"], 8: [f"s_cselect_b32 {sT2}, 0, {sT2}"],
              9: [f"s_sub_u32 {sDelta}, {sT2}, {sPB}"], 10: [f"s_mov_b32 {sPB}, {sT2}"], 15: [f"s_cmp_eq_u32 {sCnt}, 7"],
              16: [ex]}, v1)
        slot(2, m2, merge(s2, {14: [f"s_cmp_eq_u32 {sCnt}, 6"]}), v2)
        b("s_cbranch_scc1 L_p2late")
        trace(b)
        b.raw(f"s_waitcnt vmcnt({min(opt('vb', 8), 2 * (IENT - 6)) if NPI == 4 else 5 if TOUCH == 1 or NPI == 3 else 4})")
        b.label("L_p2bar")
        if TRACE == 2: trace(b)
        b("s_barrier")
        trace(b)
        slot(3, merge({2*i+1: [k_read(i)] for i in range(8)}, m3),
             merge({6: [f"s_add_u32 {sCnt}, {sCnt}, 1"], 16 if NPI != 3 else 14: [nd(ar(KF, 16 if NPI != 3 else 12))]}, s3), {1: [va(VA[6])], 5: [va(VA[7])]})
        slot(4, m4, merge(s4, {3 if NPI != 4 else 4: [nd(ar(KF, 32))]}))
        slot(5, {1: VR[0:2], 3: [VR[2]], 5: [VR[3]], 7: [VR[4]], 9: VR[5:7], 11: [VR[7]], 13: VR[8:10], 15: [VR[10]], 16: [VR[11]]}, s5)
        b("s_branch L_p2")
        b.vm = []
    b.vm = []
    save = b.L; b.L = []
    body(); st1 = b.state(); t1 = b.L
    b.L = []; body(); st2 = b.state(); t2 = b.L
    assert st1[0] == st2[0]
    if not STAMPS: assert t1 == t2, "loop not steady"
    print("p2 body estimate", estimate(t2, verbose=VERB))
    b.L = save
    b.raw(f".p2align {opt('al', 3)}")
    b.label("L_p2")
    b.L += t2
    b.label("L_p2late")
    if TRACE == 2: trace(b)
    b.raw(f"s_waitcnt vmcnt({min(opt('vb', 8), 2 * (IENT - 6)) if NPI == 4 else 3 if NPI == 3 else 1 if TOUCH == 1 else 0})")
    WE = opt("we", 0)
    if WE:
        assert NPI == 2
        b(f"s_add_u32 m0, {sW4}, {S3[0]+20480}\ns_lshl_b32 {sWO}, {sHl}, 18")
        for x in DW3: b(x)
        b(f"s_add_u32 m0, {sW4}, {S3[1]+20480}\ns_add_u32 {sWO}, {sWO}, 0x20000")
        for x in DW3: b(x)
        b(f"s_mov_b32 m0, {sW1}")
    if TOUCH in (7, 8): b(f"buffer_load_dword a{JUNK}, v{TCH}, {SW3}, 0 offen")
    b("s_branch L_p2bar")
    b.label("L_tail")
    b.set_state(body.exit_state)
    b.vm = []
    b(f"s_mul_i32 {sT}, {sW}, 20480\nv_add_u32 v21, {sT}, v{L16}")
    b.raw("s_waitcnt vmcnt(0)")
    b("s_barrier")
    stamp(b, 5)
    i0 = len(b.L)
    EB = 65536; EXL = 81920 - EB; EXF = 87040 - EB
    LW, LO, LP, FW, FR = 3, 4, 5, 6, 7
    wr = lambda q: [f"ds_write_b128 v21, {ar(OS+(q*4+j)*4,4)} offset:{(q*4+j)*1024}" for j in range(4)]
    lw = lambda q: (lambda: b(f"ds_write_b32 v{LW}, v{LA+4*q} offset:{EXL+q*256}", f"L{q}"))
    RB = [64, 80, 64, 80, 24]
    rd = lambda q: [f"ds_read_b128 {vr(RB[q]+4*j,4)}, v22 offset:{(q*4+j)*1024}" for j in range(4)]
    LR = NM
    lr = lambda q: [f"ds_read_b32 v{LR+2*q}, v{LO} offset:{EXL+q*256}", f"ds_read_b32 v{LR+2*q+1}, v{LP} offset:{EXL+q*256}"]
    linv = lambda q: [f"v_add_f32 v{LR+2*q}, v{LR+2*q}, v{LR+2*q+1}", f"v_rcp_f32 v{LR+2*q}, v{LR+2*q}"]
    def nval(q, pr, packed):
        o = OK + (q*4+2*pr)*4; r = RB[q] + 8*pr
        if packed:
            out = [f"v_pk_add_f32 {vr(o+i,2)}, {vr(o+i,2)}, {vr(r+i,2)}" for i in range(0, 8, 2)]
            out += [f"v_pk_mul_f32 {vr(o+i,2)}, {vr(o+i,2)}, {vr(LR+2*q,2)} op_sel_hi:[1,0]" for i in range(0, 8, 2)]
        else:
            out = [f"v_add_f32 v{o+i}, v{o+i}, v{r+i}" for i in range(8)] + [f"v_mul_f32 v{o+i}, v{LR+2*q}, v{o+i}" for i in range(8)]
        return out + [f"v_cvt_pk_bf16_f32 v{o+i}, v{o+2*i}, v{o+2*i+1}" for i in range(4)]
    def nmem(q, pr):
        o = OK + (q*4+2*pr)*4
        vv, off = (L16, q * 1024) if q < 4 else (L16B, 0)
        return [f"buffer_store_dwordx4 {vr(o,4)}, v{vv}, {SO}, {sO1 if pr else sO0} offen offset:{off} {H1S}",
                f"ds_write_b128 v2, {vr(o,4)} offset:{pr*10240+q*1024}"]
    def chunks(lst, pos):
        n = -(-len(lst) // len(pos))
        return {p: lst[i*n:(i+1)*n] for i, p in enumerate(pos)}
    def meet(q):
        b.wait_tag(lgtag=f"L{q}")
        b("s_barrier")
    w = wr(0)
    slot(37, merge({5 + 2*i: [w[i]] for i in range(4)}, {} if WE else {1: DW3[0:2], 3: DW3[2:4], 13: DW3[0:2], 16: DW3[2:4]}),
         {0: [] if WE else [f"s_add_u32 m0, {sW4}, {S3[0]+20480}", f"s_lshl_b32 {sWO}, {sHl}, 18"],
          11: [] if WE else [f"s_add_u32 m0, {sW4}, {S3[1]+20480}", f"s_add_u32 {sWO}, {sWO}, 0x20000"],
          2: [f"s_xor_b32 {sT2}, {sW}, 2"], 3: [f"s_mul_i32 {sT}, {sT2}, 20480"], 4: [f"s_mul_i32 {sT3}, {sW}, 1280"],
          6: [f"s_add_u32 {sT3}, {sT3}, {EB}"], 8: [f"s_mul_i32 {sT2}, {sT2}, 1280"], 10: [f"s_add_u32 {sT2}, {sT2}, {EB}"],
          12: [f"s_mul_i32 {sMX}, {sKH}, {STSZ}"], 14: [f"s_lshl_b32 {sMW}, {sW}, 2"], 15: [lw(0)]},
         {3: ["v_lshlrev_b32 v23, 2, v1"], 5: [f"v_add_u32 v22, {sT}, v{L16}"], 9: [f"v_add_u32 v{LW}, {sT3}, v23"]})
    b(f"v_and_b32 v23, 60, v23\nv_add_u32 v{LO}, {sT3}, v23\nv_add_u32 v{LP}, {sT2}, v23\nv_add_u32 v2, {sMX}, v{XA3[0]}")
    meet(0)
    if opt("sta", 0) == 10: stamp(b, 15)
    r = lr(0) + rd(0); w = wr(1)
    slot(38, merge({1: r[0:2], 3: r[2:4], 5: r[4:6], 7: [w[0]], 9: [w[1]], 11: [w[2]], 13: [w[3]], 16: nmem(0, 0)}),
         {15: [lw(1)], 0: [f"s_add_u32 {sMW}, {sMW}, {EB}"]},
         merge({7: linv(0)}, chunks(nval(0, 0, False), [9, 11, 13, 15]), {16: nval(0, 1, False)}, {1: [f"v_mov_b32 v{FW}, {sMW}"], 5: [f"v_mov_b32 v{FR}, {EB}"]}))
    meet(1)
    if opt("sta", 0) == 11: stamp(b, 15)
    r = lr(1) + rd(1); w = wr(2)
    slot(39, merge({1: r[0:2] + nmem(0, 1)[:1], 3: r[2:4], 5: r[4:6], 7: [w[0]], 9: [w[1]], 11: [w[2]], 13: [w[3]], 16: nmem(1, 0)}, {15: nmem(0, 1)[1:]}),
         {15: [lw(2)]},
         merge({7: linv(1)}, chunks(nval(1, 0, False), [9, 11, 13, 15]), {16: nval(1, 1, True)}))
    meet(2)
    if opt("sta", 0) == 12: stamp(b, 15)
    r = lr(2) + rd(2); w = wr(3)
    slot(40, merge({1: r[0:2] + nmem(1, 1)[:1], 3: r[2:4], 5: r[4:6], 7: [w[0]], 9: [w[1]], 11: [w[2]], 13: [w[3]]},
                   {15: nmem(1, 1)[1:]}),
         {15: [lw(3)]}, {13: linv(2)})
    for x in nval(2, 0, True): b(x)
    for x in wr(4): b(x)
    lw(4)()
    b(nmem(2, 0)[0])
    b(f"v_add_f32 v8, v{LA}, v{LA+4}\nv_add_f32 v9, v{LA+8}, v{LA+12}\nv_add_f32 v8, v8, v{LA+16}\nv_add_f32 v8, v8, v9")
    thr = f32bits(2.0 ** 40) if not FORCE_SLOW else f32bits(-1.0)
    b(f"v_cmp_nge_f32 vcc, {thr}, v8")
    b(f"s_cmp_lg_u64 vcc, 0\ns_cselect_b32 {sT}, 1, 0\nv_mov_b32 v8, {sT}")
    b(f"ds_write_b32 v{FW}, v8 offset:{EXF}", "L5")
    for x in nval(2, 1, True): b(x)
    b(nmem(2, 1)[0])
    meet(5)
    if opt("sta", 0) == 13: stamp(b, 15)
    b(f"ds_read_b128 {vr(NM+12,4)}, v{FR} offset:{EXF}")
    for x in lr(3) + lr(4) + rd(3) + rd(4): b(x)
    b(nmem(2, 0)[1]); b(nmem(2, 1)[1])
    b(f"v_or_b32 v{NM+12}, v{NM+12}, v{NM+13}\nv_or3_b32 v{NM+12}, v{NM+12}, v{NM+14}, v{NM+15}")
    for x in linv(3) + linv(4): b(x)
    b(f"v_readfirstlane_b32 {sT}, v{NM+12}")
    b(f"s_andn2_b32 {sT}, {sT}, {sPass}\ns_cmp_lg_u32 {sT}, 0")
    b("s_cbranch_scc1 L_slow")
    if not opt("sta", 0): stamp(b, 15)
    for q in (3, 4):
        for pr in range(2):
            for x in nval(q, pr, True) + nmem(q, pr): b(x)
    b(f"s_mov_b32 {sRB}, {S3[0]}\ns_mov_b32 {sCnt}, 0\ns_mov_b32 {sDB}, {ST0}")
    b(f"v_and_b32 v21, 7, v1\nv_lshlrev_b32 v21, 8, v21\nv_and_b32 v4, 3, v1\nv_mul_u32_u24 v4, {FS1 if SENT else 256}, v4\nv_lshrrev_b32 v5, 1, v{L16}")
    b.wait(lg=0, vm=10)
    print("tail estimate", estimate(b.L[i0:]))
    stamp(b, 6)
    b.vm = []
    if TRACE == 3: b.raw("s_mov_b32 s100, 0")
    f, g = first_fill(3)
    g[(0, 0)] = g[(0, 0)] + [f"s_lshr_b32 {sT3}, {sT}, 1"]
    g.update({(1, 2): f[(1, 2)], (1, 7): f[(1, 7)], (1, 9): f[(1, 10)], (1, 11): f[(1, 12)], (1, 13): f[(1, 15)]})
    FLD = f"buffer_load_dwordx2 v[22:23], v21, {SO}, {sF1} offen {H1L}"
    EARLY = opt("ep", 1)
    dm = dict(zip([(0, 1), (0, 2), (0, 3), (0, 4)], DW3))
    if EARLY: dm[(1, opt("epos", 19))] = FLD
    g_step(3, dm, g, first=True)
    b(f"s_mov_b32 {sSpin}, 0")
    b.raw(f"s_waitcnt vmcnt({4 + EARLY}) lgkmcnt(0)")
    b.lg = []
    b("s_branch L_non1")
    b.label("L_non")
    b.wait(vm=0)
    b.label("L_non1")
    b(f"v_readfirstlane_b32 s64, v{NONV}\nv_readfirstlane_b32 s65, v{NONV+1}")
    b("s_cmp_lg_u32 s64, 0")
    b("s_cbranch_scc1 L_nonok")
    b(f"buffer_load_dwordx2 {vr(NONV,2)}, v{ZR}, {SD}, 0 offen sc0 sc1")
    b(f"s_add_u32 {sSpin}, {sSpin}, 1\ns_cmp_lt_u32 {sSpin}, {SPIN}")
    b("s_cbranch_scc1 L_non")
    b.label("L_nonok")
    b.vm = []
    stamp(b, 7)
    b("s_barrier")
    b(f"s_cmp_lg_u32 {sW}, 0")
    b("s_cbranch_scc1 L_pubd")
    b(f"s_lshl_b32 {sT}, {sHl}, 8\ns_add_u32 {sT}, {sT}, {sF1}")
    b("s_mov_b64 exec, 1")
    b(f"buffer_store_dwordx2 {vr(NONV,2)}, v{ZR}, {SO}, {sT} offen {H1F}")
    b("s_mov_b64 exec, -1")
    if EARLY:
        b.raw("s_waitcnt vmcnt(1)")
        b("s_branch L_pubd1")
    b.label("L_pubd")
    ALL = opt("all", 0)
    def test(back):
        b.raw(f"v_cmp_eq_u64 s[92:93], {sNon}, v[22:23]")
        b(f"s_mov_b32 {sRdy}, s92\ns_bitcmp1_b32 s92, {sT3}")
        b(f"s_cbranch_scc1 {back}")
    if EARLY:
        b.raw("s_waitcnt vmcnt(0)")
        b.label("L_pubd1")
        test("L_poll0ok")
    def poll1(lab, back):
        b(f"s_mov_b32 {sSpin}, 0")
        b.label(lab)
        b.raw(FLD)
        b.raw("s_waitcnt vmcnt(0)")
        test(back)
        if SLEEP: b(f"s_sleep {SLEEP}")
        b(f"s_add_u32 {sSpin}, {sSpin}, 1\ns_cmp_lt_u32 {sSpin}, {SPIN}")
        b(f"s_cbranch_scc1 {lab}")
    poll1("L_poll0", "L_poll0ok")
    b.label("L_poll0ok")
    stamp(b, 8)
    b(f"s_mov_b32 m0, {sMX}\ns_and_b32 {sT}, s80, 15")
    for x in DX3[:4]: b(x)
    b(f"s_mov_b32 m0, {sMW}\ns_lshl_b32 {sWO}, {sT}, 17")
    b(DX3[4])
    if opt("peel1", 0):
        assert SIG3.startswith("pair")
        b(f"s_add_u32 m0, {sW4}, {S3[0]}\ns_mul_i32 {sXO}, {sT}, 20480")
        f1 = ringf(3)
        f1.update({(0, 6): ["s_lshr_b64 s[80:81], s[80:81], 4"], (0, 12): [f"s_add_u32 m0, {sM5}, {S3[0]}"], (0, 15): [f"s_add_u32 m0, {sW4}, {S3[0]+20480}"],
                   (1, 1): [f"s_mov_b32 {sDB}, {sRB}"], (1, 3): [f"s_mov_b32 {sRB}, {sT2}"], (1, 5): [f"s_add_u32 {sCnt}, {sCnt}, 1"]})
        f1[(0, 18)] = f1.pop((0, 14))
        dm = dict(zip([(0, 0), (0, 2), (0, 4), (0, 8), (0, 13), (0, 16), (0, 19), (1, 13), (1, 16)], DX3 + DW3))
        dm[(1, 18)] = FLD
        b.vm = []
        g_step(3, dm, f1, bar=False)
        b.raw("s_waitcnt vmcnt(10) lgkmcnt(0)")
        b.lg = []
    else:
        b.wait(lg=0)
    b.vm = []
    def sync3():
        b.wait(lg=0, vm=9)
        trace(b); b("s_barrier"); trace(b)
    f3 = loope(3, sync3) if EB3 else loopf(3)
    f3[(0, 13)] = [f"s_lshr_b32 {sT3}, {sT}, 1"]
    def chk():
        b("s_cbranch_scc1 L_wait1")
        b.label("L_wait1back")
    f3[(0, 17)] = f3[(0, 17)] + [f"s_bitcmp0_b32 {sRdy}, {sT3}", chk]
    if EB3 and opt("peel1", 0): b("s_barrier")
    b(f"s_add_u32 {sMX}, {sDB}, {sW4}")
    b.raw(f".p2align {opt('al', 3)}")
    b.label("L_p3")
    i0 = len(b.L)
    if len(AG) == 9:
        dg, ff = auto(3, AG, chk)
        g_step(3, dict(zip(dg, DW3 + DX3)), ff)
    else: g_step(3, dict(zip(DGE if EB3 else DG, DW3 + DX3)), f3, bar=not EB3)
    if not EB3: b.wait(lg=0, vm=9)
    b("s_cbranch_vccnz L_p3")
    print("p3 step estimate", estimate(b.L[i0:], verbose=VERB))
    b.vm = []
    stamp(b, 9)
    PFL = f"buffer_load_dwordx2 v[6:7], v4, {SO}, {sF2} offen {HLD}"
    AFX = lambda g: (AF[1], 160, 0, 16, 32)[g]
    BFX = lambda g: (BF[1], 176, 48, 196, 216)[g]
    def mm(g, d, q): return f"{MF} {vr(ACC+(d*5+q)*4,4)}, {ar(AFX(g)+4*d,4)}, {ar(BFX(g)+4*q,4)}, {vr(ACC+(d*5+q)*4,4)}"
    rf = ringf(3)
    for st in range(2):
        if st == 1 or not EB3:
            trace(b); b("s_barrier"); trace(b)
        pre = ([rf[(0, 7)], rf[(0, 9)], rf[(0, 10)], rf[(0, 11)]] if st == 0 else [[f"s_lshl_b32 {sT}, {sKq}, 8"], [f"s_add_u32 {sT}, {sT}, {sF2}"]])
        for u in range(2):
            g = 1 + 2*st + u
            A = lambda d: [f"ds_read_b64_tr_b16 {ar(AFX(g)+4*d+2*v,2)}, v{WA3[d]} offset:{u*8192+v*4096}" for v in range(2)]
            rdl = A(1) + [f"ds_read_b128 {ar(BFX(g)+4*q,4)}, v{XA3[u]} offset:{q*1024}" for q in range(5)] + A(2) + A(3) + A(0)
            upd = {} if st == 1 else ({8: XA3[0]} if u == 0 else {2: WA3[1], 7: XA3[1], 9: WA3[2], 11: WA3[3], 13: WA3[0]})
            for i in range(15):
                b(mm(g - 1, 1 + i // 5, i % 5))
                if rdl: b(rdl.pop(0))
                if pre:
                    for x in pre.pop(0): b(x)
                if i in upd: b(va(upd[i]))
                if i == 14 and not (st == 0 and u == 1): need(b, [ar(AFX(g)+4, 4), ar(BFX(g), 20)])
                if i == 3 and g > 1: need(b, [ar(AFX(g - 1), 16)])
        if st == 0: b.wait(lg=0, vm=0)
    stamp(b, 10)
    mf = [mm(4, 1 + i // 5, i % 5) for i in range(15)] + [mm(g, 0, q) for g in range(5) for q in range(5)]
    PK = 104; RK = 144
    for i in range(40):
        b(mf[i])
        t = i - 6
        if 0 <= t < 15:
            d, q = 1 + t // 5, t % 5; pk = PK + (d-1)*12
            if q in (1, 3): b(f"buffer_store_dwordx4 {vr(pk+2*(q-1),4)}, v{L16}, {SO}, {sPs[d]} offen offset:{(q//2)*1024} {HST}")
            if q == 4: b(f"buffer_store_dwordx2 {vr(pk+8,2)}, v5, {SO}, {sPs[d]} offen offset:2048 {HST}")
        t = i - 5
        if 0 <= t < 15:
            d, q = 1 + t // 5, t % 5; pk = PK + (d-1)*12 + 2*q; a = ACC + (d*5+q)*4
            b(f"v_cvt_pk_bf16_f32 v{pk}, v{a}, v{a+1}\nv_cvt_pk_bf16_f32 v{pk+1}, v{a+2}, v{a+3}")
    if not SENT:
        b.wait(vm=0)
        stamp(b, 11)
        if not F2W:
            b("s_barrier")
            b(f"s_cmp_lg_u32 {sW}, 0")
            b("s_cbranch_scc1 L_wait2")
        b("s_mov_b64 exec, 1")
        b(f"buffer_store_dwordx2 {vr(NONV,2)}, v{ZR}, {SO}, {sT} offen {HST}")
        b("s_mov_b64 exec, -1")
        b.label("L_wait2")
        b(f"s_mov_b32 {sSpin}, 0")
        P2 = opt("pp2", 1)
        regs = ["v[6:7]", "v[8:9]", "v[10:11]"][:P2]
        ld = lambda r: b.raw(f"buffer_load_dwordx2 {r}, v4, {SO}, {sF2} offen {HLD}")
        for r in regs[1:]:
            ld(r); b(f"s_sleep {opt('psl', 3)}")
        b.label("L_poll3")
        for k in range(P2):
            ld(regs[k])
            b.raw(f"s_waitcnt vmcnt({P2-1})")
            b.raw(f"v_cmp_ne_u64 vcc, {sNon}, {regs[(k + 1) % P2]}")
            b("s_cbranch_vccz L_wait2back")
            if P2 == 1 and opt('sleep2', 4): b(f"s_sleep {opt('sleep2', 4)}")
        b(f"s_add_u32 {sSpin}, {sSpin}, 1\ns_cmp_lt_u32 {sSpin}, {SPIN}")
        b("s_cbranch_scc1 L_poll3")
        b.label("L_wait2back")
        stamp(b, 12)
    else: stamp(b, 11)
    b(f"s_mov_b32 {sSpin}, 0")
    if opt("pre2", 0): b(f"s_sleep {opt('pre2', 0)}")
    b.label("L_poll2")
    b.vm = []
    for h in range(3):
        for d in (1, 2, 3):
            pk = RK + (d-1)*12
            if h < 2: b(f"buffer_load_dwordx4 {vr(pk+4*h,4)}, v{L16}, {SO}, {sPl[d]} offen offset:{h*1024} {HLD}")
            else: b(f"buffer_load_dwordx2 {vr(pk+8,2)}, v5, {SO}, {sPl[d]} offen offset:2048 {HLD}")
    if SENT:
        rr = [RK + (d-1)*12 + 4*h + i for h in range(3) for d in (1, 2, 3) for i in range(4 if h < 2 else 2)]
        b(f"v_max_u32 v8, v{rr[0]}, v{rr[1]}")
        for i in range(2, 30, 2): b(f"v_max3_u32 v8, v8, v{rr[i]}, v{rr[i+1]}")
        b("v_cmp_eq_u32 vcc, -1, v8")
        b("s_cbranch_vccz L_poll2ok")
        if SLEEP: b(f"s_sleep {opt('sleep2', 4)}")
        b(f"s_add_u32 {sSpin}, {sSpin}, 1\ns_cmp_lt_u32 {sSpin}, {SPIN}")
        b("s_cbranch_scc1 L_poll2")
        b.label("L_poll2ok")
        stamp(b, 12)
    OFL = opt("ofl", "").replace("+", " ")
    for q in range(5):
        a = ACC + q * 4
        for d in (1, 2, 3):
            pk = RK + (d-1)*12 + 2*q
            for i in range(2):
                b(f"v_lshlrev_b32 v{a+20*d+2*i}, 16, v{pk+i}\nv_and_b32 v{a+20*d+2*i+1}, 0xffff0000, v{pk+i}")
        for i in (0, 2): b(f"v_pk_add_f32 {vr(a+i,2)}, {vr(a+i,2)}, {vr(a+20+i,2)}")
        for i in (0, 2): b(f"v_pk_add_f32 {vr(a+40+i,2)}, {vr(a+40+i,2)}, {vr(a+60+i,2)}")
        for i in (0, 2): b(f"v_pk_add_f32 {vr(a+i,2)}, {vr(a+i,2)}, {vr(a+40+i,2)}")
        b(f"v_cvt_pk_bf16_f32 v{a}, v{a}, v{a+1}\nv_cvt_pk_bf16_f32 v{a+1}, v{a+2}, v{a+3}")
        b(f"buffer_store_dwordx2 {vr(a,2)}, v{OUTV}, {SOUT}, {sOut} offen {OFL}")
        if q < 4: b(f"s_add_u32 {sOut}, {sOut}, 32768")
    if STAMPS:
        stamp(b, 13)
        if not opt("gap", 0): b.wait(vm=0)
        stamp(b, 14)
        b(f"s_cmp_lg_u32 {sW}, 0")
        b("s_cbranch_scc1 L_nost")
        b(f"v_lshlrev_b32 v3, 2, v1\ns_lshl_b32 {sT}, s2, 7\ns_add_u32 {sT}, {sT}, {STAMP_OFF}\ns_mov_b32 exec_hi, 0")
        b(f"buffer_store_dword v254, v3, {SO}, {sT} offen")
        b("s_mov_b64 exec, -1")
        b.label("L_nost")
        b(f"v_lshlrev_b32 v3, 2, v1\ns_lshl_b32 {sT}, s2, 2\ns_add_u32 {sT}, {sT}, {sW}\ns_lshl_b32 {sT}, {sT}, 7\ns_add_u32 {sT}, {sT}, {STAMP_OFF + (2 << 20)}\ns_mov_b32 exec_hi, 0")
        b(f"buffer_store_dword v254, v3, {SO}, {sT} offen")
        b("s_mov_b64 exec, -1")
        if TRACE:
            b(f"s_lshl_b32 {sT}, s2, 2\ns_add_u32 {sT}, {sT}, {sW}\ns_lshl_b32 {sT}, {sT}, 9\ns_add_u32 {sT}, {sT}, {STAMP_OFF + (1 << 20)}")
            b(f"buffer_store_dword v0, v3, {SO}, {sT} offen")
    b.label("L_end")
    b("s_endpgm")

    b.label("L_wait1")
    b.lg = []; b.vm = []
    if opt("peel1", 0):
        b.raw("s_waitcnt vmcnt(4)")
        test("L_wait1back")
    poll1("L_poll1", "L_wait1back")
    b("s_branch L_wait1back")
    if SENT:
        b.label("L_wait2")
        b(f"s_mov_b32 {sSpin}, 0")
        b.label("L_poll3")
        b(PFL)
        b.wait(vm=0)
        b(f"v_cmp_ne_u64 vcc, {sNon}, v[6:7]")
        b("s_cbranch_vccz L_wait2back")
        b(f"s_sleep 4\ns_add_u32 {sSpin}, {sSpin}, 1\ns_cmp_lt_u32 {sSpin}, {SPIN}")
        b("s_cbranch_scc1 L_poll3")
        b("s_branch L_wait2back")

    EV = [[int(x) for x in e.split(".")] for e in opt("ev", "3.0,3.1,0.4").split(",")]
    assert sum(e[0] for e in EV) == NA and sum(e[1] for e in EV) == NS
    b.label("L_aux")
    rp = 0
    for k, (nd_, nr_) in enumerate(EV):
        b.lg = []; b.vm = []
        if k + 1 < len(EV):
            b(f"s_cmp_lg_u32 {sEv}, {k}")
            b(f"s_cbranch_scc1 L_aux{k+1}")
        for i in range(nd_): pair()
        for i in range(nr_):
            b(f"s_xor_b32 {sT}, {sRot}, {(IENT-NS+rp)*4096}")
            b(f"buffer_load_dwordx4 {ar(STG[2*rp],4)}, v{KVW}, {SK}, {sT} offen {KVFL}")
            b(f"buffer_load_dwordx4 {ar(STG[2*rp+1],4)}, v{KVW}, {SV}, {sT} offen {KVFL}")
            rp += 1
        b(f"s_add_u32 {sEv}, {sEv}, 1")
        if not opt("early", 0) and not opt("sp", 0): (setup_a, setup_b, setup_c)[k]()
        b.wait(lg=0, vm=9 + 2*(nd_ + nr_))
        b("s_branch L_auxback")
        if k + 1 < len(EV): b.label(f"L_aux{k+1}")

    b.label("L_slow")
    b.wait(lg=0, vm=0)
    b("s_barrier")
    b(f"s_mov_b32 {sPass}, 1")
    b("v_and_b32 v21, 15, v1\nv_lshlrev_b32 v21, 8, v21\nv_lshrrev_b32 v22, 4, v1\nv_lshlrev_b32 v22, 4, v22\nv_add_u32 v21, v21, v22")
    for q in range(5): b(f"v_mov_b32 v{72+q}, 0xff800000")
    b(f"s_mov_b32 {sCnt}, 0")
    b.label("L_slowloop")
    for d in range(4): b(f"buffer_load_dwordx4 {vr(24+4*d,4)}, v21, {SK}, {sCnt} offen offset:{d*64}")
    b.wait(vm=0)
    for q in range(5):
        for d in range(4):
            b(f"{MF} {vr(80+4*q,4)}, {vr(24+4*d,4)}, {ar(QF+(q*4+d)*4,4)}, {'0' if d == 0 else vr(80+4*q,4)}")
    for q in range(5):
        b(f"v_max3_f32 v{72+q}, v{72+q}, v{80+4*q}, v{81+4*q}\nv_max3_f32 v{72+q}, v{72+q}, v{82+4*q}, v{83+4*q}")
    b(f"s_add_u32 {sCnt}, {sCnt}, 4096\ns_cmp_lt_u32 {sCnt}, 131072")
    b("s_cbranch_scc1 L_slowloop")
    for sw_ in ("v_permlane16_swap_b32", "v_permlane32_swap_b32"):
        for q in range(5): b(f"v_mov_b32 v{64+q}, v{72+q}")
        for q in range(5): b(f"{sw_} v{72+q}, v{64+q}")
        for q in range(5): b(f"v_max_f32 v{72+q}, v{72+q}, v{64+q}")
    for q in range(5):
        for i in range(4): b(f"v_sub_f32 v{NM+4*q+i}, 0, v{72+q}")
    p2_addr()
    b(f"s_mov_b32 {sKVm}, {sW1}\ns_mov_b32 {sKVs}, 0\ns_mov_b32 {sKVx}, {sRot}")
    for z in ZEROS: b(z)
    b.label("L_slowkv")
    pair()
    b(f"s_cmp_lt_u32 {sKVs}, {IENT * 4096}")
    b("s_cbranch_scc1 L_slowkv")
    b.wait(vm=0)
    b("s_barrier")
    for i in range(8): b(k_read(i))
    for i in range(4): b(VR[i])
    for i in range(8): b(s_mfma(0, i))
    b("s_nop 7")
    b("s_branch L_p2entry")
    return b.L

def gen_probe(spec):
    i, ri, j, rj = spec.split(",")
    b = B()
    b.raw(".p2align 8"); b.raw(".type mha_probe_kernel,@function"); b.label("mha_probe_kernel")
    b("s_cmp_ge_u32 s2, 1"); b("s_cbranch_scc1 L3_end")
    b.raw("s_memrealtime s[16:17]")
    b.raw("s_load_dwordx2 s[4:5], s[0:1], 56"); b.raw("s_waitcnt lgkmcnt(0)")
    b("s_mov_b32 s6, 268435456\ns_mov_b32 s7, 0x20000")
    b(f"v_mul_u32_u24 v1, 512, v0\nv_lshrrev_b32 v4, 1, v0\nv_and_b32 v4, 3, v4\nv_lshlrev_b32 v4, 7, v4\nv_add_u32 v1, v1, v4\ns_mov_b32 s8, {STAMP_OFF}")
    b(f"buffer_load_dword v2, v1, s[4:7], s8 offen offset:{8*int(i)}")
    b(f"buffer_load_dword v3, v1, s[4:7], s8 offen offset:{8*int(j)}")
    b.wait(vm=0)
    b("v_readlane_b32 s9, v2, 0")
    b("s_sub_u32 s9, s9, 100000")
    b("v_subrev_u32 v2, s9, v2\nv_subrev_u32 v3, s9, v3")
    for v, r, acc in ((2, ri, "s10"), (3, rj, "s11")):
        b(f"s_mov_b32 {acc}, {'-1' if r == 'min' else '0'}")
        for l in range(64):
            b(f"v_readlane_b32 s12, v{v}, {l}")
            b(f"{dict(min='s_min_u32', max='s_max_u32', avg='s_add_u32')[r]} {acc}, {acc}, s12")
        if r == 'avg': b(f"s_lshr_b32 {acc}, {acc}, 3")
        else: b(f"s_lshl_b32 {acc}, {acc}, 3")
    if opt("abs", 0):
        b("s_lshr_b32 s10, s10, 3\ns_add_u32 s12, s10, s9\ns_mov_b32 s10, 10000")
        if opt("abs", 0) == 2:
            b(f"s_mov_b32 s8, {STAMP_OFF + (3 << 20)}\nv_mov_b32 v1, 0\nbuffer_load_dword v2, v1, s[4:7], s8 offen")
            b.wait(vm=0)
            b("v_readfirstlane_b32 s12, v2")
    else:
        if opt("gap", 0): b("s_sub_u32 s11, s16, s9\ns_lshl_b32 s11, s11, 3")
        b("s_sub_u32 s10, s11, s10\ns_min_u32 s10, s10, 100000")
        b.raw("s_memrealtime s[12:13]"); b.raw("s_waitcnt lgkmcnt(0)")
    b.label("L3_spin")
    b.raw("s_memrealtime s[14:15]"); b.raw("s_waitcnt lgkmcnt(0)")
    b("s_sub_u32 s14, s14, s12\ns_cmp_lt_u32 s14, s10")
    b("s_cbranch_scc1 L3_spin")
    b.label("L3_end")
    b("s_endpgm")
    if opt("abs", 0) == 2:
        b.raw(".p2align 8"); b.raw(".type mha_tiny_kernel,@function"); b.label("mha_tiny_kernel")
        b.raw("s_memrealtime s[8:9]")
        b.raw("s_load_dwordx2 s[4:5], s[0:1], 56"); b.raw("s_waitcnt lgkmcnt(0)")
        b("s_cmp_ge_u32 s2, 1"); b("s_cbranch_scc1 L4_end")
        b(f"s_mov_b32 s6, 268435456\ns_mov_b32 s7, 0x20000\ns_mov_b32 s10, {STAMP_OFF + (3 << 20)}\nv_mov_b32 v1, 0\nv_mov_b32 v2, s8")
        b("buffer_store_dword v2, v1, s[4:7], s10 offen")
        b.label("L4_end")
        b("s_endpgm")
    return b.L

def main():
    k, n = hazard_pass(gen(), verbose=VERB)
    head = ["; Fused MHA block, one workgroup per (batch, head): Q projection, attention, then a quarter (in k) of the output",
            "; projection; workgroups hand O and partial sums to each other through d_ws. Written by dev/gen17.py.",
            "; @launch grid=(256,1,1) block=(256,1,1) lds=163840",
            '.amdgcn_target "amdgcn-amd-amdhsa--gfx950"', ".text", f".globl {NAME}"]
    tail = ['.section .rodata,"a"', ".p2align 6", f".amdhsa_kernel {NAME}", "  .amdhsa_next_free_vgpr 512", "  .amdhsa_next_free_sgpr 102",
            "  .amdhsa_accum_offset 256", "  .amdhsa_group_segment_fixed_size 0", "  .amdhsa_kernarg_size 64", "  .amdhsa_user_sgpr_count 2",
            "  .amdhsa_user_sgpr_kernarg_segment_ptr 1", "  .amdhsa_system_sgpr_workgroup_id_x 1", ".end_amdhsa_kernel"]
    if "probe" in P:
        k3, _ = hazard_pass(gen_probe(P["probe"]))
        k = k + k3
        head[2] = f"; @launch kernel={NAME} grid=(256,1,1) block=(256,1,1) lds=163840\n; @launch kernel=mha_probe_kernel grid=(1,1,1) block=(64,1,1) lds=0"
        head.append(".globl mha_probe_kernel")
        if opt("abs", 0) == 2:
            head[2] = "; @launch kernel=mha_tiny_kernel grid=(1,1,1) block=(64,1,1) lds=0\n" + head[2]
            head.append(".globl mha_tiny_kernel")
            tail += [".p2align 6", ".amdhsa_kernel mha_tiny_kernel", "  .amdhsa_next_free_vgpr 8", "  .amdhsa_next_free_sgpr 32",
                "  .amdhsa_accum_offset 8", "  .amdhsa_group_segment_fixed_size 0", "  .amdhsa_kernarg_size 64", "  .amdhsa_user_sgpr_count 2",
                "  .amdhsa_user_sgpr_kernarg_segment_ptr 1", "  .amdhsa_system_sgpr_workgroup_id_x 1", ".end_amdhsa_kernel"]
        tail += [".p2align 6", ".amdhsa_kernel mha_probe_kernel", "  .amdhsa_next_free_vgpr 8", "  .amdhsa_next_free_sgpr 32",
            "  .amdhsa_accum_offset 8", "  .amdhsa_group_segment_fixed_size 0", "  .amdhsa_kernarg_size 64", "  .amdhsa_user_sgpr_count 2",
            "  .amdhsa_user_sgpr_kernarg_segment_ptr 1", "  .amdhsa_system_sgpr_workgroup_id_x 1", ".end_amdhsa_kernel"]
    fmt = lambda l: l if l.endswith(":") or l.startswith((".", ";")) else "    " + l
    open(sys.argv[1], "w").write("\n".join(head + [fmt(l) for l in k] + tail) + "\n")
    print(f"nops inserted: {n}; lines {len(k)}")
main()
```

```python
import sys, math, struct
from asmlib import B, hazard_pass, need, estimate

P = dict(kv.split("=") for kv in sys.argv[2:])
def opt(k, d): return type(d)(P.get(k, d))
STAMPS = opt("stamps", 0); TRACE = opt("trace", 0); VERB = bool(opt("v", 0))
KVFL = opt("kvfl", "nt").replace("+", " ")
HST = opt("hst", "sc0+sc1").replace("+", " ")
HLD = opt("hld", "sc0+sc1").replace("+", " ")
H1S = opt("h1s", "sc0+sc1").replace("+", " "); H1F = opt("h1f", "sc0+sc1").replace("+", " "); H1L = opt("h1l", "sc0+sc1").replace("+", " ")
FORCE_SLOW = opt("slow", 0)
SIG = opt("sig", "rot"); SIG3 = opt("sig3", "rot"); AUXT = opt("auxt", "lead")
TL = opt("tl", 11); TIT = opt("tit", 6); THALF = opt("thalf", 1)

TOUCH = opt("touch", 7)
SLEEP = opt("sleep", 4); ONEPOLL = opt("onepoll", 1); PBF = opt("pbf", 1)
NAME = "standalone__mha_block_cached__near_ridge_kernel"
STAMP_OFF = 200 << 20; NST = 16
TIMER = "s_memtime" if STAMPS == 2 else "s_memrealtime"
PART = 12 << 20; PSL = 10240 if opt('pbf', 1) else 20480; FLG1 = PART + 64 * 16 * PSL + (2 << 20); FS1 = opt('fs1', 8448); FS2 = opt('fs2', 4352); FLG2 = FLG1 + (1 << 20); WSREC = FLG2 + (2 << 20)

def vr(a, n=1, k='v'): return f"{k}{a}" if n == 1 else f"{k}[{a}:{a+n-1}]"
def ar(a, n=1): return vr(a, n, 'a')
def f32bits(x): return "0x%08x" % struct.unpack("<I", struct.pack("<f", x))[0]

def stamp(b, i):
    if STAMPS:
        b.wait(lg=0)
        b.raw(f"{TIMER} s[96:97]"); b.raw("s_waitcnt lgkmcnt(0)")
        b.raw(f"v_writelane_b32 v254, s96, {2*i}"); b.raw(f"v_writelane_b32 v254, s97, {2*i+1}")
def trace(b):
    if TRACE:
        b.wait(lg=0)
        for s in ("s_memtime s[96:97]", "s_waitcnt lgkmcnt(0)", "s_sub_u32 s96, s96, s98", "s_mov_b32 s97, m0", "s_mov_b32 m0, s100",
                  "v_writelane_b32 v0, s96, m0", "s_add_u32 s100, s100, 1", "s_min_u32 s100, s100, 63", "s_mov_b32 m0, s97"): b.raw(s)

def order(kind, j):
    if kind == "seq": return list(range(16)), [2, 6, 10]
    if kind == "xor": return [t ^ j for t in range(16)], [4, 8, 12]
    if kind.startswith("g"):
        ramp = [int(c) for c in kind[1:]]
        O = [[] for _ in range(4)]; LD = [[] for _ in range(4)]; opened = {}; nxt = 0; turn = 0
        for t in range(16):
            n = min(ramp[t] if t < len(ramp) else 1, 16 - nxt)
            lead_cls = [(turn + i) % 4 for i in range(n)]; turn = (turn + n) % 4
            fresh = []
            for c in lead_cls:
                O[c].append(nxt); LD[c].append(t); opened[nxt] = t; fresh.append(nxt); nxt += 1
            k = 0
            for c in range(4):
                if c in lead_cls: continue
                old = [x for x in sorted(opened) if x not in O[c] and opened[x] < t]
                if old: O[c].append(old[0])
                else:
                    O[c].append(fresh[k % len(fresh)]); k += 1
        o = O[j]; assert sorted(o) == list(range(16)), o
        lead = [t for t in LD[j] if t >= 2][:3]
        while len(lead) < 3: lead.append(min(lead[-1] + 3, 15))
        return o, lead
    o = []; lead = []
    if kind == "rot":
        for t in range(16):
            if t == 0: o.append(j)
            elif t % 4 == j and t + 3 < 16: o.append(t + 3); lead.append(t)
            else: o.append([c for c in range(16) if c not in o and (c < 4 or (c - 3) < t) and not (c >= 4 and (c - 3) % 4 == j)][0])
    elif kind == "rot2":
        for t in range(16):
            if t == 0: o.append(0)
            elif t == 1: o.append(1 + j)
            elif (t - 1) % 4 == j and t + 3 < 16: o.append(t + 3); lead.append(t)
            else: o.append([c for c in range(16) if c not in o and (c < 5 or (c - 3) < t) and not (c >= 5 and (c - 4) % 4 == j)][0])
    assert sorted(o) == list(range(16)), o
    lead = [t for t in lead if t >= 2][:3]
    while len(lead) < 3: lead.append(lead[-1] + 2)
    return o, lead
def tables(kind):
    T = []
    for j in range(4):
        o, lead = order(kind, j)
        if AUXT.startswith("c"):
            off, base = int(AUXT[1]), int(AUXT[2])
            lead = [((j + off) % 4) + base + 4 * k + 2 for k in range(3)]
        elif AUXT != "lead": lead = [int(v) + 2 for v in AUXT.split(".")]
        if opt("sp", 0):
            ev = opt("ev", "3.0,3.1,0.4").split(",")
            lead = lead[opt("l0", 1):][:len(ev)] if ev != ["0.0"] else []
        val = sum(c << (4 * t) for t, c in enumerate(o))
        T.append((val & 0xffffffff, val >> 32, sum(1 << (t - 1) for t in lead)))
    return T

def order3(j, p):
    if SIG3 == "seq": o = list(range(14))
    elif SIG3.startswith("pair"):
        gap = int(SIG3[4:5] or 1)
        o = [2 * j, 2 * j + 1]
        lt = {8 + i: 2 + gap * i for i in range(6)}
        for t in range(2, 14):
            mine = [c for c in lt if lt[c] == t and (c - 8) % 4 == j]
            if mine: o.append(mine[0]); continue
            ok = [c for c in range(14) if c not in o and (c < 8 or (lt[c] < t - 1 and (c - 8) % 4 != j))]
            if not ok: ok = [c for c in range(14) if c not in o and not ((c - 8) % 4 == j and lt[c] > t)]
            ok.sort(key=lambda c: (c != (o[-1] ^ 1), c >= 8, (c - 2 * j) % 8 if c < 8 else c))
            o.append(ok[0])
        assert sorted(o) == list(range(14)), o
    else:
        o = []
        for t in range(14):
            if t == 0: o.append(j)
            elif t % 4 == j and t + 3 < 14: o.append(t + 3)
            else: o.append([c for c in range(14) if c not in o and (c < 4 or (c - 3) < t) and not (c >= 4 and (c - 3) % 4 == j)][0])
        assert sorted(o) == list(range(14))
        if p and SIG3 == "rotp": o = [(c + 7) % 14 for c in o]
    val = sum((c + 2) << (4 * t) for t, c in enumerate(o))
    return val & 0xffffffff, val >> 32
ROW1 = opt('row1', 1)
def gen():
    b = B()
    SX, SW, SK, SV, SO, SD = "s[4:7]", "s[8:11]", "s[12:15]", "s[16:19]", "s[20:23]", "s[24:27]"
    SOUT, SX3, SW3 = "s[68:71]", "s[72:75]", "s[76:79]"
    sW, sB, sH, sCnt = "s28", "s29", "s30", "s31"
    sRB, sDB, sDelta, sMask = "s32", "s33", "s34", "s35"
    sXO, sWO, sMX, sMW, sM5, sT, sT2, sT3 = "s36", "s37", "s38", "s39", "s40", "s41", "s42", "s43"
    sW4, sW1, sPB, sKVm, sKVs, sPass, sO0, sO1, sCls = "s44", "s45", "s46", "s47", "s48", "s49", "s50", "s51", "s52"
    sCc, sSpin, sQH, sKH = "s53", "s54", "s56", "s57"
    sBl, sHl, sKq, sEv = "s60", "s61", "s62", "s63"
    sKVx, sRot = "s55", "s66"
    sNon = "s[64:65]"
    sPs = [None, "s82", "s83", "s84"]; sPl = [None, "s85", "s86", "s87"]
    sF1, sOut, sRdy, sF2 = "s88", "s89", "s90", "s91"
    XA = [2, 3]; WA = [4, 5, 6, 7]; VB = [8, 9, 10, 11, 12]; VW = [13, 14, 15, 16]; KVW, NONV, L16 = 17, 18, 20
    ACC = 24; OK = 104; KA = [184, 185, 186, 187]; VA = list(range(188, 196)); NM = 196; LA = 216; L16B = 236; TCH = 237
    XA3 = [238, 239]; ZR = 240; WA3 = [244, 245, 246, 247]; VW3 = [248, 249, 250, 251]; VB3 = [252] * 4 + [253]; OUTV = 255
    SB = [24, 32, 40]; PB = [48, 52, 56]
    OS, QF, KF, VF, ONES, JUNK, K0F = 0, 80, 160, 192, 224, 228, 240
    STG = [VF + 4*i for i in range(8)] + [232, 236]
    AF = [80, 96]; BF = [112, 132]
    ST0 = 53248; STSZ = 36864; LDS = 163840; QEX = 122880
    S3 = [ST0 + STSZ, ST0 + 2*STSZ]
    FL = 256; SPIN = 200000
    MF = "v_mfma_f32_16x16x32_bf16"

    b.raw(".p2align 8")
    b.raw(f".type {NAME},@function")
    b.label(NAME)
    b("s_cmp_ge_u32 s2, 256")
    b("s_cbranch_scc1 L_end")
    b.track = False
    b("s_load_dwordx4 s[4:7], s[0:1], 0")
    b("s_load_dwordx4 s[8:11], s[0:1], 16")
    b("s_load_dwordx4 s[68:71], s[0:1], 40")
    b("s_load_dwordx2 s[76:77], s[0:1], 32")
    b("s_load_dwordx2 s[20:21], s[0:1], 56")
    b("s_memrealtime s[64:65]")
    if STAMPS: b.raw(f"{TIMER} s[94:95]")
    if TRACE: b.raw("s_memtime s[98:99]"); b.raw("s_mov_b32 s100, 0")
    b.track = True
    b("v_and_b32 v1, 63, v0\nv_lshrrev_b32 v21, 6, v0")
    b(f"s_and_b32 {sB}, s2, 1\ns_lshl_b32 {sB}, {sB}, 2\ns_lshr_b32 {sT}, s2, 3\ns_and_b32 {sBl}, {sT}, 3\ns_add_u32 {sB}, {sB}, {sBl}")
    b(f"v_readfirstlane_b32 {sW}, v21")
    b(f"s_lshr_b32 {sKq}, s2, 1\ns_and_b32 {sKq}, {sKq}, 3\ns_lshl_b32 {sH}, {sKq}, 3\ns_lshr_b32 {sHl}, {sT}, 2\ns_add_u32 {sH}, {sH}, {sHl}")
    b(f"s_add_u32 {sCls}, {sBl}, {sHl}\ns_and_b32 {sCls}, {sCls}, 3")
    T = tables(SIG)
    b(f"s_mov_b32 s58, {T[0][0]}\ns_mov_b32 s59, {T[0][1]}\ns_mov_b32 {sMask}, {T[0][2]}")
    for j in (1, 2, 3):
        b(f"s_cmp_eq_u32 {sCls}, {j}\ns_cselect_b32 s58, {T[j][0]}, s58\ns_cselect_b32 s59, {T[j][1]}, s59\ns_cselect_b32 {sMask}, {T[j][2]}, {sMask}")
    if opt("xoff", 1):
        if opt("xoff", 1) == 1: b(f"s_xor_b32 {sT2}, s2, {sKq}")
        if opt("xoff", 1) == 2: b(f"s_lshr_b32 {sT2}, s2, 7\ns_xor_b32 {sT2}, {sT2}, s2")
        if opt("xoff", 1) == 3: b(f"s_lshr_b32 {sT2}, s2, 7\ns_xor_b32 {sT2}, {sT2}, s2\ns_xor_b32 {sT2}, {sT2}, {sKq}")
        if opt("xoff", 1) == 4: b(f"s_lshr_b32 {sT2}, s2, 7")
        b(f"s_bitcmp1_b32 {sT2}, 0\ns_cselect_b32 {sT2}, 0x88888888, 0\ns_xor_b32 s58, s58, {sT2}\ns_xor_b32 s59, s59, {sT2}")
    b(f"s_lshl_b32 {sW4}, {sW}, 12\ns_lshl_b32 {sW1}, {sW}, 10\ns_and_b32 {sQH}, {sW}, 1\ns_lshr_b32 {sKH}, {sW}, 1")
    b("v_lshrrev_b32 v21, 4, v1")
    b("v_and_b32 v22, 7, v1\nv_xor_b32 v22, v22, v21\nv_lshlrev_b32 v22, 4, v22")
    b("v_lshrrev_b32 v23, 3, v1\nv_lshlrev_b32 v23, 11, v23\nv_add_u32 v22, v22, v23\nv_xor_b32 v23, 64, v22")
    b(f"s_lshl_b32 {sT}, {sW}, 16")
    for q in range(4):
        b(f"s_add_u32 {sT2}, {sT}, {q*(16384-1024)}\nv_add_u32 v{VB[q]}, {sT2}, v{23 if q & 1 else 22}")
    b(f"s_lshl_b32 {sT}, {sQH}, 6\nv_xor_b32 v{VB[4]}, {sT}, v22\ns_lshl_b32 {sT}, {sW}, 14\ns_add_u32 {sT}, {sT}, {16*16384}\nv_add_u32 v{VB[4]}, {sT}, v{VB[4]}")
    b("v_lshlrev_b32 v22, 1, v21\nv_and_b32 v23, 15, v1\nv_xor_b32 v22, v22, v23\nv_lshlrev_b32 v22, 4, v22")
    b(f"v_lshlrev_b32 v23, 13, v21\nv_add_u32 v23, v23, v22\nv_xor_b32 v{L16}, 128, v23")
    b(f"s_lshl_b32 {sT}, {sW}, 17")
    for q in range(4):
        b(f"s_add_u32 {sT2}, {sT}, {q*(32768-1024)}\nv_add_u32 v{VW[q]}, {sT2}, v{L16 if q & 2 else 23}")
    b(f"s_add_u32 {sM5}, {sW1}, 16384")
    b(f"s_lshl_b32 {sT}, {sB}, 5\ns_add_u32 {sT}, {sT}, {sH}\ns_lshl_b32 {sT}, {sT}, 17\ns_lshl_b32 {sT2}, {sH}, 8\ns_mul_i32 {sT3}, {sB}, 327680")
    b.raw("s_waitcnt lgkmcnt(0)")
    b(f"s_add_u32 s12, s6, {sT}\ns_addc_u32 s13, s7, 0")
    b(f"s_add_u32 s16, s8, {sT}\ns_addc_u32 s17, s9, 0")
    b(f"s_add_u32 s8, s10, {sT2}\ns_addc_u32 s9, s11, 0\ns_sub_u32 s10, 8388608, {sT2}\ns_mov_b32 s11, 0x20000")
    b(f"s_add_u32 s4, s4, {sT3}\ns_addc_u32 s5, s5, 0\ns_mov_b32 s6, 327680\ns_mov_b32 s7, 0x20000")
    def dma_lists(vw, sw, vb, sx, fl=""):
        return ([f"buffer_load_dwordx4 v{vw[q]}, {sw}, {sWO} offen offset:{q*1024} lds" for q in range(4)],
                [f"buffer_load_dwordx4 v{vb[q]}, {sx}, {sXO} offen offset:{q*1024} {fl} lds" for q in range(4)] +
                [f"buffer_load_dwordx4 v{vb[4]}, {sx}, {sXO} offen {fl} lds"])
    DW, DX = dma_lists(VW, SW, VB, SX)
    DW3, DX3 = dma_lists(VW3, SW3, VB3, SX3, H1L)
    def first_stage(st):
        base = ST0 + ((st+2)%3)*STSZ
        b(f"s_and_b32 {sT}, s58, 15\ns_add_u32 m0, {sW4}, {base+20480}\ns_lshl_b32 {sWO}, {sT}, 19")
        for x in DW: b(x)
        b(f"s_add_u32 m0, {sW4}, {base}\ns_lshl_b32 {sXO}, {sT}, 7")
        for x in DX[:4]: b(x)
    def first_stage_last(st):
        base = ST0 + ((st+2)%3)*STSZ
        b(f"s_add_u32 m0, {sM5}, {base}\ns_lshr_b64 s[58:59], s[58:59], 4")
        b(DX[4])
    if opt("sta", 0) == 1: stamp(b, 15)
    first_stage(0)
    if not opt("late5", 0): first_stage_last(0)
    if opt("sta", 0) == 2: stamp(b, 15)
    if STAMPS: b.raw("v_writelane_b32 v254, s94, 0"); b.raw("v_writelane_b32 v254, s95, 1")
    if opt("ctouch", 0):
        b.raw("s_getpc_b64 s[92:93]")
        b(f"s_lshr_b32 {sT}, s2, 3\ns_lshl_b32 {sT}, {sT}, 2\ns_add_u32 {sT}, {sT}, {sW}\ns_lshl_b32 {sT}, {sT}, 7\nv_mov_b32 v24, {sT}")
        b.raw(f"global_load_dword a{JUNK}, v24, s[92:93]")
    b(f"s_mov_b32 {sRB}, {ST0 + 2*STSZ}\ns_mov_b32 {sCnt}, 0\ns_mov_b32 {sDB}, {ST0 + STSZ}\ns_mov_b32 {sEv}, 0")
    b("v_and_b32 v26, 15, v1\nv_lshrrev_b32 v27, 1, v26\nv_xor_b32 v27, v27, v21\nv_lshlrev_b32 v27, 4, v27\nv_lshlrev_b32 v25, 7, v26\nv_add_u32 v27, v27, v25")
    b(f"s_mul_i32 {sT}, {sQH}, 10240\ns_add_u32 {sT}, {sT}, {sRB}")
    for u in range(2): b(f"v_xor_b32 v{XA[u]}, {u*64}, v27\nv_add_u32 v{XA[u]}, {sT}, v{XA[u]}")
    b("v_lshrrev_b32 v30, 2, v1\nv_and_b32 v31, 7, v30\nv_and_b32 v26, 3, v30")
    b(f"s_lshl_b32 {sT}, {sKH}, 2\nv_xor_b32 v27, {sT}, v31\nv_lshlrev_b32 v27, 5, v27")
    b("v_lshlrev_b32 v25, 3, v21\nv_add_u32 v28, v25, v26\nv_lshlrev_b32 v28, 8, v28")
    b("v_and_b32 v29, 3, v1\nv_lshlrev_b32 v29, 3, v29\nv_add3_u32 v28, v28, v27, v29")
    b(f"s_add_u32 {sT}, {sRB}, 20480")
    for d in range(4): b(f"v_xor_b32 v{WA[d]}, {d*32}, v28\nv_add_u32 v{WA[d]}, {sT}, v{WA[d]}")
    b("v_lshlrev_b32 v23, 8, v21\nv_add_u32 v22, v22, v23")
    b(f"s_lshl_b32 {sT}, {sQH}, 7\nv_xor_b32 v{KVW}, {sT}, v22\nv_add_u32 v{KVW}, {sW1}, v{KVW}")
    ROT = opt("rot", 3)
    if ROT == 0: b(f"s_mov_b32 {sRot}, 0")
    if ROT == 1: b(f"s_lshr_b32 {sRot}, s2, 3\ns_lshl_b32 {sT}, s2, 2\ns_add_u32 {sRot}, {sRot}, {sT}\ns_and_b32 {sRot}, {sRot}, 31\ns_lshl_b32 {sRot}, {sRot}, 12")
    if ROT == 2: b(f"s_and_b32 {sRot}, {sH}, 31\ns_lshl_b32 {sRot}, {sRot}, 12")
    if ROT == 3: b(f"s_mul_i32 {sRot}, s2, 0x9E3779B1\ns_lshr_b32 {sRot}, {sRot}, 27\ns_lshl_b32 {sRot}, {sRot}, 12")
    b(f"s_mov_b32 {sKVm}, {sW1}\ns_mov_b32 {sKVs}, 0\ns_mov_b32 {sKVx}, {sRot}")
    b("s_mov_b32 s14, 131072\ns_mov_b32 s15, 0x20000\ns_mov_b32 s18, 131072\ns_mov_b32 s19, 0x20000")
    b(f"s_mov_b32 s22, {268435456 if STAMPS else WSREC}\ns_mov_b32 s23, 0x20000")
    b("s_mov_b32 s24, s70\ns_mov_b32 s25, s71\ns_mov_b32 s26, 256\ns_mov_b32 s27, 0x20000")
    b(f"s_add_u32 s68, s68, {sT3}\ns_addc_u32 s69, s69, 0\ns_mov_b32 s70, 327680\ns_mov_b32 s71, 0x20000")
    b(f"s_lshl_b32 {sT}, {sB}, 2\ns_add_u32 {sT}, {sT}, {sKq}\ns_mul_i32 {sT}, {sT}, 327680\ns_add_u32 s72, s20, {sT}\ns_addc_u32 s73, s21, 0\ns_mov_b32 s74, 327680\ns_mov_b32 s75, 0x20000")
    b(f"s_lshl_b32 {sT}, {sKq}, 13\ns_add_u32 {sT}, {sT}, {sHl}\ns_lshl_b32 {sT}, {sT}, 8\ns_add_u32 s76, s76, {sT}\ns_addc_u32 s77, s77, 0\ns_sub_u32 s78, 8388608, {sT}\ns_mov_b32 s79, 0x20000")
    if opt("sta", 0) == 3: stamp(b, 15)
    SENT = 0; F2W = opt("f2w", 0); CLR = 2

    def zero(r):
        big = int(r.split(":")[1][:-1]) - int(r.split("[")[1].split(":")[0]) == 15
        return f"{'v_mfma_f32_32x32x16_bf16' if big else MF} {r}, {vr(ZR,4)}, {vr(ZR,4)}, 0"
    ZEROS = [zero(vr(OK+16*i, 16)) for i in range(5)] + [zero(ar(OS+16*i, 16)) for i in range(5)] + [zero(vr(LA, 16)), zero(vr(LA+16, 4))]
    def p2_addr():
        b("v_lshrrev_b32 v21, 4, v1\nv_and_b32 v22, 7, v1\nv_lshlrev_b32 v22, 1, v22\nv_xor_b32 v22, v22, v21\nv_lshlrev_b32 v22, 4, v22")
        b("v_and_b32 v23, 15, v1\nv_lshlrev_b32 v23, 8, v23\nv_add_u32 v22, v22, v23")
        b(f"s_lshl_b32 {sT}, {sKH}, 14")
        for d in range(4): b(f"v_xor_b32 v{KA[d]}, {d*64}, v22\nv_add_u32 v{KA[d]}, {sT}, v{KA[d]}")
        b(f"v_lshrrev_b32 v21, 2, v1\nv_and_b32 v22, 7, v21\ns_lshl_b32 {sT2}, {sKH}, 2\nv_xor_b32 v22, {sT2}, v22\nv_lshlrev_b32 v22, 5, v22")
        b("v_lshlrev_b32 v21, 8, v21\nv_and_b32 v23, 3, v1\nv_lshlrev_b32 v23, 3, v23\nv_add3_u32 v22, v22, v21, v23")
        b(f"s_add_u32 {sT}, {sT}, 4096")
        for j in range(8): b(f"v_xor_b32 v{VA[j]}, {j*32}, v22\nv_add_u32 v{VA[j]}, {sT}, v{VA[j]}")
        b(f"s_mov_b32 {sPB}, 0")
    def spread(i0, extra):
        code = b.L[i0:]; b.L = b.L[:i0]
        step = max(1, len(code) // (len(extra) + 1))
        for i, ln in enumerate(code):
            if i % step == 0 and 1 <= i // step <= len(extra): b.L.append(extra[i // step - 1])
            b.L.append(ln)
    def setup_a():
        for i in range(4): b(f"v_mov_b32 v{ZR+i}, 0")
        b(f"v_lshlrev_b32 v{L16}, 4, v1\nv_add_u32 v{L16B}, 4096, v{L16}")
        i0 = len(b.L)
        p2_addr()
        b("v_mov_b32 v21, 0x3f803f80")
        if ROW1: b("v_and_b32 v22, 15, v1\nv_cmp_eq_u32 s[92:93], 0, v22\nv_cndmask_b32 v21, 0, v21, s[92:93]")
        for i in range(4): b(f"v_accvgpr_write_b32 a{ONES+i}, v21")
        b(f"s_mov_b32 {sPass}, 0\ns_mov_b32 {sCc}, {f32bits(math.log2(math.e) / math.sqrt(128.0))}")
        spread(i0, ZEROS[:6])
    def setup_b():
        i0 = len(b.L)
        b("v_lshrrev_b32 v21, 4, v1\nv_lshlrev_b32 v22, 1, v21\nv_and_b32 v23, 15, v1\nv_xor_b32 v22, v22, v23\nv_lshlrev_b32 v22, 4, v22")
        b(f"v_lshlrev_b32 v23, 11, v23\nv_lshlrev_b32 v{OUTV}, 3, v21\nv_add_u32 v{OUTV}, v{OUTV}, v23")
        b(f"v_lshlrev_b32 v23, 11, v21\nv_add_u32 v23, v23, v22\nv_xor_b32 v22, 128, v23\ns_lshl_b32 {sT}, {sW}, 15")
        for q in range(4):
            b(f"s_add_u32 {sT2}, {sT}, {q*(8192-1024)}\nv_add_u32 v{VW3[q]}, {sT2}, v{22 if q & 1 else 23}")
        b(f"v_add_u32 v{VB3[0]}, {sW4}, v{L16}\nv_add_u32 v{VB3[4]}, {sM5}, v{L16}")
        b(f"s_mul_i32 {sT}, {sQH}, 5120\ns_add_u32 {sT}, {sT}, {S3[0]}\nv_add_u32 v{XA3[0]}, {sT}, v{L16}\nv_add_u32 v{XA3[1]}, 10240, v{XA3[0]}")
        b(f"v_lshrrev_b32 v21, 2, v1\nv_and_b32 v22, 7, v21\ns_lshl_b32 {sT}, {sKq}, 1\ns_add_u32 {sT}, {sT}, {sKH}\nv_xor_b32 v22, {sT}, v22\nv_lshlrev_b32 v22, 5, v22")
        b("v_lshlrev_b32 v21, 8, v21\nv_and_b32 v23, 3, v1\nv_lshlrev_b32 v23, 3, v23\nv_add3_u32 v22, v22, v21, v23")
        for d in range(4): b(f"v_xor_b32 v{WA3[d]}, {d*64}, v22\nv_add_u32 v{WA3[d]}, {S3[0]+20480}, v{WA3[d]}")
        b(f"s_lshl_b32 {sOut}, {sT}, 5\ns_mul_i32 {sT2}, {sQH}, 163840\ns_add_u32 {sOut}, {sOut}, {sT2}\ns_lshl_b32 {sT3}, {sHl}, 8\ns_add_u32 {sOut}, {sOut}, {sT3}")
        b(f"s_mov_b32 s80, {order3(0,0)[0]}\ns_mov_b32 s81, {order3(0,0)[1]}")
        for bb in range(1, 8 if SIG3 == "rotp" else 4):
            b(f"s_cmp_eq_u32 {sB if SIG3 == 'rotp' else sBl}, {bb}\ns_cselect_b32 s80, {order3(bb & 3, bb >> 2)[0]}, s80\ns_cselect_b32 s81, {order3(bb & 3, bb >> 2)[1]}, s81")
        b(f"s_mul_i32 {sT}, {sHl}, 0x22222222\ns_xor_b32 s80, s80, {sT}\ns_xor_b32 s81, s81, {sT}")
        if TOUCH == 1:
            if THALF: b(f"s_lshr_b32 {sT}, s2, 3\ns_lshl_b32 {sT}, {sT}, 1\ns_and_b32 {sT2}, s2, 1\ns_add_u32 {sT}, {sT}, {sT2}\ns_lshl_b32 {sT}, {sT}, 15")
            else: b(f"s_lshr_b32 {sT}, s2, 3\ns_lshl_b32 {sT}, {sT}, 16")
            b(f"s_sub_u32 {sT}, {sT}, {sT3}\ns_lshl_b32 {sT2}, {sW}, {13 if THALF else 14}\ns_add_u32 {sT}, {sT}, {sT2}")
            b(f"v_cmp_gt_u32 s[92:93], {TL}, v1\nv_lshlrev_b32 v21, 7, v1\nv_add_u32 v21, {sT}, v21\nv_mov_b32 v22, 0x40000000\nv_cndmask_b32 v{TCH}, v22, v21, s[92:93]")
        if TOUCH == 8:
            b(f"s_and_b32 {sT}, s80, 14\ns_lshl_b32 {sT}, {sT}, 17\ns_lshl_b32 {sT2}, {sW}, 16\ns_add_u32 {sT}, {sT}, {sT2}")
            b(f"v_lshrrev_b32 v21, 1, v1\nv_lshlrev_b32 v21, 11, v21\nv_and_b32 v22, 1, v1\nv_lshlrev_b32 v22, 7, v22\nv_add3_u32 v{TCH}, v21, v22, {sT}")
        if TOUCH == 7:
            b(f"s_and_b32 {sT}, s80, 15\ns_lshl_b32 {sT}, {sT}, 17\ns_lshl_b32 {sT2}, {sW}, 15\ns_add_u32 {sT}, {sT}, {sT2}")
            b(f"v_lshrrev_b32 v21, 1, v1\nv_lshlrev_b32 v21, 11, v21\nv_and_b32 v22, 1, v1\nv_lshlrev_b32 v22, 7, v22\nv_add3_u32 v21, v21, v22, {sT}")
            b(f"v_lshrrev_b32 v22, 5, v1\nv_lshlrev_b32 v22, 30, v22\nv_add_u32 v{TCH}, v21, v22")
        spread(i0, ZEROS[6:])
    def setup_c():
        b(f"s_mul_i32 {sT}, {sB}, 1310720\ns_lshl_b32 {sT2}, {sH}, 1\ns_add_u32 {sT2}, {sT2}, {sKH}\ns_mul_i32 {sT2}, {sT2}, 20480\ns_add_u32 {sO0}, {sT}, {sT2}")
        b(f"s_mul_i32 {sT2}, {sQH}, 5120\ns_add_u32 {sO0}, {sO0}, {sT2}\ns_add_u32 {sO1}, {sO0}, 10240")
        b(f"s_lshl_b32 {sT}, {sB}, 2\ns_add_u32 {sT}, {sT}, {sKq}\ns_mul_i32 {sT}, {sT}, {FS1}\ns_add_u32 {sF1}, {sT}, {FLG1}")
        b(f"s_lshl_b32 {sT}, {sB}, 3\ns_add_u32 {sT}, {sT}, {sHl}\ns_lshl_b32 {sF2}, {sT}, 2")
        if F2W: b(f"s_add_u32 {sF2}, {sF2}, {sW}")
        b(f"s_mul_i32 {sF2}, {sF2}, {FS2}\ns_add_u32 {sF2}, {sF2}, {FLG2}")
        b(f"s_mul_i32 {sT}, {sT}, {16*PSL}\ns_mul_i32 {sT2}, {sW}, {PSL//4}\ns_add_u32 {sT}, {sT}, {sT2}\ns_add_u32 {sT}, {sT}, {PART}")
        for d in (1, 2, 3):
            b(f"s_xor_b32 {sT2}, {sKq}, {d}\ns_lshl_b32 {sT3}, {sT2}, 2\ns_add_u32 {sT3}, {sT3}, {sKq}\ns_mul_i32 {sT3}, {sT3}, {PSL}\ns_add_u32 {sPs[d]}, {sT}, {sT3}")
            b(f"s_lshl_b32 {sT3}, {sKq}, 2\ns_add_u32 {sT3}, {sT3}, {sT2}\ns_mul_i32 {sT3}, {sT3}, {PSL}\ns_add_u32 {sPl[d]}, {sT}, {sT3}")
        b("v_lshrrev_b32 v21, 5, v1\nv_lshlrev_b32 v21, 8, v21\nv_and_b32 v22, 15, v1\nv_lshlrev_b32 v22, 4, v22\nv_lshrrev_b32 v23, 1, v1\nv_and_b32 v23, 8, v23\nv_add3_u32 v21, v21, v22, v23")
        b(f"s_mul_i32 {sT2}, {sQH}, 20480\ns_add_u32 {sT2}, {sT2}, {QEX}\nv_add_u32 v22, {sT2}, v{L16}\ns_lshl_b32 {sT3}, {sKH}, 11\ns_add_u32 {sT2}, {sT2}, {sT3}\nv_add_u32 v21, {sT2}, v21")
        b("v_and_b32 v23, 48, v1")

    if opt("early", 0):
        setup_a(); setup_b(); setup_c()
    first_stage(1); first_stage_last(1)
    for r in [L16B, TCH, ZR, OUTV] + VW3 + [VB3[0], VB3[4]]: b(f"v_mov_b32 v{r}, 0")
    b(f"s_or_b32 {sT}, s2, {sW}\ns_cmp_lg_u32 {sT}, 0")
    b("s_cbranch_scc1 L_nonon")
    b(f"s_or_b32 s64, s64, 1\nv_mov_b32 v24, s64\nv_mov_b32 v25, s65")
    b(f"buffer_store_dwordx2 v[24:25], v{ZR}, {SD}, 0 offen sc0 sc1")
    b.label("L_nonon")
    b.vm = []
    b.raw("s_waitcnt vmcnt(9)")
    stamp(b, 1)

    def g_mfmas(buf, dord=(0, 1, 2, 3), c0=False):
        return [f"{MF} {vr(ACC+(d*5+q)*4,4)}, {ar(AF[buf]+4*d,4)}, {ar(BF[buf]+4*q,4)}, {'0' if c0 else vr(ACC+(d*5+q)*4,4)}" for d in dord for q in range(5)]
    def emit(x):
        if callable(x): x()
        else: b(x)
    def g_step(ph, dm, fill, first=False, more=(), bar=True, last=20):
        if bar:
            trace(b); b("s_barrier"); trace(b)
        vs, qs = ((1024, 2048), (4096, 1024))[ph == 3]
        xa, wa = (XA, WA) if ph == 1 else (XA3, WA3)
        more = list(more)
        for u in range(2):
            A = lambda d: [f"ds_read_b64_tr_b16 {ar(AF[u]+4*d+2*v,2)}, v{wa[d]} offset:{u*8192+v*vs}" for v in range(2)]
            rd = A(0) + [f"ds_read_b128 {ar(BF[u]+4*q,4)}, v{xa[u]} offset:{q*qs}" for q in range(5)] + A(1) + A(2) + A(3)
            mf = g_mfmas(u ^ 1, c0=first)
            if first and u == 0:
                for s in rd: b(s)
                rd = []
            for i in range(20 if u == 0 else last):
                if not (first and u == 0): b(mf[i])
                if (u, i) in dm: b(dm[(u, i)])
                elif rd: b(rd.pop(0))
                elif more: b(more.pop(0))
                for s in fill.get((u, i), []): emit(s)
                if u == 0 and i == 18: need(b, [ar(AF[0], 8), ar(BF[0], 20)])
                if u == 1 and i == 4: need(b, [ar(AF[0], 16)])
            assert not rd
        return more
    va = lambda r: f"v_add_u32 v{r}, {sDelta}, v{r}"
    def ringf(ph):
        xa, wa = (XA, WA) if ph == 1 else (XA3, WA3)
        return {(0, 7): [f"s_add_u32 {sT2}, {sRB}, {STSZ}"], (0, 9): [f"s_cmp_ge_u32 {sT2}, {LDS}"], (0, 10): [f"s_cselect_b32 {sT2}, {ST0}, {sT2}"],
                (0, 11): [f"s_sub_u32 {sDelta}, {sT2}, {sRB}"], (0, 14 if not opt("dg", 0) else 12): [va(xa[0])],
                (1, 2): [va(wa[0])], (1, 7): [va(xa[1])], (1, 10): [va(wa[1])], (1, 12): [va(wa[2])], (1, 15): [va(wa[3])]}
    DG = [(0, 4), (0, 8), (0, 12), (0, 16), (0, 19), (1, 9), (1, 13), (1, 16), (1, 18)]
    if opt("dg", 0) == 1: DG = [(0, 13), (0, 14), (0, 15), (0, 16), (0, 19), (1, 9), (1, 13), (1, 16), (1, 18)]
    def loopf(ph):
        f = ringf(ph)
        sg = "s58" if ph == 1 else "s80"; sgp = "s[58:59]" if ph == 1 else "s[80:81]"
        f.update({(0, 0): [f"s_and_b32 {sT}, {sg}, 15"], (0, 1): [f"s_lshl_b32 {sWO}, {sT}, {19 if ph == 1 else 17}"],
                  (0, 2): [f"s_add_u32 {sMX}, {sDB}, {sW4}"], (0, 3): [f"s_add_u32 m0, {sMX}, 20480"],
                  (0, 5): [f"s_lshl_b32 {sXO}, {sT}, 7" if ph == 1 else f"s_mul_i32 {sXO}, {sT}, 20480"],
                  (0, 6): [f"s_lshr_b64 {sgp}, {sgp}, 4"], (0, 17): [f"s_mov_b32 m0, {sMX}"],
                  (1, 0): [f"s_add_u32 {sMW}, {sDB}, {sM5}"], (1, 1): [f"s_mov_b32 {sDB}, {sRB}"], (1, 3): [f"s_mov_b32 {sRB}, {sT2}"],
                  (1, 5): [f"s_add_u32 {sCnt}, {sCnt}, 1"], (1, 6): [f"s_cmp_lt_u32 {sCnt}, 14"], (1, 8): ["s_cselect_b64 vcc, -1, 0"],
                  (1, 17): [f"s_mov_b32 m0, {sMW}"] + ([f"s_bitcmp1_b32 {sMask}, {sCnt}"] if ph == 1 else [])})
        return f
    EB1 = opt("eb1", 0); EB3 = opt("eb3", 0); BP = opt("bp", 17)
    DGE = [(0, 4), (0, 8), (0, 12), (0, 16), (1, 13), (1, 14), (1, 15), (1, 16), (0, 19)]
    def loope(ph, sync):
        f = loopf(ph)
        f[(0, 15)] = f.pop((1, 0)); f[(0, 17)] = [f"s_mov_b32 m0, {sMW}"]
        f[(1, 9)] = f.pop((1, 10)); f[(1, 11)] = f.pop((1, 12)); f[(1, 10)] = [f"s_mov_b32 m0, {sMX}"]
        w3 = f.pop((1, 15)); f.pop((1, 17))
        if ph == 1: f[(1, 12)] = [f"s_bitcmp1_b32 {sMask}, {sCnt}"]
        f[(1, BP)] = [sync]
        f.setdefault((1, 19 if BP == 18 else 18), []).extend(w3)
        return f
    def auto(ph, gaps, hook=None):
        xa, wa = (XA, WA) if ph == 1 else (XA3, WA3)
        sg = "s58" if ph == 1 else "s80"; sgp = "s[58:59]" if ph == 1 else "s[80:81]"
        rp = [[g for g in range(20*u, 20*u + 20) if g not in gaps][:13] for u in range(2)]
        it = [(f"s_and_b32 {sT}, {sg}, 15", 0, gaps[0]-1), (f"s_lshl_b32 {sWO}, {sT}, {19 if ph == 1 else 17}", 0, gaps[0]-1),
              (f"s_add_u32 m0, {sMX}, 20480", 0, gaps[0]-1),
              (f"s_lshl_b32 {sXO}, {sT}, 7" if ph == 1 else f"s_mul_i32 {sXO}, {sT}, 20480", 0, gaps[4]-1)]
        if ph == 3: it.append((f"s_lshr_b32 {sT3}, {sT}, 1", 0, gaps[4]-2))
        it += [(f"s_lshr_b64 {sgp}, {sgp}, 4", 0, 39), (f"s_add_u32 {sT2}, {sRB}, {STSZ}", 0, 39), (f"s_cmp_ge_u32 {sT2}, {LDS}", 0, 39),
               (f"s_cselect_b32 {sT2}, {ST0}, {sT2}", 0, 39), (f"s_sub_u32 {sDelta}, {sT2}, {sRB}", 0, 39), (va(xa[0]), rp[0][6], 39),
               (f"s_mov_b32 m0, {sMX}", gaps[3]+1, gaps[4]-1)]
        if ph == 3: it += [(f"s_bitcmp0_b32 {sRdy}, {sT3}", 0, gaps[4]-1), (hook, 0, gaps[4]-1)]
        it += [(f"s_add_u32 {sMW}, {sDB}, {sM5}", 0, 39), (f"s_add_u32 {sMX}, {sRB}, {sW4}", 0, 39), (f"s_mov_b32 {sDB}, {sRB}", 0, 39), (va(wa[0]), rp[1][1], 39),
               (f"s_mov_b32 {sRB}, {sT2}", 0, 39), (f"s_add_u32 {sCnt}, {sCnt}, 1", 0, 39), (f"s_cmp_lt_u32 {sCnt}, 14", 0, 39),
               ("s_cselect_b64 vcc, -1, 0", 0, 39), (va(xa[1]), rp[1][6], 39), (va(wa[1]), rp[1][8], 39), (va(wa[2]), rp[1][10], 39)]
        late = [(f"s_mov_b32 m0, {sMW}", gaps[7]+1, gaps[8]-1), (va(wa[3]), rp[1][12], 39)]
        late.sort(key=lambda x: x[1])
        it += late
        if ph == 1: it.append((f"s_bitcmp1_b32 {sMask}, {sCnt}", 0, 39))
        cap = {g: (0 if g in gaps else 1 if g in rp[0] + rp[1] else 3) for g in range(40)}
        cap[18] -= 1; cap[24] -= 1
        fill = {}; g = 0
        for k, (ins, lo, hi) in enumerate(it):
            hi = min([hi] + [x[2] for x in it[k+1:]])
            g = max(g, lo)
            while g < hi and cap[g] <= 0: g += 1
            while g in gaps and g > max(lo, 0) and g >= hi: g -= 1
            assert g <= hi, (ins, g, hi)
            cap[g] -= 1
            fill.setdefault(divmod(g, 20), []).append(ins)
        return [divmod(g, 20) for g in gaps], fill
    AG = [int(x) for x in opt("ag", "0").split(".")]
    def first_fill(ph):
        f = loopf(ph); g = {}
        g[(0, 0)] = sum([f[(0, i)] for i in (0, 1, 2, 3, 5, 6, 7, 9, 10, 11, 14 if not opt('dg', 0) else 12)], []) + f[(1, 0)] + f[(1, 1)] + f[(1, 3)] + f[(1, 5)] + f[(1, 6)] + f[(1, 8)]
        return f, g
    f, g = first_fill(1)
    DG0 = [(1, 13), (1, 14), (1, 15), (1, 16)]
    g.update({(1, 2): f[(1, 2)], (1, 7): f[(1, 7)], (1, 9): f[(1, 10)], (1, 11): f[(1, 12)], (1, 17): f[(1, 15)] + f[(0, 17)]})
    if EB1:
        for i in range((BP + 1) * 4, 80): b(f"v_mov_b32 v{ACC+i}, 0")
        g[(1, 17)] = f[(0, 17)]
        g_step(1, dict(zip(DG0, DW)), g, first=True, last=BP + 1)
        for x in DX[:4]: b(x)
        b(f"s_mov_b32 m0, {sMW}\ns_bitcmp1_b32 {sMask}, {sCnt}"); b(DX[4])
        b("s_branch L_p1end")
        def sync1():
            b.label("L_p1end")
            b("s_cbranch_scc1 L_aux")
            b.wait(lg=0, vm=9)
            b.label("L_auxback")
            trace(b)
            b("s_barrier")
            trace(b)
        b.raw(f".p2align {opt('al', 3)}")
        b.label("L_p1")
        b.lg = []
        i0 = len(b.L)
        g_step(1, dict(zip(DGE, DW + DX)), loope(1, sync1), bar=False)
        b("s_cbranch_vccnz L_p1")
    else:
        g_step(1, dict(zip(DG0 + [(1, 18), (1, 19)], DW + DX[:2])), g, first=True)
        b(DX[2]); b(DX[3]); b(f"s_mov_b32 m0, {sMW}\ns_add_u32 {sMX}, {sDB}, {sW4}\ns_bitcmp1_b32 {sMask}, {sCnt}"); b(DX[4])
        b("s_branch L_p1end")
        b.raw(f".p2align {opt('al', 3)}")
        b.label("L_p1")
        b.lg = []
        i0 = len(b.L)
        if len(AG) == 9:
            dg, ff = auto(1, AG)
            g_step(1, dict(zip(dg, DW + DX)), ff)
        else: g_step(1, dict(zip(DG, DW + DX)), loopf(1))
        b.label("L_p1end")
        b("s_cbranch_scc1 L_aux")
        b.wait(lg=0, vm=9)
        b.label("L_auxback")
        b("s_cbranch_vccnz L_p1")
    print("gemm step estimate", estimate(b.L[i0:], verbose=VERB))
    b.vm = []
    stamp(b, 2)
    KLD = f"buffer_load_dwordx4 v{KVW}, {SK}, {sKVx} offen {KVFL} lds"
    VLD = f"buffer_load_dwordx4 v{KVW}, {SV}, {sKVx} offen {KVFL} lds"
    M0K = f"s_mov_b32 m0, {sKVm}"; M0V = f"s_add_u32 m0, m0, 4096"
    ADV = [f"s_add_u32 {sKVm}, {sKVm}, 8192", f"s_add_u32 {sKVs}, {sKVs}, 4096"]
    XR = f"s_xor_b32 {sKVx}, {sKVs}, {sRot}"
    def pair():
        b(M0K); b(ADV[0]); b(KLD); b(M0V); b(ADV[1]); b(VLD); b(XR)
    NS = opt("ns", 5)
    n14 = opt("n14", 2); n15 = opt("n15", 2); nq = opt("nq", 2); NPI = opt("npi", 2); IENT = opt("ient", 32 - 6 * NPI); NA = opt("na", 6); npro = IENT - NA - NS - n14 - n15 - nq
    assert n14 <= 4 and n15 <= 4 and 0 <= nq <= 3 and 0 <= npro <= 5 and NA + n14 + n15 + nq <= 15 and NA + n14 <= 11
    pro1 = 1 if npro >= 1 and NA + n14 + n15 + nq < 15 else 0; pro2 = (npro - pro1 + 1) // 2; pro3 = npro - pro1 - pro2
    def k_read(i): return f"ds_read_b128 {ar(KF+4*i,4)}, v{KA[i%4]} offset:{(i//4)*8192}"
    def v_read(j): return [f"ds_read_b64_tr_b16 {ar(VF+4*j+2*v,2)}, v{VA[j]} offset:{v*8192}" for v in range(2)]
    def kv_step(n, extra, more=(), bar=True):
        slots = [((0, 3), (0, 4), (0, 6), (0, 8), (0, 12), (0, 13)), ((0, 15), (0, 16), (0, 17), (0, 19), (1, 0), (1, 1)),
                 ((1, 8), (1, 9), (1, 11), (1, 13), (1, 14), (1, 14)), ((1, 15), (1, 16), (1, 17), (1, 18), (1, 19), (1, 19))]
        dm = {}; f = {k: list(v) for k, v in extra.items()}
        for a, k, c, v, e, e2 in ([slots[0], slots[2]] if n == 2 else slots[:n]):
            f.setdefault(a, []).append(M0K); dm[k] = KLD; f.setdefault(c, []).append(M0V); dm[v] = VLD
            f.setdefault(e, []).append(ADV[0]); f.setdefault(c, []).append(ADV[1]); f.setdefault(e2, []).append(XR)
        return g_step(1, dm, f, more=more, bar=bar)
    kv_step(n14, ringf(1), bar=not EB1)
    if opt("sp", 0):
        setup_a()
        if opt("sp", 0) == 1: setup_b()
        setup_c()
    b.wait(lg=0, vm=2*n14)
    if opt("sta", 0) == 21: stamp(b, 15)
    kfirst = [f"ds_read_b128 {ar(K0F+4*d,4)}, v23 offset:{d*64}" for d in range(4)] + [k_read(i) for i in range(8)]
    more = kv_step(n15, {}, kfirst if NA >= 4 else [])
    need(b, [ar(AF[1], 16), ar(BF[1], 20)])
    b("s_barrier")
    if opt("sta", 0) == 20: stamp(b, 15)
    i0 = len(b.L)
    def pack(t):
        a = ACC + t * 4
        for i in range(4): b(f"v_mul_f32 v{a+i}, {sCc}, v{a+i}")
        b(f"v_cvt_pk_bf16_f32 v{a}, v{a}, v{a+1}\nv_cvt_pk_bf16_f32 v{a+1}, v{a+2}, v{a+3}")
    def qwr(t):
        d, q = divmod(t, 5); a = ACC + t * 4
        b(f"ds_write_b64 v21, {vr(a,2)} offset:{q*4096+(d>>1)*1024+(d&1)*512}")
    mf = g_mfmas(1)
    for i in range(25):
        if i < 20: b(mf[i])
        if i == 0: b(f"buffer_load_dwordx2 {vr(NONV,2)}, v{ZR}, {SD}, 0 offen sc0 sc1")
        elif i < 4:
            for k in range(2):
                if more: b(more.pop(0))
        if i in ((4, 14) if nq == 2 else (4, 11, 18)[:nq]): pair()
        if 0 <= i - 5 < 20: qwr(i - 5)
        if 0 <= i - 4 < 20: pack(i - 4)
    assert not more
    b(f"s_add_u32 {sT}, {sW1}, {(IENT-NS)*8192}\nv_add_u32 v21, {sT}, v{L16}")
    if NA >= 4: b.wait(lg=0)
    else: b.wait(lg=0, vm=min(2 * (NA + n14 + n15 + nq - 4), 2 * (n15 + nq)))
    b("s_barrier")
    print("q pack estimate", estimate(b.L[i0:]))
    stamp(b, 3)
    i0 = len(b.L)
    qr = [f"ds_read_b128 {ar(QF+(q*4+d)*4,4)}, v22 offset:{q*4096+d*1024}" for q in range(5) for d in range(4)]
    if NA < 4: qr = kfirst[:4] + qr + kfirst[4:]
    for i in range(10 if NA >= 4 else 13): b(qr.pop(0))
    if pro1: pair()
    sw = [f"ds_write_b128 v21, {ar(STG[i],4)} offset:{i*4096}" for i in range(2*NS)]
    neg = [f"v_sub_f32 v{NM+i}, 0, v{NM+i}" for i in range(20)]
    for t in range(20):
        q, d = divmod(t, 4)
        b(f"{MF} {vr(NM+4*q,4)}, {ar(K0F+4*d,4)}, {ar(QF+t*4,4)}, {'0' if d == 0 else vr(NM+4*q,4)}")
        if qr: b(qr.pop(0))
        if t == 13:
            need(b, [ar(QF, 80)])
            b("s_barrier")
        if t >= 14 and sw: b(sw.pop(0))
        if t >= 8: b(neg.pop(0))
    for i in range(pro2): pair()

    def col(n): return (0, 1, 0, 1, 2)[n % 5]
    def s_mfma(n, i):
        kt, d = i // 4, i % 4; q = n % 5
        dst = vr(SB[col(n)] + 4*kt, 4)
        return f"{MF} {dst}, {ar(KF+4*i,4)}, {ar(QF+(q*4+d)*4,4)}, {vr(NM+4*q,4) if d == 0 else dst}"
    def oreg(q, j): return vr(OK + (q*4+j)*4, 4) if j < 4 else ar(OS + (q*4+j-4)*4, 4)
    def p_mfma(n, j):
        q = n % 5
        if j == 8: return f"{MF} {vr(LA+4*q,4)}, {ar(ONES,4)}, {vr(PB[col(n)],4)}, {vr(LA+4*q,4)}"
        return f"{MF} {oreg(q,j)}, {ar(VF+4*j,4)}, {vr(PB[col(n)],4)}, {oreg(q,j)}"
    def v_exp(n, e): return f"v_exp_f32 v{SB[col(n)]+e}, v{SB[col(n)]+e}"
    def v_cvt(n, c): return f"v_cvt_pk_bf16_f32 v{PB[col(n)]+c}, v{SB[col(n)]+2*c}, v{SB[col(n)]+2*c+1}"
    NU = 40
    def slot(n, mem=None, sal=None, val=None):
        mem = mem or {}; sal = sal or {}; val = val or {}
        for p in range(17):
            if p < 16 and p % 2 == 0:
                if 0 <= n + 1 < NU: b(s_mfma(n + 1, p // 2))
            elif 0 <= n - 1 < NU: b(p_mfma(n - 1, p // 2))
            for s in mem.get(p, []): b(s)
            for s in sal.get(p, []): emit(s)
            if 0 <= n < NU:
                if p % 2 == 0 and p < 16: b(v_exp(n, p // 2))
                if p % 4 == 3: b(v_cvt(n, p // 4))
            for s in val.get(p, []): b(s)
    VR = [x for j in range(8) for x in v_read(j)]
    for i in range(8):
        b(s_mfma(0, i))
        if i >= 4: b(VR[i - 4])
        elif sw: b(sw.pop(0))
        b(neg.pop(0))
    assert not sw and not neg
    for i in range(pro3): pair()
    if opt("sp", 0) == 2: setup_b()
    if CLR == 1:
        for i in range(4): b(f"v_mov_b32 v{60+i}, -1")
        b(f"v_lshrrev_b32 v64, 1, v{L16}")
        for x in clears(60): b(x)
    b.label("L_p2entry")
    for i in range(8):
        b(s_mfma(1, i))
        b(VR[4 + i])
        if i >= 2 and i % 2 == 0: b(v_cvt(0, i // 2 - 1))
        b(v_exp(0, i))
    b(f"s_add_u32 m0, {sW1}, {(IENT%20)*8192-(4096 if NPI == 2 else 0)}\ns_add_u32 {sEv}, {sW1}, {LDS}\ns_mov_b32 {sKVs}, {IENT*4096}\n{XR}\ns_mov_b32 {sKVm}, 0\ns_mov_b32 {sCnt}, 0")
    b(v_cvt(0, 3))
    if TRACE == 2: b.raw("s_mov_b32 s100, 0")
    print("p2 prologue estimate", estimate(b.L[i0:]))
    stamp(b, 4)
    nd = lambda *ops: (lambda: need(b, ops))
    def merge(*ds):
        out = {}
        for d in ds:
            for k, v in d.items(): out.setdefault(k, []).extend(v)
        return out
    def body():
        INC = "s_add_u32 m0, m0, 4096"
        def ex():
            b("s_cbranch_scc1 L_tail")
            body.exit_state = b.state()
        m1 = {}; s1 = {}; m2 = {}; s2 = {}; m3 = {}; s3 = {}; s5 = {}
        WR = [f"s_cmp_eq_u32 m0, {sEv}", f"s_cselect_b32 m0, {sW1}, m0"]
        if NPI == 2:
            G = [int(x) for x in opt("g4", "1.5.9.13").split(".")]
            m4 = {G[0]: [KLD], G[1]: [VLD], G[2]: [KLD], G[3]: [VLD]}
            s4 = merge({G[0]-1: [INC]}, {G[1]-1: [INC]}, {G[1]+1: [XR]}, {G[2]-1: [INC]}, {G[3]-1: [INC]}, {G[3]+1: [XR]}, {G[0]+1: [ADV[1]]}, {G[2]+1: [ADV[1]]})
            v1 = {9: [va(KA[0]), va(KA[1])], 11: [va(KA[2])], 13: [va(KA[3]), va(VA[0])], 15: [va(VA[1])], 16: [va(VA[2]), va(VA[3])]}
            v2 = {3: [va(VA[4])], 11: [va(VA[5])]}
        elif NPI == 4:
            m4 = {1: [KLD], 5: [VLD], 9: [KLD], 13: [VLD]}; m2 = dict(m4)
            def sq(): return {2: [INC], 3: [ADV[1]], 6: [XR], 7: [INC, WR[0]], 8: [WR[1]], 10: [INC], 11: [ADV[1]]}
            s2 = sq(); s4 = sq()
            s3 = {0: [XR], 2: [INC], 8: [WR[0]], 10: [WR[1]]}; s5 = {0: [XR], 2: [INC], 4: [WR[0]], 6: [WR[1]]}
            v1 = {9: [va(KA[0]), va(KA[1])], 11: [va(KA[2])], 13: [va(KA[3]), va(VA[0])], 15: [va(VA[1])], 16: [va(VA[2]), va(VA[3])]}
            v2 = {3: [va(VA[4])], 11: [va(VA[5])]}
        else:
            m1 = {13: [KLD]}; s5 = {2: [INC], 4: [WR[0]], 6: [WR[1]], 0: [XR]}
            m2 = {5: [VLD], 13: [KLD]}; s2 = {0: [ADV[1]], 2: [INC], 6: [XR], 8: [INC], 10: [WR[0]], 12: [WR[1]]}
            m3 = {16: [VLD]}; s3 = {10: [INC], 8: [ADV[1]]}
            m4 = {9: [KLD], 16: [VLD]}; s4 = {0: [XR], 2: [INC], 4: [WR[0]], 6: [WR[1]], 12: [INC], 10: [ADV[1]]}
            v1 = {9: [va(KA[0]), va(KA[1])], 11: [va(KA[2])], 15: [va(KA[3])], 16: [va(VA[0]), va(VA[1])]}
            v2 = {1: [va(VA[2]), va(VA[3])], 3: [va(VA[4])], 11: [va(VA[5])]}
        if TOUCH == 1:
            assert NPI == 2
            m2[5] = [f"buffer_load_dword a{JUNK}, v{TCH}, {SW3}, {sT} offen"]
            s2 = {0: [f"s_cmp_lt_u32 {sCnt}, {TIT}"], 2: [f"s_cselect_b32 {sT}, {sKVm}, 0x40000000"], 6: [f"s_add_u32 {sKVm}, {sKVm}, {TL*128}"]}
        slot(1, merge({1: [VR[12]], 3: [VR[13]], 5: [VR[14]], 7: [VR[15]]}, m1),
             {0: [nd(ar(VF, 12))], 6: [nd(ar(VF, 24))], 12: [nd(ar(VF, 28))], 14: [nd(ar(VF, 32))],
              2: [f"s_add_u32 {sT2}, {sPB}, 32768"], 4: [f"s_cmp_ge_u32 {sT2}, {LDS}"], 8: [f"s_cselect_b32 {sT2}, 0, {sT2}"],
              9: [f"s_sub_u32 {sDelta}, {sT2}, {sPB}"], 10: [f"s_mov_b32 {sPB}, {sT2}"], 15: [f"s_cmp_eq_u32 {sCnt}, 7"],
              16: [ex]}, v1)
        slot(2, m2, merge(s2, {14: [f"s_cmp_eq_u32 {sCnt}, 6"]}), v2)
        b("s_cbranch_scc1 L_p2late")
        trace(b)
        b.raw(f"s_waitcnt vmcnt({min(opt('vb', 8), 2 * (IENT - 6)) if NPI == 4 else 5 if TOUCH == 1 or NPI == 3 else 4})")
        b.label("L_p2bar")
        if TRACE == 2: trace(b)
        b("s_barrier")
        trace(b)
        slot(3, merge({2*i+1: [k_read(i)] for i in range(8)}, m3),
             merge({6: [f"s_add_u32 {sCnt}, {sCnt}, 1"], 16 if NPI != 3 else 14: [nd(ar(KF, 16 if NPI != 3 else 12))]}, s3), {1: [va(VA[6])], 5: [va(VA[7])]})
        slot(4, m4, merge(s4, {3 if NPI != 4 else 4: [nd(ar(KF, 32))]}))
        slot(5, {1: VR[0:2], 3: [VR[2]], 5: [VR[3]], 7: [VR[4]], 9: VR[5:7], 11: [VR[7]], 13: VR[8:10], 15: [VR[10]], 16: [VR[11]]}, s5)
        b("s_branch L_p2")
        b.vm = []
    b.vm = []
    save = b.L; b.L = []
    body(); st1 = b.state(); t1 = b.L
    b.L = []; body(); st2 = b.state(); t2 = b.L
    assert st1[0] == st2[0]
    if not STAMPS: assert t1 == t2, "loop not steady"
    print("p2 body estimate", estimate(t2, verbose=VERB))
    b.L = save
    b.raw(f".p2align {opt('al', 3)}")
    b.label("L_p2")
    b.L += t2
    b.label("L_p2late")
    if TRACE == 2: trace(b)
    b.raw(f"s_waitcnt vmcnt({min(opt('vb', 8), 2 * (IENT - 6)) if NPI == 4 else 3 if NPI == 3 else 1 if TOUCH == 1 else 0})")
    WE = opt("we", 0)
    if WE:
        assert NPI == 2
        b(f"s_add_u32 m0, {sW4}, {S3[0]+20480}\ns_lshl_b32 {sWO}, {sHl}, 18")
        for x in DW3: b(x)
        b(f"s_add_u32 m0, {sW4}, {S3[1]+20480}\ns_add_u32 {sWO}, {sWO}, 0x20000")
        for x in DW3: b(x)
        b(f"s_mov_b32 m0, {sW1}")
    if TOUCH in (7, 8): b(f"buffer_load_dword a{JUNK}, v{TCH}, {SW3}, 0 offen")
    b("s_branch L_p2bar")
    b.label("L_tail")
    b.set_state(body.exit_state)
    b.vm = []
    b(f"s_mul_i32 {sT}, {sW}, 20480\nv_add_u32 v21, {sT}, v{L16}")
    b.raw("s_waitcnt vmcnt(0)")
    b("s_barrier")
    stamp(b, 5)
    i0 = len(b.L)
    EB = 65536; EXL = 81920 - EB; EXF = 87040 - EB
    LW, LO, LP, FW, FR = 3, 4, 5, 6, 7
    wr = lambda q: [f"ds_write_b128 v21, {ar(OS+(q*4+j)*4,4)} offset:{(q*4+j)*1024}" for j in range(4)]
    lw = lambda q: (lambda: b(f"ds_write_b32 v{LW}, v{LA+4*q} offset:{EXL+q*256}", f"L{q}"))
    RB = [64, 80, 64, 80, 24]
    rd = lambda q: [f"ds_read_b128 {vr(RB[q]+4*j,4)}, v22 offset:{(q*4+j)*1024}" for j in range(4)]
    LR = NM
    lr = lambda q: [f"ds_read_b32 v{LR+2*q}, v{LO} offset:{EXL+q*256}", f"ds_read_b32 v{LR+2*q+1}, v{LP} offset:{EXL+q*256}"]
    linv = lambda q: [f"v_add_f32 v{LR+2*q}, v{LR+2*q}, v{LR+2*q+1}", f"v_rcp_f32 v{LR+2*q}, v{LR+2*q}"]
    def nval(q, pr, packed):
        o = OK + (q*4+2*pr)*4; r = RB[q] + 8*pr
        if packed:
            out = [f"v_pk_add_f32 {vr(o+i,2)}, {vr(o+i,2)}, {vr(r+i,2)}" for i in range(0, 8, 2)]
            out += [f"v_pk_mul_f32 {vr(o+i,2)}, {vr(o+i,2)}, {vr(LR+2*q,2)} op_sel_hi:[1,0]" for i in range(0, 8, 2)]
        else:
            out = [f"v_add_f32 v{o+i}, v{o+i}, v{r+i}" for i in range(8)] + [f"v_mul_f32 v{o+i}, v{LR+2*q}, v{o+i}" for i in range(8)]
        return out + [f"v_cvt_pk_bf16_f32 v{o+i}, v{o+2*i}, v{o+2*i+1}" for i in range(4)]
    def nmem(q, pr):
        o = OK + (q*4+2*pr)*4
        vv, off = (L16, q * 1024) if q < 4 else (L16B, 0)
        return [f"buffer_store_dwordx4 {vr(o,4)}, v{vv}, {SO}, {sO1 if pr else sO0} offen offset:{off} {H1S}",
                f"ds_write_b128 v2, {vr(o,4)} offset:{pr*10240+q*1024}"]
    def chunks(lst, pos):
        n = -(-len(lst) // len(pos))
        return {p: lst[i*n:(i+1)*n] for i, p in enumerate(pos)}
    def meet(q):
        b.wait_tag(lgtag=f"L{q}")
        b("s_barrier")
    w = wr(0)
    slot(37, merge({5 + 2*i: [w[i]] for i in range(4)}, {} if WE else {1: DW3[0:2], 3: DW3[2:4], 13: DW3[0:2], 16: DW3[2:4]}),
         {0: [] if WE else [f"s_add_u32 m0, {sW4}, {S3[0]+20480}", f"s_lshl_b32 {sWO}, {sHl}, 18"],
          11: [] if WE else [f"s_add_u32 m0, {sW4}, {S3[1]+20480}", f"s_add_u32 {sWO}, {sWO}, 0x20000"],
          2: [f"s_xor_b32 {sT2}, {sW}, 2"], 3: [f"s_mul_i32 {sT}, {sT2}, 20480"], 4: [f"s_mul_i32 {sT3}, {sW}, 1280"],
          6: [f"s_add_u32 {sT3}, {sT3}, {EB}"], 8: [f"s_mul_i32 {sT2}, {sT2}, 1280"], 10: [f"s_add_u32 {sT2}, {sT2}, {EB}"],
          12: [f"s_mul_i32 {sMX}, {sKH}, {STSZ}"], 14: [f"s_lshl_b32 {sMW}, {sW}, 2"], 15: [lw(0)]},
         {3: ["v_lshlrev_b32 v23, 2, v1"], 5: [f"v_add_u32 v22, {sT}, v{L16}"], 9: [f"v_add_u32 v{LW}, {sT3}, v23"]})
    b(f"v_and_b32 v23, 60, v23\nv_add_u32 v{LO}, {sT3}, v23\nv_add_u32 v{LP}, {sT2}, v23\nv_add_u32 v2, {sMX}, v{XA3[0]}")
    meet(0)
    if opt("sta", 0) == 10: stamp(b, 15)
    r = lr(0) + rd(0); w = wr(1)
    slot(38, merge({1: r[0:2], 3: r[2:4], 5: r[4:6], 7: [w[0]], 9: [w[1]], 11: [w[2]], 13: [w[3]], 16: nmem(0, 0)}),
         {15: [lw(1)], 0: [f"s_add_u32 {sMW}, {sMW}, {EB}"]},
         merge({7: linv(0)}, chunks(nval(0, 0, False), [9, 11, 13, 15]), {16: nval(0, 1, False)}, {1: [f"v_mov_b32 v{FW}, {sMW}"], 5: [f"v_mov_b32 v{FR}, {EB}"]}))
    meet(1)
    if opt("sta", 0) == 11: stamp(b, 15)
    r = lr(1) + rd(1); w = wr(2)
    slot(39, merge({1: r[0:2] + nmem(0, 1)[:1], 3: r[2:4], 5: r[4:6], 7: [w[0]], 9: [w[1]], 11: [w[2]], 13: [w[3]], 16: nmem(1, 0)}, {15: nmem(0, 1)[1:]}),
         {15: [lw(2)]},
         merge({7: linv(1)}, chunks(nval(1, 0, False), [9, 11, 13, 15]), {16: nval(1, 1, True)}))
    meet(2)
    if opt("sta", 0) == 12: stamp(b, 15)
    r = lr(2) + rd(2); w = wr(3)
    slot(40, merge({1: r[0:2] + nmem(1, 1)[:1], 3: r[2:4], 5: r[4:6], 7: [w[0]], 9: [w[1]], 11: [w[2]], 13: [w[3]]},
                   {15: nmem(1, 1)[1:]}),
         {15: [lw(3)]}, {13: linv(2)})
    for x in nval(2, 0, True): b(x)
    for x in wr(4): b(x)
    lw(4)()
    b(nmem(2, 0)[0])
    b(f"v_add_f32 v8, v{LA}, v{LA+4}\nv_add_f32 v9, v{LA+8}, v{LA+12}\nv_add_f32 v8, v8, v{LA+16}\nv_add_f32 v8, v8, v9")
    thr = f32bits(2.0 ** 40) if not FORCE_SLOW else f32bits(-1.0)
    b(f"v_cmp_nge_f32 vcc, {thr}, v8")
    b(f"s_cmp_lg_u64 vcc, 0\ns_cselect_b32 {sT}, 1, 0\nv_mov_b32 v8, {sT}")
    b(f"ds_write_b32 v{FW}, v8 offset:{EXF}", "L5")
    for x in nval(2, 1, True): b(x)
    b(nmem(2, 1)[0])
    meet(5)
    if opt("sta", 0) == 13: stamp(b, 15)
    b(f"ds_read_b128 {vr(NM+12,4)}, v{FR} offset:{EXF}")
    for x in lr(3) + lr(4) + rd(3) + rd(4): b(x)
    b(nmem(2, 0)[1]); b(nmem(2, 1)[1])
    b(f"v_or_b32 v{NM+12}, v{NM+12}, v{NM+13}\nv_or3_b32 v{NM+12}, v{NM+12}, v{NM+14}, v{NM+15}")
    for x in linv(3) + linv(4): b(x)
    b(f"v_readfirstlane_b32 {sT}, v{NM+12}")
    b(f"s_andn2_b32 {sT}, {sT}, {sPass}\ns_cmp_lg_u32 {sT}, 0")
    b("s_cbranch_scc1 L_slow")
    if not opt("sta", 0): stamp(b, 15)
    for q in (3, 4):
        for pr in range(2):
            for x in nval(q, pr, True) + nmem(q, pr): b(x)
    b(f"s_mov_b32 {sRB}, {S3[0]}\ns_mov_b32 {sCnt}, 0\ns_mov_b32 {sDB}, {ST0}")
    b(f"v_and_b32 v21, 7, v1\nv_lshlrev_b32 v21, 8, v21\nv_and_b32 v4, 3, v1\nv_mul_u32_u24 v4, {FS1 if SENT else 256}, v4\nv_lshrrev_b32 v5, 1, v{L16}")
    b.wait(lg=0, vm=10)
    print("tail estimate", estimate(b.L[i0:]))
    stamp(b, 6)
    b.vm = []
    if TRACE == 3: b.raw("s_mov_b32 s100, 0")
    f, g = first_fill(3)
    g[(0, 0)] = g[(0, 0)] + [f"s_lshr_b32 {sT3}, {sT}, 1"]
    g.update({(1, 2): f[(1, 2)], (1, 7): f[(1, 7)], (1, 9): f[(1, 10)], (1, 11): f[(1, 12)], (1, 13): f[(1, 15)]})
    FLD = f"buffer_load_dwordx2 v[22:23], v21, {SO}, {sF1} offen {H1L}"
    EARLY = opt("ep", 1)
    dm = dict(zip([(0, 1), (0, 2), (0, 3), (0, 4)], DW3))
    if EARLY: dm[(1, opt("epos", 19))] = FLD
    g_step(3, dm, g, first=True)
    b(f"s_mov_b32 {sSpin}, 0")
    b.raw(f"s_waitcnt vmcnt({4 + EARLY}) lgkmcnt(0)")
    b.lg = []
    b("s_branch L_non1")
    b.label("L_non")
    b.wait(vm=0)
    b.label("L_non1")
    b(f"v_readfirstlane_b32 s64, v{NONV}\nv_readfirstlane_b32 s65, v{NONV+1}")
    b("s_cmp_lg_u32 s64, 0")
    b("s_cbranch_scc1 L_nonok")
    b(f"buffer_load_dwordx2 {vr(NONV,2)}, v{ZR}, {SD}, 0 offen sc0 sc1")
    b(f"s_add_u32 {sSpin}, {sSpin}, 1\ns_cmp_lt_u32 {sSpin}, {SPIN}")
    b("s_cbranch_scc1 L_non")
    b.label("L_nonok")
    b.vm = []
    stamp(b, 7)
    b("s_barrier")
    b(f"s_cmp_lg_u32 {sW}, 0")
    b("s_cbranch_scc1 L_pubd")
    b(f"s_lshl_b32 {sT}, {sHl}, 8\ns_add_u32 {sT}, {sT}, {sF1}")
    b("s_mov_b64 exec, 1")
    b(f"buffer_store_dwordx2 {vr(NONV,2)}, v{ZR}, {SO}, {sT} offen {H1F}")
    b("s_mov_b64 exec, -1")
    if EARLY:
        b.raw("s_waitcnt vmcnt(1)")
        b("s_branch L_pubd1")
    b.label("L_pubd")
    ALL = opt("all", 0)
    def test(back):
        b.raw(f"v_cmp_eq_u64 s[92:93], {sNon}, v[22:23]")
        b(f"s_mov_b32 {sRdy}, s92\ns_bitcmp1_b32 s92, {sT3}")
        b(f"s_cbranch_scc1 {back}")
    if EARLY:
        b.raw("s_waitcnt vmcnt(0)")
        b.label("L_pubd1")
        test("L_poll0ok")
    def poll1(lab, back):
        b(f"s_mov_b32 {sSpin}, 0")
        b.label(lab)
        b.raw(FLD)
        b.raw("s_waitcnt vmcnt(0)")
        test(back)
        if SLEEP: b(f"s_sleep {SLEEP}")
        b(f"s_add_u32 {sSpin}, {sSpin}, 1\ns_cmp_lt_u32 {sSpin}, {SPIN}")
        b(f"s_cbranch_scc1 {lab}")
    poll1("L_poll0", "L_poll0ok")
    b.label("L_poll0ok")
    stamp(b, 8)
    b(f"s_mov_b32 m0, {sMX}\ns_and_b32 {sT}, s80, 15")
    for x in DX3[:4]: b(x)
    b(f"s_mov_b32 m0, {sMW}\ns_lshl_b32 {sWO}, {sT}, 17")
    b(DX3[4])
    if opt("peel1", 0):
        assert SIG3.startswith("pair")
        b(f"s_add_u32 m0, {sW4}, {S3[0]}\ns_mul_i32 {sXO}, {sT}, 20480")
        f1 = ringf(3)
        f1.update({(0, 6): ["s_lshr_b64 s[80:81], s[80:81], 4"], (0, 12): [f"s_add_u32 m0, {sM5}, {S3[0]}"], (0, 15): [f"s_add_u32 m0, {sW4}, {S3[0]+20480}"],
                   (1, 1): [f"s_mov_b32 {sDB}, {sRB}"], (1, 3): [f"s_mov_b32 {sRB}, {sT2}"], (1, 5): [f"s_add_u32 {sCnt}, {sCnt}, 1"]})
        f1[(0, 18)] = f1.pop((0, 14))
        dm = dict(zip([(0, 0), (0, 2), (0, 4), (0, 8), (0, 13), (0, 16), (0, 19), (1, 13), (1, 16)], DX3 + DW3))
        dm[(1, 18)] = FLD
        b.vm = []
        g_step(3, dm, f1, bar=False)
        b.raw("s_waitcnt vmcnt(10) lgkmcnt(0)")
        b.lg = []
    else:
        b.wait(lg=0)
    b.vm = []
    def sync3():
        b.wait(lg=0, vm=9)
        trace(b); b("s_barrier"); trace(b)
    f3 = loope(3, sync3) if EB3 else loopf(3)
    f3[(0, 13)] = [f"s_lshr_b32 {sT3}, {sT}, 1"]
    def chk():
        b("s_cbranch_scc1 L_wait1")
        b.label("L_wait1back")
    f3[(0, 17)] = f3[(0, 17)] + [f"s_bitcmp0_b32 {sRdy}, {sT3}", chk]
    if EB3 and opt("peel1", 0): b("s_barrier")
    b(f"s_add_u32 {sMX}, {sDB}, {sW4}")
    b.raw(f".p2align {opt('al', 3)}")
    b.label("L_p3")
    i0 = len(b.L)
    if len(AG) == 9:
        dg, ff = auto(3, AG, chk)
        g_step(3, dict(zip(dg, DW3 + DX3)), ff)
    else: g_step(3, dict(zip(DGE if EB3 else DG, DW3 + DX3)), f3, bar=not EB3)
    if not EB3: b.wait(lg=0, vm=9)
    b("s_cbranch_vccnz L_p3")
    print("p3 step estimate", estimate(b.L[i0:], verbose=VERB))
    b.vm = []
    stamp(b, 9)
    PFL = f"buffer_load_dwordx2 v[6:7], v4, {SO}, {sF2} offen {HLD}"
    AFX = lambda g: (AF[1], 160, 0, 16, 32)[g]
    BFX = lambda g: (BF[1], 176, 48, 196, 216)[g]
    def mm(g, d, q): return f"{MF} {vr(ACC+(d*5+q)*4,4)}, {ar(AFX(g)+4*d,4)}, {ar(BFX(g)+4*q,4)}, {vr(ACC+(d*5+q)*4,4)}"
    rf = ringf(3)
    for st in range(2):
        if st == 1 or not EB3:
            trace(b); b("s_barrier"); trace(b)
        pre = ([rf[(0, 7)], rf[(0, 9)], rf[(0, 10)], rf[(0, 11)]] if st == 0 else [[f"s_lshl_b32 {sT}, {sKq}, 8"], [f"s_add_u32 {sT}, {sT}, {sF2}"]])
        for u in range(2):
            g = 1 + 2*st + u
            A = lambda d: [f"ds_read_b64_tr_b16 {ar(AFX(g)+4*d+2*v,2)}, v{WA3[d]} offset:{u*8192+v*4096}" for v in range(2)]
            rdl = A(1) + [f"ds_read_b128 {ar(BFX(g)+4*q,4)}, v{XA3[u]} offset:{q*1024}" for q in range(5)] + A(2) + A(3) + A(0)
            upd = {} if st == 1 else ({8: XA3[0]} if u == 0 else {2: WA3[1], 7: XA3[1], 9: WA3[2], 11: WA3[3], 13: WA3[0]})
            for i in range(15):
                b(mm(g - 1, 1 + i // 5, i % 5))
                if rdl: b(rdl.pop(0))
                if pre:
                    for x in pre.pop(0): b(x)
                if i in upd: b(va(upd[i]))
                if i == 14 and not (st == 0 and u == 1): need(b, [ar(AFX(g)+4, 4), ar(BFX(g), 20)])
                if i == 3 and g > 1: need(b, [ar(AFX(g - 1), 16)])
        if st == 0: b.wait(lg=0, vm=0)
    stamp(b, 10)
    mf = [mm(4, 1 + i // 5, i % 5) for i in range(15)] + [mm(g, 0, q) for g in range(5) for q in range(5)]
    PK = 104; RK = 144
    for i in range(40):
        b(mf[i])
        t = i - 6
        if 0 <= t < 15:
            d, q = 1 + t // 5, t % 5; pk = PK + (d-1)*12
            if q in (1, 3): b(f"buffer_store_dwordx4 {vr(pk+2*(q-1),4)}, v{L16}, {SO}, {sPs[d]} offen offset:{(q//2)*1024} {HST}")
            if q == 4: b(f"buffer_store_dwordx2 {vr(pk+8,2)}, v5, {SO}, {sPs[d]} offen offset:2048 {HST}")
        t = i - 5
        if 0 <= t < 15:
            d, q = 1 + t // 5, t % 5; pk = PK + (d-1)*12 + 2*q; a = ACC + (d*5+q)*4
            b(f"v_cvt_pk_bf16_f32 v{pk}, v{a}, v{a+1}\nv_cvt_pk_bf16_f32 v{pk+1}, v{a+2}, v{a+3}")
    if not SENT:
        b.wait(vm=0)
        stamp(b, 11)
        if not F2W:
            b("s_barrier")
            b(f"s_cmp_lg_u32 {sW}, 0")
            b("s_cbranch_scc1 L_wait2")
        b("s_mov_b64 exec, 1")
        b(f"buffer_store_dwordx2 {vr(NONV,2)}, v{ZR}, {SO}, {sT} offen {HST}")
        b("s_mov_b64 exec, -1")
        b.label("L_wait2")
        b(f"s_mov_b32 {sSpin}, 0")
        P2 = opt("pp2", 1)
        regs = ["v[6:7]", "v[8:9]", "v[10:11]"][:P2]
        ld = lambda r: b.raw(f"buffer_load_dwordx2 {r}, v4, {SO}, {sF2} offen {HLD}")
        for r in regs[1:]:
            ld(r); b(f"s_sleep {opt('psl', 3)}")
        b.label("L_poll3")
        for k in range(P2):
            ld(regs[k])
            b.raw(f"s_waitcnt vmcnt({P2-1})")
            b.raw(f"v_cmp_ne_u64 vcc, {sNon}, {regs[(k + 1) % P2]}")
            b("s_cbranch_vccz L_wait2back")
            if P2 == 1 and opt('sleep2', 4): b(f"s_sleep {opt('sleep2', 4)}")
        b(f"s_add_u32 {sSpin}, {sSpin}, 1\ns_cmp_lt_u32 {sSpin}, {SPIN}")
        b("s_cbranch_scc1 L_poll3")
        b.label("L_wait2back")
        stamp(b, 12)
    else: stamp(b, 11)
    b(f"s_mov_b32 {sSpin}, 0")
    if opt("pre2", 0): b(f"s_sleep {opt('pre2', 0)}")
    b.label("L_poll2")
    b.vm = []
    for h in range(3):
        for d in (1, 2, 3):
            pk = RK + (d-1)*12
            if h < 2: b(f"buffer_load_dwordx4 {vr(pk+4*h,4)}, v{L16}, {SO}, {sPl[d]} offen offset:{h*1024} {HLD}")
            else: b(f"buffer_load_dwordx2 {vr(pk+8,2)}, v5, {SO}, {sPl[d]} offen offset:2048 {HLD}")
    if SENT:
        rr = [RK + (d-1)*12 + 4*h + i for h in range(3) for d in (1, 2, 3) for i in range(4 if h < 2 else 2)]
        b(f"v_max_u32 v8, v{rr[0]}, v{rr[1]}")
        for i in range(2, 30, 2): b(f"v_max3_u32 v8, v8, v{rr[i]}, v{rr[i+1]}")
        b("v_cmp_eq_u32 vcc, -1, v8")
        b("s_cbranch_vccz L_poll2ok")
        if SLEEP: b(f"s_sleep {opt('sleep2', 4)}")
        b(f"s_add_u32 {sSpin}, {sSpin}, 1\ns_cmp_lt_u32 {sSpin}, {SPIN}")
        b("s_cbranch_scc1 L_poll2")
        b.label("L_poll2ok")
        stamp(b, 12)
    OFL = opt("ofl", "").replace("+", " ")
    for q in range(5):
        a = ACC + q * 4
        for d in (1, 2, 3):
            pk = RK + (d-1)*12 + 2*q
            for i in range(2):
                b(f"v_lshlrev_b32 v{a+20*d+2*i}, 16, v{pk+i}\nv_and_b32 v{a+20*d+2*i+1}, 0xffff0000, v{pk+i}")
        for i in (0, 2): b(f"v_pk_add_f32 {vr(a+i,2)}, {vr(a+i,2)}, {vr(a+20+i,2)}")
        for i in (0, 2): b(f"v_pk_add_f32 {vr(a+40+i,2)}, {vr(a+40+i,2)}, {vr(a+60+i,2)}")
        for i in (0, 2): b(f"v_pk_add_f32 {vr(a+i,2)}, {vr(a+i,2)}, {vr(a+40+i,2)}")
        b(f"v_cvt_pk_bf16_f32 v{a}, v{a}, v{a+1}\nv_cvt_pk_bf16_f32 v{a+1}, v{a+2}, v{a+3}")
        b(f"buffer_store_dwordx2 {vr(a,2)}, v{OUTV}, {SOUT}, {sOut} offen {OFL}")
        if q < 4: b(f"s_add_u32 {sOut}, {sOut}, 32768")
    if STAMPS:
        stamp(b, 13)
        if not opt("gap", 0): b.wait(vm=0)
        stamp(b, 14)
        b(f"s_cmp_lg_u32 {sW}, 0")
        b("s_cbranch_scc1 L_nost")
        b(f"v_lshlrev_b32 v3, 2, v1\ns_lshl_b32 {sT}, s2, 7\ns_add_u32 {sT}, {sT}, {STAMP_OFF}\ns_mov_b32 exec_hi, 0")
        b(f"buffer_store_dword v254, v3, {SO}, {sT} offen")
        b("s_mov_b64 exec, -1")
        b.label("L_nost")
        b(f"v_lshlrev_b32 v3, 2, v1\ns_lshl_b32 {sT}, s2, 2\ns_add_u32 {sT}, {sT}, {sW}\ns_lshl_b32 {sT}, {sT}, 7\ns_add_u32 {sT}, {sT}, {STAMP_OFF + (2 << 20)}\ns_mov_b32 exec_hi, 0")
        b(f"buffer_store_dword v254, v3, {SO}, {sT} offen")
        b("s_mov_b64 exec, -1")
        if TRACE:
            b(f"s_lshl_b32 {sT}, s2, 2\ns_add_u32 {sT}, {sT}, {sW}\ns_lshl_b32 {sT}, {sT}, 9\ns_add_u32 {sT}, {sT}, {STAMP_OFF + (1 << 20)}")
            b(f"buffer_store_dword v0, v3, {SO}, {sT} offen")
    b.label("L_end")
    b("s_endpgm")

    b.label("L_wait1")
    b.lg = []; b.vm = []
    if opt("peel1", 0):
        b.raw("s_waitcnt vmcnt(4)")
        test("L_wait1back")
    poll1("L_poll1", "L_wait1back")
    b("s_branch L_wait1back")
    if SENT:
        b.label("L_wait2")
        b(f"s_mov_b32 {sSpin}, 0")
        b.label("L_poll3")
        b(PFL)
        b.wait(vm=0)
        b(f"v_cmp_ne_u64 vcc, {sNon}, v[6:7]")
        b("s_cbranch_vccz L_wait2back")
        b(f"s_sleep 4\ns_add_u32 {sSpin}, {sSpin}, 1\ns_cmp_lt_u32 {sSpin}, {SPIN}")
        b("s_cbranch_scc1 L_poll3")
        b("s_branch L_wait2back")

    EV = [[int(x) for x in e.split(".")] for e in opt("ev", "3.0,3.1,0.4").split(",")]
    assert sum(e[0] for e in EV) == NA and sum(e[1] for e in EV) == NS
    b.label("L_aux")
    rp = 0
    for k, (nd_, nr_) in enumerate(EV):
        b.lg = []; b.vm = []
        if k + 1 < len(EV):
            b(f"s_cmp_lg_u32 {sEv}, {k}")
            b(f"s_cbranch_scc1 L_aux{k+1}")
        for i in range(nd_): pair()
        for i in range(nr_):
            b(f"s_xor_b32 {sT}, {sRot}, {(IENT-NS+rp)*4096}")
            b(f"buffer_load_dwordx4 {ar(STG[2*rp],4)}, v{KVW}, {SK}, {sT} offen {KVFL}")
            b(f"buffer_load_dwordx4 {ar(STG[2*rp+1],4)}, v{KVW}, {SV}, {sT} offen {KVFL}")
            rp += 1
        b(f"s_add_u32 {sEv}, {sEv}, 1")
        if not opt("early", 0) and not opt("sp", 0): (setup_a, setup_b, setup_c)[k]()
        b.wait(lg=0, vm=9 + 2*(nd_ + nr_))
        b("s_branch L_auxback")
        if k + 1 < len(EV): b.label(f"L_aux{k+1}")

    b.label("L_slow")
    b.wait(lg=0, vm=0)
    b("s_barrier")
    b(f"s_mov_b32 {sPass}, 1")
    b("v_and_b32 v21, 15, v1\nv_lshlrev_b32 v21, 8, v21\nv_lshrrev_b32 v22, 4, v1\nv_lshlrev_b32 v22, 4, v22\nv_add_u32 v21, v21, v22")
    for q in range(5): b(f"v_mov_b32 v{72+q}, 0xff800000")
    b(f"s_mov_b32 {sCnt}, 0")
    b.label("L_slowloop")
    for d in range(4): b(f"buffer_load_dwordx4 {vr(24+4*d,4)}, v21, {SK}, {sCnt} offen offset:{d*64}")
    b.wait(vm=0)
    for q in range(5):
        for d in range(4):
            b(f"{MF} {vr(80+4*q,4)}, {vr(24+4*d,4)}, {ar(QF+(q*4+d)*4,4)}, {'0' if d == 0 else vr(80+4*q,4)}")
    for q in range(5):
        b(f"v_max3_f32 v{72+q}, v{72+q}, v{80+4*q}, v{81+4*q}\nv_max3_f32 v{72+q}, v{72+q}, v{82+4*q}, v{83+4*q}")
    b(f"s_add_u32 {sCnt}, {sCnt}, 4096\ns_cmp_lt_u32 {sCnt}, 131072")
    b("s_cbranch_scc1 L_slowloop")
    for sw_ in ("v_permlane16_swap_b32", "v_permlane32_swap_b32"):
        for q in range(5): b(f"v_mov_b32 v{64+q}, v{72+q}")
        for q in range(5): b(f"{sw_} v{72+q}, v{64+q}")
        for q in range(5): b(f"v_max_f32 v{72+q}, v{72+q}, v{64+q}")
    for q in range(5):
        for i in range(4): b(f"v_sub_f32 v{NM+4*q+i}, 0, v{72+q}")
    p2_addr()
    b(f"s_mov_b32 {sKVm}, {sW1}\ns_mov_b32 {sKVs}, 0\ns_mov_b32 {sKVx}, {sRot}")
    for z in ZEROS: b(z)
    b.label("L_slowkv")
    pair()
    b(f"s_cmp_lt_u32 {sKVs}, {IENT * 4096}")
    b("s_cbranch_scc1 L_slowkv")
    b.wait(vm=0)
    b("s_barrier")
    for i in range(8): b(k_read(i))
    for i in range(4): b(VR[i])
    for i in range(8): b(s_mfma(0, i))
    b("s_nop 7")
    b("s_branch L_p2entry")
    return b.L

def gen_probe(spec):
    i, ri, j, rj = spec.split(",")
    b = B()
    b.raw(".p2align 8"); b.raw(".type mha_probe_kernel,@function"); b.label("mha_probe_kernel")
    b("s_cmp_ge_u32 s2, 1"); b("s_cbranch_scc1 L3_end")
    b.raw("s_memrealtime s[16:17]")
    b.raw("s_load_dwordx2 s[4:5], s[0:1], 56"); b.raw("s_waitcnt lgkmcnt(0)")
    b("s_mov_b32 s6, 268435456\ns_mov_b32 s7, 0x20000")
    b(f"v_mul_u32_u24 v1, 512, v0\nv_lshrrev_b32 v4, 1, v0\nv_and_b32 v4, 3, v4\nv_lshlrev_b32 v4, 7, v4\nv_add_u32 v1, v1, v4\ns_mov_b32 s8, {STAMP_OFF}")
    b(f"buffer_load_dword v2, v1, s[4:7], s8 offen offset:{8*int(i)}")
    b(f"buffer_load_dword v3, v1, s[4:7], s8 offen offset:{8*int(j)}")
    b.wait(vm=0)
    b("v_readlane_b32 s9, v2, 0")
    b("s_sub_u32 s9, s9, 100000")
    b("v_subrev_u32 v2, s9, v2\nv_subrev_u32 v3, s9, v3")
    for v, r, acc in ((2, ri, "s10"), (3, rj, "s11")):
        b(f"s_mov_b32 {acc}, {'-1' if r == 'min' else '0'}")
        for l in range(64):
            b(f"v_readlane_b32 s12, v{v}, {l}")
            b(f"{dict(min='s_min_u32', max='s_max_u32', avg='s_add_u32')[r]} {acc}, {acc}, s12")
        if r == 'avg': b(f"s_lshr_b32 {acc}, {acc}, 3")
        else: b(f"s_lshl_b32 {acc}, {acc}, 3")
    if opt("abs", 0):
        b("s_lshr_b32 s10, s10, 3\ns_add_u32 s12, s10, s9\ns_mov_b32 s10, 10000")
        if opt("abs", 0) == 2:
            b(f"s_mov_b32 s8, {STAMP_OFF + (3 << 20)}\nv_mov_b32 v1, 0\nbuffer_load_dword v2, v1, s[4:7], s8 offen")
            b.wait(vm=0)
            b("v_readfirstlane_b32 s12, v2")
    else:
        if opt("gap", 0): b("s_sub_u32 s11, s16, s9\ns_lshl_b32 s11, s11, 3")
        b("s_sub_u32 s10, s11, s10\ns_min_u32 s10, s10, 100000")
        b.raw("s_memrealtime s[12:13]"); b.raw("s_waitcnt lgkmcnt(0)")
    b.label("L3_spin")
    b.raw("s_memrealtime s[14:15]"); b.raw("s_waitcnt lgkmcnt(0)")
    b("s_sub_u32 s14, s14, s12\ns_cmp_lt_u32 s14, s10")
    b("s_cbranch_scc1 L3_spin")
    b.label("L3_end")
    b("s_endpgm")
    if opt("abs", 0) == 2:
        b.raw(".p2align 8"); b.raw(".type mha_tiny_kernel,@function"); b.label("mha_tiny_kernel")
        b.raw("s_memrealtime s[8:9]")
        b.raw("s_load_dwordx2 s[4:5], s[0:1], 56"); b.raw("s_waitcnt lgkmcnt(0)")
        b("s_cmp_ge_u32 s2, 1"); b("s_cbranch_scc1 L4_end")
        b(f"s_mov_b32 s6, 268435456\ns_mov_b32 s7, 0x20000\ns_mov_b32 s10, {STAMP_OFF + (3 << 20)}\nv_mov_b32 v1, 0\nv_mov_b32 v2, s8")
        b("buffer_store_dword v2, v1, s[4:7], s10 offen")
        b.label("L4_end")
        b("s_endpgm")
    return b.L

def main():
    k, n = hazard_pass(gen(), verbose=VERB)
    head = ["; Fused MHA block, one workgroup per (batch, head): Q projection, attention, then a quarter (in k) of the output",
            "; projection; workgroups hand O and partial sums to each other through d_ws. Written by dev/gen17.py.",
            "; @launch grid=(256,1,1) block=(256,1,1) lds=163840",
            '.amdgcn_target "amdgcn-amd-amdhsa--gfx950"', ".text", f".globl {NAME}"]
    tail = ['.section .rodata,"a"', ".p2align 6", f".amdhsa_kernel {NAME}", "  .amdhsa_next_free_vgpr 512", "  .amdhsa_next_free_sgpr 102",
            "  .amdhsa_accum_offset 256", "  .amdhsa_group_segment_fixed_size 0", "  .amdhsa_kernarg_size 64", "  .amdhsa_user_sgpr_count 2",
            "  .amdhsa_user_sgpr_kernarg_segment_ptr 1", "  .amdhsa_system_sgpr_workgroup_id_x 1", ".end_amdhsa_kernel"]
    if "probe" in P:
        k3, _ = hazard_pass(gen_probe(P["probe"]))
        k = k + k3
        head[2] = f"; @launch kernel={NAME} grid=(256,1,1) block=(256,1,1) lds=163840\n; @launch kernel=mha_probe_kernel grid=(1,1,1) block=(64,1,1) lds=0"
        head.append(".globl mha_probe_kernel")
        if opt("abs", 0) == 2:
            head[2] = "; @launch kernel=mha_tiny_kernel grid=(1,1,1) block=(64,1,1) lds=0\n" + head[2]
            head.append(".globl mha_tiny_kernel")
            tail += [".p2align 6", ".amdhsa_kernel mha_tiny_kernel", "  .amdhsa_next_free_vgpr 8", "  .amdhsa_next_free_sgpr 32",
                "  .amdhsa_accum_offset 8", "  .amdhsa_group_segment_fixed_size 0", "  .amdhsa_kernarg_size 64", "  .amdhsa_user_sgpr_count 2",
                "  .amdhsa_user_sgpr_kernarg_segment_ptr 1", "  .amdhsa_system_sgpr_workgroup_id_x 1", ".end_amdhsa_kernel"]
        tail += [".p2align 6", ".amdhsa_kernel mha_probe_kernel", "  .amdhsa_next_free_vgpr 8", "  .amdhsa_next_free_sgpr 32",
            "  .amdhsa_accum_offset 8", "  .amdhsa_group_segment_fixed_size 0", "  .amdhsa_kernarg_size 64", "  .amdhsa_user_sgpr_count 2",
            "  .amdhsa_user_sgpr_kernarg_segment_ptr 1", "  .amdhsa_system_sgpr_workgroup_id_x 1", ".end_amdhsa_kernel"]
    fmt = lambda l: l if l.endswith(":") or l.startswith((".", ";")) else "    " + l
    open(sys.argv[1], "w").write("\n".join(head + [fmt(l) for l in k] + tail) + "\n")
    print(f"nops inserted: {n}; lines {len(k)}")
main()
```

```python
import sys, math, struct
from asmlib import B, hazard_pass, need, estimate

P = dict(kv.split("=") for kv in sys.argv[2:])
def opt(k, d): return type(d)(P.get(k, d))
STAMPS = opt("stamps", 0); TRACE = opt("trace", 0); VERB = bool(opt("v", 0))
KVFL = opt("kvfl", "nt").replace("+", " ")
HST = opt("hst", "sc0+sc1").replace("+", " ")
HLD = opt("hld", "sc0+sc1").replace("+", " ")
H1S = opt("h1s", "sc0+sc1").replace("+", " "); H1F = opt("h1f", "sc0+sc1").replace("+", " "); H1L = opt("h1l", "sc0+sc1").replace("+", " ")
FORCE_SLOW = opt("slow", 0)
SIG = opt("sig", "g122"); SIG3 = opt("sig3", "g4000442"); AUXT = opt("auxt", "p0.2.4/1.3.5/1.2.6/0.3.7")
TL = opt("tl", 11); TIT = opt("tit", 6); THALF = opt("thalf", 1)

TOUCH = opt("touch", 7)
SLEEP = opt("sleep", 4); ONEPOLL = opt("onepoll", 1); PBF = opt("pbf", 1)
NAME = "standalone__mha_block_cached__near_ridge_kernel"
STAMP_OFF = 200 << 20; NST = 16
TIMER = "s_memtime" if STAMPS == 2 else "s_memrealtime"
PART = 12 << 20; PSL = 10240 if opt('pbf', 1) else 20480; FLG1 = PART + 64 * 16 * PSL + (2 << 20); FS1 = opt('fs1', 8448); FS2 = opt('fs2', 4352); FLG2 = FLG1 + (1 << 20); WSREC = FLG2 + (2 << 20)

def vr(a, n=1, k='v'): return f"{k}{a}" if n == 1 else f"{k}[{a}:{a+n-1}]"
def ar(a, n=1): return vr(a, n, 'a')
def f32bits(x): return "0x%08x" % struct.unpack("<I", struct.pack("<f", x))[0]

def stamp(b, i):
    if STAMPS and (not opt("light", 0) or i == 14):
        b.wait(lg=0)
        b.raw(f"{TIMER} s[96:97]"); b.raw("s_waitcnt lgkmcnt(0)")
        b.raw(f"v_writelane_b32 v254, s96, {2*i}"); b.raw(f"v_writelane_b32 v254, s97, {2*i+1}")
def trace(b):
    if TRACE:
        b.wait(lg=0)
        for s in ("s_memtime s[96:97]", "s_waitcnt lgkmcnt(0)", "s_sub_u32 s96, s96, s98", "s_mov_b32 s97, m0", "s_mov_b32 m0, s100",
                  "v_writelane_b32 v0, s96, m0", "s_add_u32 s100, s100, 1", "s_min_u32 s100, s100, 63", "s_mov_b32 m0, s97"): b.raw(s)

def order(kind, j):
    if kind == "seq": return list(range(16)), [2, 6, 10]
    if kind == "xor": return [t ^ j for t in range(16)], [4, 8, 12]
    if kind.startswith("g"):
        ramp = [int(c) for c in kind[1:]]
        O = [[] for _ in range(4)]; LD = [[] for _ in range(4)]; opened = {}; nxt = 0; turn = 0
        for t in range(16):
            n = min(ramp[t] if t < len(ramp) else 1, 16 - nxt)
            lead_cls = [(turn + i) % 4 for i in range(n)]; turn = (turn + n) % 4
            fresh = []
            for c in lead_cls:
                O[c].append(nxt); LD[c].append(t); opened[nxt] = t; fresh.append(nxt); nxt += 1
            k = 0
            for c in range(4):
                if c in lead_cls: continue
                old = [x for x in sorted(opened) if x not in O[c] and opened[x] < t]
                if old: O[c].append(old[0])
                else:
                    O[c].append(fresh[k % len(fresh)]); k += 1
        o = O[j]; assert sorted(o) == list(range(16)), o
        lead = [t for t in LD[j] if t >= 2][:3]
        while len(lead) < 3: lead.append(min(lead[-1] + 3, 15))
        return o, lead
    o = []; lead = []
    if kind == "rot":
        for t in range(16):
            if t == 0: o.append(j)
            elif t % 4 == j and t + 3 < 16: o.append(t + 3); lead.append(t)
            else: o.append([c for c in range(16) if c not in o and (c < 4 or (c - 3) < t) and not (c >= 4 and (c - 3) % 4 == j)][0])
    elif kind == "rot2":
        for t in range(16):
            if t == 0: o.append(0)
            elif t == 1: o.append(1 + j)
            elif (t - 1) % 4 == j and t + 3 < 16: o.append(t + 3); lead.append(t)
            else: o.append([c for c in range(16) if c not in o and (c < 5 or (c - 3) < t) and not (c >= 5 and (c - 4) % 4 == j)][0])
    assert sorted(o) == list(range(16)), o
    lead = [t for t in lead if t >= 2][:3]
    while len(lead) < 3: lead.append(lead[-1] + 2)
    return o, lead
def tables(kind):
    T = []
    for j in range(4):
        o, lead = order(kind, j)
        if AUXT.startswith("c"):
            off, base = int(AUXT[1]), int(AUXT[2])
            lead = [((j + off) % 4) + base + 4 * k + 2 for k in range(3)]
        elif AUXT.startswith("d"):
            sp, base = int(AUXT[1]), int(AUXT[2])
            lead = [base + (j * sp) // 4 + sp * k + 2 for k in range(3)]
        elif AUXT.startswith("p"):
            lead = [int(v) + 2 for v in AUXT[1:].split("/")[j].split(".")]
        elif AUXT != "lead": lead = [int(v) + 2 for v in AUXT.split(".")]
        if opt("sp", 0):
            ev = opt("ev", "3.0,3.0,0.4").split(",")
            lead = lead[opt("l0", 1):][:len(ev)] if ev != ["0.0"] else []
        val = sum(c << (4 * t) for t, c in enumerate(o))
        T.append((val & 0xffffffff, val >> 32, sum(1 << (t - 1) for t in lead)))
    return T

def order3(j, p):
    if SIG3.startswith("g"):
        ramp = [int(c) for c in SIG3[1:].rstrip("p")]
        PX = opt("px", 1); PS = opt("ps", 8)
        O = [[] for _ in range(4)]; opened = {}; nxt = 0; turn = 0
        for t in range(14):
            n = min(ramp[t] if t < len(ramp) else 1, 14 - nxt)
            lead_cls = [(turn + i) % 4 for i in range(n)]; turn = (turn + n) % 4
            fresh = []
            for c in lead_cls:
                O[c].append(nxt); opened[nxt] = t; fresh.append(nxt); nxt += 1
            k = 0
            for c in range(4):
                if c in lead_cls: continue
                old = [x for x in sorted(opened) if x not in O[c] and opened[x] < t]
                if PX: old.sort(key=lambda x: (x ^ c) if x < 4 else x)
                if old: O[c].append(old[0])
                else:
                    O[c].append(fresh[k % len(fresh)]); k += 1
        o = O[j]; assert sorted(o) == list(range(14)), o
        if p and SIG3.endswith("p"): o = [(c + PS) % 14 for c in o]
    elif SIG3 == "seq": o = list(range(14))
    elif SIG3.startswith("pair"):
        gap = int(SIG3[4:5] or 1)
        o = [2 * j, 2 * j + 1]
        lt = {8 + i: 2 + gap * i for i in range(6)}
        for t in range(2, 14):
            mine = [c for c in lt if lt[c] == t and (c - 8) % 4 == j]
            if mine: o.append(mine[0]); continue
            ok = [c for c in range(14) if c not in o and (c < 8 or (lt[c] < t - 1 and (c - 8) % 4 != j))]
            if not ok: ok = [c for c in range(14) if c not in o and not ((c - 8) % 4 == j and lt[c] > t)]
            ok.sort(key=lambda c: (c != (o[-1] ^ 1), c >= 8, (c - 2 * j) % 8 if c < 8 else c))
            o.append(ok[0])
        assert sorted(o) == list(range(14)), o
    else:
        o = []
        for t in range(14):
            if t == 0: o.append(j)
            elif t % 4 == j and t + 3 < 14: o.append(t + 3)
            else: o.append([c for c in range(14) if c not in o and (c < 4 or (c - 3) < t) and not (c >= 4 and (c - 3) % 4 == j)][0])
        assert sorted(o) == list(range(14))
        if p and SIG3 == "rotp": o = [(c + 7) % 14 for c in o]
    val = sum((c + 2) << (4 * t) for t, c in enumerate(o))
    return val & 0xffffffff, val >> 32
ROW1 = opt('row1', 1)
def gen():
    b = B()
    SX, SW, SK, SV, SO, SD = "s[4:7]", "s[8:11]", "s[12:15]", "s[16:19]", "s[20:23]", "s[24:27]"
    SOUT, SX3, SW3 = "s[68:71]", "s[72:75]", "s[76:79]"
    sW, sB, sH, sCnt = "s28", "s29", "s30", "s31"
    sRB, sDB, sDelta, sMask = "s32", "s33", "s34", "s35"
    sXO, sWO, sMX, sMW, sM5, sT, sT2, sT3 = "s36", "s37", "s38", "s39", "s40", "s41", "s42", "s43"
    sW4, sW1, sPB, sKVm, sKVs, sPass, sO0, sO1, sCls = "s44", "s45", "s46", "s47", "s48", "s49", "s50", "s51", "s52"
    sCc, sSpin, sQH, sKH = "s53", "s54", "s56", "s57"
    sBl, sHl, sKq, sEv = "s60", "s61", "s62", "s63"
    sKVx, sRot = "s55", "s66"
    sNon = "s[64:65]"
    sPs = [None, "s82", "s83", "s84"]; sPl = [None, "s85", "s86", "s87"]
    sF1, sOut, sRdy, sF2 = "s88", "s89", "s90", "s91"
    XA = [2, 3]; WA = [4, 5, 6, 7]; VB = [8, 9, 10, 11, 12]; VW = [13, 14, 15, 16]; KVW, NONV, L16 = 17, 18, 20
    ACC = 24; OK = 104; KA = [184, 185, 186, 187]; VA = list(range(188, 196)); NM = 196; LA = 216; L16B = 236; TCH = 237
    XA3 = [238, 239]; ZR = 240; WA3 = [244, 245, 246, 247]; VW3 = [248, 249, 250, 251]; VB3 = [252] * 4 + [253]; OUTV = 255
    SB = [24, 32, 40]; PB = [48, 52, 56]
    OS, QF, KF, VF, ONES, JUNK, K0F = 0, 80, 160, 192, 224, 228, 240
    STG = [VF + 4*i for i in range(8)] + [232, 236]
    AF = [80, 96]; BF = [112, 132]
    ST0 = 53248; STSZ = 36864; LDS = 163840; QEX = 122880
    S3 = [ST0 + STSZ, ST0 + 2*STSZ]
    FL = 256; SPIN = 200000
    MF = "v_mfma_f32_16x16x32_bf16"

    b.raw(".p2align 8")
    b.raw(f".type {NAME},@function")
    b.label(NAME)
    b("s_cmp_ge_u32 s2, 256")
    b("s_cbranch_scc1 L_end")
    b.track = False
    b("s_load_dwordx4 s[4:7], s[0:1], 0")
    b("s_load_dwordx4 s[8:11], s[0:1], 16")
    b("s_load_dwordx4 s[68:71], s[0:1], 40")
    b("s_load_dwordx2 s[76:77], s[0:1], 32")
    b("s_load_dwordx2 s[20:21], s[0:1], 56")
    b("s_memrealtime s[64:65]")
    if STAMPS: b.raw(f"{TIMER} s[94:95]")
    if TRACE: b.raw("s_memtime s[98:99]"); b.raw("s_mov_b32 s100, 0")
    b.track = True
    b("v_and_b32 v1, 63, v0\nv_lshrrev_b32 v21, 6, v0")
    b(f"s_and_b32 {sB}, s2, 1\ns_lshl_b32 {sB}, {sB}, 2\ns_lshr_b32 {sT}, s2, 3\ns_and_b32 {sBl}, {sT}, 3\ns_add_u32 {sB}, {sB}, {sBl}")
    b(f"v_readfirstlane_b32 {sW}, v21")
    b(f"s_lshr_b32 {sKq}, s2, 1\ns_and_b32 {sKq}, {sKq}, 3\ns_lshl_b32 {sH}, {sKq}, 3\ns_lshr_b32 {sHl}, {sT}, 2\ns_add_u32 {sH}, {sH}, {sHl}")
    b(f"s_add_u32 {sCls}, {sBl}, {sHl}\ns_and_b32 {sCls}, {sCls}, 3")
    T = tables(SIG)
    b(f"s_mov_b32 s58, {T[0][0]}\ns_mov_b32 s59, {T[0][1]}\ns_mov_b32 {sMask}, {T[0][2]}")
    for j in (1, 2, 3):
        b(f"s_cmp_eq_u32 {sCls}, {j}\ns_cselect_b32 s58, {T[j][0]}, s58\ns_cselect_b32 s59, {T[j][1]}, s59\ns_cselect_b32 {sMask}, {T[j][2]}, {sMask}")
    if opt("xoff", 1) in (5, 6):
        b(f"s_and_b32 {sT2}, s2, 1\ns_lshl_b32 {sT2}, {sT2}, 1\ns_xor_b32 {sT2}, {sT2}, {sKq}")
        if opt("xoff", 1) == 6: b(f"s_lshl_b32 {sT3}, {sKq}, 1\ns_and_b32 {sT3}, {sT3}, 2\ns_xor_b32 {sT2}, {sT2}, {sT3}")
        b(f"s_mul_i32 {sT2}, {sT2}, 0x44444444\ns_xor_b32 s58, s58, {sT2}\ns_xor_b32 s59, s59, {sT2}")
    elif opt("xoff", 1):
        if opt("xoff", 1) == 1: b(f"s_xor_b32 {sT2}, s2, {sKq}")
        if opt("xoff", 1) == 2: b(f"s_lshr_b32 {sT2}, s2, 7\ns_xor_b32 {sT2}, {sT2}, s2")
        if opt("xoff", 1) == 3: b(f"s_lshr_b32 {sT2}, s2, 7\ns_xor_b32 {sT2}, {sT2}, s2\ns_xor_b32 {sT2}, {sT2}, {sKq}")
        if opt("xoff", 1) == 4: b(f"s_lshr_b32 {sT2}, s2, 7")
        b(f"s_bitcmp1_b32 {sT2}, 0\ns_cselect_b32 {sT2}, 0x88888888, 0\ns_xor_b32 s58, s58, {sT2}\ns_xor_b32 s59, s59, {sT2}")
    b(f"s_lshl_b32 {sW4}, {sW}, 12\ns_lshl_b32 {sW1}, {sW}, 10\ns_and_b32 {sQH}, {sW}, 1\ns_lshr_b32 {sKH}, {sW}, 1")
    b("v_lshrrev_b32 v21, 4, v1")
    b("v_and_b32 v22, 7, v1\nv_xor_b32 v22, v22, v21\nv_lshlrev_b32 v22, 4, v22")
    b("v_lshrrev_b32 v23, 3, v1\nv_lshlrev_b32 v23, 11, v23\nv_add_u32 v22, v22, v23\nv_xor_b32 v23, 64, v22")
    b(f"s_lshl_b32 {sT}, {sW}, 16")
    for q in range(4):
        b(f"s_add_u32 {sT2}, {sT}, {q*(16384-1024)}\nv_add_u32 v{VB[q]}, {sT2}, v{23 if q & 1 else 22}")
    b(f"s_lshl_b32 {sT}, {sQH}, 6\nv_xor_b32 v{VB[4]}, {sT}, v22\ns_lshl_b32 {sT}, {sW}, 14\ns_add_u32 {sT}, {sT}, {16*16384}\nv_add_u32 v{VB[4]}, {sT}, v{VB[4]}")
    b("v_lshlrev_b32 v22, 1, v21\nv_and_b32 v23, 15, v1\nv_xor_b32 v22, v22, v23\nv_lshlrev_b32 v22, 4, v22")
    b(f"v_lshlrev_b32 v23, 13, v21\nv_add_u32 v23, v23, v22\nv_xor_b32 v{L16}, 128, v23")
    b(f"s_lshl_b32 {sT}, {sW}, 17")
    for q in range(4):
        b(f"s_add_u32 {sT2}, {sT}, {q*(32768-1024)}\nv_add_u32 v{VW[q]}, {sT2}, v{L16 if q & 2 else 23}")
    b(f"s_add_u32 {sM5}, {sW1}, 16384")
    b(f"s_lshl_b32 {sT}, {sB}, 5\ns_add_u32 {sT}, {sT}, {sH}\ns_lshl_b32 {sT}, {sT}, 17\ns_lshl_b32 {sT2}, {sH}, 8\ns_mul_i32 {sT3}, {sB}, 327680")
    b.raw("s_waitcnt lgkmcnt(0)")
    b(f"s_add_u32 s12, s6, {sT}\ns_addc_u32 s13, s7, 0")
    b(f"s_add_u32 s16, s8, {sT}\ns_addc_u32 s17, s9, 0")
    b(f"s_add_u32 s8, s10, {sT2}\ns_addc_u32 s9, s11, 0\ns_sub_u32 s10, 8388608, {sT2}\ns_mov_b32 s11, 0x20000")
    b(f"s_add_u32 s4, s4, {sT3}\ns_addc_u32 s5, s5, 0\ns_mov_b32 s6, 327680\ns_mov_b32 s7, 0x20000")
    def dma_lists(vw, sw, vb, sx, fl=""):
        return ([f"buffer_load_dwordx4 v{vw[q]}, {sw}, {sWO} offen offset:{q*1024} lds" for q in range(4)],
                [f"buffer_load_dwordx4 v{vb[q]}, {sx}, {sXO} offen offset:{q*1024} {fl} lds" for q in range(4)] +
                [f"buffer_load_dwordx4 v{vb[4]}, {sx}, {sXO} offen {fl} lds"])
    DW, DX = dma_lists(VW, SW, VB, SX)
    DW3, DX3 = dma_lists(VW3, SW3, VB3, SX3, H1L)
    def first_stage(st):
        base = ST0 + ((st+2)%3)*STSZ
        b(f"s_and_b32 {sT}, s58, 15\ns_add_u32 m0, {sW4}, {base+20480}\ns_lshl_b32 {sWO}, {sT}, 19")
        for x in DW: b(x)
        b(f"s_add_u32 m0, {sW4}, {base}\ns_lshl_b32 {sXO}, {sT}, 7")
        for x in DX[:4]: b(x)
    def first_stage_last(st):
        base = ST0 + ((st+2)%3)*STSZ
        b(f"s_add_u32 m0, {sM5}, {base}\ns_lshr_b64 s[58:59], s[58:59], 4")
        b(DX[4])
    if opt("sta", 0) == 1: stamp(b, 15)
    first_stage(0)
    if not opt("late5", 0): first_stage_last(0)
    if opt("sta", 0) == 2: stamp(b, 15)
    if STAMPS: b.raw("v_writelane_b32 v254, s94, 0"); b.raw("v_writelane_b32 v254, s95, 1")
    if opt("ctouch", 0):
        b.raw("s_getpc_b64 s[92:93]")
        b(f"s_lshr_b32 {sT}, s2, 3\ns_lshl_b32 {sT}, {sT}, 2\ns_add_u32 {sT}, {sT}, {sW}\ns_lshl_b32 {sT}, {sT}, 7\nv_mov_b32 v24, {sT}")
        b.raw(f"global_load_dword a{JUNK}, v24, s[92:93]")
    b(f"s_mov_b32 {sRB}, {ST0 + 2*STSZ}\ns_mov_b32 {sCnt}, 0\ns_mov_b32 {sDB}, {ST0 + STSZ}\ns_mov_b32 {sEv}, 0")
    b("v_and_b32 v26, 15, v1\nv_lshrrev_b32 v27, 1, v26\nv_xor_b32 v27, v27, v21\nv_lshlrev_b32 v27, 4, v27\nv_lshlrev_b32 v25, 7, v26\nv_add_u32 v27, v27, v25")
    b(f"s_mul_i32 {sT}, {sQH}, 10240\ns_add_u32 {sT}, {sT}, {sRB}")
    for u in range(2): b(f"v_xor_b32 v{XA[u]}, {u*64}, v27\nv_add_u32 v{XA[u]}, {sT}, v{XA[u]}")
    b("v_lshrrev_b32 v30, 2, v1\nv_and_b32 v31, 7, v30\nv_and_b32 v26, 3, v30")
    b(f"s_lshl_b32 {sT}, {sKH}, 2\nv_xor_b32 v27, {sT}, v31\nv_lshlrev_b32 v27, 5, v27")
    b("v_lshlrev_b32 v25, 3, v21\nv_add_u32 v28, v25, v26\nv_lshlrev_b32 v28, 8, v28")
    b("v_and_b32 v29, 3, v1\nv_lshlrev_b32 v29, 3, v29\nv_add3_u32 v28, v28, v27, v29")
    b(f"s_add_u32 {sT}, {sRB}, 20480")
    for d in range(4): b(f"v_xor_b32 v{WA[d]}, {d*32}, v28\nv_add_u32 v{WA[d]}, {sT}, v{WA[d]}")
    b("v_lshlrev_b32 v23, 8, v21\nv_add_u32 v22, v22, v23")
    b(f"s_lshl_b32 {sT}, {sQH}, 7\nv_xor_b32 v{KVW}, {sT}, v22\nv_add_u32 v{KVW}, {sW1}, v{KVW}")
    ROT = opt("rot", 3)
    if ROT == 0: b(f"s_mov_b32 {sRot}, 0")
    if ROT == 1: b(f"s_lshr_b32 {sRot}, s2, 3\ns_lshl_b32 {sT}, s2, 2\ns_add_u32 {sRot}, {sRot}, {sT}\ns_and_b32 {sRot}, {sRot}, 31\ns_lshl_b32 {sRot}, {sRot}, 12")
    if ROT == 2: b(f"s_and_b32 {sRot}, {sH}, 31\ns_lshl_b32 {sRot}, {sRot}, 12")
    if ROT == 3: b(f"s_mul_i32 {sRot}, s2, 0x9E3779B1\ns_lshr_b32 {sRot}, {sRot}, 27\ns_lshl_b32 {sRot}, {sRot}, 12")
    b(f"s_mov_b32 {sKVm}, {sW1}\ns_mov_b32 {sKVs}, 0\ns_mov_b32 {sKVx}, {sRot}")
    b("s_mov_b32 s14, 131072\ns_mov_b32 s15, 0x20000\ns_mov_b32 s18, 131072\ns_mov_b32 s19, 0x20000")
    b(f"s_mov_b32 s22, {268435456 if STAMPS else WSREC}\ns_mov_b32 s23, 0x20000")
    b("s_mov_b32 s24, s70\ns_mov_b32 s25, s71\ns_mov_b32 s26, 256\ns_mov_b32 s27, 0x20000")
    b(f"s_add_u32 s68, s68, {sT3}\ns_addc_u32 s69, s69, 0\ns_mov_b32 s70, 327680\ns_mov_b32 s71, 0x20000")
    b(f"s_lshl_b32 {sT}, {sB}, 2\ns_add_u32 {sT}, {sT}, {sKq}\ns_mul_i32 {sT}, {sT}, 327680\ns_add_u32 s72, s20, {sT}\ns_addc_u32 s73, s21, 0\ns_mov_b32 s74, 327680\ns_mov_b32 s75, 0x20000")
    b(f"s_lshl_b32 {sT}, {sKq}, 13\ns_add_u32 {sT}, {sT}, {sHl}\ns_lshl_b32 {sT}, {sT}, 8\ns_add_u32 s76, s76, {sT}\ns_addc_u32 s77, s77, 0\ns_sub_u32 s78, 8388608, {sT}\ns_mov_b32 s79, 0x20000")
    if opt("sta", 0) == 3: stamp(b, 15)
    SENT = 0; F2W = opt("f2w", 0); CLR = 2

    def zero(r):
        big = int(r.split(":")[1][:-1]) - int(r.split("[")[1].split(":")[0]) == 15
        return f"{'v_mfma_f32_32x32x16_bf16' if big else MF} {r}, {vr(ZR,4)}, {vr(ZR,4)}, 0"
    ZEROS = [zero(vr(OK+16*i, 16)) for i in range(5)] + [zero(ar(OS+16*i, 16)) for i in range(5)] + [zero(vr(LA, 16)), zero(vr(LA+16, 4))]
    def p2_addr():
        b("v_lshrrev_b32 v21, 4, v1\nv_and_b32 v22, 7, v1\nv_lshlrev_b32 v22, 1, v22\nv_xor_b32 v22, v22, v21\nv_lshlrev_b32 v22, 4, v22")
        b("v_and_b32 v23, 15, v1\nv_lshlrev_b32 v23, 8, v23\nv_add_u32 v22, v22, v23")
        b(f"s_lshl_b32 {sT}, {sKH}, 14")
        for d in range(4): b(f"v_xor_b32 v{KA[d]}, {d*64}, v22\nv_add_u32 v{KA[d]}, {sT}, v{KA[d]}")
        b(f"v_lshrrev_b32 v21, 2, v1\nv_and_b32 v22, 7, v21\ns_lshl_b32 {sT2}, {sKH}, 2\nv_xor_b32 v22, {sT2}, v22\nv_lshlrev_b32 v22, 5, v22")
        b("v_lshlrev_b32 v21, 8, v21\nv_and_b32 v23, 3, v1\nv_lshlrev_b32 v23, 3, v23\nv_add3_u32 v22, v22, v21, v23")
        b(f"s_add_u32 {sT}, {sT}, 4096")
        for j in range(8): b(f"v_xor_b32 v{VA[j]}, {j*32}, v22\nv_add_u32 v{VA[j]}, {sT}, v{VA[j]}")
        b(f"s_mov_b32 {sPB}, 0")
    def spread(i0, extra):
        code = b.L[i0:]; b.L = b.L[:i0]
        step = max(1, len(code) // (len(extra) + 1))
        for i, ln in enumerate(code):
            if i % step == 0 and 1 <= i // step <= len(extra): b.L.append(extra[i // step - 1])
            b.L.append(ln)
    def setup_a():
        for i in range(4): b(f"v_mov_b32 v{ZR+i}, 0")
        b(f"v_lshlrev_b32 v{L16}, 4, v1\nv_add_u32 v{L16B}, 4096, v{L16}")
        i0 = len(b.L)
        p2_addr()
        b("v_mov_b32 v21, 0x3f803f80")
        if ROW1: b("v_and_b32 v22, 15, v1\nv_cmp_eq_u32 s[92:93], 0, v22\nv_cndmask_b32 v21, 0, v21, s[92:93]")
        for i in range(4): b(f"v_accvgpr_write_b32 a{ONES+i}, v21")
        b(f"s_mov_b32 {sPass}, 0\ns_mov_b32 {sCc}, {f32bits(math.log2(math.e) / math.sqrt(128.0))}")
        spread(i0, ZEROS[:6])
    def setup_b():
        i0 = len(b.L)
        b("v_lshrrev_b32 v21, 4, v1\nv_lshlrev_b32 v22, 1, v21\nv_and_b32 v23, 15, v1\nv_xor_b32 v22, v22, v23\nv_lshlrev_b32 v22, 4, v22")
        b(f"v_lshlrev_b32 v23, 11, v23\nv_lshlrev_b32 v{OUTV}, 3, v21\nv_add_u32 v{OUTV}, v{OUTV}, v23")
        b(f"v_lshlrev_b32 v23, 11, v21\nv_add_u32 v23, v23, v22\nv_xor_b32 v22, 128, v23\ns_lshl_b32 {sT}, {sW}, 15")
        for q in range(4):
            b(f"s_add_u32 {sT2}, {sT}, {q*(8192-1024)}\nv_add_u32 v{VW3[q]}, {sT2}, v{22 if q & 1 else 23}")
        b(f"v_add_u32 v{VB3[0]}, {sW4}, v{L16}\nv_add_u32 v{VB3[4]}, {sM5}, v{L16}")
        b(f"s_mul_i32 {sT}, {sQH}, 5120\ns_add_u32 {sT}, {sT}, {S3[0]}\nv_add_u32 v{XA3[0]}, {sT}, v{L16}\nv_add_u32 v{XA3[1]}, 10240, v{XA3[0]}")
        b(f"v_lshrrev_b32 v21, 2, v1\nv_and_b32 v22, 7, v21\ns_lshl_b32 {sT}, {sKq}, 1\ns_add_u32 {sT}, {sT}, {sKH}\nv_xor_b32 v22, {sT}, v22\nv_lshlrev_b32 v22, 5, v22")
        b("v_lshlrev_b32 v21, 8, v21\nv_and_b32 v23, 3, v1\nv_lshlrev_b32 v23, 3, v23\nv_add3_u32 v22, v22, v21, v23")
        for d in range(4): b(f"v_xor_b32 v{WA3[d]}, {d*64}, v22\nv_add_u32 v{WA3[d]}, {S3[0]+20480}, v{WA3[d]}")
        b(f"s_lshl_b32 {sOut}, {sT}, 5\ns_mul_i32 {sT2}, {sQH}, 163840\ns_add_u32 {sOut}, {sOut}, {sT2}\ns_lshl_b32 {sT3}, {sHl}, 8\ns_add_u32 {sOut}, {sOut}, {sT3}")
        b(f"s_mov_b32 s80, {order3(0,0)[0]}\ns_mov_b32 s81, {order3(0,0)[1]}")
        for bb in range(1, 8 if SIG3.endswith("p") else 4):
            b(f"s_cmp_eq_u32 {sB if SIG3.endswith('p') else sBl}, {bb}\ns_cselect_b32 s80, {order3(bb & 3, bb >> 2)[0]}, s80\ns_cselect_b32 s81, {order3(bb & 3, bb >> 2)[1]}, s81")
        b(f"s_mul_i32 {sT}, {sHl}, 0x22222222\ns_xor_b32 s80, s80, {sT}\ns_xor_b32 s81, s81, {sT}")
        if TOUCH == 1:
            if THALF: b(f"s_lshr_b32 {sT}, s2, 3\ns_lshl_b32 {sT}, {sT}, 1\ns_and_b32 {sT2}, s2, 1\ns_add_u32 {sT}, {sT}, {sT2}\ns_lshl_b32 {sT}, {sT}, 15")
            else: b(f"s_lshr_b32 {sT}, s2, 3\ns_lshl_b32 {sT}, {sT}, 16")
            b(f"s_sub_u32 {sT}, {sT}, {sT3}\ns_lshl_b32 {sT2}, {sW}, {13 if THALF else 14}\ns_add_u32 {sT}, {sT}, {sT2}")
            b(f"v_cmp_gt_u32 s[92:93], {TL}, v1\nv_lshlrev_b32 v21, 7, v1\nv_add_u32 v21, {sT}, v21\nv_mov_b32 v22, 0x40000000\nv_cndmask_b32 v{TCH}, v22, v21, s[92:93]")
        if TOUCH == 8:
            b(f"s_and_b32 {sT}, s80, 14\ns_lshl_b32 {sT}, {sT}, 17\ns_lshl_b32 {sT2}, {sW}, 16\ns_add_u32 {sT}, {sT}, {sT2}")
            b(f"v_lshrrev_b32 v21, 1, v1\nv_lshlrev_b32 v21, 11, v21\nv_and_b32 v22, 1, v1\nv_lshlrev_b32 v22, 7, v22\nv_add3_u32 v{TCH}, v21, v22, {sT}")
        if TOUCH == 7:
            b(f"s_and_b32 {sT}, s80, 15\ns_lshl_b32 {sT}, {sT}, 17\ns_lshl_b32 {sT2}, {sW}, 15\ns_add_u32 {sT}, {sT}, {sT2}")
            b(f"v_lshrrev_b32 v21, 1, v1\nv_lshlrev_b32 v21, 11, v21\nv_and_b32 v22, 1, v1\nv_lshlrev_b32 v22, 7, v22\nv_add3_u32 v21, v21, v22, {sT}")
            b(f"v_lshrrev_b32 v22, 5, v1\nv_lshlrev_b32 v22, 30, v22\nv_add_u32 v{TCH}, v21, v22")
        spread(i0, ZEROS[6:])
    def setup_c():
        b(f"s_mul_i32 {sT}, {sB}, 1310720\ns_lshl_b32 {sT2}, {sH}, 1\ns_add_u32 {sT2}, {sT2}, {sKH}\ns_mul_i32 {sT2}, {sT2}, 20480\ns_add_u32 {sO0}, {sT}, {sT2}")
        b(f"s_mul_i32 {sT2}, {sQH}, 5120\ns_add_u32 {sO0}, {sO0}, {sT2}\ns_add_u32 {sO1}, {sO0}, 10240")
        b(f"s_lshl_b32 {sT}, {sB}, 2\ns_add_u32 {sT}, {sT}, {sKq}\ns_mul_i32 {sT}, {sT}, {FS1}\ns_add_u32 {sF1}, {sT}, {FLG1}")
        b(f"s_lshl_b32 {sT}, {sB}, 3\ns_add_u32 {sT}, {sT}, {sHl}\ns_lshl_b32 {sF2}, {sT}, 2")
        if F2W: b(f"s_add_u32 {sF2}, {sF2}, {sW}")
        b(f"s_mul_i32 {sF2}, {sF2}, {FS2}\ns_add_u32 {sF2}, {sF2}, {FLG2}")
        b(f"s_mul_i32 {sT}, {sT}, {16*PSL}\ns_mul_i32 {sT2}, {sW}, {PSL//4}\ns_add_u32 {sT}, {sT}, {sT2}\ns_add_u32 {sT}, {sT}, {PART}")
        for d in (1, 2, 3):
            b(f"s_xor_b32 {sT2}, {sKq}, {d}\ns_lshl_b32 {sT3}, {sT2}, 2\ns_add_u32 {sT3}, {sT3}, {sKq}\ns_mul_i32 {sT3}, {sT3}, {PSL}\ns_add_u32 {sPs[d]}, {sT}, {sT3}")
            b(f"s_lshl_b32 {sT3}, {sKq}, 2\ns_add_u32 {sT3}, {sT3}, {sT2}\ns_mul_i32 {sT3}, {sT3}, {PSL}\ns_add_u32 {sPl[d]}, {sT}, {sT3}")
        b("v_lshrrev_b32 v21, 5, v1\nv_lshlrev_b32 v21, 8, v21\nv_and_b32 v22, 15, v1\nv_lshlrev_b32 v22, 4, v22\nv_lshrrev_b32 v23, 1, v1\nv_and_b32 v23, 8, v23\nv_add3_u32 v21, v21, v22, v23")
        b(f"s_mul_i32 {sT2}, {sQH}, 20480\ns_add_u32 {sT2}, {sT2}, {QEX}\nv_add_u32 v22, {sT2}, v{L16}\ns_lshl_b32 {sT3}, {sKH}, 11\ns_add_u32 {sT2}, {sT2}, {sT3}\nv_add_u32 v21, {sT2}, v21")
        b("v_and_b32 v23, 48, v1")

    if opt("early", 0):
        setup_a(); setup_b(); setup_c()
    first_stage(1); first_stage_last(1)
    for r in [L16B, TCH, ZR, OUTV] + VW3 + [VB3[0], VB3[4]]: b(f"v_mov_b32 v{r}, 0")
    b(f"s_or_b32 {sT}, s2, {sW}\ns_cmp_lg_u32 {sT}, 0")
    b("s_cbranch_scc1 L_nonon")
    b(f"s_or_b32 s64, s64, 1\nv_mov_b32 v24, s64\nv_mov_b32 v25, s65")
    b(f"buffer_store_dwordx2 v[24:25], v{ZR}, {SD}, 0 offen sc0 sc1")
    b.label("L_nonon")
    b.vm = []
    b.raw("s_waitcnt vmcnt(9)")
    stamp(b, 1)

    def g_mfmas(buf, dord=(0, 1, 2, 3), c0=False):
        return [f"{MF} {vr(ACC+(d*5+q)*4,4)}, {ar(AF[buf]+4*d,4)}, {ar(BF[buf]+4*q,4)}, {'0' if c0 else vr(ACC+(d*5+q)*4,4)}" for d in dord for q in range(5)]
    def emit(x):
        if callable(x): x()
        else: b(x)
    def g_step(ph, dm, fill, first=False, more=(), bar=True, last=20):
        if bar:
            trace(b); b("s_barrier"); trace(b)
        vs, qs = ((1024, 2048), (4096, 1024))[ph == 3]
        xa, wa = (XA, WA) if ph == 1 else (XA3, WA3)
        more = list(more)
        for u in range(2):
            A = lambda d: [f"ds_read_b64_tr_b16 {ar(AF[u]+4*d+2*v,2)}, v{wa[d]} offset:{u*8192+v*vs}" for v in range(2)]
            rd = A(0) + [f"ds_read_b128 {ar(BF[u]+4*q,4)}, v{xa[u]} offset:{q*qs}" for q in range(5)] + A(1) + A(2) + A(3)
            mf = g_mfmas(u ^ 1, c0=first)
            if first and u == 0:
                for s in rd: b(s)
                rd = []
            for i in range(20 if u == 0 else last):
                if not (first and u == 0): b(mf[i])
                if (u, i) in dm: b(dm[(u, i)])
                elif rd: b(rd.pop(0))
                elif more: b(more.pop(0))
                for s in fill.get((u, i), []): emit(s)
                if u == 0 and i == 18: need(b, [ar(AF[0], 8), ar(BF[0], 20)])
                if u == 1 and i == 4: need(b, [ar(AF[0], 16)])
            assert not rd
        return more
    va = lambda r: f"v_add_u32 v{r}, {sDelta}, v{r}"
    def ringf(ph):
        xa, wa = (XA, WA) if ph == 1 else (XA3, WA3)
        return {(0, 7): [f"s_add_u32 {sT2}, {sRB}, {STSZ}"], (0, 9): [f"s_cmp_ge_u32 {sT2}, {LDS}"], (0, 10): [f"s_cselect_b32 {sT2}, {ST0}, {sT2}"],
                (0, 11): [f"s_sub_u32 {sDelta}, {sT2}, {sRB}"], (0, 14 if not opt("dg", 0) else 12): [va(xa[0])],
                (1, 2): [va(wa[0])], (1, 7): [va(xa[1])], (1, 10): [va(wa[1])], (1, 12): [va(wa[2])], (1, 15): [va(wa[3])]}
    DG = [(0, 4), (0, 8), (0, 12), (0, 16), (0, 19), (1, 9), (1, 13), (1, 16), (1, 18)]
    if opt("dg", 0) == 1: DG = [(0, 13), (0, 14), (0, 15), (0, 16), (0, 19), (1, 9), (1, 13), (1, 16), (1, 18)]
    def loopf(ph):
        f = ringf(ph)
        sg = "s58" if ph == 1 else "s80"; sgp = "s[58:59]" if ph == 1 else "s[80:81]"
        f.update({(0, 0): [f"s_and_b32 {sT}, {sg}, 15"], (0, 1): [f"s_lshl_b32 {sWO}, {sT}, {19 if ph == 1 else 17}"],
                  (0, 2): [f"s_add_u32 {sMX}, {sDB}, {sW4}"], (0, 3): [f"s_add_u32 m0, {sMX}, 20480"],
                  (0, 5): [f"s_lshl_b32 {sXO}, {sT}, 7" if ph == 1 else f"s_mul_i32 {sXO}, {sT}, 20480"],
                  (0, 6): [f"s_lshr_b64 {sgp}, {sgp}, 4"], (0, 17): [f"s_mov_b32 m0, {sMX}"],
                  (1, 0): [f"s_add_u32 {sMW}, {sDB}, {sM5}"], (1, 1): [f"s_mov_b32 {sDB}, {sRB}"], (1, 3): [f"s_mov_b32 {sRB}, {sT2}"],
                  (1, 5): [f"s_add_u32 {sCnt}, {sCnt}, 1"], (1, 6): [f"s_cmp_lt_u32 {sCnt}, 14"], (1, 8): ["s_cselect_b64 vcc, -1, 0"],
                  (1, 17): [f"s_mov_b32 m0, {sMW}"] + ([f"s_bitcmp1_b32 {sMask}, {sCnt}"] if ph == 1 else [])})
        return f
    EB1 = opt("eb1", 0); EB3 = opt("eb3", 1); BP = opt("bp", 17)
    DGE = [(0, 4), (0, 8), (0, 12), (0, 16), (1, 13), (1, 14), (1, 15), (1, 16), (0, 19)]
    def loope(ph, sync):
        f = loopf(ph)
        f[(0, 15)] = f.pop((1, 0)); f[(0, 17)] = [f"s_mov_b32 m0, {sMW}"]
        f[(1, 9)] = f.pop((1, 10)); f[(1, 11)] = f.pop((1, 12)); f[(1, 10)] = [f"s_mov_b32 m0, {sMX}"]
        w3 = f.pop((1, 15)); f.pop((1, 17))
        if ph == 1: f[(1, 12)] = [f"s_bitcmp1_b32 {sMask}, {sCnt}"]
        f[(1, BP)] = [sync]
        f.setdefault((1, 19 if BP == 18 else 18), []).extend(w3)
        return f
    def auto(ph, gaps, hook=None):
        xa, wa = (XA, WA) if ph == 1 else (XA3, WA3)
        sg = "s58" if ph == 1 else "s80"; sgp = "s[58:59]" if ph == 1 else "s[80:81]"
        rp = [[g for g in range(20*u, 20*u + 20) if g not in gaps][:13] for u in range(2)]
        it = [(f"s_and_b32 {sT}, {sg}, 15", 0, gaps[0]-1), (f"s_lshl_b32 {sWO}, {sT}, {19 if ph == 1 else 17}", 0, gaps[0]-1),
              (f"s_add_u32 m0, {sMX}, 20480", 0, gaps[0]-1),
              (f"s_lshl_b32 {sXO}, {sT}, 7" if ph == 1 else f"s_mul_i32 {sXO}, {sT}, 20480", 0, gaps[4]-1)]
        if ph == 3: it.append((f"s_lshr_b32 {sT3}, {sT}, 1", 0, gaps[4]-2))
        it += [(f"s_lshr_b64 {sgp}, {sgp}, 4", 0, 39), (f"s_add_u32 {sT2}, {sRB}, {STSZ}", 0, 39), (f"s_cmp_ge_u32 {sT2}, {LDS}", 0, 39),
               (f"s_cselect_b32 {sT2}, {ST0}, {sT2}", 0, 39), (f"s_sub_u32 {sDelta}, {sT2}, {sRB}", 0, 39), (va(xa[0]), rp[0][6], 39),
               (f"s_mov_b32 m0, {sMX}", gaps[3]+1, gaps[4]-1)]
        if ph == 3: it += [(f"s_bitcmp0_b32 {sRdy}, {sT3}", 0, gaps[4]-1), (hook, 0, gaps[4]-1)]
        it += [(f"s_add_u32 {sMW}, {sDB}, {sM5}", 0, 39), (f"s_add_u32 {sMX}, {sRB}, {sW4}", 0, 39), (f"s_mov_b32 {sDB}, {sRB}", 0, 39), (va(wa[0]), rp[1][1], 39),
               (f"s_mov_b32 {sRB}, {sT2}", 0, 39), (f"s_add_u32 {sCnt}, {sCnt}, 1", 0, 39), (f"s_cmp_lt_u32 {sCnt}, 14", 0, 39),
               ("s_cselect_b64 vcc, -1, 0", 0, 39), (va(xa[1]), rp[1][6], 39), (va(wa[1]), rp[1][8], 39), (va(wa[2]), rp[1][10], 39)]
        late = [(f"s_mov_b32 m0, {sMW}", gaps[7]+1, gaps[8]-1), (va(wa[3]), rp[1][12], 39)]
        late.sort(key=lambda x: x[1])
        it += late
        if ph == 1: it.append((f"s_bitcmp1_b32 {sMask}, {sCnt}", 0, 39))
        cap = {g: (0 if g in gaps else 1 if g in rp[0] + rp[1] else 3) for g in range(40)}
        cap[18] -= 1; cap[24] -= 1
        fill = {}; g = 0
        for k, (ins, lo, hi) in enumerate(it):
            hi = min([hi] + [x[2] for x in it[k+1:]])
            g = max(g, lo)
            while g < hi and cap[g] <= 0: g += 1
            while g in gaps and g > max(lo, 0) and g >= hi: g -= 1
            assert g <= hi, (ins, g, hi)
            cap[g] -= 1
            fill.setdefault(divmod(g, 20), []).append(ins)
        return [divmod(g, 20) for g in gaps], fill
    AG = [int(x) for x in opt("ag", "0").split(".")]
    def first_fill(ph):
        f = loopf(ph); g = {}
        g[(0, 0)] = sum([f[(0, i)] for i in (0, 1, 2, 3, 5, 6, 7, 9, 10, 11, 14 if not opt('dg', 0) else 12)], []) + f[(1, 0)] + f[(1, 1)] + f[(1, 3)] + f[(1, 5)] + f[(1, 6)] + f[(1, 8)]
        return f, g
    f, g = first_fill(1)
    DG0 = [(1, 13), (1, 14), (1, 15), (1, 16)]
    g.update({(1, 2): f[(1, 2)], (1, 7): f[(1, 7)], (1, 9): f[(1, 10)], (1, 11): f[(1, 12)], (1, 17): f[(1, 15)] + f[(0, 17)]})
    if EB1:
        for i in range((BP + 1) * 4, 80): b(f"v_mov_b32 v{ACC+i}, 0")
        g[(1, 17)] = f[(0, 17)]
        g_step(1, dict(zip(DG0, DW)), g, first=True, last=BP + 1)
        for x in DX[:4]: b(x)
        b(f"s_mov_b32 m0, {sMW}\ns_bitcmp1_b32 {sMask}, {sCnt}"); b(DX[4])
        b("s_branch L_p1end")
        def sync1():
            b.label("L_p1end")
            b("s_cbranch_scc1 L_aux")
            b.wait(lg=0, vm=9)
            b.label("L_auxback")
            trace(b)
            b("s_barrier")
            trace(b)
        b.raw(f".p2align {opt('al', 3)}")
        b.label("L_p1")
        b.lg = []
        i0 = len(b.L)
        g_step(1, dict(zip(DGE, DW + DX)), loope(1, sync1), bar=False)
        b("s_cbranch_vccnz L_p1")
    else:
        g_step(1, dict(zip(DG0 + [(1, 18), (1, 19)], DW + DX[:2])), g, first=True)
        b(DX[2]); b(DX[3]); b(f"s_mov_b32 m0, {sMW}\ns_add_u32 {sMX}, {sDB}, {sW4}\ns_bitcmp1_b32 {sMask}, {sCnt}"); b(DX[4])
        b("s_branch L_p1end")
        b.raw(f".p2align {opt('al', 3)}")
        b.label("L_p1")
        b.lg = []
        i0 = len(b.L)
        if len(AG) == 9:
            dg, ff = auto(1, AG)
            g_step(1, dict(zip(dg, DW + DX)), ff)
        else: g_step(1, dict(zip(DG, DW + DX)), loopf(1))
        b.label("L_p1end")
        b("s_cbranch_scc1 L_aux")
        b.wait(lg=0, vm=9)
        b.label("L_auxback")
        b("s_cbranch_vccnz L_p1")
    print("gemm step estimate", estimate(b.L[i0:], verbose=VERB))
    b.vm = []
    stamp(b, 2)
    KLD = f"buffer_load_dwordx4 v{KVW}, {SK}, {sKVx} offen {KVFL} lds"
    VLD = f"buffer_load_dwordx4 v{KVW}, {SV}, {sKVx} offen {KVFL} lds"
    M0K = f"s_mov_b32 m0, {sKVm}"; M0V = f"s_add_u32 m0, m0, 4096"
    ADV = [f"s_add_u32 {sKVm}, {sKVm}, 8192", f"s_add_u32 {sKVs}, {sKVs}, 4096"]
    XR = f"s_xor_b32 {sKVx}, {sKVs}, {sRot}"
    def pair():
        b(M0K); b(ADV[0]); b(KLD); b(M0V); b(ADV[1]); b(VLD); b(XR)
    NS = opt("ns", 4)
    n14 = opt("n14", 3); n15 = opt("n15", 2); nq = opt("nq", 2); NPI = opt("npi", 2); IENT = opt("ient", 32 - 6 * NPI); NA = opt("na", 6); npro = IENT - NA - NS - n14 - n15 - nq
    assert n14 <= 4 and n15 <= 4 and 0 <= nq <= 3 and 0 <= npro <= 5 and NA + n14 + n15 + nq <= 15 and NA + n14 <= 11
    pro1 = 1 if npro >= 1 and NA + n14 + n15 + nq < 15 else 0; pro2 = (npro - pro1 + 1) // 2; pro3 = npro - pro1 - pro2
    def k_read(i): return f"ds_read_b128 {ar(KF+4*i,4)}, v{KA[i%4]} offset:{(i//4)*8192}"
    def v_read(j): return [f"ds_read_b64_tr_b16 {ar(VF+4*j+2*v,2)}, v{VA[j]} offset:{v*8192}" for v in range(2)]
    def kv_step(n, extra, more=(), bar=True):
        slots = [((0, 3), (0, 4), (0, 6), (0, 8), (0, 12), (0, 13)), ((0, 15), (0, 16), (0, 17), (0, 19), (1, 0), (1, 1)),
                 ((1, 8), (1, 9), (1, 11), (1, 13), (1, 14), (1, 14)), ((1, 15), (1, 16), (1, 17), (1, 18), (1, 19), (1, 19))]
        dm = {}; f = {k: list(v) for k, v in extra.items()}
        for a, k, c, v, e, e2 in ([slots[0], slots[2]] if n == 2 else slots[:n]):
            f.setdefault(a, []).append(M0K); dm[k] = KLD; f.setdefault(c, []).append(M0V); dm[v] = VLD
            f.setdefault(e, []).append(ADV[0]); f.setdefault(c, []).append(ADV[1]); f.setdefault(e2, []).append(XR)
        return g_step(1, dm, f, more=more, bar=bar)
    kv_step(n14, ringf(1), bar=not EB1)
    if opt("sp", 0):
        setup_a()
        if opt("sp", 0) == 1: setup_b()
        setup_c()
    b.wait(lg=0, vm=2*n14)
    if opt("sta", 0) == 21: stamp(b, 15)
    kfirst = [f"ds_read_b128 {ar(K0F+4*d,4)}, v23 offset:{d*64}" for d in range(4)] + [k_read(i) for i in range(8)]
    more = kv_step(n15, {}, kfirst if NA >= 4 else [])
    need(b, [ar(AF[1], 16), ar(BF[1], 20)])
    b("s_barrier")
    if opt("sta", 0) == 20: stamp(b, 15)
    i0 = len(b.L)
    def pack(t):
        a = ACC + t * 4
        for i in range(4): b(f"v_mul_f32 v{a+i}, {sCc}, v{a+i}")
        b(f"v_cvt_pk_bf16_f32 v{a}, v{a}, v{a+1}\nv_cvt_pk_bf16_f32 v{a+1}, v{a+2}, v{a+3}")
    def qwr(t):
        d, q = divmod(t, 5); a = ACC + t * 4
        b(f"ds_write_b64 v21, {vr(a,2)} offset:{q*4096+(d>>1)*1024+(d&1)*512}")
    mf = g_mfmas(1)
    for i in range(25):
        if i < 20: b(mf[i])
        if i == 0: b(f"buffer_load_dwordx2 {vr(NONV,2)}, v{ZR}, {SD}, 0 offen sc0 sc1")
        elif i < 4:
            for k in range(2):
                if more: b(more.pop(0))
        if i in ((4, 14) if nq == 2 else (4, 11, 18)[:nq]): pair()
        if 0 <= i - 5 < 20: qwr(i - 5)
        if 0 <= i - 4 < 20: pack(i - 4)
    assert not more
    b(f"s_add_u32 {sT}, {sW1}, {(IENT-NS)*8192}\nv_add_u32 v21, {sT}, v{L16}")
    if NA >= 4: b.wait(lg=0)
    else: b.wait(lg=0, vm=min(2 * (NA + n14 + n15 + nq - 4), 2 * (n15 + nq)))
    b("s_barrier")
    print("q pack estimate", estimate(b.L[i0:]))
    stamp(b, 3)
    i0 = len(b.L)
    qr = [f"ds_read_b128 {ar(QF+(q*4+d)*4,4)}, v22 offset:{q*4096+d*1024}" for q in range(5) for d in range(4)]
    if NA < 4: qr = kfirst[:4] + qr + kfirst[4:]
    for i in range(10 if NA >= 4 else 13): b(qr.pop(0))
    if pro1: pair()
    sw = [f"ds_write_b128 v21, {ar(STG[i],4)} offset:{i*4096}" for i in range(2*NS)]
    neg = [f"v_sub_f32 v{NM+i}, 0, v{NM+i}" for i in range(20)]
    for t in range(20):
        q, d = divmod(t, 4)
        b(f"{MF} {vr(NM+4*q,4)}, {ar(K0F+4*d,4)}, {ar(QF+t*4,4)}, {'0' if d == 0 else vr(NM+4*q,4)}")
        if qr: b(qr.pop(0))
        if t == 13:
            need(b, [ar(QF, 80)])
            b("s_barrier")
        if t >= 14 and sw: b(sw.pop(0))
        if t >= 8: b(neg.pop(0))
    for i in range(pro2): pair()

    def col(n): return (0, 1, 0, 1, 2)[n % 5]
    def s_mfma(n, i):
        kt, d = i // 4, i % 4; q = n % 5
        dst = vr(SB[col(n)] + 4*kt, 4)
        return f"{MF} {dst}, {ar(KF+4*i,4)}, {ar(QF+(q*4+d)*4,4)}, {vr(NM+4*q,4) if d == 0 else dst}"
    def oreg(q, j): return vr(OK + (q*4+j)*4, 4) if j < 4 else ar(OS + (q*4+j-4)*4, 4)
    def p_mfma(n, j):
        q = n % 5
        if j == 8: return f"{MF} {vr(LA+4*q,4)}, {ar(ONES,4)}, {vr(PB[col(n)],4)}, {vr(LA+4*q,4)}"
        return f"{MF} {oreg(q,j)}, {ar(VF+4*j,4)}, {vr(PB[col(n)],4)}, {oreg(q,j)}"
    def v_exp(n, e): return f"v_exp_f32 v{SB[col(n)]+e}, v{SB[col(n)]+e}"
    def v_cvt(n, c): return f"v_cvt_pk_bf16_f32 v{PB[col(n)]+c}, v{SB[col(n)]+2*c}, v{SB[col(n)]+2*c+1}"
    NU = 40
    def slot(n, mem=None, sal=None, val=None):
        mem = mem or {}; sal = sal or {}; val = val or {}
        for p in range(17):
            if p < 16 and p % 2 == 0:
                if 0 <= n + 1 < NU: b(s_mfma(n + 1, p // 2))
            elif 0 <= n - 1 < NU: b(p_mfma(n - 1, p // 2))
            for s in mem.get(p, []): b(s)
            for s in sal.get(p, []): emit(s)
            if 0 <= n < NU:
                if p % 2 == 0 and p < 16: b(v_exp(n, p // 2))
                if p % 4 == 3: b(v_cvt(n, p // 4))
            for s in val.get(p, []): b(s)
    VR = [x for j in range(8) for x in v_read(j)]
    for i in range(8):
        b(s_mfma(0, i))
        if i >= 4: b(VR[i - 4])
        elif sw: b(sw.pop(0))
        b(neg.pop(0))
    assert not sw and not neg
    for i in range(pro3): pair()
    if opt("sp", 0) == 2: setup_b()
    if CLR == 1:
        for i in range(4): b(f"v_mov_b32 v{60+i}, -1")
        b(f"v_lshrrev_b32 v64, 1, v{L16}")
        for x in clears(60): b(x)
    b.label("L_p2entry")
    for i in range(8):
        b(s_mfma(1, i))
        b(VR[4 + i])
        if i >= 2 and i % 2 == 0: b(v_cvt(0, i // 2 - 1))
        b(v_exp(0, i))
    b(f"s_add_u32 m0, {sW1}, {(IENT%20)*8192-(4096 if NPI == 2 else 0)}\ns_add_u32 {sEv}, {sW1}, {LDS}\ns_mov_b32 {sKVs}, {IENT*4096}\n{XR}\ns_mov_b32 {sKVm}, 0\ns_mov_b32 {sCnt}, 0")
    b(v_cvt(0, 3))
    if TRACE == 2: b.raw("s_mov_b32 s100, 0")
    print("p2 prologue estimate", estimate(b.L[i0:]))
    stamp(b, 4)
    nd = lambda *ops: (lambda: need(b, ops))
    def merge(*ds):
        out = {}
        for d in ds:
            for k, v in d.items(): out.setdefault(k, []).extend(v)
        return out
    def body():
        INC = "s_add_u32 m0, m0, 4096"
        def ex():
            b("s_cbranch_scc1 L_tail")
            body.exit_state = b.state()
        m1 = {}; s1 = {}; m2 = {}; s2 = {}; m3 = {}; s3 = {}; s5 = {}
        WR = [f"s_cmp_eq_u32 m0, {sEv}", f"s_cselect_b32 m0, {sW1}, m0"]
        if NPI == 2:
            G = [int(x) for x in opt("g4", "1.5.9.13").split(".")]
            m4 = {G[0]: [KLD], G[1]: [VLD], G[2]: [KLD], G[3]: [VLD]}
            s4 = merge({G[0]-1: [INC]}, {G[1]-1: [INC]}, {G[1]+1: [XR]}, {G[2]-1: [INC]}, {G[3]-1: [INC]}, {G[3]+1: [XR]}, {G[0]+1: [ADV[1]]}, {G[2]+1: [ADV[1]]})
            v1 = {9: [va(KA[0]), va(KA[1])], 11: [va(KA[2])], 13: [va(KA[3]), va(VA[0])], 15: [va(VA[1])], 16: [va(VA[2]), va(VA[3])]}
            v2 = {3: [va(VA[4])], 11: [va(VA[5])]}
        elif NPI == 4:
            m4 = {1: [KLD], 5: [VLD], 9: [KLD], 13: [VLD]}; m2 = dict(m4)
            def sq(): return {2: [INC], 3: [ADV[1]], 6: [XR], 7: [INC, WR[0]], 8: [WR[1]], 10: [INC], 11: [ADV[1]]}
            s2 = sq(); s4 = sq()
            s3 = {0: [XR], 2: [INC], 8: [WR[0]], 10: [WR[1]]}; s5 = {0: [XR], 2: [INC], 4: [WR[0]], 6: [WR[1]]}
            v1 = {9: [va(KA[0]), va(KA[1])], 11: [va(KA[2])], 13: [va(KA[3]), va(VA[0])], 15: [va(VA[1])], 16: [va(VA[2]), va(VA[3])]}
            v2 = {3: [va(VA[4])], 11: [va(VA[5])]}
        else:
            m1 = {13: [KLD]}; s5 = {2: [INC], 4: [WR[0]], 6: [WR[1]], 0: [XR]}
            m2 = {5: [VLD], 13: [KLD]}; s2 = {0: [ADV[1]], 2: [INC], 6: [XR], 8: [INC], 10: [WR[0]], 12: [WR[1]]}
            m3 = {16: [VLD]}; s3 = {10: [INC], 8: [ADV[1]]}
            m4 = {9: [KLD], 16: [VLD]}; s4 = {0: [XR], 2: [INC], 4: [WR[0]], 6: [WR[1]], 12: [INC], 10: [ADV[1]]}
            v1 = {9: [va(KA[0]), va(KA[1])], 11: [va(KA[2])], 15: [va(KA[3])], 16: [va(VA[0]), va(VA[1])]}
            v2 = {1: [va(VA[2]), va(VA[3])], 3: [va(VA[4])], 11: [va(VA[5])]}
        if TOUCH == 1:
            assert NPI == 2
            m2[5] = [f"buffer_load_dword a{JUNK}, v{TCH}, {SW3}, {sT} offen"]
            s2 = {0: [f"s_cmp_lt_u32 {sCnt}, {TIT}"], 2: [f"s_cselect_b32 {sT}, {sKVm}, 0x40000000"], 6: [f"s_add_u32 {sKVm}, {sKVm}, {TL*128}"]}
        slot(1, merge({1: [VR[12]], 3: [VR[13]], 5: [VR[14]], 7: [VR[15]]}, m1),
             {0: [nd(ar(VF, 12))], 6: [nd(ar(VF, 24))], 12: [nd(ar(VF, 28))], 14: [nd(ar(VF, 32))],
              2: [f"s_add_u32 {sT2}, {sPB}, 32768"], 4: [f"s_cmp_ge_u32 {sT2}, {LDS}"], 8: [f"s_cselect_b32 {sT2}, 0, {sT2}"],
              9: [f"s_sub_u32 {sDelta}, {sT2}, {sPB}"], 10: [f"s_mov_b32 {sPB}, {sT2}"], 15: [f"s_cmp_eq_u32 {sCnt}, 7"],
              16: [ex]}, v1)
        slot(2, m2, merge(s2, {14: [f"s_cmp_eq_u32 {sCnt}, 6"]}), v2)
        b("s_cbranch_scc1 L_p2late")
        trace(b)
        b.raw(f"s_waitcnt vmcnt({min(opt('vb', 8), 2 * (IENT - 6)) if NPI == 4 else 5 if TOUCH == 1 or NPI == 3 else 4})")
        b.label("L_p2bar")
        if TRACE == 2: trace(b)
        b("s_barrier")
        trace(b)
        slot(3, merge({2*i+1: [k_read(i)] for i in range(8)}, m3),
             merge({6: [f"s_add_u32 {sCnt}, {sCnt}, 1"], 16 if NPI != 3 else 14: [nd(ar(KF, 16 if NPI != 3 else 12))]}, s3), {1: [va(VA[6])], 5: [va(VA[7])]})
        slot(4, m4, merge(s4, {3 if NPI != 4 else 4: [nd(ar(KF, 32))]}))
        slot(5, {1: VR[0:2], 3: [VR[2]], 5: [VR[3]], 7: [VR[4]], 9: VR[5:7], 11: [VR[7]], 13: VR[8:10], 15: [VR[10]], 16: [VR[11]]}, s5)
        b("s_branch L_p2")
        b.vm = []
    b.vm = []
    save = b.L; b.L = []
    body(); st1 = b.state(); t1 = b.L
    b.L = []; body(); st2 = b.state(); t2 = b.L
    assert st1[0] == st2[0]
    if not STAMPS: assert t1 == t2, "loop not steady"
    print("p2 body estimate", estimate(t2, verbose=VERB))
    b.L = save
    b.raw(f".p2align {opt('al', 3)}")
    b.label("L_p2")
    b.L += t2
    b.label("L_p2late")
    if TRACE == 2: trace(b)
    b.raw(f"s_waitcnt vmcnt({min(opt('vb', 8), 2 * (IENT - 6)) if NPI == 4 else 3 if NPI == 3 else 1 if TOUCH == 1 else 0})")
    WE = opt("we", 0)
    if WE:
        assert NPI == 2
        b(f"s_add_u32 m0, {sW4}, {S3[0]+20480}\ns_lshl_b32 {sWO}, {sHl}, 18")
        for x in DW3: b(x)
        b(f"s_add_u32 m0, {sW4}, {S3[1]+20480}\ns_add_u32 {sWO}, {sWO}, 0x20000")
        for x in DW3: b(x)
        b(f"s_mov_b32 m0, {sW1}")
    if TOUCH in (7, 8): b(f"buffer_load_dword a{JUNK}, v{TCH}, {SW3}, 0 offen")
    b("s_branch L_p2bar")
    b.label("L_tail")
    b.set_state(body.exit_state)
    b.vm = []
    b(f"s_mul_i32 {sT}, {sW}, 20480\nv_add_u32 v21, {sT}, v{L16}")
    b.raw("s_waitcnt vmcnt(0)")
    b("s_barrier")
    stamp(b, 5)
    i0 = len(b.L)
    EB = 65536; EXL = 81920 - EB; EXF = 87040 - EB
    LW, LO, LP, FW, FR = 3, 4, 5, 6, 7
    wr = lambda q: [f"ds_write_b128 v21, {ar(OS+(q*4+j)*4,4)} offset:{(q*4+j)*1024}" for j in range(4)]
    lw = lambda q: (lambda: b(f"ds_write_b32 v{LW}, v{LA+4*q} offset:{EXL+q*256}", f"L{q}"))
    RB = [64, 80, 64, 80, 24]
    rd = lambda q: [f"ds_read_b128 {vr(RB[q]+4*j,4)}, v22 offset:{(q*4+j)*1024}" for j in range(4)]
    LR = NM
    lr = lambda q: [f"ds_read_b32 v{LR+2*q}, v{LO} offset:{EXL+q*256}", f"ds_read_b32 v{LR+2*q+1}, v{LP} offset:{EXL+q*256}"]
    linv = lambda q: [f"v_add_f32 v{LR+2*q}, v{LR+2*q}, v{LR+2*q+1}", f"v_rcp_f32 v{LR+2*q}, v{LR+2*q}"]
    def nval(q, pr, packed):
        o = OK + (q*4+2*pr)*4; r = RB[q] + 8*pr
        if packed:
            out = [f"v_pk_add_f32 {vr(o+i,2)}, {vr(o+i,2)}, {vr(r+i,2)}" for i in range(0, 8, 2)]
            out += [f"v_pk_mul_f32 {vr(o+i,2)}, {vr(o+i,2)}, {vr(LR+2*q,2)} op_sel_hi:[1,0]" for i in range(0, 8, 2)]
        else:
            out = [f"v_add_f32 v{o+i}, v{o+i}, v{r+i}" for i in range(8)] + [f"v_mul_f32 v{o+i}, v{LR+2*q}, v{o+i}" for i in range(8)]
        return out + [f"v_cvt_pk_bf16_f32 v{o+i}, v{o+2*i}, v{o+2*i+1}" for i in range(4)]
    def nmem(q, pr):
        o = OK + (q*4+2*pr)*4
        vv, off = (L16, q * 1024) if q < 4 else (L16B, 0)
        return [f"buffer_store_dwordx4 {vr(o,4)}, v{vv}, {SO}, {sO1 if pr else sO0} offen offset:{off} {H1S}",
                f"ds_write_b128 v2, {vr(o,4)} offset:{pr*10240+q*1024}"]
    def chunks(lst, pos):
        n = -(-len(lst) // len(pos))
        return {p: lst[i*n:(i+1)*n] for i, p in enumerate(pos)}
    def meet(q):
        b.wait_tag(lgtag=f"L{q}")
        b("s_barrier")
    w = wr(0)
    slot(37, merge({5 + 2*i: [w[i]] for i in range(4)}, {} if WE else {1: DW3[0:2], 3: DW3[2:4], 13: DW3[0:2], 16: DW3[2:4]}),
         {0: [] if WE else [f"s_add_u32 m0, {sW4}, {S3[0]+20480}", f"s_lshl_b32 {sWO}, {sHl}, 18"],
          11: [] if WE else [f"s_add_u32 m0, {sW4}, {S3[1]+20480}", f"s_add_u32 {sWO}, {sWO}, 0x20000"],
          2: [f"s_xor_b32 {sT2}, {sW}, 2"], 3: [f"s_mul_i32 {sT}, {sT2}, 20480"], 4: [f"s_mul_i32 {sT3}, {sW}, 1280"],
          6: [f"s_add_u32 {sT3}, {sT3}, {EB}"], 8: [f"s_mul_i32 {sT2}, {sT2}, 1280"], 10: [f"s_add_u32 {sT2}, {sT2}, {EB}"],
          12: [f"s_mul_i32 {sMX}, {sKH}, {STSZ}"], 14: [f"s_lshl_b32 {sMW}, {sW}, 2"], 15: [lw(0)]},
         {3: ["v_lshlrev_b32 v23, 2, v1"], 5: [f"v_add_u32 v22, {sT}, v{L16}"], 9: [f"v_add_u32 v{LW}, {sT3}, v23"]})
    b(f"v_and_b32 v23, 60, v23\nv_add_u32 v{LO}, {sT3}, v23\nv_add_u32 v{LP}, {sT2}, v23\nv_add_u32 v2, {sMX}, v{XA3[0]}")
    meet(0)
    if opt("sta", 0) == 10: stamp(b, 15)
    r = lr(0) + rd(0); w = wr(1)
    slot(38, merge({1: r[0:2], 3: r[2:4], 5: r[4:6], 7: [w[0]], 9: [w[1]], 11: [w[2]], 13: [w[3]], 16: nmem(0, 0)}),
         {15: [lw(1)], 0: [f"s_add_u32 {sMW}, {sMW}, {EB}"]},
         merge({7: linv(0)}, chunks(nval(0, 0, False), [9, 11, 13, 15]), {16: nval(0, 1, False)}, {1: [f"v_mov_b32 v{FW}, {sMW}"], 5: [f"v_mov_b32 v{FR}, {EB}"]}))
    meet(1)
    if opt("sta", 0) == 11: stamp(b, 15)
    r = lr(1) + rd(1); w = wr(2)
    slot(39, merge({1: r[0:2] + nmem(0, 1)[:1], 3: r[2:4], 5: r[4:6], 7: [w[0]], 9: [w[1]], 11: [w[2]], 13: [w[3]], 16: nmem(1, 0)}, {15: nmem(0, 1)[1:]}),
         {15: [lw(2)]},
         merge({7: linv(1)}, chunks(nval(1, 0, False), [9, 11, 13, 15]), {16: nval(1, 1, True)}))
    meet(2)
    if opt("sta", 0) == 12: stamp(b, 15)
    r = lr(2) + rd(2); w = wr(3)
    slot(40, merge({1: r[0:2] + nmem(1, 1)[:1], 3: r[2:4], 5: r[4:6], 7: [w[0]], 9: [w[1]], 11: [w[2]], 13: [w[3]]},
                   {15: nmem(1, 1)[1:]}),
         {15: [lw(3)]}, {13: linv(2)})
    for x in nval(2, 0, True): b(x)
    for x in wr(4): b(x)
    lw(4)()
    b(nmem(2, 0)[0])
    b(f"v_add_f32 v8, v{LA}, v{LA+4}\nv_add_f32 v9, v{LA+8}, v{LA+12}\nv_add_f32 v8, v8, v{LA+16}\nv_add_f32 v8, v8, v9")
    thr = f32bits(2.0 ** 40) if not FORCE_SLOW else f32bits(-1.0)
    b(f"v_cmp_nge_f32 vcc, {thr}, v8")
    b(f"s_cmp_lg_u64 vcc, 0\ns_cselect_b32 {sT}, 1, 0\nv_mov_b32 v8, {sT}")
    b(f"ds_write_b32 v{FW}, v8 offset:{EXF}", "L5")
    for x in nval(2, 1, True): b(x)
    b(nmem(2, 1)[0])
    meet(5)
    if opt("sta", 0) == 13: stamp(b, 15)
    b(f"ds_read_b128 {vr(NM+12,4)}, v{FR} offset:{EXF}")
    for x in lr(3) + lr(4) + rd(3) + rd(4): b(x)
    b(nmem(2, 0)[1]); b(nmem(2, 1)[1])
    b(f"v_or_b32 v{NM+12}, v{NM+12}, v{NM+13}\nv_or3_b32 v{NM+12}, v{NM+12}, v{NM+14}, v{NM+15}")
    for x in linv(3) + linv(4): b(x)
    b(f"v_readfirstlane_b32 {sT}, v{NM+12}")
    b(f"s_andn2_b32 {sT}, {sT}, {sPass}\ns_cmp_lg_u32 {sT}, 0")
    b("s_cbranch_scc1 L_slow")
    if not opt("sta", 0): stamp(b, 15)
    for q in (3, 4):
        for pr in range(2):
            for x in nval(q, pr, True) + nmem(q, pr): b(x)
    b(f"s_mov_b32 {sRB}, {S3[0]}\ns_mov_b32 {sCnt}, 0\ns_mov_b32 {sDB}, {ST0}")
    b(f"v_and_b32 v21, 7, v1\nv_lshlrev_b32 v21, 8, v21\nv_and_b32 v4, 3, v1\nv_mul_u32_u24 v4, {FS1 if SENT else 256}, v4\nv_lshrrev_b32 v5, 1, v{L16}")
    b.wait(lg=0, vm=10)
    print("tail estimate", estimate(b.L[i0:]))
    stamp(b, 6)
    b.vm = []
    if TRACE == 3: b.raw("s_mov_b32 s100, 0")
    f, g = first_fill(3)
    g[(0, 0)] = g[(0, 0)] + [f"s_lshr_b32 {sT3}, {sT}, 1"]
    g.update({(1, 2): f[(1, 2)], (1, 7): f[(1, 7)], (1, 9): f[(1, 10)], (1, 11): f[(1, 12)], (1, 13): f[(1, 15)]})
    FLD = f"buffer_load_dwordx2 v[22:23], v21, {SO}, {sF1} offen {H1L}"
    EARLY = opt("ep", 1)
    dm = dict(zip([(0, 1), (0, 2), (0, 3), (0, 4)], DW3))
    if EARLY: dm[(1, opt("epos", 19))] = FLD
    g_step(3, dm, g, first=True)
    b(f"s_mov_b32 {sSpin}, 0")
    b.raw(f"s_waitcnt vmcnt({4 + EARLY}) lgkmcnt(0)")
    b.lg = []
    b("s_branch L_non1")
    b.label("L_non")
    b.wait(vm=0)
    b.label("L_non1")
    b(f"v_readfirstlane_b32 s64, v{NONV}\nv_readfirstlane_b32 s65, v{NONV+1}")
    b("s_cmp_lg_u32 s64, 0")
    b("s_cbranch_scc1 L_nonok")
    b(f"buffer_load_dwordx2 {vr(NONV,2)}, v{ZR}, {SD}, 0 offen sc0 sc1")
    b(f"s_add_u32 {sSpin}, {sSpin}, 1\ns_cmp_lt_u32 {sSpin}, {SPIN}")
    b("s_cbranch_scc1 L_non")
    b.label("L_nonok")
    b.vm = []
    stamp(b, 7)
    b("s_barrier")
    b(f"s_cmp_lg_u32 {sW}, 0")
    b("s_cbranch_scc1 L_pubd")
    b(f"s_lshl_b32 {sT}, {sHl}, 8\ns_add_u32 {sT}, {sT}, {sF1}")
    b("s_mov_b64 exec, 1")
    b(f"buffer_store_dwordx2 {vr(NONV,2)}, v{ZR}, {SO}, {sT} offen {H1F}")
    b("s_mov_b64 exec, -1")
    if EARLY:
        b.raw("s_waitcnt vmcnt(1)")
        b("s_branch L_pubd1")
    b.label("L_pubd")
    ALL = opt("all", 0)
    def test(back):
        b.raw(f"v_cmp_eq_u64 s[92:93], {sNon}, v[22:23]")
        b(f"s_mov_b32 {sRdy}, s92\ns_bitcmp1_b32 s92, {sT3}")
        b(f"s_cbranch_scc1 {back}")
    if EARLY:
        b.raw("s_waitcnt vmcnt(0)")
        b.label("L_pubd1")
        test("L_poll0ok")
    def poll1(lab, back):
        b(f"s_mov_b32 {sSpin}, 0")
        b.label(lab)
        b.raw(FLD)
        b.raw("s_waitcnt vmcnt(0)")
        test(back)
        if SLEEP: b(f"s_sleep {SLEEP}")
        b(f"s_add_u32 {sSpin}, {sSpin}, 1\ns_cmp_lt_u32 {sSpin}, {SPIN}")
        b(f"s_cbranch_scc1 {lab}")
    poll1("L_poll0", "L_poll0ok")
    b.label("L_poll0ok")
    stamp(b, 8)
    b(f"s_mov_b32 m0, {sMX}\ns_and_b32 {sT}, s80, 15")
    for x in DX3[:4]: b(x)
    b(f"s_mov_b32 m0, {sMW}\ns_lshl_b32 {sWO}, {sT}, 17")
    b(DX3[4])
    if opt("peel1", 0):
        assert SIG3.startswith(("pair", "g40"))
        b(f"s_add_u32 m0, {sW4}, {S3[0]}\ns_mul_i32 {sXO}, {sT}, 20480")
        f1 = ringf(3)
        f1.update({(0, 6): ["s_lshr_b64 s[80:81], s[80:81], 4"], (0, 12): [f"s_add_u32 m0, {sM5}, {S3[0]}"], (0, 15): [f"s_add_u32 m0, {sW4}, {S3[0]+20480}"],
                   (1, 1): [f"s_mov_b32 {sDB}, {sRB}"], (1, 3): [f"s_mov_b32 {sRB}, {sT2}"], (1, 5): [f"s_add_u32 {sCnt}, {sCnt}, 1"]})
        f1[(0, 18)] = f1.pop((0, 14))
        dm = dict(zip([(0, 0), (0, 2), (0, 4), (0, 8), (0, 13), (0, 16), (0, 19), (1, 13), (1, 16)], DX3 + DW3))
        dm[(1, 18)] = FLD
        b.vm = []
        g_step(3, dm, f1, bar=False)
        b.raw("s_waitcnt vmcnt(10) lgkmcnt(0)")
        b.lg = []
    else:
        b.wait(lg=0)
    b.vm = []
    def sync3():
        b.wait(lg=0, vm=9)
        trace(b); b("s_barrier"); trace(b)
    f3 = loope(3, sync3) if EB3 else loopf(3)
    f3[(0, 13)] = [f"s_lshr_b32 {sT3}, {sT}, 1"]
    def chk():
        b("s_cbranch_scc1 L_wait1")
        b.label("L_wait1back")
    f3[(0, 17)] = f3[(0, 17)] + [f"s_bitcmp0_b32 {sRdy}, {sT3}", chk]
    if EB3 and opt("peel1", 0): b("s_barrier")
    b(f"s_add_u32 {sMX}, {sDB}, {sW4}")
    b.raw(f".p2align {opt('al', 3)}")
    b.label("L_p3")
    i0 = len(b.L)
    if len(AG) == 9:
        dg, ff = auto(3, AG, chk)
        g_step(3, dict(zip(dg, DW3 + DX3)), ff)
    else: g_step(3, dict(zip(DGE if EB3 else DG, DW3 + DX3)), f3, bar=not EB3)
    if not EB3: b.wait(lg=0, vm=9)
    b("s_cbranch_vccnz L_p3")
    print("p3 step estimate", estimate(b.L[i0:], verbose=VERB))
    b.vm = []
    stamp(b, 9)
    PFL = f"buffer_load_dwordx2 v[6:7], v4, {SO}, {sF2} offen {HLD}"
    AFX = lambda g: (AF[1], 160, 0, 16, 32)[g]
    BFX = lambda g: (BF[1], 176, 48, 196, 216)[g]
    def mm(g, d, q): return f"{MF} {vr(ACC+(d*5+q)*4,4)}, {ar(AFX(g)+4*d,4)}, {ar(BFX(g)+4*q,4)}, {vr(ACC+(d*5+q)*4,4)}"
    rf = ringf(3)
    for st in range(2):
        if st == 1 or not EB3:
            trace(b); b("s_barrier"); trace(b)
        pre = ([rf[(0, 7)], rf[(0, 9)], rf[(0, 10)], rf[(0, 11)]] if st == 0 else [[f"s_lshl_b32 {sT}, {sKq}, 8"], [f"s_add_u32 {sT}, {sT}, {sF2}"]])
        for u in range(2):
            g = 1 + 2*st + u
            A = lambda d: [f"ds_read_b64_tr_b16 {ar(AFX(g)+4*d+2*v,2)}, v{WA3[d]} offset:{u*8192+v*4096}" for v in range(2)]
            rdl = A(1) + [f"ds_read_b128 {ar(BFX(g)+4*q,4)}, v{XA3[u]} offset:{q*1024}" for q in range(5)] + A(2) + A(3) + A(0)
            upd = {} if st == 1 else ({8: XA3[0]} if u == 0 else {2: WA3[1], 7: XA3[1], 9: WA3[2], 11: WA3[3], 13: WA3[0]})
            for i in range(15):
                b(mm(g - 1, 1 + i // 5, i % 5))
                if rdl: b(rdl.pop(0))
                if pre:
                    for x in pre.pop(0): b(x)
                if i in upd: b(va(upd[i]))
                if i == 14 and not (st == 0 and u == 1): need(b, [ar(AFX(g)+4, 4), ar(BFX(g), 20)])
                if i == 3 and g > 1: need(b, [ar(AFX(g - 1), 16)])
        if st == 0: b.wait(lg=0, vm=0)
    stamp(b, 10)
    mf = [mm(4, 1 + i // 5, i % 5) for i in range(15)] + [mm(g, 0, q) for g in range(5) for q in range(5)]
    PK = 104; RK = 144
    for i in range(40):
        b(mf[i])
        t = i - 6
        if 0 <= t < 15:
            d, q = 1 + t // 5, t % 5; pk = PK + (d-1)*12
            if q in (1, 3): b(f"buffer_store_dwordx4 {vr(pk+2*(q-1),4)}, v{L16}, {SO}, {sPs[d]} offen offset:{(q//2)*1024} {HST}")
            if q == 4: b(f"buffer_store_dwordx2 {vr(pk+8,2)}, v5, {SO}, {sPs[d]} offen offset:2048 {HST}")
        t = i - 5
        if 0 <= t < 15:
            d, q = 1 + t // 5, t % 5; pk = PK + (d-1)*12 + 2*q; a = ACC + (d*5+q)*4
            b(f"v_cvt_pk_bf16_f32 v{pk}, v{a}, v{a+1}\nv_cvt_pk_bf16_f32 v{pk+1}, v{a+2}, v{a+3}")
    if not SENT:
        b.wait(vm=0)
        stamp(b, 11)
        if not F2W:
            b("s_barrier")
            b(f"s_cmp_lg_u32 {sW}, 0")
            b("s_cbranch_scc1 L_wait2")
        b("s_mov_b64 exec, 1")
        b(f"buffer_store_dwordx2 {vr(NONV,2)}, v{ZR}, {SO}, {sT} offen {HST}")
        b("s_mov_b64 exec, -1")
        b.label("L_wait2")
        b(f"s_mov_b32 {sSpin}, 0")
        P2 = opt("pp2", 1)
        regs = ["v[6:7]", "v[8:9]", "v[10:11]"][:P2]
        ld = lambda r: b.raw(f"buffer_load_dwordx2 {r}, v4, {SO}, {sF2} offen {HLD}")
        for r in regs[1:]:
            ld(r); b(f"s_sleep {opt('psl', 3)}")
        b.label("L_poll3")
        for k in range(P2):
            ld(regs[k])
            b.raw(f"s_waitcnt vmcnt({P2-1})")
            b.raw(f"v_cmp_ne_u64 vcc, {sNon}, {regs[(k + 1) % P2]}")
            b("s_cbranch_vccz L_wait2back")
            if P2 == 1 and opt('sleep2', 4): b(f"s_sleep {opt('sleep2', 4)}")
        b(f"s_add_u32 {sSpin}, {sSpin}, 1\ns_cmp_lt_u32 {sSpin}, {SPIN}")
        b("s_cbranch_scc1 L_poll3")
        b.label("L_wait2back")
        stamp(b, 12)
    else: stamp(b, 11)
    b(f"s_mov_b32 {sSpin}, 0")
    if opt("pre2", 0): b(f"s_sleep {opt('pre2', 0)}")
    b.label("L_poll2")
    b.vm = []
    for h in range(3):
        for d in (1, 2, 3):
            pk = RK + (d-1)*12
            if h < 2: b(f"buffer_load_dwordx4 {vr(pk+4*h,4)}, v{L16}, {SO}, {sPl[d]} offen offset:{h*1024} {HLD}")
            else: b(f"buffer_load_dwordx2 {vr(pk+8,2)}, v5, {SO}, {sPl[d]} offen offset:2048 {HLD}")
    if SENT:
        rr = [RK + (d-1)*12 + 4*h + i for h in range(3) for d in (1, 2, 3) for i in range(4 if h < 2 else 2)]
        b(f"v_max_u32 v8, v{rr[0]}, v{rr[1]}")
        for i in range(2, 30, 2): b(f"v_max3_u32 v8, v8, v{rr[i]}, v{rr[i+1]}")
        b("v_cmp_eq_u32 vcc, -1, v8")
        b("s_cbranch_vccz L_poll2ok")
        if SLEEP: b(f"s_sleep {opt('sleep2', 4)}")
        b(f"s_add_u32 {sSpin}, {sSpin}, 1\ns_cmp_lt_u32 {sSpin}, {SPIN}")
        b("s_cbranch_scc1 L_poll2")
        b.label("L_poll2ok")
        stamp(b, 12)
    OFL = opt("ofl", "").replace("+", " ")
    for q in range(5):
        a = ACC + q * 4
        for d in (1, 2, 3):
            pk = RK + (d-1)*12 + 2*q
            for i in range(2):
                b(f"v_lshlrev_b32 v{a+20*d+2*i}, 16, v{pk+i}\nv_and_b32 v{a+20*d+2*i+1}, 0xffff0000, v{pk+i}")
        for i in (0, 2): b(f"v_pk_add_f32 {vr(a+i,2)}, {vr(a+i,2)}, {vr(a+20+i,2)}")
        for i in (0, 2): b(f"v_pk_add_f32 {vr(a+40+i,2)}, {vr(a+40+i,2)}, {vr(a+60+i,2)}")
        for i in (0, 2): b(f"v_pk_add_f32 {vr(a+i,2)}, {vr(a+i,2)}, {vr(a+40+i,2)}")
        b(f"v_cvt_pk_bf16_f32 v{a}, v{a}, v{a+1}\nv_cvt_pk_bf16_f32 v{a+1}, v{a+2}, v{a+3}")
        b(f"buffer_store_dwordx2 {vr(a,2)}, v{OUTV}, {SOUT}, {sOut} offen {OFL}")
        if q < 4: b(f"s_add_u32 {sOut}, {sOut}, 32768")
    if STAMPS:
        stamp(b, 13)
        if not opt("gap", 0): b.wait(vm=0)
        stamp(b, 14)
        b(f"s_cmp_lg_u32 {sW}, 0")
        b("s_cbranch_scc1 L_nost")
        b(f"v_lshlrev_b32 v3, 2, v1\ns_lshl_b32 {sT}, s2, 7\ns_add_u32 {sT}, {sT}, {STAMP_OFF}\ns_mov_b32 exec_hi, 0")
        b(f"buffer_store_dword v254, v3, {SO}, {sT} offen")
        b("s_mov_b64 exec, -1")
        b.label("L_nost")
        b(f"v_lshlrev_b32 v3, 2, v1\ns_lshl_b32 {sT}, s2, 2\ns_add_u32 {sT}, {sT}, {sW}\ns_lshl_b32 {sT}, {sT}, 7\ns_add_u32 {sT}, {sT}, {STAMP_OFF + (2 << 20)}\ns_mov_b32 exec_hi, 0")
        b(f"buffer_store_dword v254, v3, {SO}, {sT} offen")
        b("s_mov_b64 exec, -1")
        if TRACE:
            b(f"s_lshl_b32 {sT}, s2, 2\ns_add_u32 {sT}, {sT}, {sW}\ns_lshl_b32 {sT}, {sT}, 9\ns_add_u32 {sT}, {sT}, {STAMP_OFF + (1 << 20)}")
            b(f"buffer_store_dword v0, v3, {SO}, {sT} offen")
    b.label("L_end")
    b("s_endpgm")

    b.label("L_wait1")
    b.lg = []; b.vm = []
    if opt("peel1", 0):
        b.raw("s_waitcnt vmcnt(4)")
        test("L_wait1back")
    poll1("L_poll1", "L_wait1back")
    b("s_branch L_wait1back")
    if SENT:
        b.label("L_wait2")
        b(f"s_mov_b32 {sSpin}, 0")
        b.label("L_poll3")
        b(PFL)
        b.wait(vm=0)
        b(f"v_cmp_ne_u64 vcc, {sNon}, v[6:7]")
        b("s_cbranch_vccz L_wait2back")
        b(f"s_sleep 4\ns_add_u32 {sSpin}, {sSpin}, 1\ns_cmp_lt_u32 {sSpin}, {SPIN}")
        b("s_cbranch_scc1 L_poll3")
        b("s_branch L_wait2back")

    EV = [[int(x) for x in e.split(".")] for e in opt("ev", "3.0,3.0,0.4").split(",")]
    assert sum(e[0] for e in EV) == NA and sum(e[1] for e in EV) == NS
    b.label("L_aux")
    rp = 0
    for k, (nd_, nr_) in enumerate(EV):
        b.lg = []; b.vm = []
        if k + 1 < len(EV):
            b(f"s_cmp_lg_u32 {sEv}, {k}")
            b(f"s_cbranch_scc1 L_aux{k+1}")
        for i in range(nd_): pair()
        for i in range(nr_):
            b(f"s_xor_b32 {sT}, {sRot}, {(IENT-NS+rp)*4096}")
            b(f"buffer_load_dwordx4 {ar(STG[2*rp],4)}, v{KVW}, {SK}, {sT} offen {KVFL}")
            b(f"buffer_load_dwordx4 {ar(STG[2*rp+1],4)}, v{KVW}, {SV}, {sT} offen {KVFL}")
            rp += 1
        b(f"s_add_u32 {sEv}, {sEv}, 1")
        if not opt("early", 0) and not opt("sp", 0): (setup_a, setup_b, setup_c)[k]()
        b.wait(lg=0, vm=9 + 2*(nd_ + nr_))
        b("s_branch L_auxback")
        if k + 1 < len(EV): b.label(f"L_aux{k+1}")

    b.label("L_slow")
    b.wait(lg=0, vm=0)
    b("s_barrier")
    b(f"s_mov_b32 {sPass}, 1")
    b("v_and_b32 v21, 15, v1\nv_lshlrev_b32 v21, 8, v21\nv_lshrrev_b32 v22, 4, v1\nv_lshlrev_b32 v22, 4, v22\nv_add_u32 v21, v21, v22")
    for q in range(5): b(f"v_mov_b32 v{72+q}, 0xff800000")
    b(f"s_mov_b32 {sCnt}, 0")
    b.label("L_slowloop")
    for d in range(4): b(f"buffer_load_dwordx4 {vr(24+4*d,4)}, v21, {SK}, {sCnt} offen offset:{d*64}")
    b.wait(vm=0)
    for q in range(5):
        for d in range(4):
            b(f"{MF} {vr(80+4*q,4)}, {vr(24+4*d,4)}, {ar(QF+(q*4+d)*4,4)}, {'0' if d == 0 else vr(80+4*q,4)}")
    for q in range(5):
        b(f"v_max3_f32 v{72+q}, v{72+q}, v{80+4*q}, v{81+4*q}\nv_max3_f32 v{72+q}, v{72+q}, v{82+4*q}, v{83+4*q}")
    b(f"s_add_u32 {sCnt}, {sCnt}, 4096\ns_cmp_lt_u32 {sCnt}, 131072")
    b("s_cbranch_scc1 L_slowloop")
    for sw_ in ("v_permlane16_swap_b32", "v_permlane32_swap_b32"):
        for q in range(5): b(f"v_mov_b32 v{64+q}, v{72+q}")
        for q in range(5): b(f"{sw_} v{72+q}, v{64+q}")
        for q in range(5): b(f"v_max_f32 v{72+q}, v{72+q}, v{64+q}")
    for q in range(5):
        for i in range(4): b(f"v_sub_f32 v{NM+4*q+i}, 0, v{72+q}")
    p2_addr()
    b(f"s_mov_b32 {sKVm}, {sW1}\ns_mov_b32 {sKVs}, 0\ns_mov_b32 {sKVx}, {sRot}")
    for z in ZEROS: b(z)
    b.label("L_slowkv")
    pair()
    b(f"s_cmp_lt_u32 {sKVs}, {IENT * 4096}")
    b("s_cbranch_scc1 L_slowkv")
    b.wait(vm=0)
    b("s_barrier")
    for i in range(8): b(k_read(i))
    for i in range(4): b(VR[i])
    for i in range(8): b(s_mfma(0, i))
    b("s_nop 7")
    b("s_branch L_p2entry")
    return b.L

def gen_probe(spec):
    i, ri, j, rj = spec.split(",")
    b = B()
    b.raw(".p2align 8"); b.raw(".type mha_probe_kernel,@function"); b.label("mha_probe_kernel")
    b("s_cmp_ge_u32 s2, 1"); b("s_cbranch_scc1 L3_end")
    b.raw("s_memrealtime s[16:17]")
    b.raw("s_load_dwordx2 s[4:5], s[0:1], 56"); b.raw("s_waitcnt lgkmcnt(0)")
    b("s_mov_b32 s6, 268435456\ns_mov_b32 s7, 0x20000")
    b(f"v_mul_u32_u24 v1, 512, v0\nv_lshrrev_b32 v4, 1, v0\nv_and_b32 v4, 3, v4\nv_lshlrev_b32 v4, 7, v4\nv_add_u32 v1, v1, v4\ns_mov_b32 s8, {STAMP_OFF}")
    b(f"buffer_load_dword v2, v1, s[4:7], s8 offen offset:{8*int(i)}")
    b(f"buffer_load_dword v3, v1, s[4:7], s8 offen offset:{8*int(j)}")
    b.wait(vm=0)
    b("v_readlane_b32 s9, v2, 0")
    b("s_sub_u32 s9, s9, 100000")
    b("v_subrev_u32 v2, s9, v2\nv_subrev_u32 v3, s9, v3")
    for v, r, acc in ((2, ri, "s10"), (3, rj, "s11")):
        b(f"s_mov_b32 {acc}, {'-1' if r == 'min' else '0'}")
        for l in range(64):
            b(f"v_readlane_b32 s12, v{v}, {l}")
            b(f"{dict(min='s_min_u32', max='s_max_u32', avg='s_add_u32')[r]} {acc}, {acc}, s12")
        if r == 'avg': b(f"s_lshr_b32 {acc}, {acc}, 3")
        else: b(f"s_lshl_b32 {acc}, {acc}, 3")
    if opt("abs", 0):
        b("s_lshr_b32 s10, s10, 3\ns_add_u32 s12, s10, s9\ns_mov_b32 s10, 10000")
        if opt("abs", 0) == 2:
            b(f"s_mov_b32 s8, {STAMP_OFF + (3 << 20)}\nv_mov_b32 v1, 0\nbuffer_load_dword v2, v1, s[4:7], s8 offen")
            b.wait(vm=0)
            b("v_readfirstlane_b32 s12, v2")
    else:
        if opt("gap", 0): b("s_sub_u32 s11, s16, s9\ns_lshl_b32 s11, s11, 3")
        b("s_sub_u32 s10, s11, s10\ns_min_u32 s10, s10, 100000")
        b.raw("s_memrealtime s[12:13]"); b.raw("s_waitcnt lgkmcnt(0)")
    b.label("L3_spin")
    b.raw("s_memrealtime s[14:15]"); b.raw("s_waitcnt lgkmcnt(0)")
    b("s_sub_u32 s14, s14, s12\ns_cmp_lt_u32 s14, s10")
    b("s_cbranch_scc1 L3_spin")
    b.label("L3_end")
    b("s_endpgm")
    if opt("abs", 0) == 2:
        b.raw(".p2align 8"); b.raw(".type mha_tiny_kernel,@function"); b.label("mha_tiny_kernel")
        b.raw("s_memrealtime s[8:9]")
        b.raw("s_load_dwordx2 s[4:5], s[0:1], 56"); b.raw("s_waitcnt lgkmcnt(0)")
        b("s_cmp_ge_u32 s2, 1"); b("s_cbranch_scc1 L4_end")
        b(f"s_mov_b32 s6, 268435456\ns_mov_b32 s7, 0x20000\ns_mov_b32 s10, {STAMP_OFF + (3 << 20)}\nv_mov_b32 v1, 0\nv_mov_b32 v2, s8")
        b("buffer_store_dword v2, v1, s[4:7], s10 offen")
        b.label("L4_end")
        b("s_endpgm")
    return b.L

def main():
    k, n = hazard_pass(gen(), verbose=VERB)
    head = ["; Fused MHA block, one workgroup per (batch, head): Q projection, attention, then a quarter (in k) of the output",
            "; projection; workgroups hand O and partial sums to each other through d_ws. Written by dev/gen17.py.",
            "; @launch grid=(256,1,1) block=(256,1,1) lds=163840",
            '.amdgcn_target "amdgcn-amd-amdhsa--gfx950"', ".text", f".globl {NAME}"]
    tail = ['.section .rodata,"a"', ".p2align 6", f".amdhsa_kernel {NAME}", "  .amdhsa_next_free_vgpr 512", "  .amdhsa_next_free_sgpr 102",
            "  .amdhsa_accum_offset 256", "  .amdhsa_group_segment_fixed_size 0", "  .amdhsa_kernarg_size 64", "  .amdhsa_user_sgpr_count 2",
            "  .amdhsa_user_sgpr_kernarg_segment_ptr 1", "  .amdhsa_system_sgpr_workgroup_id_x 1", ".end_amdhsa_kernel"]
    if "probe" in P:
        k3, _ = hazard_pass(gen_probe(P["probe"]))
        k = k + k3
        head[2] = f"; @launch kernel={NAME} grid=(256,1,1) block=(256,1,1) lds=163840\n; @launch kernel=mha_probe_kernel grid=(1,1,1) block=(64,1,1) lds=0"
        head.append(".globl mha_probe_kernel")
        if opt("abs", 0) == 2:
            head[2] = "; @launch kernel=mha_tiny_kernel grid=(1,1,1) block=(64,1,1) lds=0\n" + head[2]
            head.append(".globl mha_tiny_kernel")
            tail += [".p2align 6", ".amdhsa_kernel mha_tiny_kernel", "  .amdhsa_next_free_vgpr 8", "  .amdhsa_next_free_sgpr 32",
                "  .amdhsa_accum_offset 8", "  .amdhsa_group_segment_fixed_size 0", "  .amdhsa_kernarg_size 64", "  .amdhsa_user_sgpr_count 2",
                "  .amdhsa_user_sgpr_kernarg_segment_ptr 1", "  .amdhsa_system_sgpr_workgroup_id_x 1", ".end_amdhsa_kernel"]
        tail += [".p2align 6", ".amdhsa_kernel mha_probe_kernel", "  .amdhsa_next_free_vgpr 8", "  .amdhsa_next_free_sgpr 32",
            "  .amdhsa_accum_offset 8", "  .amdhsa_group_segment_fixed_size 0", "  .amdhsa_kernarg_size 64", "  .amdhsa_user_sgpr_count 2",
            "  .amdhsa_user_sgpr_kernarg_segment_ptr 1", "  .amdhsa_system_sgpr_workgroup_id_x 1", ".end_amdhsa_kernel"]
    fmt = lambda l: l if l.endswith(":") or l.startswith((".", ";")) else "    " + l
    open(sys.argv[1], "w").write("\n".join(head + [fmt(l) for l in k] + tail) + "\n")
    print(f"nops inserted: {n}; lines {len(k)}")
main()
```

```python
import sys, math, struct
from asmlib import B, hazard_pass, need, estimate

P = dict(kv.split("=") for kv in sys.argv[2:])
def opt(k, d): return type(d)(P.get(k, d))
STAMPS = opt("stamps", 0); TRACE = opt("trace", 0); VERB = bool(opt("v", 0))
KVFL = opt("kvfl", "nt").replace("+", " ")
HST = opt("hst", "sc0+sc1").replace("+", " ")
HLD = opt("hld", "sc0+sc1").replace("+", " ")
H1S = opt("h1s", "sc0+sc1").replace("+", " "); H1F = opt("h1f", "sc0+sc1").replace("+", " "); H1L = opt("h1l", "sc0+sc1").replace("+", " ")
FORCE_SLOW = opt("slow", 0)
SIG = opt("sig", "g122"); SIG3 = opt("sig3", "g400040004"); AUXT = opt("auxt", "p0.2.4/1.3.5/1.2.6/0.3.7")
TL = opt("tl", 11); TIT = opt("tit", 6); THALF = opt("thalf", 1)

TOUCH = opt("touch", 7)
SLEEP = opt("sleep", 4); ONEPOLL = opt("onepoll", 1); PBF = opt("pbf", 1)
NAME = "standalone__mha_block_cached__near_ridge_kernel"
STAMP_OFF = 200 << 20; NST = 16
TIMER = "s_memtime" if STAMPS == 2 else "s_memrealtime"
PART = 12 << 20; PSL = 10240 if opt('pbf', 1) else 20480; FLG1 = PART + 64 * 16 * PSL + (2 << 20); FS1 = opt('fs1', 8448); FS2 = opt('fs2', 4352); FLG2 = FLG1 + (1 << 20); WSREC = FLG2 + (2 << 20)

def vr(a, n=1, k='v'): return f"{k}{a}" if n == 1 else f"{k}[{a}:{a+n-1}]"
def ar(a, n=1): return vr(a, n, 'a')
def f32bits(x): return "0x%08x" % struct.unpack("<I", struct.pack("<f", x))[0]

def stamp(b, i):
    if STAMPS and (not opt("light", 0) or i == 14 or (opt("light", 0) == 2 and i in (2, 5, 12)) or (opt('light', 0) == 3 and i in (4, 6, 12))):
        b.wait(lg=0)
        b.raw(f"{TIMER} s[96:97]"); b.raw("s_waitcnt lgkmcnt(0)")
        b.raw(f"v_writelane_b32 v254, s96, {2*i}"); b.raw(f"v_writelane_b32 v254, s97, {2*i+1}")
def trace(b):
    if TRACE:
        b.wait(lg=0)
        for s in ("s_memtime s[96:97]", "s_waitcnt lgkmcnt(0)", "s_sub_u32 s96, s96, s98", "s_mov_b32 s97, m0", "s_mov_b32 m0, s100",
                  "v_writelane_b32 v0, s96, m0", "s_add_u32 s100, s100, 1", "s_min_u32 s100, s100, 63", "s_mov_b32 m0, s97"): b.raw(s)

def order(kind, j):
    if kind == "seq": return list(range(16)), [2, 6, 10]
    if kind == "xor": return [t ^ j for t in range(16)], [4, 8, 12]
    if kind.startswith("g"):
        ramp = [int(c) for c in kind[1:]]
        O = [[] for _ in range(4)]; LD = [[] for _ in range(4)]; opened = {}; nxt = 0; turn = 0
        for t in range(16):
            n = min(ramp[t] if t < len(ramp) else 1, 16 - nxt)
            lead_cls = [(turn + i) % 4 for i in range(n)]; turn = (turn + n) % 4
            fresh = []
            for c in lead_cls:
                O[c].append(nxt); LD[c].append(t); opened[nxt] = t; fresh.append(nxt); nxt += 1
            k = 0
            for c in range(4):
                if c in lead_cls: continue
                old = [x for x in sorted(opened) if x not in O[c] and opened[x] < t]
                if old: O[c].append(old[0])
                else:
                    O[c].append(fresh[k % len(fresh)]); k += 1
        o = O[j]; assert sorted(o) == list(range(16)), o
        lead = [t for t in LD[j] if t >= 2][:3]
        while len(lead) < 3: lead.append(min(lead[-1] + 3, 15))
        return o, lead
    o = []; lead = []
    if kind == "rot":
        for t in range(16):
            if t == 0: o.append(j)
            elif t % 4 == j and t + 3 < 16: o.append(t + 3); lead.append(t)
            else: o.append([c for c in range(16) if c not in o and (c < 4 or (c - 3) < t) and not (c >= 4 and (c - 3) % 4 == j)][0])
    elif kind == "rot2":
        for t in range(16):
            if t == 0: o.append(0)
            elif t == 1: o.append(1 + j)
            elif (t - 1) % 4 == j and t + 3 < 16: o.append(t + 3); lead.append(t)
            else: o.append([c for c in range(16) if c not in o and (c < 5 or (c - 3) < t) and not (c >= 5 and (c - 4) % 4 == j)][0])
    assert sorted(o) == list(range(16)), o
    lead = [t for t in lead if t >= 2][:3]
    while len(lead) < 3: lead.append(lead[-1] + 2)
    return o, lead
def tables(kind):
    T = []
    for j in range(4):
        o, lead = order(kind, j)
        if AUXT.startswith("c"):
            off, base = int(AUXT[1]), int(AUXT[2])
            lead = [((j + off) % 4) + base + 4 * k + 2 for k in range(3)]
        elif AUXT.startswith("d"):
            sp, base = int(AUXT[1]), int(AUXT[2])
            lead = [base + (j * sp) // 4 + sp * k + 2 for k in range(3)]
        elif AUXT.startswith("p"):
            lead = [int(v) + 2 for v in AUXT[1:].split("/")[j].split(".")]
        elif AUXT != "lead": lead = [int(v) + 2 for v in AUXT.split(".")]
        if opt("sp", 0):
            ev = opt("ev", "3.0,3.0,0.4").split(",")
            lead = lead[opt("l0", 1):][:len(ev)] if ev != ["0.0"] else []
        val = sum(c << (4 * t) for t, c in enumerate(o))
        T.append((val & 0xffffffff, val >> 32, sum(1 << (t - 1) for t in lead)))
    return T

def order3(j, p):
    if SIG3.startswith("g"):
        ramp = [int(c) for c in SIG3[1:].rstrip("p")]
        PX = opt("px", 1); PS = opt("ps", 8)
        O = [[] for _ in range(4)]; opened = {}; nxt = 0; turn = 0
        for t in range(14):
            n = min(ramp[t] if t < len(ramp) else 1, 14 - nxt)
            lead_cls = [(turn + i) % 4 for i in range(n)]; turn = (turn + n) % 4
            fresh = []
            for c in lead_cls:
                O[c].append(nxt); opened[nxt] = t; fresh.append(nxt); nxt += 1
            k = 0
            for c in range(4):
                if c in lead_cls: continue
                old = [x for x in sorted(opened) if x not in O[c] and opened[x] < t]
                if PX: old.sort(key=lambda x: (x ^ c) if x < 4 else x)
                if old: O[c].append(old[0])
                else:
                    O[c].append(fresh[k % len(fresh)]); k += 1
        o = O[j]; assert sorted(o) == list(range(14)), o
        if p and SIG3.endswith("p"): o = [(c + PS) % 14 for c in o]
    elif SIG3 == "seq": o = list(range(14))
    elif SIG3.startswith("pair"):
        gap = int(SIG3[4:5] or 1)
        o = [2 * j, 2 * j + 1]
        lt = {8 + i: 2 + gap * i for i in range(6)}
        for t in range(2, 14):
            mine = [c for c in lt if lt[c] == t and (c - 8) % 4 == j]
            if mine: o.append(mine[0]); continue
            ok = [c for c in range(14) if c not in o and (c < 8 or (lt[c] < t - 1 and (c - 8) % 4 != j))]
            if not ok: ok = [c for c in range(14) if c not in o and not ((c - 8) % 4 == j and lt[c] > t)]
            ok.sort(key=lambda c: (c != (o[-1] ^ 1), c >= 8, (c - 2 * j) % 8 if c < 8 else c))
            o.append(ok[0])
        assert sorted(o) == list(range(14)), o
    else:
        o = []
        for t in range(14):
            if t == 0: o.append(j)
            elif t % 4 == j and t + 3 < 14: o.append(t + 3)
            else: o.append([c for c in range(14) if c not in o and (c < 4 or (c - 3) < t) and not (c >= 4 and (c - 3) % 4 == j)][0])
        assert sorted(o) == list(range(14))
        if p and SIG3 == "rotp": o = [(c + 7) % 14 for c in o]
    val = sum((c + 2) << (4 * t) for t, c in enumerate(o))
    return val & 0xffffffff, val >> 32
ROW1 = opt('row1', 1)
def gen():
    b = B()
    SX, SW, SK, SV, SO, SD = "s[4:7]", "s[8:11]", "s[12:15]", "s[16:19]", "s[20:23]", "s[24:27]"
    SOUT, SX3, SW3 = "s[68:71]", "s[72:75]", "s[76:79]"
    sW, sB, sH, sCnt = "s28", "s29", "s30", "s31"
    sRB, sDB, sDelta, sMask = "s32", "s33", "s34", "s35"
    sXO, sWO, sMX, sMW, sM5, sT, sT2, sT3 = "s36", "s37", "s38", "s39", "s40", "s41", "s42", "s43"
    sW4, sW1, sPB, sKVm, sKVs, sPass, sO0, sO1, sCls = "s44", "s45", "s46", "s47", "s48", "s49", "s50", "s51", "s52"
    sCc, sSpin, sQH, sKH = "s53", "s54", "s56", "s57"
    sBl, sHl, sKq, sEv = "s60", "s61", "s62", "s63"
    sKVx, sRot = "s55", "s66"
    sNon = "s[64:65]"
    sPs = [None, "s82", "s83", "s84"]; sPl = [None, "s85", "s86", "s87"]
    sF1, sOut, sRdy, sF2 = "s88", "s89", "s90", "s91"
    XA = [2, 3]; WA = [4, 5, 6, 7]; VB = [8, 9, 10, 11, 12]; VW = [13, 14, 15, 16]; KVW, NONV, L16 = 17, 18, 20
    ACC = 24; OK = 104; KA = [184, 185, 186, 187]; VA = list(range(188, 196)); NM = 196; LA = 216; L16B = 236; TCH = 237
    XA3 = [238, 239]; ZR = 240; WA3 = [244, 245, 246, 247]; VW3 = [248, 249, 250, 251]; VB3 = [252] * 4 + [253]; OUTV = 255
    SB = [24, 32, 40]; PB = [48, 52, 56]
    OS, QF, KF, VF, ONES, JUNK, K0F = 0, 80, 160, 192, 224, 228, 240
    STG = [VF + 4*i for i in range(8)] + [232, 236]
    AF = [80, 96]; BF = [112, 132]
    ST0 = 53248; STSZ = 36864; LDS = 163840; QEX = 122880
    S3 = [ST0 + STSZ, ST0 + 2*STSZ]
    FL = 256; SPIN = 200000
    MF = "v_mfma_f32_16x16x32_bf16"

    b.raw(".p2align 8")
    b.raw(f".type {NAME},@function")
    b.label(NAME)
    b("s_cmp_ge_u32 s2, 256")
    b("s_cbranch_scc1 L_end")
    b.track = False
    b("s_load_dwordx4 s[4:7], s[0:1], 0")
    b("s_load_dwordx4 s[8:11], s[0:1], 16")
    b("s_load_dwordx4 s[68:71], s[0:1], 40")
    b("s_load_dwordx2 s[76:77], s[0:1], 32")
    b("s_load_dwordx2 s[20:21], s[0:1], 56")
    b("s_memrealtime s[64:65]")
    if STAMPS: b.raw(f"{TIMER} s[94:95]")
    if TRACE: b.raw("s_memtime s[98:99]"); b.raw("s_mov_b32 s100, 0")
    b.track = True
    b("v_and_b32 v1, 63, v0\nv_lshrrev_b32 v21, 6, v0")
    b(f"s_and_b32 {sB}, s2, 1\ns_lshl_b32 {sB}, {sB}, 2\ns_lshr_b32 {sT}, s2, 3\ns_and_b32 {sBl}, {sT}, 3\ns_add_u32 {sB}, {sB}, {sBl}")
    b(f"v_readfirstlane_b32 {sW}, v21")
    b(f"s_lshr_b32 {sKq}, s2, 1\ns_and_b32 {sKq}, {sKq}, 3\ns_lshl_b32 {sH}, {sKq}, 3\ns_lshr_b32 {sHl}, {sT}, 2\ns_add_u32 {sH}, {sH}, {sHl}")
    b(f"s_add_u32 {sCls}, {sBl}, {sHl}\ns_and_b32 {sCls}, {sCls}, 3")
    T = tables(SIG)
    b(f"s_mov_b32 s58, {T[0][0]}\ns_mov_b32 s59, {T[0][1]}\ns_mov_b32 {sMask}, {T[0][2]}")
    for j in (1, 2, 3):
        b(f"s_cmp_eq_u32 {sCls}, {j}\ns_cselect_b32 s58, {T[j][0]}, s58\ns_cselect_b32 s59, {T[j][1]}, s59\ns_cselect_b32 {sMask}, {T[j][2]}, {sMask}")
    if opt("xoff", 1) in (5, 6):
        b(f"s_and_b32 {sT2}, s2, 1\ns_lshl_b32 {sT2}, {sT2}, 1\ns_xor_b32 {sT2}, {sT2}, {sKq}")
        if opt("xoff", 1) == 6: b(f"s_lshl_b32 {sT3}, {sKq}, 1\ns_and_b32 {sT3}, {sT3}, 2\ns_xor_b32 {sT2}, {sT2}, {sT3}")
        b(f"s_mul_i32 {sT2}, {sT2}, 0x44444444\ns_xor_b32 s58, s58, {sT2}\ns_xor_b32 s59, s59, {sT2}")
    elif opt("xoff", 1):
        if opt("xoff", 1) == 1: b(f"s_xor_b32 {sT2}, s2, {sKq}")
        if opt("xoff", 1) == 2: b(f"s_lshr_b32 {sT2}, s2, 7\ns_xor_b32 {sT2}, {sT2}, s2")
        if opt("xoff", 1) == 3: b(f"s_lshr_b32 {sT2}, s2, 7\ns_xor_b32 {sT2}, {sT2}, s2\ns_xor_b32 {sT2}, {sT2}, {sKq}")
        if opt("xoff", 1) == 4: b(f"s_lshr_b32 {sT2}, s2, 7")
        b(f"s_bitcmp1_b32 {sT2}, 0\ns_cselect_b32 {sT2}, 0x88888888, 0\ns_xor_b32 s58, s58, {sT2}\ns_xor_b32 s59, s59, {sT2}")
    b(f"s_lshl_b32 {sW4}, {sW}, 12\ns_lshl_b32 {sW1}, {sW}, 10\ns_and_b32 {sQH}, {sW}, 1\ns_lshr_b32 {sKH}, {sW}, 1")
    if opt("ctouch", 2) == 2:
        b.raw("s_getpc_b64 s[92:93]")
        b.label("L_pc")
        b(f"s_lshr_b32 {sMW}, s2, 3\ns_lshl_b32 {sMW}, {sMW}, 2\ns_add_u32 {sMW}, {sMW}, {sW}\ns_lshl_b32 {sMW}, {sMW}, 7\ns_min_u32 {sMW}, {sMW}, L_last-L_pc")
        b(f"s_add_u32 s92, s92, {sMW}\ns_addc_u32 s93, s93, 0\nv_mov_b32 v24, s92\nv_mov_b32 v25, s93")
        b.raw(f"global_load_dword a{JUNK}, v[24:25], off")
    b("v_lshrrev_b32 v21, 4, v1")
    b("v_and_b32 v22, 7, v1\nv_xor_b32 v22, v22, v21\nv_lshlrev_b32 v22, 4, v22")
    b("v_lshrrev_b32 v23, 3, v1\nv_lshlrev_b32 v23, 11, v23\nv_add_u32 v22, v22, v23\nv_xor_b32 v23, 64, v22")
    b(f"s_lshl_b32 {sT}, {sW}, 16")
    for q in range(4):
        b(f"s_add_u32 {sT2}, {sT}, {q*(16384-1024)}\nv_add_u32 v{VB[q]}, {sT2}, v{23 if q & 1 else 22}")
    b(f"s_lshl_b32 {sT}, {sQH}, 6\nv_xor_b32 v{VB[4]}, {sT}, v22\ns_lshl_b32 {sT}, {sW}, 14\ns_add_u32 {sT}, {sT}, {16*16384}\nv_add_u32 v{VB[4]}, {sT}, v{VB[4]}")
    b("v_lshlrev_b32 v22, 1, v21\nv_and_b32 v23, 15, v1\nv_xor_b32 v22, v22, v23\nv_lshlrev_b32 v22, 4, v22")
    b(f"v_lshlrev_b32 v23, 13, v21\nv_add_u32 v23, v23, v22\nv_xor_b32 v{L16}, 128, v23")
    b(f"s_lshl_b32 {sT}, {sW}, 17")
    for q in range(4):
        b(f"s_add_u32 {sT2}, {sT}, {q*(32768-1024)}\nv_add_u32 v{VW[q]}, {sT2}, v{L16 if q & 2 else 23}")
    b(f"s_add_u32 {sM5}, {sW1}, 16384")
    b(f"s_lshl_b32 {sT}, {sB}, 5\ns_add_u32 {sT}, {sT}, {sH}\ns_lshl_b32 {sT}, {sT}, 17\ns_lshl_b32 {sT2}, {sH}, 8\ns_mul_i32 {sT3}, {sB}, 327680")
    b.raw("s_waitcnt lgkmcnt(0)")
    b(f"s_add_u32 s12, s6, {sT}\ns_addc_u32 s13, s7, 0")
    b(f"s_add_u32 s16, s8, {sT}\ns_addc_u32 s17, s9, 0")
    b(f"s_add_u32 s8, s10, {sT2}\ns_addc_u32 s9, s11, 0\ns_sub_u32 s10, 8388608, {sT2}\ns_mov_b32 s11, 0x20000")
    b(f"s_add_u32 s4, s4, {sT3}\ns_addc_u32 s5, s5, 0\ns_mov_b32 s6, 327680\ns_mov_b32 s7, 0x20000")
    def dma_lists(vw, sw, vb, sx, fl=""):
        return ([f"buffer_load_dwordx4 v{vw[q]}, {sw}, {sWO} offen offset:{q*1024} lds" for q in range(4)],
                [f"buffer_load_dwordx4 v{vb[q]}, {sx}, {sXO} offen offset:{q*1024} {fl} lds" for q in range(4)] +
                [f"buffer_load_dwordx4 v{vb[4]}, {sx}, {sXO} offen {fl} lds"])
    DW, DX = dma_lists(VW, SW, VB, SX)
    DW3, DX3 = dma_lists(VW3, SW3, VB3, SX3, H1L)
    def first_stage(st):
        base = ST0 + ((st+2)%3)*STSZ
        b(f"s_and_b32 {sT}, s58, 15\ns_add_u32 m0, {sW4}, {base+20480}\ns_lshl_b32 {sWO}, {sT}, 19")
        for x in DW: b(x)
        b(f"s_add_u32 m0, {sW4}, {base}\ns_lshl_b32 {sXO}, {sT}, 7")
        for x in DX[:4]: b(x)
    def first_stage_last(st):
        base = ST0 + ((st+2)%3)*STSZ
        b(f"s_add_u32 m0, {sM5}, {base}\ns_lshr_b64 s[58:59], s[58:59], 4")
        b(DX[4])
    if opt("sta", 0) == 1: stamp(b, 15)
    first_stage(0)
    if not opt("late5", 0): first_stage_last(0)
    if opt("sta", 0) == 2: stamp(b, 15)
    if STAMPS: b.raw("v_writelane_b32 v254, s94, 0"); b.raw("v_writelane_b32 v254, s95, 1")
    if opt("ctouch", 2) == 1:
        b.raw("s_getpc_b64 s[92:93]")
        b.label("L_pc")
        b(f"s_lshr_b32 {sMW}, s2, 3\ns_lshl_b32 {sMW}, {sMW}, 2\ns_add_u32 {sMW}, {sMW}, {sW}\ns_lshl_b32 {sMW}, {sMW}, 7\ns_min_u32 {sMW}, {sMW}, L_last-L_pc")
        b(f"s_add_u32 s92, s92, {sMW}\ns_addc_u32 s93, s93, 0\nv_mov_b32 v24, s92\nv_mov_b32 v25, s93")
        b.raw(f"global_load_dword a{JUNK}, v[24:25], off")
    b(f"s_mov_b32 {sRB}, {ST0 + 2*STSZ}\ns_mov_b32 {sCnt}, 0\ns_mov_b32 {sDB}, {ST0 + STSZ}\ns_mov_b32 {sEv}, 0")
    b("v_and_b32 v26, 15, v1\nv_lshrrev_b32 v27, 1, v26\nv_xor_b32 v27, v27, v21\nv_lshlrev_b32 v27, 4, v27\nv_lshlrev_b32 v25, 7, v26\nv_add_u32 v27, v27, v25")
    b(f"s_mul_i32 {sT}, {sQH}, 10240\ns_add_u32 {sT}, {sT}, {sRB}")
    for u in range(2): b(f"v_xor_b32 v{XA[u]}, {u*64}, v27\nv_add_u32 v{XA[u]}, {sT}, v{XA[u]}")
    b("v_lshrrev_b32 v30, 2, v1\nv_and_b32 v31, 7, v30\nv_and_b32 v26, 3, v30")
    b(f"s_lshl_b32 {sT}, {sKH}, 2\nv_xor_b32 v27, {sT}, v31\nv_lshlrev_b32 v27, 5, v27")
    b("v_lshlrev_b32 v25, 3, v21\nv_add_u32 v28, v25, v26\nv_lshlrev_b32 v28, 8, v28")
    b("v_and_b32 v29, 3, v1\nv_lshlrev_b32 v29, 3, v29\nv_add3_u32 v28, v28, v27, v29")
    b(f"s_add_u32 {sT}, {sRB}, 20480")
    for d in range(4): b(f"v_xor_b32 v{WA[d]}, {d*32}, v28\nv_add_u32 v{WA[d]}, {sT}, v{WA[d]}")
    b("v_lshlrev_b32 v23, 8, v21\nv_add_u32 v22, v22, v23")
    b(f"s_lshl_b32 {sT}, {sQH}, 7\nv_xor_b32 v{KVW}, {sT}, v22\nv_add_u32 v{KVW}, {sW1}, v{KVW}")
    ROT = opt("rot", 3)
    if ROT == 0: b(f"s_mov_b32 {sRot}, 0")
    if ROT == 1: b(f"s_lshr_b32 {sRot}, s2, 3\ns_lshl_b32 {sT}, s2, 2\ns_add_u32 {sRot}, {sRot}, {sT}\ns_and_b32 {sRot}, {sRot}, 31\ns_lshl_b32 {sRot}, {sRot}, 12")
    if ROT == 2: b(f"s_and_b32 {sRot}, {sH}, 31\ns_lshl_b32 {sRot}, {sRot}, 12")
    if ROT == 3: b(f"s_mul_i32 {sRot}, s2, 0x9E3779B1\ns_lshr_b32 {sRot}, {sRot}, 27\ns_lshl_b32 {sRot}, {sRot}, 12")
    b(f"s_mov_b32 {sKVm}, {sW1}\ns_mov_b32 {sKVs}, 0\ns_mov_b32 {sKVx}, {sRot}")
    b("s_mov_b32 s14, 131072\ns_mov_b32 s15, 0x20000\ns_mov_b32 s18, 131072\ns_mov_b32 s19, 0x20000")
    b(f"s_mov_b32 s22, {268435456 if STAMPS else WSREC}\ns_mov_b32 s23, 0x20000")
    b("s_mov_b32 s24, s70\ns_mov_b32 s25, s71\ns_mov_b32 s26, 256\ns_mov_b32 s27, 0x20000")
    b(f"s_add_u32 s68, s68, {sT3}\ns_addc_u32 s69, s69, 0\ns_mov_b32 s70, 327680\ns_mov_b32 s71, 0x20000")
    b(f"s_lshl_b32 {sT}, {sB}, 2\ns_add_u32 {sT}, {sT}, {sKq}\ns_mul_i32 {sT}, {sT}, 327680\ns_add_u32 s72, s20, {sT}\ns_addc_u32 s73, s21, 0\ns_mov_b32 s74, 327680\ns_mov_b32 s75, 0x20000")
    b(f"s_lshl_b32 {sT}, {sKq}, 13\ns_add_u32 {sT}, {sT}, {sHl}\ns_lshl_b32 {sT}, {sT}, 8\ns_add_u32 s76, s76, {sT}\ns_addc_u32 s77, s77, 0\ns_sub_u32 s78, 8388608, {sT}\ns_mov_b32 s79, 0x20000")
    if opt("sta", 0) == 3: stamp(b, 15)
    SENT = 0; F2W = opt("f2w", 0); CLR = 2

    def zero(r):
        big = int(r.split(":")[1][:-1]) - int(r.split("[")[1].split(":")[0]) == 15
        return f"{'v_mfma_f32_32x32x16_bf16' if big else MF} {r}, {vr(ZR,4)}, {vr(ZR,4)}, 0"
    ZEROS = [zero(vr(OK+16*i, 16)) for i in range(5)] + [zero(ar(OS+16*i, 16)) for i in range(5)] + [zero(vr(LA, 16)), zero(vr(LA+16, 4))]
    def p2_addr():
        b("v_lshrrev_b32 v21, 4, v1\nv_and_b32 v22, 7, v1\nv_lshlrev_b32 v22, 1, v22\nv_xor_b32 v22, v22, v21\nv_lshlrev_b32 v22, 4, v22")
        b("v_and_b32 v23, 15, v1\nv_lshlrev_b32 v23, 8, v23\nv_add_u32 v22, v22, v23")
        b(f"s_lshl_b32 {sT}, {sKH}, 14")
        for d in range(4): b(f"v_xor_b32 v{KA[d]}, {d*64}, v22\nv_add_u32 v{KA[d]}, {sT}, v{KA[d]}")
        b(f"v_lshrrev_b32 v21, 2, v1\nv_and_b32 v22, 7, v21\ns_lshl_b32 {sT2}, {sKH}, 2\nv_xor_b32 v22, {sT2}, v22\nv_lshlrev_b32 v22, 5, v22")
        b("v_lshlrev_b32 v21, 8, v21\nv_and_b32 v23, 3, v1\nv_lshlrev_b32 v23, 3, v23\nv_add3_u32 v22, v22, v21, v23")
        b(f"s_add_u32 {sT}, {sT}, 4096")
        for j in range(8): b(f"v_xor_b32 v{VA[j]}, {j*32}, v22\nv_add_u32 v{VA[j]}, {sT}, v{VA[j]}")
        b(f"s_mov_b32 {sPB}, 0")
    def spread(i0, extra):
        code = b.L[i0:]; b.L = b.L[:i0]
        step = max(1, len(code) // (len(extra) + 1))
        for i, ln in enumerate(code):
            if i % step == 0 and 1 <= i // step <= len(extra): b.L.append(extra[i // step - 1])
            b.L.append(ln)
    def setup_a():
        for i in range(4): b(f"v_mov_b32 v{ZR+i}, 0")
        b(f"v_lshlrev_b32 v{L16}, 4, v1\nv_add_u32 v{L16B}, 4096, v{L16}")
        i0 = len(b.L)
        p2_addr()
        b("v_mov_b32 v21, 0x3f803f80")
        if ROW1: b("v_and_b32 v22, 15, v1\nv_cmp_eq_u32 s[92:93], 0, v22\nv_cndmask_b32 v21, 0, v21, s[92:93]")
        for i in range(4): b(f"v_accvgpr_write_b32 a{ONES+i}, v21")
        b(f"s_mov_b32 {sPass}, 0\ns_mov_b32 {sCc}, {f32bits(math.log2(math.e) / math.sqrt(128.0))}")
        spread(i0, ZEROS[:6])
    def setup_b():
        i0 = len(b.L)
        b("v_lshrrev_b32 v21, 4, v1\nv_lshlrev_b32 v22, 1, v21\nv_and_b32 v23, 15, v1\nv_xor_b32 v22, v22, v23\nv_lshlrev_b32 v22, 4, v22")
        b(f"v_lshlrev_b32 v23, 11, v23\nv_lshlrev_b32 v{OUTV}, 3, v21\nv_add_u32 v{OUTV}, v{OUTV}, v23")
        b(f"v_lshlrev_b32 v23, 11, v21\nv_add_u32 v23, v23, v22\nv_xor_b32 v22, 128, v23\ns_lshl_b32 {sT}, {sW}, 15")
        for q in range(4):
            b(f"s_add_u32 {sT2}, {sT}, {q*(8192-1024)}\nv_add_u32 v{VW3[q]}, {sT2}, v{22 if q & 1 else 23}")
        b(f"v_add_u32 v{VB3[0]}, {sW4}, v{L16}\nv_add_u32 v{VB3[4]}, {sM5}, v{L16}")
        b(f"s_mul_i32 {sT}, {sQH}, 5120\ns_add_u32 {sT}, {sT}, {S3[0]}\nv_add_u32 v{XA3[0]}, {sT}, v{L16}\nv_add_u32 v{XA3[1]}, 10240, v{XA3[0]}")
        b(f"v_lshrrev_b32 v21, 2, v1\nv_and_b32 v22, 7, v21\ns_lshl_b32 {sT}, {sKq}, 1\ns_add_u32 {sT}, {sT}, {sKH}\nv_xor_b32 v22, {sT}, v22\nv_lshlrev_b32 v22, 5, v22")
        b("v_lshlrev_b32 v21, 8, v21\nv_and_b32 v23, 3, v1\nv_lshlrev_b32 v23, 3, v23\nv_add3_u32 v22, v22, v21, v23")
        for d in range(4): b(f"v_xor_b32 v{WA3[d]}, {d*64}, v22\nv_add_u32 v{WA3[d]}, {S3[0]+20480}, v{WA3[d]}")
        b(f"s_lshl_b32 {sOut}, {sT}, 5\ns_mul_i32 {sT2}, {sQH}, 163840\ns_add_u32 {sOut}, {sOut}, {sT2}\ns_lshl_b32 {sT3}, {sHl}, 8\ns_add_u32 {sOut}, {sOut}, {sT3}")
        b(f"s_mov_b32 s80, {order3(0,0)[0]}\ns_mov_b32 s81, {order3(0,0)[1]}")
        for bb in range(1, 8 if SIG3.endswith("p") else 4):
            b(f"s_cmp_eq_u32 {sB if SIG3.endswith('p') else sBl}, {bb}\ns_cselect_b32 s80, {order3(bb & 3, bb >> 2)[0]}, s80\ns_cselect_b32 s81, {order3(bb & 3, bb >> 2)[1]}, s81")
        b(f"s_mul_i32 {sT}, {sHl}, 0x22222222\ns_xor_b32 s80, s80, {sT}\ns_xor_b32 s81, s81, {sT}")
        if TOUCH == 1:
            if THALF: b(f"s_lshr_b32 {sT}, s2, 3\ns_lshl_b32 {sT}, {sT}, 1\ns_and_b32 {sT2}, s2, 1\ns_add_u32 {sT}, {sT}, {sT2}\ns_lshl_b32 {sT}, {sT}, 15")
            else: b(f"s_lshr_b32 {sT}, s2, 3\ns_lshl_b32 {sT}, {sT}, 16")
            b(f"s_sub_u32 {sT}, {sT}, {sT3}\ns_lshl_b32 {sT2}, {sW}, {13 if THALF else 14}\ns_add_u32 {sT}, {sT}, {sT2}")
            b(f"v_cmp_gt_u32 s[92:93], {TL}, v1\nv_lshlrev_b32 v21, 7, v1\nv_add_u32 v21, {sT}, v21\nv_mov_b32 v22, 0x40000000\nv_cndmask_b32 v{TCH}, v22, v21, s[92:93]")
        if TOUCH == 8:
            b(f"s_and_b32 {sT}, s80, 14\ns_lshl_b32 {sT}, {sT}, 17\ns_lshl_b32 {sT2}, {sW}, 16\ns_add_u32 {sT}, {sT}, {sT2}")
            b(f"v_lshrrev_b32 v21, 1, v1\nv_lshlrev_b32 v21, 11, v21\nv_and_b32 v22, 1, v1\nv_lshlrev_b32 v22, 7, v22\nv_add3_u32 v{TCH}, v21, v22, {sT}")
        if TOUCH == 7:
            b(f"s_and_b32 {sT}, s80, 15\ns_lshl_b32 {sT}, {sT}, 17\ns_lshl_b32 {sT2}, {sW}, 15\ns_add_u32 {sT}, {sT}, {sT2}")
            b(f"v_lshrrev_b32 v21, 1, v1\nv_lshlrev_b32 v21, 11, v21\nv_and_b32 v22, 1, v1\nv_lshlrev_b32 v22, 7, v22\nv_add3_u32 v21, v21, v22, {sT}")
            b(f"v_lshrrev_b32 v22, 5, v1\nv_lshlrev_b32 v22, 30, v22\nv_add_u32 v{TCH}, v21, v22")
        spread(i0, ZEROS[6:])
    def setup_c():
        b(f"s_mul_i32 {sT}, {sB}, 1310720\ns_lshl_b32 {sT2}, {sH}, 1\ns_add_u32 {sT2}, {sT2}, {sKH}\ns_mul_i32 {sT2}, {sT2}, 20480\ns_add_u32 {sO0}, {sT}, {sT2}")
        b(f"s_mul_i32 {sT2}, {sQH}, 5120\ns_add_u32 {sO0}, {sO0}, {sT2}\ns_add_u32 {sO1}, {sO0}, 10240")
        b(f"s_lshl_b32 {sT}, {sB}, 2\ns_add_u32 {sT}, {sT}, {sKq}\ns_mul_i32 {sT}, {sT}, {FS1}\ns_add_u32 {sF1}, {sT}, {FLG1}")
        b(f"s_lshl_b32 {sT}, {sB}, 3\ns_add_u32 {sT}, {sT}, {sHl}\ns_lshl_b32 {sF2}, {sT}, 2")
        if F2W: b(f"s_add_u32 {sF2}, {sF2}, {sW}")
        b(f"s_mul_i32 {sF2}, {sF2}, {FS2}\ns_add_u32 {sF2}, {sF2}, {FLG2}")
        b(f"s_mul_i32 {sT}, {sT}, {16*PSL}\ns_mul_i32 {sT2}, {sW}, {PSL//4}\ns_add_u32 {sT}, {sT}, {sT2}\ns_add_u32 {sT}, {sT}, {PART}")
        for d in (1, 2, 3):
            b(f"s_xor_b32 {sT2}, {sKq}, {d}\ns_lshl_b32 {sT3}, {sT2}, 2\ns_add_u32 {sT3}, {sT3}, {sKq}\ns_mul_i32 {sT3}, {sT3}, {PSL}\ns_add_u32 {sPs[d]}, {sT}, {sT3}")
            b(f"s_lshl_b32 {sT3}, {sKq}, 2\ns_add_u32 {sT3}, {sT3}, {sT2}\ns_mul_i32 {sT3}, {sT3}, {PSL}\ns_add_u32 {sPl[d]}, {sT}, {sT3}")
        b("v_lshrrev_b32 v21, 5, v1\nv_lshlrev_b32 v21, 8, v21\nv_and_b32 v22, 15, v1\nv_lshlrev_b32 v22, 4, v22\nv_lshrrev_b32 v23, 1, v1\nv_and_b32 v23, 8, v23\nv_add3_u32 v21, v21, v22, v23")
        b(f"s_mul_i32 {sT2}, {sQH}, 20480\ns_add_u32 {sT2}, {sT2}, {QEX}\nv_add_u32 v22, {sT2}, v{L16}\ns_lshl_b32 {sT3}, {sKH}, 11\ns_add_u32 {sT2}, {sT2}, {sT3}\nv_add_u32 v21, {sT2}, v21")
        b("v_and_b32 v23, 48, v1")

    if opt("early", 0):
        setup_a(); setup_b(); setup_c()
    first_stage(1); first_stage_last(1)
    for r in [L16B, TCH, ZR, OUTV] + VW3 + [VB3[0], VB3[4]]: b(f"v_mov_b32 v{r}, 0")
    b(f"s_or_b32 {sT}, s2, {sW}\ns_cmp_lg_u32 {sT}, 0")
    b("s_cbranch_scc1 L_nonon")
    b(f"s_or_b32 s64, s64, 1\nv_mov_b32 v24, s64\nv_mov_b32 v25, s65")
    b(f"buffer_store_dwordx2 v[24:25], v{ZR}, {SD}, 0 offen sc0 sc1")
    b.label("L_nonon")
    b.vm = []
    b.raw("s_waitcnt vmcnt(9)")
    stamp(b, 1)

    def g_mfmas(buf, dord=(0, 1, 2, 3), c0=False):
        return [f"{MF} {vr(ACC+(d*5+q)*4,4)}, {ar(AF[buf]+4*d,4)}, {ar(BF[buf]+4*q,4)}, {'0' if c0 else vr(ACC+(d*5+q)*4,4)}" for d in dord for q in range(5)]
    def emit(x):
        if callable(x): x()
        else: b(x)
    def g_step(ph, dm, fill, first=False, more=(), bar=True, last=20):
        if bar:
            trace(b); b("s_barrier"); trace(b)
        vs, qs = ((1024, 2048), (4096, 1024))[ph == 3]
        xa, wa = (XA, WA) if ph == 1 else (XA3, WA3)
        more = list(more)
        for u in range(2):
            A = lambda d: [f"ds_read_b64_tr_b16 {ar(AF[u]+4*d+2*v,2)}, v{wa[d]} offset:{u*8192+v*vs}" for v in range(2)]
            rd = A(0) + [f"ds_read_b128 {ar(BF[u]+4*q,4)}, v{xa[u]} offset:{q*qs}" for q in range(5)] + A(1) + A(2) + A(3)
            mf = g_mfmas(u ^ 1, c0=first)
            if first and u == 0:
                for s in rd: b(s)
                rd = []
            for i in range(20 if u == 0 else last):
                if not (first and u == 0): b(mf[i])
                if (u, i) in dm: b(dm[(u, i)])
                elif rd: b(rd.pop(0))
                elif more: b(more.pop(0))
                for s in fill.get((u, i), []): emit(s)
                pad = opt(f"pad{ph}", 0)
                if pad and not first and i < 12 and fill.get((u, i)) and (u, i) not in dm:
                    g_step.cnt += pad
                    if g_step.cnt >= 16:
                        g_step.cnt -= 16; b("s_nop 1")
                if u == 0 and i == 18: need(b, [ar(AF[0], 8), ar(BF[0], 20)])
                if u == 1 and i == 4: need(b, [ar(AF[0], 16)])
            assert not rd
        return more
    g_step.cnt = 0
    va = lambda r: f"v_add_u32 v{r}, {sDelta}, v{r}"
    def ringf(ph):
        xa, wa = (XA, WA) if ph == 1 else (XA3, WA3)
        return {(0, 7): [f"s_add_u32 {sT2}, {sRB}, {STSZ}"], (0, 9): [f"s_cmp_ge_u32 {sT2}, {LDS}"], (0, 10): [f"s_cselect_b32 {sT2}, {ST0}, {sT2}"],
                (0, 11): [f"s_sub_u32 {sDelta}, {sT2}, {sRB}"], (0, 14 if not opt("dg", 0) else 12): [va(xa[0])],
                (1, 2): [va(wa[0])], (1, 7): [va(xa[1])], (1, 10): [va(wa[1])], (1, 12): [va(wa[2])], (1, 15): [va(wa[3])]}
    DG = [(0, 4), (0, 8), (0, 12), (0, 16), (0, 19), (1, 9), (1, 13), (1, 16), (1, 18)]
    if opt("dg", 0) == 1: DG = [(0, 13), (0, 14), (0, 15), (0, 16), (0, 19), (1, 9), (1, 13), (1, 16), (1, 18)]
    def loopf(ph):
        f = ringf(ph)
        sg = "s58" if ph == 1 else "s80"; sgp = "s[58:59]" if ph == 1 else "s[80:81]"
        f.update({(0, 0): [f"s_and_b32 {sT}, {sg}, 15"], (0, 1): [f"s_lshl_b32 {sWO}, {sT}, {19 if ph == 1 else 17}"],
                  (0, 2): [f"s_add_u32 {sMX}, {sDB}, {sW4}"], (0, 3): [f"s_add_u32 m0, {sMX}, 20480"],
                  (0, 5): [f"s_lshl_b32 {sXO}, {sT}, 7" if ph == 1 else f"s_mul_i32 {sXO}, {sT}, 20480"],
                  (0, 6): [f"s_lshr_b64 {sgp}, {sgp}, 4"], (0, 17): [f"s_mov_b32 m0, {sMX}"],
                  (1, 0): [f"s_add_u32 {sMW}, {sDB}, {sM5}"], (1, 1): [f"s_mov_b32 {sDB}, {sRB}"], (1, 3): [f"s_mov_b32 {sRB}, {sT2}"],
                  (1, 5): [f"s_add_u32 {sCnt}, {sCnt}, 1"], (1, 6): [f"s_cmp_lt_u32 {sCnt}, 14"], (1, 8): ["s_cselect_b64 vcc, -1, 0"],
                  (1, 17): [f"s_mov_b32 m0, {sMW}"] + ([f"s_bitcmp1_b32 {sMask}, {sCnt}"] if ph == 1 else [])})
        return f
    EB1 = opt("eb1", 0); EB3 = opt("eb3", 1); BP = opt("bp", 17)
    DGE = [(0, 4), (0, 8), (0, 12), (0, 16), (1, 13), (1, 14), (1, 15), (1, 16), (0, 19)]
    def loope(ph, sync):
        f = loopf(ph)
        f[(0, 15)] = f.pop((1, 0)); f[(0, 17)] = [f"s_mov_b32 m0, {sMW}"]
        f[(1, 9)] = f.pop((1, 10)); f[(1, 11)] = f.pop((1, 12)); f[(1, 10)] = [f"s_mov_b32 m0, {sMX}"]
        w3 = f.pop((1, 15)); f.pop((1, 17))
        if ph == 1: f[(1, 12)] = [f"s_bitcmp1_b32 {sMask}, {sCnt}"]
        f[(1, BP)] = [sync]
        f.setdefault((1, 19 if BP == 18 else 18), []).extend(w3)
        return f
    def auto(ph, gaps, hook=None):
        xa, wa = (XA, WA) if ph == 1 else (XA3, WA3)
        sg = "s58" if ph == 1 else "s80"; sgp = "s[58:59]" if ph == 1 else "s[80:81]"
        rp = [[g for g in range(20*u, 20*u + 20) if g not in gaps][:13] for u in range(2)]
        it = [(f"s_and_b32 {sT}, {sg}, 15", 0, gaps[0]-1), (f"s_lshl_b32 {sWO}, {sT}, {19 if ph == 1 else 17}", 0, gaps[0]-1),
              (f"s_add_u32 m0, {sMX}, 20480", 0, gaps[0]-1),
              (f"s_lshl_b32 {sXO}, {sT}, 7" if ph == 1 else f"s_mul_i32 {sXO}, {sT}, 20480", 0, gaps[4]-1)]
        if ph == 3: it.append((f"s_lshr_b32 {sT3}, {sT}, 1", 0, gaps[4]-2))
        it += [(f"s_lshr_b64 {sgp}, {sgp}, 4", 0, 39), (f"s_add_u32 {sT2}, {sRB}, {STSZ}", 0, 39), (f"s_cmp_ge_u32 {sT2}, {LDS}", 0, 39),
               (f"s_cselect_b32 {sT2}, {ST0}, {sT2}", 0, 39), (f"s_sub_u32 {sDelta}, {sT2}, {sRB}", 0, 39), (va(xa[0]), rp[0][6], 39),
               (f"s_mov_b32 m0, {sMX}", gaps[3]+1, gaps[4]-1)]
        if ph == 3: it += [(f"s_bitcmp0_b32 {sRdy}, {sT3}", 0, gaps[4]-1), (hook, 0, gaps[4]-1)]
        it += [(f"s_add_u32 {sMW}, {sDB}, {sM5}", 0, 39), (f"s_add_u32 {sMX}, {sRB}, {sW4}", 0, 39), (f"s_mov_b32 {sDB}, {sRB}", 0, 39), (va(wa[0]), rp[1][1], 39),
               (f"s_mov_b32 {sRB}, {sT2}", 0, 39), (f"s_add_u32 {sCnt}, {sCnt}, 1", 0, 39), (f"s_cmp_lt_u32 {sCnt}, 14", 0, 39),
               ("s_cselect_b64 vcc, -1, 0", 0, 39), (va(xa[1]), rp[1][6], 39), (va(wa[1]), rp[1][8], 39), (va(wa[2]), rp[1][10], 39)]
        late = [(f"s_mov_b32 m0, {sMW}", gaps[7]+1, gaps[8]-1), (va(wa[3]), rp[1][12], 39)]
        late.sort(key=lambda x: x[1])
        it += late
        if ph == 1: it.append((f"s_bitcmp1_b32 {sMask}, {sCnt}", 0, 39))
        cap = {g: (0 if g in gaps else 1 if g in rp[0] + rp[1] else 3) for g in range(40)}
        cap[18] -= 1; cap[24] -= 1
        fill = {}; g = 0
        for k, (ins, lo, hi) in enumerate(it):
            hi = min([hi] + [x[2] for x in it[k+1:]])
            g = max(g, lo)
            while g < hi and cap[g] <= 0: g += 1
            while g in gaps and g > max(lo, 0) and g >= hi: g -= 1
            assert g <= hi, (ins, g, hi)
            cap[g] -= 1
            fill.setdefault(divmod(g, 20), []).append(ins)
        return [divmod(g, 20) for g in gaps], fill
    AG = [int(x) for x in opt("ag", "0").split(".")]
    def first_fill(ph):
        f = loopf(ph); g = {}
        g[(0, 0)] = sum([f[(0, i)] for i in (0, 1, 2, 3, 5, 6, 7, 9, 10, 11, 14 if not opt('dg', 0) else 12)], []) + f[(1, 0)] + f[(1, 1)] + f[(1, 3)] + f[(1, 5)] + f[(1, 6)] + f[(1, 8)]
        return f, g
    f, g = first_fill(1)
    DG0 = [(1, 13), (1, 14), (1, 15), (1, 16)]
    g.update({(1, 2): f[(1, 2)], (1, 7): f[(1, 7)], (1, 9): f[(1, 10)], (1, 11): f[(1, 12)], (1, 17): f[(1, 15)] + f[(0, 17)]})
    if EB1:
        for i in range((BP + 1) * 4, 80): b(f"v_mov_b32 v{ACC+i}, 0")
        g[(1, 17)] = f[(0, 17)]
        g_step(1, dict(zip(DG0, DW)), g, first=True, last=BP + 1)
        for x in DX[:4]: b(x)
        b(f"s_mov_b32 m0, {sMW}\ns_bitcmp1_b32 {sMask}, {sCnt}"); b(DX[4])
        b("s_branch L_p1end")
        def sync1():
            b.label("L_p1end")
            b("s_cbranch_scc1 L_aux")
            b.wait(lg=0, vm=9)
            b.label("L_auxback")
            trace(b)
            b("s_barrier")
            trace(b)
        b.raw(f".p2align {opt('al', 3)}")
        b.label("L_p1")
        b.lg = []
        i0 = len(b.L)
        g_step(1, dict(zip(DGE, DW + DX)), loope(1, sync1), bar=False)
        b("s_cbranch_vccnz L_p1")
    else:
        g_step(1, dict(zip(DG0 + [(1, 18), (1, 19)], DW + DX[:2])), g, first=True)
        b(DX[2]); b(DX[3]); b(f"s_mov_b32 m0, {sMW}\ns_add_u32 {sMX}, {sDB}, {sW4}\ns_bitcmp1_b32 {sMask}, {sCnt}"); b(DX[4])
        b("s_branch L_p1end")
        b.raw(f".p2align {opt('al', 3)}")
        b.label("L_p1")
        b.lg = []
        i0 = len(b.L)
        if len(AG) == 9:
            dg, ff = auto(1, AG)
            g_step(1, dict(zip(dg, DW + DX)), ff)
        else: g_step(1, dict(zip(DG, DW + DX)), loopf(1))
        b.label("L_p1end")
        b("s_cbranch_scc1 L_aux")
        b.wait(lg=0, vm=9)
        b.label("L_auxback")
        b("s_cbranch_vccnz L_p1")
    print("gemm step estimate", estimate(b.L[i0:], verbose=VERB))
    b.vm = []
    stamp(b, 2)
    KLD = f"buffer_load_dwordx4 v{KVW}, {SK}, {sKVx} offen {KVFL} lds"
    VLD = f"buffer_load_dwordx4 v{KVW}, {SV}, {sKVx} offen {KVFL} lds"
    M0K = f"s_mov_b32 m0, {sKVm}"; M0V = f"s_add_u32 m0, m0, 4096"
    ADV = [f"s_add_u32 {sKVm}, {sKVm}, 8192", f"s_add_u32 {sKVs}, {sKVs}, 4096"]
    XR = f"s_xor_b32 {sKVx}, {sKVs}, {sRot}"
    def pair():
        b(M0K); b(ADV[0]); b(KLD); b(M0V); b(ADV[1]); b(VLD); b(XR)
    NS = opt("ns", 4)
    n14 = opt("n14", 3); n15 = opt("n15", 2); nq = opt("nq", 2); NPI = opt("npi", 2); IENT = opt("ient", 32 - 6 * NPI); NA = opt("na", 6); npro = IENT - NA - NS - n14 - n15 - nq
    assert n14 <= 4 and n15 <= 4 and 0 <= nq <= 3 and 0 <= npro <= 5 and NA + n14 + n15 + nq <= 15 and NA + n14 <= 11
    pro1 = 1 if npro >= 1 and NA + n14 + n15 + nq < 15 else 0; pro2 = (npro - pro1 + 1) // 2; pro3 = npro - pro1 - pro2
    def k_read(i): return f"ds_read_b128 {ar(KF+4*i,4)}, v{KA[i%4]} offset:{(i//4)*8192}"
    def v_read(j): return [f"ds_read_b64_tr_b16 {ar(VF+4*j+2*v,2)}, v{VA[j]} offset:{v*8192}" for v in range(2)]
    def kv_step(n, extra, more=(), bar=True):
        slots = [((0, 3), (0, 4), (0, 6), (0, 8), (0, 12), (0, 13)), ((0, 15), (0, 16), (0, 17), (0, 19), (1, 0), (1, 1)),
                 ((1, 8), (1, 9), (1, 11), (1, 13), (1, 14), (1, 14)), ((1, 15), (1, 16), (1, 17), (1, 18), (1, 19), (1, 19))]
        dm = {}; f = {k: list(v) for k, v in extra.items()}
        for a, k, c, v, e, e2 in ([slots[0], slots[2]] if n == 2 else slots[:n]):
            f.setdefault(a, []).append(M0K); dm[k] = KLD; f.setdefault(c, []).append(M0V); dm[v] = VLD
            f.setdefault(e, []).append(ADV[0]); f.setdefault(c, []).append(ADV[1]); f.setdefault(e2, []).append(XR)
        return g_step(1, dm, f, more=more, bar=bar)
    kv_step(n14, ringf(1), bar=not EB1)
    if opt("sp", 0):
        setup_a()
        if opt("sp", 0) == 1: setup_b()
        setup_c()
    b.wait(lg=0, vm=2*n14)
    if opt("sta", 0) == 21: stamp(b, 15)
    kfirst = [f"ds_read_b128 {ar(K0F+4*d,4)}, v23 offset:{d*64}" for d in range(4)] + [k_read(i) for i in range(8)]
    more = kv_step(n15, {}, kfirst if NA >= 4 else [])
    need(b, [ar(AF[1], 16), ar(BF[1], 20)])
    b("s_barrier")
    if opt("sta", 0) == 20: stamp(b, 15)
    i0 = len(b.L)
    def pack(t):
        a = ACC + t * 4
        for i in range(4): b(f"v_mul_f32 v{a+i}, {sCc}, v{a+i}")
        b(f"v_cvt_pk_bf16_f32 v{a}, v{a}, v{a+1}\nv_cvt_pk_bf16_f32 v{a+1}, v{a+2}, v{a+3}")
    def qwr(t):
        d, q = divmod(t, 5); a = ACC + t * 4
        b(f"ds_write_b64 v21, {vr(a,2)} offset:{q*4096+(d>>1)*1024+(d&1)*512}")
    mf = g_mfmas(1)
    for i in range(25):
        if i < 20: b(mf[i])
        if i == 0: b(f"buffer_load_dwordx2 {vr(NONV,2)}, v{ZR}, {SD}, 0 offen sc0 sc1")
        elif i < 4:
            for k in range(2):
                if more: b(more.pop(0))
        if i in ((4, 14) if nq == 2 else (4, 11, 18)[:nq]): pair()
        if 0 <= i - 5 < 20: qwr(i - 5)
        if 0 <= i - 4 < 20: pack(i - 4)
    assert not more
    b(f"s_add_u32 {sT}, {sW1}, {(IENT-NS)*8192}\nv_add_u32 v21, {sT}, v{L16}")
    if NA >= 4: b.wait(lg=0)
    else: b.wait(lg=0, vm=min(2 * (NA + n14 + n15 + nq - 4), 2 * (n15 + nq)))
    b("s_barrier")
    print("q pack estimate", estimate(b.L[i0:]))
    stamp(b, 3)
    i0 = len(b.L)
    qr = [f"ds_read_b128 {ar(QF+(q*4+d)*4,4)}, v22 offset:{q*4096+d*1024}" for q in range(5) for d in range(4)]
    if NA < 4: qr = kfirst[:4] + qr + kfirst[4:]
    for i in range(10 if NA >= 4 else 13): b(qr.pop(0))
    if pro1: pair()
    sw = [f"ds_write_b128 v21, {ar(STG[i],4)} offset:{i*4096}" for i in range(2*NS)]
    neg = [f"v_sub_f32 v{NM+i}, 0, v{NM+i}" for i in range(20)]
    for t in range(20):
        q, d = divmod(t, 4)
        b(f"{MF} {vr(NM+4*q,4)}, {ar(K0F+4*d,4)}, {ar(QF+t*4,4)}, {'0' if d == 0 else vr(NM+4*q,4)}")
        if qr: b(qr.pop(0))
        if t == 13:
            need(b, [ar(QF, 80)])
            b("s_barrier")
        if t >= 14 and sw: b(sw.pop(0))
        if t >= 8: b(neg.pop(0))
    for i in range(pro2): pair()

    def col(n): return (0, 1, 0, 1, 2)[n % 5]
    def s_mfma(n, i):
        kt, d = i // 4, i % 4; q = n % 5
        dst = vr(SB[col(n)] + 4*kt, 4)
        return f"{MF} {dst}, {ar(KF+4*i,4)}, {ar(QF+(q*4+d)*4,4)}, {vr(NM+4*q,4) if d == 0 else dst}"
    def oreg(q, j): return vr(OK + (q*4+j)*4, 4) if j < 4 else ar(OS + (q*4+j-4)*4, 4)
    def p_mfma(n, j):
        q = n % 5
        if j == 8: return f"{MF} {vr(LA+4*q,4)}, {ar(ONES,4)}, {vr(PB[col(n)],4)}, {vr(LA+4*q,4)}"
        return f"{MF} {oreg(q,j)}, {ar(VF+4*j,4)}, {vr(PB[col(n)],4)}, {oreg(q,j)}"
    def v_exp(n, e): return f"v_exp_f32 v{SB[col(n)]+e}, v{SB[col(n)]+e}"
    def v_cvt(n, c): return f"v_cvt_pk_bf16_f32 v{PB[col(n)]+c}, v{SB[col(n)]+2*c}, v{SB[col(n)]+2*c+1}"
    NU = 40
    def slot(n, mem=None, sal=None, val=None):
        mem = mem or {}; sal = sal or {}; val = val or {}
        for p in range(17):
            if p < 16 and p % 2 == 0:
                if 0 <= n + 1 < NU: b(s_mfma(n + 1, p // 2))
            elif 0 <= n - 1 < NU: b(p_mfma(n - 1, p // 2))
            for s in mem.get(p, []): b(s)
            for s in sal.get(p, []): emit(s)
            if 0 <= n < NU:
                if p % 2 == 0 and p < 16: b(v_exp(n, p // 2))
                if p % 4 == 3: b(v_cvt(n, p // 4))
            for s in val.get(p, []): b(s)
    VR = [x for j in range(8) for x in v_read(j)]
    for i in range(8):
        b(s_mfma(0, i))
        if i >= 4: b(VR[i - 4])
        elif sw: b(sw.pop(0))
        b(neg.pop(0))
    assert not sw and not neg
    for i in range(pro3): pair()
    if opt("sp", 0) == 2: setup_b()
    if CLR == 1:
        for i in range(4): b(f"v_mov_b32 v{60+i}, -1")
        b(f"v_lshrrev_b32 v64, 1, v{L16}")
        for x in clears(60): b(x)
    b.label("L_p2entry")
    for i in range(8):
        b(s_mfma(1, i))
        b(VR[4 + i])
        if i >= 2 and i % 2 == 0: b(v_cvt(0, i // 2 - 1))
        b(v_exp(0, i))
    b(f"s_add_u32 m0, {sW1}, {(IENT%20)*8192-(4096 if NPI == 2 else 0)}\ns_add_u32 {sEv}, {sW1}, {LDS}\ns_mov_b32 {sKVs}, {IENT*4096}\n{XR}\ns_mov_b32 {sKVm}, 0\ns_mov_b32 {sCnt}, 0")
    b(v_cvt(0, 3))
    if TRACE == 2: b.raw("s_mov_b32 s100, 0")
    print("p2 prologue estimate", estimate(b.L[i0:]))
    stamp(b, 4)
    nd = lambda *ops: (lambda: need(b, ops))
    def merge(*ds):
        out = {}
        for d in ds:
            for k, v in d.items(): out.setdefault(k, []).extend(v)
        return out
    def body():
        INC = "s_add_u32 m0, m0, 4096"
        def ex():
            b("s_cbranch_scc1 L_tail")
            body.exit_state = b.state()
        m1 = {}; s1 = {}; m2 = {}; s2 = {}; m3 = {}; s3 = {}; s5 = {}
        WR = [f"s_cmp_eq_u32 m0, {sEv}", f"s_cselect_b32 m0, {sW1}, m0"]
        if NPI == 2:
            G = [int(x) for x in opt("g4", "1.5.9.13").split(".")]
            m4 = {G[0]: [KLD], G[1]: [VLD], G[2]: [KLD], G[3]: [VLD]}
            s4 = merge({G[0]-1: [INC]}, {G[1]-1: [INC]}, {G[1]+1: [XR]}, {G[2]-1: [INC]}, {G[3]-1: [INC]}, {G[3]+1: [XR]}, {G[0]+1: [ADV[1]]}, {G[2]+1: [ADV[1]]})
            v1 = {9: [va(KA[0]), va(KA[1])], 11: [va(KA[2])], 13: [va(KA[3]), va(VA[0])], 15: [va(VA[1])], 16: [va(VA[2]), va(VA[3])]}
            v2 = {3: [va(VA[4])], 11: [va(VA[5])]}
        elif NPI == 4:
            m4 = {1: [KLD], 5: [VLD], 9: [KLD], 13: [VLD]}; m2 = dict(m4)
            def sq(): return {2: [INC], 3: [ADV[1]], 6: [XR], 7: [INC, WR[0]], 8: [WR[1]], 10: [INC], 11: [ADV[1]]}
            s2 = sq(); s4 = sq()
            s3 = {0: [XR], 2: [INC], 8: [WR[0]], 10: [WR[1]]}; s5 = {0: [XR], 2: [INC], 4: [WR[0]], 6: [WR[1]]}
            v1 = {9: [va(KA[0]), va(KA[1])], 11: [va(KA[2])], 13: [va(KA[3]), va(VA[0])], 15: [va(VA[1])], 16: [va(VA[2]), va(VA[3])]}
            v2 = {3: [va(VA[4])], 11: [va(VA[5])]}
        else:
            m1 = {13: [KLD]}; s5 = {2: [INC], 4: [WR[0]], 6: [WR[1]], 0: [XR]}
            m2 = {5: [VLD], 13: [KLD]}; s2 = {0: [ADV[1]], 2: [INC], 6: [XR], 8: [INC], 10: [WR[0]], 12: [WR[1]]}
            m3 = {16: [VLD]}; s3 = {10: [INC], 8: [ADV[1]]}
            m4 = {9: [KLD], 16: [VLD]}; s4 = {0: [XR], 2: [INC], 4: [WR[0]], 6: [WR[1]], 12: [INC], 10: [ADV[1]]}
            v1 = {9: [va(KA[0]), va(KA[1])], 11: [va(KA[2])], 15: [va(KA[3])], 16: [va(VA[0]), va(VA[1])]}
            v2 = {1: [va(VA[2]), va(VA[3])], 3: [va(VA[4])], 11: [va(VA[5])]}
        if TOUCH == 1:
            assert NPI == 2
            m2[5] = [f"buffer_load_dword a{JUNK}, v{TCH}, {SW3}, {sT} offen"]
            s2 = {0: [f"s_cmp_lt_u32 {sCnt}, {TIT}"], 2: [f"s_cselect_b32 {sT}, {sKVm}, 0x40000000"], 6: [f"s_add_u32 {sKVm}, {sKVm}, {TL*128}"]}
        slot(1, merge({1: [VR[12]], 3: [VR[13]], 5: [VR[14]], 7: [VR[15]]}, m1),
             {0: [nd(ar(VF, 12))], 6: [nd(ar(VF, 24))], 12: [nd(ar(VF, 28))], 14: [nd(ar(VF, 32))],
              2: [f"s_add_u32 {sT2}, {sPB}, 32768"], 4: [f"s_cmp_ge_u32 {sT2}, {LDS}"], 8: [f"s_cselect_b32 {sT2}, 0, {sT2}"],
              9: [f"s_sub_u32 {sDelta}, {sT2}, {sPB}"], 10: [f"s_mov_b32 {sPB}, {sT2}"], 15: [f"s_cmp_eq_u32 {sCnt}, 7"],
              16: [ex]}, v1)
        slot(2, m2, merge(s2, {14: [f"s_cmp_eq_u32 {sCnt}, 6"]}), v2)
        b("s_cbranch_scc1 L_p2late")
        trace(b)
        b.raw(f"s_waitcnt vmcnt({min(opt('vb', 8), 2 * (IENT - 6)) if NPI == 4 else 5 if TOUCH == 1 or NPI == 3 else 4})")
        b.label("L_p2bar")
        if TRACE == 2: trace(b)
        b("s_barrier")
        trace(b)
        slot(3, merge({2*i+1: [k_read(i)] for i in range(8)}, m3),
             merge({6: [f"s_add_u32 {sCnt}, {sCnt}, 1"], 16 if NPI != 3 else 14: [nd(ar(KF, 16 if NPI != 3 else 12))]}, s3), {1: [va(VA[6])], 5: [va(VA[7])]})
        slot(4, m4, merge(s4, {3 if NPI != 4 else 4: [nd(ar(KF, 32))]}))
        slot(5, {1: VR[0:2], 3: [VR[2]], 5: [VR[3]], 7: [VR[4]], 9: VR[5:7], 11: [VR[7]], 13: VR[8:10], 15: [VR[10]], 16: [VR[11]]}, s5)
        b("s_branch L_p2")
        b.vm = []
    b.vm = []
    save = b.L; b.L = []
    body(); st1 = b.state(); t1 = b.L
    b.L = []; body(); st2 = b.state(); t2 = b.L
    assert st1[0] == st2[0]
    if not STAMPS: assert t1 == t2, "loop not steady"
    print("p2 body estimate", estimate(t2, verbose=VERB))
    b.L = save
    b.raw(f".p2align {opt('al', 3)}")
    b.label("L_p2")
    b.L += t2
    b.label("L_p2late")
    if TRACE == 2: trace(b)
    b.raw(f"s_waitcnt vmcnt({min(opt('vb', 8), 2 * (IENT - 6)) if NPI == 4 else 3 if NPI == 3 else 1 if TOUCH == 1 else 0})")
    WE = opt("we", 0)
    if WE:
        assert NPI == 2
        b(f"s_add_u32 m0, {sW4}, {S3[0]+20480}\ns_lshl_b32 {sWO}, {sHl}, 18")
        for x in DW3: b(x)
        b(f"s_add_u32 m0, {sW4}, {S3[1]+20480}\ns_add_u32 {sWO}, {sWO}, 0x20000")
        for x in DW3: b(x)
        b(f"s_mov_b32 m0, {sW1}")
    if TOUCH in (7, 8): b(f"buffer_load_dword a{JUNK}, v{TCH}, {SW3}, 0 offen")
    b("s_branch L_p2bar")
    b.label("L_tail")
    b.set_state(body.exit_state)
    b.vm = []
    b(f"s_mul_i32 {sT}, {sW}, 20480\nv_add_u32 v21, {sT}, v{L16}")
    b.raw("s_waitcnt vmcnt(0)")
    b("s_barrier")
    stamp(b, 5)
    i0 = len(b.L)
    EB = 65536; EXL = 81920 - EB; EXF = 87040 - EB
    LW, LO, LP, FW, FR = 3, 4, 5, 6, 7
    wr = lambda q: [f"ds_write_b128 v21, {ar(OS+(q*4+j)*4,4)} offset:{(q*4+j)*1024}" for j in range(4)]
    lw = lambda q: (lambda: b(f"ds_write_b32 v{LW}, v{LA+4*q} offset:{EXL+q*256}", f"L{q}"))
    RB = [64, 80, 64, 80, 24]
    rd = lambda q: [f"ds_read_b128 {vr(RB[q]+4*j,4)}, v22 offset:{(q*4+j)*1024}" for j in range(4)]
    LR = NM
    lr = lambda q: [f"ds_read_b32 v{LR+2*q}, v{LO} offset:{EXL+q*256}", f"ds_read_b32 v{LR+2*q+1}, v{LP} offset:{EXL+q*256}"]
    linv = lambda q: [f"v_add_f32 v{LR+2*q}, v{LR+2*q}, v{LR+2*q+1}", f"v_rcp_f32 v{LR+2*q}, v{LR+2*q}"]
    def nval(q, pr, packed):
        o = OK + (q*4+2*pr)*4; r = RB[q] + 8*pr
        if packed:
            out = [f"v_pk_add_f32 {vr(o+i,2)}, {vr(o+i,2)}, {vr(r+i,2)}" for i in range(0, 8, 2)]
            out += [f"v_pk_mul_f32 {vr(o+i,2)}, {vr(o+i,2)}, {vr(LR+2*q,2)} op_sel_hi:[1,0]" for i in range(0, 8, 2)]
        else:
            out = [f"v_add_f32 v{o+i}, v{o+i}, v{r+i}" for i in range(8)] + [f"v_mul_f32 v{o+i}, v{LR+2*q}, v{o+i}" for i in range(8)]
        return out + [f"v_cvt_pk_bf16_f32 v{o+i}, v{o+2*i}, v{o+2*i+1}" for i in range(4)]
    def nmem(q, pr):
        o = OK + (q*4+2*pr)*4
        vv, off = (L16, q * 1024) if q < 4 else (L16B, 0)
        return [f"buffer_store_dwordx4 {vr(o,4)}, v{vv}, {SO}, {sO1 if pr else sO0} offen offset:{off} {H1S}",
                f"ds_write_b128 v2, {vr(o,4)} offset:{pr*10240+q*1024}"]
    def chunks(lst, pos):
        n = -(-len(lst) // len(pos))
        return {p: lst[i*n:(i+1)*n] for i, p in enumerate(pos)}
    def meet(q):
        b.wait_tag(lgtag=f"L{q}")
        b("s_barrier")
    w = wr(0)
    slot(37, merge({5 + 2*i: [w[i]] for i in range(4)}, {} if WE else {1: DW3[0:2], 3: DW3[2:4], 13: DW3[0:2], 16: DW3[2:4]}),
         {0: [] if WE else [f"s_add_u32 m0, {sW4}, {S3[0]+20480}", f"s_lshl_b32 {sWO}, {sHl}, 18"],
          11: [] if WE else [f"s_add_u32 m0, {sW4}, {S3[1]+20480}", f"s_add_u32 {sWO}, {sWO}, 0x20000"],
          2: [f"s_xor_b32 {sT2}, {sW}, 2"], 3: [f"s_mul_i32 {sT}, {sT2}, 20480"], 4: [f"s_mul_i32 {sT3}, {sW}, 1280"],
          6: [f"s_add_u32 {sT3}, {sT3}, {EB}"], 8: [f"s_mul_i32 {sT2}, {sT2}, 1280"], 10: [f"s_add_u32 {sT2}, {sT2}, {EB}"],
          12: [f"s_mul_i32 {sMX}, {sKH}, {STSZ}"], 14: [f"s_lshl_b32 {sMW}, {sW}, 2"], 15: [lw(0)]},
         {3: ["v_lshlrev_b32 v23, 2, v1"], 5: [f"v_add_u32 v22, {sT}, v{L16}"], 9: [f"v_add_u32 v{LW}, {sT3}, v23"]})
    b(f"v_and_b32 v23, 60, v23\nv_add_u32 v{LO}, {sT3}, v23\nv_add_u32 v{LP}, {sT2}, v23\nv_add_u32 v2, {sMX}, v{XA3[0]}")
    meet(0)
    if opt("sta", 0) == 10: stamp(b, 15)
    r = lr(0) + rd(0); w = wr(1)
    slot(38, merge({1: r[0:2], 3: r[2:4], 5: r[4:6], 7: [w[0]], 9: [w[1]], 11: [w[2]], 13: [w[3]], 16: nmem(0, 0)}),
         {15: [lw(1)], 0: [f"s_add_u32 {sMW}, {sMW}, {EB}"]},
         merge({7: linv(0)}, chunks(nval(0, 0, False), [9, 11, 13, 15]), {16: nval(0, 1, False)}, {1: [f"v_mov_b32 v{FW}, {sMW}"], 5: [f"v_mov_b32 v{FR}, {EB}"]}))
    meet(1)
    if opt("sta", 0) == 11: stamp(b, 15)
    r = lr(1) + rd(1); w = wr(2)
    slot(39, merge({1: r[0:2] + nmem(0, 1)[:1], 3: r[2:4], 5: r[4:6], 7: [w[0]], 9: [w[1]], 11: [w[2]], 13: [w[3]], 16: nmem(1, 0)}, {15: nmem(0, 1)[1:]}),
         {15: [lw(2)]},
         merge({7: linv(1)}, chunks(nval(1, 0, False), [9, 11, 13, 15]), {16: nval(1, 1, True)}))
    meet(2)
    if opt("sta", 0) == 12: stamp(b, 15)
    r = lr(2) + rd(2); w = wr(3)
    slot(40, merge({1: r[0:2] + nmem(1, 1)[:1], 3: r[2:4], 5: r[4:6], 7: [w[0]], 9: [w[1]], 11: [w[2]], 13: [w[3]]},
                   {15: nmem(1, 1)[1:]}),
         {15: [lw(3)]}, {13: linv(2)})
    for x in nval(2, 0, True): b(x)
    for x in wr(4): b(x)
    lw(4)()
    b(nmem(2, 0)[0])
    b(f"v_add_f32 v8, v{LA}, v{LA+4}\nv_add_f32 v9, v{LA+8}, v{LA+12}\nv_add_f32 v8, v8, v{LA+16}\nv_add_f32 v8, v8, v9")
    thr = f32bits(2.0 ** 40) if not FORCE_SLOW else f32bits(-1.0)
    b(f"v_cmp_nge_f32 vcc, {thr}, v8")
    b(f"s_cmp_lg_u64 vcc, 0\ns_cselect_b32 {sT}, 1, 0\nv_mov_b32 v8, {sT}")
    b(f"ds_write_b32 v{FW}, v8 offset:{EXF}", "L5")
    for x in nval(2, 1, True): b(x)
    b(nmem(2, 1)[0])
    meet(5)
    if opt("sta", 0) == 13: stamp(b, 15)
    b(f"ds_read_b128 {vr(NM+12,4)}, v{FR} offset:{EXF}")
    for x in lr(3) + lr(4) + rd(3) + rd(4): b(x)
    b(nmem(2, 0)[1]); b(nmem(2, 1)[1])
    b(f"v_or_b32 v{NM+12}, v{NM+12}, v{NM+13}\nv_or3_b32 v{NM+12}, v{NM+12}, v{NM+14}, v{NM+15}")
    for x in linv(3) + linv(4): b(x)
    b(f"v_readfirstlane_b32 {sT}, v{NM+12}")
    b(f"s_andn2_b32 {sT}, {sT}, {sPass}\ns_cmp_lg_u32 {sT}, 0")
    b("s_cbranch_scc1 L_slow")
    if not opt("sta", 0): stamp(b, 15)
    for q in (3, 4):
        for pr in range(2):
            for x in nval(q, pr, True) + nmem(q, pr): b(x)
    b(f"s_mov_b32 {sRB}, {S3[0]}\ns_mov_b32 {sCnt}, 0\ns_mov_b32 {sDB}, {ST0}\ns_mov_b32 {sRdy}, 0\ns_mov_b32 {sEv}, {sW}")
    b(f"v_and_b32 v21, 7, v1\nv_lshlrev_b32 v21, 8, v21\nv_and_b32 v4, 3, v1\nv_mul_u32_u24 v4, {FS1 if SENT else 256}, v4\nv_lshrrev_b32 v5, 1, v{L16}")
    b.wait(lg=0, vm=10)
    print("tail estimate", estimate(b.L[i0:]))
    stamp(b, 6)
    b.vm = []
    if TRACE == 3: b.raw("s_mov_b32 s100, 0")
    f, g = first_fill(3)
    g[(0, 0)] = g[(0, 0)] + [f"s_lshr_b32 {sT3}, {sT}, 1"]
    g.update({(1, 2): f[(1, 2)], (1, 7): f[(1, 7)], (1, 9): f[(1, 10)], (1, 11): f[(1, 12)], (1, 13): f[(1, 15)]})
    LF = opt("lf", 1); LFL = opt("lfl", "sc1").replace("+", " ")
    FLG = f"buffer_load_dwordx2 v[22:23], v21, {SO}, {sF1} offen {H1L}"
    FLD = f"buffer_load_dwordx2 v[22:23], v21, {SO}, {sF1} offen offset:2048 {LFL}" if LF else FLG
    EARLY = opt("ep", 1)
    dm = dict(zip([(0, 1), (0, 2), (0, 3), (0, 4)], DW3))
    if EARLY: dm[(1, opt("epos", 19))] = FLD
    g_step(3, dm, g, first=True)
    b(f"s_mov_b32 {sSpin}, 0")
    b.raw(f"s_waitcnt vmcnt({4 + EARLY}) lgkmcnt(0)")
    b.lg = []
    b("s_branch L_non1")
    b.label("L_non")
    b.wait(vm=0)
    b.label("L_non1")
    b(f"v_readfirstlane_b32 s64, v{NONV}\nv_readfirstlane_b32 s65, v{NONV+1}")
    b("s_cmp_lg_u32 s64, 0")
    b("s_cbranch_scc1 L_nonok")
    b(f"buffer_load_dwordx2 {vr(NONV,2)}, v{ZR}, {SD}, 0 offen sc0 sc1")
    b(f"s_add_u32 {sSpin}, {sSpin}, 1\ns_cmp_lt_u32 {sSpin}, {SPIN}")
    b("s_cbranch_scc1 L_non")
    b.label("L_nonok")
    b.vm = []
    stamp(b, 7)
    b("s_barrier")
    b(f"s_cmp_lg_u32 {sW}, 0")
    b("s_cbranch_scc1 L_pubd")
    b(f"s_lshl_b32 {sT}, {sHl}, 8\ns_add_u32 {sT}, {sT}, {sF1}")
    b("s_mov_b64 exec, 1")
    if LF: b(f"buffer_store_dwordx2 {vr(NONV,2)}, v{ZR}, {SO}, {sT} offen offset:2048")
    if not LF or LF == 1: b(f"buffer_store_dwordx2 {vr(NONV,2)}, v{ZR}, {SO}, {sT} offen {H1F}")
    b("s_mov_b64 exec, -1")
    if EARLY:
        b.raw(f"s_waitcnt vmcnt({2 if LF == 1 else 1})")
        b("s_branch L_pubd1")
    b.label("L_pubd")
    if LF == 2:
        b(f"s_cmp_lg_u32 {sW}, 3")
        b("s_cbranch_scc1 L_pubd2")
        b(f"s_lshl_b32 {sT}, {sHl}, 8\ns_add_u32 {sT}, {sT}, {sF1}")
        b("s_mov_b64 exec, 1")
        b(f"buffer_store_dwordx2 {vr(NONV,2)}, v{ZR}, {SO}, {sT} offen {H1F}")
        b("s_mov_b64 exec, -1")
        b.raw("s_waitcnt vmcnt(1)")
        b("s_branch L_pubd1")
        b.label("L_pubd2")
    ALL = opt("all", 0)
    def test(back):
        b.raw(f"v_cmp_eq_u64 s[92:93], {sNon}, v[22:23]")
        b(f"s_or_b32 {sRdy}, {sRdy}, s92\ns_bitcmp1_b32 {sRdy}, {sT3}")
        b(f"s_cbranch_scc1 {back}")
    if EARLY:
        b.raw("s_waitcnt vmcnt(0)")
        b.label("L_pubd1")
        test("L_poll0ok")
    def gflag(lab):
        b(f"s_cmp_lg_u32 {sEv}, 0")
        b(f"s_cbranch_scc1 {lab}")
        b(f"s_lshl_b32 {sEv}, {sHl}, 8\ns_add_u32 {sEv}, {sEv}, {sF1}")
        b("s_mov_b64 exec, 1")
        b.raw(f"buffer_store_dwordx2 {vr(NONV,2)}, v{ZR}, {SO}, {sEv} offen {H1F}")
        b("s_mov_b64 exec, -1")
        b.label(lab)
    def poll1(lab, back):
        b(f"s_mov_b32 {sSpin}, 0")
        b.label(lab)
        for k in range(opt("nl", 6) if LF else 0):
            b.raw(FLD)
            b.raw("s_waitcnt vmcnt(0)")
            test(back)
            if opt("lsl", 2): b(f"s_sleep {opt('lsl', 2)}")
        if LF == 3 and lab == "L_poll0": gflag("L_gf0")
        b.raw(FLG)
        b.raw("s_waitcnt vmcnt(0)")
        test(back)
        if SLEEP and not LF: b(f"s_sleep {SLEEP}")
        b(f"s_add_u32 {sSpin}, {sSpin}, 1\ns_cmp_lt_u32 {sSpin}, {SPIN}")
        b(f"s_cbranch_scc1 {lab}")
    poll1("L_poll0", "L_poll0ok")
    b.label("L_poll0ok")
    stamp(b, 8)
    if LF == 3: gflag("L_gf1")
    b(f"s_mov_b32 m0, {sMX}\ns_and_b32 {sT}, s80, 15")
    for x in DX3[:4]: b(x)
    b(f"s_mov_b32 m0, {sMW}\ns_lshl_b32 {sWO}, {sT}, 17")
    b(DX3[4])
    if opt("peel1", 0):
        assert SIG3.startswith(("pair", "g40"))
        b(f"s_add_u32 m0, {sW4}, {S3[0]}\ns_mul_i32 {sXO}, {sT}, 20480")
        f1 = ringf(3)
        f1.update({(0, 6): ["s_lshr_b64 s[80:81], s[80:81], 4"], (0, 12): [f"s_add_u32 m0, {sM5}, {S3[0]}"], (0, 15): [f"s_add_u32 m0, {sW4}, {S3[0]+20480}"],
                   (1, 1): [f"s_mov_b32 {sDB}, {sRB}"], (1, 3): [f"s_mov_b32 {sRB}, {sT2}"], (1, 5): [f"s_add_u32 {sCnt}, {sCnt}, 1"]})
        f1[(0, 18)] = f1.pop((0, 14))
        dm = dict(zip([(0, 0), (0, 2), (0, 4), (0, 8), (0, 13), (0, 16), (0, 19), (1, 13), (1, 16)], DX3 + DW3))
        dm[(1, 18)] = FLD
        b.vm = []
        g_step(3, dm, f1, bar=False)
        b.raw("s_waitcnt vmcnt(10) lgkmcnt(0)")
        b.lg = []
    else:
        b.wait(lg=0)
    b.vm = []
    def sync3():
        b.wait(lg=0, vm=9)
        trace(b); b("s_barrier"); trace(b)
    f3 = loope(3, sync3) if EB3 else loopf(3)
    f3[(0, 13)] = [f"s_lshr_b32 {sT3}, {sT}, 1"]
    def chk():
        b("s_cbranch_scc1 L_wait1")
        b.label("L_wait1back")
    f3[(0, 17)] = f3[(0, 17)] + [f"s_bitcmp0_b32 {sRdy}, {sT3}", chk]
    if EB3 and opt("peel1", 0): b("s_barrier")
    b(f"s_add_u32 {sMX}, {sDB}, {sW4}")
    b.raw(f".p2align {opt('al', 3)}")
    b.label("L_p3")
    i0 = len(b.L)
    if len(AG) == 9:
        dg, ff = auto(3, AG, chk)
        g_step(3, dict(zip(dg, DW3 + DX3)), ff)
    else: g_step(3, dict(zip(DGE if EB3 else DG, DW3 + DX3)), f3, bar=not EB3)
    if not EB3: b.wait(lg=0, vm=9)
    b("s_cbranch_vccnz L_p3")
    print("p3 step estimate", estimate(b.L[i0:], verbose=VERB))
    b.vm = []
    stamp(b, 9)
    PFL = f"buffer_load_dwordx2 v[6:7], v4, {SO}, {sF2} offen {HLD}"
    AFX = lambda g: (AF[1], 160, 0, 16, 32)[g]
    BFX = lambda g: (BF[1], 176, 48, 196, 216)[g]
    def mm(g, d, q): return f"{MF} {vr(ACC+(d*5+q)*4,4)}, {ar(AFX(g)+4*d,4)}, {ar(BFX(g)+4*q,4)}, {vr(ACC+(d*5+q)*4,4)}"
    rf = ringf(3)
    for st in range(2):
        if st == 1 or not EB3:
            trace(b); b("s_barrier"); trace(b)
        pre = ([rf[(0, 7)], rf[(0, 9)], rf[(0, 10)], rf[(0, 11)]] if st == 0 else [[f"s_lshl_b32 {sT}, {sKq}, 8"], [f"s_add_u32 {sT}, {sT}, {sF2}"]])
        for u in range(2):
            g = 1 + 2*st + u
            A = lambda d: [f"ds_read_b64_tr_b16 {ar(AFX(g)+4*d+2*v,2)}, v{WA3[d]} offset:{u*8192+v*4096}" for v in range(2)]
            rdl = A(1) + [f"ds_read_b128 {ar(BFX(g)+4*q,4)}, v{XA3[u]} offset:{q*1024}" for q in range(5)] + A(2) + A(3) + A(0)
            upd = {} if st == 1 else ({8: XA3[0]} if u == 0 else {2: WA3[1], 7: XA3[1], 9: WA3[2], 11: WA3[3], 13: WA3[0]})
            for i in range(15):
                b(mm(g - 1, 1 + i // 5, i % 5))
                if rdl: b(rdl.pop(0))
                if pre:
                    for x in pre.pop(0): b(x)
                if i in upd: b(va(upd[i]))
                if i == 14 and not (st == 0 and u == 1): need(b, [ar(AFX(g)+4, 4), ar(BFX(g), 20)])
                if i == 3 and g > 1: need(b, [ar(AFX(g - 1), 16)])
        if st == 0: b.wait(lg=0, vm=0)
    stamp(b, 10)
    DF = opt("defer", 25)
    kept = [mm(g, 0, q) for g in range(5) for q in range(5)]
    for x in kept[:25 - DF]: b(x)
    mf = [mm(4, 1 + i // 5, i % 5) for i in range(15)] + kept[25 - DF:]
    PK = 104; RK = 144
    for i in range(40):
        if i < len(mf): b(mf[i])
        t = i - 6
        if 0 <= t < 15:
            d, q = 1 + t // 5, t % 5; pk = PK + (d-1)*12
            if q in (1, 3): b(f"buffer_store_dwordx4 {vr(pk+2*(q-1),4)}, v{L16}, {SO}, {sPs[d]} offen offset:{(q//2)*1024} {HST}")
            if q == 4: b(f"buffer_store_dwordx2 {vr(pk+8,2)}, v5, {SO}, {sPs[d]} offen offset:2048 {HST}")
        t = i - 5
        if 0 <= t < 15:
            d, q = 1 + t // 5, t % 5; pk = PK + (d-1)*12 + 2*q; a = ACC + (d*5+q)*4
            b(f"v_cvt_pk_bf16_f32 v{pk}, v{a}, v{a+1}\nv_cvt_pk_bf16_f32 v{pk+1}, v{a+2}, v{a+3}")
    if not SENT:
        b.wait(vm=0)
        stamp(b, 11)
        if not F2W:
            b("s_barrier")
            b(f"s_cmp_lg_u32 {sW}, 0")
            b("s_cbranch_scc1 L_wait2")
        b("s_mov_b64 exec, 1")
        b(f"buffer_store_dwordx2 {vr(NONV,2)}, v{ZR}, {SO}, {sT} offen {HST}")
        b("s_mov_b64 exec, -1")
        b.label("L_wait2")
        b(f"s_mov_b32 {sSpin}, 0")
        P2 = opt("pp2", 1)
        regs = ["v[6:7]", "v[8:9]", "v[10:11]"][:P2]
        ld = lambda r: b.raw(f"buffer_load_dwordx2 {r}, v4, {SO}, {sF2} offen {HLD}")
        for r in regs[1:]:
            ld(r); b(f"s_sleep {opt('psl', 3)}")
        b.label("L_poll3")
        for k in range(P2):
            ld(regs[k])
            b.raw(f"s_waitcnt vmcnt({P2-1})")
            b.raw(f"v_cmp_ne_u64 vcc, {sNon}, {regs[(k + 1) % P2]}")
            b("s_cbranch_vccz L_wait2back")
            if P2 == 1 and opt('sleep2', 4): b(f"s_sleep {opt('sleep2', 4)}")
        b(f"s_add_u32 {sSpin}, {sSpin}, 1\ns_cmp_lt_u32 {sSpin}, {SPIN}")
        b("s_cbranch_scc1 L_poll3")
        b.label("L_wait2back")
        stamp(b, 12)
    else: stamp(b, 11)
    b(f"s_mov_b32 {sSpin}, 0")
    if opt("pre2", 0): b(f"s_sleep {opt('pre2', 0)}")
    b.label("L_poll2")
    b.vm = []
    for h in range(3):
        for d in (1, 2, 3):
            pk = RK + (d-1)*12
            if h < 2: b(f"buffer_load_dwordx4 {vr(pk+4*h,4)}, v{L16}, {SO}, {sPl[d]} offen offset:{h*1024} {HLD}")
            else: b(f"buffer_load_dwordx2 {vr(pk+8,2)}, v5, {SO}, {sPl[d]} offen offset:2048 {HLD}")
    if SENT:
        rr = [RK + (d-1)*12 + 4*h + i for h in range(3) for d in (1, 2, 3) for i in range(4 if h < 2 else 2)]
        b(f"v_max_u32 v8, v{rr[0]}, v{rr[1]}")
        for i in range(2, 30, 2): b(f"v_max3_u32 v8, v8, v{rr[i]}, v{rr[i+1]}")
        b("v_cmp_eq_u32 vcc, -1, v8")
        b("s_cbranch_vccz L_poll2ok")
        if SLEEP: b(f"s_sleep {opt('sleep2', 4)}")
        b(f"s_add_u32 {sSpin}, {sSpin}, 1\ns_cmp_lt_u32 {sSpin}, {SPIN}")
        b("s_cbranch_scc1 L_poll2")
        b.label("L_poll2ok")
        stamp(b, 12)
    OFL = opt("ofl", "").replace("+", " ")
    for q in range(5):
        a = ACC + q * 4
        for d in (1, 2, 3):
            pk = RK + (d-1)*12 + 2*q
            for i in range(2):
                b(f"v_lshlrev_b32 v{a+20*d+2*i}, 16, v{pk+i}\nv_and_b32 v{a+20*d+2*i+1}, 0xffff0000, v{pk+i}")
        for i in (0, 2): b(f"v_pk_add_f32 {vr(a+i,2)}, {vr(a+i,2)}, {vr(a+20+i,2)}")
        for i in (0, 2): b(f"v_pk_add_f32 {vr(a+40+i,2)}, {vr(a+40+i,2)}, {vr(a+60+i,2)}")
        for i in (0, 2): b(f"v_pk_add_f32 {vr(a+i,2)}, {vr(a+i,2)}, {vr(a+40+i,2)}")
        b(f"v_cvt_pk_bf16_f32 v{a}, v{a}, v{a+1}\nv_cvt_pk_bf16_f32 v{a+1}, v{a+2}, v{a+3}")
        b(f"buffer_store_dwordx2 {vr(a,2)}, v{OUTV}, {SOUT}, {sOut} offen {OFL}")
        if q < 4: b(f"s_add_u32 {sOut}, {sOut}, 32768")
    if STAMPS:
        stamp(b, 13)
        if not opt("gap", 0): b.wait(vm=0)
        stamp(b, 14)
        b(f"s_cmp_lg_u32 {sW}, 0")
        b("s_cbranch_scc1 L_nost")
        b(f"v_lshlrev_b32 v3, 2, v1\ns_lshl_b32 {sT}, s2, 7\ns_add_u32 {sT}, {sT}, {STAMP_OFF}\ns_mov_b32 exec_hi, 0")
        b(f"buffer_store_dword v254, v3, {SO}, {sT} offen")
        b("s_mov_b64 exec, -1")
        b.label("L_nost")
        b(f"v_lshlrev_b32 v3, 2, v1\ns_lshl_b32 {sT}, s2, 2\ns_add_u32 {sT}, {sT}, {sW}\ns_lshl_b32 {sT}, {sT}, 7\ns_add_u32 {sT}, {sT}, {STAMP_OFF + (2 << 20)}\ns_mov_b32 exec_hi, 0")
        b(f"buffer_store_dword v254, v3, {SO}, {sT} offen")
        b("s_mov_b64 exec, -1")
        if TRACE:
            b(f"s_lshl_b32 {sT}, s2, 2\ns_add_u32 {sT}, {sT}, {sW}\ns_lshl_b32 {sT}, {sT}, 9\ns_add_u32 {sT}, {sT}, {STAMP_OFF + (1 << 20)}")
            b(f"buffer_store_dword v0, v3, {SO}, {sT} offen")
    b.label("L_end")
    b("s_endpgm")

    b.label("L_wait1")
    b.lg = []; b.vm = []
    if opt("peel1", 0):
        b.raw("s_waitcnt vmcnt(4)")
        test("L_wait1back")
    poll1("L_poll1", "L_wait1back")
    b("s_branch L_wait1back")
    if SENT:
        b.label("L_wait2")
        b(f"s_mov_b32 {sSpin}, 0")
        b.label("L_poll3")
        b(PFL)
        b.wait(vm=0)
        b(f"v_cmp_ne_u64 vcc, {sNon}, v[6:7]")
        b("s_cbranch_vccz L_wait2back")
        b(f"s_sleep 4\ns_add_u32 {sSpin}, {sSpin}, 1\ns_cmp_lt_u32 {sSpin}, {SPIN}")
        b("s_cbranch_scc1 L_poll3")
        b("s_branch L_wait2back")

    EV = [[int(x) for x in e.split(".")] for e in opt("ev", "3.0,3.0,0.4").split(",")]
    assert sum(e[0] for e in EV) == NA and sum(e[1] for e in EV) == NS
    b.label("L_aux")
    rp = 0
    for k, (nd_, nr_) in enumerate(EV):
        b.lg = []; b.vm = []
        if k + 1 < len(EV):
            b(f"s_cmp_lg_u32 {sEv}, {k}")
            b(f"s_cbranch_scc1 L_aux{k+1}")
        for i in range(nd_): pair()
        for i in range(nr_):
            b(f"s_xor_b32 {sT}, {sRot}, {(IENT-NS+rp)*4096}")
            b(f"buffer_load_dwordx4 {ar(STG[2*rp],4)}, v{KVW}, {SK}, {sT} offen {KVFL}")
            b(f"buffer_load_dwordx4 {ar(STG[2*rp+1],4)}, v{KVW}, {SV}, {sT} offen {KVFL}")
            rp += 1
        b(f"s_add_u32 {sEv}, {sEv}, 1")
        if not opt("early", 0) and not opt("sp", 0): (setup_a, setup_b, setup_c)[k]()
        b.wait(lg=0, vm=9 + 2*(nd_ + nr_))
        b("s_branch L_auxback")
        if k + 1 < len(EV): b.label(f"L_aux{k+1}")

    b.label("L_slow")
    b.wait(lg=0, vm=0)
    b("s_barrier")
    b(f"s_mov_b32 {sPass}, 1")
    b("v_and_b32 v21, 15, v1\nv_lshlrev_b32 v21, 8, v21\nv_lshrrev_b32 v22, 4, v1\nv_lshlrev_b32 v22, 4, v22\nv_add_u32 v21, v21, v22")
    for q in range(5): b(f"v_mov_b32 v{72+q}, 0xff800000")
    b(f"s_mov_b32 {sCnt}, 0")
    b.label("L_slowloop")
    for d in range(4): b(f"buffer_load_dwordx4 {vr(24+4*d,4)}, v21, {SK}, {sCnt} offen offset:{d*64}")
    b.wait(vm=0)
    for q in range(5):
        for d in range(4):
            b(f"{MF} {vr(80+4*q,4)}, {vr(24+4*d,4)}, {ar(QF+(q*4+d)*4,4)}, {'0' if d == 0 else vr(80+4*q,4)}")
    for q in range(5):
        b(f"v_max3_f32 v{72+q}, v{72+q}, v{80+4*q}, v{81+4*q}\nv_max3_f32 v{72+q}, v{72+q}, v{82+4*q}, v{83+4*q}")
    b(f"s_add_u32 {sCnt}, {sCnt}, 4096\ns_cmp_lt_u32 {sCnt}, 131072")
    b("s_cbranch_scc1 L_slowloop")
    for sw_ in ("v_permlane16_swap_b32", "v_permlane32_swap_b32"):
        for q in range(5): b(f"v_mov_b32 v{64+q}, v{72+q}")
        for q in range(5): b(f"{sw_} v{72+q}, v{64+q}")
        for q in range(5): b(f"v_max_f32 v{72+q}, v{72+q}, v{64+q}")
    for q in range(5):
        for i in range(4): b(f"v_sub_f32 v{NM+4*q+i}, 0, v{72+q}")
    p2_addr()
    b(f"s_mov_b32 {sKVm}, {sW1}\ns_mov_b32 {sKVs}, 0\ns_mov_b32 {sKVx}, {sRot}")
    for z in ZEROS: b(z)
    b.label("L_slowkv")
    pair()
    b(f"s_cmp_lt_u32 {sKVs}, {IENT * 4096}")
    b("s_cbranch_scc1 L_slowkv")
    b.wait(vm=0)
    b("s_barrier")
    for i in range(8): b(k_read(i))
    for i in range(4): b(VR[i])
    for i in range(8): b(s_mfma(0, i))
    b("s_nop 7")
    b.label("L_last")
    b("s_branch L_p2entry")
    return b.L

def gen_probe(spec):
    i, ri, j, rj = spec.split(",")
    b = B()
    b.raw(".p2align 8"); b.raw(".type mha_probe_kernel,@function"); b.label("mha_probe_kernel")
    b("s_cmp_ge_u32 s2, 1"); b("s_cbranch_scc1 L3_end")
    b.raw("s_memrealtime s[16:17]")
    b.raw("s_load_dwordx2 s[4:5], s[0:1], 56"); b.raw("s_waitcnt lgkmcnt(0)")
    b("s_mov_b32 s6, 268435456\ns_mov_b32 s7, 0x20000")
    b(f"v_mul_u32_u24 v1, 512, v0\nv_lshrrev_b32 v4, 1, v0\nv_and_b32 v4, 3, v4\nv_lshlrev_b32 v4, 7, v4\nv_add_u32 v1, v1, v4\ns_mov_b32 s8, {STAMP_OFF}")
    b(f"buffer_load_dword v2, v1, s[4:7], s8 offen offset:{8*int(i)}")
    b(f"buffer_load_dword v3, v1, s[4:7], s8 offen offset:{8*int(j)}")
    b.wait(vm=0)
    b("v_readlane_b32 s9, v2, 0")
    b("s_sub_u32 s9, s9, 100000")
    b("v_subrev_u32 v2, s9, v2\nv_subrev_u32 v3, s9, v3")
    for v, r, acc in ((2, ri, "s10"), (3, rj, "s11")):
        b(f"s_mov_b32 {acc}, {'-1' if r == 'min' else '0'}")
        for l in range(64):
            b(f"v_readlane_b32 s12, v{v}, {l}")
            b(f"{dict(min='s_min_u32', max='s_max_u32', avg='s_add_u32')[r]} {acc}, {acc}, s12")
        if r == 'avg': b(f"s_lshr_b32 {acc}, {acc}, 3")
        else: b(f"s_lshl_b32 {acc}, {acc}, 3")
    if opt("abs", 0):
        b("s_lshr_b32 s10, s10, 3\ns_add_u32 s12, s10, s9\ns_mov_b32 s10, 10000")
        if opt("abs", 0) == 2:
            b(f"s_mov_b32 s8, {STAMP_OFF + (3 << 20)}\nv_mov_b32 v1, 0\nbuffer_load_dword v2, v1, s[4:7], s8 offen")
            b.wait(vm=0)
            b("v_readfirstlane_b32 s12, v2")
    else:
        if opt("gap", 0): b("s_sub_u32 s11, s16, s9\ns_lshl_b32 s11, s11, 3")
        b("s_sub_u32 s10, s11, s10\ns_min_u32 s10, s10, 100000")
        b.raw("s_memrealtime s[12:13]"); b.raw("s_waitcnt lgkmcnt(0)")
    b.label("L3_spin")
    b.raw("s_memrealtime s[14:15]"); b.raw("s_waitcnt lgkmcnt(0)")
    b("s_sub_u32 s14, s14, s12\ns_cmp_lt_u32 s14, s10")
    b("s_cbranch_scc1 L3_spin")
    b.label("L3_end")
    b("s_endpgm")
    if opt("abs", 0) == 2:
        b.raw(".p2align 8"); b.raw(".type mha_tiny_kernel,@function"); b.label("mha_tiny_kernel")
        b.raw("s_memrealtime s[8:9]")
        b.raw("s_load_dwordx2 s[4:5], s[0:1], 56"); b.raw("s_waitcnt lgkmcnt(0)")
        b("s_cmp_ge_u32 s2, 1"); b("s_cbranch_scc1 L4_end")
        b(f"s_mov_b32 s6, 268435456\ns_mov_b32 s7, 0x20000\ns_mov_b32 s10, {STAMP_OFF + (3 << 20)}\nv_mov_b32 v1, 0\nv_mov_b32 v2, s8")
        b("buffer_store_dword v2, v1, s[4:7], s10 offen")
        b.label("L4_end")
        b("s_endpgm")
    return b.L

def main():
    k, n = hazard_pass(gen(), verbose=VERB)
    head = ["; Fused MHA block, one workgroup per (batch, head): Q projection, attention, then a quarter (in k) of the output",
            "; projection; workgroups hand O and partial sums to each other through d_ws. Written by dev/gen20.py.",
            "; @launch grid=(256,1,1) block=(256,1,1) lds=163840",
            '.amdgcn_target "amdgcn-amd-amdhsa--gfx950"', ".text", f".globl {NAME}"]
    tail = ['.section .rodata,"a"', ".p2align 6", f".amdhsa_kernel {NAME}", "  .amdhsa_next_free_vgpr 512", "  .amdhsa_next_free_sgpr 102",
            "  .amdhsa_accum_offset 256", "  .amdhsa_group_segment_fixed_size 0", "  .amdhsa_kernarg_size 64", "  .amdhsa_user_sgpr_count 2",
            "  .amdhsa_user_sgpr_kernarg_segment_ptr 1", "  .amdhsa_system_sgpr_workgroup_id_x 1", ".end_amdhsa_kernel"]
    if "probe" in P:
        k3, _ = hazard_pass(gen_probe(P["probe"]))
        k = k + k3
        head[2] = f"; @launch kernel={NAME} grid=(256,1,1) block=(256,1,1) lds=163840\n; @launch kernel=mha_probe_kernel grid=(1,1,1) block=(64,1,1) lds=0"
        head.append(".globl mha_probe_kernel")
        if opt("abs", 0) == 2:
            head[2] = "; @launch kernel=mha_tiny_kernel grid=(1,1,1) block=(64,1,1) lds=0\n" + head[2]
            head.append(".globl mha_tiny_kernel")
            tail += [".p2align 6", ".amdhsa_kernel mha_tiny_kernel", "  .amdhsa_next_free_vgpr 8", "  .amdhsa_next_free_sgpr 32",
                "  .amdhsa_accum_offset 8", "  .amdhsa_group_segment_fixed_size 0", "  .amdhsa_kernarg_size 64", "  .amdhsa_user_sgpr_count 2",
                "  .amdhsa_user_sgpr_kernarg_segment_ptr 1", "  .amdhsa_system_sgpr_workgroup_id_x 1", ".end_amdhsa_kernel"]
        tail += [".p2align 6", ".amdhsa_kernel mha_probe_kernel", "  .amdhsa_next_free_vgpr 8", "  .amdhsa_next_free_sgpr 32",
            "  .amdhsa_accum_offset 8", "  .amdhsa_group_segment_fixed_size 0", "  .amdhsa_kernarg_size 64", "  .amdhsa_user_sgpr_count 2",
            "  .amdhsa_user_sgpr_kernarg_segment_ptr 1", "  .amdhsa_system_sgpr_workgroup_id_x 1", ".end_amdhsa_kernel"]
    fmt = lambda l: l if l.endswith(":") or l.startswith((".", ";")) else "    " + l
    open(sys.argv[1], "w").write("\n".join(head + [fmt(l) for l in k] + tail) + "\n")
    print(f"nops inserted: {n}; lines {len(k)}")
main()
```

```python
import sys, math, struct
from asmlib import B, hazard_pass, need, estimate

P = dict(kv.split("=") for kv in sys.argv[2:])
def opt(k, d): return type(d)(P.get(k, d))
STAMPS = opt("stamps", 0); TRACE = opt("trace", 0); VERB = bool(opt("v", 0))
KVFL = opt("kvfl", "nt").replace("+", " ")
HST = opt("hst", "sc0+sc1").replace("+", " ")
HLD = opt("hld", "sc0+sc1").replace("+", " ")
H1S = opt("h1s", "sc0+sc1").replace("+", " "); H1F = opt("h1f", "sc0+sc1").replace("+", " "); H1L = opt("h1l", "sc0+sc1").replace("+", " ")
FORCE_SLOW = opt("slow", 0)
SIG = opt("sig", "g122"); SIG3 = opt("sig3", "g400040004"); AUXT = opt("auxt", "p0.2.4/1.3.5/1.2.6/0.3.7")
TL = opt("tl", 11); TIT = opt("tit", 6); THALF = opt("thalf", 1)

TOUCH = opt("touch", 7)
SLEEP = opt("sleep", 4); ONEPOLL = opt("onepoll", 1); PBF = opt("pbf", 1)
NAME = "standalone__mha_block_cached__near_ridge_kernel"
STAMP_OFF = 200 << 20; NST = 16
TIMER = "s_memtime" if STAMPS == 2 else "s_memrealtime"
PART = 12 << 20; PSL = 10240 if opt('pbf', 1) else 20480; FLG1 = PART + 64 * 16 * PSL + (2 << 20); FS1 = opt('fs1', 8448); FS2 = opt('fs2', 4352); FLG2 = FLG1 + (1 << 20); WSREC = FLG2 + (2 << 20)

def vr(a, n=1, k='v'): return f"{k}{a}" if n == 1 else f"{k}[{a}:{a+n-1}]"
def ar(a, n=1): return vr(a, n, 'a')
def f32bits(x): return "0x%08x" % struct.unpack("<I", struct.pack("<f", x))[0]

def stamp(b, i):
    if STAMPS and (not opt("light", 0) or i == 14 or (opt("light", 0) == 2 and i in (2, 5, 12)) or (opt('light', 0) == 3 and i in (4, 6, 12))):
        b.wait(lg=0)
        b.raw(f"{TIMER} s[96:97]"); b.raw("s_waitcnt lgkmcnt(0)")
        b.raw(f"v_writelane_b32 v254, s96, {2*i}"); b.raw(f"v_writelane_b32 v254, s97, {2*i+1}")
def trace(b):
    if TRACE:
        b.wait(lg=0)
        for s in ("s_memtime s[96:97]", "s_waitcnt lgkmcnt(0)", "s_sub_u32 s96, s96, s98", "s_mov_b32 s97, m0", "s_mov_b32 m0, s100",
                  "v_writelane_b32 v0, s96, m0", "s_add_u32 s100, s100, 1", "s_min_u32 s100, s100, 63", "s_mov_b32 m0, s97"): b.raw(s)

def order(kind, j):
    if kind == "seq": return list(range(16)), [2, 6, 10]
    if kind == "xor": return [t ^ j for t in range(16)], [4, 8, 12]
    if kind.startswith("g"):
        ramp = [int(c) for c in kind[1:]]
        O = [[] for _ in range(4)]; LD = [[] for _ in range(4)]; opened = {}; nxt = 0; turn = 0
        for t in range(16):
            n = min(ramp[t] if t < len(ramp) else 1, 16 - nxt)
            lead_cls = [(turn + i) % 4 for i in range(n)]; turn = (turn + n) % 4
            fresh = []
            for c in lead_cls:
                O[c].append(nxt); LD[c].append(t); opened[nxt] = t; fresh.append(nxt); nxt += 1
            k = 0
            for c in range(4):
                if c in lead_cls: continue
                old = [x for x in sorted(opened) if x not in O[c] and opened[x] < t]
                if old: O[c].append(old[0])
                else:
                    O[c].append(fresh[k % len(fresh)]); k += 1
        o = O[j]; assert sorted(o) == list(range(16)), o
        lead = [t for t in LD[j] if t >= 2][:3]
        while len(lead) < 3: lead.append(min(lead[-1] + 3, 15))
        return o, lead
    o = []; lead = []
    if kind == "rot":
        for t in range(16):
            if t == 0: o.append(j)
            elif t % 4 == j and t + 3 < 16: o.append(t + 3); lead.append(t)
            else: o.append([c for c in range(16) if c not in o and (c < 4 or (c - 3) < t) and not (c >= 4 and (c - 3) % 4 == j)][0])
    elif kind == "rot2":
        for t in range(16):
            if t == 0: o.append(0)
            elif t == 1: o.append(1 + j)
            elif (t - 1) % 4 == j and t + 3 < 16: o.append(t + 3); lead.append(t)
            else: o.append([c for c in range(16) if c not in o and (c < 5 or (c - 3) < t) and not (c >= 5 and (c - 4) % 4 == j)][0])
    assert sorted(o) == list(range(16)), o
    lead = [t for t in lead if t >= 2][:3]
    while len(lead) < 3: lead.append(lead[-1] + 2)
    return o, lead
def tables(kind):
    T = []
    for j in range(4):
        o, lead = order(kind, j)
        if AUXT.startswith("c"):
            off, base = int(AUXT[1]), int(AUXT[2])
            lead = [((j + off) % 4) + base + 4 * k + 2 for k in range(3)]
        elif AUXT.startswith("d"):
            sp, base = int(AUXT[1]), int(AUXT[2])
            lead = [base + (j * sp) // 4 + sp * k + 2 for k in range(3)]
        elif AUXT.startswith("p"):
            lead = [int(v) + 2 for v in AUXT[1:].split("/")[j].split(".")]
        elif AUXT != "lead": lead = [int(v) + 2 for v in AUXT.split(".")]
        if opt("sp", 0):
            ev = opt("ev", "3.0,3.0,0.4").split(",")
            lead = lead[opt("l0", 1):][:len(ev)] if ev != ["0.0"] else []
        val = sum(c << (4 * t) for t, c in enumerate(o))
        T.append((val & 0xffffffff, val >> 32, sum(1 << (t - 1) for t in lead)))
    return T

def order3(j, p):
    if SIG3.startswith("g"):
        ramp = [int(c) for c in SIG3[1:].rstrip("p")]
        PX = opt("px", 1); PS = opt("ps", 8)
        O = [[] for _ in range(4)]; opened = {}; nxt = 0; turn = 0
        for t in range(14):
            n = min(ramp[t] if t < len(ramp) else 1, 14 - nxt)
            lead_cls = [(turn + i) % 4 for i in range(n)]; turn = (turn + n) % 4
            fresh = []
            for c in lead_cls:
                O[c].append(nxt); opened[nxt] = t; fresh.append(nxt); nxt += 1
            k = 0
            for c in range(4):
                if c in lead_cls: continue
                old = [x for x in sorted(opened) if x not in O[c] and opened[x] < t]
                if PX: old.sort(key=lambda x: (x ^ c) if x < 4 else x)
                if old: O[c].append(old[0])
                else:
                    O[c].append(fresh[k % len(fresh)]); k += 1
        o = O[j]; assert sorted(o) == list(range(14)), o
        if p and SIG3.endswith("p"): o = [(c + PS) % 14 for c in o]
    elif SIG3 == "seq": o = list(range(14))
    elif SIG3.startswith("pair"):
        gap = int(SIG3[4:5] or 1)
        o = [2 * j, 2 * j + 1]
        lt = {8 + i: 2 + gap * i for i in range(6)}
        for t in range(2, 14):
            mine = [c for c in lt if lt[c] == t and (c - 8) % 4 == j]
            if mine: o.append(mine[0]); continue
            ok = [c for c in range(14) if c not in o and (c < 8 or (lt[c] < t - 1 and (c - 8) % 4 != j))]
            if not ok: ok = [c for c in range(14) if c not in o and not ((c - 8) % 4 == j and lt[c] > t)]
            ok.sort(key=lambda c: (c != (o[-1] ^ 1), c >= 8, (c - 2 * j) % 8 if c < 8 else c))
            o.append(ok[0])
        assert sorted(o) == list(range(14)), o
    else:
        o = []
        for t in range(14):
            if t == 0: o.append(j)
            elif t % 4 == j and t + 3 < 14: o.append(t + 3)
            else: o.append([c for c in range(14) if c not in o and (c < 4 or (c - 3) < t) and not (c >= 4 and (c - 3) % 4 == j)][0])
        assert sorted(o) == list(range(14))
        if p and SIG3 == "rotp": o = [(c + 7) % 14 for c in o]
    val = sum((c + 2) << (4 * t) for t, c in enumerate(o))
    return val & 0xffffffff, val >> 32
ROW1 = opt('row1', 1)
def gen():
    b = B()
    SX, SW, SK, SV, SO, SD = "s[4:7]", "s[8:11]", "s[12:15]", "s[16:19]", "s[20:23]", "s[24:27]"
    SOUT, SX3, SW3 = "s[68:71]", "s[72:75]", "s[76:79]"
    sW, sB, sH, sCnt = "s28", "s29", "s30", "s31"
    sRB, sDB, sDelta, sMask = "s32", "s33", "s34", "s35"
    sXO, sWO, sMX, sMW, sM5, sT, sT2, sT3 = "s36", "s37", "s38", "s39", "s40", "s41", "s42", "s43"
    sW4, sW1, sPB, sKVm, sKVs, sPass, sO0, sO1, sCls = "s44", "s45", "s46", "s47", "s48", "s49", "s50", "s51", "s52"
    sCc, sSpin, sQH, sKH = "s53", "s54", "s56", "s57"
    sBl, sHl, sKq, sEv = "s60", "s61", "s62", "s63"
    sKVx, sRot = "s55", "s66"
    sNon = "s[64:65]"
    sPs = [None, "s82", "s83", "s84"]; sPl = [None, "s85", "s86", "s87"]
    sF1, sOut, sRdy, sF2 = "s88", "s89", "s90", "s91"
    XA = [2, 3]; WA = [4, 5, 6, 7]; VB = [8, 9, 10, 11, 12]; VW = [13, 14, 15, 16]; KVW, NONV, L16 = 17, 18, 20
    ACC = 24; OK = 104; KA = [184, 185, 186, 187]; VA = list(range(188, 196)); NM = 196; LA = 216; L16B = 236; TCH = 237
    XA3 = [238, 239]; ZR = 240; WA3 = [244, 245, 246, 247]; VW3 = [248, 249, 250, 251]; VB3 = [252] * 4 + [253]; OUTV = 255
    SB = [24, 32, 40]; PB = [48, 52, 56]
    OS, QF, KF, VF, ONES, JUNK, K0F = 0, 80, 160, 192, 224, 228, 240
    STG = [VF + 4*i for i in range(8)] + [232, 236]
    AF = [80, 96]; BF = [112, 132]
    ST0 = 53248; STSZ = 36864; LDS = 163840; QEX = 122880
    S3 = [ST0 + STSZ, ST0 + 2*STSZ]
    FL = 256; SPIN = 100000
    MF = "v_mfma_f32_16x16x32_bf16"

    b.raw(".p2align 8")
    b.raw(f".type {NAME},@function")
    b.label(NAME)
    b("s_cmp_ge_u32 s2, 256")
    b("s_cbranch_scc1 L_end")
    b.track = False
    b("s_load_dwordx4 s[4:7], s[0:1], 0")
    b("s_load_dwordx4 s[8:11], s[0:1], 16")
    b("s_load_dwordx4 s[68:71], s[0:1], 40")
    b("s_load_dwordx2 s[76:77], s[0:1], 32")
    b("s_load_dwordx2 s[20:21], s[0:1], 56")
    b("s_memrealtime s[64:65]")
    if STAMPS: b.raw(f"{TIMER} s[94:95]")
    if TRACE: b.raw("s_memtime s[98:99]"); b.raw("s_mov_b32 s100, 0")
    b.track = True
    b("v_and_b32 v1, 63, v0\nv_lshrrev_b32 v21, 6, v0")
    b(f"s_and_b32 {sB}, s2, 1\ns_lshl_b32 {sB}, {sB}, 2\ns_lshr_b32 {sT}, s2, 3\ns_and_b32 {sBl}, {sT}, 3\ns_add_u32 {sB}, {sB}, {sBl}")
    b(f"v_readfirstlane_b32 {sW}, v21")
    b(f"s_lshr_b32 {sKq}, s2, 1\ns_and_b32 {sKq}, {sKq}, 3\ns_lshl_b32 {sH}, {sKq}, 3\ns_lshr_b32 {sHl}, {sT}, 2")
    RM = opt("rm", -1)
    if RM >= 0:
        b(f"s_add_u32 {sCls}, {sHl}, {RM}\ns_and_b32 {sCls}, {sCls}, 3\ns_and_b32 {sHl}, {sHl}, 4\ns_sub_u32 {sT2}, {sCls}, {sBl}\ns_and_b32 {sT2}, {sT2}, 3\ns_add_u32 {sHl}, {sHl}, {sT2}")
    else:
        b(f"s_add_u32 {sCls}, {sBl}, {sHl}\ns_and_b32 {sCls}, {sCls}, 3")
    b(f"s_add_u32 {sH}, {sH}, {sHl}")
    T = tables(SIG)
    b(f"s_mov_b32 s58, {T[0][0]}\ns_mov_b32 s59, {T[0][1]}\ns_mov_b32 {sMask}, {T[0][2]}")
    for j in (1, 2, 3):
        b(f"s_cmp_eq_u32 {sCls}, {j}\ns_cselect_b32 s58, {T[j][0]}, s58\ns_cselect_b32 s59, {T[j][1]}, s59\ns_cselect_b32 {sMask}, {T[j][2]}, {sMask}")
    if opt("xoff", 1) in (5, 6):
        b(f"s_and_b32 {sT2}, s2, 1\ns_lshl_b32 {sT2}, {sT2}, 1\ns_xor_b32 {sT2}, {sT2}, {sKq}")
        if opt("xoff", 1) == 6: b(f"s_lshl_b32 {sT3}, {sKq}, 1\ns_and_b32 {sT3}, {sT3}, 2\ns_xor_b32 {sT2}, {sT2}, {sT3}")
        b(f"s_mul_i32 {sT2}, {sT2}, 0x44444444\ns_xor_b32 s58, s58, {sT2}\ns_xor_b32 s59, s59, {sT2}")
    elif opt("xoff", 1):
        if opt("xoff", 1) == 1: b(f"s_xor_b32 {sT2}, s2, {sKq}")
        if opt("xoff", 1) == 2: b(f"s_lshr_b32 {sT2}, s2, 7\ns_xor_b32 {sT2}, {sT2}, s2")
        if opt("xoff", 1) == 3: b(f"s_lshr_b32 {sT2}, s2, 7\ns_xor_b32 {sT2}, {sT2}, s2\ns_xor_b32 {sT2}, {sT2}, {sKq}")
        if opt("xoff", 1) == 4: b(f"s_lshr_b32 {sT2}, s2, 7")
        b(f"s_bitcmp1_b32 {sT2}, 0\ns_cselect_b32 {sT2}, 0x88888888, 0\ns_xor_b32 s58, s58, {sT2}\ns_xor_b32 s59, s59, {sT2}")
    b(f"s_lshl_b32 {sW4}, {sW}, 12\ns_lshl_b32 {sW1}, {sW}, 10\ns_and_b32 {sQH}, {sW}, 1\ns_lshr_b32 {sKH}, {sW}, 1")
    if opt("ctouch", 2) == 2:
        b.raw("s_getpc_b64 s[92:93]")
        b.label("L_pc")
        b(f"s_lshr_b32 {sMW}, s2, 3\ns_lshl_b32 {sMW}, {sMW}, 2\ns_add_u32 {sMW}, {sMW}, {sW}\ns_lshl_b32 {sMW}, {sMW}, 7\ns_min_u32 {sMW}, {sMW}, L_last-L_pc")
        b(f"s_add_u32 s92, s92, {sMW}\ns_addc_u32 s93, s93, 0\nv_mov_b32 v24, s92\nv_mov_b32 v25, s93")
        b.raw(f"global_load_dword a{JUNK}, v[24:25], off")
    b("v_lshrrev_b32 v21, 4, v1")
    b("v_and_b32 v22, 7, v1\nv_xor_b32 v22, v22, v21\nv_lshlrev_b32 v22, 4, v22")
    b("v_lshrrev_b32 v23, 3, v1\nv_lshlrev_b32 v23, 11, v23\nv_add_u32 v22, v22, v23\nv_xor_b32 v23, 64, v22")
    b(f"s_lshl_b32 {sT}, {sW}, 16")
    for q in range(4):
        b(f"s_add_u32 {sT2}, {sT}, {q*(16384-1024)}\nv_add_u32 v{VB[q]}, {sT2}, v{23 if q & 1 else 22}")
    b(f"s_lshl_b32 {sT}, {sQH}, 6\nv_xor_b32 v{VB[4]}, {sT}, v22\ns_lshl_b32 {sT}, {sW}, 14\ns_add_u32 {sT}, {sT}, {16*16384}\nv_add_u32 v{VB[4]}, {sT}, v{VB[4]}")
    b("v_lshlrev_b32 v22, 1, v21\nv_and_b32 v23, 15, v1\nv_xor_b32 v22, v22, v23\nv_lshlrev_b32 v22, 4, v22")
    b(f"v_lshlrev_b32 v23, 13, v21\nv_add_u32 v23, v23, v22\nv_xor_b32 v{L16}, 128, v23")
    b(f"s_lshl_b32 {sT}, {sW}, 17")
    for q in range(4):
        b(f"s_add_u32 {sT2}, {sT}, {q*(32768-1024)}\nv_add_u32 v{VW[q]}, {sT2}, v{L16 if q & 2 else 23}")
    b(f"s_add_u32 {sM5}, {sW1}, 16384")
    b(f"s_lshl_b32 {sT}, {sB}, 5\ns_add_u32 {sT}, {sT}, {sH}\ns_lshl_b32 {sT}, {sT}, 17\ns_lshl_b32 {sT2}, {sH}, 8\ns_mul_i32 {sT3}, {sB}, 327680")
    b.raw("s_waitcnt lgkmcnt(0)")
    b(f"s_add_u32 s12, s6, {sT}\ns_addc_u32 s13, s7, 0")
    b(f"s_add_u32 s16, s8, {sT}\ns_addc_u32 s17, s9, 0")
    b(f"s_add_u32 s8, s10, {sT2}\ns_addc_u32 s9, s11, 0\ns_sub_u32 s10, 8388608, {sT2}\ns_mov_b32 s11, 0x20000")
    b(f"s_add_u32 s4, s4, {sT3}\ns_addc_u32 s5, s5, 0\ns_mov_b32 s6, 327680\ns_mov_b32 s7, 0x20000")
    def dma_lists(vw, sw, vb, sx, fl=""):
        return ([f"buffer_load_dwordx4 v{vw[q]}, {sw}, {sWO} offen offset:{q*1024} lds" for q in range(4)],
                [f"buffer_load_dwordx4 v{vb[q]}, {sx}, {sXO} offen offset:{q*1024} {fl} lds" for q in range(4)] +
                [f"buffer_load_dwordx4 v{vb[4]}, {sx}, {sXO} offen {fl} lds"])
    DW, DX = dma_lists(VW, SW, VB, SX)
    DW3, DX3 = dma_lists(VW3, SW3, VB3, SX3, H1L)
    def first_stage(st):
        base = ST0 + ((st+2)%3)*STSZ
        b(f"s_and_b32 {sT}, s58, 15\ns_add_u32 m0, {sW4}, {base+20480}\ns_lshl_b32 {sWO}, {sT}, 19")
        for x in DW: b(x)
        b(f"s_add_u32 m0, {sW4}, {base}\ns_lshl_b32 {sXO}, {sT}, 7")
        for x in DX[:4]: b(x)
    def first_stage_last(st):
        base = ST0 + ((st+2)%3)*STSZ
        b(f"s_add_u32 m0, {sM5}, {base}\ns_lshr_b64 s[58:59], s[58:59], 4")
        b(DX[4])
    if opt("sta", 0) == 1: stamp(b, 15)
    first_stage(0)
    if not opt("late5", 0): first_stage_last(0)
    if opt("sta", 0) == 2: stamp(b, 15)
    if STAMPS: b.raw("v_writelane_b32 v254, s94, 0"); b.raw("v_writelane_b32 v254, s95, 1")
    if opt("ctouch", 2) == 1:
        b.raw("s_getpc_b64 s[92:93]")
        b.label("L_pc")
        b(f"s_lshr_b32 {sMW}, s2, 3\ns_lshl_b32 {sMW}, {sMW}, 2\ns_add_u32 {sMW}, {sMW}, {sW}\ns_lshl_b32 {sMW}, {sMW}, 7\ns_min_u32 {sMW}, {sMW}, L_last-L_pc")
        b(f"s_add_u32 s92, s92, {sMW}\ns_addc_u32 s93, s93, 0\nv_mov_b32 v24, s92\nv_mov_b32 v25, s93")
        b.raw(f"global_load_dword a{JUNK}, v[24:25], off")
    b(f"s_mov_b32 {sRB}, {ST0 + 2*STSZ}\ns_mov_b32 {sCnt}, 0\ns_mov_b32 {sDB}, {ST0 + STSZ}\ns_mov_b32 {sEv}, 0")
    b("v_and_b32 v26, 15, v1\nv_lshrrev_b32 v27, 1, v26\nv_xor_b32 v27, v27, v21\nv_lshlrev_b32 v27, 4, v27\nv_lshlrev_b32 v25, 7, v26\nv_add_u32 v27, v27, v25")
    b(f"s_mul_i32 {sT}, {sQH}, 10240\ns_add_u32 {sT}, {sT}, {sRB}")
    for u in range(2): b(f"v_xor_b32 v{XA[u]}, {u*64}, v27\nv_add_u32 v{XA[u]}, {sT}, v{XA[u]}")
    b("v_lshrrev_b32 v30, 2, v1\nv_and_b32 v31, 7, v30\nv_and_b32 v26, 3, v30")
    b(f"s_lshl_b32 {sT}, {sKH}, 2\nv_xor_b32 v27, {sT}, v31\nv_lshlrev_b32 v27, 5, v27")
    b("v_lshlrev_b32 v25, 3, v21\nv_add_u32 v28, v25, v26\nv_lshlrev_b32 v28, 8, v28")
    b("v_and_b32 v29, 3, v1\nv_lshlrev_b32 v29, 3, v29\nv_add3_u32 v28, v28, v27, v29")
    b(f"s_add_u32 {sT}, {sRB}, 20480")
    for d in range(4): b(f"v_xor_b32 v{WA[d]}, {d*32}, v28\nv_add_u32 v{WA[d]}, {sT}, v{WA[d]}")
    b("v_lshlrev_b32 v23, 8, v21\nv_add_u32 v22, v22, v23")
    b(f"s_lshl_b32 {sT}, {sQH}, 7\nv_xor_b32 v{KVW}, {sT}, v22\nv_add_u32 v{KVW}, {sW1}, v{KVW}")
    ROT = opt("rot", 3)
    if ROT == 0: b(f"s_mov_b32 {sRot}, 0")
    if ROT == 1: b(f"s_lshr_b32 {sRot}, s2, 3\ns_lshl_b32 {sT}, s2, 2\ns_add_u32 {sRot}, {sRot}, {sT}\ns_and_b32 {sRot}, {sRot}, 31\ns_lshl_b32 {sRot}, {sRot}, 12")
    if ROT == 2: b(f"s_and_b32 {sRot}, {sH}, 31\ns_lshl_b32 {sRot}, {sRot}, 12")
    if ROT == 3: b(f"s_mul_i32 {sRot}, s2, 0x9E3779B1\ns_lshr_b32 {sRot}, {sRot}, 27\ns_lshl_b32 {sRot}, {sRot}, 12")
    b(f"s_mov_b32 {sKVm}, {sW1}\ns_mov_b32 {sKVs}, 0\ns_mov_b32 {sKVx}, {sRot}")
    b("s_mov_b32 s14, 131072\ns_mov_b32 s15, 0x20000\ns_mov_b32 s18, 131072\ns_mov_b32 s19, 0x20000")
    b(f"s_mov_b32 s22, {268435456 if STAMPS else WSREC}\ns_mov_b32 s23, 0x20000")
    b("s_mov_b32 s24, s70\ns_mov_b32 s25, s71\ns_mov_b32 s26, 256\ns_mov_b32 s27, 0x20000")
    b(f"s_add_u32 s68, s68, {sT3}\ns_addc_u32 s69, s69, 0\ns_mov_b32 s70, 327680\ns_mov_b32 s71, 0x20000")
    b(f"s_lshl_b32 {sT}, {sB}, 2\ns_add_u32 {sT}, {sT}, {sKq}\ns_mul_i32 {sT}, {sT}, 327680\ns_add_u32 s72, s20, {sT}\ns_addc_u32 s73, s21, 0\ns_mov_b32 s74, 327680\ns_mov_b32 s75, 0x20000")
    b(f"s_lshl_b32 {sT}, {sKq}, 13\ns_add_u32 {sT}, {sT}, {sHl}\ns_lshl_b32 {sT}, {sT}, 8\ns_add_u32 s76, s76, {sT}\ns_addc_u32 s77, s77, 0\ns_sub_u32 s78, 8388608, {sT}\ns_mov_b32 s79, 0x20000")
    if opt("sta", 0) == 3: stamp(b, 15)
    SENT = 0; F2W = opt("f2w", 0); CLR = 2

    def zero(r):
        big = int(r.split(":")[1][:-1]) - int(r.split("[")[1].split(":")[0]) == 15
        return f"{'v_mfma_f32_32x32x16_bf16' if big else MF} {r}, {vr(ZR,4)}, {vr(ZR,4)}, 0"
    ZEROS = [zero(vr(OK+16*i, 16)) for i in range(5)] + [zero(ar(OS+16*i, 16)) for i in range(5)] + [zero(vr(LA, 16)), zero(vr(LA+16, 4))]
    def p2_addr():
        b("v_lshrrev_b32 v21, 4, v1\nv_and_b32 v22, 7, v1\nv_lshlrev_b32 v22, 1, v22\nv_xor_b32 v22, v22, v21\nv_lshlrev_b32 v22, 4, v22")
        b("v_and_b32 v23, 15, v1\nv_lshlrev_b32 v23, 8, v23\nv_add_u32 v22, v22, v23")
        b(f"s_lshl_b32 {sT}, {sKH}, 14")
        for d in range(4): b(f"v_xor_b32 v{KA[d]}, {d*64}, v22\nv_add_u32 v{KA[d]}, {sT}, v{KA[d]}")
        b(f"v_lshrrev_b32 v21, 2, v1\nv_and_b32 v22, 7, v21\ns_lshl_b32 {sT2}, {sKH}, 2\nv_xor_b32 v22, {sT2}, v22\nv_lshlrev_b32 v22, 5, v22")
        b("v_lshlrev_b32 v21, 8, v21\nv_and_b32 v23, 3, v1\nv_lshlrev_b32 v23, 3, v23\nv_add3_u32 v22, v22, v21, v23")
        b(f"s_add_u32 {sT}, {sT}, 4096")
        for j in range(8): b(f"v_xor_b32 v{VA[j]}, {j*32}, v22\nv_add_u32 v{VA[j]}, {sT}, v{VA[j]}")
        b(f"s_mov_b32 {sPB}, 0")
    def spread(i0, extra):
        code = b.L[i0:]; b.L = b.L[:i0]
        step = max(1, len(code) // (len(extra) + 1))
        for i, ln in enumerate(code):
            if i % step == 0 and 1 <= i // step <= len(extra): b.L.append(extra[i // step - 1])
            b.L.append(ln)
    def setup_a():
        for i in range(4): b(f"v_mov_b32 v{ZR+i}, 0")
        b(f"v_lshlrev_b32 v{L16}, 4, v1\nv_add_u32 v{L16B}, 4096, v{L16}")
        i0 = len(b.L)
        p2_addr()
        b("v_mov_b32 v21, 0x3f803f80")
        if ROW1: b("v_and_b32 v22, 15, v1\nv_cmp_eq_u32 s[92:93], 0, v22\nv_cndmask_b32 v21, 0, v21, s[92:93]")
        for i in range(4): b(f"v_accvgpr_write_b32 a{ONES+i}, v21")
        b(f"s_mov_b32 {sPass}, 0\ns_mov_b32 {sCc}, {f32bits(math.log2(math.e) / math.sqrt(128.0))}")
        spread(i0, ZEROS[:6])
    def setup_b():
        i0 = len(b.L)
        b("v_lshrrev_b32 v21, 4, v1\nv_lshlrev_b32 v22, 1, v21\nv_and_b32 v23, 15, v1\nv_xor_b32 v22, v22, v23\nv_lshlrev_b32 v22, 4, v22")
        b(f"v_lshlrev_b32 v23, 11, v23\nv_lshlrev_b32 v{OUTV}, 3, v21\nv_add_u32 v{OUTV}, v{OUTV}, v23")
        b(f"v_lshlrev_b32 v23, 11, v21\nv_add_u32 v23, v23, v22\nv_xor_b32 v22, 128, v23\ns_lshl_b32 {sT}, {sW}, 15")
        for q in range(4):
            b(f"s_add_u32 {sT2}, {sT}, {q*(8192-1024)}\nv_add_u32 v{VW3[q]}, {sT2}, v{22 if q & 1 else 23}")
        b(f"v_add_u32 v{VB3[0]}, {sW4}, v{L16}\nv_add_u32 v{VB3[4]}, {sM5}, v{L16}")
        b(f"s_mul_i32 {sT}, {sQH}, 5120\ns_add_u32 {sT}, {sT}, {S3[0]}\nv_add_u32 v{XA3[0]}, {sT}, v{L16}\nv_add_u32 v{XA3[1]}, 10240, v{XA3[0]}")
        b(f"v_lshrrev_b32 v21, 2, v1\nv_and_b32 v22, 7, v21\ns_lshl_b32 {sT}, {sKq}, 1\ns_add_u32 {sT}, {sT}, {sKH}\nv_xor_b32 v22, {sT}, v22\nv_lshlrev_b32 v22, 5, v22")
        b("v_lshlrev_b32 v21, 8, v21\nv_and_b32 v23, 3, v1\nv_lshlrev_b32 v23, 3, v23\nv_add3_u32 v22, v22, v21, v23")
        for d in range(4): b(f"v_xor_b32 v{WA3[d]}, {d*64}, v22\nv_add_u32 v{WA3[d]}, {S3[0]+20480}, v{WA3[d]}")
        b(f"s_lshl_b32 {sOut}, {sT}, 5\ns_mul_i32 {sT2}, {sQH}, 163840\ns_add_u32 {sOut}, {sOut}, {sT2}\ns_lshl_b32 {sT3}, {sHl}, 8\ns_add_u32 {sOut}, {sOut}, {sT3}")
        b(f"s_mov_b32 s80, {order3(0,0)[0]}\ns_mov_b32 s81, {order3(0,0)[1]}")
        for bb in range(1, 8 if SIG3.endswith("p") else 4):
            b(f"s_cmp_eq_u32 {sB if SIG3.endswith('p') else sBl}, {bb}\ns_cselect_b32 s80, {order3(bb & 3, bb >> 2)[0]}, s80\ns_cselect_b32 s81, {order3(bb & 3, bb >> 2)[1]}, s81")
        b(f"s_mul_i32 {sT}, {sHl}, 0x22222222\ns_xor_b32 s80, s80, {sT}\ns_xor_b32 s81, s81, {sT}")
        if TOUCH == 1:
            if THALF: b(f"s_lshr_b32 {sT}, s2, 3\ns_lshl_b32 {sT}, {sT}, 1\ns_and_b32 {sT2}, s2, 1\ns_add_u32 {sT}, {sT}, {sT2}\ns_lshl_b32 {sT}, {sT}, 15")
            else: b(f"s_lshr_b32 {sT}, s2, 3\ns_lshl_b32 {sT}, {sT}, 16")
            b(f"s_sub_u32 {sT}, {sT}, {sT3}\ns_lshl_b32 {sT2}, {sW}, {13 if THALF else 14}\ns_add_u32 {sT}, {sT}, {sT2}")
            b(f"v_cmp_gt_u32 s[92:93], {TL}, v1\nv_lshlrev_b32 v21, 7, v1\nv_add_u32 v21, {sT}, v21\nv_mov_b32 v22, 0x40000000\nv_cndmask_b32 v{TCH}, v22, v21, s[92:93]")
        if TOUCH == 8:
            b(f"s_and_b32 {sT}, s80, 14\ns_lshl_b32 {sT}, {sT}, 17\ns_lshl_b32 {sT2}, {sW}, 16\ns_add_u32 {sT}, {sT}, {sT2}")
            b(f"v_lshrrev_b32 v21, 1, v1\nv_lshlrev_b32 v21, 11, v21\nv_and_b32 v22, 1, v1\nv_lshlrev_b32 v22, 7, v22\nv_add3_u32 v{TCH}, v21, v22, {sT}")
        if TOUCH == 7:
            b(f"s_and_b32 {sT}, s80, 15\ns_lshl_b32 {sT}, {sT}, 17\ns_lshl_b32 {sT2}, {sW}, 15\ns_add_u32 {sT}, {sT}, {sT2}")
            b(f"v_lshrrev_b32 v21, 1, v1\nv_lshlrev_b32 v21, 11, v21\nv_and_b32 v22, 1, v1\nv_lshlrev_b32 v22, 7, v22\nv_add3_u32 v21, v21, v22, {sT}")
            b(f"v_lshrrev_b32 v22, 5, v1\nv_lshlrev_b32 v22, 30, v22\nv_add_u32 v{TCH}, v21, v22")
        spread(i0, ZEROS[6:])
    def setup_c():
        b(f"s_mul_i32 {sT}, {sB}, 1310720\ns_lshl_b32 {sT2}, {sH}, 1\ns_add_u32 {sT2}, {sT2}, {sKH}\ns_mul_i32 {sT2}, {sT2}, 20480\ns_add_u32 {sO0}, {sT}, {sT2}")
        b(f"s_mul_i32 {sT2}, {sQH}, 5120\ns_add_u32 {sO0}, {sO0}, {sT2}\ns_add_u32 {sO1}, {sO0}, 10240")
        b(f"s_lshl_b32 {sT}, {sB}, 2\ns_add_u32 {sT}, {sT}, {sKq}\ns_mul_i32 {sT}, {sT}, {FS1}\ns_add_u32 {sF1}, {sT}, {FLG1}")
        b(f"s_lshl_b32 {sT}, {sB}, 3\ns_add_u32 {sT}, {sT}, {sHl}\ns_lshl_b32 {sF2}, {sT}, 2")
        if F2W: b(f"s_add_u32 {sF2}, {sF2}, {sW}")
        b(f"s_mul_i32 {sF2}, {sF2}, {FS2}\ns_add_u32 {sF2}, {sF2}, {FLG2}")
        b(f"s_mul_i32 {sT}, {sT}, {16*PSL}\ns_mul_i32 {sT2}, {sW}, {PSL//4}\ns_add_u32 {sT}, {sT}, {sT2}\ns_add_u32 {sT}, {sT}, {PART}")
        for d in (1, 2, 3):
            b(f"s_xor_b32 {sT2}, {sKq}, {d}\ns_lshl_b32 {sT3}, {sT2}, 2\ns_add_u32 {sT3}, {sT3}, {sKq}\ns_mul_i32 {sT3}, {sT3}, {PSL}\ns_add_u32 {sPs[d]}, {sT}, {sT3}")
            b(f"s_lshl_b32 {sT3}, {sKq}, 2\ns_add_u32 {sT3}, {sT3}, {sT2}\ns_mul_i32 {sT3}, {sT3}, {PSL}\ns_add_u32 {sPl[d]}, {sT}, {sT3}")
        b("v_lshrrev_b32 v21, 5, v1\nv_lshlrev_b32 v21, 8, v21\nv_and_b32 v22, 15, v1\nv_lshlrev_b32 v22, 4, v22\nv_lshrrev_b32 v23, 1, v1\nv_and_b32 v23, 8, v23\nv_add3_u32 v21, v21, v22, v23")
        b(f"s_mul_i32 {sT2}, {sQH}, 20480\ns_add_u32 {sT2}, {sT2}, {QEX}\nv_add_u32 v22, {sT2}, v{L16}\ns_lshl_b32 {sT3}, {sKH}, 11\ns_add_u32 {sT2}, {sT2}, {sT3}\nv_add_u32 v21, {sT2}, v21")
        b("v_and_b32 v23, 48, v1")

    if opt("early", 0):
        setup_a(); setup_b(); setup_c()
    first_stage(1); first_stage_last(1)
    for r in [L16B, TCH, ZR, OUTV] + VW3 + [VB3[0], VB3[4]]: b(f"v_mov_b32 v{r}, 0")
    b(f"s_or_b32 {sT}, s2, {sW}\ns_cmp_lg_u32 {sT}, 0")
    b("s_cbranch_scc1 L_nonon")
    b(f"s_or_b32 s64, s64, 1\nv_mov_b32 v24, s64\nv_mov_b32 v25, s65")
    b(f"buffer_store_dwordx2 v[24:25], v{ZR}, {SD}, 0 offen sc0 sc1")
    b.label("L_nonon")
    b.vm = []
    b.raw("s_waitcnt vmcnt(9)")
    stamp(b, 1)

    def g_mfmas(buf, dord=(0, 1, 2, 3), c0=False):
        return [f"{MF} {vr(ACC+(d*5+q)*4,4)}, {ar(AF[buf]+4*d,4)}, {ar(BF[buf]+4*q,4)}, {'0' if c0 else vr(ACC+(d*5+q)*4,4)}" for d in dord for q in range(5)]
    def emit(x):
        if callable(x): x()
        else: b(x)
    def g_step(ph, dm, fill, first=False, more=(), bar=True, last=20):
        if bar:
            trace(b); b("s_barrier"); trace(b)
        vs, qs = ((1024, 2048), (4096, 1024))[ph == 3]
        xa, wa = (XA, WA) if ph == 1 else (XA3, WA3)
        more = list(more)
        for u in range(2):
            A = lambda d: [f"ds_read_b64_tr_b16 {ar(AF[u]+4*d+2*v,2)}, v{wa[d]} offset:{u*8192+v*vs}" for v in range(2)]
            rd = A(0) + [f"ds_read_b128 {ar(BF[u]+4*q,4)}, v{xa[u]} offset:{q*qs}" for q in range(5)] + A(1) + A(2) + A(3)
            mf = g_mfmas(u ^ 1, c0=first)
            if first and u == 0:
                for s in rd: b(s)
                rd = []
            for i in range(20 if u == 0 else last):
                if not (first and u == 0): b(mf[i])
                if (u, i) in dm: b(dm[(u, i)])
                elif rd: b(rd.pop(0))
                elif more: b(more.pop(0))
                for s in fill.get((u, i), []): emit(s)
                pad = opt(f"pad{ph}", 0)
                if pad and not first and i < 12 and fill.get((u, i)) and (u, i) not in dm:
                    g_step.cnt += pad
                    if g_step.cnt >= 16:
                        g_step.cnt -= 16; b("s_nop 1")
                if u == 0 and i == 18: need(b, [ar(AF[0], 8), ar(BF[0], 20)])
                if u == 1 and i == 4: need(b, [ar(AF[0], 16)])
            assert not rd
        return more
    g_step.cnt = 0
    va = lambda r: f"v_add_u32 v{r}, {sDelta}, v{r}"
    def ringf(ph):
        xa, wa = (XA, WA) if ph == 1 else (XA3, WA3)
        return {(0, 7): [f"s_add_u32 {sT2}, {sRB}, {STSZ}"], (0, 9): [f"s_cmp_ge_u32 {sT2}, {LDS}"], (0, 10): [f"s_cselect_b32 {sT2}, {ST0}, {sT2}"],
                (0, 11): [f"s_sub_u32 {sDelta}, {sT2}, {sRB}"], (0, 14 if not opt("dg", 0) else 12): [va(xa[0])],
                (1, 2): [va(wa[0])], (1, 7): [va(xa[1])], (1, 10): [va(wa[1])], (1, 12): [va(wa[2])], (1, 15): [va(wa[3])]}
    DG = [(0, 4), (0, 8), (0, 12), (0, 16), (0, 19), (1, 9), (1, 13), (1, 16), (1, 18)]
    if opt("dg", 0) == 1: DG = [(0, 13), (0, 14), (0, 15), (0, 16), (0, 19), (1, 9), (1, 13), (1, 16), (1, 18)]
    def loopf(ph):
        f = ringf(ph)
        sg = "s58" if ph == 1 else "s80"; sgp = "s[58:59]" if ph == 1 else "s[80:81]"
        f.update({(0, 0): [f"s_and_b32 {sT}, {sg}, 15"], (0, 1): [f"s_lshl_b32 {sWO}, {sT}, {19 if ph == 1 else 17}"],
                  (0, 2): [f"s_add_u32 {sMX}, {sDB}, {sW4}"], (0, 3): [f"s_add_u32 m0, {sMX}, 20480"],
                  (0, 5): [f"s_lshl_b32 {sXO}, {sT}, 7" if ph == 1 else f"s_mul_i32 {sXO}, {sT}, 20480"],
                  (0, 6): [f"s_lshr_b64 {sgp}, {sgp}, 4"], (0, 17): [f"s_mov_b32 m0, {sMX}"],
                  (1, 0): [f"s_add_u32 {sMW}, {sDB}, {sM5}"], (1, 1): [f"s_mov_b32 {sDB}, {sRB}"], (1, 3): [f"s_mov_b32 {sRB}, {sT2}"],
                  (1, 5): [f"s_add_u32 {sCnt}, {sCnt}, 1"], (1, 6): [f"s_cmp_lt_u32 {sCnt}, 14"], (1, 8): ["s_cselect_b64 vcc, -1, 0"],
                  (1, 17): [f"s_mov_b32 m0, {sMW}"] + ([f"s_bitcmp1_b32 {sMask}, {sCnt}"] if ph == 1 else [])})
        return f
    EB1 = opt("eb1", 0); EB3 = opt("eb3", 1); BP = opt("bp", 17)
    DGE = [(0, 4), (0, 8), (0, 12), (0, 16), (1, 13), (1, 14), (1, 15), (1, 16), (0, 19)]
    def loope(ph, sync):
        f = loopf(ph)
        f[(0, 15)] = f.pop((1, 0)); f[(0, 17)] = [f"s_mov_b32 m0, {sMW}"]
        f[(1, 9)] = f.pop((1, 10)); f[(1, 11)] = f.pop((1, 12)); f[(1, 10)] = [f"s_mov_b32 m0, {sMX}"]
        w3 = f.pop((1, 15)); f.pop((1, 17))
        if ph == 1: f[(1, 12)] = [f"s_bitcmp1_b32 {sMask}, {sCnt}"]
        f[(1, BP)] = [sync]
        f.setdefault((1, 19 if BP == 18 else 18), []).extend(w3)
        return f
    def auto(ph, gaps, hook=None):
        xa, wa = (XA, WA) if ph == 1 else (XA3, WA3)
        sg = "s58" if ph == 1 else "s80"; sgp = "s[58:59]" if ph == 1 else "s[80:81]"
        rp = [[g for g in range(20*u, 20*u + 20) if g not in gaps][:13] for u in range(2)]
        it = [(f"s_and_b32 {sT}, {sg}, 15", 0, gaps[0]-1), (f"s_lshl_b32 {sWO}, {sT}, {19 if ph == 1 else 17}", 0, gaps[0]-1),
              (f"s_add_u32 m0, {sMX}, 20480", 0, gaps[0]-1),
              (f"s_lshl_b32 {sXO}, {sT}, 7" if ph == 1 else f"s_mul_i32 {sXO}, {sT}, 20480", 0, gaps[4]-1)]
        if ph == 3: it.append((f"s_lshr_b32 {sT3}, {sT}, 1", 0, gaps[4]-2))
        it += [(f"s_lshr_b64 {sgp}, {sgp}, 4", 0, 39), (f"s_add_u32 {sT2}, {sRB}, {STSZ}", 0, 39), (f"s_cmp_ge_u32 {sT2}, {LDS}", 0, 39),
               (f"s_cselect_b32 {sT2}, {ST0}, {sT2}", 0, 39), (f"s_sub_u32 {sDelta}, {sT2}, {sRB}", 0, 39), (va(xa[0]), rp[0][6], 39),
               (f"s_mov_b32 m0, {sMX}", gaps[3]+1, gaps[4]-1)]
        if ph == 3: it += [(f"s_bitcmp0_b32 {sRdy}, {sT3}", 0, gaps[4]-1), (hook, 0, gaps[4]-1)]
        it += [(f"s_add_u32 {sMW}, {sDB}, {sM5}", 0, 39), (f"s_add_u32 {sMX}, {sRB}, {sW4}", 0, 39), (f"s_mov_b32 {sDB}, {sRB}", 0, 39), (va(wa[0]), rp[1][1], 39),
               (f"s_mov_b32 {sRB}, {sT2}", 0, 39), (f"s_add_u32 {sCnt}, {sCnt}, 1", 0, 39), (f"s_cmp_lt_u32 {sCnt}, 14", 0, 39),
               ("s_cselect_b64 vcc, -1, 0", 0, 39), (va(xa[1]), rp[1][6], 39), (va(wa[1]), rp[1][8], 39), (va(wa[2]), rp[1][10], 39)]
        late = [(f"s_mov_b32 m0, {sMW}", gaps[7]+1, gaps[8]-1), (va(wa[3]), rp[1][12], 39)]
        late.sort(key=lambda x: x[1])
        it += late
        if ph == 1: it.append((f"s_bitcmp1_b32 {sMask}, {sCnt}", 0, 39))
        cap = {g: (0 if g in gaps else 1 if g in rp[0] + rp[1] else 3) for g in range(40)}
        cap[18] -= 1; cap[24] -= 1
        fill = {}; g = 0
        for k, (ins, lo, hi) in enumerate(it):
            hi = min([hi] + [x[2] for x in it[k+1:]])
            g = max(g, lo)
            while g < hi and cap[g] <= 0: g += 1
            while g in gaps and g > max(lo, 0) and g >= hi: g -= 1
            assert g <= hi, (ins, g, hi)
            cap[g] -= 1
            fill.setdefault(divmod(g, 20), []).append(ins)
        return [divmod(g, 20) for g in gaps], fill
    AG = [int(x) for x in opt("ag", "0").split(".")]
    def first_fill(ph):
        f = loopf(ph); g = {}
        g[(0, 0)] = sum([f[(0, i)] for i in (0, 1, 2, 3, 5, 6, 7, 9, 10, 11, 14 if not opt('dg', 0) else 12)], []) + f[(1, 0)] + f[(1, 1)] + f[(1, 3)] + f[(1, 5)] + f[(1, 6)] + f[(1, 8)]
        return f, g
    f, g = first_fill(1)
    DG0 = [(1, 13), (1, 14), (1, 15), (1, 16)]
    g.update({(1, 2): f[(1, 2)], (1, 7): f[(1, 7)], (1, 9): f[(1, 10)], (1, 11): f[(1, 12)], (1, 17): f[(1, 15)] + f[(0, 17)]})
    if EB1:
        for i in range((BP + 1) * 4, 80): b(f"v_mov_b32 v{ACC+i}, 0")
        g[(1, 17)] = f[(0, 17)]
        g_step(1, dict(zip(DG0, DW)), g, first=True, last=BP + 1)
        for x in DX[:4]: b(x)
        b(f"s_mov_b32 m0, {sMW}\ns_bitcmp1_b32 {sMask}, {sCnt}"); b(DX[4])
        b("s_branch L_p1end")
        def sync1():
            b.label("L_p1end")
            b("s_cbranch_scc1 L_aux")
            b.wait(lg=0, vm=9)
            b.label("L_auxback")
            trace(b)
            b("s_barrier")
            trace(b)
        b.raw(f".p2align {opt('al', 3)}")
        b.label("L_p1")
        b.lg = []
        i0 = len(b.L)
        g_step(1, dict(zip(DGE, DW + DX)), loope(1, sync1), bar=False)
        b("s_cbranch_vccnz L_p1")
    else:
        g_step(1, dict(zip(DG0 + [(1, 18), (1, 19)], DW + DX[:2])), g, first=True)
        b(DX[2]); b(DX[3]); b(f"s_mov_b32 m0, {sMW}\ns_add_u32 {sMX}, {sDB}, {sW4}\ns_bitcmp1_b32 {sMask}, {sCnt}"); b(DX[4])
        b("s_branch L_p1end")
        b.raw(f".p2align {opt('al', 3)}")
        b.label("L_p1")
        b.lg = []
        i0 = len(b.L)
        if len(AG) == 9:
            dg, ff = auto(1, AG)
            g_step(1, dict(zip(dg, DW + DX)), ff)
        else: g_step(1, dict(zip(DG, DW + DX)), loopf(1))
        b.label("L_p1end")
        b("s_cbranch_scc1 L_aux")
        b.wait(lg=0, vm=9)
        b.label("L_auxback")
        b("s_cbranch_vccnz L_p1")
    print("gemm step estimate", estimate(b.L[i0:], verbose=VERB))
    b.vm = []
    stamp(b, 2)
    KLD = f"buffer_load_dwordx4 v{KVW}, {SK}, {sKVx} offen {KVFL} lds"
    VLD = f"buffer_load_dwordx4 v{KVW}, {SV}, {sKVx} offen {KVFL} lds"
    M0K = f"s_mov_b32 m0, {sKVm}"; M0V = f"s_add_u32 m0, m0, 4096"
    ADV = [f"s_add_u32 {sKVm}, {sKVm}, 8192", f"s_add_u32 {sKVs}, {sKVs}, 4096"]
    XR = f"s_xor_b32 {sKVx}, {sKVs}, {sRot}"
    def pair():
        b(M0K); b(ADV[0]); b(KLD); b(M0V); b(ADV[1]); b(VLD); b(XR)
    NS = opt("ns", 4)
    n14 = opt("n14", 3); n15 = opt("n15", 2); nq = opt("nq", 2); NPI = opt("npi", 2); IENT = opt("ient", 32 - 6 * NPI); NA = opt("na", 6); npro = IENT - NA - NS - n14 - n15 - nq
    assert n14 <= 4 and n15 <= 4 and 0 <= nq <= 3 and 0 <= npro <= 5 and NA + n14 + n15 + nq <= 15 and NA + n14 <= 11
    pro1 = 1 if npro >= 1 and NA + n14 + n15 + nq < 15 else 0; pro2 = (npro - pro1 + 1) // 2; pro3 = npro - pro1 - pro2
    def k_read(i): return f"ds_read_b128 {ar(KF+4*i,4)}, v{KA[i%4]} offset:{(i//4)*8192}"
    def v_read(j): return [f"ds_read_b64_tr_b16 {ar(VF+4*j+2*v,2)}, v{VA[j]} offset:{v*8192}" for v in range(2)]
    def kv_step(n, extra, more=(), bar=True):
        slots = [((0, 3), (0, 4), (0, 6), (0, 8), (0, 12), (0, 13)), ((0, 15), (0, 16), (0, 17), (0, 19), (1, 0), (1, 1)),
                 ((1, 8), (1, 9), (1, 11), (1, 13), (1, 14), (1, 14)), ((1, 15), (1, 16), (1, 17), (1, 18), (1, 19), (1, 19))]
        dm = {}; f = {k: list(v) for k, v in extra.items()}
        for a, k, c, v, e, e2 in ([slots[0], slots[2]] if n == 2 else slots[:n]):
            f.setdefault(a, []).append(M0K); dm[k] = KLD; f.setdefault(c, []).append(M0V); dm[v] = VLD
            f.setdefault(e, []).append(ADV[0]); f.setdefault(c, []).append(ADV[1]); f.setdefault(e2, []).append(XR)
        return g_step(1, dm, f, more=more, bar=bar)
    kv_step(n14, ringf(1), bar=not EB1)
    if opt("sp", 0):
        setup_a()
        if opt("sp", 0) == 1: setup_b()
        setup_c()
    b.wait(lg=0, vm=2*n14)
    if opt("sta", 0) == 21: stamp(b, 15)
    kfirst = [f"ds_read_b128 {ar(K0F+4*d,4)}, v23 offset:{d*64}" for d in range(4)] + [k_read(i) for i in range(8)]
    more = kv_step(n15, {}, kfirst if NA >= 4 else [])
    need(b, [ar(AF[1], 16), ar(BF[1], 20)])
    b("s_barrier")
    if opt("sta", 0) == 20: stamp(b, 15)
    i0 = len(b.L)
    def pack(t):
        a = ACC + t * 4
        for i in range(4): b(f"v_mul_f32 v{a+i}, {sCc}, v{a+i}")
        b(f"v_cvt_pk_bf16_f32 v{a}, v{a}, v{a+1}\nv_cvt_pk_bf16_f32 v{a+1}, v{a+2}, v{a+3}")
    def qwr(t):
        d, q = divmod(t, 5); a = ACC + t * 4
        b(f"ds_write_b64 v21, {vr(a,2)} offset:{q*4096+(d>>1)*1024+(d&1)*512}")
    mf = g_mfmas(1)
    for i in range(25):
        if i < 20: b(mf[i])
        if i == 0: b(f"buffer_load_dwordx2 {vr(NONV,2)}, v{ZR}, {SD}, 0 offen sc0 sc1")
        elif i < 4:
            for k in range(2):
                if more: b(more.pop(0))
        if i in ((4, 14) if nq == 2 else (4, 11, 18)[:nq]): pair()
        if 0 <= i - 5 < 20: qwr(i - 5)
        if 0 <= i - 4 < 20: pack(i - 4)
    assert not more
    b(f"s_add_u32 {sT}, {sW1}, {(IENT-NS)*8192}\nv_add_u32 v21, {sT}, v{L16}")
    if NA >= 4: b.wait(lg=0)
    else: b.wait(lg=0, vm=min(2 * (NA + n14 + n15 + nq - 4), 2 * (n15 + nq)))
    b("s_barrier")
    print("q pack estimate", estimate(b.L[i0:]))
    stamp(b, 3)
    i0 = len(b.L)
    qr = [f"ds_read_b128 {ar(QF+(q*4+d)*4,4)}, v22 offset:{q*4096+d*1024}" for q in range(5) for d in range(4)]
    if NA < 4: qr = kfirst[:4] + qr + kfirst[4:]
    for i in range(10 if NA >= 4 else 13): b(qr.pop(0))
    if pro1: pair()
    sw = [f"ds_write_b128 v21, {ar(STG[i],4)} offset:{i*4096}" for i in range(2*NS)]
    neg = [f"v_sub_f32 v{NM+i}, 0, v{NM+i}" for i in range(20)]
    for t in range(20):
        q, d = divmod(t, 4)
        b(f"{MF} {vr(NM+4*q,4)}, {ar(K0F+4*d,4)}, {ar(QF+t*4,4)}, {'0' if d == 0 else vr(NM+4*q,4)}")
        if qr: b(qr.pop(0))
        if t == 13:
            need(b, [ar(QF, 80)])
            b("s_barrier")
        if t >= 14 and sw: b(sw.pop(0))
        if t >= 8: b(neg.pop(0))
    for i in range(pro2): pair()

    def col(n): return (0, 1, 0, 1, 2)[n % 5]
    def s_mfma(n, i):
        kt, d = i // 4, i % 4; q = n % 5
        dst = vr(SB[col(n)] + 4*kt, 4)
        return f"{MF} {dst}, {ar(KF+4*i,4)}, {ar(QF+(q*4+d)*4,4)}, {vr(NM+4*q,4) if d == 0 else dst}"
    def oreg(q, j): return vr(OK + (q*4+j)*4, 4) if j < 4 else ar(OS + (q*4+j-4)*4, 4)
    def p_mfma(n, j):
        q = n % 5
        if j == 8: return f"{MF} {vr(LA+4*q,4)}, {ar(ONES,4)}, {vr(PB[col(n)],4)}, {vr(LA+4*q,4)}"
        return f"{MF} {oreg(q,j)}, {ar(VF+4*j,4)}, {vr(PB[col(n)],4)}, {oreg(q,j)}"
    def v_exp(n, e): return f"v_exp_f32 v{SB[col(n)]+e}, v{SB[col(n)]+e}"
    def v_cvt(n, c): return f"v_cvt_pk_bf16_f32 v{PB[col(n)]+c}, v{SB[col(n)]+2*c}, v{SB[col(n)]+2*c+1}"
    NU = 40
    def slot(n, mem=None, sal=None, val=None):
        mem = mem or {}; sal = sal or {}; val = val or {}
        for p in range(17):
            if p < 16 and p % 2 == 0:
                if 0 <= n + 1 < NU: b(s_mfma(n + 1, p // 2))
            elif 0 <= n - 1 < NU: b(p_mfma(n - 1, p // 2))
            for s in mem.get(p, []): b(s)
            for s in sal.get(p, []): emit(s)
            if 0 <= n < NU:
                if p % 2 == 0 and p < 16: b(v_exp(n, p // 2))
                if p % 4 == 3: b(v_cvt(n, p // 4))
            for s in val.get(p, []): b(s)
    VR = [x for j in range(8) for x in v_read(j)]
    for i in range(8):
        b(s_mfma(0, i))
        if i >= 4: b(VR[i - 4])
        elif sw: b(sw.pop(0))
        b(neg.pop(0))
    assert not sw and not neg
    for i in range(pro3): pair()
    if opt("sp", 0) == 2: setup_b()
    if CLR == 1:
        for i in range(4): b(f"v_mov_b32 v{60+i}, -1")
        b(f"v_lshrrev_b32 v64, 1, v{L16}")
        for x in clears(60): b(x)
    b.label("L_p2entry")
    for i in range(8):
        b(s_mfma(1, i))
        b(VR[4 + i])
        if i >= 2 and i % 2 == 0: b(v_cvt(0, i // 2 - 1))
        b(v_exp(0, i))
    b(f"s_add_u32 m0, {sW1}, {(IENT%20)*8192-(4096 if NPI == 2 else 0)}\ns_add_u32 {sEv}, {sW1}, {LDS}\ns_mov_b32 {sKVs}, {IENT*4096}\n{XR}\ns_mov_b32 {sKVm}, 0\ns_mov_b32 {sCnt}, 0")
    b(v_cvt(0, 3))
    if TRACE == 2: b.raw("s_mov_b32 s100, 0")
    print("p2 prologue estimate", estimate(b.L[i0:]))
    stamp(b, 4)
    nd = lambda *ops: (lambda: need(b, ops))
    def merge(*ds):
        out = {}
        for d in ds:
            for k, v in d.items(): out.setdefault(k, []).extend(v)
        return out
    def body():
        INC = "s_add_u32 m0, m0, 4096"
        def ex():
            b("s_cbranch_scc1 L_tail")
            body.exit_state = b.state()
        m1 = {}; s1 = {}; m2 = {}; s2 = {}; m3 = {}; s3 = {}; s5 = {}
        WR = [f"s_cmp_eq_u32 m0, {sEv}", f"s_cselect_b32 m0, {sW1}, m0"]
        if NPI == 2:
            G = [int(x) for x in opt("g4", "1.5.9.13").split(".")]
            m4 = {G[0]: [KLD], G[1]: [VLD], G[2]: [KLD], G[3]: [VLD]}
            s4 = merge({G[0]-1: [INC]}, {G[1]-1: [INC]}, {G[1]+1: [XR]}, {G[2]-1: [INC]}, {G[3]-1: [INC]}, {G[3]+1: [XR]}, {G[0]+1: [ADV[1]]}, {G[2]+1: [ADV[1]]})
            v1 = {9: [va(KA[0]), va(KA[1])], 11: [va(KA[2])], 13: [va(KA[3]), va(VA[0])], 15: [va(VA[1])], 16: [va(VA[2]), va(VA[3])]}
            v2 = {3: [va(VA[4])], 11: [va(VA[5])]}
        elif NPI == 4:
            m4 = {1: [KLD], 5: [VLD], 9: [KLD], 13: [VLD]}; m2 = dict(m4)
            def sq(): return {2: [INC], 3: [ADV[1]], 6: [XR], 7: [INC, WR[0]], 8: [WR[1]], 10: [INC], 11: [ADV[1]]}
            s2 = sq(); s4 = sq()
            s3 = {0: [XR], 2: [INC], 8: [WR[0]], 10: [WR[1]]}; s5 = {0: [XR], 2: [INC], 4: [WR[0]], 6: [WR[1]]}
            v1 = {9: [va(KA[0]), va(KA[1])], 11: [va(KA[2])], 13: [va(KA[3]), va(VA[0])], 15: [va(VA[1])], 16: [va(VA[2]), va(VA[3])]}
            v2 = {3: [va(VA[4])], 11: [va(VA[5])]}
        else:
            m1 = {13: [KLD]}; s5 = {2: [INC], 4: [WR[0]], 6: [WR[1]], 0: [XR]}
            m2 = {5: [VLD], 13: [KLD]}; s2 = {0: [ADV[1]], 2: [INC], 6: [XR], 8: [INC], 10: [WR[0]], 12: [WR[1]]}
            m3 = {16: [VLD]}; s3 = {10: [INC], 8: [ADV[1]]}
            m4 = {9: [KLD], 16: [VLD]}; s4 = {0: [XR], 2: [INC], 4: [WR[0]], 6: [WR[1]], 12: [INC], 10: [ADV[1]]}
            v1 = {9: [va(KA[0]), va(KA[1])], 11: [va(KA[2])], 15: [va(KA[3])], 16: [va(VA[0]), va(VA[1])]}
            v2 = {1: [va(VA[2]), va(VA[3])], 3: [va(VA[4])], 11: [va(VA[5])]}
        if TOUCH == 1:
            assert NPI == 2
            m2[5] = [f"buffer_load_dword a{JUNK}, v{TCH}, {SW3}, {sT} offen"]
            s2 = {0: [f"s_cmp_lt_u32 {sCnt}, {TIT}"], 2: [f"s_cselect_b32 {sT}, {sKVm}, 0x40000000"], 6: [f"s_add_u32 {sKVm}, {sKVm}, {TL*128}"]}
        slot(1, merge({1: [VR[12]], 3: [VR[13]], 5: [VR[14]], 7: [VR[15]]}, m1),
             {0: [nd(ar(VF, 12))], 6: [nd(ar(VF, 24))], 12: [nd(ar(VF, 28))], 14: [nd(ar(VF, 32))],
              2: [f"s_add_u32 {sT2}, {sPB}, 32768"], 4: [f"s_cmp_ge_u32 {sT2}, {LDS}"], 8: [f"s_cselect_b32 {sT2}, 0, {sT2}"],
              9: [f"s_sub_u32 {sDelta}, {sT2}, {sPB}"], 10: [f"s_mov_b32 {sPB}, {sT2}"], 15: [f"s_cmp_eq_u32 {sCnt}, 7"],
              16: [ex]}, v1)
        slot(2, m2, merge(s2, {14: [f"s_cmp_eq_u32 {sCnt}, 6"]}), v2)
        b("s_cbranch_scc1 L_p2late")
        trace(b)
        b.raw(f"s_waitcnt vmcnt({min(opt('vb', 8), 2 * (IENT - 6)) if NPI == 4 else 5 if TOUCH == 1 or NPI == 3 else 4})")
        b.label("L_p2bar")
        if TRACE == 2: trace(b)
        b("s_barrier")
        trace(b)
        slot(3, merge({2*i+1: [k_read(i)] for i in range(8)}, m3),
             merge({6: [f"s_add_u32 {sCnt}, {sCnt}, 1"], 16 if NPI != 3 else 14: [nd(ar(KF, 16 if NPI != 3 else 12))]}, s3), {1: [va(VA[6])], 5: [va(VA[7])]})
        slot(4, m4, merge(s4, {3 if NPI != 4 else 4: [nd(ar(KF, 32))]}))
        slot(5, {1: VR[0:2], 3: [VR[2]], 5: [VR[3]], 7: [VR[4]], 9: VR[5:7], 11: [VR[7]], 13: VR[8:10], 15: [VR[10]], 16: [VR[11]]}, s5)
        b("s_branch L_p2")
        b.vm = []
    b.vm = []
    save = b.L; b.L = []
    body(); st1 = b.state(); t1 = b.L
    b.L = []; body(); st2 = b.state(); t2 = b.L
    assert st1[0] == st2[0]
    if not STAMPS: assert t1 == t2, "loop not steady"
    print("p2 body estimate", estimate(t2, verbose=VERB))
    b.L = save
    b.raw(f".p2align {opt('al', 3)}")
    b.label("L_p2")
    b.L += t2
    b.label("L_p2late")
    if TRACE == 2: trace(b)
    b.raw(f"s_waitcnt vmcnt({min(opt('vb', 8), 2 * (IENT - 6)) if NPI == 4 else 3 if NPI == 3 else 1 if TOUCH == 1 else 0})")
    WE = opt("we", 0)
    if WE:
        assert NPI == 2
        b(f"s_add_u32 m0, {sW4}, {S3[0]+20480}\ns_lshl_b32 {sWO}, {sHl}, 18")
        for x in DW3: b(x)
        b(f"s_add_u32 m0, {sW4}, {S3[1]+20480}\ns_add_u32 {sWO}, {sWO}, 0x20000")
        for x in DW3: b(x)
        b(f"s_mov_b32 m0, {sW1}")
    if TOUCH in (7, 8): b(f"buffer_load_dword a{JUNK}, v{TCH}, {SW3}, 0 offen")
    b("s_branch L_p2bar")
    b.label("L_tail")
    b.set_state(body.exit_state)
    b.vm = []
    b(f"s_mul_i32 {sT}, {sW}, 20480\nv_add_u32 v21, {sT}, v{L16}")
    b.raw("s_waitcnt vmcnt(0)")
    b("s_barrier")
    stamp(b, 5)
    i0 = len(b.L)
    EB = 65536; EXL = 81920 - EB; EXF = 87040 - EB
    LW, LO, LP, FW, FR = 3, 4, 5, 6, 7
    wr = lambda q: [f"ds_write_b128 v21, {ar(OS+(q*4+j)*4,4)} offset:{(q*4+j)*1024}" for j in range(4)]
    lw = lambda q: (lambda: b(f"ds_write_b32 v{LW}, v{LA+4*q} offset:{EXL+q*256}", f"L{q}"))
    RB = [64, 80, 64, 80, 24]
    rd = lambda q: [f"ds_read_b128 {vr(RB[q]+4*j,4)}, v22 offset:{(q*4+j)*1024}" for j in range(4)]
    LR = NM
    lr = lambda q: [f"ds_read_b32 v{LR+2*q}, v{LO} offset:{EXL+q*256}", f"ds_read_b32 v{LR+2*q+1}, v{LP} offset:{EXL+q*256}"]
    linv = lambda q: [f"v_add_f32 v{LR+2*q}, v{LR+2*q}, v{LR+2*q+1}", f"v_rcp_f32 v{LR+2*q}, v{LR+2*q}"]
    def nval(q, pr, packed):
        o = OK + (q*4+2*pr)*4; r = RB[q] + 8*pr
        if packed:
            out = [f"v_pk_add_f32 {vr(o+i,2)}, {vr(o+i,2)}, {vr(r+i,2)}" for i in range(0, 8, 2)]
            out += [f"v_pk_mul_f32 {vr(o+i,2)}, {vr(o+i,2)}, {vr(LR+2*q,2)} op_sel_hi:[1,0]" for i in range(0, 8, 2)]
        else:
            out = [f"v_add_f32 v{o+i}, v{o+i}, v{r+i}" for i in range(8)] + [f"v_mul_f32 v{o+i}, v{LR+2*q}, v{o+i}" for i in range(8)]
        return out + [f"v_cvt_pk_bf16_f32 v{o+i}, v{o+2*i}, v{o+2*i+1}" for i in range(4)]
    def nmem(q, pr):
        o = OK + (q*4+2*pr)*4
        vv, off = (L16, q * 1024) if q < 4 else (L16B, 0)
        return [f"buffer_store_dwordx4 {vr(o,4)}, v{vv}, {SO}, {sO1 if pr else sO0} offen offset:{off} {H1S}",
                f"ds_write_b128 v2, {vr(o,4)} offset:{pr*10240+q*1024}"]
    def chunks(lst, pos):
        n = -(-len(lst) // len(pos))
        return {p: lst[i*n:(i+1)*n] for i, p in enumerate(pos)}
    def meet(q):
        b.wait_tag(lgtag=f"L{q}")
        b("s_barrier")
    w = wr(0)
    slot(37, merge({5 + 2*i: [w[i]] for i in range(4)}, {} if WE else {1: DW3[0:2], 3: DW3[2:4], 13: DW3[0:2], 16: DW3[2:4]}),
         {0: [] if WE else [f"s_add_u32 m0, {sW4}, {S3[0]+20480}", f"s_lshl_b32 {sWO}, {sHl}, 18"],
          11: [] if WE else [f"s_add_u32 m0, {sW4}, {S3[1]+20480}", f"s_add_u32 {sWO}, {sWO}, 0x20000"],
          2: [f"s_xor_b32 {sT2}, {sW}, 2"], 3: [f"s_mul_i32 {sT}, {sT2}, 20480"], 4: [f"s_mul_i32 {sT3}, {sW}, 1280"],
          6: [f"s_add_u32 {sT3}, {sT3}, {EB}"], 8: [f"s_mul_i32 {sT2}, {sT2}, 1280"], 10: [f"s_add_u32 {sT2}, {sT2}, {EB}"],
          12: [f"s_mul_i32 {sMX}, {sKH}, {STSZ}"], 14: [f"s_lshl_b32 {sMW}, {sW}, 2"], 15: [lw(0)]},
         {3: ["v_lshlrev_b32 v23, 2, v1"], 5: [f"v_add_u32 v22, {sT}, v{L16}"], 9: [f"v_add_u32 v{LW}, {sT3}, v23"]})
    b(f"v_and_b32 v23, 60, v23\nv_add_u32 v{LO}, {sT3}, v23\nv_add_u32 v{LP}, {sT2}, v23\nv_add_u32 v2, {sMX}, v{XA3[0]}")
    meet(0)
    if opt("sta", 0) == 10: stamp(b, 15)
    r = lr(0) + rd(0); w = wr(1)
    slot(38, merge({1: r[0:2], 3: r[2:4], 5: r[4:6], 7: [w[0]], 9: [w[1]], 11: [w[2]], 13: [w[3]], 16: nmem(0, 0)}),
         {15: [lw(1)], 0: [f"s_add_u32 {sMW}, {sMW}, {EB}"]},
         merge({7: linv(0)}, chunks(nval(0, 0, False), [9, 11, 13, 15]), {16: nval(0, 1, False)}, {1: [f"v_mov_b32 v{FW}, {sMW}"], 5: [f"v_mov_b32 v{FR}, {EB}"]}))
    meet(1)
    if opt("sta", 0) == 11: stamp(b, 15)
    r = lr(1) + rd(1); w = wr(2)
    slot(39, merge({1: r[0:2] + nmem(0, 1)[:1], 3: r[2:4], 5: r[4:6], 7: [w[0]], 9: [w[1]], 11: [w[2]], 13: [w[3]], 16: nmem(1, 0)}, {15: nmem(0, 1)[1:]}),
         {15: [lw(2)]},
         merge({7: linv(1)}, chunks(nval(1, 0, False), [9, 11, 13, 15]), {16: nval(1, 1, True)}))
    meet(2)
    if opt("sta", 0) == 12: stamp(b, 15)
    r = lr(2) + rd(2); w = wr(3)
    slot(40, merge({1: r[0:2] + nmem(1, 1)[:1], 3: r[2:4], 5: r[4:6], 7: [w[0]], 9: [w[1]], 11: [w[2]], 13: [w[3]]},
                   {15: nmem(1, 1)[1:]}),
         {15: [lw(3)]}, {13: linv(2)})
    for x in nval(2, 0, True): b(x)
    for x in wr(4): b(x)
    lw(4)()
    b(nmem(2, 0)[0])
    b(f"v_add_f32 v8, v{LA}, v{LA+4}\nv_add_f32 v9, v{LA+8}, v{LA+12}\nv_add_f32 v8, v8, v{LA+16}\nv_add_f32 v8, v8, v9")
    thr = f32bits(2.0 ** 40) if not FORCE_SLOW else f32bits(-1.0)
    b(f"v_cmp_nge_f32 vcc, {thr}, v8")
    b(f"s_cmp_lg_u64 vcc, 0\ns_cselect_b32 {sT}, 1, 0\nv_mov_b32 v8, {sT}")
    b(f"ds_write_b32 v{FW}, v8 offset:{EXF}", "L5")
    for x in nval(2, 1, True): b(x)
    b(nmem(2, 1)[0])
    meet(5)
    if opt("sta", 0) == 13: stamp(b, 15)
    b(f"ds_read_b128 {vr(NM+12,4)}, v{FR} offset:{EXF}")
    for x in lr(3) + lr(4) + rd(3) + rd(4): b(x)
    b(nmem(2, 0)[1]); b(nmem(2, 1)[1])
    b(f"v_or_b32 v{NM+12}, v{NM+12}, v{NM+13}\nv_or3_b32 v{NM+12}, v{NM+12}, v{NM+14}, v{NM+15}")
    for x in linv(3) + linv(4): b(x)
    b(f"v_readfirstlane_b32 {sT}, v{NM+12}")
    b(f"s_andn2_b32 {sT}, {sT}, {sPass}\ns_cmp_lg_u32 {sT}, 0")
    b("s_cbranch_scc1 L_slow")
    if not opt("sta", 0): stamp(b, 15)
    for q in (3, 4):
        for pr in range(2):
            for x in nval(q, pr, True) + nmem(q, pr): b(x)
    b(f"s_mov_b32 {sRB}, {S3[0]}\ns_mov_b32 {sCnt}, 0\ns_mov_b32 {sDB}, {ST0}\ns_mov_b32 {sRdy}, 0\ns_mov_b32 {sEv}, {sW}")
    b(f"v_and_b32 v21, 7, v1\nv_lshlrev_b32 v21, 8, v21\nv_and_b32 v4, 3, v1\nv_mul_u32_u24 v4, {FS1 if SENT else 256}, v4\nv_lshrrev_b32 v5, 1, v{L16}")
    b.wait(lg=0, vm=10)
    print("tail estimate", estimate(b.L[i0:]))
    stamp(b, 6)
    b.vm = []
    if TRACE == 3: b.raw("s_mov_b32 s100, 0")
    f, g = first_fill(3)
    g[(0, 0)] = g[(0, 0)] + [f"s_lshr_b32 {sT3}, {sT}, 1"]
    g.update({(1, 2): f[(1, 2)], (1, 7): f[(1, 7)], (1, 9): f[(1, 10)], (1, 11): f[(1, 12)], (1, 13): f[(1, 15)]})
    LF = opt("lf", 1); LFL = opt("lfl", "sc1").replace("+", " ")
    FLG = f"buffer_load_dwordx2 v[22:23], v21, {SO}, {sF1} offen {H1L}"
    FLD = f"buffer_load_dwordx2 v[22:23], v21, {SO}, {sF1} offen offset:2048 {LFL}" if LF else FLG
    EARLY = opt("ep", 1)
    dm = dict(zip([(0, 1), (0, 2), (0, 3), (0, 4)], DW3))
    if EARLY: dm[(1, opt("epos", 19))] = FLD
    g_step(3, dm, g, first=True)
    b(f"s_mov_b32 {sSpin}, 0")
    b.raw(f"s_waitcnt vmcnt({4 + EARLY}) lgkmcnt(0)")
    b.lg = []
    b("s_branch L_non1")
    b.label("L_non")
    b.wait(vm=0)
    b.label("L_non1")
    b(f"v_readfirstlane_b32 s64, v{NONV}\nv_readfirstlane_b32 s65, v{NONV+1}")
    b("s_cmp_lg_u32 s64, 0")
    b("s_cbranch_scc1 L_nonok")
    b(f"buffer_load_dwordx2 {vr(NONV,2)}, v{ZR}, {SD}, 0 offen sc0 sc1")
    b(f"s_add_u32 {sSpin}, {sSpin}, 1\ns_cmp_lt_u32 {sSpin}, {SPIN}")
    b("s_cbranch_scc1 L_non")
    b.label("L_nonok")
    b.vm = []
    stamp(b, 7)
    b("s_barrier")
    b(f"s_cmp_lg_u32 {sW}, 0")
    b("s_cbranch_scc1 L_pubd")
    b(f"s_lshl_b32 {sT}, {sHl}, 8\ns_add_u32 {sT}, {sT}, {sF1}")
    b("s_mov_b64 exec, 1")
    if LF: b(f"buffer_store_dwordx2 {vr(NONV,2)}, v{ZR}, {SO}, {sT} offen offset:2048")
    if not LF or LF == 1: b(f"buffer_store_dwordx2 {vr(NONV,2)}, v{ZR}, {SO}, {sT} offen {H1F}")
    b("s_mov_b64 exec, -1")
    if EARLY:
        b.raw(f"s_waitcnt vmcnt({2 if LF == 1 else 1})")
        b("s_branch L_pubd1")
    b.label("L_pubd")
    if LF == 2:
        b(f"s_cmp_lg_u32 {sW}, 3")
        b("s_cbranch_scc1 L_pubd2")
        b(f"s_lshl_b32 {sT}, {sHl}, 8\ns_add_u32 {sT}, {sT}, {sF1}")
        b("s_mov_b64 exec, 1")
        b(f"buffer_store_dwordx2 {vr(NONV,2)}, v{ZR}, {SO}, {sT} offen {H1F}")
        b("s_mov_b64 exec, -1")
        b.raw("s_waitcnt vmcnt(1)")
        b("s_branch L_pubd1")
        b.label("L_pubd2")
    ALL = opt("all", 0)
    def test(back):
        b.raw(f"v_cmp_eq_u64 s[92:93], {sNon}, v[22:23]")
        b(f"s_or_b32 {sRdy}, {sRdy}, s92\ns_bitcmp1_b32 {sRdy}, {sT3}")
        b(f"s_cbranch_scc1 {back}")
    if EARLY:
        b.raw("s_waitcnt vmcnt(0)")
        b.label("L_pubd1")
        test("L_poll0ok")
    def gflag(lab):
        b(f"s_cmp_lg_u32 {sEv}, 0")
        b(f"s_cbranch_scc1 {lab}")
        b(f"s_lshl_b32 {sEv}, {sHl}, 8\ns_add_u32 {sEv}, {sEv}, {sF1}")
        b("s_mov_b64 exec, 1")
        b.raw(f"buffer_store_dwordx2 {vr(NONV,2)}, v{ZR}, {SO}, {sEv} offen {H1F}")
        b("s_mov_b64 exec, -1")
        b.label(lab)
    def poll1(lab, back):
        b(f"s_mov_b32 {sSpin}, 0")
        b.label(lab)
        for k in range(opt("nl", 6) if LF else 0):
            b.raw(FLD)
            b.raw("s_waitcnt vmcnt(0)")
            test(back)
            if opt("lsl", 2): b(f"s_sleep {opt('lsl', 2)}")
        if LF == 3 and lab == "L_poll0": gflag("L_gf0")
        b.raw(FLG)
        b.raw("s_waitcnt vmcnt(0)")
        test(back)
        if SLEEP and not LF: b(f"s_sleep {SLEEP}")
        b(f"s_add_u32 {sSpin}, {sSpin}, 1\ns_cmp_lt_u32 {sSpin}, {SPIN}")
        b(f"s_cbranch_scc1 {lab}")
    poll1("L_poll0", "L_poll0ok")
    b.label("L_poll0ok")
    stamp(b, 8)
    if LF == 3: gflag("L_gf1")
    b(f"s_mov_b32 m0, {sMX}\ns_and_b32 {sT}, s80, 15")
    for x in DX3[:4]: b(x)
    b(f"s_mov_b32 m0, {sMW}\ns_lshl_b32 {sWO}, {sT}, 17")
    b(DX3[4])
    if opt("peel1", 0):
        assert SIG3.startswith(("pair", "g40"))
        b(f"s_add_u32 m0, {sW4}, {S3[0]}\ns_mul_i32 {sXO}, {sT}, 20480")
        f1 = ringf(3)
        f1.update({(0, 6): ["s_lshr_b64 s[80:81], s[80:81], 4"], (0, 12): [f"s_add_u32 m0, {sM5}, {S3[0]}"], (0, 15): [f"s_add_u32 m0, {sW4}, {S3[0]+20480}"],
                   (1, 1): [f"s_mov_b32 {sDB}, {sRB}"], (1, 3): [f"s_mov_b32 {sRB}, {sT2}"], (1, 5): [f"s_add_u32 {sCnt}, {sCnt}, 1"]})
        f1[(0, 18)] = f1.pop((0, 14))
        dm = dict(zip([(0, 0), (0, 2), (0, 4), (0, 8), (0, 13), (0, 16), (0, 19), (1, 13), (1, 16)], DX3 + DW3))
        dm[(1, 18)] = FLD
        b.vm = []
        g_step(3, dm, f1, bar=False)
        b.raw("s_waitcnt vmcnt(10) lgkmcnt(0)")
        b.lg = []
    else:
        b.wait(lg=0)
    b.vm = []
    def sync3():
        b.wait(lg=0, vm=9)
        trace(b); b("s_barrier"); trace(b)
    f3 = loope(3, sync3) if EB3 else loopf(3)
    f3[(0, 13)] = [f"s_lshr_b32 {sT3}, {sT}, 1"]
    def chk():
        b("s_cbranch_scc1 L_wait1")
        b.label("L_wait1back")
    f3[(0, 17)] = f3[(0, 17)] + [f"s_bitcmp0_b32 {sRdy}, {sT3}", chk]
    if EB3 and opt("peel1", 0): b("s_barrier")
    b(f"s_add_u32 {sMX}, {sDB}, {sW4}")
    b.raw(f".p2align {opt('al', 3)}")
    b.label("L_p3")
    i0 = len(b.L)
    if len(AG) == 9:
        dg, ff = auto(3, AG, chk)
        g_step(3, dict(zip(dg, DW3 + DX3)), ff)
    else: g_step(3, dict(zip(DGE if EB3 else DG, DW3 + DX3)), f3, bar=not EB3)
    if not EB3: b.wait(lg=0, vm=9)
    b("s_cbranch_vccnz L_p3")
    print("p3 step estimate", estimate(b.L[i0:], verbose=VERB))
    b.vm = []
    stamp(b, 9)
    PFL = f"buffer_load_dwordx2 v[6:7], v4, {SO}, {sF2} offen {HLD}"
    AFX = lambda g: (AF[1], 160, 0, 16, 32)[g]
    BFX = lambda g: (BF[1], 176, 48, 196, 216)[g]
    def mm(g, d, q): return f"{MF} {vr(ACC+(d*5+q)*4,4)}, {ar(AFX(g)+4*d,4)}, {ar(BFX(g)+4*q,4)}, {vr(ACC+(d*5+q)*4,4)}"
    rf = ringf(3)
    for st in range(2):
        if st == 1 or not EB3:
            trace(b); b("s_barrier"); trace(b)
        pre = ([rf[(0, 7)], rf[(0, 9)], rf[(0, 10)], rf[(0, 11)]] if st == 0 else [[f"s_lshl_b32 {sT}, {sKq}, 8"], [f"s_add_u32 {sT}, {sT}, {sF2}"]])
        for u in range(2):
            g = 1 + 2*st + u
            A = lambda d: [f"ds_read_b64_tr_b16 {ar(AFX(g)+4*d+2*v,2)}, v{WA3[d]} offset:{u*8192+v*4096}" for v in range(2)]
            rdl = A(1) + [f"ds_read_b128 {ar(BFX(g)+4*q,4)}, v{XA3[u]} offset:{q*1024}" for q in range(5)] + A(2) + A(3) + A(0)
            upd = {} if st == 1 else ({8: XA3[0]} if u == 0 else {2: WA3[1], 7: XA3[1], 9: WA3[2], 11: WA3[3], 13: WA3[0]})
            for i in range(15):
                b(mm(g - 1, 1 + i // 5, i % 5))
                if rdl: b(rdl.pop(0))
                if pre:
                    for x in pre.pop(0): b(x)
                if i in upd: b(va(upd[i]))
                if i == 14 and not (st == 0 and u == 1): need(b, [ar(AFX(g)+4, 4), ar(BFX(g), 20)])
                if i == 3 and g > 1: need(b, [ar(AFX(g - 1), 16)])
        if st == 0: b.wait(lg=0, vm=0)
    stamp(b, 10)
    DF = opt("defer", 25)
    kept = [mm(g, 0, q) for g in range(5) for q in range(5)]
    for x in kept[:25 - DF]: b(x)
    mf = [mm(4, 1 + i // 5, i % 5) for i in range(15)] + kept[25 - DF:]
    PK = 104; RK = 144
    for i in range(40):
        if i < len(mf): b(mf[i])
        t = i - 6
        if 0 <= t < 15:
            d, q = 1 + t // 5, t % 5; pk = PK + (d-1)*12
            if q in (1, 3): b(f"buffer_store_dwordx4 {vr(pk+2*(q-1),4)}, v{L16}, {SO}, {sPs[d]} offen offset:{(q//2)*1024} {HST}")
            if q == 4: b(f"buffer_store_dwordx2 {vr(pk+8,2)}, v5, {SO}, {sPs[d]} offen offset:2048 {HST}")
        t = i - 5
        if 0 <= t < 15:
            d, q = 1 + t // 5, t % 5; pk = PK + (d-1)*12 + 2*q; a = ACC + (d*5+q)*4
            b(f"v_cvt_pk_bf16_f32 v{pk}, v{a}, v{a+1}\nv_cvt_pk_bf16_f32 v{pk+1}, v{a+2}, v{a+3}")
    if not SENT:
        b.wait(vm=0)
        stamp(b, 11)
        if not F2W:
            b("s_barrier")
            b(f"s_cmp_lg_u32 {sW}, 0")
            b("s_cbranch_scc1 L_wait2")
        b("s_mov_b64 exec, 1")
        b(f"buffer_store_dwordx2 {vr(NONV,2)}, v{ZR}, {SO}, {sT} offen {HST}")
        b("s_mov_b64 exec, -1")
        b.label("L_wait2")
        b(f"s_mov_b32 {sSpin}, 0")
        P2 = opt("pp2", 1)
        regs = ["v[6:7]", "v[8:9]", "v[10:11]"][:P2]
        ld = lambda r: b.raw(f"buffer_load_dwordx2 {r}, v4, {SO}, {sF2} offen {HLD}")
        for r in regs[1:]:
            ld(r); b(f"s_sleep {opt('psl', 3)}")
        b.label("L_poll3")
        for k in range(P2):
            ld(regs[k])
            b.raw(f"s_waitcnt vmcnt({P2-1})")
            b.raw(f"v_cmp_ne_u64 vcc, {sNon}, {regs[(k + 1) % P2]}")
            b("s_cbranch_vccz L_wait2back")
            if P2 == 1 and opt('sleep2', 4): b(f"s_sleep {opt('sleep2', 4)}")
        b(f"s_add_u32 {sSpin}, {sSpin}, 1\ns_cmp_lt_u32 {sSpin}, {SPIN}")
        b("s_cbranch_scc1 L_poll3")
        b.label("L_wait2back")
        stamp(b, 12)
    else: stamp(b, 11)
    b(f"s_mov_b32 {sSpin}, 0")
    if opt("pre2", 0): b(f"s_sleep {opt('pre2', 0)}")
    b.label("L_poll2")
    b.vm = []
    for h in range(3):
        for d in (1, 2, 3):
            pk = RK + (d-1)*12
            if h < 2: b(f"buffer_load_dwordx4 {vr(pk+4*h,4)}, v{L16}, {SO}, {sPl[d]} offen offset:{h*1024} {HLD}")
            else: b(f"buffer_load_dwordx2 {vr(pk+8,2)}, v5, {SO}, {sPl[d]} offen offset:2048 {HLD}")
    if SENT:
        rr = [RK + (d-1)*12 + 4*h + i for h in range(3) for d in (1, 2, 3) for i in range(4 if h < 2 else 2)]
        b(f"v_max_u32 v8, v{rr[0]}, v{rr[1]}")
        for i in range(2, 30, 2): b(f"v_max3_u32 v8, v8, v{rr[i]}, v{rr[i+1]}")
        b("v_cmp_eq_u32 vcc, -1, v8")
        b("s_cbranch_vccz L_poll2ok")
        if SLEEP: b(f"s_sleep {opt('sleep2', 4)}")
        b(f"s_add_u32 {sSpin}, {sSpin}, 1\ns_cmp_lt_u32 {sSpin}, {SPIN}")
        b("s_cbranch_scc1 L_poll2")
        b.label("L_poll2ok")
        stamp(b, 12)
    OFL = opt("ofl", "").replace("+", " ")
    for q in range(5):
        a = ACC + q * 4
        for d in (1, 2, 3):
            pk = RK + (d-1)*12 + 2*q
            for i in range(2):
                b(f"v_lshlrev_b32 v{a+20*d+2*i}, 16, v{pk+i}\nv_and_b32 v{a+20*d+2*i+1}, 0xffff0000, v{pk+i}")
        for i in (0, 2): b(f"v_pk_add_f32 {vr(a+i,2)}, {vr(a+i,2)}, {vr(a+20+i,2)}")
        for i in (0, 2): b(f"v_pk_add_f32 {vr(a+40+i,2)}, {vr(a+40+i,2)}, {vr(a+60+i,2)}")
        for i in (0, 2): b(f"v_pk_add_f32 {vr(a+i,2)}, {vr(a+i,2)}, {vr(a+40+i,2)}")
        b(f"v_cvt_pk_bf16_f32 v{a}, v{a}, v{a+1}\nv_cvt_pk_bf16_f32 v{a+1}, v{a+2}, v{a+3}")
        if opt("fake", 0) == 1: pass
        elif opt("fake", 0) == 2:
            if q == 0: b(f"s_lshl_b32 {sT}, {sH}, 2\ns_add_u32 {sT}, {sT}, {sW}\ns_mul_i32 {sT}, {sT}, 2560")
            b(f"buffer_store_dwordx2 {vr(a,2)}, v5, {SOUT}, {sT} offen offset:{q*512} {OFL}")
        else: b(f"buffer_store_dwordx2 {vr(a,2)}, v{OUTV}, {SOUT}, {sOut} offen {OFL}")
        if q < 4: b(f"s_add_u32 {sOut}, {sOut}, 32768")
    if STAMPS:
        stamp(b, 13)
        if not opt("gap", 0): b.wait(vm=0)
        stamp(b, 14)
        b(f"s_cmp_lg_u32 {sW}, 0")
        b("s_cbranch_scc1 L_nost")
        b(f"v_lshlrev_b32 v3, 2, v1\ns_lshl_b32 {sT}, s2, 7\ns_add_u32 {sT}, {sT}, {STAMP_OFF}\ns_mov_b32 exec_hi, 0")
        b(f"buffer_store_dword v254, v3, {SO}, {sT} offen")
        b("s_mov_b64 exec, -1")
        b.label("L_nost")
        b(f"v_lshlrev_b32 v3, 2, v1\ns_lshl_b32 {sT}, s2, 2\ns_add_u32 {sT}, {sT}, {sW}\ns_lshl_b32 {sT}, {sT}, 7\ns_add_u32 {sT}, {sT}, {STAMP_OFF + (2 << 20)}\ns_mov_b32 exec_hi, 0")
        b(f"buffer_store_dword v254, v3, {SO}, {sT} offen")
        b("s_mov_b64 exec, -1")
        if TRACE:
            b(f"s_lshl_b32 {sT}, s2, 2\ns_add_u32 {sT}, {sT}, {sW}\ns_lshl_b32 {sT}, {sT}, 9\ns_add_u32 {sT}, {sT}, {STAMP_OFF + (1 << 20)}")
            b(f"buffer_store_dword v0, v3, {SO}, {sT} offen")
    b.label("L_end")
    b("s_endpgm")

    b.label("L_wait1")
    b.lg = []; b.vm = []
    if opt("peel1", 0):
        b.raw("s_waitcnt vmcnt(4)")
        test("L_wait1back")
    poll1("L_poll1", "L_wait1back")
    b("s_branch L_wait1back")
    if SENT:
        b.label("L_wait2")
        b(f"s_mov_b32 {sSpin}, 0")
        b.label("L_poll3")
        b(PFL)
        b.wait(vm=0)
        b(f"v_cmp_ne_u64 vcc, {sNon}, v[6:7]")
        b("s_cbranch_vccz L_wait2back")
        b(f"s_sleep 4\ns_add_u32 {sSpin}, {sSpin}, 1\ns_cmp_lt_u32 {sSpin}, {SPIN}")
        b("s_cbranch_scc1 L_poll3")
        b("s_branch L_wait2back")

    EV = [[int(x) for x in e.split(".")] for e in opt("ev", "3.0,3.0,0.4").split(",")]
    assert sum(e[0] for e in EV) == NA and sum(e[1] for e in EV) == NS
    b.label("L_aux")
    rp = 0
    for k, (nd_, nr_) in enumerate(EV):
        b.lg = []; b.vm = []
        if k + 1 < len(EV):
            b(f"s_cmp_lg_u32 {sEv}, {k}")
            b(f"s_cbranch_scc1 L_aux{k+1}")
        for i in range(nd_): pair()
        for i in range(nr_):
            b(f"s_xor_b32 {sT}, {sRot}, {(IENT-NS+rp)*4096}")
            b(f"buffer_load_dwordx4 {ar(STG[2*rp],4)}, v{KVW}, {SK}, {sT} offen {KVFL}")
            b(f"buffer_load_dwordx4 {ar(STG[2*rp+1],4)}, v{KVW}, {SV}, {sT} offen {KVFL}")
            rp += 1
        b(f"s_add_u32 {sEv}, {sEv}, 1")
        if not opt("early", 0) and not opt("sp", 0): (setup_a, setup_b, setup_c)[k]()
        b.wait(lg=0, vm=9 + 2*(nd_ + nr_))
        b("s_branch L_auxback")
        if k + 1 < len(EV): b.label(f"L_aux{k+1}")

    b.label("L_slow")
    b.wait(lg=0, vm=0)
    b("s_barrier")
    b(f"s_mov_b32 {sPass}, 1")
    b("v_and_b32 v21, 15, v1\nv_lshlrev_b32 v21, 8, v21\nv_lshrrev_b32 v22, 4, v1\nv_lshlrev_b32 v22, 4, v22\nv_add_u32 v21, v21, v22")
    for q in range(5): b(f"v_mov_b32 v{72+q}, 0xff800000")
    b(f"s_mov_b32 {sCnt}, 0")
    b.label("L_slowloop")
    for d in range(4): b(f"buffer_load_dwordx4 {vr(24+4*d,4)}, v21, {SK}, {sCnt} offen offset:{d*64}")
    b.wait(vm=0)
    for q in range(5):
        for d in range(4):
            b(f"{MF} {vr(80+4*q,4)}, {vr(24+4*d,4)}, {ar(QF+(q*4+d)*4,4)}, {'0' if d == 0 else vr(80+4*q,4)}")
    for q in range(5):
        b(f"v_max3_f32 v{72+q}, v{72+q}, v{80+4*q}, v{81+4*q}\nv_max3_f32 v{72+q}, v{72+q}, v{82+4*q}, v{83+4*q}")
    b(f"s_add_u32 {sCnt}, {sCnt}, 4096\ns_cmp_lt_u32 {sCnt}, 131072")
    b("s_cbranch_scc1 L_slowloop")
    for sw_ in ("v_permlane16_swap_b32", "v_permlane32_swap_b32"):
        for q in range(5): b(f"v_mov_b32 v{64+q}, v{72+q}")
        for q in range(5): b(f"{sw_} v{72+q}, v{64+q}")
        for q in range(5): b(f"v_max_f32 v{72+q}, v{72+q}, v{64+q}")
    for q in range(5):
        for i in range(4): b(f"v_sub_f32 v{NM+4*q+i}, 0, v{72+q}")
    p2_addr()
    b(f"s_mov_b32 {sKVm}, {sW1}\ns_mov_b32 {sKVs}, 0\ns_mov_b32 {sKVx}, {sRot}")
    for z in ZEROS: b(z)
    b.label("L_slowkv")
    pair()
    b(f"s_cmp_lt_u32 {sKVs}, {IENT * 4096}")
    b("s_cbranch_scc1 L_slowkv")
    b.wait(vm=0)
    b("s_barrier")
    for i in range(8): b(k_read(i))
    for i in range(4): b(VR[i])
    for i in range(8): b(s_mfma(0, i))
    b("s_nop 7")
    b.label("L_last")
    b("s_branch L_p2entry")
    return b.L

def gen_probe(spec):
    i, ri, j, rj = spec.split(",")
    b = B()
    b.raw(".p2align 8"); b.raw(".type mha_probe_kernel,@function"); b.label("mha_probe_kernel")
    b("s_cmp_ge_u32 s2, 1"); b("s_cbranch_scc1 L3_end")
    b.raw("s_memrealtime s[16:17]")
    b.raw("s_load_dwordx2 s[4:5], s[0:1], 56"); b.raw("s_waitcnt lgkmcnt(0)")
    b("s_mov_b32 s6, 268435456\ns_mov_b32 s7, 0x20000")
    b(f"v_mul_u32_u24 v1, 512, v0\nv_lshrrev_b32 v4, 1, v0\nv_and_b32 v4, 3, v4\nv_lshlrev_b32 v4, 7, v4\nv_add_u32 v1, v1, v4\ns_mov_b32 s8, {STAMP_OFF}")
    b(f"buffer_load_dword v2, v1, s[4:7], s8 offen offset:{8*int(i)}")
    b(f"buffer_load_dword v3, v1, s[4:7], s8 offen offset:{8*int(j)}")
    b.wait(vm=0)
    b("v_readlane_b32 s9, v2, 0")
    b("s_sub_u32 s9, s9, 100000")
    b("v_subrev_u32 v2, s9, v2\nv_subrev_u32 v3, s9, v3")
    for v, r, acc in ((2, ri, "s10"), (3, rj, "s11")):
        b(f"s_mov_b32 {acc}, {'-1' if r == 'min' else '0'}")
        for l in range(64):
            b(f"v_readlane_b32 s12, v{v}, {l}")
            b(f"{dict(min='s_min_u32', max='s_max_u32', avg='s_add_u32')[r]} {acc}, {acc}, s12")
        if r == 'avg': b(f"s_lshr_b32 {acc}, {acc}, 3")
        else: b(f"s_lshl_b32 {acc}, {acc}, 3")
    if opt("abs", 0):
        b("s_lshr_b32 s10, s10, 3\ns_add_u32 s12, s10, s9\ns_mov_b32 s10, 10000")
        if opt("abs", 0) == 2:
            b(f"s_mov_b32 s8, {STAMP_OFF + (3 << 20)}\nv_mov_b32 v1, 0\nbuffer_load_dword v2, v1, s[4:7], s8 offen")
            b.wait(vm=0)
            b("v_readfirstlane_b32 s12, v2")
    else:
        if opt("gap", 0): b("s_sub_u32 s11, s16, s9\ns_lshl_b32 s11, s11, 3")
        b("s_sub_u32 s10, s11, s10\ns_min_u32 s10, s10, 100000")
        b.raw("s_memrealtime s[12:13]"); b.raw("s_waitcnt lgkmcnt(0)")
    b.label("L3_spin")
    b.raw("s_memrealtime s[14:15]"); b.raw("s_waitcnt lgkmcnt(0)")
    b("s_sub_u32 s14, s14, s12\ns_cmp_lt_u32 s14, s10")
    b("s_cbranch_scc1 L3_spin")
    b.label("L3_end")
    b("s_endpgm")
    if opt("abs", 0) == 2:
        b.raw(".p2align 8"); b.raw(".type mha_tiny_kernel,@function"); b.label("mha_tiny_kernel")
        b.raw("s_memrealtime s[8:9]")
        b.raw("s_load_dwordx2 s[4:5], s[0:1], 56"); b.raw("s_waitcnt lgkmcnt(0)")
        b("s_cmp_ge_u32 s2, 1"); b("s_cbranch_scc1 L4_end")
        b(f"s_mov_b32 s6, 268435456\ns_mov_b32 s7, 0x20000\ns_mov_b32 s10, {STAMP_OFF + (3 << 20)}\nv_mov_b32 v1, 0\nv_mov_b32 v2, s8")
        b("buffer_store_dword v2, v1, s[4:7], s10 offen")
        b.label("L4_end")
        b("s_endpgm")
    return b.L

def main():
    k, n = hazard_pass(gen(), verbose=VERB)
    head = ["""; Kernarg: x (8,160,1024) | k_cache, v_cache (8,32,512,128) | wq (1024,4096) | wo (4096,1024) | out | debug | ws, all bf16.
;  1. Q^T = wq_h^T x_b^T          LDS-DMA ring of 64-deep k stages, 16x16x32 MFMA, wave tile 64 d x 80 q
;     that carry a per-launch value published in d_debug; every wait is bounded.""",
            "; Written by the generator script dev/gen20.py (instruction placement, waits and hazard padding by that script).",
            "; @launch grid=(256,1,1) block=(256,1,1) lds=163840",
            '.amdgcn_target "amdgcn-amd-amdhsa--gfx950"', ".text", f".globl {NAME}"]
    tail = ['.section .rodata,"a"', ".p2align 6", f".amdhsa_kernel {NAME}", "  .amdhsa_next_free_vgpr 512", "  .amdhsa_next_free_sgpr 102",
            "  .amdhsa_accum_offset 256", "  .amdhsa_group_segment_fixed_size 0", "  .amdhsa_kernarg_size 64", "  .amdhsa_user_sgpr_count 2",
            "  .amdhsa_user_sgpr_kernarg_segment_ptr 1", "  .amdhsa_system_sgpr_workgroup_id_x 1", ".end_amdhsa_kernel"]
    if "probe" in P:
        k3, _ = hazard_pass(gen_probe(P["probe"]))
        k = k + k3
        head[2] = f"; @launch kernel={NAME} grid=(256,1,1) block=(256,1,1) lds=163840\n; @launch kernel=mha_probe_kernel grid=(1,1,1) block=(64,1,1) lds=0"
        head.append(".globl mha_probe_kernel")
        if opt("abs", 0) == 2:
            head[2] = "; @launch kernel=mha_tiny_kernel grid=(1,1,1) block=(64,1,1) lds=0\n" + head[2]
            head.append(".globl mha_tiny_kernel")
            tail += [".p2align 6", ".amdhsa_kernel mha_tiny_kernel", "  .amdhsa_next_free_vgpr 8", "  .amdhsa_next_free_sgpr 32",
                "  .amdhsa_accum_offset 8", "  .amdhsa_group_segment_fixed_size 0", "  .amdhsa_kernarg_size 64", "  .amdhsa_user_sgpr_count 2",
                "  .amdhsa_user_sgpr_kernarg_segment_ptr 1", "  .amdhsa_system_sgpr_workgroup_id_x 1", ".end_amdhsa_kernel"]
        tail += [".p2align 6", ".amdhsa_kernel mha_probe_kernel", "  .amdhsa_next_free_vgpr 8", "  .amdhsa_next_free_sgpr 32",
            "  .amdhsa_accum_offset 8", "  .amdhsa_group_segment_fixed_size 0", "  .amdhsa_kernarg_size 64", "  .amdhsa_user_sgpr_count 2",
            "  .amdhsa_user_sgpr_kernarg_segment_ptr 1", "  .amdhsa_system_sgpr_workgroup_id_x 1", ".end_amdhsa_kernel"]
    if opt("tiny", 0):
        b = B()
        b.raw(".p2align 8"); b.raw(".type mha_tiny_kernel,@function"); b.label("mha_tiny_kernel")
        b.raw("s_memrealtime s[8:9]")
        b.raw("s_load_dwordx2 s[4:5], s[0:1], 56"); b.raw("s_waitcnt lgkmcnt(0)")
        b(f"s_mov_b32 s6, 268435456\ns_mov_b32 s7, 0x20000\ns_mov_b32 s10, {STAMP_OFF + (3 << 20)}\nv_mov_b32 v1, 0\nv_mov_b32 v2, s8\nv_mov_b32 v3, s9")
        b("buffer_store_dwordx2 v[2:3], v1, s[4:7], s10 offen")
        b("s_endpgm")
        k = k + b.L
        head[2] = f"; @launch kernel={NAME} grid=(256,1,1) block=(256,1,1) lds=163840\n; @launch kernel=mha_tiny_kernel grid=(1,1,1) block=(64,1,1) lds=0"
        head.append(".globl mha_tiny_kernel")
        tail += [".p2align 6", ".amdhsa_kernel mha_tiny_kernel", "  .amdhsa_next_free_vgpr 8", "  .amdhsa_next_free_sgpr 32",
            "  .amdhsa_accum_offset 8", "  .amdhsa_group_segment_fixed_size 0", "  .amdhsa_kernarg_size 64", "  .amdhsa_user_sgpr_count 2",
            "  .amdhsa_user_sgpr_kernarg_segment_ptr 1", "  .amdhsa_system_sgpr_workgroup_id_x 1", ".end_amdhsa_kernel"]
    fmt = lambda l: l if l.endswith(":") or l.startswith((".", ";")) else "    " + l
    open(sys.argv[1], "w").write("\n".join(head + [fmt(l) for l in k] + tail) + "\n")
    print(f"nops inserted: {n}; lines {len(k)}")
main()
```

```python
import sys, math, struct
from asmlib import B, hazard_pass, need, estimate

P = dict(kv.split("=") for kv in sys.argv[2:])
def opt(k, d): return type(d)(P.get(k, d))
STAMPS = opt("stamps", 0); TRACE = opt("trace", 0); VERB = bool(opt("v", 0))
KVFL = opt("kvfl", "nt").replace("+", " ")
HST = opt("hst", "sc0+sc1").replace("+", " ")
HLD = opt("hld", "sc0+sc1").replace("+", " ")
H1S = opt("h1s", "sc0+sc1").replace("+", " "); H1F = opt("h1f", "sc0+sc1").replace("+", " "); H1L = opt("h1l", "sc0+sc1").replace("+", " ")
FORCE_SLOW = opt("slow", 0)
SIG = opt("sig", "g122"); SIG3 = opt("sig3", "g400040004"); AUXT = opt("auxt", "p0.2.4/1.3.5/1.2.6/0.3.7")
TL = opt("tl", 11); TIT = opt("tit", 6); THALF = opt("thalf", 1)

TOUCH = opt("touch", 7)
SLEEP = opt("sleep", 4); ONEPOLL = opt("onepoll", 1); PBF = opt("pbf", 1)
NAME = "standalone__mha_block_cached__near_ridge_kernel"
STAMP_OFF = 200 << 20; NST = 16
TIMER = "s_memtime" if STAMPS == 2 else "s_memrealtime"
PART = 12 << 20; PSL = 10240 if opt('pbf', 1) else 20480; FLG1 = PART + 64 * 16 * PSL + (2 << 20); FS1 = opt('fs1', 8448); FS2 = opt('fs2', 4352); FLG2 = FLG1 + (1 << 20); WSREC = FLG2 + (2 << 20)

def vr(a, n=1, k='v'): return f"{k}{a}" if n == 1 else f"{k}[{a}:{a+n-1}]"
def ar(a, n=1): return vr(a, n, 'a')
def f32bits(x): return "0x%08x" % struct.unpack("<I", struct.pack("<f", x))[0]

def stamp(b, i):
    if STAMPS and (not opt("light", 0) or i == 14 or (opt("light", 0) == 2 and i in (2, 5, 12)) or (opt('light', 0) == 3 and i in (4, 6, 12))):
        b.wait(lg=0)
        b.raw(f"{TIMER} s[96:97]"); b.raw("s_waitcnt lgkmcnt(0)")
        b.raw(f"v_writelane_b32 v254, s96, {2*i}"); b.raw(f"v_writelane_b32 v254, s97, {2*i+1}")
def trace(b):
    if TRACE:
        b.wait(lg=0)
        for s in ("s_memtime s[96:97]", "s_waitcnt lgkmcnt(0)", "s_sub_u32 s96, s96, s98", "s_mov_b32 s97, m0", "s_mov_b32 m0, s100",
                  "v_writelane_b32 v0, s96, m0", "s_add_u32 s100, s100, 1", "s_min_u32 s100, s100, 63", "s_mov_b32 m0, s97"): b.raw(s)

def order(kind, j):
    if kind == "seq": return list(range(16)), [2, 6, 10]
    if kind == "xor": return [t ^ j for t in range(16)], [4, 8, 12]
    if kind.startswith("g"):
        ramp = [int(c) for c in kind[1:]]
        O = [[] for _ in range(4)]; LD = [[] for _ in range(4)]; opened = {}; nxt = 0; turn = 0
        for t in range(16):
            n = min(ramp[t] if t < len(ramp) else 1, 16 - nxt)
            lead_cls = [(turn + i) % 4 for i in range(n)]; turn = (turn + n) % 4
            fresh = []
            for c in lead_cls:
                O[c].append(nxt); LD[c].append(t); opened[nxt] = t; fresh.append(nxt); nxt += 1
            k = 0
            for c in range(4):
                if c in lead_cls: continue
                old = [x for x in sorted(opened) if x not in O[c] and opened[x] < t]
                if old: O[c].append(old[0])
                else:
                    O[c].append(fresh[k % len(fresh)]); k += 1
        o = O[j]; assert sorted(o) == list(range(16)), o
        lead = [t for t in LD[j] if t >= 2][:3]
        while len(lead) < 3: lead.append(min(lead[-1] + 3, 15))
        return o, lead
    o = []; lead = []
    if kind == "rot":
        for t in range(16):
            if t == 0: o.append(j)
            elif t % 4 == j and t + 3 < 16: o.append(t + 3); lead.append(t)
            else: o.append([c for c in range(16) if c not in o and (c < 4 or (c - 3) < t) and not (c >= 4 and (c - 3) % 4 == j)][0])
    elif kind == "rot2":
        for t in range(16):
            if t == 0: o.append(0)
            elif t == 1: o.append(1 + j)
            elif (t - 1) % 4 == j and t + 3 < 16: o.append(t + 3); lead.append(t)
            else: o.append([c for c in range(16) if c not in o and (c < 5 or (c - 3) < t) and not (c >= 5 and (c - 4) % 4 == j)][0])
    assert sorted(o) == list(range(16)), o
    lead = [t for t in lead if t >= 2][:3]
    while len(lead) < 3: lead.append(lead[-1] + 2)
    return o, lead
def tables(kind):
    T = []
    for j in range(4):
        o, lead = order(kind, j)
        if AUXT.startswith("c"):
            off, base = int(AUXT[1]), int(AUXT[2])
            lead = [((j + off) % 4) + base + 4 * k + 2 for k in range(3)]
        elif AUXT.startswith("d"):
            sp, base = int(AUXT[1]), int(AUXT[2])
            lead = [base + (j * sp) // 4 + sp * k + 2 for k in range(3)]
        elif AUXT.startswith("p"):
            lead = [int(v) + 2 for v in AUXT[1:].split("/")[j].split(".")]
        elif AUXT != "lead": lead = [int(v) + 2 for v in AUXT.split(".")]
        if opt("sp", 0):
            ev = opt("ev", "2.0,3.0,1.2").split(",")
            lead = lead[opt("l0", 1):][:len(ev)] if ev != ["0.0"] else []
        val = sum(c << (4 * t) for t, c in enumerate(o))
        T.append((val & 0xffffffff, val >> 32, sum(1 << (t - 1) for t in lead)))
    return T

def order3(j, p):
    if SIG3.startswith("g"):
        ramp = [int(c) for c in SIG3[1:].rstrip("p")]
        PX = opt("px", 1); PS = opt("ps", 8)
        O = [[] for _ in range(4)]; opened = {}; nxt = 0; turn = 0
        for t in range(14):
            n = min(ramp[t] if t < len(ramp) else 1, 14 - nxt)
            lead_cls = [(turn + i) % 4 for i in range(n)]; turn = (turn + n) % 4
            fresh = []
            for c in lead_cls:
                O[c].append(nxt); opened[nxt] = t; fresh.append(nxt); nxt += 1
            k = 0
            for c in range(4):
                if c in lead_cls: continue
                old = [x for x in sorted(opened) if x not in O[c] and opened[x] < t]
                if PX: old.sort(key=lambda x: (x ^ c) if x < 4 else x)
                if old: O[c].append(old[0])
                else:
                    O[c].append(fresh[k % len(fresh)]); k += 1
        o = O[j]; assert sorted(o) == list(range(14)), o
        if p and SIG3.endswith("p"): o = [(c + PS) % 14 for c in o]
    elif SIG3 == "seq": o = list(range(14))
    elif SIG3.startswith("pair"):
        gap = int(SIG3[4:5] or 1)
        o = [2 * j, 2 * j + 1]
        lt = {8 + i: 2 + gap * i for i in range(6)}
        for t in range(2, 14):
            mine = [c for c in lt if lt[c] == t and (c - 8) % 4 == j]
            if mine: o.append(mine[0]); continue
            ok = [c for c in range(14) if c not in o and (c < 8 or (lt[c] < t - 1 and (c - 8) % 4 != j))]
            if not ok: ok = [c for c in range(14) if c not in o and not ((c - 8) % 4 == j and lt[c] > t)]
            ok.sort(key=lambda c: (c != (o[-1] ^ 1), c >= 8, (c - 2 * j) % 8 if c < 8 else c))
            o.append(ok[0])
        assert sorted(o) == list(range(14)), o
    else:
        o = []
        for t in range(14):
            if t == 0: o.append(j)
            elif t % 4 == j and t + 3 < 14: o.append(t + 3)
            else: o.append([c for c in range(14) if c not in o and (c < 4 or (c - 3) < t) and not (c >= 4 and (c - 3) % 4 == j)][0])
        assert sorted(o) == list(range(14))
        if p and SIG3 == "rotp": o = [(c + 7) % 14 for c in o]
    val = sum((c + 2) << (4 * t) for t, c in enumerate(o))
    return val & 0xffffffff, val >> 32
ROW1 = opt('row1', 1)
def gen():
    b = B()
    SX, SW, SK, SV, SO, SD = "s[4:7]", "s[8:11]", "s[12:15]", "s[16:19]", "s[20:23]", "s[24:27]"
    SOUT, SX3, SW3 = "s[68:71]", "s[72:75]", "s[76:79]"
    sW, sB, sH, sCnt = "s28", "s29", "s30", "s31"
    sRB, sDB, sDelta, sMask = "s32", "s33", "s34", "s35"
    sXO, sWO, sMX, sMW, sM5, sT, sT2, sT3 = "s36", "s37", "s38", "s39", "s40", "s41", "s42", "s43"
    sW4, sW1, sPB, sKVm, sKVs, sPass, sO0, sO1, sCls = "s44", "s45", "s46", "s47", "s48", "s49", "s50", "s51", "s52"
    sCc, sSpin, sQH, sKH = "s53", "s54", "s56", "s57"
    sBl, sHl, sKq, sEv = "s60", "s61", "s62", "s63"
    sKVx, sRot = "s55", "s66"
    sNon = "s[64:65]"
    sPs = [None, "s82", "s83", "s84"]; sPl = [None, "s85", "s86", "s87"]
    sF1, sOut, sRdy, sF2 = "s88", "s89", "s90", "s91"
    XA = [2, 3]; WA = [4, 5, 6, 7]; VB = [8, 9, 10, 11, 12]; VW = [13, 14, 15, 16]; KVW, NONV, L16 = 17, 18, 20
    ACC = 24; OK = 104; KA = [184, 185, 186, 187]; VA = list(range(188, 196)); NM = 196; LA = 216; L16B = 236; TCH = 237
    XA3 = [238, 239]; ZR = 240; WA3 = [244, 245, 246, 247]; VW3 = [248, 249, 250, 251]; VB3 = [252] * 4 + [253]; OUTV = 255
    SB = [24, 32, 40]; PB = [48, 52, 56]
    OS, QF, KF, VF, ONES, JUNK, K0F = 0, 80, 160, 192, 224, 228, 240
    STG = [VF + 4*i for i in range(8)] + [232, 236]
    AF = [80, 96]; BF = [112, 132]
    ST0 = 53248; STSZ = 36864; LDS = 163840; QEX = 122880
    S3 = [ST0 + STSZ, ST0 + 2*STSZ]
    FL = 256; SPIN = 100000
    MF = "v_mfma_f32_16x16x32_bf16"

    b.raw(".p2align 8")
    b.raw(f".type {NAME},@function")
    b.label(NAME)
    b("s_cmp_ge_u32 s2, 256")
    b("s_cbranch_scc1 L_end")
    b.track = False
    b("s_load_dwordx4 s[4:7], s[0:1], 0")
    b("s_load_dwordx4 s[8:11], s[0:1], 16")
    b("s_load_dwordx4 s[68:71], s[0:1], 40")
    b("s_load_dwordx2 s[76:77], s[0:1], 32")
    b("s_load_dwordx2 s[20:21], s[0:1], 56")
    b("s_memrealtime s[64:65]")
    if STAMPS: b.raw(f"{TIMER} s[94:95]")
    if TRACE: b.raw("s_memtime s[98:99]"); b.raw("s_mov_b32 s100, 0")
    b.track = True
    b("v_and_b32 v1, 63, v0\nv_lshrrev_b32 v21, 6, v0")
    b(f"s_and_b32 {sB}, s2, 1\ns_lshl_b32 {sB}, {sB}, 2\ns_lshr_b32 {sT}, s2, 3\ns_and_b32 {sBl}, {sT}, 3\ns_add_u32 {sB}, {sB}, {sBl}")
    b(f"v_readfirstlane_b32 {sW}, v21")
    b(f"s_lshr_b32 {sKq}, s2, 1\ns_and_b32 {sKq}, {sKq}, 3\ns_lshl_b32 {sH}, {sKq}, 3\ns_lshr_b32 {sHl}, {sT}, 2")
    RM = opt("rm", -1)
    if RM >= 0:
        b(f"s_add_u32 {sCls}, {sHl}, {RM}\ns_and_b32 {sCls}, {sCls}, 3\ns_and_b32 {sHl}, {sHl}, 4\ns_sub_u32 {sT2}, {sCls}, {sBl}\ns_and_b32 {sT2}, {sT2}, 3\ns_add_u32 {sHl}, {sHl}, {sT2}")
    else:
        b(f"s_add_u32 {sCls}, {sBl}, {sHl}\ns_and_b32 {sCls}, {sCls}, 3")
    b(f"s_add_u32 {sH}, {sH}, {sHl}")
    T = tables(SIG)
    b(f"s_mov_b32 s58, {T[0][0]}\ns_mov_b32 s59, {T[0][1]}\ns_mov_b32 {sMask}, {T[0][2]}")
    for j in (1, 2, 3):
        b(f"s_cmp_eq_u32 {sCls}, {j}\ns_cselect_b32 s58, {T[j][0]}, s58\ns_cselect_b32 s59, {T[j][1]}, s59\ns_cselect_b32 {sMask}, {T[j][2]}, {sMask}")
    if opt("xoff", 1) in (5, 6):
        b(f"s_and_b32 {sT2}, s2, 1\ns_lshl_b32 {sT2}, {sT2}, 1\ns_xor_b32 {sT2}, {sT2}, {sKq}")
        if opt("xoff", 1) == 6: b(f"s_lshl_b32 {sT3}, {sKq}, 1\ns_and_b32 {sT3}, {sT3}, 2\ns_xor_b32 {sT2}, {sT2}, {sT3}")
        b(f"s_mul_i32 {sT2}, {sT2}, 0x44444444\ns_xor_b32 s58, s58, {sT2}\ns_xor_b32 s59, s59, {sT2}")
    elif opt("xoff", 1):
        if opt("xoff", 1) == 1: b(f"s_xor_b32 {sT2}, s2, {sKq}")
        if opt("xoff", 1) == 2: b(f"s_lshr_b32 {sT2}, s2, 7\ns_xor_b32 {sT2}, {sT2}, s2")
        if opt("xoff", 1) == 3: b(f"s_lshr_b32 {sT2}, s2, 7\ns_xor_b32 {sT2}, {sT2}, s2\ns_xor_b32 {sT2}, {sT2}, {sKq}")
        if opt("xoff", 1) == 4: b(f"s_lshr_b32 {sT2}, s2, 7")
        b(f"s_bitcmp1_b32 {sT2}, 0\ns_cselect_b32 {sT2}, 0x88888888, 0\ns_xor_b32 s58, s58, {sT2}\ns_xor_b32 s59, s59, {sT2}")
    b(f"s_lshl_b32 {sW4}, {sW}, 12\ns_lshl_b32 {sW1}, {sW}, 10\ns_and_b32 {sQH}, {sW}, 1\ns_lshr_b32 {sKH}, {sW}, 1")
    if opt("ctouch", 2) == 2:
        b.raw("s_getpc_b64 s[92:93]")
        b.label("L_pc")
        b(f"s_lshr_b32 {sMW}, s2, 3\ns_lshl_b32 {sMW}, {sMW}, 2\ns_add_u32 {sMW}, {sMW}, {sW}\ns_lshl_b32 {sMW}, {sMW}, 7\ns_min_u32 {sMW}, {sMW}, L_last-L_pc")
        b(f"s_add_u32 s92, s92, {sMW}\ns_addc_u32 s93, s93, 0\nv_mov_b32 v24, s92\nv_mov_b32 v25, s93")
        b.raw(f"global_load_dword a{JUNK}, v[24:25], off")
    b("v_lshrrev_b32 v21, 4, v1")
    b("v_and_b32 v22, 7, v1\nv_xor_b32 v22, v22, v21\nv_lshlrev_b32 v22, 4, v22")
    b("v_lshrrev_b32 v23, 3, v1\nv_lshlrev_b32 v23, 11, v23\nv_add_u32 v22, v22, v23\nv_xor_b32 v23, 64, v22")
    b(f"s_lshl_b32 {sT}, {sW}, 16")
    for q in range(4):
        b(f"s_add_u32 {sT2}, {sT}, {q*(16384-1024)}\nv_add_u32 v{VB[q]}, {sT2}, v{23 if q & 1 else 22}")
    b(f"s_lshl_b32 {sT}, {sQH}, 6\nv_xor_b32 v{VB[4]}, {sT}, v22\ns_lshl_b32 {sT}, {sW}, 14\ns_add_u32 {sT}, {sT}, {16*16384}\nv_add_u32 v{VB[4]}, {sT}, v{VB[4]}")
    b("v_lshlrev_b32 v22, 1, v21\nv_and_b32 v23, 15, v1\nv_xor_b32 v22, v22, v23\nv_lshlrev_b32 v22, 4, v22")
    b(f"v_lshlrev_b32 v23, 13, v21\nv_add_u32 v23, v23, v22\nv_xor_b32 v{L16}, 128, v23")
    b(f"s_lshl_b32 {sT}, {sW}, 17")
    for q in range(4):
        b(f"s_add_u32 {sT2}, {sT}, {q*(32768-1024)}\nv_add_u32 v{VW[q]}, {sT2}, v{L16 if q & 2 else 23}")
    b(f"s_add_u32 {sM5}, {sW1}, 16384")
    b(f"s_lshl_b32 {sT}, {sB}, 5\ns_add_u32 {sT}, {sT}, {sH}\ns_lshl_b32 {sT}, {sT}, 17\ns_lshl_b32 {sT2}, {sH}, 8\ns_mul_i32 {sT3}, {sB}, 327680")
    b.raw("s_waitcnt lgkmcnt(0)")
    b(f"s_add_u32 s12, s6, {sT}\ns_addc_u32 s13, s7, 0")
    b(f"s_add_u32 s16, s8, {sT}\ns_addc_u32 s17, s9, 0")
    b(f"s_add_u32 s8, s10, {sT2}\ns_addc_u32 s9, s11, 0\ns_sub_u32 s10, 8388608, {sT2}\ns_mov_b32 s11, 0x20000")
    b(f"s_add_u32 s4, s4, {sT3}\ns_addc_u32 s5, s5, 0\ns_mov_b32 s6, 327680\ns_mov_b32 s7, 0x20000")
    def dma_lists(vw, sw, vb, sx, fl=""):
        return ([f"buffer_load_dwordx4 v{vw[q]}, {sw}, {sWO} offen offset:{q*1024} lds" for q in range(4)],
                [f"buffer_load_dwordx4 v{vb[q]}, {sx}, {sXO} offen offset:{q*1024} {fl} lds" for q in range(4)] +
                [f"buffer_load_dwordx4 v{vb[4]}, {sx}, {sXO} offen {fl} lds"])
    DW, DX = dma_lists(VW, SW, VB, SX)
    DW3, DX3 = dma_lists(VW3, SW3, VB3, SX3, H1L)
    def first_stage(st):
        base = ST0 + ((st+2)%3)*STSZ
        b(f"s_and_b32 {sT}, s58, 15\ns_add_u32 m0, {sW4}, {base+20480}\ns_lshl_b32 {sWO}, {sT}, 19")
        for x in DW: b(x)
        b(f"s_add_u32 m0, {sW4}, {base}\ns_lshl_b32 {sXO}, {sT}, 7")
        for x in DX[:4]: b(x)
    def first_stage_last(st):
        base = ST0 + ((st+2)%3)*STSZ
        b(f"s_add_u32 m0, {sM5}, {base}\ns_lshr_b64 s[58:59], s[58:59], 4")
        b(DX[4])
    if opt("sta", 0) == 1: stamp(b, 15)
    first_stage(0)
    if not opt("late5", 0): first_stage_last(0)
    if opt("sta", 0) == 2: stamp(b, 15)
    if STAMPS: b.raw("v_writelane_b32 v254, s94, 0"); b.raw("v_writelane_b32 v254, s95, 1")
    if opt("ctouch", 2) == 1:
        b.raw("s_getpc_b64 s[92:93]")
        b.label("L_pc")
        b(f"s_lshr_b32 {sMW}, s2, 3\ns_lshl_b32 {sMW}, {sMW}, 2\ns_add_u32 {sMW}, {sMW}, {sW}\ns_lshl_b32 {sMW}, {sMW}, 7\ns_min_u32 {sMW}, {sMW}, L_last-L_pc")
        b(f"s_add_u32 s92, s92, {sMW}\ns_addc_u32 s93, s93, 0\nv_mov_b32 v24, s92\nv_mov_b32 v25, s93")
        b.raw(f"global_load_dword a{JUNK}, v[24:25], off")
    b(f"s_mov_b32 {sRB}, {ST0 + 2*STSZ}\ns_mov_b32 {sCnt}, 0\ns_mov_b32 {sDB}, {ST0 + STSZ}\ns_mov_b32 {sEv}, 0")
    b("v_and_b32 v26, 15, v1\nv_lshrrev_b32 v27, 1, v26\nv_xor_b32 v27, v27, v21\nv_lshlrev_b32 v27, 4, v27\nv_lshlrev_b32 v25, 7, v26\nv_add_u32 v27, v27, v25")
    b(f"s_mul_i32 {sT}, {sQH}, 10240\ns_add_u32 {sT}, {sT}, {sRB}")
    for u in range(2): b(f"v_xor_b32 v{XA[u]}, {u*64}, v27\nv_add_u32 v{XA[u]}, {sT}, v{XA[u]}")
    b("v_lshrrev_b32 v30, 2, v1\nv_and_b32 v31, 7, v30\nv_and_b32 v26, 3, v30")
    b(f"s_lshl_b32 {sT}, {sKH}, 2\nv_xor_b32 v27, {sT}, v31\nv_lshlrev_b32 v27, 5, v27")
    b("v_lshlrev_b32 v25, 3, v21\nv_add_u32 v28, v25, v26\nv_lshlrev_b32 v28, 8, v28")
    b("v_and_b32 v29, 3, v1\nv_lshlrev_b32 v29, 3, v29\nv_add3_u32 v28, v28, v27, v29")
    b(f"s_add_u32 {sT}, {sRB}, 20480")
    for d in range(4): b(f"v_xor_b32 v{WA[d]}, {d*32}, v28\nv_add_u32 v{WA[d]}, {sT}, v{WA[d]}")
    b("v_lshlrev_b32 v23, 8, v21\nv_add_u32 v22, v22, v23")
    b(f"s_lshl_b32 {sT}, {sQH}, 7\nv_xor_b32 v{KVW}, {sT}, v22\nv_add_u32 v{KVW}, {sW1}, v{KVW}")
    ROT = opt("rot", 3)
    if ROT == 0: b(f"s_mov_b32 {sRot}, 0")
    if ROT == 1: b(f"s_lshr_b32 {sRot}, s2, 3\ns_lshl_b32 {sT}, s2, 2\ns_add_u32 {sRot}, {sRot}, {sT}\ns_and_b32 {sRot}, {sRot}, 31\ns_lshl_b32 {sRot}, {sRot}, 12")
    if ROT == 2: b(f"s_and_b32 {sRot}, {sH}, 31\ns_lshl_b32 {sRot}, {sRot}, 12")
    if ROT == 3: b(f"s_mul_i32 {sRot}, s2, 0x9E3779B1\ns_lshr_b32 {sRot}, {sRot}, 27\ns_lshl_b32 {sRot}, {sRot}, 12")
    b(f"s_mov_b32 {sKVm}, {sW1}\ns_mov_b32 {sKVs}, 0\ns_mov_b32 {sKVx}, {sRot}")
    b("s_mov_b32 s14, 131072\ns_mov_b32 s15, 0x20000\ns_mov_b32 s18, 131072\ns_mov_b32 s19, 0x20000")
    b(f"s_mov_b32 s22, {268435456 if STAMPS else WSREC}\ns_mov_b32 s23, 0x20000")
    b("s_mov_b32 s24, s70\ns_mov_b32 s25, s71\ns_mov_b32 s26, 256\ns_mov_b32 s27, 0x20000")
    b(f"s_add_u32 s68, s68, {sT3}\ns_addc_u32 s69, s69, 0\ns_mov_b32 s70, 327680\ns_mov_b32 s71, 0x20000")
    b(f"s_lshl_b32 {sT}, {sB}, 2\ns_add_u32 {sT}, {sT}, {sKq}\ns_mul_i32 {sT}, {sT}, 327680\ns_add_u32 s72, s20, {sT}\ns_addc_u32 s73, s21, 0\ns_mov_b32 s74, 327680\ns_mov_b32 s75, 0x20000")
    b(f"s_lshl_b32 {sT}, {sKq}, 13\ns_add_u32 {sT}, {sT}, {sHl}\ns_lshl_b32 {sT}, {sT}, 8\ns_add_u32 s76, s76, {sT}\ns_addc_u32 s77, s77, 0\ns_sub_u32 s78, 8388608, {sT}\ns_mov_b32 s79, 0x20000")
    if opt("sta", 0) == 3: stamp(b, 15)
    SENT = 0; F2W = opt("f2w", 0); CLR = 2

    def zero(r):
        big = int(r.split(":")[1][:-1]) - int(r.split("[")[1].split(":")[0]) == 15
        return f"{'v_mfma_f32_32x32x16_bf16' if big else MF} {r}, {vr(ZR,4)}, {vr(ZR,4)}, 0"
    ZEROS = [zero(vr(OK+16*i, 16)) for i in range(5)] + [zero(ar(OS+16*i, 16)) for i in range(5)] + [zero(vr(LA, 16)), zero(vr(LA+16, 4))]
    def p2_addr():
        b("v_lshrrev_b32 v21, 4, v1\nv_and_b32 v22, 7, v1\nv_lshlrev_b32 v22, 1, v22\nv_xor_b32 v22, v22, v21\nv_lshlrev_b32 v22, 4, v22")
        b("v_and_b32 v23, 15, v1\nv_lshlrev_b32 v23, 8, v23\nv_add_u32 v22, v22, v23")
        b(f"s_lshl_b32 {sT}, {sKH}, 14")
        for d in range(4): b(f"v_xor_b32 v{KA[d]}, {d*64}, v22\nv_add_u32 v{KA[d]}, {sT}, v{KA[d]}")
        b(f"v_lshrrev_b32 v21, 2, v1\nv_and_b32 v22, 7, v21\ns_lshl_b32 {sT2}, {sKH}, 2\nv_xor_b32 v22, {sT2}, v22\nv_lshlrev_b32 v22, 5, v22")
        b("v_lshlrev_b32 v21, 8, v21\nv_and_b32 v23, 3, v1\nv_lshlrev_b32 v23, 3, v23\nv_add3_u32 v22, v22, v21, v23")
        b(f"s_add_u32 {sT}, {sT}, 4096")
        for j in range(8): b(f"v_xor_b32 v{VA[j]}, {j*32}, v22\nv_add_u32 v{VA[j]}, {sT}, v{VA[j]}")
        b(f"s_mov_b32 {sPB}, 0")
    def spread(i0, extra):
        code = b.L[i0:]; b.L = b.L[:i0]
        step = max(1, len(code) // (len(extra) + 1))
        for i, ln in enumerate(code):
            if i % step == 0 and 1 <= i // step <= len(extra): b.L.append(extra[i // step - 1])
            b.L.append(ln)
    def setup_a():
        for i in range(4): b(f"v_mov_b32 v{ZR+i}, 0")
        b(f"v_lshlrev_b32 v{L16}, 4, v1\nv_add_u32 v{L16B}, 4096, v{L16}")
        i0 = len(b.L)
        p2_addr()
        b("v_mov_b32 v21, 0x3f803f80")
        if ROW1: b("v_and_b32 v22, 15, v1\nv_cmp_eq_u32 s[92:93], 0, v22\nv_cndmask_b32 v21, 0, v21, s[92:93]")
        for i in range(4): b(f"v_accvgpr_write_b32 a{ONES+i}, v21")
        b(f"s_mov_b32 {sPass}, 0\ns_mov_b32 {sCc}, {f32bits(math.log2(math.e) / math.sqrt(128.0))}")
        spread(i0, ZEROS[:6])
    def setup_b():
        i0 = len(b.L)
        b("v_lshrrev_b32 v21, 4, v1\nv_lshlrev_b32 v22, 1, v21\nv_and_b32 v23, 15, v1\nv_xor_b32 v22, v22, v23\nv_lshlrev_b32 v22, 4, v22")
        b(f"v_lshlrev_b32 v23, 11, v23\nv_lshlrev_b32 v{OUTV}, 3, v21\nv_add_u32 v{OUTV}, v{OUTV}, v23")
        b(f"v_lshlrev_b32 v23, 11, v21\nv_add_u32 v23, v23, v22\nv_xor_b32 v22, 128, v23\ns_lshl_b32 {sT}, {sW}, 15")
        for q in range(4):
            b(f"s_add_u32 {sT2}, {sT}, {q*(8192-1024)}\nv_add_u32 v{VW3[q]}, {sT2}, v{22 if q & 1 else 23}")
        b(f"v_add_u32 v{VB3[0]}, {sW4}, v{L16}\nv_add_u32 v{VB3[4]}, {sM5}, v{L16}")
        b(f"s_mul_i32 {sT}, {sQH}, 5120\ns_add_u32 {sT}, {sT}, {S3[0]}\nv_add_u32 v{XA3[0]}, {sT}, v{L16}\nv_add_u32 v{XA3[1]}, 10240, v{XA3[0]}")
        b(f"v_lshrrev_b32 v21, 2, v1\nv_and_b32 v22, 7, v21\ns_lshl_b32 {sT}, {sKq}, 1\ns_add_u32 {sT}, {sT}, {sKH}\nv_xor_b32 v22, {sT}, v22\nv_lshlrev_b32 v22, 5, v22")
        b("v_lshlrev_b32 v21, 8, v21\nv_and_b32 v23, 3, v1\nv_lshlrev_b32 v23, 3, v23\nv_add3_u32 v22, v22, v21, v23")
        for d in range(4): b(f"v_xor_b32 v{WA3[d]}, {d*64}, v22\nv_add_u32 v{WA3[d]}, {S3[0]+20480}, v{WA3[d]}")
        b(f"s_lshl_b32 {sOut}, {sT}, 5\ns_mul_i32 {sT2}, {sQH}, 163840\ns_add_u32 {sOut}, {sOut}, {sT2}\ns_lshl_b32 {sT3}, {sHl}, 8\ns_add_u32 {sOut}, {sOut}, {sT3}")
        b(f"s_mov_b32 s80, {order3(0,0)[0]}\ns_mov_b32 s81, {order3(0,0)[1]}")
        for bb in range(1, 8 if SIG3.endswith("p") else 4):
            b(f"s_cmp_eq_u32 {sB if SIG3.endswith('p') else sBl}, {bb}\ns_cselect_b32 s80, {order3(bb & 3, bb >> 2)[0]}, s80\ns_cselect_b32 s81, {order3(bb & 3, bb >> 2)[1]}, s81")
        b(f"s_mul_i32 {sT}, {sHl}, 0x22222222\ns_xor_b32 s80, s80, {sT}\ns_xor_b32 s81, s81, {sT}")
        if TOUCH == 1:
            if THALF: b(f"s_lshr_b32 {sT}, s2, 3\ns_lshl_b32 {sT}, {sT}, 1\ns_and_b32 {sT2}, s2, 1\ns_add_u32 {sT}, {sT}, {sT2}\ns_lshl_b32 {sT}, {sT}, 15")
            else: b(f"s_lshr_b32 {sT}, s2, 3\ns_lshl_b32 {sT}, {sT}, 16")
            b(f"s_sub_u32 {sT}, {sT}, {sT3}\ns_lshl_b32 {sT2}, {sW}, {13 if THALF else 14}\ns_add_u32 {sT}, {sT}, {sT2}")
            b(f"v_cmp_gt_u32 s[92:93], {TL}, v1\nv_lshlrev_b32 v21, 7, v1\nv_add_u32 v21, {sT}, v21\nv_mov_b32 v22, 0x40000000\nv_cndmask_b32 v{TCH}, v22, v21, s[92:93]")
        if TOUCH == 8:
            b(f"s_and_b32 {sT}, s80, 14\ns_lshl_b32 {sT}, {sT}, 17\ns_lshl_b32 {sT2}, {sW}, 16\ns_add_u32 {sT}, {sT}, {sT2}")
            b(f"v_lshrrev_b32 v21, 1, v1\nv_lshlrev_b32 v21, 11, v21\nv_and_b32 v22, 1, v1\nv_lshlrev_b32 v22, 7, v22\nv_add3_u32 v{TCH}, v21, v22, {sT}")
        if TOUCH == 7:
            b(f"s_and_b32 {sT}, s80, 15\ns_lshl_b32 {sT}, {sT}, 17\ns_lshl_b32 {sT2}, {sW}, 15\ns_add_u32 {sT}, {sT}, {sT2}")
            b(f"v_lshrrev_b32 v21, 1, v1\nv_lshlrev_b32 v21, 11, v21\nv_and_b32 v22, 1, v1\nv_lshlrev_b32 v22, 7, v22\nv_add3_u32 v21, v21, v22, {sT}")
            b(f"v_lshrrev_b32 v22, 5, v1\nv_lshlrev_b32 v22, 30, v22\nv_add_u32 v{TCH}, v21, v22")
        spread(i0, ZEROS[6:])
    def setup_c():
        b(f"s_mul_i32 {sT}, {sB}, 1310720\ns_lshl_b32 {sT2}, {sH}, 1\ns_add_u32 {sT2}, {sT2}, {sKH}\ns_mul_i32 {sT2}, {sT2}, 20480\ns_add_u32 {sO0}, {sT}, {sT2}")
        b(f"s_mul_i32 {sT2}, {sQH}, 5120\ns_add_u32 {sO0}, {sO0}, {sT2}\ns_add_u32 {sO1}, {sO0}, 10240")
        b(f"s_lshl_b32 {sT}, {sB}, 2\ns_add_u32 {sT}, {sT}, {sKq}\ns_mul_i32 {sT}, {sT}, {FS1}\ns_add_u32 {sF1}, {sT}, {FLG1}")
        b(f"s_lshl_b32 {sT}, {sB}, 3\ns_add_u32 {sT}, {sT}, {sHl}\ns_lshl_b32 {sF2}, {sT}, 2")
        if F2W: b(f"s_add_u32 {sF2}, {sF2}, {sW}")
        b(f"s_mul_i32 {sF2}, {sF2}, {FS2}\ns_add_u32 {sF2}, {sF2}, {FLG2}")
        b(f"s_mul_i32 {sT}, {sT}, {16*PSL}\ns_mul_i32 {sT2}, {sW}, {PSL//4}\ns_add_u32 {sT}, {sT}, {sT2}\ns_add_u32 {sT}, {sT}, {PART}")
        for d in (1, 2, 3):
            b(f"s_xor_b32 {sT2}, {sKq}, {d}\ns_lshl_b32 {sT3}, {sT2}, 2\ns_add_u32 {sT3}, {sT3}, {sKq}\ns_mul_i32 {sT3}, {sT3}, {PSL}\ns_add_u32 {sPs[d]}, {sT}, {sT3}")
            b(f"s_lshl_b32 {sT3}, {sKq}, 2\ns_add_u32 {sT3}, {sT3}, {sT2}\ns_mul_i32 {sT3}, {sT3}, {PSL}\ns_add_u32 {sPl[d]}, {sT}, {sT3}")
        b("v_lshrrev_b32 v21, 5, v1\nv_lshlrev_b32 v21, 8, v21\nv_and_b32 v22, 15, v1\nv_lshlrev_b32 v22, 4, v22\nv_lshrrev_b32 v23, 1, v1\nv_and_b32 v23, 8, v23\nv_add3_u32 v21, v21, v22, v23")
        b(f"s_mul_i32 {sT2}, {sQH}, 20480\ns_add_u32 {sT2}, {sT2}, {QEX}\nv_add_u32 v22, {sT2}, v{L16}\ns_lshl_b32 {sT3}, {sKH}, 11\ns_add_u32 {sT2}, {sT2}, {sT3}\nv_add_u32 v21, {sT2}, v21")
        b("v_and_b32 v23, 48, v1")

    if opt("early", 0):
        setup_a(); setup_b(); setup_c()
    first_stage(1); first_stage_last(1)
    for r in [L16B, TCH, ZR, OUTV] + VW3 + [VB3[0], VB3[4]]: b(f"v_mov_b32 v{r}, 0")
    b(f"s_or_b32 {sT}, s2, {sW}\ns_cmp_lg_u32 {sT}, 0")
    b("s_cbranch_scc1 L_nonon")
    b(f"s_or_b32 s64, s64, 1\nv_mov_b32 v24, s64\nv_mov_b32 v25, s65")
    b(f"buffer_store_dwordx2 v[24:25], v{ZR}, {SD}, 0 offen sc0 sc1")
    b.label("L_nonon")
    b.vm = []
    b.raw("s_waitcnt vmcnt(9)")
    stamp(b, 1)

    def g_mfmas(buf, dord=(0, 1, 2, 3), c0=False):
        return [f"{MF} {vr(ACC+(d*5+q)*4,4)}, {ar(AF[buf]+4*d,4)}, {ar(BF[buf]+4*q,4)}, {'0' if c0 else vr(ACC+(d*5+q)*4,4)}" for d in dord for q in range(5)]
    def emit(x):
        if callable(x): x()
        else: b(x)
    def g_step(ph, dm, fill, first=False, more=(), bar=True, last=20):
        if bar:
            trace(b); b("s_barrier"); trace(b)
        vs, qs = ((1024, 2048), (4096, 1024))[ph == 3]
        xa, wa = (XA, WA) if ph == 1 else (XA3, WA3)
        more = list(more)
        for u in range(2):
            A = lambda d: [f"ds_read_b64_tr_b16 {ar(AF[u]+4*d+2*v,2)}, v{wa[d]} offset:{u*8192+v*vs}" for v in range(2)]
            rd = A(0) + [f"ds_read_b128 {ar(BF[u]+4*q,4)}, v{xa[u]} offset:{q*qs}" for q in range(5)] + A(1) + A(2) + A(3)
            mf = g_mfmas(u ^ 1, c0=first)
            if first and u == 0:
                for s in rd: b(s)
                rd = []
            for i in range(20 if u == 0 else last):
                if not (first and u == 0): b(mf[i])
                if (u, i) in dm: b(dm[(u, i)])
                elif rd: b(rd.pop(0))
                elif more: b(more.pop(0))
                for s in fill.get((u, i), []): emit(s)
                pad = opt(f"pad{ph}", 0)
                if pad and not first and i < 12 and fill.get((u, i)) and (u, i) not in dm:
                    g_step.cnt += pad
                    if g_step.cnt >= 16:
                        g_step.cnt -= 16; b("s_nop 1")
                if u == 0 and i == 18: need(b, [ar(AF[0], 8), ar(BF[0], 20)])
                if u == 1 and i == 4: need(b, [ar(AF[0], 16)])
            assert not rd
        return more
    g_step.cnt = 0
    va = lambda r: f"v_add_u32 v{r}, {sDelta}, v{r}"
    def ringf(ph):
        xa, wa = (XA, WA) if ph == 1 else (XA3, WA3)
        return {(0, 7): [f"s_add_u32 {sT2}, {sRB}, {STSZ}"], (0, 9): [f"s_cmp_ge_u32 {sT2}, {LDS}"], (0, 10): [f"s_cselect_b32 {sT2}, {ST0}, {sT2}"],
                (0, 11): [f"s_sub_u32 {sDelta}, {sT2}, {sRB}"], (0, 14 if not opt("dg", 0) else 12): [va(xa[0])],
                (1, 2): [va(wa[0])], (1, 7): [va(xa[1])], (1, 10): [va(wa[1])], (1, 12): [va(wa[2])], (1, 15): [va(wa[3])]}
    DG = [(0, 4), (0, 8), (0, 12), (0, 16), (0, 19), (1, 9), (1, 13), (1, 16), (1, 18)]
    if opt("dg", 0) == 1: DG = [(0, 13), (0, 14), (0, 15), (0, 16), (0, 19), (1, 9), (1, 13), (1, 16), (1, 18)]
    def loopf(ph):
        f = ringf(ph)
        sg = "s58" if ph == 1 else "s80"; sgp = "s[58:59]" if ph == 1 else "s[80:81]"
        f.update({(0, 0): [f"s_and_b32 {sT}, {sg}, 15"], (0, 1): [f"s_lshl_b32 {sWO}, {sT}, {19 if ph == 1 else 17}"],
                  (0, 2): [f"s_add_u32 {sMX}, {sDB}, {sW4}"], (0, 3): [f"s_add_u32 m0, {sMX}, 20480"],
                  (0, 5): [f"s_lshl_b32 {sXO}, {sT}, 7" if ph == 1 else f"s_mul_i32 {sXO}, {sT}, 20480"],
                  (0, 6): [f"s_lshr_b64 {sgp}, {sgp}, 4"], (0, 17): [f"s_mov_b32 m0, {sMX}"],
                  (1, 0): [f"s_add_u32 {sMW}, {sDB}, {sM5}"], (1, 1): [f"s_mov_b32 {sDB}, {sRB}"], (1, 3): [f"s_mov_b32 {sRB}, {sT2}"],
                  (1, 5): [f"s_add_u32 {sCnt}, {sCnt}, 1"], (1, 6): [f"s_cmp_lt_u32 {sCnt}, 14"], (1, 8): ["s_cselect_b64 vcc, -1, 0"],
                  (1, 17): [f"s_mov_b32 m0, {sMW}"] + ([f"s_bitcmp1_b32 {sMask}, {sCnt}"] if ph == 1 else [])})
        return f
    EB1 = opt("eb1", 0); EB3 = opt("eb3", 1); BP = opt("bp", 17)
    DGE = [(0, 4), (0, 8), (0, 12), (0, 16), (1, 13), (1, 14), (1, 15), (1, 16), (0, 19)]
    def loope(ph, sync):
        f = loopf(ph)
        f[(0, 15)] = f.pop((1, 0)); f[(0, 17)] = [f"s_mov_b32 m0, {sMW}"]
        f[(1, 9)] = f.pop((1, 10)); f[(1, 11)] = f.pop((1, 12)); f[(1, 10)] = [f"s_mov_b32 m0, {sMX}"]
        w3 = f.pop((1, 15)); f.pop((1, 17))
        if ph == 1: f[(1, 12)] = [f"s_bitcmp1_b32 {sMask}, {sCnt}"]
        f[(1, BP)] = [sync]
        f.setdefault((1, 19 if BP == 18 else 18), []).extend(w3)
        return f
    def auto(ph, gaps, hook=None):
        xa, wa = (XA, WA) if ph == 1 else (XA3, WA3)
        sg = "s58" if ph == 1 else "s80"; sgp = "s[58:59]" if ph == 1 else "s[80:81]"
        rp = [[g for g in range(20*u, 20*u + 20) if g not in gaps][:13] for u in range(2)]
        it = [(f"s_and_b32 {sT}, {sg}, 15", 0, gaps[0]-1), (f"s_lshl_b32 {sWO}, {sT}, {19 if ph == 1 else 17}", 0, gaps[0]-1),
              (f"s_add_u32 m0, {sMX}, 20480", 0, gaps[0]-1),
              (f"s_lshl_b32 {sXO}, {sT}, 7" if ph == 1 else f"s_mul_i32 {sXO}, {sT}, 20480", 0, gaps[4]-1)]
        if ph == 3: it.append((f"s_lshr_b32 {sT3}, {sT}, 1", 0, gaps[4]-2))
        it += [(f"s_lshr_b64 {sgp}, {sgp}, 4", 0, 39), (f"s_add_u32 {sT2}, {sRB}, {STSZ}", 0, 39), (f"s_cmp_ge_u32 {sT2}, {LDS}", 0, 39),
               (f"s_cselect_b32 {sT2}, {ST0}, {sT2}", 0, 39), (f"s_sub_u32 {sDelta}, {sT2}, {sRB}", 0, 39), (va(xa[0]), rp[0][6], 39),
               (f"s_mov_b32 m0, {sMX}", gaps[3]+1, gaps[4]-1)]
        if ph == 3: it += [(f"s_bitcmp0_b32 {sRdy}, {sT3}", 0, gaps[4]-1), (hook, 0, gaps[4]-1)]
        it += [(f"s_add_u32 {sMW}, {sDB}, {sM5}", 0, 39), (f"s_add_u32 {sMX}, {sRB}, {sW4}", 0, 39), (f"s_mov_b32 {sDB}, {sRB}", 0, 39), (va(wa[0]), rp[1][1], 39),
               (f"s_mov_b32 {sRB}, {sT2}", 0, 39), (f"s_add_u32 {sCnt}, {sCnt}, 1", 0, 39), (f"s_cmp_lt_u32 {sCnt}, 14", 0, 39),
               ("s_cselect_b64 vcc, -1, 0", 0, 39), (va(xa[1]), rp[1][6], 39), (va(wa[1]), rp[1][8], 39), (va(wa[2]), rp[1][10], 39)]
        late = [(f"s_mov_b32 m0, {sMW}", gaps[7]+1, gaps[8]-1), (va(wa[3]), rp[1][12], 39)]
        late.sort(key=lambda x: x[1])
        it += late
        if ph == 1: it.append((f"s_bitcmp1_b32 {sMask}, {sCnt}", 0, 39))
        cap = {g: (0 if g in gaps else 1 if g in rp[0] + rp[1] else 3) for g in range(40)}
        cap[18] -= 1; cap[24] -= 1
        fill = {}; g = 0
        for k, (ins, lo, hi) in enumerate(it):
            hi = min([hi] + [x[2] for x in it[k+1:]])
            g = max(g, lo)
            while g < hi and cap[g] <= 0: g += 1
            while g in gaps and g > max(lo, 0) and g >= hi: g -= 1
            assert g <= hi, (ins, g, hi)
            cap[g] -= 1
            fill.setdefault(divmod(g, 20), []).append(ins)
        return [divmod(g, 20) for g in gaps], fill
    AG = [int(x) for x in opt("ag", "0").split(".")]
    def first_fill(ph):
        f = loopf(ph); g = {}
        g[(0, 0)] = sum([f[(0, i)] for i in (0, 1, 2, 3, 5, 6, 7, 9, 10, 11, 14 if not opt('dg', 0) else 12)], []) + f[(1, 0)] + f[(1, 1)] + f[(1, 3)] + f[(1, 5)] + f[(1, 6)] + f[(1, 8)]
        return f, g
    f, g = first_fill(1)
    DG0 = [(1, 13), (1, 14), (1, 15), (1, 16)]
    g.update({(1, 2): f[(1, 2)], (1, 7): f[(1, 7)], (1, 9): f[(1, 10)], (1, 11): f[(1, 12)], (1, 17): f[(1, 15)] + f[(0, 17)]})
    if EB1:
        for i in range((BP + 1) * 4, 80): b(f"v_mov_b32 v{ACC+i}, 0")
        g[(1, 17)] = f[(0, 17)]
        g_step(1, dict(zip(DG0, DW)), g, first=True, last=BP + 1)
        for x in DX[:4]: b(x)
        b(f"s_mov_b32 m0, {sMW}\ns_bitcmp1_b32 {sMask}, {sCnt}"); b(DX[4])
        b("s_branch L_p1end")
        def sync1():
            b.label("L_p1end")
            b("s_cbranch_scc1 L_aux")
            b.wait(lg=0, vm=9)
            b.label("L_auxback")
            trace(b)
            b("s_barrier")
            trace(b)
        b.raw(f".p2align {opt('al', 3)}")
        b.label("L_p1")
        b.lg = []
        i0 = len(b.L)
        g_step(1, dict(zip(DGE, DW + DX)), loope(1, sync1), bar=False)
        b("s_cbranch_vccnz L_p1")
    else:
        g_step(1, dict(zip(DG0 + [(1, 18), (1, 19)], DW + DX[:2])), g, first=True)
        b(DX[2]); b(DX[3]); b(f"s_mov_b32 m0, {sMW}\ns_add_u32 {sMX}, {sDB}, {sW4}\ns_bitcmp1_b32 {sMask}, {sCnt}"); b(DX[4])
        b("s_branch L_p1end")
        b.raw(f".p2align {opt('al', 3)}")
        b.label("L_p1")
        b.lg = []
        i0 = len(b.L)
        if len(AG) == 9:
            dg, ff = auto(1, AG)
            g_step(1, dict(zip(dg, DW + DX)), ff)
        else: g_step(1, dict(zip(DG, DW + DX)), loopf(1))
        b.label("L_p1end")
        b("s_cbranch_scc1 L_aux")
        b.wait(lg=0, vm=9)
        b.label("L_auxback")
        b("s_cbranch_vccnz L_p1")
    print("gemm step estimate", estimate(b.L[i0:], verbose=VERB))
    b.vm = []
    stamp(b, 2)
    KLD = f"buffer_load_dwordx4 v{KVW}, {SK}, {sKVx} offen {KVFL} lds"
    VLD = f"buffer_load_dwordx4 v{KVW}, {SV}, {sKVx} offen {KVFL} lds"
    M0K = f"s_mov_b32 m0, {sKVm}"; M0V = f"s_add_u32 m0, m0, 4096"
    ADV = [f"s_add_u32 {sKVm}, {sKVm}, 8192", f"s_add_u32 {sKVs}, {sKVs}, 4096"]
    XR = f"s_xor_b32 {sKVx}, {sKVs}, {sRot}"
    def pair():
        b(M0K); b(ADV[0]); b(KLD); b(M0V); b(ADV[1]); b(VLD); b(XR)
    NS = opt("ns", 2)
    n14 = opt("n14", 2); n15 = opt("n15", 2); nq = opt("nq", 2); NPI = opt("npi", 2); KXL = [int(x) for x in opt("kxl", "3.4.5").split(".") if x] or list(range(opt("kx", 0))); KX = len(KXL); KSL = [int(x) for x in opt("ksl", "0.1.2.3.4.5").split(".")]; KS = len(KSL); IENT = opt("ient", 32 - 6 * NPI - KX + (6 - KS)); NA = opt("na", 6); npro = IENT - NA - NS - n14 - n15 - nq
    assert n14 <= 4 and n15 <= 4 and 0 <= nq <= 3 and 0 <= npro <= 5 and NA + n14 + n15 + nq <= 15 and NA + n14 <= 11
    pro1 = 1 if npro >= 1 and NA + n14 + n15 + nq < 15 else 0; pro2 = (npro - pro1 + 1) // 2; pro3 = npro - pro1 - pro2
    def k_read(i): return f"ds_read_b128 {ar(KF+4*i,4)}, v{KA[i%4]} offset:{(i//4)*8192}"
    def v_read(j): return [f"ds_read_b64_tr_b16 {ar(VF+4*j+2*v,2)}, v{VA[j]} offset:{v*8192}" for v in range(2)]
    def kv_step(n, extra, more=(), bar=True):
        slots = [((0, 3), (0, 4), (0, 6), (0, 8), (0, 12), (0, 13)), ((0, 15), (0, 16), (0, 17), (0, 19), (1, 0), (1, 1)),
                 ((1, 8), (1, 9), (1, 11), (1, 13), (1, 14), (1, 14)), ((1, 15), (1, 16), (1, 17), (1, 18), (1, 19), (1, 19))]
        dm = {}; f = {k: list(v) for k, v in extra.items()}
        for a, k, c, v, e, e2 in ([slots[0], slots[2]] if n == 2 else slots[:n]):
            f.setdefault(a, []).append(M0K); dm[k] = KLD; f.setdefault(c, []).append(M0V); dm[v] = VLD
            f.setdefault(e, []).append(ADV[0]); f.setdefault(c, []).append(ADV[1]); f.setdefault(e2, []).append(XR)
        return g_step(1, dm, f, more=more, bar=bar)
    kv_step(n14, ringf(1), bar=not EB1)
    if opt("sp", 0):
        setup_a()
        if opt("sp", 0) == 1: setup_b()
        setup_c()
    b.wait(lg=0, vm=2*n14)
    if opt("sta", 0) == 21: stamp(b, 15)
    kfirst = [f"ds_read_b128 {ar(K0F+4*d,4)}, v23 offset:{d*64}" for d in range(4)] + [k_read(i) for i in range(8)]
    more = kv_step(n15, {}, kfirst if NA >= 4 else [])
    need(b, [ar(AF[1], 16), ar(BF[1], 20)])
    b("s_barrier")
    if opt("sta", 0) == 20: stamp(b, 15)
    i0 = len(b.L)
    def pack(t):
        a = ACC + t * 4
        for i in range(4): b(f"v_mul_f32 v{a+i}, {sCc}, v{a+i}")
        b(f"v_cvt_pk_bf16_f32 v{a}, v{a}, v{a+1}\nv_cvt_pk_bf16_f32 v{a+1}, v{a+2}, v{a+3}")
    def qwr(t):
        d, q = divmod(t, 5); a = ACC + t * 4
        b(f"ds_write_b64 v21, {vr(a,2)} offset:{q*4096+(d>>1)*1024+(d&1)*512}")
    mf = g_mfmas(1)
    for i in range(25):
        if i < 20: b(mf[i])
        if i == 0: b(f"buffer_load_dwordx2 {vr(NONV,2)}, v{ZR}, {SD}, 0 offen sc0 sc1")
        elif i < 4:
            for k in range(2):
                if more: b(more.pop(0))
        if i in ((4, 14) if nq == 2 else (4, 11, 18)[:nq]): pair()
        if 0 <= i - 5 < 20: qwr(i - 5)
        if 0 <= i - 4 < 20: pack(i - 4)
    assert not more
    b(f"s_add_u32 {sT}, {sW1}, {(IENT-NS)*8192}\nv_add_u32 v21, {sT}, v{L16}")
    if NA >= 4: b.wait(lg=0)
    else: b.wait(lg=0, vm=min(2 * (NA + n14 + n15 + nq - 4), 2 * (n15 + nq)))
    b("s_barrier")
    print("q pack estimate", estimate(b.L[i0:]))
    stamp(b, 3)
    i0 = len(b.L)
    qr = [f"ds_read_b128 {ar(QF+(q*4+d)*4,4)}, v22 offset:{q*4096+d*1024}" for q in range(5) for d in range(4)]
    if NA < 4: qr = kfirst[:4] + qr + kfirst[4:]
    for i in range(10 if NA >= 4 else 13): b(qr.pop(0))
    if pro1: pair()
    sw = [f"ds_write_b128 v21, {ar(STG[i],4)} offset:{i*4096}" for i in range(2*NS)]
    neg = [f"v_sub_f32 v{NM+i}, 0, v{NM+i}" for i in range(20)]
    for t in range(20):
        q, d = divmod(t, 4)
        b(f"{MF} {vr(NM+4*q,4)}, {ar(K0F+4*d,4)}, {ar(QF+t*4,4)}, {'0' if d == 0 else vr(NM+4*q,4)}")
        if qr: b(qr.pop(0))
        if t == 13:
            need(b, [ar(QF, 80)])
            b("s_barrier")
        if t >= 14 and sw: b(sw.pop(0))
        if t >= 8: b(neg.pop(0))
    for i in range(pro2): pair()

    def col(n): return (0, 1, 0, 1, 2)[n % 5]
    def s_mfma(n, i):
        kt, d = i // 4, i % 4; q = n % 5
        dst = vr(SB[col(n)] + 4*kt, 4)
        return f"{MF} {dst}, {ar(KF+4*i,4)}, {ar(QF+(q*4+d)*4,4)}, {vr(NM+4*q,4) if d == 0 else dst}"
    def oreg(q, j): return vr(OK + (q*4+j)*4, 4) if j < 4 else ar(OS + (q*4+j-4)*4, 4)
    def p_mfma(n, j):
        q = n % 5
        if j == 8: return f"{MF} {vr(LA+4*q,4)}, {ar(ONES,4)}, {vr(PB[col(n)],4)}, {vr(LA+4*q,4)}"
        return f"{MF} {oreg(q,j)}, {ar(VF+4*j,4)}, {vr(PB[col(n)],4)}, {oreg(q,j)}"
    def v_exp(n, e): return f"v_exp_f32 v{SB[col(n)]+e}, v{SB[col(n)]+e}"
    def v_cvt(n, c): return f"v_cvt_pk_bf16_f32 v{PB[col(n)]+c}, v{SB[col(n)]+2*c}, v{SB[col(n)]+2*c+1}"
    NU = 40
    def slot(n, mem=None, sal=None, val=None):
        mem = mem or {}; sal = sal or {}; val = val or {}
        for p in range(17):
            if p < 16 and p % 2 == 0:
                if 0 <= n + 1 < NU: b(s_mfma(n + 1, p // 2))
            elif 0 <= n - 1 < NU: b(p_mfma(n - 1, p // 2))
            for s in mem.get(p, []): b(s)
            for s in sal.get(p, []): emit(s)
            if 0 <= n < NU:
                if p % 2 == 0 and p < 16: b(v_exp(n, p // 2))
                if p % 4 == 3: b(v_cvt(n, p // 4))
            for s in val.get(p, []): b(s)
    VR = [x for j in range(8) for x in v_read(j)]
    for i in range(8):
        b(s_mfma(0, i))
        if i >= 4: b(VR[i - 4])
        elif sw: b(sw.pop(0))
        b(neg.pop(0))
    assert not sw and not neg
    for i in range(pro3): pair()
    if opt("sp", 0) == 2: setup_b()
    if CLR == 1:
        for i in range(4): b(f"v_mov_b32 v{60+i}, -1")
        b(f"v_lshrrev_b32 v64, 1, v{L16}")
        for x in clears(60): b(x)
    b.label("L_p2entry")
    for i in range(8):
        b(s_mfma(1, i))
        b(VR[4 + i])
        if i >= 2 and i % 2 == 0: b(v_cvt(0, i // 2 - 1))
        b(v_exp(0, i))
    b(f"s_add_u32 m0, {sW1}, {(IENT%20)*8192-(4096 if NPI == 2 else 0)}\ns_add_u32 {sEv}, {sW1}, {LDS}\ns_mov_b32 {sKVs}, {IENT*4096}\n{XR}\ns_mov_b32 {sKVm}, 0\ns_mov_b32 {sCnt}, 0")
    b(v_cvt(0, 3))
    if TRACE == 2: b.raw("s_mov_b32 s100, 0")
    print("p2 prologue estimate", estimate(b.L[i0:]))
    stamp(b, 4)
    nd = lambda *ops: (lambda: need(b, ops))
    def merge(*ds):
        out = {}
        for d in ds:
            for k, v in d.items(): out.setdefault(k, []).extend(v)
        return out
    RX = opt("rx", 6) if NPI == 2 else 0
    for s_ in range(5): assert not RX or 2 * (IENT + 2 * s_ + len([l for l in KXL if l <= s_])) - RX >= 8 * (s_ + 2)
    def body():
        INC = "s_add_u32 m0, m0, 4096"
        def ex():
            b("s_cbranch_scc1 L_tail")
            body.exit_state = b.state()
        m1 = {}; s1 = {}; m2 = {}; s2 = {}; m3 = {}; s3 = {}; s5 = {}
        WR = [f"s_cmp_eq_u32 m0, {sEv}", f"s_cselect_b32 m0, {sW1}, m0"]
        if NPI == 2:
            G = [int(x) for x in opt("g4", "1.5.9.13").split(".")]
            m4 = {G[0]: [KLD], G[1]: [VLD], G[2]: [KLD], G[3]: [VLD]}
            s4 = merge({G[0]-1: [INC]}, {G[1]-1: [INC]}, {G[1]+1: [XR]}, {G[2]-1: [INC]}, {G[3]-1: [INC]}, {G[3]+1: [XR]}, {G[0]+1: [ADV[1]]}, {G[2]+1: [ADV[1]]})
            v1 = {9: [va(KA[0]), va(KA[1])], 11: [va(KA[2])], 13: [va(KA[3]), va(VA[0])], 15: [va(VA[1])], 16: [va(VA[2]), va(VA[3])]}
            v2 = {3: [va(VA[4])], 11: [va(VA[5])]}
            if KX:
                s3 = {8: [INC], 10: [WR[0]], 12: [WR[1]]}
                s4 = {2: [INC], 4: [ADV[1]], 6: [XR], 7: [INC, WR[0]], 8: [WR[1]], 10: [INC], 12: [ADV[1]], 14: [XR]}
                def xt():
                    b("s_cbranch_scc1 L_xtra")
                    b.label("L_xtraback")
                XP = opt("xp", 1)
                s2 = {XP - 1: [f"s_bitcmp1_b32 {sum(1 << l for l in KXL)}, {sCnt}"], XP: [xt]}
                for s_ in range(6): assert IENT + 2 * s_ + len([l for l in KXL if l <= s_]) >= 4 * s_ + 10
        elif NPI == 4:
            m4 = {1: [KLD], 5: [VLD], 9: [KLD], 13: [VLD]}; m2 = dict(m4)
            def sq(): return {2: [INC], 3: [ADV[1]], 6: [XR], 7: [INC, WR[0]], 8: [WR[1]], 10: [INC], 11: [ADV[1]]}
            s2 = sq(); s4 = sq()
            s3 = {0: [XR], 2: [INC], 8: [WR[0]], 10: [WR[1]]}; s5 = {0: [XR], 2: [INC], 4: [WR[0]], 6: [WR[1]]}
            v1 = {9: [va(KA[0]), va(KA[1])], 11: [va(KA[2])], 13: [va(KA[3]), va(VA[0])], 15: [va(VA[1])], 16: [va(VA[2]), va(VA[3])]}
            v2 = {3: [va(VA[4])], 11: [va(VA[5])]}
        else:
            m1 = {13: [KLD]}; s5 = {2: [INC], 4: [WR[0]], 6: [WR[1]], 0: [XR]}
            m2 = {5: [VLD], 13: [KLD]}; s2 = {0: [ADV[1]], 2: [INC], 6: [XR], 8: [INC], 10: [WR[0]], 12: [WR[1]]}
            m3 = {16: [VLD]}; s3 = {10: [INC], 8: [ADV[1]]}
            m4 = {9: [KLD], 16: [VLD]}; s4 = {0: [XR], 2: [INC], 4: [WR[0]], 6: [WR[1]], 12: [INC], 10: [ADV[1]]}
            if KS < 6:
                def cond(lab, ins):
                    def f():
                        b(f"s_cbranch_scc1 {lab}")
                        for x in ins: b(x)
                        b.label(lab)
                    return f
                C_ = f"s_bitcmp0_b32 {sum(2 << l for l in KSL)}, {sCnt}"
                for s_ in range(6): assert 2 * IENT + sum(6 if i in KSL else 4 for i in range(s_)) + 3 >= 8 * (s_ + 2) + 5
                m4 = {}
                s4 = {0: [XR], 4: [C_], 5: [cond("L_sk0", [INC, WR[0], WR[1]])], 8: [C_], 9: [cond("L_sk1", [KLD, INC, ADV[1]])],
                      14: [C_], 16: [cond("L_sk2", [VLD])]}
            v1 = {9: [va(KA[0]), va(KA[1])], 11: [va(KA[2])], 15: [va(KA[3])], 16: [va(VA[0]), va(VA[1])]}
            v2 = {1: [va(VA[2]), va(VA[3])], 3: [va(VA[4])], 11: [va(VA[5])]}
        if TOUCH == 1:
            assert NPI == 2
            m2[5] = [f"buffer_load_dword a{JUNK}, v{TCH}, {SW3}, {sT} offen"]
            s2 = {0: [f"s_cmp_lt_u32 {sCnt}, {TIT}"], 2: [f"s_cselect_b32 {sT}, {sKVm}, 0x40000000"], 6: [f"s_add_u32 {sKVm}, {sKVm}, {TL*128}"]}
        slot(1, merge({1: [VR[12]], 3: [VR[13]], 5: [VR[14]], 7: [VR[15]]}, m1),
             {0: [nd(ar(VF, 12))], 6: [nd(ar(VF, 24))], 12: [nd(ar(VF, 28))], 14: [nd(ar(VF, 32))],
              2: [f"s_add_u32 {sT2}, {sPB}, 32768"], 4: [f"s_cmp_ge_u32 {sT2}, {LDS}"], 8: [f"s_cselect_b32 {sT2}, 0, {sT2}"],
              9: [f"s_sub_u32 {sDelta}, {sT2}, {sPB}"], 10: [f"s_mov_b32 {sPB}, {sT2}"], 15: [f"s_cmp_eq_u32 {sCnt}, 7"],
              16: [ex]}, v1)
        slot(2, m2, merge(s2, {14: [f"s_cmp_ge_u32 {sCnt}, {5 if RX else 6}"]}), v2)
        b("s_cbranch_scc1 L_p2late")
        trace(b)
        b.raw(f"s_waitcnt vmcnt({min(opt('vb', 8), 2 * (IENT - 6)) if NPI == 4 else 5 if TOUCH == 1 or NPI == 3 else RX or 4})")
        b.label("L_p2bar")
        if TRACE == 2: trace(b)
        b("s_barrier")
        trace(b)
        slot(3, merge({2*i+1: [k_read(i)] for i in range(8)}, m3),
             merge({6: [f"s_add_u32 {sCnt}, {sCnt}, 1"], 16 if NPI != 3 else 14: [nd(ar(KF, 16 if NPI != 3 else 12))]}, s3), {1: [va(VA[6])], 5: [va(VA[7])]})
        slot(4, m4, merge(s4, {3 if NPI != 4 else 4: [nd(ar(KF, 32))]}))
        slot(5, {1: VR[0:2], 3: [VR[2]], 5: [VR[3]], 7: [VR[4]], 9: VR[5:7], 11: [VR[7]], 13: VR[8:10], 15: [VR[10]], 16: [VR[11]]}, s5)
        b("s_branch L_p2")
        b.vm = []
    b.vm = []
    save = b.L; b.L = []
    body(); st1 = b.state(); t1 = b.L
    b.L = []; body(); st2 = b.state(); t2 = b.L
    assert st1[0] == st2[0]
    if not STAMPS: assert t1 == t2, "loop not steady"
    print("p2 body estimate", estimate(t2, verbose=VERB))
    b.L = save
    b.raw(f".p2align {opt('al', 3)}")
    b.label("L_p2")
    b.L += t2
    b.label("L_p2late")
    if TRACE == 2: trace(b)
    if RX:
        b.raw("s_waitcnt vmcnt(4)")
        b(f"s_cmp_eq_u32 {sCnt}, 5")
        b("s_cbranch_scc1 L_p2bar")
    b.raw(f"s_waitcnt vmcnt({min(opt('vb', 8), 2 * (IENT - 6)) if NPI == 4 else 3 if NPI == 3 else 1 if TOUCH == 1 else 0})")
    WE = opt("we", 0)
    if WE:
        assert NPI == 2
        b(f"s_add_u32 m0, {sW4}, {S3[0]+20480}\ns_lshl_b32 {sWO}, {sHl}, 18")
        for x in DW3: b(x)
        b(f"s_add_u32 m0, {sW4}, {S3[1]+20480}\ns_add_u32 {sWO}, {sWO}, 0x20000")
        for x in DW3: b(x)
        b(f"s_mov_b32 m0, {sW1}")
    if TOUCH in (7, 8): b(f"buffer_load_dword a{JUNK}, v{TCH}, {SW3}, 0 offen")
    b("s_branch L_p2bar")
    b.label("L_tail")
    b.set_state(body.exit_state)
    b.vm = []
    b(f"s_mul_i32 {sT}, {sW}, 20480\nv_add_u32 v21, {sT}, v{L16}")
    b.raw("s_waitcnt vmcnt(0)")
    b("s_barrier")
    stamp(b, 5)
    i0 = len(b.L)
    EB = 65536; EXL = 81920 - EB; EXF = 87040 - EB
    LW, LO, LP, FW, FR = 3, 4, 5, 6, 7
    wr = lambda q: [f"ds_write_b128 v21, {ar(OS+(q*4+j)*4,4)} offset:{(q*4+j)*1024}" for j in range(4)]
    lw = lambda q: (lambda: b(f"ds_write_b32 v{LW}, v{LA+4*q} offset:{EXL+q*256}", f"L{q}"))
    RB = [64, 80, 64, 80, 24]
    rd = lambda q: [f"ds_read_b128 {vr(RB[q]+4*j,4)}, v22 offset:{(q*4+j)*1024}" for j in range(4)]
    LR = NM
    lr = lambda q: [f"ds_read_b32 v{LR+2*q}, v{LO} offset:{EXL+q*256}", f"ds_read_b32 v{LR+2*q+1}, v{LP} offset:{EXL+q*256}"]
    linv = lambda q: [f"v_add_f32 v{LR+2*q}, v{LR+2*q}, v{LR+2*q+1}", f"v_rcp_f32 v{LR+2*q}, v{LR+2*q}"]
    def nval(q, pr, packed):
        o = OK + (q*4+2*pr)*4; r = RB[q] + 8*pr
        if packed:
            out = [f"v_pk_add_f32 {vr(o+i,2)}, {vr(o+i,2)}, {vr(r+i,2)}" for i in range(0, 8, 2)]
            out += [f"v_pk_mul_f32 {vr(o+i,2)}, {vr(o+i,2)}, {vr(LR+2*q,2)} op_sel_hi:[1,0]" for i in range(0, 8, 2)]
        else:
            out = [f"v_add_f32 v{o+i}, v{o+i}, v{r+i}" for i in range(8)] + [f"v_mul_f32 v{o+i}, v{LR+2*q}, v{o+i}" for i in range(8)]
        return out + [f"v_cvt_pk_bf16_f32 v{o+i}, v{o+2*i}, v{o+2*i+1}" for i in range(4)]
    def nmem(q, pr):
        o = OK + (q*4+2*pr)*4
        vv, off = (L16, q * 1024) if q < 4 else (L16B, 0)
        return [f"buffer_store_dwordx4 {vr(o,4)}, v{vv}, {SO}, {sO1 if pr else sO0} offen offset:{off} {H1S}",
                f"ds_write_b128 v2, {vr(o,4)} offset:{pr*10240+q*1024}"]
    def chunks(lst, pos):
        n = -(-len(lst) // len(pos))
        return {p: lst[i*n:(i+1)*n] for i, p in enumerate(pos)}
    def meet(q):
        b.wait_tag(lgtag=f"L{q}")
        b("s_barrier")
    w = wr(0)
    slot(37, merge({5 + 2*i: [w[i]] for i in range(4)}, {} if WE else {1: DW3[0:2], 3: DW3[2:4], 13: DW3[0:2], 16: DW3[2:4]}),
         {0: [] if WE else [f"s_add_u32 m0, {sW4}, {S3[0]+20480}", f"s_lshl_b32 {sWO}, {sHl}, 18"],
          11: [] if WE else [f"s_add_u32 m0, {sW4}, {S3[1]+20480}", f"s_add_u32 {sWO}, {sWO}, 0x20000"],
          2: [f"s_xor_b32 {sT2}, {sW}, 2"], 3: [f"s_mul_i32 {sT}, {sT2}, 20480"], 4: [f"s_mul_i32 {sT3}, {sW}, 1280"],
          6: [f"s_add_u32 {sT3}, {sT3}, {EB}"], 8: [f"s_mul_i32 {sT2}, {sT2}, 1280"], 10: [f"s_add_u32 {sT2}, {sT2}, {EB}"],
          12: [f"s_mul_i32 {sMX}, {sKH}, {STSZ}"], 14: [f"s_lshl_b32 {sMW}, {sW}, 2"], 15: [lw(0)]},
         {3: ["v_lshlrev_b32 v23, 2, v1"], 5: [f"v_add_u32 v22, {sT}, v{L16}"], 9: [f"v_add_u32 v{LW}, {sT3}, v23"]})
    b(f"v_and_b32 v23, 60, v23\nv_add_u32 v{LO}, {sT3}, v23\nv_add_u32 v{LP}, {sT2}, v23\nv_add_u32 v2, {sMX}, v{XA3[0]}")
    meet(0)
    if opt("sta", 0) == 10: stamp(b, 15)
    r = lr(0) + rd(0); w = wr(1)
    slot(38, merge({1: r[0:2], 3: r[2:4], 5: r[4:6], 7: [w[0]], 9: [w[1]], 11: [w[2]], 13: [w[3]], 16: nmem(0, 0)}),
         {15: [lw(1)], 0: [f"s_add_u32 {sMW}, {sMW}, {EB}"]},
         merge({7: linv(0)}, chunks(nval(0, 0, False), [9, 11, 13, 15]), {16: nval(0, 1, False)}, {1: [f"v_mov_b32 v{FW}, {sMW}"], 5: [f"v_mov_b32 v{FR}, {EB}"]}))
    meet(1)
    if opt("sta", 0) == 11: stamp(b, 15)
    r = lr(1) + rd(1); w = wr(2)
    slot(39, merge({1: r[0:2] + nmem(0, 1)[:1], 3: r[2:4], 5: r[4:6], 7: [w[0]], 9: [w[1]], 11: [w[2]], 13: [w[3]], 16: nmem(1, 0)}, {15: nmem(0, 1)[1:]}),
         {15: [lw(2)]},
         merge({7: linv(1)}, chunks(nval(1, 0, False), [9, 11, 13, 15]), {16: nval(1, 1, True)}))
    meet(2)
    if opt("sta", 0) == 12: stamp(b, 15)
    r = lr(2) + rd(2); w = wr(3)
    slot(40, merge({1: r[0:2] + nmem(1, 1)[:1], 3: r[2:4], 5: r[4:6], 7: [w[0]], 9: [w[1]], 11: [w[2]], 13: [w[3]]},
                   {15: nmem(1, 1)[1:]}),
         {15: [lw(3)]}, {13: linv(2)})
    for x in nval(2, 0, True): b(x)
    for x in wr(4): b(x)
    lw(4)()
    b(nmem(2, 0)[0])
    b(f"v_add_f32 v8, v{LA}, v{LA+4}\nv_add_f32 v9, v{LA+8}, v{LA+12}\nv_add_f32 v8, v8, v{LA+16}\nv_add_f32 v8, v8, v9")
    thr = f32bits(2.0 ** 40) if not FORCE_SLOW else f32bits(-1.0)
    b(f"v_cmp_nge_f32 vcc, {thr}, v8")
    b(f"s_cmp_lg_u64 vcc, 0\ns_cselect_b32 {sT}, 1, 0\nv_mov_b32 v8, {sT}")
    b(f"ds_write_b32 v{FW}, v8 offset:{EXF}", "L5")
    for x in nval(2, 1, True): b(x)
    b(nmem(2, 1)[0])
    meet(5)
    if opt("sta", 0) == 13: stamp(b, 15)
    b(f"ds_read_b128 {vr(NM+12,4)}, v{FR} offset:{EXF}")
    for x in lr(3) + lr(4) + rd(3) + rd(4): b(x)
    b(nmem(2, 0)[1]); b(nmem(2, 1)[1])
    b(f"v_or_b32 v{NM+12}, v{NM+12}, v{NM+13}\nv_or3_b32 v{NM+12}, v{NM+12}, v{NM+14}, v{NM+15}")
    for x in linv(3) + linv(4): b(x)
    b(f"v_readfirstlane_b32 {sT}, v{NM+12}")
    b(f"s_andn2_b32 {sT}, {sT}, {sPass}\ns_cmp_lg_u32 {sT}, 0")
    b("s_cbranch_scc1 L_slow")
    if not opt("sta", 0): stamp(b, 15)
    for q in (3, 4):
        for pr in range(2):
            for x in nval(q, pr, True) + nmem(q, pr): b(x)
    b(f"s_mov_b32 {sRB}, {S3[0]}\ns_mov_b32 {sCnt}, 0\ns_mov_b32 {sDB}, {ST0}\ns_mov_b32 {sRdy}, 0\ns_mov_b32 {sEv}, {sW}")
    b(f"v_and_b32 v21, 7, v1\nv_lshlrev_b32 v21, 8, v21\nv_and_b32 v4, 3, v1\nv_mul_u32_u24 v4, {FS1 if SENT else 256}, v4\nv_lshrrev_b32 v5, 1, v{L16}")
    b.wait(lg=0, vm=10)
    print("tail estimate", estimate(b.L[i0:]))
    stamp(b, 6)
    b.vm = []
    if TRACE == 3: b.raw("s_mov_b32 s100, 0")
    f, g = first_fill(3)
    g[(0, 0)] = g[(0, 0)] + [f"s_lshr_b32 {sT3}, {sT}, 1"]
    g.update({(1, 2): f[(1, 2)], (1, 7): f[(1, 7)], (1, 9): f[(1, 10)], (1, 11): f[(1, 12)], (1, 13): f[(1, 15)]})
    LF = opt("lf", 1); LFL = opt("lfl", "sc1").replace("+", " ")
    FLG = f"buffer_load_dwordx2 v[22:23], v21, {SO}, {sF1} offen {H1L}"
    FLD = f"buffer_load_dwordx2 v[22:23], v21, {SO}, {sF1} offen offset:2048 {LFL}" if LF else FLG
    EARLY = opt("ep", 1)
    dm = dict(zip([(0, 1), (0, 2), (0, 3), (0, 4)], DW3))
    if EARLY: dm[(1, opt("epos", 19))] = FLD
    g_step(3, dm, g, first=True)
    b(f"s_mov_b32 {sSpin}, 0")
    b.raw(f"s_waitcnt vmcnt({4 + EARLY}) lgkmcnt(0)")
    b.lg = []
    b("s_branch L_non1")
    b.label("L_non")
    b.wait(vm=0)
    b.label("L_non1")
    b(f"v_readfirstlane_b32 s64, v{NONV}\nv_readfirstlane_b32 s65, v{NONV+1}")
    b("s_cmp_lg_u32 s64, 0")
    b("s_cbranch_scc1 L_nonok")
    b(f"buffer_load_dwordx2 {vr(NONV,2)}, v{ZR}, {SD}, 0 offen sc0 sc1")
    b(f"s_add_u32 {sSpin}, {sSpin}, 1\ns_cmp_lt_u32 {sSpin}, {SPIN}")
    b("s_cbranch_scc1 L_non")
    b.label("L_nonok")
    b.vm = []
    stamp(b, 7)
    b("s_barrier")
    b(f"s_cmp_lg_u32 {sW}, 0")
    b("s_cbranch_scc1 L_pubd")
    b(f"s_lshl_b32 {sT}, {sHl}, 8\ns_add_u32 {sT}, {sT}, {sF1}")
    b("s_mov_b64 exec, 1")
    if LF: b(f"buffer_store_dwordx2 {vr(NONV,2)}, v{ZR}, {SO}, {sT} offen offset:2048")
    if not LF or LF == 1: b(f"buffer_store_dwordx2 {vr(NONV,2)}, v{ZR}, {SO}, {sT} offen {H1F}")
    b("s_mov_b64 exec, -1")
    if EARLY:
        b.raw(f"s_waitcnt vmcnt({2 if LF == 1 else 1})")
        b("s_branch L_pubd1")
    b.label("L_pubd")
    if LF == 2:
        b(f"s_cmp_lg_u32 {sW}, 3")
        b("s_cbranch_scc1 L_pubd2")
        b(f"s_lshl_b32 {sT}, {sHl}, 8\ns_add_u32 {sT}, {sT}, {sF1}")
        b("s_mov_b64 exec, 1")
        b(f"buffer_store_dwordx2 {vr(NONV,2)}, v{ZR}, {SO}, {sT} offen {H1F}")
        b("s_mov_b64 exec, -1")
        b.raw("s_waitcnt vmcnt(1)")
        b("s_branch L_pubd1")
        b.label("L_pubd2")
    ALL = opt("all", 0)
    def test(back):
        b.raw(f"v_cmp_eq_u64 s[92:93], {sNon}, v[22:23]")
        b(f"s_or_b32 {sRdy}, {sRdy}, s92\ns_bitcmp1_b32 {sRdy}, {sT3}")
        b(f"s_cbranch_scc1 {back}")
    if EARLY:
        b.raw("s_waitcnt vmcnt(0)")
        b.label("L_pubd1")
        test("L_poll0ok")
    def gflag(lab):
        b(f"s_cmp_lg_u32 {sEv}, 0")
        b(f"s_cbranch_scc1 {lab}")
        b(f"s_lshl_b32 {sEv}, {sHl}, 8\ns_add_u32 {sEv}, {sEv}, {sF1}")
        b("s_mov_b64 exec, 1")
        b.raw(f"buffer_store_dwordx2 {vr(NONV,2)}, v{ZR}, {SO}, {sEv} offen {H1F}")
        b("s_mov_b64 exec, -1")
        b.label(lab)
    def poll1(lab, back):
        b(f"s_mov_b32 {sSpin}, 0")
        b.label(lab)
        for k in range(opt("nl", 6) if LF else 0):
            b.raw(FLD)
            b.raw("s_waitcnt vmcnt(0)")
            test(back)
            if opt("lsl", 2): b(f"s_sleep {opt('lsl', 2)}")
        if LF == 3 and lab == "L_poll0": gflag("L_gf0")
        b.raw(FLG)
        b.raw("s_waitcnt vmcnt(0)")
        test(back)
        if SLEEP and not LF: b(f"s_sleep {SLEEP}")
        b(f"s_add_u32 {sSpin}, {sSpin}, 1\ns_cmp_lt_u32 {sSpin}, {SPIN}")
        b(f"s_cbranch_scc1 {lab}")
    poll1("L_poll0", "L_poll0ok")
    b.label("L_poll0ok")
    stamp(b, 8)
    if LF == 3: gflag("L_gf1")
    b(f"s_mov_b32 m0, {sMX}\ns_and_b32 {sT}, s80, 15")
    for x in DX3[:4]: b(x)
    b(f"s_mov_b32 m0, {sMW}\ns_lshl_b32 {sWO}, {sT}, 17")
    b(DX3[4])
    if opt("peel1", 0):
        assert SIG3.startswith(("pair", "g40"))
        b(f"s_add_u32 m0, {sW4}, {S3[0]}\ns_mul_i32 {sXO}, {sT}, 20480")
        f1 = ringf(3)
        f1.update({(0, 6): ["s_lshr_b64 s[80:81], s[80:81], 4"], (0, 12): [f"s_add_u32 m0, {sM5}, {S3[0]}"], (0, 15): [f"s_add_u32 m0, {sW4}, {S3[0]+20480}"],
                   (1, 1): [f"s_mov_b32 {sDB}, {sRB}"], (1, 3): [f"s_mov_b32 {sRB}, {sT2}"], (1, 5): [f"s_add_u32 {sCnt}, {sCnt}, 1"]})
        f1[(0, 18)] = f1.pop((0, 14))
        dm = dict(zip([(0, 0), (0, 2), (0, 4), (0, 8), (0, 13), (0, 16), (0, 19), (1, 13), (1, 16)], DX3 + DW3))
        dm[(1, 18)] = FLD
        b.vm = []
        g_step(3, dm, f1, bar=False)
        b.raw("s_waitcnt vmcnt(10) lgkmcnt(0)")
        b.lg = []
    else:
        b.wait(lg=0)
    b.vm = []
    def sync3():
        b.wait(lg=0, vm=9)
        trace(b); b("s_barrier"); trace(b)
    f3 = loope(3, sync3) if EB3 else loopf(3)
    f3[(0, 13)] = [f"s_lshr_b32 {sT3}, {sT}, 1"]
    def chk():
        b("s_cbranch_scc1 L_wait1")
        b.label("L_wait1back")
    f3[(0, 17)] = f3[(0, 17)] + [f"s_bitcmp0_b32 {sRdy}, {sT3}", chk]
    if EB3 and opt("peel1", 0): b("s_barrier")
    b(f"s_add_u32 {sMX}, {sDB}, {sW4}")
    b.raw(f".p2align {opt('al', 3)}")
    b.label("L_p3")
    i0 = len(b.L)
    if len(AG) == 9:
        dg, ff = auto(3, AG, chk)
        g_step(3, dict(zip(dg, DW3 + DX3)), ff)
    else: g_step(3, dict(zip(DGE if EB3 else DG, DW3 + DX3)), f3, bar=not EB3)
    if not EB3: b.wait(lg=0, vm=9)
    b("s_cbranch_vccnz L_p3")
    print("p3 step estimate", estimate(b.L[i0:], verbose=VERB))
    b.vm = []
    stamp(b, 9)
    PFL = f"buffer_load_dwordx2 v[6:7], v4, {SO}, {sF2} offen {HLD}"
    AFX = lambda g: (AF[1], 160, 0, 16, 32)[g]
    BFX = lambda g: (BF[1], 176, 48, 196, 216)[g]
    def mm(g, d, q): return f"{MF} {vr(ACC+(d*5+q)*4,4)}, {ar(AFX(g)+4*d,4)}, {ar(BFX(g)+4*q,4)}, {vr(ACC+(d*5+q)*4,4)}"
    rf = ringf(3)
    for st in range(2):
        if st == 1 or not EB3:
            trace(b); b("s_barrier"); trace(b)
        pre = ([rf[(0, 7)], rf[(0, 9)], rf[(0, 10)], rf[(0, 11)]] if st == 0 else [[f"s_lshl_b32 {sT}, {sKq}, 8"], [f"s_add_u32 {sT}, {sT}, {sF2}"]])
        for u in range(2):
            g = 1 + 2*st + u
            A = lambda d: [f"ds_read_b64_tr_b16 {ar(AFX(g)+4*d+2*v,2)}, v{WA3[d]} offset:{u*8192+v*4096}" for v in range(2)]
            rdl = A(1) + [f"ds_read_b128 {ar(BFX(g)+4*q,4)}, v{XA3[u]} offset:{q*1024}" for q in range(5)] + A(2) + A(3) + A(0)
            upd = {} if st == 1 else ({8: XA3[0]} if u == 0 else {2: WA3[1], 7: XA3[1], 9: WA3[2], 11: WA3[3], 13: WA3[0]})
            for i in range(15):
                b(mm(g - 1, 1 + i // 5, i % 5))
                if rdl: b(rdl.pop(0))
                if pre:
                    for x in pre.pop(0): b(x)
                if i in upd: b(va(upd[i]))
                if i == 14 and not (st == 0 and u == 1): need(b, [ar(AFX(g)+4, 4), ar(BFX(g), 20)])
                if i == 3 and g > 1: need(b, [ar(AFX(g - 1), 16)])
        if st == 0: b.wait(lg=0, vm=0)
    stamp(b, 10)
    DF = opt("defer", 25)
    kept = [mm(g, 0, q) for g in range(5) for q in range(5)]
    for x in kept[:25 - DF]: b(x)
    mf = [mm(4, 1 + i // 5, i % 5) for i in range(15)] + kept[25 - DF:]
    PK = 104; RK = 144
    for i in range(40):
        if i < len(mf): b(mf[i])
        t = i - 6
        if 0 <= t < 15:
            d, q = 1 + t // 5, t % 5; pk = PK + (d-1)*12
            if q in (1, 3): b(f"buffer_store_dwordx4 {vr(pk+2*(q-1),4)}, v{L16}, {SO}, {sPs[d]} offen offset:{(q//2)*1024} {HST}")
            if q == 4: b(f"buffer_store_dwordx2 {vr(pk+8,2)}, v5, {SO}, {sPs[d]} offen offset:2048 {HST}")
        t = i - 5
        if 0 <= t < 15:
            d, q = 1 + t // 5, t % 5; pk = PK + (d-1)*12 + 2*q; a = ACC + (d*5+q)*4
            b(f"v_cvt_pk_bf16_f32 v{pk}, v{a}, v{a+1}\nv_cvt_pk_bf16_f32 v{pk+1}, v{a+2}, v{a+3}")
    if not SENT:
        b.wait(vm=0)
        stamp(b, 11)
        if not F2W:
            b("s_barrier")
            b(f"s_cmp_lg_u32 {sW}, 0")
            b("s_cbranch_scc1 L_wait2")
        b("s_mov_b64 exec, 1")
        b(f"buffer_store_dwordx2 {vr(NONV,2)}, v{ZR}, {SO}, {sT} offen {HST}")
        b("s_mov_b64 exec, -1")
        b.label("L_wait2")
        b(f"s_mov_b32 {sSpin}, 0")
        P2 = opt("pp2", 1)
        regs = ["v[6:7]", "v[8:9]", "v[10:11]"][:P2]
        ld = lambda r: b.raw(f"buffer_load_dwordx2 {r}, v4, {SO}, {sF2} offen {HLD}")
        for r in regs[1:]:
            ld(r); b(f"s_sleep {opt('psl', 3)}")
        b.label("L_poll3")
        for k in range(P2):
            ld(regs[k])
            b.raw(f"s_waitcnt vmcnt({P2-1})")
            b.raw(f"v_cmp_ne_u64 vcc, {sNon}, {regs[(k + 1) % P2]}")
            b("s_cbranch_vccz L_wait2back")
            if P2 == 1 and opt('sleep2', 4): b(f"s_sleep {opt('sleep2', 4)}")
        b(f"s_add_u32 {sSpin}, {sSpin}, 1\ns_cmp_lt_u32 {sSpin}, {SPIN}")
        b("s_cbranch_scc1 L_poll3")
        b.label("L_wait2back")
        stamp(b, 12)
    else: stamp(b, 11)
    b(f"s_mov_b32 {sSpin}, 0")
    if opt("pre2", 0): b(f"s_sleep {opt('pre2', 0)}")
    b.label("L_poll2")
    b.vm = []
    for h in range(3):
        for d in (1, 2, 3):
            pk = RK + (d-1)*12
            if h < 2: b(f"buffer_load_dwordx4 {vr(pk+4*h,4)}, v{L16}, {SO}, {sPl[d]} offen offset:{h*1024} {HLD}")
            else: b(f"buffer_load_dwordx2 {vr(pk+8,2)}, v5, {SO}, {sPl[d]} offen offset:2048 {HLD}")
    if SENT:
        rr = [RK + (d-1)*12 + 4*h + i for h in range(3) for d in (1, 2, 3) for i in range(4 if h < 2 else 2)]
        b(f"v_max_u32 v8, v{rr[0]}, v{rr[1]}")
        for i in range(2, 30, 2): b(f"v_max3_u32 v8, v8, v{rr[i]}, v{rr[i+1]}")
        b("v_cmp_eq_u32 vcc, -1, v8")
        b("s_cbranch_vccz L_poll2ok")
        if SLEEP: b(f"s_sleep {opt('sleep2', 4)}")
        b(f"s_add_u32 {sSpin}, {sSpin}, 1\ns_cmp_lt_u32 {sSpin}, {SPIN}")
        b("s_cbranch_scc1 L_poll2")
        b.label("L_poll2ok")
        stamp(b, 12)
    OFL = opt("ofl", "").replace("+", " ")
    for q in range(5):
        a = ACC + q * 4
        for d in (1, 2, 3):
            pk = RK + (d-1)*12 + 2*q
            for i in range(2):
                b(f"v_lshlrev_b32 v{a+20*d+2*i}, 16, v{pk+i}\nv_and_b32 v{a+20*d+2*i+1}, 0xffff0000, v{pk+i}")
        for i in (0, 2): b(f"v_pk_add_f32 {vr(a+i,2)}, {vr(a+i,2)}, {vr(a+20+i,2)}")
        for i in (0, 2): b(f"v_pk_add_f32 {vr(a+40+i,2)}, {vr(a+40+i,2)}, {vr(a+60+i,2)}")
        for i in (0, 2): b(f"v_pk_add_f32 {vr(a+i,2)}, {vr(a+i,2)}, {vr(a+40+i,2)}")
        b(f"v_cvt_pk_bf16_f32 v{a}, v{a}, v{a+1}\nv_cvt_pk_bf16_f32 v{a+1}, v{a+2}, v{a+3}")
        if opt("fake", 0) == 1: pass
        elif opt("fake", 0) == 2:
            if q == 0: b(f"s_lshl_b32 {sT}, {sH}, 2\ns_add_u32 {sT}, {sT}, {sW}\ns_mul_i32 {sT}, {sT}, 2560")
            b(f"buffer_store_dwordx2 {vr(a,2)}, v5, {SOUT}, {sT} offen offset:{q*512} {OFL}")
        else: b(f"buffer_store_dwordx2 {vr(a,2)}, v{OUTV}, {SOUT}, {sOut} offen {OFL}")
        if q < 4: b(f"s_add_u32 {sOut}, {sOut}, 32768")
    if STAMPS:
        stamp(b, 13)
        if not opt("gap", 0): b.wait(vm=0)
        stamp(b, 14)
        b(f"s_cmp_lg_u32 {sW}, 0")
        b("s_cbranch_scc1 L_nost")
        b(f"v_lshlrev_b32 v3, 2, v1\ns_lshl_b32 {sT}, s2, 7\ns_add_u32 {sT}, {sT}, {STAMP_OFF}\ns_mov_b32 exec_hi, 0")
        b(f"buffer_store_dword v254, v3, {SO}, {sT} offen")
        b("s_mov_b64 exec, -1")
        b.label("L_nost")
        b(f"v_lshlrev_b32 v3, 2, v1\ns_lshl_b32 {sT}, s2, 2\ns_add_u32 {sT}, {sT}, {sW}\ns_lshl_b32 {sT}, {sT}, 7\ns_add_u32 {sT}, {sT}, {STAMP_OFF + (2 << 20)}\ns_mov_b32 exec_hi, 0")
        b(f"buffer_store_dword v254, v3, {SO}, {sT} offen")
        b("s_mov_b64 exec, -1")
        if TRACE:
            b(f"s_lshl_b32 {sT}, s2, 2\ns_add_u32 {sT}, {sT}, {sW}\ns_lshl_b32 {sT}, {sT}, 9\ns_add_u32 {sT}, {sT}, {STAMP_OFF + (1 << 20)}")
            b(f"buffer_store_dword v0, v3, {SO}, {sT} offen")
    b.label("L_end")
    b("s_endpgm")

    if KX:
        b.label("L_xtra")
        for x in ("s_add_u32 m0, m0, 4096", f"s_cmp_eq_u32 m0, {sEv}", f"s_cselect_b32 m0, {sW1}, m0", ADV[1], KLD, "s_add_u32 m0, m0, 4096", "s_nop 0", VLD, XR): b(x)
        b("s_branch L_xtraback")
    b.label("L_wait1")
    b.lg = []; b.vm = []
    if opt("peel1", 0):
        b.raw("s_waitcnt vmcnt(4)")
        test("L_wait1back")
    poll1("L_poll1", "L_wait1back")
    b("s_branch L_wait1back")
    if SENT:
        b.label("L_wait2")
        b(f"s_mov_b32 {sSpin}, 0")
        b.label("L_poll3")
        b(PFL)
        b.wait(vm=0)
        b(f"v_cmp_ne_u64 vcc, {sNon}, v[6:7]")
        b("s_cbranch_vccz L_wait2back")
        b(f"s_sleep 4\ns_add_u32 {sSpin}, {sSpin}, 1\ns_cmp_lt_u32 {sSpin}, {SPIN}")
        b("s_cbranch_scc1 L_poll3")
        b("s_branch L_wait2back")

    EV = [[int(x) for x in e.split(".")] for e in opt("ev", "2.0,3.0,1.2").split(",")]
    assert sum(e[0] for e in EV) == NA and sum(e[1] for e in EV) == NS
    b.label("L_aux")
    rp = 0
    for k, (nd_, nr_) in enumerate(EV):
        b.lg = []; b.vm = []
        if k + 1 < len(EV):
            b(f"s_cmp_lg_u32 {sEv}, {k}")
            b(f"s_cbranch_scc1 L_aux{k+1}")
        for i in range(nd_): pair()
        for i in range(nr_):
            b(f"s_xor_b32 {sT}, {sRot}, {(IENT-NS+rp)*4096}")
            b(f"buffer_load_dwordx4 {ar(STG[2*rp],4)}, v{KVW}, {SK}, {sT} offen {KVFL}")
            b(f"buffer_load_dwordx4 {ar(STG[2*rp+1],4)}, v{KVW}, {SV}, {sT} offen {KVFL}")
            rp += 1
        b(f"s_add_u32 {sEv}, {sEv}, 1")
        if not opt("early", 0) and not opt("sp", 0): (setup_a, setup_b, setup_c)[k]()
        b.wait(lg=0, vm=9 + 2*(nd_ + nr_))
        b("s_branch L_auxback")
        if k + 1 < len(EV): b.label(f"L_aux{k+1}")

    b.label("L_slow")
    b.wait(lg=0, vm=0)
    b("s_barrier")
    b(f"s_mov_b32 {sPass}, 1")
    b("v_and_b32 v21, 15, v1\nv_lshlrev_b32 v21, 8, v21\nv_lshrrev_b32 v22, 4, v1\nv_lshlrev_b32 v22, 4, v22\nv_add_u32 v21, v21, v22")
    for q in range(5): b(f"v_mov_b32 v{72+q}, 0xff800000")
    b(f"s_mov_b32 {sCnt}, 0")
    b.label("L_slowloop")
    for d in range(4): b(f"buffer_load_dwordx4 {vr(24+4*d,4)}, v21, {SK}, {sCnt} offen offset:{d*64}")
    b.wait(vm=0)
    for q in range(5):
        for d in range(4):
            b(f"{MF} {vr(80+4*q,4)}, {vr(24+4*d,4)}, {ar(QF+(q*4+d)*4,4)}, {'0' if d == 0 else vr(80+4*q,4)}")
    for q in range(5):
        b(f"v_max3_f32 v{72+q}, v{72+q}, v{80+4*q}, v{81+4*q}\nv_max3_f32 v{72+q}, v{72+q}, v{82+4*q}, v{83+4*q}")
    b(f"s_add_u32 {sCnt}, {sCnt}, 4096\ns_cmp_lt_u32 {sCnt}, 131072")
    b("s_cbranch_scc1 L_slowloop")
    for sw_ in ("v_permlane16_swap_b32", "v_permlane32_swap_b32"):
        for q in range(5): b(f"v_mov_b32 v{64+q}, v{72+q}")
        for q in range(5): b(f"{sw_} v{72+q}, v{64+q}")
        for q in range(5): b(f"v_max_f32 v{72+q}, v{72+q}, v{64+q}")
    for q in range(5):
        for i in range(4): b(f"v_sub_f32 v{NM+4*q+i}, 0, v{72+q}")
    p2_addr()
    b(f"s_mov_b32 {sKVm}, {sW1}\ns_mov_b32 {sKVs}, 0\ns_mov_b32 {sKVx}, {sRot}")
    for z in ZEROS: b(z)
    b.label("L_slowkv")
    pair()
    b(f"s_cmp_lt_u32 {sKVs}, {IENT * 4096}")
    b("s_cbranch_scc1 L_slowkv")
    b.wait(vm=0)
    b("s_barrier")
    for i in range(8): b(k_read(i))
    for i in range(4): b(VR[i])
    for i in range(8): b(s_mfma(0, i))
    b("s_nop 7")
    b.label("L_last")
    b("s_branch L_p2entry")
    return b.L

def gen_probe(spec):
    i, ri, j, rj = spec.split(",")
    b = B()
    b.raw(".p2align 8"); b.raw(".type mha_probe_kernel,@function"); b.label("mha_probe_kernel")
    b("s_cmp_ge_u32 s2, 1"); b("s_cbranch_scc1 L3_end")
    b.raw("s_memrealtime s[16:17]")
    b.raw("s_load_dwordx2 s[4:5], s[0:1], 56"); b.raw("s_waitcnt lgkmcnt(0)")
    b("s_mov_b32 s6, 268435456\ns_mov_b32 s7, 0x20000")
    b(f"v_mul_u32_u24 v1, 512, v0\nv_lshrrev_b32 v4, 1, v0\nv_and_b32 v4, 3, v4\nv_lshlrev_b32 v4, 7, v4\nv_add_u32 v1, v1, v4\ns_mov_b32 s8, {STAMP_OFF}")
    b(f"buffer_load_dword v2, v1, s[4:7], s8 offen offset:{8*int(i)}")
    b(f"buffer_load_dword v3, v1, s[4:7], s8 offen offset:{8*int(j)}")
    b.wait(vm=0)
    b("v_readlane_b32 s9, v2, 0")
    b("s_sub_u32 s9, s9, 100000")
    b("v_subrev_u32 v2, s9, v2\nv_subrev_u32 v3, s9, v3")
    for v, r, acc in ((2, ri, "s10"), (3, rj, "s11")):
        b(f"s_mov_b32 {acc}, {'-1' if r == 'min' else '0'}")
        for l in range(64):
            b(f"v_readlane_b32 s12, v{v}, {l}")
            b(f"{dict(min='s_min_u32', max='s_max_u32', avg='s_add_u32')[r]} {acc}, {acc}, s12")
        if r == 'avg': b(f"s_lshr_b32 {acc}, {acc}, 3")
        else: b(f"s_lshl_b32 {acc}, {acc}, 3")
    if opt("abs", 0):
        b("s_lshr_b32 s10, s10, 3\ns_add_u32 s12, s10, s9\ns_mov_b32 s10, 10000")
        if opt("abs", 0) == 2:
            b(f"s_mov_b32 s8, {STAMP_OFF + (3 << 20)}\nv_mov_b32 v1, 0\nbuffer_load_dword v2, v1, s[4:7], s8 offen")
            b.wait(vm=0)
            b("v_readfirstlane_b32 s12, v2")
    else:
        if opt("gap", 0): b("s_sub_u32 s11, s16, s9\ns_lshl_b32 s11, s11, 3")
        b("s_sub_u32 s10, s11, s10\ns_min_u32 s10, s10, 100000")
        b.raw("s_memrealtime s[12:13]"); b.raw("s_waitcnt lgkmcnt(0)")
    b.label("L3_spin")
    b.raw("s_memrealtime s[14:15]"); b.raw("s_waitcnt lgkmcnt(0)")
    b("s_sub_u32 s14, s14, s12\ns_cmp_lt_u32 s14, s10")
    b("s_cbranch_scc1 L3_spin")
    b.label("L3_end")
    b("s_endpgm")
    if opt("abs", 0) == 2:
        b.raw(".p2align 8"); b.raw(".type mha_tiny_kernel,@function"); b.label("mha_tiny_kernel")
        b.raw("s_memrealtime s[8:9]")
        b.raw("s_load_dwordx2 s[4:5], s[0:1], 56"); b.raw("s_waitcnt lgkmcnt(0)")
        b("s_cmp_ge_u32 s2, 1"); b("s_cbranch_scc1 L4_end")
        b(f"s_mov_b32 s6, 268435456\ns_mov_b32 s7, 0x20000\ns_mov_b32 s10, {STAMP_OFF + (3 << 20)}\nv_mov_b32 v1, 0\nv_mov_b32 v2, s8")
        b("buffer_store_dword v2, v1, s[4:7], s10 offen")
        b.label("L4_end")
        b("s_endpgm")
    return b.L

def main():
    k, n = hazard_pass(gen(), verbose=VERB)
    head = ["""; Kernarg: x (8,160,1024) | k_cache, v_cache (8,32,512,128) | wq (1024,4096) | wo (4096,1024) | out | debug | ws, all bf16.
;  1. Q^T = wq_h^T x_b^T          LDS-DMA ring of 64-deep k stages, 16x16x32 MFMA, wave tile 64 d x 80 q
;     that carry a per-launch value published in d_debug; every wait is bounded.""",
            "; Written by the generator script dev/gen23.py (instruction placement, waits and hazard padding by that script).",
            "; @launch grid=(256,1,1) block=(256,1,1) lds=163840",
            '.amdgcn_target "amdgcn-amd-amdhsa--gfx950"', ".text", f".globl {NAME}"]
    tail = ['.section .rodata,"a"', ".p2align 6", f".amdhsa_kernel {NAME}", "  .amdhsa_next_free_vgpr 512", "  .amdhsa_next_free_sgpr 102",
            "  .amdhsa_accum_offset 256", "  .amdhsa_group_segment_fixed_size 0", "  .amdhsa_kernarg_size 64", "  .amdhsa_user_sgpr_count 2",
            "  .amdhsa_user_sgpr_kernarg_segment_ptr 1", "  .amdhsa_system_sgpr_workgroup_id_x 1", ".end_amdhsa_kernel"]
    if "probe" in P:
        k3, _ = hazard_pass(gen_probe(P["probe"]))
        k = k + k3
        head[2] = f"; @launch kernel={NAME} grid=(256,1,1) block=(256,1,1) lds=163840\n; @launch kernel=mha_probe_kernel grid=(1,1,1) block=(64,1,1) lds=0"
        head.append(".globl mha_probe_kernel")
        if opt("abs", 0) == 2:
            head[2] = "; @launch kernel=mha_tiny_kernel grid=(1,1,1) block=(64,1,1) lds=0\n" + head[2]
            head.append(".globl mha_tiny_kernel")
            tail += [".p2align 6", ".amdhsa_kernel mha_tiny_kernel", "  .amdhsa_next_free_vgpr 8", "  .amdhsa_next_free_sgpr 32",
                "  .amdhsa_accum_offset 8", "  .amdhsa_group_segment_fixed_size 0", "  .amdhsa_kernarg_size 64", "  .amdhsa_user_sgpr_count 2",
                "  .amdhsa_user_sgpr_kernarg_segment_ptr 1", "  .amdhsa_system_sgpr_workgroup_id_x 1", ".end_amdhsa_kernel"]
        tail += [".p2align 6", ".amdhsa_kernel mha_probe_kernel", "  .amdhsa_next_free_vgpr 8", "  .amdhsa_next_free_sgpr 32",
            "  .amdhsa_accum_offset 8", "  .amdhsa_group_segment_fixed_size 0", "  .amdhsa_kernarg_size 64", "  .amdhsa_user_sgpr_count 2",
            "  .amdhsa_user_sgpr_kernarg_segment_ptr 1", "  .amdhsa_system_sgpr_workgroup_id_x 1", ".end_amdhsa_kernel"]
    if opt("tiny", 0):
        b = B()
        b.raw(".p2align 8"); b.raw(".type mha_tiny_kernel,@function"); b.label("mha_tiny_kernel")
        b.raw("s_memrealtime s[8:9]")
        b.raw("s_load_dwordx2 s[4:5], s[0:1], 56"); b.raw("s_waitcnt lgkmcnt(0)")
        b(f"s_mov_b32 s6, 268435456\ns_mov_b32 s7, 0x20000\ns_mov_b32 s10, {STAMP_OFF + (3 << 20)}\nv_mov_b32 v1, 0\nv_mov_b32 v2, s8\nv_mov_b32 v3, s9")
        b("buffer_store_dwordx2 v[2:3], v1, s[4:7], s10 offen")
        b("s_endpgm")
        k = k + b.L
        head[2] = f"; @launch kernel={NAME} grid=(256,1,1) block=(256,1,1) lds=163840\n; @launch kernel=mha_tiny_kernel grid=(1,1,1) block=(64,1,1) lds=0"
        head.append(".globl mha_tiny_kernel")
        tail += [".p2align 6", ".amdhsa_kernel mha_tiny_kernel", "  .amdhsa_next_free_vgpr 8", "  .amdhsa_next_free_sgpr 32",
            "  .amdhsa_accum_offset 8", "  .amdhsa_group_segment_fixed_size 0", "  .amdhsa_kernarg_size 64", "  .amdhsa_user_sgpr_count 2",
            "  .amdhsa_user_sgpr_kernarg_segment_ptr 1", "  .amdhsa_system_sgpr_workgroup_id_x 1", ".end_amdhsa_kernel"]
    fmt = lambda l: l if l.endswith(":") or l.startswith((".", ";")) else "    " + l
    open(sys.argv[1], "w").write("\n".join(head + [fmt(l) for l in k] + tail) + "\n")
    print(f"nops inserted: {n}; lines {len(k)}")
main()
```

```python
import sys, math, struct
from asmlib import B, hazard_pass, need, estimate

P = dict(kv.split("=") for kv in sys.argv[2:])
def opt(k, d): return type(d)(P.get(k, d))
STAMPS = opt("stamps", 0); TRACE = opt("trace", 0); VERB = bool(opt("v", 0))
KVFL = opt("kvfl", "nt").replace("+", " ")
HST = opt("hst", "sc0+sc1").replace("+", " ")
HLD = opt("hld", "sc0+sc1").replace("+", " ")
H1S = opt("h1s", "sc0+sc1").replace("+", " "); H1F = opt("h1f", "sc0+sc1").replace("+", " "); H1L = opt("h1l", "sc0+sc1").replace("+", " ")
FORCE_SLOW = opt("slow", 0)
SIG = opt("sig", "g122"); SIG3 = opt("sig3", "g400040004"); AUXT = opt("auxt", "p0.2.4/1.3.5/1.2.6/0.3.7")
TL = opt("tl", 11); TIT = opt("tit", 6); THALF = opt("thalf", 1)

TOUCH = opt("touch", 7)
SLEEP = opt("sleep", 4); ONEPOLL = opt("onepoll", 1); PBF = opt("pbf", 1)
NAME = "standalone__mha_block_cached__near_ridge_kernel"
STAMP_OFF = 200 << 20; NST = 16
TIMER = "s_memtime" if STAMPS == 2 else "s_memrealtime"
PART = 12 << 20; PSL = 10240 if opt('pbf', 1) else 20480; FLG1 = PART + 64 * 16 * PSL + (2 << 20); FS1 = opt('fs1', 8448); FS2 = opt('fs2', 4352); FLG2 = FLG1 + (1 << 20); WSREC = FLG2 + (2 << 20)

def vr(a, n=1, k='v'): return f"{k}{a}" if n == 1 else f"{k}[{a}:{a+n-1}]"
def ar(a, n=1): return vr(a, n, 'a')
def f32bits(x): return "0x%08x" % struct.unpack("<I", struct.pack("<f", x))[0]

def stamp(b, i):
    if STAMPS and (not opt("light", 0) or i == 14 or (opt("light", 0) == 2 and i in (2, 5, 12)) or (opt('light', 0) == 3 and i in (4, 6, 12))):
        b.wait(lg=0)
        b.raw(f"{TIMER} s[96:97]"); b.raw("s_waitcnt lgkmcnt(0)")
        b.raw(f"v_writelane_b32 v254, s96, {2*i}"); b.raw(f"v_writelane_b32 v254, s97, {2*i+1}")
def trace(b):
    if TRACE:
        b.wait(lg=0)
        for s in ("s_memtime s[96:97]", "s_waitcnt lgkmcnt(0)", "s_sub_u32 s96, s96, s98", "s_mov_b32 s97, m0", "s_mov_b32 m0, s100",
                  "v_writelane_b32 v0, s96, m0", "s_add_u32 s100, s100, 1", "s_min_u32 s100, s100, 63", "s_mov_b32 m0, s97"): b.raw(s)

def order(kind, j):
    if kind == "seq": return list(range(16)), [2, 6, 10]
    if kind == "xor": return [t ^ j for t in range(16)], [4, 8, 12]
    if kind.startswith("g"):
        ramp = [int(c) for c in kind[1:]]
        O = [[] for _ in range(4)]; LD = [[] for _ in range(4)]; opened = {}; nxt = 0; turn = 0
        for t in range(16):
            n = min(ramp[t] if t < len(ramp) else 1, 16 - nxt)
            lead_cls = [(turn + i) % 4 for i in range(n)]; turn = (turn + n) % 4
            fresh = []
            for c in lead_cls:
                O[c].append(nxt); LD[c].append(t); opened[nxt] = t; fresh.append(nxt); nxt += 1
            k = 0
            for c in range(4):
                if c in lead_cls: continue
                old = [x for x in sorted(opened) if x not in O[c] and opened[x] < t]
                if old: O[c].append(old[0])
                else:
                    O[c].append(fresh[k % len(fresh)]); k += 1
        o = O[j]; assert sorted(o) == list(range(16)), o
        lead = [t for t in LD[j] if t >= 2][:3]
        while len(lead) < 3: lead.append(min(lead[-1] + 3, 15))
        return o, lead
    o = []; lead = []
    if kind == "rot":
        for t in range(16):
            if t == 0: o.append(j)
            elif t % 4 == j and t + 3 < 16: o.append(t + 3); lead.append(t)
            else: o.append([c for c in range(16) if c not in o and (c < 4 or (c - 3) < t) and not (c >= 4 and (c - 3) % 4 == j)][0])
    elif kind == "rot2":
        for t in range(16):
            if t == 0: o.append(0)
            elif t == 1: o.append(1 + j)
            elif (t - 1) % 4 == j and t + 3 < 16: o.append(t + 3); lead.append(t)
            else: o.append([c for c in range(16) if c not in o and (c < 5 or (c - 3) < t) and not (c >= 5 and (c - 4) % 4 == j)][0])
    assert sorted(o) == list(range(16)), o
    lead = [t for t in lead if t >= 2][:3]
    while len(lead) < 3: lead.append(lead[-1] + 2)
    return o, lead
def tables(kind):
    T = []
    for j in range(4):
        o, lead = order(kind, j)
        if AUXT.startswith("c"):
            off, base = int(AUXT[1]), int(AUXT[2])
            lead = [((j + off) % 4) + base + 4 * k + 2 for k in range(3)]
        elif AUXT.startswith("d"):
            sp, base = int(AUXT[1]), int(AUXT[2])
            lead = [base + (j * sp) // 4 + sp * k + 2 for k in range(3)]
        elif AUXT.startswith("p"):
            lead = [int(v) + 2 for v in AUXT[1:].split("/")[j].split(".")]
        elif AUXT != "lead": lead = [int(v) + 2 for v in AUXT.split(".")]
        if opt("sp", 0):
            ev = opt("ev", "2.0,3.0,1.2").split(",")
            lead = lead[opt("l0", 1):][:len(ev)] if ev != ["0.0"] else []
        val = sum(c << (4 * t) for t, c in enumerate(o))
        T.append((val & 0xffffffff, val >> 32, sum(1 << (t - 1) for t in lead)))
    return T

def order3(j, p):
    if SIG3.startswith("g"):
        ramp = [int(c) for c in SIG3[1:].rstrip("p")]
        PX = opt("px", 1); PS = opt("ps", 8)
        O = [[] for _ in range(4)]; opened = {}; nxt = 0; turn = 0
        for t in range(14):
            n = min(ramp[t] if t < len(ramp) else 1, 14 - nxt)
            lead_cls = [(turn + i) % 4 for i in range(n)]; turn = (turn + n) % 4
            fresh = []
            for c in lead_cls:
                O[c].append(nxt); opened[nxt] = t; fresh.append(nxt); nxt += 1
            k = 0
            for c in range(4):
                if c in lead_cls: continue
                old = [x for x in sorted(opened) if x not in O[c] and opened[x] < t]
                if PX: old.sort(key=lambda x: (x ^ c) if x < 4 else x)
                if old: O[c].append(old[0])
                else:
                    O[c].append(fresh[k % len(fresh)]); k += 1
        o = O[j]; assert sorted(o) == list(range(14)), o
        if p and SIG3.endswith("p"): o = [(c + PS) % 14 for c in o]
    elif SIG3 == "seq": o = list(range(14))
    elif SIG3.startswith("pair"):
        gap = int(SIG3[4:5] or 1)
        o = [2 * j, 2 * j + 1]
        lt = {8 + i: 2 + gap * i for i in range(6)}
        for t in range(2, 14):
            mine = [c for c in lt if lt[c] == t and (c - 8) % 4 == j]
            if mine: o.append(mine[0]); continue
            ok = [c for c in range(14) if c not in o and (c < 8 or (lt[c] < t - 1 and (c - 8) % 4 != j))]
            if not ok: ok = [c for c in range(14) if c not in o and not ((c - 8) % 4 == j and lt[c] > t)]
            ok.sort(key=lambda c: (c != (o[-1] ^ 1), c >= 8, (c - 2 * j) % 8 if c < 8 else c))
            o.append(ok[0])
        assert sorted(o) == list(range(14)), o
    else:
        o = []
        for t in range(14):
            if t == 0: o.append(j)
            elif t % 4 == j and t + 3 < 14: o.append(t + 3)
            else: o.append([c for c in range(14) if c not in o and (c < 4 or (c - 3) < t) and not (c >= 4 and (c - 3) % 4 == j)][0])
        assert sorted(o) == list(range(14))
        if p and SIG3 == "rotp": o = [(c + 7) % 14 for c in o]
    val = sum((c + 2) << (4 * t) for t, c in enumerate(o))
    return val & 0xffffffff, val >> 32
ROW1 = opt('row1', 1)
def gen():
    b = B()
    SX, SW, SK, SV, SO, SD = "s[4:7]", "s[8:11]", "s[12:15]", "s[16:19]", "s[20:23]", "s[24:27]"
    SOUT, SX3, SW3 = "s[68:71]", "s[72:75]", "s[76:79]"
    sW, sB, sH, sCnt = "s28", "s29", "s30", "s31"
    sRB, sDB, sDelta, sMask = "s32", "s33", "s34", "s35"
    sXO, sWO, sMX, sMW, sM5, sT, sT2, sT3 = "s36", "s37", "s38", "s39", "s40", "s41", "s42", "s43"
    sW4, sW1, sPB, sKVm, sKVs, sPass, sO0, sO1, sCls = "s44", "s45", "s46", "s47", "s48", "s49", "s50", "s51", "s52"
    sCc, sSpin, sQH, sKH = "s53", "s54", "s56", "s57"
    sBl, sHl, sKq, sEv = "s60", "s61", "s62", "s63"
    sKVx, sRot = "s55", "s66"
    sNon = "s[64:65]"
    sPs = [None, "s82", "s83", "s84"]; sPl = [None, "s85", "s86", "s87"]
    sF1, sOut, sRdy, sF2 = "s88", "s89", "s90", "s91"
    XA = [2, 3]; WA = [4, 5, 6, 7]; VB = [8, 9, 10, 11, 12]; VW = [13, 14, 15, 16]; KVW, NONV, L16 = 17, 18, 20
    ACC = 24; OK = 104; KA = [184, 185, 186, 187]; VA = list(range(188, 196)); NM = 196; LA = 216; L16B = 236; TCH = 237
    XA3 = [238, 239]; ZR = 240; WA3 = [244, 245, 246, 247]; VW3 = [248, 249, 250, 251]; VB3 = [252] * 4 + [253]; OUTV = 255
    SB = [24, 32, 40]; PB = [48, 52, 56]
    OS, QF, KF, VF, ONES, JUNK, K0F = 0, 80, 160, 192, 224, 228, 240
    STG = [VF + 4*i for i in range(8)] + [232, 236]
    AF = [80, 96]; BF = [112, 132]
    ST0 = 53248; STSZ = 36864; LDS = 163840; QEX = 122880
    S3 = [ST0 + STSZ, ST0 + 2*STSZ]
    FL = 256; SPIN = 100000
    MF = "v_mfma_f32_16x16x32_bf16"

    b.raw(".p2align 8")
    b.raw(f".type {NAME},@function")
    b.label(NAME)
    b("s_cmp_ge_u32 s2, 256")
    b("s_cbranch_scc1 L_end")
    b.track = False
    b("s_load_dwordx4 s[4:7], s[0:1], 0")
    b("s_load_dwordx4 s[8:11], s[0:1], 16")
    b("s_load_dwordx4 s[68:71], s[0:1], 40")
    b("s_load_dwordx2 s[76:77], s[0:1], 32")
    b("s_load_dwordx2 s[20:21], s[0:1], 56")
    b("s_memrealtime s[64:65]")
    if STAMPS: b.raw(f"{TIMER} s[94:95]")
    if TRACE: b.raw("s_memtime s[98:99]"); b.raw("s_mov_b32 s100, 0")
    b.track = True
    b("v_and_b32 v1, 63, v0\nv_lshrrev_b32 v21, 6, v0")
    b(f"s_and_b32 {sB}, s2, 1\ns_lshl_b32 {sB}, {sB}, 2\ns_lshr_b32 {sT}, s2, 3\ns_and_b32 {sBl}, {sT}, 3\ns_add_u32 {sB}, {sB}, {sBl}")
    b(f"v_readfirstlane_b32 {sW}, v21")
    b(f"s_lshr_b32 {sKq}, s2, 1\ns_and_b32 {sKq}, {sKq}, 3\ns_lshl_b32 {sH}, {sKq}, 3\ns_lshr_b32 {sHl}, {sT}, 2")
    RM = opt("rm", -1)
    if RM >= 0:
        b(f"s_add_u32 {sCls}, {sHl}, {RM}\ns_and_b32 {sCls}, {sCls}, 3\ns_and_b32 {sHl}, {sHl}, 4\ns_sub_u32 {sT2}, {sCls}, {sBl}\ns_and_b32 {sT2}, {sT2}, 3\ns_add_u32 {sHl}, {sHl}, {sT2}")
    else:
        b(f"s_add_u32 {sCls}, {sBl}, {sHl}\ns_and_b32 {sCls}, {sCls}, 3")
    b(f"s_add_u32 {sH}, {sH}, {sHl}")
    T = tables(SIG)
    b(f"s_mov_b32 s58, {T[0][0]}\ns_mov_b32 s59, {T[0][1]}\ns_mov_b32 {sMask}, {T[0][2]}")
    for j in (1, 2, 3):
        b(f"s_cmp_eq_u32 {sCls}, {j}\ns_cselect_b32 s58, {T[j][0]}, s58\ns_cselect_b32 s59, {T[j][1]}, s59\ns_cselect_b32 {sMask}, {T[j][2]}, {sMask}")
    if opt("xoff", 1) in (5, 6):
        b(f"s_and_b32 {sT2}, s2, 1\ns_lshl_b32 {sT2}, {sT2}, 1\ns_xor_b32 {sT2}, {sT2}, {sKq}")
        if opt("xoff", 1) == 6: b(f"s_lshl_b32 {sT3}, {sKq}, 1\ns_and_b32 {sT3}, {sT3}, 2\ns_xor_b32 {sT2}, {sT2}, {sT3}")
        b(f"s_mul_i32 {sT2}, {sT2}, 0x44444444\ns_xor_b32 s58, s58, {sT2}\ns_xor_b32 s59, s59, {sT2}")
    elif opt("xoff", 1):
        if opt("xoff", 1) == 1: b(f"s_xor_b32 {sT2}, s2, {sKq}")
        if opt("xoff", 1) == 2: b(f"s_lshr_b32 {sT2}, s2, 7\ns_xor_b32 {sT2}, {sT2}, s2")
        if opt("xoff", 1) == 3: b(f"s_lshr_b32 {sT2}, s2, 7\ns_xor_b32 {sT2}, {sT2}, s2\ns_xor_b32 {sT2}, {sT2}, {sKq}")
        if opt("xoff", 1) == 4: b(f"s_lshr_b32 {sT2}, s2, 7")
        b(f"s_bitcmp1_b32 {sT2}, 0\ns_cselect_b32 {sT2}, 0x88888888, 0\ns_xor_b32 s58, s58, {sT2}\ns_xor_b32 s59, s59, {sT2}")
    b(f"s_lshl_b32 {sW4}, {sW}, 12\ns_lshl_b32 {sW1}, {sW}, 10\ns_and_b32 {sQH}, {sW}, 1\ns_lshr_b32 {sKH}, {sW}, 1")
    if opt("ctouch", 2) == 2:
        b.raw("s_getpc_b64 s[92:93]")
        b.label("L_pc")
        b(f"s_lshr_b32 {sMW}, s2, 3\ns_lshl_b32 {sMW}, {sMW}, 2\ns_add_u32 {sMW}, {sMW}, {sW}\ns_lshl_b32 {sMW}, {sMW}, 7\ns_min_u32 {sMW}, {sMW}, L_last-L_pc")
        b(f"s_add_u32 s92, s92, {sMW}\ns_addc_u32 s93, s93, 0\nv_mov_b32 v24, s92\nv_mov_b32 v25, s93")
        b.raw(f"global_load_dword a{JUNK}, v[24:25], off")
    b("v_lshrrev_b32 v21, 4, v1")
    b("v_and_b32 v22, 7, v1\nv_xor_b32 v22, v22, v21\nv_lshlrev_b32 v22, 4, v22")
    b("v_lshrrev_b32 v23, 3, v1\nv_lshlrev_b32 v23, 11, v23\nv_add_u32 v22, v22, v23\nv_xor_b32 v23, 64, v22")
    b(f"s_lshl_b32 {sT}, {sW}, 16")
    for q in range(4):
        b(f"s_add_u32 {sT2}, {sT}, {q*(16384-1024)}\nv_add_u32 v{VB[q]}, {sT2}, v{23 if q & 1 else 22}")
    b(f"s_lshl_b32 {sT}, {sQH}, 6\nv_xor_b32 v{VB[4]}, {sT}, v22\ns_lshl_b32 {sT}, {sW}, 14\ns_add_u32 {sT}, {sT}, {16*16384}\nv_add_u32 v{VB[4]}, {sT}, v{VB[4]}")
    b("v_lshlrev_b32 v22, 1, v21\nv_and_b32 v23, 15, v1\nv_xor_b32 v22, v22, v23\nv_lshlrev_b32 v22, 4, v22")
    b(f"v_lshlrev_b32 v23, 13, v21\nv_add_u32 v23, v23, v22\nv_xor_b32 v{L16}, 128, v23")
    b(f"s_lshl_b32 {sT}, {sW}, 17")
    for q in range(4):
        b(f"s_add_u32 {sT2}, {sT}, {q*(32768-1024)}\nv_add_u32 v{VW[q]}, {sT2}, v{L16 if q & 2 else 23}")
    b(f"s_add_u32 {sM5}, {sW1}, 16384")
    b(f"s_lshl_b32 {sT}, {sB}, 5\ns_add_u32 {sT}, {sT}, {sH}\ns_lshl_b32 {sT}, {sT}, 17\ns_lshl_b32 {sT2}, {sH}, 8\ns_mul_i32 {sT3}, {sB}, 327680")
    b.raw("s_waitcnt lgkmcnt(0)")
    b(f"s_add_u32 s12, s6, {sT}\ns_addc_u32 s13, s7, 0")
    b(f"s_add_u32 s16, s8, {sT}\ns_addc_u32 s17, s9, 0")
    b(f"s_add_u32 s8, s10, {sT2}\ns_addc_u32 s9, s11, 0\ns_sub_u32 s10, 8388608, {sT2}\ns_mov_b32 s11, 0x20000")
    b(f"s_add_u32 s4, s4, {sT3}\ns_addc_u32 s5, s5, 0\ns_mov_b32 s6, 327680\ns_mov_b32 s7, 0x20000")
    def dma_lists(vw, sw, vb, sx, fl=""):
        return ([f"buffer_load_dwordx4 v{vw[q]}, {sw}, {sWO} offen offset:{q*1024} lds" for q in range(4)],
                [f"buffer_load_dwordx4 v{vb[q]}, {sx}, {sXO} offen offset:{q*1024} {fl} lds" for q in range(4)] +
                [f"buffer_load_dwordx4 v{vb[4]}, {sx}, {sXO} offen {fl} lds"])
    DW, DX = dma_lists(VW, SW, VB, SX)
    DW3, DX3 = dma_lists(VW3, SW3, VB3, SX3, H1L)
    def first_stage(st):
        base = ST0 + ((st+2)%3)*STSZ
        b(f"s_and_b32 {sT}, s58, 15\ns_add_u32 m0, {sW4}, {base+20480}\ns_lshl_b32 {sWO}, {sT}, 19")
        for x in DW: b(x)
        b(f"s_add_u32 m0, {sW4}, {base}\ns_lshl_b32 {sXO}, {sT}, 7")
        for x in DX[:4]: b(x)
    def first_stage_last(st):
        base = ST0 + ((st+2)%3)*STSZ
        b(f"s_add_u32 m0, {sM5}, {base}\ns_lshr_b64 s[58:59], s[58:59], 4")
        b(DX[4])
    if opt("sta", 0) == 1: stamp(b, 15)
    first_stage(0)
    if not opt("late5", 0): first_stage_last(0)
    if opt("sta", 0) == 2: stamp(b, 15)
    if STAMPS: b.raw("v_writelane_b32 v254, s94, 0"); b.raw("v_writelane_b32 v254, s95, 1")
    if opt("ctouch", 2) == 1:
        b.raw("s_getpc_b64 s[92:93]")
        b.label("L_pc")
        b(f"s_lshr_b32 {sMW}, s2, 3\ns_lshl_b32 {sMW}, {sMW}, 2\ns_add_u32 {sMW}, {sMW}, {sW}\ns_lshl_b32 {sMW}, {sMW}, 7\ns_min_u32 {sMW}, {sMW}, L_last-L_pc")
        b(f"s_add_u32 s92, s92, {sMW}\ns_addc_u32 s93, s93, 0\nv_mov_b32 v24, s92\nv_mov_b32 v25, s93")
        b.raw(f"global_load_dword a{JUNK}, v[24:25], off")
    b(f"s_mov_b32 {sRB}, {ST0 + 2*STSZ}\ns_mov_b32 {sCnt}, 0\ns_mov_b32 {sDB}, {ST0 + STSZ}\ns_mov_b32 {sEv}, 0")
    b("v_and_b32 v26, 15, v1\nv_lshrrev_b32 v27, 1, v26\nv_xor_b32 v27, v27, v21\nv_lshlrev_b32 v27, 4, v27\nv_lshlrev_b32 v25, 7, v26\nv_add_u32 v27, v27, v25")
    b(f"s_mul_i32 {sT}, {sQH}, 10240\ns_add_u32 {sT}, {sT}, {sRB}")
    for u in range(2): b(f"v_xor_b32 v{XA[u]}, {u*64}, v27\nv_add_u32 v{XA[u]}, {sT}, v{XA[u]}")
    b("v_lshrrev_b32 v30, 2, v1\nv_and_b32 v31, 7, v30\nv_and_b32 v26, 3, v30")
    b(f"s_lshl_b32 {sT}, {sKH}, 2\nv_xor_b32 v27, {sT}, v31\nv_lshlrev_b32 v27, 5, v27")
    b("v_lshlrev_b32 v25, 3, v21\nv_add_u32 v28, v25, v26\nv_lshlrev_b32 v28, 8, v28")
    b("v_and_b32 v29, 3, v1\nv_lshlrev_b32 v29, 3, v29\nv_add3_u32 v28, v28, v27, v29")
    b(f"s_add_u32 {sT}, {sRB}, 20480")
    for d in range(4): b(f"v_xor_b32 v{WA[d]}, {d*32}, v28\nv_add_u32 v{WA[d]}, {sT}, v{WA[d]}")
    b("v_lshlrev_b32 v23, 8, v21\nv_add_u32 v22, v22, v23")
    b(f"s_lshl_b32 {sT}, {sQH}, 7\nv_xor_b32 v{KVW}, {sT}, v22\nv_add_u32 v{KVW}, {sW1}, v{KVW}")
    ROT = opt("rot", 3)
    if ROT == 0: b(f"s_mov_b32 {sRot}, 0")
    if ROT == 1: b(f"s_lshr_b32 {sRot}, s2, 3\ns_lshl_b32 {sT}, s2, 2\ns_add_u32 {sRot}, {sRot}, {sT}\ns_and_b32 {sRot}, {sRot}, 31\ns_lshl_b32 {sRot}, {sRot}, 12")
    if ROT == 2: b(f"s_and_b32 {sRot}, {sH}, 31\ns_lshl_b32 {sRot}, {sRot}, 12")
    if ROT == 3: b(f"s_mul_i32 {sRot}, s2, 0x9E3779B1\ns_lshr_b32 {sRot}, {sRot}, 27\ns_lshl_b32 {sRot}, {sRot}, 12")
    b(f"s_mov_b32 {sKVm}, {sW1}\ns_mov_b32 {sKVs}, 0\ns_mov_b32 {sKVx}, {sRot}")
    b("s_mov_b32 s14, 131072\ns_mov_b32 s15, 0x20000\ns_mov_b32 s18, 131072\ns_mov_b32 s19, 0x20000")
    b(f"s_mov_b32 s22, {268435456 if STAMPS else WSREC}\ns_mov_b32 s23, 0x20000")
    b("s_mov_b32 s24, s70\ns_mov_b32 s25, s71\ns_mov_b32 s26, 256\ns_mov_b32 s27, 0x20000")
    b(f"s_add_u32 s68, s68, {sT3}\ns_addc_u32 s69, s69, 0\ns_mov_b32 s70, 327680\ns_mov_b32 s71, 0x20000")
    b(f"s_lshl_b32 {sT}, {sB}, 2\ns_add_u32 {sT}, {sT}, {sKq}\ns_mul_i32 {sT}, {sT}, 327680\ns_add_u32 s72, s20, {sT}\ns_addc_u32 s73, s21, 0\ns_mov_b32 s74, 327680\ns_mov_b32 s75, 0x20000")
    b(f"s_lshl_b32 {sT}, {sKq}, 13\ns_add_u32 {sT}, {sT}, {sHl}\ns_lshl_b32 {sT}, {sT}, 8\ns_add_u32 s76, s76, {sT}\ns_addc_u32 s77, s77, 0\ns_sub_u32 s78, 8388608, {sT}\ns_mov_b32 s79, 0x20000")
    if opt("sta", 0) == 3: stamp(b, 15)
    SENT = 0; F2W = opt("f2w", 0); CLR = 2

    def zero(r):
        big = int(r.split(":")[1][:-1]) - int(r.split("[")[1].split(":")[0]) == 15
        return f"{'v_mfma_f32_32x32x16_bf16' if big else MF} {r}, {vr(ZR,4)}, {vr(ZR,4)}, 0"
    ZEROS = [zero(vr(OK+16*i, 16)) for i in range(5)] + [zero(ar(OS+16*i, 16)) for i in range(5)] + [zero(vr(LA, 16)), zero(vr(LA+16, 4))]
    def p2_addr():
        b("v_lshrrev_b32 v21, 4, v1\nv_and_b32 v22, 7, v1\nv_lshlrev_b32 v22, 1, v22\nv_xor_b32 v22, v22, v21\nv_lshlrev_b32 v22, 4, v22")
        b("v_and_b32 v23, 15, v1\nv_lshlrev_b32 v23, 8, v23\nv_add_u32 v22, v22, v23")
        b(f"s_lshl_b32 {sT}, {sKH}, 14")
        for d in range(4): b(f"v_xor_b32 v{KA[d]}, {d*64}, v22\nv_add_u32 v{KA[d]}, {sT}, v{KA[d]}")
        b(f"v_lshrrev_b32 v21, 2, v1\nv_and_b32 v22, 7, v21\ns_lshl_b32 {sT2}, {sKH}, 2\nv_xor_b32 v22, {sT2}, v22\nv_lshlrev_b32 v22, 5, v22")
        b("v_lshlrev_b32 v21, 8, v21\nv_and_b32 v23, 3, v1\nv_lshlrev_b32 v23, 3, v23\nv_add3_u32 v22, v22, v21, v23")
        b(f"s_add_u32 {sT}, {sT}, 4096")
        for j in range(8): b(f"v_xor_b32 v{VA[j]}, {j*32}, v22\nv_add_u32 v{VA[j]}, {sT}, v{VA[j]}")
        b(f"s_mov_b32 {sPB}, 0")
    def spread(i0, extra):
        code = b.L[i0:]; b.L = b.L[:i0]
        step = max(1, len(code) // (len(extra) + 1))
        for i, ln in enumerate(code):
            if i % step == 0 and 1 <= i // step <= len(extra): b.L.append(extra[i // step - 1])
            b.L.append(ln)
    def setup_a():
        for i in range(4): b(f"v_mov_b32 v{ZR+i}, 0")
        b(f"v_lshlrev_b32 v{L16}, 4, v1\nv_add_u32 v{L16B}, 4096, v{L16}")
        i0 = len(b.L)
        p2_addr()
        b("v_mov_b32 v21, 0x3f803f80")
        if ROW1: b("v_and_b32 v22, 15, v1\nv_cmp_eq_u32 s[92:93], 0, v22\nv_cndmask_b32 v21, 0, v21, s[92:93]")
        for i in range(4): b(f"v_accvgpr_write_b32 a{ONES+i}, v21")
        b(f"s_mov_b32 {sPass}, 0\ns_mov_b32 {sCc}, {f32bits(math.log2(math.e) / math.sqrt(128.0))}")
        spread(i0, ZEROS[:6])
    def setup_b():
        i0 = len(b.L)
        b("v_lshrrev_b32 v21, 4, v1\nv_lshlrev_b32 v22, 1, v21\nv_and_b32 v23, 15, v1\nv_xor_b32 v22, v22, v23\nv_lshlrev_b32 v22, 4, v22")
        b(f"v_lshlrev_b32 v23, 11, v23\nv_lshlrev_b32 v{OUTV}, 3, v21\nv_add_u32 v{OUTV}, v{OUTV}, v23")
        b(f"v_lshlrev_b32 v23, 11, v21\nv_add_u32 v23, v23, v22\nv_xor_b32 v22, 128, v23\ns_lshl_b32 {sT}, {sW}, 15")
        for q in range(4):
            b(f"s_add_u32 {sT2}, {sT}, {q*(8192-1024)}\nv_add_u32 v{VW3[q]}, {sT2}, v{22 if q & 1 else 23}")
        b(f"v_add_u32 v{VB3[0]}, {sW4}, v{L16}\nv_add_u32 v{VB3[4]}, {sM5}, v{L16}")
        b(f"s_mul_i32 {sT}, {sQH}, 5120\ns_add_u32 {sT}, {sT}, {S3[0]}\nv_add_u32 v{XA3[0]}, {sT}, v{L16}\nv_add_u32 v{XA3[1]}, 10240, v{XA3[0]}")
        b(f"v_lshrrev_b32 v21, 2, v1\nv_and_b32 v22, 7, v21\ns_lshl_b32 {sT}, {sKq}, 1\ns_add_u32 {sT}, {sT}, {sKH}\nv_xor_b32 v22, {sT}, v22\nv_lshlrev_b32 v22, 5, v22")
        b("v_lshlrev_b32 v21, 8, v21\nv_and_b32 v23, 3, v1\nv_lshlrev_b32 v23, 3, v23\nv_add3_u32 v22, v22, v21, v23")
        for d in range(4): b(f"v_xor_b32 v{WA3[d]}, {d*64}, v22\nv_add_u32 v{WA3[d]}, {S3[0]+20480}, v{WA3[d]}")
        b(f"s_lshl_b32 {sOut}, {sT}, 5\ns_mul_i32 {sT2}, {sQH}, 163840\ns_add_u32 {sOut}, {sOut}, {sT2}\ns_lshl_b32 {sT3}, {sHl}, 8\ns_add_u32 {sOut}, {sOut}, {sT3}")
        b(f"s_mov_b32 s80, {order3(0,0)[0]}\ns_mov_b32 s81, {order3(0,0)[1]}")
        for bb in range(1, 8 if SIG3.endswith("p") else 4):
            b(f"s_cmp_eq_u32 {sB if SIG3.endswith('p') else sBl}, {bb}\ns_cselect_b32 s80, {order3(bb & 3, bb >> 2)[0]}, s80\ns_cselect_b32 s81, {order3(bb & 3, bb >> 2)[1]}, s81")
        b(f"s_mul_i32 {sT}, {sHl}, 0x22222222\ns_xor_b32 s80, s80, {sT}\ns_xor_b32 s81, s81, {sT}")
        if TOUCH == 1:
            if THALF: b(f"s_lshr_b32 {sT}, s2, 3\ns_lshl_b32 {sT}, {sT}, 1\ns_and_b32 {sT2}, s2, 1\ns_add_u32 {sT}, {sT}, {sT2}\ns_lshl_b32 {sT}, {sT}, 15")
            else: b(f"s_lshr_b32 {sT}, s2, 3\ns_lshl_b32 {sT}, {sT}, 16")
            b(f"s_sub_u32 {sT}, {sT}, {sT3}\ns_lshl_b32 {sT2}, {sW}, {13 if THALF else 14}\ns_add_u32 {sT}, {sT}, {sT2}")
            b(f"v_cmp_gt_u32 s[92:93], {TL}, v1\nv_lshlrev_b32 v21, 7, v1\nv_add_u32 v21, {sT}, v21\nv_mov_b32 v22, 0x40000000\nv_cndmask_b32 v{TCH}, v22, v21, s[92:93]")
        if TOUCH == 8:
            b(f"s_and_b32 {sT}, s80, 14\ns_lshl_b32 {sT}, {sT}, 17\ns_lshl_b32 {sT2}, {sW}, 16\ns_add_u32 {sT}, {sT}, {sT2}")
            b(f"v_lshrrev_b32 v21, 1, v1\nv_lshlrev_b32 v21, 11, v21\nv_and_b32 v22, 1, v1\nv_lshlrev_b32 v22, 7, v22\nv_add3_u32 v{TCH}, v21, v22, {sT}")
        if TOUCH == 7:
            b(f"s_and_b32 {sT}, s80, 15\ns_lshl_b32 {sT}, {sT}, 17\ns_lshl_b32 {sT2}, {sW}, 15\ns_add_u32 {sT}, {sT}, {sT2}")
            b(f"v_lshrrev_b32 v21, 1, v1\nv_lshlrev_b32 v21, 11, v21\nv_and_b32 v22, 1, v1\nv_lshlrev_b32 v22, 7, v22\nv_add3_u32 v21, v21, v22, {sT}")
            b(f"v_lshrrev_b32 v22, 5, v1\nv_lshlrev_b32 v22, 30, v22\nv_add_u32 v{TCH}, v21, v22")
        spread(i0, ZEROS[6:])
    def setup_c():
        b(f"s_mul_i32 {sT}, {sB}, 1310720\ns_lshl_b32 {sT2}, {sH}, 1\ns_add_u32 {sT2}, {sT2}, {sKH}\ns_mul_i32 {sT2}, {sT2}, 20480\ns_add_u32 {sO0}, {sT}, {sT2}")
        b(f"s_mul_i32 {sT2}, {sQH}, 5120\ns_add_u32 {sO0}, {sO0}, {sT2}\ns_add_u32 {sO1}, {sO0}, 10240")
        b(f"s_lshl_b32 {sT}, {sB}, 2\ns_add_u32 {sT}, {sT}, {sKq}\ns_mul_i32 {sT}, {sT}, {FS1}\ns_add_u32 {sF1}, {sT}, {FLG1}")
        b(f"s_lshl_b32 {sT}, {sB}, 3\ns_add_u32 {sT}, {sT}, {sHl}\ns_lshl_b32 {sF2}, {sT}, 2")
        if F2W: b(f"s_add_u32 {sF2}, {sF2}, {sW}")
        b(f"s_mul_i32 {sF2}, {sF2}, {FS2}\ns_add_u32 {sF2}, {sF2}, {FLG2}")
        b(f"s_mul_i32 {sT}, {sT}, {16*PSL}\ns_mul_i32 {sT2}, {sW}, {PSL//4}\ns_add_u32 {sT}, {sT}, {sT2}\ns_add_u32 {sT}, {sT}, {PART}")
        for d in (1, 2, 3):
            b(f"s_xor_b32 {sT2}, {sKq}, {d}\ns_lshl_b32 {sT3}, {sT2}, 2\ns_add_u32 {sT3}, {sT3}, {sKq}\ns_mul_i32 {sT3}, {sT3}, {PSL}\ns_add_u32 {sPs[d]}, {sT}, {sT3}")
            b(f"s_lshl_b32 {sT3}, {sKq}, 2\ns_add_u32 {sT3}, {sT3}, {sT2}\ns_mul_i32 {sT3}, {sT3}, {PSL}\ns_add_u32 {sPl[d]}, {sT}, {sT3}")
        b("v_lshrrev_b32 v21, 5, v1\nv_lshlrev_b32 v21, 8, v21\nv_and_b32 v22, 15, v1\nv_lshlrev_b32 v22, 4, v22\nv_lshrrev_b32 v23, 1, v1\nv_and_b32 v23, 8, v23\nv_add3_u32 v21, v21, v22, v23")
        b(f"s_mul_i32 {sT2}, {sQH}, 20480\ns_add_u32 {sT2}, {sT2}, {QEX}\nv_add_u32 v22, {sT2}, v{L16}\ns_lshl_b32 {sT3}, {sKH}, 11\ns_add_u32 {sT2}, {sT2}, {sT3}\nv_add_u32 v21, {sT2}, v21")
        b("v_and_b32 v23, 48, v1")

    if opt("early", 0):
        setup_a(); setup_b(); setup_c()
    for i in range(40, 80): b(f"v_mov_b32 v{ACC+i}, 0")
    first_stage(1); first_stage_last(1)
    for r in [L16B, TCH, ZR, OUTV] + VW3 + [VB3[0], VB3[4]]: b(f"v_mov_b32 v{r}, 0")
    b(f"s_or_b32 {sT}, s2, {sW}\ns_cmp_lg_u32 {sT}, 0")
    b("s_cbranch_scc1 L_nonon")
    b(f"s_or_b32 s64, s64, 1\nv_mov_b32 v24, s64\nv_mov_b32 v25, s65")
    b(f"buffer_store_dwordx2 v[24:25], v{ZR}, {SD}, 0 offen sc0 sc1")
    b.label("L_nonon")
    b.vm = []
    b.raw("s_waitcnt vmcnt(9)")
    stamp(b, 1)

    def g_mfmas(buf, dord=(0, 1, 2, 3), c0=False, snake=False):
        return [f"{MF} {vr(ACC+(d*5+q)*4,4)}, {ar(AF[buf]+4*d,4)}, {ar(BF[buf]+4*q,4)}, {'0' if c0 else vr(ACC+(d*5+q)*4,4)}"
                for d in dord for q in (range(4, -1, -1) if snake and d & 1 else range(5))]
    def emit(x):
        if callable(x): x()
        else: b(x)
    def g_step(ph, dm, fill, first=False, more=(), bar=True, last=20):
        if bar:
            trace(b); b("s_barrier"); trace(b)
        vs, qs = ((1024, 2048), (4096, 1024))[ph == 3]
        xa, wa = (XA, WA) if ph == 1 else (XA3, WA3)
        more = list(more)
        for u in range(2):
            A = lambda d: [f"ds_read_b64_tr_b16 {ar(AF[u]+4*d+2*v,2)}, v{wa[d]} offset:{u*8192+v*vs}" for v in range(2)]
            rd = A(0) + [f"ds_read_b128 {ar(BF[u]+4*q,4)}, v{xa[u]} offset:{q*qs}" for q in range(5)] + A(1) + A(2) + A(3)
            mf = g_mfmas(u ^ 1, c0=first, snake=bool(opt('snake', 1)) and not EB1)
            if first and u == 0:
                for s in rd: b(s)
                rd = []
            for i in range(20 if u == 0 else last):
                if not (first and u == 0): b(mf[i])
                if (u, i) in dm: b(dm[(u, i)])
                elif rd: b(rd.pop(0))
                elif more: b(more.pop(0))
                for s in fill.get((u, i), []): emit(s)
                pad = opt(f"pad{ph}", 0)
                if pad and not first and i < 12 and fill.get((u, i)) and (u, i) not in dm:
                    g_step.cnt += pad
                    if g_step.cnt >= 16:
                        g_step.cnt -= 16; b("s_nop 1")
                if u == 0 and i == 18: need(b, [ar(AF[0], 8), ar(BF[0], 20)])
                if u == 1 and i == 4: need(b, [ar(AF[0], 16)])
            assert not rd
        return more
    g_step.cnt = 0
    va = lambda r: f"v_add_u32 v{r}, {sDelta}, v{r}"
    def ringf(ph):
        xa, wa = (XA, WA) if ph == 1 else (XA3, WA3)
        return {(0, 7): [f"s_add_u32 {sT2}, {sRB}, {STSZ}"], (0, 9): [f"s_cmp_ge_u32 {sT2}, {LDS}"], (0, 10): [f"s_cselect_b32 {sT2}, {ST0}, {sT2}"],
                (0, 11): [f"s_sub_u32 {sDelta}, {sT2}, {sRB}"], (0, 14 if not opt("dg", 0) else 12): [va(xa[0])],
                (1, 2): [va(wa[0])], (1, 7): [va(xa[1])], (1, 10): [va(wa[1])], (1, 12): [va(wa[2])], (1, 15): [va(wa[3])]}
    DG = [(0, 4), (0, 8), (0, 12), (0, 16), (0, 19), (1, 9), (1, 13), (1, 16), (1, 18)]
    if opt("dg", 0) == 1: DG = [(0, 13), (0, 14), (0, 15), (0, 16), (0, 19), (1, 9), (1, 13), (1, 16), (1, 18)]
    def loopf(ph):
        f = ringf(ph)
        sg = "s58" if ph == 1 else "s80"; sgp = "s[58:59]" if ph == 1 else "s[80:81]"
        f.update({(0, 0): [f"s_and_b32 {sT}, {sg}, 15"], (0, 1): [f"s_lshl_b32 {sWO}, {sT}, {19 if ph == 1 else 17}"],
                  (0, 2): [f"s_add_u32 {sMX}, {sDB}, {sW4}"], (0, 3): [f"s_add_u32 m0, {sMX}, 20480"],
                  (0, 5): [f"s_lshl_b32 {sXO}, {sT}, 7" if ph == 1 else f"s_mul_i32 {sXO}, {sT}, 20480"],
                  (0, 6): [f"s_lshr_b64 {sgp}, {sgp}, 4"], (0, 17): [f"s_mov_b32 m0, {sMX}"],
                  (1, 0): [f"s_add_u32 {sMW}, {sDB}, {sM5}"], (1, 1): [f"s_mov_b32 {sDB}, {sRB}"], (1, 3): [f"s_mov_b32 {sRB}, {sT2}"],
                  (1, 5): [f"s_add_u32 {sCnt}, {sCnt}, 1"], (1, 6): [f"s_cmp_lt_u32 {sCnt}, 14"], (1, 8): ["s_cselect_b64 vcc, -1, 0"],
                  (1, 17): [f"s_mov_b32 m0, {sMW}"] + ([f"s_bitcmp1_b32 {sMask}, {sCnt}"] if ph == 1 else [])})
        return f
    EB1 = opt("eb1", 0); EB3 = opt("eb3", 1); BP = opt("bp", 17)
    DGE = [(0, 4), (0, 8), (0, 12), (0, 16), (1, 13), (1, 14), (1, 15), (1, 16), (0, 19)]
    def loope(ph, sync):
        f = loopf(ph)
        f[(0, 15)] = f.pop((1, 0)); f[(0, 17)] = [f"s_mov_b32 m0, {sMW}"]
        f[(1, 9)] = f.pop((1, 10)); f[(1, 11)] = f.pop((1, 12)); f[(1, 10)] = [f"s_mov_b32 m0, {sMX}"]
        w3 = f.pop((1, 15)); f.pop((1, 17))
        if ph == 1: f[(1, 12)] = [f"s_bitcmp1_b32 {sMask}, {sCnt}"]
        f[(1, BP)] = [sync]
        f.setdefault((1, 19 if BP == 18 else 18), []).extend(w3)
        return f
    def auto(ph, gaps, hook=None):
        xa, wa = (XA, WA) if ph == 1 else (XA3, WA3)
        sg = "s58" if ph == 1 else "s80"; sgp = "s[58:59]" if ph == 1 else "s[80:81]"
        rp = [[g for g in range(20*u, 20*u + 20) if g not in gaps][:13] for u in range(2)]
        it = [(f"s_and_b32 {sT}, {sg}, 15", 0, gaps[0]-1), (f"s_lshl_b32 {sWO}, {sT}, {19 if ph == 1 else 17}", 0, gaps[0]-1),
              (f"s_add_u32 m0, {sMX}, 20480", 0, gaps[0]-1),
              (f"s_lshl_b32 {sXO}, {sT}, 7" if ph == 1 else f"s_mul_i32 {sXO}, {sT}, 20480", 0, gaps[4]-1)]
        if ph == 3: it.append((f"s_lshr_b32 {sT3}, {sT}, 1", 0, gaps[4]-2))
        it += [(f"s_lshr_b64 {sgp}, {sgp}, 4", 0, 39), (f"s_add_u32 {sT2}, {sRB}, {STSZ}", 0, 39), (f"s_cmp_ge_u32 {sT2}, {LDS}", 0, 39),
               (f"s_cselect_b32 {sT2}, {ST0}, {sT2}", 0, 39), (f"s_sub_u32 {sDelta}, {sT2}, {sRB}", 0, 39), (va(xa[0]), rp[0][6], 39),
               (f"s_mov_b32 m0, {sMX}", gaps[3]+1, gaps[4]-1)]
        if ph == 3: it += [(f"s_bitcmp0_b32 {sRdy}, {sT3}", 0, gaps[4]-1), (hook, 0, gaps[4]-1)]
        it += [(f"s_add_u32 {sMW}, {sDB}, {sM5}", 0, 39), (f"s_add_u32 {sMX}, {sRB}, {sW4}", 0, 39), (f"s_mov_b32 {sDB}, {sRB}", 0, 39), (va(wa[0]), rp[1][1], 39),
               (f"s_mov_b32 {sRB}, {sT2}", 0, 39), (f"s_add_u32 {sCnt}, {sCnt}, 1", 0, 39), (f"s_cmp_lt_u32 {sCnt}, 14", 0, 39),
               ("s_cselect_b64 vcc, -1, 0", 0, 39), (va(xa[1]), rp[1][6], 39), (va(wa[1]), rp[1][8], 39), (va(wa[2]), rp[1][10], 39)]
        late = [(f"s_mov_b32 m0, {sMW}", gaps[7]+1, gaps[8]-1), (va(wa[3]), rp[1][12], 39)]
        late.sort(key=lambda x: x[1])
        it += late
        if ph == 1: it.append((f"s_bitcmp1_b32 {sMask}, {sCnt}", 0, 39))
        cap = {g: (0 if g in gaps else 1 if g in rp[0] + rp[1] else 3) for g in range(40)}
        cap[18] -= 1; cap[24] -= 1
        fill = {}; g = 0
        for k, (ins, lo, hi) in enumerate(it):
            hi = min([hi] + [x[2] for x in it[k+1:]])
            g = max(g, lo)
            while g < hi and cap[g] <= 0: g += 1
            while g in gaps and g > max(lo, 0) and g >= hi: g -= 1
            assert g <= hi, (ins, g, hi)
            cap[g] -= 1
            fill.setdefault(divmod(g, 20), []).append(ins)
        return [divmod(g, 20) for g in gaps], fill
    AG = [int(x) for x in opt("ag", "0").split(".")]
    def first_fill(ph):
        f = loopf(ph); g = {}
        g[(0, 0)] = sum([f[(0, i)] for i in (0, 1, 2, 3, 5, 6, 7, 9, 10, 11, 14 if not opt('dg', 0) else 12)], []) + f[(1, 0)] + f[(1, 1)] + f[(1, 3)] + f[(1, 5)] + f[(1, 6)] + f[(1, 8)]
        return f, g
    def cseq(ph):
        X = (0, 1, 2, 3) if ph == 1 else (1, 2, 3, 0)
        out = []; k = 0
        for bi, d in enumerate(X):
            for q in (range(4, -1, -1) if bi == 1 else range(5)):
                out += [(k, d, q), (k ^ 1, d, q)]; k ^= 1
        return X, out
    def cm(u, d, q, c0=False):
        t = vr(ACC+(d*5+q)*4, 4)
        return f"{MF} {t}, {ar(AF[u]+4*d,4)}, {ar(BF[u]+4*q,4)}, {'0' if c0 else t}"
    def c_step(ph, mem, it, first=False, bar=True, upd=True, pre=()):
        if bar:
            trace(b); b("s_barrier"); trace(b)
        vs, qs = ((1024, 2048), (4096, 1024))[ph == 3]
        xa, wa = (XA, WA) if ph == 1 else (XA3, WA3)
        X, sq = cseq(ph); body = sq[20:] + sq[:20]
        A = lambda d: [f"ds_read_b64_tr_b16 {ar(AF[u]+4*d+2*v,2)}, v{wa[d]} offset:{u*8192+v*vs}" for u in range(2) for v in range(2)]
        Bq = lambda u, q: f"ds_read_b128 {ar(BF[u]+4*q,4)}, v{xa[u]} offset:{q*qs}"
        rd = dict(zip([g for g in range(10) if g not in mem][:8], A(X[0]) + A(X[1])))
        bl = {g: Bq(body[g][0], body[g][2]) for g in range(10, 20)}
        for g in range(10, 20):
            if g in mem: assert g % 2 == 0
            else: rd[g] = bl[g] if g - 1 not in mem or g % 2 == 0 else bl[g - 1] + "\n" + bl[g]
        rd.update(dict(zip(range(21, 37, 2), A(X[2]) + A(X[3]))))
        assert not set(rd) & set(mem) and len([g for g in rd if g < 10]) == 8
        cap = {g: (0 if g in mem or '\n' in rd.get(g, '') else 1 if g in rd else 3) for g in range(40)}
        for g in (19, 21, 23, 25, 27): cap[g] -= 1
        fill = {}
        def place(items):
            g = 0
            for k, (ins, lo, hi) in enumerate(items):
                hi = min([hi] + [x[2] for x in items[k+1:]])
                g = max(g, lo)
                while g < hi and cap[g] <= 0: g += 1
                while g in mem and g > lo and g >= hi: g -= 1
                assert g <= hi, (ins, g, hi)
                cap[g] -= 1
                fill.setdefault(g, []).append(ins)
        place(list(it))
        if upd: place([(va(wa[X[0]]), 19, 39), (va(wa[X[1]]), 19, 39), (va(xa[0]), 19, 39), (va(xa[1]), 19, 39), (va(wa[X[2]]), 27, 39), (va(wa[X[3]]), 35, 39)])
        if first:
            for x in A(X[0]) + [bl[g] for g in range(10, 20)] + A(X[1]): b(x)
            for x in pre: b(x)
        for g in range(40):
            if not (first and g < 20):
                b(cm(*body[g], c0=first and g % 2 == 0))
                if g in rd: b(rd[g])
            if g in mem: b(mem[g])
            for x in fill.get(g, []): emit(x)
            if g in (19, 21, 23, 25, 27):
                q = (g - 19) // 2
                need(b, [ar(BF[0]+4*q, 4), ar(BF[1]+4*q, 4)])
            if first and g == 28: need(b, [ar(AF[0]+4*X[1], 4), ar(AF[1]+4*X[1], 4)])
    ring_it = [(f"s_add_u32 {sT2}, {sRB}, {STSZ}", 0, 18), (f"s_cmp_ge_u32 {sT2}, {LDS}", 0, 18), (f"s_cselect_b32 {sT2}, {ST0}, {sT2}", 0, 18),
               (f"s_sub_u32 {sDelta}, {sT2}, {sRB}", 0, 18)]
    def loop_it(ph, G, hook=None, xload=True):
        sg = "s58" if ph == 1 else "s80"; sgp = "s[58:59]" if ph == 1 else "s[80:81]"
        it = [(f"s_and_b32 {sT}, {sg}, 15", 0, G[0]-1), (f"s_lshl_b32 {sWO}, {sT}, {19 if ph == 1 else 17}", 0, G[0]-1),
              (f"s_add_u32 {sMX}, {sDB}, {sW4}", 0, G[0]-1), (f"s_add_u32 m0, {sMX}, 20480", 0, G[0]-1)] + ring_it
        it += [(f"s_lshl_b32 {sXO}, {sT}, 7" if ph == 1 else f"s_mul_i32 {sXO}, {sT}, 20480", 0, 39)]
        if ph == 3: it.append((f"s_lshr_b32 {sT3}, {sT}, 1", 0, 39))
        if xload:
            it.append((f"s_mov_b32 m0, {sMX}", G[3]+1, G[4]-1))
            if hook: it += [(f"s_bitcmp0_b32 {sRdy}, {sT3}", 0, G[4]-1), (hook, 0, G[4]-1)]
        it += [(f"s_lshr_b64 {sgp}, {sgp}, 4", 0, 39), (f"s_add_u32 {sMW}, {sDB}, {sM5}", 0, 39), (f"s_mov_b32 {sDB}, {sRB}", 0, 39),
               (f"s_mov_b32 {sRB}, {sT2}", 0, 39), (f"s_add_u32 {sCnt}, {sCnt}, 1", 0, 39)]
        if xload:
            it += [(f"s_cmp_lt_u32 {sCnt}, 14", 0, 39), ("s_cselect_b64 vcc, -1, 0", 0, 39), (f"s_mov_b32 m0, {sMW}", G[7]+1, G[8]-1)]
            if ph == 1: it.append((f"s_bitcmp1_b32 {sMask}, {sCnt}", 0, 39))
        return it
    CG = [int(x) for x in opt("cg", "4.9.14.20.24.28.32.34.38").split(".")]
    G0 = [20, 22, 24, 26, 30, 32, 34, 36, 38]
    c_step(1, dict(zip(G0, DW + DX)), loop_it(1, G0), first=True)
    b("s_branch L_p1end")
    b.raw(f".p2align {opt('al', 3)}")
    b.label("L_p1")
    b.lg = []
    i0 = len(b.L)
    c_step(1, dict(zip(CG, DW + DX)), loop_it(1, CG))
    b.label("L_p1end")
    b("s_cbranch_scc1 L_aux")
    b.wait(lg=0, vm=9)
    b.label("L_auxback")
    b("s_cbranch_vccnz L_p1")
    print("gemm step estimate", estimate(b.L[i0:], verbose=VERB))
    b.vm = []
    stamp(b, 2)
    KLD = f"buffer_load_dwordx4 v{KVW}, {SK}, {sKVx} offen {KVFL} lds"
    VLD = f"buffer_load_dwordx4 v{KVW}, {SV}, {sKVx} offen {KVFL} lds"
    M0K = f"s_mov_b32 m0, {sKVm}"; M0V = f"s_add_u32 m0, m0, 4096"
    ADV = [f"s_add_u32 {sKVm}, {sKVm}, 8192", f"s_add_u32 {sKVs}, {sKVs}, 4096"]
    XR = f"s_xor_b32 {sKVx}, {sKVs}, {sRot}"
    def pair():
        b(M0K); b(ADV[0]); b(KLD); b(M0V); b(ADV[1]); b(VLD); b(XR)
    NS = opt("ns", 2)
    n14 = opt("n14", 2); n15 = opt("n15", 2); nq = opt("nq", 2); NPI = opt("npi", 2); KXL = [int(x) for x in opt("kxl", "3.4.5").split(".") if x] or list(range(opt("kx", 0))); KX = len(KXL); KSL = [int(x) for x in opt("ksl", "0.1.2.3.4.5").split(".")]; KS = len(KSL); IENT = opt("ient", 32 - 6 * NPI - KX + (6 - KS)); NA = opt("na", 6); npro = IENT - NA - NS - n14 - n15 - nq
    assert n14 <= 4 and n15 <= 4 and 0 <= nq <= 3 and 0 <= npro <= 5 and NA + n14 + n15 + nq <= 15 and NA + n14 <= 11
    pro1 = 1 if npro >= 1 and NA + n14 + n15 + nq < 15 else 0; pro2 = (npro - pro1 + 1) // 2; pro3 = npro - pro1 - pro2
    def k_read(i): return f"ds_read_b128 {ar(KF+4*i,4)}, v{KA[i%4]} offset:{(i//4)*8192}"
    def v_read(j): return [f"ds_read_b64_tr_b16 {ar(VF+4*j+2*v,2)}, v{VA[j]} offset:{v*8192}" for v in range(2)]
    def kv_step(n, it, more, upd):
        gs = {1: [(8, 22)], 2: [(8, 20), (28, 36)], 3: [(8, 20), (24, 28), (32, 36)]}[n]
        mem = {}; it = list(it); lo = 0
        for k, v in gs:
            mem[k] = KLD; mem[v] = VLD
            it += [(M0K, lo, k-1), (ADV[0], lo, k-1), (M0V, k+1, v-1), (ADV[1], k+1, v-1), (XR, v+1, 39)]; lo = v + 1
        it = [(x, l, min(h, min([y[2] for y in it[i+1:]] + [39]))) for i, (x, l, h) in enumerate(it)]
        for g in (22, 24, 26, 30, 32, 34, 38, 39):
            if g not in mem and more: mem[g] = more.pop(0)
        c_step(1, mem, it, upd=upd)
    assert NA >= 4 and n14 <= 3 and n15 <= 3
    kv_step(n14, ring_it, [], True)
    b.wait(lg=0, vm=2*n14)
    kfirst = [f"ds_read_b128 {ar(K0F+4*d,4)}, v23 offset:{d*64}" for d in range(4)] + [k_read(i) for i in range(8)]
    more = list(kfirst)
    kv_step(n15, [], more, False)
    need(b, [ar(AF[0], 16), ar(AF[1], 16)])
    b("s_barrier")
    i0 = len(b.L)
    def pack(t):
        a = ACC + t * 4
        for i in range(4): b(f"v_mul_f32 v{a+i}, {sCc}, v{a+i}")
        b(f"v_cvt_pk_bf16_f32 v{a}, v{a}, v{a+1}\nv_cvt_pk_bf16_f32 v{a+1}, v{a+2}, v{a+3}")
    def packp(t):
        a = ACC + t * 4
        b(f"v_pk_mul_f32 {vr(a,2)}, {vr(a,2)}, s[92:93]\nv_pk_mul_f32 {vr(a+2,2)}, {vr(a+2,2)}, s[92:93]")
        b(f"v_cvt_pk_bf16_f32 v{a}, v{a}, v{a+1}\nv_cvt_pk_bf16_f32 v{a+1}, v{a+2}, v{a+3}")
    def qwr(t):
        d, q = divmod(t, 5); a = ACC + t * 4
        b(f"ds_write_b64 v21, {vr(a,2)} offset:{q*4096+(d>>1)*1024+(d&1)*512}")
    b(f"s_mov_b32 s92, {sCc}\ns_mov_b32 s93, {sCc}")
    tl = [0, 1, 2, 3, 4, 9, 8, 7, 6, 5] + list(range(10, 20))
    mf = cseq(1)[1][20:]
    more = [f"buffer_load_dwordx2 {vr(NONV,2)}, v{ZR}, {SD}, 0 offen sc0 sc1"] + more
    k = 0
    for i in range(20):
        b(cm(*mf[i]))
        if i % 2 == 0:
            if more: b(more.pop(0))
            elif i in ((10, 16) if nq == 2 else (10, 14, 18)[:nq]): pass
            if i in ((8, 16) if nq == 2 else (6, 12, 18)[:nq]): pair()
        else:
            if k: qwr(tl[k - 1])
            pack(tl[k]); k += 1
    for k in range(10, 20):
        qwr(tl[k - 1]); packp(tl[k])
    qwr(tl[19])
    assert not more
    b(f"s_add_u32 {sT}, {sW1}, {(IENT-NS)*8192}\nv_add_u32 v21, {sT}, v{L16}")
    if NA >= 4: b.wait(lg=0)
    else: b.wait(lg=0, vm=min(2 * (NA + n14 + n15 + nq - 4), 2 * (n15 + nq)))
    b("s_barrier")
    print("q pack estimate", estimate(b.L[i0:]))
    stamp(b, 3)
    i0 = len(b.L)
    qr = [f"ds_read_b128 {ar(QF+(q*4+d)*4,4)}, v22 offset:{q*4096+d*1024}" for q in range(5) for d in range(4)]
    if NA < 4: qr = kfirst[:4] + qr + kfirst[4:]
    for i in range(10 if NA >= 4 else 13): b(qr.pop(0))
    if pro1: pair()
    sw = [f"ds_write_b128 v21, {ar(STG[i],4)} offset:{i*4096}" for i in range(2*NS)]
    neg = [f"v_sub_f32 v{NM+i}, 0, v{NM+i}" for i in range(20)]
    for t in range(20):
        q, d = divmod(t, 4)
        b(f"{MF} {vr(NM+4*q,4)}, {ar(K0F+4*d,4)}, {ar(QF+t*4,4)}, {'0' if d == 0 else vr(NM+4*q,4)}")
        if qr: b(qr.pop(0))
        if t == 13:
            need(b, [ar(QF, 80)])
            b("s_barrier")
        if t >= 14 and sw: b(sw.pop(0))
        if t >= 8: b(neg.pop(0))
    for i in range(pro2): pair()

    def col(n): return (0, 1, 0, 1, 2)[n % 5]
    def s_mfma(n, i):
        kt, d = i // 4, i % 4; q = n % 5
        dst = vr(SB[col(n)] + 4*kt, 4)
        return f"{MF} {dst}, {ar(KF+4*i,4)}, {ar(QF+(q*4+d)*4,4)}, {vr(NM+4*q,4) if d == 0 else dst}"
    def oreg(q, j): return vr(OK + (q*4+j)*4, 4) if j < 4 else ar(OS + (q*4+j-4)*4, 4)
    def p_mfma(n, j):
        q = n % 5
        if j == 8: return f"{MF} {vr(LA+4*q,4)}, {ar(ONES,4)}, {vr(PB[col(n)],4)}, {vr(LA+4*q,4)}"
        return f"{MF} {oreg(q,j)}, {ar(VF+4*j,4)}, {vr(PB[col(n)],4)}, {oreg(q,j)}"
    def v_exp(n, e): return f"v_exp_f32 v{SB[col(n)]+e}, v{SB[col(n)]+e}"
    def v_cvt(n, c): return f"v_cvt_pk_bf16_f32 v{PB[col(n)]+c}, v{SB[col(n)]+2*c}, v{SB[col(n)]+2*c+1}"
    NU = 40
    CH = opt("ch", 1)
    def slot(n, mem=None, sal=None, val=None, chain=False):
        mem = mem or {}; sal = sal or {}; val = val or {}
        for p in range(17):
            if chain: b(s_mfma(n + 1, p) if p < 8 else p_mfma(n - 1, p - 8))
            elif p < 16 and p % 2 == 0:
                if 0 <= n + 1 < NU: b(s_mfma(n + 1, p // 2))
            elif 0 <= n - 1 < NU: b(p_mfma(n - 1, p // 2))
            for s in mem.get(p, []): b(s)
            for s in sal.get(p, []): emit(s)
            if 0 <= n < NU:
                if p % 2 == 0 and p < 16: b(v_exp(n, p // 2))
                if p % 4 == 3: b(v_cvt(n, p // 4))
            for s in val.get(p, []): b(s)
    VR = [x for j in range(8) for x in v_read(j)]
    for i in range(8):
        b(s_mfma(0, i))
        if i >= 4: b(VR[i - 4])
        elif sw: b(sw.pop(0))
        b(neg.pop(0))
    assert not sw and not neg
    for i in range(pro3): pair()
    if opt("sp", 0) == 2: setup_b()
    if CLR == 1:
        for i in range(4): b(f"v_mov_b32 v{60+i}, -1")
        b(f"v_lshrrev_b32 v64, 1, v{L16}")
        for x in clears(60): b(x)
    b.label("L_p2entry")
    for i in range(8):
        b(s_mfma(1, i))
        if not CH or i < 4: b(VR[4 + i])
        if i >= 2 and i % 2 == 0: b(v_cvt(0, i // 2 - 1))
        b(v_exp(0, i))
    b(f"s_add_u32 m0, {sW1}, {(IENT%20)*8192-(4096 if NPI == 2 else 0)}\ns_add_u32 {sEv}, {sW1}, {LDS}\ns_mov_b32 {sKVs}, {IENT*4096}\n{XR}\ns_mov_b32 {sKVm}, 0\ns_mov_b32 {sCnt}, 0")
    b(v_cvt(0, 3))
    if TRACE == 2: b.raw("s_mov_b32 s100, 0")
    print("p2 prologue estimate", estimate(b.L[i0:]))
    stamp(b, 4)
    nd = lambda *ops: (lambda: need(b, ops))
    def merge(*ds):
        out = {}
        for d in ds:
            for k, v in d.items(): out.setdefault(k, []).extend(v)
        return out
    RX = opt("rx", 6) if NPI == 2 else 0
    for s_ in range(5): assert not RX or 2 * (IENT + 2 * s_ + len([l for l in KXL if l <= s_])) - RX >= 8 * (s_ + 2)
    def body():
        INC = "s_add_u32 m0, m0, 4096"
        def ex():
            b("s_cbranch_scc1 L_tail")
            body.exit_state = b.state()
        m1 = {}; s1 = {}; m2 = {}; s2 = {}; m3 = {}; s3 = {}; s5 = {}
        WR = [f"s_cmp_eq_u32 m0, {sEv}", f"s_cselect_b32 m0, {sW1}, m0"]
        if NPI == 2:
            G = [int(x) for x in opt("g4", "1.5.9.13").split(".")]
            m4 = {G[0]: [KLD], G[1]: [VLD], G[2]: [KLD], G[3]: [VLD]}
            s4 = merge({G[0]-1: [INC]}, {G[1]-1: [INC]}, {G[1]+1: [XR]}, {G[2]-1: [INC]}, {G[3]-1: [INC]}, {G[3]+1: [XR]}, {G[0]+1: [ADV[1]]}, {G[2]+1: [ADV[1]]})
            v1 = {9: [va(KA[0]), va(KA[1])], 11: [va(KA[2])], 13: [va(KA[3]), va(VA[0])], 15: [va(VA[1])], 16: [va(VA[2]), va(VA[3])]}
            v2 = {3: [va(VA[4])], 11: [va(VA[5])]}
            if KX:
                s3 = {8: [INC], 10: [WR[0]], 12: [WR[1]]}
                s4 = {2: [INC], 4: [ADV[1]], 6: [XR], 7: [INC, WR[0]], 8: [WR[1]], 10: [INC], 12: [ADV[1]], 14: [XR]}
                def xt():
                    b("s_cbranch_scc1 L_xtra")
                    b.label("L_xtraback")
                XP = opt("xp", 1)
                s2 = {XP - 1: [f"s_bitcmp1_b32 {sum(1 << l for l in KXL)}, {sCnt}"], XP: [xt]}
                for s_ in range(6): assert IENT + 2 * s_ + len([l for l in KXL if l <= s_]) >= 4 * s_ + 10
        elif NPI == 4:
            m4 = {1: [KLD], 5: [VLD], 9: [KLD], 13: [VLD]}; m2 = dict(m4)
            def sq(): return {2: [INC], 3: [ADV[1]], 6: [XR], 7: [INC, WR[0]], 8: [WR[1]], 10: [INC], 11: [ADV[1]]}
            s2 = sq(); s4 = sq()
            s3 = {0: [XR], 2: [INC], 8: [WR[0]], 10: [WR[1]]}; s5 = {0: [XR], 2: [INC], 4: [WR[0]], 6: [WR[1]]}
            v1 = {9: [va(KA[0]), va(KA[1])], 11: [va(KA[2])], 13: [va(KA[3]), va(VA[0])], 15: [va(VA[1])], 16: [va(VA[2]), va(VA[3])]}
            v2 = {3: [va(VA[4])], 11: [va(VA[5])]}
        else:
            m1 = {13: [KLD]}; s5 = {2: [INC], 4: [WR[0]], 6: [WR[1]], 0: [XR]}
            m2 = {5: [VLD], 13: [KLD]}; s2 = {0: [ADV[1]], 2: [INC], 6: [XR], 8: [INC], 10: [WR[0]], 12: [WR[1]]}
            m3 = {16: [VLD]}; s3 = {10: [INC], 8: [ADV[1]]}
            m4 = {9: [KLD], 16: [VLD]}; s4 = {0: [XR], 2: [INC], 4: [WR[0]], 6: [WR[1]], 12: [INC], 10: [ADV[1]]}
            if KS < 6:
                def cond(lab, ins):
                    def f():
                        b(f"s_cbranch_scc1 {lab}")
                        for x in ins: b(x)
                        b.label(lab)
                    return f
                C_ = f"s_bitcmp0_b32 {sum(2 << l for l in KSL)}, {sCnt}"
                for s_ in range(6): assert 2 * IENT + sum(6 if i in KSL else 4 for i in range(s_)) + 3 >= 8 * (s_ + 2) + 5
                m4 = {}
                s4 = {0: [XR], 4: [C_], 5: [cond("L_sk0", [INC, WR[0], WR[1]])], 8: [C_], 9: [cond("L_sk1", [KLD, INC, ADV[1]])],
                      14: [C_], 16: [cond("L_sk2", [VLD])]}
            v1 = {9: [va(KA[0]), va(KA[1])], 11: [va(KA[2])], 15: [va(KA[3])], 16: [va(VA[0]), va(VA[1])]}
            v2 = {1: [va(VA[2]), va(VA[3])], 3: [va(VA[4])], 11: [va(VA[5])]}
        if TOUCH == 1:
            assert NPI == 2
            m2[5] = [f"buffer_load_dword a{JUNK}, v{TCH}, {SW3}, {sT} offen"]
            s2 = {0: [f"s_cmp_lt_u32 {sCnt}, {TIT}"], 2: [f"s_cselect_b32 {sT}, {sKVm}, 0x40000000"], 6: [f"s_add_u32 {sKVm}, {sKVm}, {TL*128}"]}
        if CH:
            assert NPI == 2 and TOUCH != 1
            slot(1, merge({1: VR[8:10], 3: [VR[10]], 5: VR[11:13], 7: [VR[13]], 9: VR[14:16]}, m1),
                 {6: [nd(ar(VF, 16))], 11: [nd(ar(VF, 24))], 12: [nd(ar(VF, 28))], 14: [nd(ar(VF, 32))],
                  0: [f"s_add_u32 {sT2}, {sPB}, 32768"], 2: [f"s_cmp_ge_u32 {sT2}, {LDS}"], 4: [f"s_cselect_b32 {sT2}, 0, {sT2}"],
                  8: [f"s_sub_u32 {sDelta}, {sT2}, {sPB}"], 10: [f"s_mov_b32 {sPB}, {sT2}"], 15: [f"s_cmp_eq_u32 {sCnt}, 7"],
                  16: [ex]}, {11: [va(KA[0])], 13: [va(KA[1]), va(KA[2])], 15: [va(KA[3])], 16: [va(VA[0]), va(VA[1])]}, chain=True)
            slot(2, m2, merge(s2, {14: [f"s_cmp_ge_u32 {sCnt}, {5 if RX else 6}"]}), {3: [va(VA[2])], 5: [va(VA[3]), va(VA[4])], 7: [va(VA[5])]}, chain=True)
            b("s_cbranch_scc1 L_p2late")
            trace(b)
            b.raw(f"s_waitcnt vmcnt({min(opt('vb', 8), 2 * (IENT - 6)) if NPI == 4 else 5 if TOUCH == 1 or NPI == 3 else RX or 4})")
            b.label("L_p2bar")
            if TRACE == 2: trace(b)
            b("s_barrier")
            trace(b)
            slot(3, merge({2*i+1: [k_read(i)] for i in range(8)}, m3),
                 merge({6: [f"s_add_u32 {sCnt}, {sCnt}, 1"], 16: [nd(ar(KF, 20))]}, s3), {1: [va(VA[6])], 5: [va(VA[7])]}, chain=True)
            slot(4, m4, merge(s4, {3 if NPI != 4 else 4: [nd(ar(KF, 32))]}), chain=True)
            slot(5, {9: VR[0:2], 11: [VR[2]], 13: VR[3:5], 15: [VR[5]], 16: VR[6:8]}, s5, chain=True)
        else:
            slot(1, merge({1: [VR[12]], 3: [VR[13]], 5: [VR[14]], 7: [VR[15]]}, m1),
                 {0: [nd(ar(VF, 12))], 6: [nd(ar(VF, 24))], 12: [nd(ar(VF, 28))], 14: [nd(ar(VF, 32))],
                  2: [f"s_add_u32 {sT2}, {sPB}, 32768"], 4: [f"s_cmp_ge_u32 {sT2}, {LDS}"], 8: [f"s_cselect_b32 {sT2}, 0, {sT2}"],
                  9: [f"s_sub_u32 {sDelta}, {sT2}, {sPB}"], 10: [f"s_mov_b32 {sPB}, {sT2}"], 15: [f"s_cmp_eq_u32 {sCnt}, 7"],
                  16: [ex]}, v1)
            slot(2, m2, merge(s2, {14: [f"s_cmp_ge_u32 {sCnt}, {5 if RX else 6}"]}), v2)
            b("s_cbranch_scc1 L_p2late")
            trace(b)
            b.raw(f"s_waitcnt vmcnt({min(opt('vb', 8), 2 * (IENT - 6)) if NPI == 4 else 5 if TOUCH == 1 or NPI == 3 else RX or 4})")
            b.label("L_p2bar")
            if TRACE == 2: trace(b)
            b("s_barrier")
            trace(b)
            slot(3, merge({2*i+1: [k_read(i)] for i in range(8)}, m3),
                 merge({6: [f"s_add_u32 {sCnt}, {sCnt}, 1"], 16 if NPI != 3 else 14: [nd(ar(KF, 16 if NPI != 3 else 12))]}, s3), {1: [va(VA[6])], 5: [va(VA[7])]})
            slot(4, m4, merge(s4, {3 if NPI != 4 else 4: [nd(ar(KF, 32))]}))
            slot(5, {1: VR[0:2], 3: [VR[2]], 5: [VR[3]], 7: [VR[4]], 9: VR[5:7], 11: [VR[7]], 13: VR[8:10], 15: [VR[10]], 16: [VR[11]]}, s5)
        b("s_branch L_p2")
        b.vm = []
    b.vm = []
    save = b.L; b.L = []
    body(); st1 = b.state(); t1 = b.L
    b.L = []; body(); st2 = b.state(); t2 = b.L
    assert st1[0] == st2[0]
    if not STAMPS: assert t1 == t2, "loop not steady"
    print("p2 body estimate", estimate(t2, verbose=VERB))
    b.L = save
    b.raw(f".p2align {opt('al', 3)}")
    b.label("L_p2")
    b.L += t2
    b.label("L_p2late")
    if TRACE == 2: trace(b)
    if RX:
        b.raw("s_waitcnt vmcnt(4)")
        b(f"s_cmp_eq_u32 {sCnt}, 5")
        b("s_cbranch_scc1 L_p2bar")
    b.raw(f"s_waitcnt vmcnt({min(opt('vb', 8), 2 * (IENT - 6)) if NPI == 4 else 3 if NPI == 3 else 1 if TOUCH == 1 else 0})")
    WE = opt("we", 0)
    if WE:
        assert NPI == 2
        b(f"s_add_u32 m0, {sW4}, {S3[0]+20480}\ns_lshl_b32 {sWO}, {sHl}, 18")
        for x in DW3: b(x)
        b(f"s_add_u32 m0, {sW4}, {S3[1]+20480}\ns_add_u32 {sWO}, {sWO}, 0x20000")
        for x in DW3: b(x)
        b(f"s_mov_b32 m0, {sW1}")
    if TOUCH in (7, 8): b(f"buffer_load_dword a{JUNK}, v{TCH}, {SW3}, 0 offen")
    b("s_branch L_p2bar")
    b.label("L_tail")
    b.set_state(body.exit_state)
    b.vm = []
    b(f"s_mul_i32 {sT}, {sW}, 20480\nv_add_u32 v21, {sT}, v{L16}")
    b.raw("s_waitcnt vmcnt(0)")
    b("s_barrier")
    stamp(b, 5)
    i0 = len(b.L)
    EB = 65536; EXL = 81920 - EB; EXF = 87040 - EB
    LW, LO, LP, FW, FR = 3, 4, 5, 6, 7
    wr = lambda q: [f"ds_write_b128 v21, {ar(OS+(q*4+j)*4,4)} offset:{(q*4+j)*1024}" for j in range(4)]
    lw = lambda q: (lambda: b(f"ds_write_b32 v{LW}, v{LA+4*q} offset:{EXL+q*256}", f"L{q}"))
    RB = [64, 80, 64, 80, 24]
    rd = lambda q: [f"ds_read_b128 {vr(RB[q]+4*j,4)}, v22 offset:{(q*4+j)*1024}" for j in range(4)]
    LR = NM
    lr = lambda q: [f"ds_read_b32 v{LR+2*q}, v{LO} offset:{EXL+q*256}", f"ds_read_b32 v{LR+2*q+1}, v{LP} offset:{EXL+q*256}"]
    linv = lambda q: [f"v_add_f32 v{LR+2*q}, v{LR+2*q}, v{LR+2*q+1}", f"v_rcp_f32 v{LR+2*q}, v{LR+2*q}"]
    def nval(q, pr, packed):
        o = OK + (q*4+2*pr)*4; r = RB[q] + 8*pr
        if packed:
            out = [f"v_pk_add_f32 {vr(o+i,2)}, {vr(o+i,2)}, {vr(r+i,2)}" for i in range(0, 8, 2)]
            out += [f"v_pk_mul_f32 {vr(o+i,2)}, {vr(o+i,2)}, {vr(LR+2*q,2)} op_sel_hi:[1,0]" for i in range(0, 8, 2)]
        else:
            out = [f"v_add_f32 v{o+i}, v{o+i}, v{r+i}" for i in range(8)] + [f"v_mul_f32 v{o+i}, v{LR+2*q}, v{o+i}" for i in range(8)]
        return out + [f"v_cvt_pk_bf16_f32 v{o+i}, v{o+2*i}, v{o+2*i+1}" for i in range(4)]
    def nmem(q, pr):
        o = OK + (q*4+2*pr)*4
        vv, off = (L16, q * 1024) if q < 4 else (L16B, 0)
        return [f"buffer_store_dwordx4 {vr(o,4)}, v{vv}, {SO}, {sO1 if pr else sO0} offen offset:{off} {H1S}",
                f"ds_write_b128 v2, {vr(o,4)} offset:{pr*10240+q*1024}"]
    def chunks(lst, pos):
        n = -(-len(lst) // len(pos))
        return {p: lst[i*n:(i+1)*n] for i, p in enumerate(pos)}
    def meet(q):
        b.wait_tag(lgtag=f"L{q}")
        b("s_barrier")
    w = wr(0)
    slot(37, merge({5 + 2*i: [w[i]] for i in range(4)}, {} if WE else {1: DW3[0:2], 3: DW3[2:4], 13: DW3[0:2], 16: DW3[2:4]}),
         {0: [] if WE else [f"s_add_u32 m0, {sW4}, {S3[0]+20480}", f"s_lshl_b32 {sWO}, {sHl}, 18"],
          11: [] if WE else [f"s_add_u32 m0, {sW4}, {S3[1]+20480}", f"s_add_u32 {sWO}, {sWO}, 0x20000"],
          2: [f"s_xor_b32 {sT2}, {sW}, 2"], 3: [f"s_mul_i32 {sT}, {sT2}, 20480"], 4: [f"s_mul_i32 {sT3}, {sW}, 1280"],
          6: [f"s_add_u32 {sT3}, {sT3}, {EB}"], 8: [f"s_mul_i32 {sT2}, {sT2}, 1280"], 10: [f"s_add_u32 {sT2}, {sT2}, {EB}"],
          12: [f"s_mul_i32 {sMX}, {sKH}, {STSZ}"], 14: [f"s_lshl_b32 {sMW}, {sW}, 2"], 15: [lw(0)]},
         {3: ["v_lshlrev_b32 v23, 2, v1"], 5: [f"v_add_u32 v22, {sT}, v{L16}"], 9: [f"v_add_u32 v{LW}, {sT3}, v23"]})
    b(f"v_and_b32 v23, 60, v23\nv_add_u32 v{LO}, {sT3}, v23\nv_add_u32 v{LP}, {sT2}, v23\nv_add_u32 v2, {sMX}, v{XA3[0]}")
    meet(0)
    if opt("sta", 0) == 10: stamp(b, 15)
    r = lr(0) + rd(0); w = wr(1)
    slot(38, merge({1: r[0:2], 3: r[2:4], 5: r[4:6], 7: [w[0]], 9: [w[1]], 11: [w[2]], 13: [w[3]], 16: nmem(0, 0)}),
         {15: [lw(1)], 0: [f"s_add_u32 {sMW}, {sMW}, {EB}"]},
         merge({7: linv(0)}, chunks(nval(0, 0, False), [9, 11, 13, 15]), {16: nval(0, 1, False)}, {1: [f"v_mov_b32 v{FW}, {sMW}"], 5: [f"v_mov_b32 v{FR}, {EB}"]}))
    meet(1)
    if opt("sta", 0) == 11: stamp(b, 15)
    r = lr(1) + rd(1); w = wr(2)
    slot(39, merge({1: r[0:2] + nmem(0, 1)[:1], 3: r[2:4], 5: r[4:6], 7: [w[0]], 9: [w[1]], 11: [w[2]], 13: [w[3]], 16: nmem(1, 0)}, {15: nmem(0, 1)[1:]}),
         {15: [lw(2)]},
         merge({7: linv(1)}, chunks(nval(1, 0, False), [9, 11, 13, 15]), {16: nval(1, 1, True)}))
    meet(2)
    if opt("sta", 0) == 12: stamp(b, 15)
    r = lr(2) + rd(2); w = wr(3)
    slot(40, merge({1: r[0:2] + nmem(1, 1)[:1], 3: r[2:4], 5: r[4:6], 7: [w[0]], 9: [w[1]], 11: [w[2]], 13: [w[3]]},
                   {15: nmem(1, 1)[1:]}),
         {15: [lw(3)]}, {13: linv(2)})
    for x in nval(2, 0, True): b(x)
    for x in wr(4): b(x)
    lw(4)()
    b(nmem(2, 0)[0])
    b(f"v_add_f32 v8, v{LA}, v{LA+4}\nv_add_f32 v9, v{LA+8}, v{LA+12}\nv_add_f32 v8, v8, v{LA+16}\nv_add_f32 v8, v8, v9")
    thr = f32bits(2.0 ** 40) if not FORCE_SLOW else f32bits(-1.0)
    b(f"v_cmp_nge_f32 vcc, {thr}, v8")
    b(f"s_cmp_lg_u64 vcc, 0\ns_cselect_b32 {sT}, 1, 0\nv_mov_b32 v8, {sT}")
    b(f"ds_write_b32 v{FW}, v8 offset:{EXF}", "L5")
    for x in nval(2, 1, True): b(x)
    b(nmem(2, 1)[0])
    meet(5)
    if opt("sta", 0) == 13: stamp(b, 15)
    b(f"ds_read_b128 {vr(NM+12,4)}, v{FR} offset:{EXF}")
    for x in lr(3) + lr(4) + rd(3) + rd(4): b(x)
    b(nmem(2, 0)[1]); b(nmem(2, 1)[1])
    b(f"v_or_b32 v{NM+12}, v{NM+12}, v{NM+13}\nv_or3_b32 v{NM+12}, v{NM+12}, v{NM+14}, v{NM+15}")
    for x in linv(3) + linv(4): b(x)
    b(f"v_readfirstlane_b32 {sT}, v{NM+12}")
    b(f"s_andn2_b32 {sT}, {sT}, {sPass}\ns_cmp_lg_u32 {sT}, 0")
    b("s_cbranch_scc1 L_slow")
    if not opt("sta", 0): stamp(b, 15)
    for q in (3, 4):
        for pr in range(2):
            for x in nval(q, pr, True) + nmem(q, pr): b(x)
    b(f"s_mov_b32 {sRB}, {S3[0]}\ns_mov_b32 {sCnt}, 0\ns_mov_b32 {sDB}, {ST0}\ns_mov_b32 {sRdy}, 0\ns_mov_b32 {sEv}, {sW}")
    b(f"v_and_b32 v21, 7, v1\nv_lshlrev_b32 v21, 8, v21\nv_and_b32 v4, 3, v1\nv_mul_u32_u24 v4, {FS1 if SENT else 256}, v4\nv_lshrrev_b32 v5, 1, v{L16}")
    b.wait(lg=0, vm=10)
    print("tail estimate", estimate(b.L[i0:]))
    stamp(b, 6)
    b.vm = []
    if TRACE == 3: b.raw("s_mov_b32 s100, 0")
    LF = opt("lf", 1); LFL = opt("lfl", "sc1").replace("+", " ")
    FLG = f"buffer_load_dwordx2 v[22:23], v21, {SO}, {sF1} offen {H1L}"
    FLD = f"buffer_load_dwordx2 v[22:23], v21, {SO}, {sF1} offen offset:2048 {LFL}" if LF else FLG
    EARLY = opt("ep", 1)
    G3 = [8, 9, 20, 22]
    dm = dict(zip(G3, DW3))
    if EARLY: dm[39] = FLD
    c_step(3, dm, loop_it(3, G3, xload=False), first=True,
           pre=[zero(vr(ACC, 16)), zero(vr(ACC+16, 4)), zero(vr(ACC+60, 16)), zero(vr(ACC+76, 4))])
    b(f"s_mov_b32 {sSpin}, 0")
    b.raw(f"s_waitcnt vmcnt({4 + EARLY}) lgkmcnt(0)")
    b.lg = []
    b("s_branch L_non1")
    b.label("L_non")
    b.wait(vm=0)
    b.label("L_non1")
    b(f"v_readfirstlane_b32 s64, v{NONV}\nv_readfirstlane_b32 s65, v{NONV+1}")
    b("s_cmp_lg_u32 s64, 0")
    b("s_cbranch_scc1 L_nonok")
    b(f"buffer_load_dwordx2 {vr(NONV,2)}, v{ZR}, {SD}, 0 offen sc0 sc1")
    b(f"s_add_u32 {sSpin}, {sSpin}, 1\ns_cmp_lt_u32 {sSpin}, {SPIN}")
    b("s_cbranch_scc1 L_non")
    b.label("L_nonok")
    b.vm = []
    stamp(b, 7)
    b("s_barrier")
    b(f"s_cmp_lg_u32 {sW}, 0")
    b("s_cbranch_scc1 L_pubd")
    b(f"s_lshl_b32 {sT}, {sHl}, 8\ns_add_u32 {sT}, {sT}, {sF1}")
    b("s_mov_b64 exec, 1")
    if LF: b(f"buffer_store_dwordx2 {vr(NONV,2)}, v{ZR}, {SO}, {sT} offen offset:2048")
    if not LF or LF == 1: b(f"buffer_store_dwordx2 {vr(NONV,2)}, v{ZR}, {SO}, {sT} offen {H1F}")
    b("s_mov_b64 exec, -1")
    if EARLY:
        b.raw(f"s_waitcnt vmcnt({2 if LF == 1 else 1})")
        b("s_branch L_pubd1")
    b.label("L_pubd")
    if LF == 2:
        b(f"s_cmp_lg_u32 {sW}, 3")
        b("s_cbranch_scc1 L_pubd2")
        b(f"s_lshl_b32 {sT}, {sHl}, 8\ns_add_u32 {sT}, {sT}, {sF1}")
        b("s_mov_b64 exec, 1")
        b(f"buffer_store_dwordx2 {vr(NONV,2)}, v{ZR}, {SO}, {sT} offen {H1F}")
        b("s_mov_b64 exec, -1")
        b.raw("s_waitcnt vmcnt(1)")
        b("s_branch L_pubd1")
        b.label("L_pubd2")
    ALL = opt("all", 0)
    def test(back):
        b.raw(f"v_cmp_eq_u64 s[92:93], {sNon}, v[22:23]")
        b(f"s_or_b32 {sRdy}, {sRdy}, s92\ns_bitcmp1_b32 {sRdy}, {sT3}")
        b(f"s_cbranch_scc1 {back}")
    if EARLY:
        b.raw("s_waitcnt vmcnt(0)")
        b.label("L_pubd1")
        test("L_poll0ok")
    def gflag(lab):
        b(f"s_cmp_lg_u32 {sEv}, 0")
        b(f"s_cbranch_scc1 {lab}")
        b(f"s_lshl_b32 {sEv}, {sHl}, 8\ns_add_u32 {sEv}, {sEv}, {sF1}")
        b("s_mov_b64 exec, 1")
        b.raw(f"buffer_store_dwordx2 {vr(NONV,2)}, v{ZR}, {SO}, {sEv} offen {H1F}")
        b("s_mov_b64 exec, -1")
        b.label(lab)
    def poll1(lab, back):
        b(f"s_mov_b32 {sSpin}, 0")
        b.label(lab)
        for k in range(opt("nl", 6) if LF else 0):
            b.raw(FLD)
            b.raw("s_waitcnt vmcnt(0)")
            test(back)
            if opt("lsl", 2): b(f"s_sleep {opt('lsl', 2)}")
        if LF == 3 and lab == "L_poll0": gflag("L_gf0")
        b.raw(FLG)
        b.raw("s_waitcnt vmcnt(0)")
        test(back)
        if SLEEP and not LF: b(f"s_sleep {SLEEP}")
        b(f"s_add_u32 {sSpin}, {sSpin}, 1\ns_cmp_lt_u32 {sSpin}, {SPIN}")
        b(f"s_cbranch_scc1 {lab}")
    poll1("L_poll0", "L_poll0ok")
    b.label("L_poll0ok")
    stamp(b, 8)
    if LF == 3: gflag("L_gf1")
    b(f"s_mov_b32 m0, {sMX}\ns_and_b32 {sT}, s80, 15")
    for x in DX3[:4]: b(x)
    b(f"s_mov_b32 m0, {sMW}\ns_lshl_b32 {sWO}, {sT}, 17")
    b(DX3[4])
    b.vm = []
    def chk():
        b("s_cbranch_scc1 L_wait1")
        b.label("L_wait1back")
    b.raw(f".p2align {opt('al', 3)}")
    b.label("L_p3")
    i0 = len(b.L)
    CG3 = [int(x) for x in opt("cg3", "4.9.14.20.24.28.32.34.38").split(".")]
    c_step(3, dict(zip(CG3, DW3 + DX3)), loop_it(3, CG3, chk))
    b.wait(lg=0, vm=9)
    b("s_cbranch_vccnz L_p3")
    print("p3 step estimate", estimate(b.L[i0:], verbose=VERB))
    b.vm = []
    stamp(b, 9)
    PFL = f"buffer_load_dwordx2 v[6:7], v4, {SO}, {sF2} offen {HLD}"
    PK = 104; RK = 144
    def cvt(d, q):
        pk = PK + (d-1)*12 + 2*q; a = ACC + (d*5+q)*4
        return [f"v_cvt_pk_bf16_f32 v{pk}, v{a}, v{a+1}", f"v_cvt_pk_bf16_f32 v{pk+1}, v{a+2}, v{a+3}"]
    def pst(d, h):
        pk = PK + (d-1)*12
        if h < 2: return f"buffer_store_dwordx4 {vr(pk+4*h,4)}, v{L16}, {SO}, {sPs[d]} offen offset:{h*1024} {HST}"
        return f"buffer_store_dwordx2 {vr(pk+8,2)}, v5, {SO}, {sPs[d]} offen offset:2048 {HST}"
    c_step(3, {}, ring_it)
    b.wait(lg=0, vm=0)
    it = [(f"s_lshl_b32 {sT}, {sKq}, 8", 0, 39), (f"s_add_u32 {sT}, {sT}, {sF2}", 0, 39)]
    for q in range(5): it += [(x, 26 + 2*q, (29, 29, 33, 33, 37)[q]) for x in cvt(1, q)]
    c_step(3, {30: pst(1, 0), 34: pst(1, 1), 38: pst(1, 2)}, it, upd=False)
    stamp(b, 10)
    mf = cseq(3)[1][20:]
    vq_ = {0: cvt(2, 4), 1: cvt(2, 3), 3: cvt(2, 2), 5: cvt(2, 1), 6: cvt(2, 0), 8: cvt(3, 0), 9: cvt(3, 1), 11: cvt(3, 2), 12: cvt(3, 3), 14: cvt(3, 4)}
    mq_ = {2: pst(2, 2), 4: pst(2, 1), 7: pst(2, 0), 10: pst(3, 0), 13: pst(3, 1), 15: pst(3, 2)}
    for i in range(20):
        b(cm(*mf[i]))
        if i in mq_: b(mq_[i])
        for x in vq_.get(i, []): b(x)
    if not SENT:
        b.wait(vm=0)
        stamp(b, 11)
        if not F2W:
            b("s_barrier")
            b(f"s_cmp_lg_u32 {sW}, 0")
            b("s_cbranch_scc1 L_wait2")
        b("s_mov_b64 exec, 1")
        b(f"buffer_store_dwordx2 {vr(NONV,2)}, v{ZR}, {SO}, {sT} offen {HST}")
        b("s_mov_b64 exec, -1")
        b.label("L_wait2")
        b(f"s_mov_b32 {sSpin}, 0")
        P2 = opt("pp2", 1)
        regs = ["v[6:7]", "v[8:9]", "v[10:11]"][:P2]
        ld = lambda r: b.raw(f"buffer_load_dwordx2 {r}, v4, {SO}, {sF2} offen {HLD}")
        for r in regs[1:]:
            ld(r); b(f"s_sleep {opt('psl', 3)}")
        b.label("L_poll3")
        for k in range(P2):
            ld(regs[k])
            b.raw(f"s_waitcnt vmcnt({P2-1})")
            b.raw(f"v_cmp_ne_u64 vcc, {sNon}, {regs[(k + 1) % P2]}")
            b("s_cbranch_vccz L_wait2back")
            if P2 == 1 and opt('sleep2', 4): b(f"s_sleep {opt('sleep2', 4)}")
        b(f"s_add_u32 {sSpin}, {sSpin}, 1\ns_cmp_lt_u32 {sSpin}, {SPIN}")
        b("s_cbranch_scc1 L_poll3")
        b.label("L_wait2back")
        stamp(b, 12)
    else: stamp(b, 11)
    b(f"s_mov_b32 {sSpin}, 0")
    if opt("pre2", 0): b(f"s_sleep {opt('pre2', 0)}")
    b.label("L_poll2")
    b.vm = []
    for h in range(3):
        for d in (1, 2, 3):
            pk = RK + (d-1)*12
            if h < 2: b(f"buffer_load_dwordx4 {vr(pk+4*h,4)}, v{L16}, {SO}, {sPl[d]} offen offset:{h*1024} {HLD}")
            else: b(f"buffer_load_dwordx2 {vr(pk+8,2)}, v5, {SO}, {sPl[d]} offen offset:2048 {HLD}")
    if SENT:
        rr = [RK + (d-1)*12 + 4*h + i for h in range(3) for d in (1, 2, 3) for i in range(4 if h < 2 else 2)]
        b(f"v_max_u32 v8, v{rr[0]}, v{rr[1]}")
        for i in range(2, 30, 2): b(f"v_max3_u32 v8, v8, v{rr[i]}, v{rr[i+1]}")
        b("v_cmp_eq_u32 vcc, -1, v8")
        b("s_cbranch_vccz L_poll2ok")
        if SLEEP: b(f"s_sleep {opt('sleep2', 4)}")
        b(f"s_add_u32 {sSpin}, {sSpin}, 1\ns_cmp_lt_u32 {sSpin}, {SPIN}")
        b("s_cbranch_scc1 L_poll2")
        b.label("L_poll2ok")
        stamp(b, 12)
    OFL = opt("ofl", "").replace("+", " ")
    for q in range(5):
        a = ACC + q * 4
        for d in (1, 2, 3):
            pk = RK + (d-1)*12 + 2*q
            for i in range(2):
                b(f"v_lshlrev_b32 v{a+20*d+2*i}, 16, v{pk+i}\nv_and_b32 v{a+20*d+2*i+1}, 0xffff0000, v{pk+i}")
        for i in (0, 2): b(f"v_pk_add_f32 {vr(a+i,2)}, {vr(a+i,2)}, {vr(a+20+i,2)}")
        for i in (0, 2): b(f"v_pk_add_f32 {vr(a+40+i,2)}, {vr(a+40+i,2)}, {vr(a+60+i,2)}")
        for i in (0, 2): b(f"v_pk_add_f32 {vr(a+i,2)}, {vr(a+i,2)}, {vr(a+40+i,2)}")
        b(f"v_cvt_pk_bf16_f32 v{a}, v{a}, v{a+1}\nv_cvt_pk_bf16_f32 v{a+1}, v{a+2}, v{a+3}")
        if opt("fake", 0) == 1: pass
        elif opt("fake", 0) == 2:
            if q == 0: b(f"s_lshl_b32 {sT}, {sH}, 2\ns_add_u32 {sT}, {sT}, {sW}\ns_mul_i32 {sT}, {sT}, 2560")
            b(f"buffer_store_dwordx2 {vr(a,2)}, v5, {SOUT}, {sT} offen offset:{q*512} {OFL}")
        else: b(f"buffer_store_dwordx2 {vr(a,2)}, v{OUTV}, {SOUT}, {sOut} offen {OFL}")
        if q < 4: b(f"s_add_u32 {sOut}, {sOut}, 32768")
    if STAMPS:
        stamp(b, 13)
        if not opt("gap", 0): b.wait(vm=0)
        stamp(b, 14)
        b(f"s_cmp_lg_u32 {sW}, 0")
        b("s_cbranch_scc1 L_nost")
        b(f"v_lshlrev_b32 v3, 2, v1\ns_lshl_b32 {sT}, s2, 7\ns_add_u32 {sT}, {sT}, {STAMP_OFF}\ns_mov_b32 exec_hi, 0")
        b(f"buffer_store_dword v254, v3, {SO}, {sT} offen")
        b("s_mov_b64 exec, -1")
        b.label("L_nost")
        b(f"v_lshlrev_b32 v3, 2, v1\ns_lshl_b32 {sT}, s2, 2\ns_add_u32 {sT}, {sT}, {sW}\ns_lshl_b32 {sT}, {sT}, 7\ns_add_u32 {sT}, {sT}, {STAMP_OFF + (2 << 20)}\ns_mov_b32 exec_hi, 0")
        b(f"buffer_store_dword v254, v3, {SO}, {sT} offen")
        b("s_mov_b64 exec, -1")
        if TRACE:
            b(f"s_lshl_b32 {sT}, s2, 2\ns_add_u32 {sT}, {sT}, {sW}\ns_lshl_b32 {sT}, {sT}, 9\ns_add_u32 {sT}, {sT}, {STAMP_OFF + (1 << 20)}")
            b(f"buffer_store_dword v0, v3, {SO}, {sT} offen")
    b.label("L_end")
    b("s_endpgm")

    if KX:
        b.label("L_xtra")
        for x in ("s_add_u32 m0, m0, 4096", f"s_cmp_eq_u32 m0, {sEv}", f"s_cselect_b32 m0, {sW1}, m0", ADV[1], KLD, "s_add_u32 m0, m0, 4096", "s_nop 0", VLD, XR): b(x)
        b("s_branch L_xtraback")
    b.label("L_wait1")
    b.lg = []; b.vm = []
    if opt("peel1", 0):
        b.raw("s_waitcnt vmcnt(4)")
        test("L_wait1back")
    poll1("L_poll1", "L_wait1back")
    b("s_branch L_wait1back")
    if SENT:
        b.label("L_wait2")
        b(f"s_mov_b32 {sSpin}, 0")
        b.label("L_poll3")
        b(PFL)
        b.wait(vm=0)
        b(f"v_cmp_ne_u64 vcc, {sNon}, v[6:7]")
        b("s_cbranch_vccz L_wait2back")
        b(f"s_sleep 4\ns_add_u32 {sSpin}, {sSpin}, 1\ns_cmp_lt_u32 {sSpin}, {SPIN}")
        b("s_cbranch_scc1 L_poll3")
        b("s_branch L_wait2back")

    EV = [[int(x) for x in e.split(".")] for e in opt("ev", "2.0,3.0,1.2").split(",")]
    assert sum(e[0] for e in EV) == NA and sum(e[1] for e in EV) == NS
    b.label("L_aux")
    rp = 0
    for k, (nd_, nr_) in enumerate(EV):
        b.lg = []; b.vm = []
        if k + 1 < len(EV):
            b(f"s_cmp_lg_u32 {sEv}, {k}")
            b(f"s_cbranch_scc1 L_aux{k+1}")
        for i in range(nd_): pair()
        for i in range(nr_):
            b(f"s_xor_b32 {sT}, {sRot}, {(IENT-NS+rp)*4096}")
            b(f"buffer_load_dwordx4 {ar(STG[2*rp],4)}, v{KVW}, {SK}, {sT} offen {KVFL}")
            b(f"buffer_load_dwordx4 {ar(STG[2*rp+1],4)}, v{KVW}, {SV}, {sT} offen {KVFL}")
            rp += 1
        b(f"s_add_u32 {sEv}, {sEv}, 1")
        if not opt("early", 0) and not opt("sp", 0): (setup_a, setup_b, setup_c)[k]()
        b.wait(lg=0, vm=9 + 2*(nd_ + nr_))
        b("s_branch L_auxback")
        if k + 1 < len(EV): b.label(f"L_aux{k+1}")

    b.label("L_slow")
    b.wait(lg=0, vm=0)
    b("s_barrier")
    b(f"s_mov_b32 {sPass}, 1")
    b("v_and_b32 v21, 15, v1\nv_lshlrev_b32 v21, 8, v21\nv_lshrrev_b32 v22, 4, v1\nv_lshlrev_b32 v22, 4, v22\nv_add_u32 v21, v21, v22")
    for q in range(5): b(f"v_mov_b32 v{72+q}, 0xff800000")
    b(f"s_mov_b32 {sCnt}, 0")
    b.label("L_slowloop")
    for d in range(4): b(f"buffer_load_dwordx4 {vr(24+4*d,4)}, v21, {SK}, {sCnt} offen offset:{d*64}")
    b.wait(vm=0)
    for q in range(5):
        for d in range(4):
            b(f"{MF} {vr(80+4*q,4)}, {vr(24+4*d,4)}, {ar(QF+(q*4+d)*4,4)}, {'0' if d == 0 else vr(80+4*q,4)}")
    for q in range(5):
        b(f"v_max3_f32 v{72+q}, v{72+q}, v{80+4*q}, v{81+4*q}\nv_max3_f32 v{72+q}, v{72+q}, v{82+4*q}, v{83+4*q}")
    b(f"s_add_u32 {sCnt}, {sCnt}, 4096\ns_cmp_lt_u32 {sCnt}, 131072")
    b("s_cbranch_scc1 L_slowloop")
    for sw_ in ("v_permlane16_swap_b32", "v_permlane32_swap_b32"):
        for q in range(5): b(f"v_mov_b32 v{64+q}, v{72+q}")
        for q in range(5): b(f"{sw_} v{72+q}, v{64+q}")
        for q in range(5): b(f"v_max_f32 v{72+q}, v{72+q}, v{64+q}")
    for q in range(5):
        for i in range(4): b(f"v_sub_f32 v{NM+4*q+i}, 0, v{72+q}")
    p2_addr()
    b(f"s_mov_b32 {sKVm}, {sW1}\ns_mov_b32 {sKVs}, 0\ns_mov_b32 {sKVx}, {sRot}")
    for z in ZEROS: b(z)
    b.label("L_slowkv")
    pair()
    b(f"s_cmp_lt_u32 {sKVs}, {IENT * 4096}")
    b("s_cbranch_scc1 L_slowkv")
    b.wait(vm=0)
    b("s_barrier")
    for i in range(8): b(k_read(i))
    for i in range(4): b(VR[i])
    for i in range(8): b(s_mfma(0, i))
    b("s_nop 7")
    b.label("L_last")
    b("s_branch L_p2entry")
    return b.L

def gen_probe(spec):
    i, ri, j, rj = spec.split(",")
    b = B()
    b.raw(".p2align 8"); b.raw(".type mha_probe_kernel,@function"); b.label("mha_probe_kernel")
    b("s_cmp_ge_u32 s2, 1"); b("s_cbranch_scc1 L3_end")
    b.raw("s_memrealtime s[16:17]")
    b.raw("s_load_dwordx2 s[4:5], s[0:1], 56"); b.raw("s_waitcnt lgkmcnt(0)")
    b("s_mov_b32 s6, 268435456\ns_mov_b32 s7, 0x20000")
    b(f"v_mul_u32_u24 v1, 512, v0\nv_lshrrev_b32 v4, 1, v0\nv_and_b32 v4, 3, v4\nv_lshlrev_b32 v4, 7, v4\nv_add_u32 v1, v1, v4\ns_mov_b32 s8, {STAMP_OFF}")
    b(f"buffer_load_dword v2, v1, s[4:7], s8 offen offset:{8*int(i)}")
    b(f"buffer_load_dword v3, v1, s[4:7], s8 offen offset:{8*int(j)}")
    b.wait(vm=0)
    b("v_readlane_b32 s9, v2, 0")
    b("s_sub_u32 s9, s9, 100000")
    b("v_subrev_u32 v2, s9, v2\nv_subrev_u32 v3, s9, v3")
    for v, r, acc in ((2, ri, "s10"), (3, rj, "s11")):
        b(f"s_mov_b32 {acc}, {'-1' if r == 'min' else '0'}")
        for l in range(64):
            b(f"v_readlane_b32 s12, v{v}, {l}")
            b(f"{dict(min='s_min_u32', max='s_max_u32', avg='s_add_u32')[r]} {acc}, {acc}, s12")
        if r == 'avg': b(f"s_lshr_b32 {acc}, {acc}, 3")
        else: b(f"s_lshl_b32 {acc}, {acc}, 3")
    if opt("abs", 0):
        b("s_lshr_b32 s10, s10, 3\ns_add_u32 s12, s10, s9\ns_mov_b32 s10, 10000")
        if opt("abs", 0) == 2:
            b(f"s_mov_b32 s8, {STAMP_OFF + (3 << 20)}\nv_mov_b32 v1, 0\nbuffer_load_dword v2, v1, s[4:7], s8 offen")
            b.wait(vm=0)
            b("v_readfirstlane_b32 s12, v2")
    else:
        if opt("gap", 0): b("s_sub_u32 s11, s16, s9\ns_lshl_b32 s11, s11, 3")
        b("s_sub_u32 s10, s11, s10\ns_min_u32 s10, s10, 100000")
        b.raw("s_memrealtime s[12:13]"); b.raw("s_waitcnt lgkmcnt(0)")
    b.label("L3_spin")
    b.raw("s_memrealtime s[14:15]"); b.raw("s_waitcnt lgkmcnt(0)")
    b("s_sub_u32 s14, s14, s12\ns_cmp_lt_u32 s14, s10")
    b("s_cbranch_scc1 L3_spin")
    b.label("L3_end")
    b("s_endpgm")
    if opt("abs", 0) == 2:
        b.raw(".p2align 8"); b.raw(".type mha_tiny_kernel,@function"); b.label("mha_tiny_kernel")
        b.raw("s_memrealtime s[8:9]")
        b.raw("s_load_dwordx2 s[4:5], s[0:1], 56"); b.raw("s_waitcnt lgkmcnt(0)")
        b("s_cmp_ge_u32 s2, 1"); b("s_cbranch_scc1 L4_end")
        b(f"s_mov_b32 s6, 268435456\ns_mov_b32 s7, 0x20000\ns_mov_b32 s10, {STAMP_OFF + (3 << 20)}\nv_mov_b32 v1, 0\nv_mov_b32 v2, s8")
        b("buffer_store_dword v2, v1, s[4:7], s10 offen")
        b.label("L4_end")
        b("s_endpgm")
    return b.L

def main():
    k, n = hazard_pass(gen(), verbose=VERB)
    head = ["""; Kernarg: x (8,160,1024) | k_cache, v_cache (8,32,512,128) | wq (1024,4096) | wo (4096,1024) | out | debug | ws, all bf16.
;  1. Q^T = wq_h^T x_b^T          LDS-DMA ring of 64-deep k stages, 16x16x32 MFMA, wave tile 64 d x 80 q
;     that carry a per-launch value published in d_debug; every wait is bounded.""",
            "; Written by the generator script dev/gen26.py (instruction placement, waits and hazard padding by that script).",
            "; @launch grid=(256,1,1) block=(256,1,1) lds=163840",
            '.amdgcn_target "amdgcn-amd-amdhsa--gfx950"', ".text", f".globl {NAME}"]
    tail = ['.section .rodata,"a"', ".p2align 6", f".amdhsa_kernel {NAME}", "  .amdhsa_next_free_vgpr 512", "  .amdhsa_next_free_sgpr 102",
            "  .amdhsa_accum_offset 256", "  .amdhsa_group_segment_fixed_size 0", "  .amdhsa_kernarg_size 64", "  .amdhsa_user_sgpr_count 2",
            "  .amdhsa_user_sgpr_kernarg_segment_ptr 1", "  .amdhsa_system_sgpr_workgroup_id_x 1", ".end_amdhsa_kernel"]
    if "probe" in P:
        k3, _ = hazard_pass(gen_probe(P["probe"]))
        k = k + k3
        head[2] = f"; @launch kernel={NAME} grid=(256,1,1) block=(256,1,1) lds=163840\n; @launch kernel=mha_probe_kernel grid=(1,1,1) block=(64,1,1) lds=0"
        head.append(".globl mha_probe_kernel")
        if opt("abs", 0) == 2:
            head[2] = "; @launch kernel=mha_tiny_kernel grid=(1,1,1) block=(64,1,1) lds=0\n" + head[2]
            head.append(".globl mha_tiny_kernel")
            tail += [".p2align 6", ".amdhsa_kernel mha_tiny_kernel", "  .amdhsa_next_free_vgpr 8", "  .amdhsa_next_free_sgpr 32",
                "  .amdhsa_accum_offset 8", "  .amdhsa_group_segment_fixed_size 0", "  .amdhsa_kernarg_size 64", "  .amdhsa_user_sgpr_count 2",
                "  .amdhsa_user_sgpr_kernarg_segment_ptr 1", "  .amdhsa_system_sgpr_workgroup_id_x 1", ".end_amdhsa_kernel"]
        tail += [".p2align 6", ".amdhsa_kernel mha_probe_kernel", "  .amdhsa_next_free_vgpr 8", "  .amdhsa_next_free_sgpr 32",
            "  .amdhsa_accum_offset 8", "  .amdhsa_group_segment_fixed_size 0", "  .amdhsa_kernarg_size 64", "  .amdhsa_user_sgpr_count 2",
            "  .amdhsa_user_sgpr_kernarg_segment_ptr 1", "  .amdhsa_system_sgpr_workgroup_id_x 1", ".end_amdhsa_kernel"]
    if opt("tiny", 0):
        b = B()
        b.raw(".p2align 8"); b.raw(".type mha_tiny_kernel,@function"); b.label("mha_tiny_kernel")
        b.raw("s_memrealtime s[8:9]")
        b.raw("s_load_dwordx2 s[4:5], s[0:1], 56"); b.raw("s_waitcnt lgkmcnt(0)")
        b(f"s_mov_b32 s6, 268435456\ns_mov_b32 s7, 0x20000\ns_mov_b32 s10, {STAMP_OFF + (3 << 20)}\nv_mov_b32 v1, 0\nv_mov_b32 v2, s8\nv_mov_b32 v3, s9")
        b("buffer_store_dwordx2 v[2:3], v1, s[4:7], s10 offen")
        b("s_endpgm")
        k = k + b.L
        head[2] = f"; @launch kernel={NAME} grid=(256,1,1) block=(256,1,1) lds=163840\n; @launch kernel=mha_tiny_kernel grid=(1,1,1) block=(64,1,1) lds=0"
        head.append(".globl mha_tiny_kernel")
        tail += [".p2align 6", ".amdhsa_kernel mha_tiny_kernel", "  .amdhsa_next_free_vgpr 8", "  .amdhsa_next_free_sgpr 32",
            "  .amdhsa_accum_offset 8", "  .amdhsa_group_segment_fixed_size 0", "  .amdhsa_kernarg_size 64", "  .amdhsa_user_sgpr_count 2",
            "  .amdhsa_user_sgpr_kernarg_segment_ptr 1", "  .amdhsa_system_sgpr_workgroup_id_x 1", ".end_amdhsa_kernel"]
    fmt = lambda l: l if l.endswith(":") or l.startswith((".", ";")) else "    " + l
    open(sys.argv[1], "w").write("\n".join(head + [fmt(l) for l in k] + tail) + "\n")
    print(f"nops inserted: {n}; lines {len(k)}")
main()
```

```python
import sys
def gen(path, nwaves, body_compute, body_loader, iters=64, vgprs=256, lds=160*1024):
    name = "standalone__mha_block_cached__near_ridge_kernel"
    L = []
    A = L.append
    A(f"; @launch grid=(256,1,1) block=({nwaves*64},1,1) lds={lds}")
    A('.amdgcn_target "amdgcn-amd-amdhsa--gfx950"')
    A(".text"); A(f".globl {name}"); A(".p2align 8"); A(f".type {name},@function"); A(f"{name}:")
    A("s_load_dwordx2 s[4:5], s[0:1], 24")
    A("s_load_dwordx2 s[6:7], s[0:1], 56")
    A("v_and_b32 v1, 63, v0")
    A("v_lshrrev_b32 v2, 6, v0")
    A("s_nop 0")
    A("v_readfirstlane_b32 s20, v2")
    A("v_lshlrev_b32 v3, 4, v1")
    A("v_lshlrev_b32 v4, 3, v1")
    A("s_waitcnt lgkmcnt(0)")
    A("s_mov_b32 s8, s4"); A("s_mov_b32 s9, s5"); A("s_mov_b32 s10, 8388608"); A("s_mov_b32 s11, 0x20000")
    A("s_mov_b32 s12, s6"); A("s_mov_b32 s13, s7"); A("s_mov_b32 s14, 268435456"); A("s_mov_b32 s15, 0x20000")
    A("s_and_b32 s21, s2, 7"); A("s_lshl_b32 s21, s21, 20")
    A("s_and_b32 s22, s20, 3"); A("s_lshl_b32 s22, s22, 17"); A("s_add_u32 s21, s21, s22")
    A("s_mov_b32 s23, s21")
    A("s_and_b32 s24, s20, 3"); A("s_lshl_b32 s24, s24, 14"); A("s_add_u32 s24, s24, 65536")
    A("s_and_b32 s25, s20, 3"); A("s_lshl_b32 s25, s25, 14")
    A("v_add_u32 v5, s25, v3"); A("v_add_u32 v6, s25, v4")
    for r in range(8, 200):
        A(f"v_mov_b32 v{r}, 0")
    A("s_mov_b32 s26, 0")
    A("s_barrier")
    A("s_memtime s[28:29]")
    A("s_waitcnt lgkmcnt(0)")
    if body_loader is not None:
        A("s_cmp_ge_u32 s20, 4"); A("s_cbranch_scc1 L_loader")
    A(".p2align 6")
    A("L_loop:")
    L.extend(body_compute)
    A("s_add_u32 s26, s26, 1"); A(f"s_cmp_lt_u32 s26, {iters}"); A("s_cbranch_scc1 L_loop")
    A("s_branch L_done")
    if body_loader is not None:
        A(".p2align 6")
        A("L_loader:")
        L.extend(body_loader)
        A("s_add_u32 s26, s26, 1"); A(f"s_cmp_lt_u32 s26, {iters}"); A("s_cbranch_scc1 L_loader")
    A("L_done:")
    A("s_waitcnt vmcnt(0) lgkmcnt(0)")
    A("s_nop 15"); A("s_nop 15")
    A("s_memtime s[30:31]")
    A("s_waitcnt lgkmcnt(0)")
    A("s_sub_u32 s30, s30, s28"); A("s_subb_u32 s31, s31, s29")
    A("v_mov_b32 v10, s30"); A("v_mov_b32 v11, s31")
    A(f"s_mul_i32 s27, s2, {nwaves*8}"); A("s_lshl_b32 s22, s20, 3"); A("s_add_u32 s27, s27, s22")
    A(f"s_add_u32 s27, s27, {200<<20}")
    A("v_mov_b32 v12, 0")
    A("v_cmp_eq_u32 vcc, 0, v1"); A("s_and_saveexec_b64 s[32:33], vcc")
    A("buffer_store_dwordx2 v[10:11], v12, s[12:15], s27 offen")
    A("s_waitcnt vmcnt(0)")
    A("s_endpgm")
    A('.section .rodata,"a"'); A(".p2align 6"); A(f".amdhsa_kernel {name}")
    A(f"  .amdhsa_next_free_vgpr {vgprs}"); A("  .amdhsa_next_free_sgpr 102"); A(f"  .amdhsa_accum_offset 256")
    A("  .amdhsa_group_segment_fixed_size 0"); A("  .amdhsa_kernarg_size 64"); A("  .amdhsa_user_sgpr_count 2")
    A("  .amdhsa_user_sgpr_kernarg_segment_ptr 1"); A("  .amdhsa_system_sgpr_workgroup_id_x 1"); A(".end_amdhsa_kernel")
    open(path, "w").write("\n".join(L) + "\n")

def mfma32(i, nacc=5):
    a = 100 + (i % nacc) * 16
    return f"v_mfma_f32_32x32x16_bf16 v[{a}:{a+15}], v[8:11], v[12:15], v[{a}:{a+15}]"
def mfma16(i, nacc=20):
    a = 100 + (i % nacc) * 4
    return f"v_mfma_f32_16x16x32_bf16 v[{a}:{a+3}], v[8:11], v[12:15], v[{a}:{a+3}]"
def rd128(i):
    d = 16 + (i % 8) * 4
    return f"ds_read_b128 v[{d}:{d+3}], v5 offset:{(i%16)*1024}"
def rdtr(i):
    d = 48 + (i % 16) * 2
    return f"ds_read_b64_tr_b16 v[{d}:{d+1}], v6 offset:{(i%32)*512}"
def dma(i, wrap=False):
    out = [f"s_add_u32 m0, s24, {(i%16)*1024}",
           "s_add_u32 s21, s21, 1024",
           "buffer_load_dwordx4 v3, s[8:11], s21 offen lds"]
    return out
def wrap():
    return ["s_sub_u32 s22, s21, s23", "s_and_b32 s22, s22, 0x1ffff", "s_add_u32 s21, s23, s22"]

def interleave(nm, mf, fills):
    out = []
    n = len(fills)
    j = 0
    for i in range(nm):
        out.append(mf(i))
        tgt = (i + 1) * n // nm
        while j < tgt:
            f = fills[j]; j += 1
            out.extend(f if isinstance(f, list) else [f])
    return out

def merge(*lists):
    items = []
    for li, l in enumerate(lists):
        if not l: continue
        for k, it in enumerate(l):
            items.append(((k + 0.5) / len(l), li, it))
    items.sort(key=lambda t: (t[0], t[1]))
    return [t[2] for t in items]

if __name__ == "__main__":
    v = sys.argv[2]
    path = sys.argv[1]
    p = dict(kv.split("=") for kv in sys.argv[3:])
    nm = int(p.get("nm", 20)); n128 = int(p.get("n128", 0)); ntr = int(p.get("ntr", 0)); nd = int(p.get("nd", 0))
    nexp = int(p.get("nexp", 0)); nval = int(p.get("nval", 0)); ncvt = int(p.get("ncvt", 0))
    shape = p.get("shape", "32"); vm = int(p.get("vm", 16)); bar = int(p.get("bar", 0))
    mf = mfma32 if shape == "32" else mfma16
    fl = []
    if n128: fl.append([rd128(i) for i in range(n128)])
    if ntr: fl.append([rdtr(i) for i in range(ntr)])
    if nexp: fl.append([f"v_exp_f32 v{80+(i%8)}, v{88+(i%4)}" for i in range(nexp)])
    if nval: fl.append([f"v_add_f32 v{92+(i%4)}, v{92+(i%4)}, v{88+(i%4)}" for i in range(nval)])
    if ncvt: fl.append([f"v_cvt_pk_bf16_f32 v{96+(i%4)}, v{88+(i%4)}, v{89}" for i in range(ncvt)])
    loader = None
    nw = 4
    if v == "self":
        if nd: fl.append([dma(i) for i in range(nd)])
        body = interleave(nm, mf, merge(*fl)) if nm else [x for f in merge(*fl) for x in (f if isinstance(f, list) else [f])]
        body += wrap() + [f"s_waitcnt vmcnt({vm})"]
        if n128 or ntr: body += ["s_waitcnt lgkmcnt(8)"]
        if bar: body += ["s_barrier"]
    elif v == "loader":
        nw = 8
        body = interleave(nm, mf, merge(*fl)) if fl else [mf(i) for i in range(nm)]
        if n128 or ntr: body += ["s_waitcnt lgkmcnt(8)"]
        body += ["s_barrier"]
        loader = [x for i in range(nd) for x in dma(i)] + wrap() + [f"s_waitcnt vmcnt({vm})", "s_barrier"]
    elif v == "two":
        nw = 8
        if nd: fl.append([dma(i) for i in range(nd)])
        body = interleave(nm, mf, merge(*fl)) if nm else [x for f in merge(*fl) for x in (f if isinstance(f, list) else [f])]
        body += wrap() + [f"s_waitcnt vmcnt({vm})"]
        if n128 or ntr: body += ["s_waitcnt lgkmcnt(8)"]
        if bar: body += ["s_barrier"]
    gen(path, nw, body, loader, iters=64)
    print(nw)
```

```python
import sys
from mb_gen import *
if __name__ == "__main__":
    path = sys.argv[1]
    p = dict(kv.split("=") for kv in sys.argv[3:])
    rt = int(p.get("rt", 1)); kind = p.get("k", "none"); n = int(p.get("n", 16))
    def m16(i):
        a = 100 + ((i // 2) % 20) * 4; A = 16 + (i % 8) * 4; Bq = 48 + ((i * 3) % 7) * 4
        return f"v_mfma_f32_16x16x32_bf16 v[{a}:{a+3}], v[{A}:{A+3}], v[{Bq}:{Bq+3}], v[{a}:{a+3}]"
    f = {"none": [], "tr": [f"ds_read_b64_tr_b16 v[{200+(i%16)*2}:{201+(i%16)*2}], v6 offset:{(i%32)*512}" for i in range(n)],
         "b64": [f"ds_read_b64 v[{200+(i%16)*2}:{201+(i%16)*2}], v6 offset:{(i%32)*512}" for i in range(n)],
         "b128": [f"ds_read_b128 v[{200+(i%8)*4}:{203+(i%8)*4}], v5 offset:{(i%16)*1024}" for i in range(n)],
         "exp": [f"v_exp_f32 v{200+(i%8)}, v{16+(i%40)}" for i in range(n)],
         "cvt": [f"v_cvt_pk_bf16_f32 v{200+(i%8)}, v{16+(i%40)}, v{17+(i%40)}" for i in range(n)],
         "add": [f"v_add_f32 v{200+(i%8)}, v{16+(i%40)}, v{17+(i%40)}" for i in range(n)],
         "salu": ["s_add_u32 s40, s40, 1"] * n, "wait": ["s_waitcnt lgkmcnt(0)"] * n}[kind]
    body = interleave(40, m16, f) if f else [m16(i) for i in range(40)]
    gen(path, 4, body, None, vgprs=512)
    s = open(path).read()
    init = ["s_load_dwordx2 s[44:45], s[0:1], 8", "s_waitcnt lgkmcnt(0)", "s_mov_b32 s46, 33554432", "s_mov_b32 s47, 0x20000",
            "v_lshlrev_b32 v7, 4, v0", "s_lshl_b32 s48, s2, 16"]
    for i in range(15):
        init += [f"buffer_load_dwordx4 v[{16+4*i}:{16+4*i+3}], v7, s[44:47], s48 offen", "s_add_u32 s48, s48, 4096"]
    init += ["s_waitcnt vmcnt(0)"]
    for i in range(16):
        init += [f"ds_write_b128 v5, v[{16+4*(i%15)}:{16+4*(i%15)+3}] offset:{i*1024}"]
    init += ["s_waitcnt lgkmcnt(0)"]
    s = s.replace("s_mov_b32 s26, 0\n", "\n".join(init) + "\ns_mov_b32 s26, 0\n")
    if rt: s = s.replace("s_memtime", "s_memrealtime")
    open(path, "w").write(s)
    print(4)
```

```python
import sys
from mb_gen import *
if __name__ == "__main__":
    path = sys.argv[1]
    p = dict(kv.split("=") for kv in sys.argv[3:])
    shape = p.get("shape", "32"); rt = int(p.get("rt", 1)); n128 = int(p.get("n128", 0)); nexp = int(p.get("nexp", 0)); nval = int(p.get("nval", 0))
    na = int(p.get("na", 4)); nb = int(p.get("nb", 5)); duty = int(p.get("duty", 0)); order = p.get("order", "a")
    def m32(i):
        a = 100 + (i % 5) * 16
        A = 16 + ((i // 5) % na) * 4; Bq = 48 + (i % nb) * 4
        return f"v_mfma_f32_32x32x16_bf16 v[{a}:{a+15}], v[{A}:{A+3}], v[{Bq}:{Bq+3}], v[{a}:{a+15}]"
    def m16(i):
        a = 100 + (i % 20) * 4
        if order == "a": A = 16 + ((i // 5) % na) * 4; Bq = 48 + (i % nb) * 4
        else: A = 16 + (i % na) * 4; Bq = 48 + ((i // 4) % nb) * 4
        return f"v_mfma_f32_16x16x32_bf16 v[{a}:{a+3}], v[{A}:{A+3}], v[{Bq}:{Bq+3}], v[{a}:{a+3}]"
    ka = p.get("ka", "v"); kb = p.get("kb", "v"); kc = p.get("kc", "v")
    def m16(i):
        a = 100 + (i % 20) * 4
        if order == "a": A = 16 + ((i // 5) % na) * 4; Bq = 48 + (i % nb) * 4
        else: A = 16 + (i % na) * 4; Bq = 48 + ((i // 4) % nb) * 4
        return f"v_mfma_f32_16x16x32_bf16 {kc}[{a}:{a+3}], {ka}[{A}:{A+3}], {kb}[{Bq}:{Bq+3}], {kc}[{a}:{a+3}]"
    ch = int(p.get("ch", 0))
    if ch:
        def m16(i):
            a = 100 + ((i // ch) % 20) * 4
            A = 16 + (i % 8) * 4; Bq = 48 + ((i * 3) % 7) * 4
            return f"v_mfma_f32_16x16x32_bf16 {kc}[{a}:{a+3}], {ka}[{A}:{A+3}], {kb}[{Bq}:{Bq+3}], {kc}[{a}:{a+3}]"
    if ch:
        def m32(i):
            a = 100 + ((i // ch) % 5) * 16
            A = 16 + (i % 8) * 4; Bq = 48 + ((i * 3) % 7) * 4
            return f"v_mfma_f32_32x32x16_bf16 v[{a}:{a+15}], v[{A}:{A+3}], v[{Bq}:{Bq+3}], v[{a}:{a+15}]"
    pat = p.get("pat", "")
    if pat:
        Af = lambda u, d: f"v[{16+(u*4+d)*4}:{19+(u*4+d)*4}]"
        Bf = lambda u, q: f"a[{16+(u*5+q)*4+8}:{19+(u*5+q)*4+8}]"
        seq = []
        if pat == "cur": seq = [(u, d, q) for u in range(2) for d in range(4) for q in range(5)]
        if pat == "snake": seq = [(u, d, q if d % 2 == 0 else 4 - q) for u in range(2) for d in range(4) for q in range(5)]
        if pat == "bsnake": seq = [(u, d if q % 2 == 0 else 3 - d, q) for u in range(2) for q in range(5) for d in range(4)]
        if pat == "c2": seq = [(u, d, q) for d in range(4) for q in range(5) for u in range(2)]
        if pat == "c2s":
            k = 0
            for d in range(4):
                for q in (range(5) if d % 2 == 0 else range(4, -1, -1)):
                    seq += [(k, d, q), (k ^ 1, d, q)]; k ^= 1
        if pat == "c2b":
            k = 0
            for q in range(5):
                for d in (range(4) if q % 2 == 0 else range(3, -1, -1)):
                    seq += [(k, d, q), (k ^ 1, d, q)]; k ^= 1
        def m16(i):
            u, d, q = seq[i]; a = 100 + (d*5+q)*4
            return f"v_mfma_f32_16x16x32_bf16 v[{a}:{a+3}], {Af(u,d)}, {Bf(u,q)}, v[{a}:{a+3}]"
    nm = 20 if shape == "32" else 40
    fl = []
    if n128: fl.append([f"ds_read_b128 {ka}[{16+(i%13)*4}:{16+(i%13)*4+3}], v5 offset:{(i%16)*1024}" for i in range(n128)])
    if nexp: fl.append([f"v_exp_f32 v{80+(i%8)}, v{88+(i%4)}" for i in range(nexp)])
    if nval: fl.append([f"v_add_f32 v{92+(i%4)}, v{92+(i%4)}, v{88+(i%4)}" for i in range(nval)])
    if duty: fl.append([f"s_nop 7" for i in range(duty)])
    body = interleave(nm, m32 if shape == "32" else m16, merge(*fl)) if fl else [(m32 if shape == "32" else m16)(i) for i in range(nm)]
    gen(path, 4, body, None, vgprs=512)
    s = open(path).read()
    init = ["s_load_dwordx2 s[44:45], s[0:1], 8", "s_waitcnt lgkmcnt(0)", "s_mov_b32 s46, 33554432", "s_mov_b32 s47, 0x20000",
            "v_lshlrev_b32 v7, 4, v0", "s_lshl_b32 s48, s2, 16"]
    for i in range(15):
        init += [f"buffer_load_dwordx4 v[{16+4*i}:{16+4*i+3}], v7, s[44:47], s48 offen", "s_add_u32 s48, s48, 4096"]
    init += ["s_waitcnt vmcnt(0)"]
    for i in range(16):
        init += [f"ds_write_b128 v5, v[{16+4*(i%15)}:{16+4*(i%15)+3}] offset:{i*1024}"]
    init += ["s_waitcnt lgkmcnt(0)"]
    for r in range(16, 76): init += [f"v_accvgpr_write_b32 a{r}, v{r}"]
    for r in range(100, 180): init += [f"v_accvgpr_write_b32 a{r}, 0"]
    s = s.replace("s_mov_b32 s26, 0\n", "\n".join(init) + "\ns_mov_b32 s26, 0\n")
    if rt: s = s.replace("s_memtime", "s_memrealtime")
    open(path, "w").write(s)
    print(4)
```
